```python
import torch

def _softmax(x, axis=-1):
    return torch.softmax(x, dim=axis)
def _gelu(x):
    return torch.nn.functional.gelu(x, approximate="tanh")
def _silu(x):
    return torch.nn.functional.silu(x)
def _sigmoid(x):
    return torch.sigmoid(x)
def _layernorm(x, axis=-1, eps=1e-5):
    m = x.mean(dim=axis, keepdim=True)
    v = x.var(dim=axis, keepdim=True, unbiased=False)
    return (x - m) / torch.sqrt(v + eps)
def _scatter_add(tgt, idx, src, axis=0):
    return tgt.clone().index_add_(axis, idx, src)
def _segment_sum(src, seg, n):
    out = torch.zeros((n,) + src.shape[1:], dtype=src.dtype)
    return out.index_add_(0, seg, src)
def _pad(x, pw):
    flat = tuple(v for pair in reversed(pw) for v in pair)
    return torch.nn.functional.pad(x, flat)

kernel_name = 'gated_mix__softmax_full_mha__glu_gated_geglu__prompt'

def setup_inputs():

    _w = (lambda a: (lambda t: t.to(torch.bfloat16) if t.is_floating_point() else t)(torch.as_tensor(a)))
    def _A_setup():
        B, S, D = 1, 2048, 512
        return {
            "x": _w((lambda *s: torch.randn(*s, dtype=torch.bfloat16) * 0.05)(B, S, D)),
            "wqkv": _w((lambda *s: torch.randn(*s, dtype=torch.bfloat16) * 0.8)(D, 3 * D)),
            "wo": _w((lambda *s: torch.randn(*s, dtype=torch.bfloat16) * 0.05)(D, D)),
        }
    _A_in = _A_setup()

    def _B_setup():
        B, S, Dm, Df = 1, 2048, 512, 1376
        return {
            "x": _w((lambda *s: torch.randn(*s, dtype=torch.bfloat16) * 0.05)(B, S, Dm)),
            "w_gate": _w((lambda *s: torch.randn(*s, dtype=torch.bfloat16) * 3.2)(Dm, Df) * (Dm ** -0.5)),
            "w_up": _w((lambda *s: torch.randn(*s, dtype=torch.bfloat16) * 3.2)(Dm, Df) * (Dm ** -0.5)),
            "w_down": _w((lambda *s: torch.randn(*s, dtype=torch.bfloat16) * 3.2)(Df, Dm) * (Df ** -0.5)),
        }
    _B_in = _B_setup()

    return {
        "A_x": _A_in["x"],
        "A_wqkv": _A_in["wqkv"],
        "A_wo": _A_in["wo"],
        "B_x": _B_in["x"],
        "B_w_gate": _B_in["w_gate"],
        "B_w_up": _B_in["w_up"],
        "B_w_down": _B_in["w_down"],
        "gate_w": _w((lambda *s: torch.randn(*s, dtype=torch.bfloat16) * 0.05)(512) * 16.0),
    }

def reference(A_x, A_wqkv, A_wo, B_x, B_w_gate, B_w_up, B_w_down, gate_w):
    def _A_ref(x, wqkv, wo):
        B, S, D = x.shape
        H = 32; Dh = D // H
        qkv = (lambda x, *d: x.permute(*d))((x @ wqkv).reshape(B, S, 3, H, Dh), 2, 0, 3, 1, 4)
        q, k, v = qkv[0], qkv[1], qkv[2]
        scale = Dh ** -0.5
        scores = torch.einsum("bhqd,bhkd->bhqk", q, k) * scale
        p = _softmax(scores, axis=-1)
        o = torch.einsum("bhqk,bhkd->bhqd", p, v)
        return (lambda x, *d: x.permute(*d))(o, 0, 2, 1, 3).reshape(B, S, D) @ wo

    def _B_ref(x, w_gate, w_up, w_down):
        g = torch.einsum("bsd,df->bsf", x, w_gate)
        u = torch.einsum("bsd,df->bsf", x, w_up)
        h = _gelu(g) * u
        return torch.einsum("bsf,fd->bsd", h, w_down)

    x = A_x
    g = _sigmoid((x * gate_w).sum(-1, keepdims=True))
    a = _A_ref(x, A_wqkv, A_wo)
    b = _B_ref(x, B_w_gate, B_w_up, B_w_down)
    return g * a + (1 - g) * b
```

```python
import re

TRANS = ('v_exp_', 'v_log_', 'v_rcp_', 'v_rsq_', 'v_sqrt_', 'v_sin_', 'v_cos_')


def regs_of(op):
    op = op.strip()
    op = op.lstrip('-')
    if op.startswith('abs(') or op.startswith('|'):
        op = op.replace('abs(', '').replace(')', '').replace('|', '')
    m = re.fullmatch(r'([vsa])\[(\d+):(\d+)\]', op)
    if m:
        return [(m.group(1), i) for i in range(int(m.group(2)), int(m.group(3)) + 1)]
    m = re.fullmatch(r'([vsa])(\d+)', op)
    if m:
        return [(m.group(1), int(m.group(2)))]
    if op == 'vcc':
        return [('s', 'vcc')]
    if op in ('vcc_lo', 'vcc_hi'):
        return [('s', 'vcc')]
    if op == 'exec':
        return [('s', 'exec')]
    if op == 'm0':
        return [('s', 'm0')]
    return []


class Ins:
    def __init__(self, text):
        self.text = text
        t = text.split(';')[0].strip()
        parts = t.split(None, 1)
        self.op = parts[0]
        rest = parts[1] if len(parts) > 1 else ''
        ops = [o.strip() for o in rest.split(',')] if rest else []
        if ops:
            last = ops[-1].split()
            self.mods = last[1:]
            ops[-1] = last[0]
        else:
            self.mods = []
        clean = []
        for o in ops:
            w = o.split()
            clean.append(w[0] if w else o)
            self.mods += w[1:]
        self.ops = clean
        op = self.op
        self.states = 1
        self.kind = 'other'
        self.w = []
        self.r = []
        self.srcc = []
        self.passes = 0
        R = lambda i: regs_of(self.ops[i]) if i < len(self.ops) else []
        if op == 's_nop':
            self.states = int(self.ops[0], 0) + 1
            self.kind = 'salu'
        elif op.startswith('v_mfma') or op.startswith('v_smfmac'):
            self.kind = 'mfma'
            self.passes = 8 if '32x32' in op else 4
            self.w = R(0)
            self.ab = R(1) + R(2)
            if op.startswith('v_smfmac'):
                self.srcc = R(0)
                self.ab += R(3)
            else:
                self.srcc = R(3)
            self.r = self.ab + self.srcc
        elif op.startswith('v_'):
            self.kind = 'valu'
            n = len(self.ops)
            if op.startswith('v_permlane') and 'swap' in op:
                self.w = R(0) + R(1)
                self.r = R(0) + R(1)
            elif op.startswith(('v_add_co', 'v_sub_co', 'v_addc_co', 'v_subb_co')):
                self.w = R(0) + R(1)
                for i in range(2, n):
                    self.r += R(i)
            else:
                self.w = R(0)
                for i in range(1, n):
                    self.r += R(i)
                if op.startswith(('v_fmac', 'v_dot2c')):
                    self.r += R(0)
        elif op.startswith('ds_'):
            self.kind = 'ds'
            if op.startswith('ds_read') or '_rtn' in op or 'permute' in op:
                self.w = R(0)
                for i in range(1, len(self.ops)):
                    self.r += R(i)
            else:
                for i in range(len(self.ops)):
                    self.r += R(i)
        elif op.startswith(('buffer_', 'global_')):
            self.kind = 'vmem'
            self.lds = ('lds' in self.mods) or ('load_lds' in op)
            if 'load' in op and not self.lds:
                self.w = R(0)
                for i in range(1, len(self.ops)):
                    self.r += R(i)
            else:
                for i in range(len(self.ops)):
                    self.r += R(i)
            self.wide_data = []
            if 'store_dwordx4' in op or 'store_dwordx3' in op:
                self.wide_data = R(0) if op.startswith('buffer_') else R(1)
        elif op.startswith('s_'):
            self.kind = 'salu'
            if not op.startswith(('s_cmp', 's_cbranch', 's_branch', 's_waitcnt', 's_barrier', 's_setprio', 's_sleep', 's_endpgm')):
                self.w = R(0)
                for i in range(1, len(self.ops)):
                    self.r += R(i)
        self.trans = op.startswith(TRANS)
        self.dot = op.startswith('v_dot')
        self.ws = set(self.w)
        self.rs = set(self.r)


def required(p, c):
    need = 0
    if p.kind == 'valu':
        pv = {x for x in p.ws if x[0] in 'va'}
        ps = {x for x in p.ws if x[0] == 's'}
        if c.kind == 'mfma' and pv & c.rs:
            need = max(need, 2)
        if c.kind == 'valu':
            if c.op.startswith('v_permlane') and pv & c.rs:
                need = max(need, 2)
            if c.op.startswith(('v_readlane', 'v_readfirstlane')) and pv & c.rs:
                need = max(need, 1)
            if p.trans and not c.trans and pv & c.rs:
                need = max(need, 1)
            if ps & c.rs:
                need = max(need, 4 if c.op.startswith(('v_readlane', 'v_writelane')) else 2)
            if 'dpp' in c.text and pv & c.rs:
                need = max(need, 2)
        if c.kind == 'vmem' and ps & c.rs:
            need = max(need, 5)
        if c.kind == 'salu' and ps & c.rs:
            need = max(need, 1)
        if p.dot and c.kind in ('valu', 'mfma', 'ds', 'vmem') and (pv & (c.rs | c.ws)):
            same_acc = c.op == p.op and not (pv & (set(regs_of(c.ops[1])) | set(regs_of(c.ops[2]))))
            if not same_acc:
                need = max(need, 3)
    elif p.kind == 'mfma':
        big = p.passes == 8
        if c.kind == 'mfma':
            if p.ws & set(c.ab):
                need = max(need, 12 if big else 8)
            cc = set(c.srcc) | c.ws
            if p.ws & cc:
                exact = (p.w == c.srcc and p.w == c.w and p.passes == c.passes)
                if not exact:
                    need = max(need, 10 if big else 6)
        elif c.kind in ('valu', 'ds', 'vmem'):
            if p.ws & (c.rs | c.ws):
                need = max(need, 12 if big else 8)
            if c.kind == 'valu' and set(p.srcc) & c.ws:
                need = max(need, 7 if big else 3)
    elif p.kind == 'salu':
        if ('s', 'm0') in p.ws and c.kind == 'vmem' and c.lds:
            need = max(need, 1)
    elif p.kind == 'vmem':
        if p.wide_data and c.kind in ('valu', 'mfma') and set(p.wide_data) & c.ws:
            need = max(need, 2)
        if p.wide_data and c.kind in ('ds', 'vmem') and set(p.wide_data) & c.ws:
            need = max(need, 1)
    return need


class Path:
    def __init__(self):
        self.vm = []
        self.lg = []
        self.hist = []
        self.g = None

    def copy(self):
        q = Path()
        q.g = self.g
        q.vm = list(self.vm)
        q.lg = list(self.lg)
        q.hist = list(self.hist)
        return q


class Emitter:
    def __init__(self):
        self.lines = []
        self.paths = [Path()]
        self.nops = 0
        self.uid = 0

    def label(self, name):
        self.lines.append(name + ':')

    def raw(self, text):
        self.lines.append(text)

    def comment(self, text):
        self.lines.append('    ; ' + text)

    def newlabel(self, base):
        self.uid += 1
        return f'L{base}_{self.uid}'

    def _push(self, ins):
        self.lines.append('    ' + ins.text)
        for p in self.paths:
            p.hist.append(ins)
            if len(p.hist) > 24:
                p.hist.pop(0)

    def __call__(self, text, tag=None):
        if getattr(self, 'drop', None) and text.startswith(self.drop):
            return None
        ins = Ins(text)
        need = 0
        for p in self.paths:
            dist = 0
            for prev in reversed(p.hist):
                need = max(need, required(prev, ins) - dist)
                dist += prev.states
                if dist >= 16:
                    break
        if need > 0:
            self.nops += need
            self._push(Ins(f's_nop {need - 1}'))
        self._push(ins)
        if ins.kind == 'vmem':
            for p in self.paths:
                p.vm.append(tag)
        elif ins.kind == 'ds':
            for p in self.paths:
                p.lg.append(tag)
        return ins

    @staticmethod
    def _count(q, tags):
        idx = -1
        for i, t in enumerate(q):
            if t in tags:
                idx = i
        return None if idx < 0 else len(q) - 1 - idx

    def wait(self, vm=None, lg=None):
        nv = nl = None
        for p in self.paths:
            if vm is not None:
                n = (0 if p.vm else None) if vm == 'all' else self._count(p.vm, vm if isinstance(vm, (list, set, tuple)) else [vm])
                if n is not None:
                    nv = n if nv is None else min(nv, n)
            if lg is not None:
                n = (0 if p.lg else None) if lg == 'all' else self._count(p.lg, lg if isinstance(lg, (list, set, tuple)) else [lg])
                if n is not None:
                    nl = n if nl is None else min(nl, n)
        parts = []
        if nv is not None:
            nv = min(nv, 63)
            parts.append(f'vmcnt({nv})')
            for p in self.paths:
                p.vm = p.vm[len(p.vm) - nv:] if nv < len(p.vm) else p.vm
                if nv == 0:
                    p.vm = []
        if nl is not None:
            nl = min(nl, 15)
            parts.append(f'lgkmcnt({nl})')
            for p in self.paths:
                p.lg = p.lg[len(p.lg) - nl:] if nl < len(p.lg) else p.lg
                if nl == 0:
                    p.lg = []
        if parts:
            self('s_waitcnt ' + ' '.join(parts))

    def snapshot(self):
        return [p.copy() for p in self.paths]

    def restore(self, snap):
        self.paths = [p.copy() for p in snap]

    def text(self):
        return '\n'.join(self.lines) + '\n'


class Win:
    def __init__(self, e, regs, bias=0):
        self.e = e
        self.regs = regs if isinstance(regs, list) else [regs]
        self.bias = bias

    def ensure(self, lo, hi):
        if lo - self.bias >= 0 and hi - self.bias <= 65535:
            return
        d = lo - self.bias
        for r in self.regs:
            if d >= 0:
                self.e(f'v_add_u32 v{r}, {d}, v{r}')
            else:
                self.e(f'v_subrev_u32 v{r}, {-d}, v{r}')
        self.bias = lo

    def off(self, target):
        o = target - self.bias
        assert 0 <= o <= 65535, o
        return o
```

```python
import sys, math, struct
from asmlib import Emitter, Win

KNAME = 'gated_mix__softmax_full_mha__glu_gated_geglu__prompt_kernel'

WS_Q = 0
WS_KV = 2 << 20
WS_O = 6 << 20
WS_F1 = 8 << 20
WS_F2 = WS_F1 + 8192
WS_ST = WS_F1 + 65536
WS_H = 9 << 20
WS_END = 15 << 20

L_GW = 0
L_Z = 1024
SLOT0 = 4096
SLOT = 28672
UPOFF = 12288 + 32
WREG = 20480
L_RING = 8192
L_CNT = 7 * WREG + 18432
LDS_BYTES = 163840

S_X, S_WQ, S_WF, S_WS, S_H, S_WD, S_WO, S_OUT, S_DBG, S_GW = [4 * i + 4 for i in range(10)]
sW, sTT, sG, sJ, sTB, sRB, sCB, sUS = range(44, 52)
sXO, sWO, sFO, sMX, sMW, sMF = range(52, 58)
sNON = 58
sKV, sKVB, sKVI, sHO, sDO, sMD = range(60, 66)
sVM = 66
sT = 68
sSPIN = 84
sSTMP = 86
sSTAMP = 88


def srd(b):
    return f's[{b}:{b + 3}]'


def vr(b, n):
    return f'v[{b}:{b + n - 1}]' if n > 1 else f'v{b}'


def fbits(x):
    return '0x%08x' % struct.unpack('<I', struct.pack('<f', x))[0]


vL16 = 1
vXD = [2, 3]
vWD = [4, 5, 6]
vFD = [7, 8, 9]
vXR = [10, 11, 12, 13]
vWR = 14
vFR = 15
FR = 16
NFR = 5
ACA = 36
ACF = 68
vK = [116, 120]
vCH, vCO, vIDX, vVA = 124, 125, 126, 127
X = 128
vO = [X + 16 * i for i in range(4)]
vQ = [X + 64 + 4 * i for i in range(4)]
vV = [X + 80, X + 88]
vS = [ACA, ACA + 16]
vG = [ACF, ACF + 16, ACF + 32, X + 96]
vH = [X + 112, X + 120]
vD = FR
vDD = [2, 3]
vDR = [4, 5]
vP = 6
vPA = 8
vRW = 9

LOG2E = 1.4426950408889634
QSCALE = 0.25 * LOG2E
GC0 = -2.0 * LOG2E * math.sqrt(2.0 / math.pi)
GC1 = GC0 * 0.044715
SPIN = 400000


class Gen:
    def __init__(self, stamps=False, opt=None):
        self.e = Emitter()
        self.stamps = stamps
        self.nst = 0
        self.opt = dict(g2start=4, prio=True)
        if opt:
            self.opt.update(opt)
        self.tail_blocks = []

    def stamp(self, idx):
        if not self.stamps:
            return
        e = self.e
        e(f's_memrealtime s[{sSTMP}:{sSTMP + 1}]')
        e('s_waitcnt lgkmcnt(0)')
        for p in e.paths:
            p.lg = []
        e(f's_mov_b32 s{sSTAMP + idx}, s{sSTMP}')

    def dma_list(self, s, g):
        e = self.e
        slot = SLOT0 + SLOT * (s % 5)
        out = []
        tag = f'st{s}'
        if s < 8:
            for i in range(2):
                def f(i=i):
                    e(f's_add_u32 m0, s{sMX}, {slot + i * 1024 - s * 128}')
                    e(f'buffer_load_dwordx4 v{vXD[i]}, {srd(S_X)}, s{sXO} offen offset:{s * 128} lds', tag)
                out.append(f)
            if s % 2 == g:
                for i in range(3):
                    def f(i=i):
                        e(f's_add_u32 m0, s{sMW}, {slot + 16384 + i * 1024}')
                        e(f'buffer_load_dwordx4 v{vWD[i]}, {srd(S_WQ)}, s{sWO} offen lds', tag)
                        if i == 2:
                            e(f's_add_u32 s{sWO}, s{sWO}, {128 * 3072}')
                    out.append(f)
        else:
            for i in range(3):
                def f(i=i):
                    e(f's_add_u32 m0, s{sMF}, {slot + i * 1024}')
                    e(f'buffer_load_dwordx4 v{vFD[i]}, {srd(S_WF)}, s{sFO} offen lds', tag)
                    if i == 2:
                        e(f's_add_u32 s{sFO}, s{sFO}, {64 * 2752}')
                out.append(f)
        return out

    def prologue(self):
        e = self.e
        self.stamp(0)
        e('s_cmp_ge_u32 s2, 256')
        e('s_cbranch_scc1 Lexit')
        for b, off in ((S_X, 0), (S_WQ, 8), (S_GW, 56), (S_DBG, 72), (S_WS, 80), (S_H, 80), (S_WD, 48), (S_WO, 16), (S_OUT, 64)):
            e(f's_load_dwordx2 s[{b}:{b + 1}], s[0:1], {off}')
        e(f's_load_dwordx4 s[{sT}:{sT + 3}], s[0:1], 32')
        e(f's_memrealtime s[{sNON}:{sNON + 1}]')
        e('v_lshrrev_b32 v2, 6, v0')
        e('v_and_b32 v0, 63, v0')
        e(f'v_readfirstlane_b32 s{sW}, v2')
        e(f'v_lshlrev_b32 v{vL16}, 4, v0')
        e('v_lshrrev_b32 v16, 3, v0')
        e('v_lshrrev_b32 v17, 4, v0')
        e('v_and_b32 v18, 7, v0')
        e('v_xor_b32 v18, v18, v17')
        e('v_lshlrev_b32 v18, 4, v18')
        e(f'v_lshl_add_u32 v{vXD[0]}, v16, 10, v18')
        e(f'v_xor_b32 v{vXD[1]}, 64, v{vXD[0]}')
        e(f'v_add_u32 v{vXD[1]}, 8192, v{vXD[1]}')
        e(f's_and_b32 s{sT + 4}, s2, 7')
        e(f's_lshr_b32 s{sT + 5}, s2, 3')
        e(f's_and_b32 s{sJ}, s2, 3')
        e(f's_lshl_b32 s{sJ}, s{sJ}, 2')
        e(f's_and_b32 s{sT + 6}, s{sT + 5}, 3')
        e(f's_add_u32 s{sJ}, s{sJ}, s{sT + 6}')
        e(f's_lshr_b32 s{sTB}, s{sT + 4}, 2')
        e(f's_lshl_b32 s{sTB}, s{sTB}, 3')
        e(f's_lshr_b32 s{sT + 6}, s{sT + 5}, 2')
        e(f's_add_u32 s{sTB}, s{sTB}, s{sT + 6}')
        e(f's_lshl_b32 s{sRB}, s{sT + 4}, 2')
        e(f's_lshr_b32 s{sT + 6}, s{sT + 5}, 3')
        e(f's_add_u32 s{sRB}, s{sRB}, s{sT + 6}')
        e(f's_and_b32 s{sCB}, s{sT + 5}, 7')
        e(f's_and_b32 s{sTT}, s{sW}, 3')
        e(f's_lshr_b32 s{sG}, s{sW}, 2')
        e(f's_lshl_b32 s{sXO}, s{sTB}, 17')
        e(f's_lshl_b32 s{sT + 6}, s{sW}, 14')
        e(f's_add_u32 s{sXO}, s{sXO}, s{sT + 6}')
        e(f's_lshl_b32 s{sMX}, s{sW}, 11')
        e(f's_mul_i32 s{sMW}, s{sTT}, 3072')
        e(f's_mul_i32 s{sWO}, s{sW}, {16 * 3072}')
        e(f's_mul_i32 s{sT + 6}, s{sJ}, 192')
        e(f's_add_u32 s{sWO}, s{sWO}, s{sT + 6}')
        for b, n in ((S_X, 2048 * 1024), (S_WQ, 512 * 3072), (S_GW, 1024), (S_DBG, 256), (S_WS, WS_END), (S_H, 86 * 65536),
                     (S_WD, 1376 * 1024), (S_WO, 512 * 1024), (S_OUT, 2048 * 1024), (S_WF, 512 * 2752)):
            e(f's_mov_b32 s{b + 2}, {n}')
            e(f's_mov_b32 s{b + 3}, 0x20000')
        for i in range(3):
            e(f'v_add_u32 v16, {64 * i}, v0')
            e('v_mul_u32_u24 v17, 43691, v16')
            e('v_lshrrev_b32 v17, 19, v17')
            e('v_mul_u32_u24 v18, 12, v17')
            e('v_sub_u32 v18, v16, v18')
            e('v_lshlrev_b32 v18, 4, v18')
            e(f'v_mul_u32_u24 v{vWD[i]}, 3072, v17')
            e(f'v_add_u32 v{vWD[i]}, v{vWD[i]}, v18')
            e(f'v_mul_u32_u24 v{vFD[i]}, 2752, v17')
            e(f'v_add_u32 v{vFD[i]}, v{vFD[i]}, v18')
        e('s_waitcnt lgkmcnt(0)')
        self.stamp(1)

    def setup2(self):
        e = self.e
        e(f's_cmp_eq_u32 s{sG}, 0')
        e(f's_cselect_b32 s{S_WF}, s{sT}, s{sT + 2}')
        e(f's_cselect_b32 s{S_WF + 1}, s{sT + 1}, s{sT + 3}')
        e(f's_add_u32 s{S_H}, s{S_H}, {WS_H}')
        e(f's_addc_u32 s{S_H + 1}, s{S_H + 1}, 0')
        e(f's_mul_i32 s{sUS}, s{sJ}, {8 * 43691}')
        e(f's_lshr_b32 s{sUS}, s{sUS}, 17')
        e(f's_lshl_b32 s{sUS}, s{sUS}, 1')
        e(f's_mul_i32 s{sFO}, s{sTT}, {16 * 2752}')
        e(f's_lshl_b32 s{sT + 6}, s{sUS}, 5')
        e(f's_add_u32 s{sFO}, s{sFO}, s{sT + 6}')
        e(f's_mul_i32 s{sMF}, s{sG}, {UPOFF}')
        e(f's_add_u32 s{sMF}, s{sMF}, s{sMW}')
        e(f's_mov_b32 s{sVM}, 0xffff')
        e(f's_mov_b32 s{sVM + 1}, 0xffff')
        e(f's_or_b32 s{sT + 6}, s2, s{sW}')
        e(f's_cmp_lg_u32 s{sT + 6}, 0')
        lab = e.newlabel('nn')
        e(f's_cbranch_scc1 {lab}')
        snap = e.snapshot()
        e(f's_or_b32 s{sNON + 1}, s{sNON + 1}, 0x80000000')
        e(f'v_mov_b32 v16, s{sNON}')
        e(f'v_mov_b32 v17, s{sNON + 1}')
        e('s_mov_b64 exec, 1')
        e(f'buffer_store_dwordx2 v[16:17], off, {srd(S_DBG)}, 0 sc1', 'nst')
        e('s_mov_b64 exec, -1')
        e.paths = e.paths + snap
        e.label(lab)
        e('v_and_b32 v16, 31, v0')
        e(f's_lshl_b32 s{sT + 6}, s{sTT}, 12')
        e('v_lshrrev_b32 v17, 5, v0')
        e('v_bfe_u32 v18, v0, 1, 3')
        e('v_xor_b32 v18, v18, v17')
        e('v_lshlrev_b32 v18, 4, v18')
        e('v_lshl_add_u32 v18, v16, 7, v18')
        e(f'v_add_u32 v{vXR[0]}, s{sT + 6}, v18')
        for ks in range(1, 4):
            e(f'v_xor_b32 v{vXR[ks]}, {32 * ks}, v{vXR[0]}')
        e('v_bfe_u32 v18, v0, 2, 2')
        e('v_lshl_add_u32 v18, v17, 3, v18')
        e('v_mul_u32_u24 v18, 192, v18')
        e('v_and_b32 v19, 3, v0')
        e('v_lshl_add_u32 v18, v19, 3, v18')
        e('v_bfe_u32 v19, v0, 4, 1')
        e(f'v_lshl_add_u32 v{vWR}, v19, 5, v18')
        e(f's_lshl_b32 s{sT + 6}, s{sG}, 7')
        e(f'v_add_u32 v{vWR}, s{sT + 6}, v{vWR}')
        e(f'v_mul_u32_u24 v19, {UPOFF}, v19')
        e(f's_mul_i32 s{sT + 6}, s{sG}, 96')
        e(f'v_add3_u32 v{vFR}, v18, v19, s{sT + 6}')
        e('v_and_b32 v18, 15, v0')
        e('v_lshl_add_u32 v18, v17, 4, v18')
        e(f'v_lshlrev_b32 v{vVA}, 4, v18')
        e(f'v_mov_b32 v{vIDX}, 0xdddddddd')
        e('v_mov_b32 v16, 0')
        e(f'v_mov_b32 v17, {L_CNT}')
        e('ds_write_b32 v17, v16', 'cnt')

    def phase_a(self, g, vtype):
        e = self.e
        nch = 2 if g == 0 else 1
        vGWA, vZ = ACA + 16, ACA + 17
        GWB = [ACA + 20, ACA + 24]
        if g == 1:
            e(f's_mov_b32 m0, {L_GW}')
            e(f'buffer_load_dwordx4 v{vL16}, {srd(S_GW)}, 0 offen lds', 'st0')
        for s in range(5):
            for f in self.dma_list(s, g):
                f()
        self.setup2()
        if g == 1:
            e(f'v_lshrrev_b32 v{vGWA}, 5, v0')
            e(f'v_lshlrev_b32 v{vGWA}, 4, v{vGWA}')
            e(f'v_mov_b32 v{vZ}, 0')
        wx = Win(e, vXR)
        ww = Win(e, vWR)
        frag = lambda n, c: FR + 4 * ((n * nch + c) % 4)

        def reads(n):
            s, ks = divmod(n, 4)
            slot = SLOT0 + SLOT * (s % 5)
            e(f'ds_read_b128 {vr(X + 4 * n, 4)}, v{vXR[ks]} offset:{wx.off(slot)}', f'r{n}_0')
            for c in range(nch):
                for rd in range(2):
                    t = slot + 16384 + ks * 3072 + rd * 768 + 64 * c
                    e(f'ds_read_b64_tr_b16 {vr(frag(n, c) + 2 * rd, 2)}, v{vWR} offset:{ww.off(t)}', f'r{n}_{c}')
            if g == 1:
                e(f'ds_read_b128 {vr(GWB[n % 2], 4)}, v{vGWA} offset:{L_GW + 32 * n}', f'g{n}')

        def mms(n):
            for c in range(nch):
                e.wait(lg=f'r{n}_{c}')
                acc = vr(ACA + 16 * c, 16)
                a, b = vr(frag(n, c), 4), vr(X + 4 * n, 4)
                if vtype:
                    a, b = b, a
                e(f'v_mfma_f32_32x32x16_bf16 {acc}, {a}, {b}, {acc if n else 0}')
            if g == 1:
                e.wait(lg=f'g{n}')
                for i in range(4):
                    e(f'v_dot2c_f32_bf16 v{vZ}, v{X + 4 * n + i}, v{GWB[n % 2] + i}')

        pend = []
        for n in range(33):
            s, ks = divmod(n, 4)
            if ks == 0:
                e.wait(vm=f'st{s}', lg='all')
                e('s_barrier')
                if s in (0, 4):
                    self.stamp(2 + s // 4)
                if 1 <= s <= 7:
                    pend = self.dma_list(s + 4, g)
                if s < 8:
                    slot = SLOT0 + SLOT * (s % 5)
                    wx.ensure(slot, slot)
                    ww.ensure(slot + 16384, slot + SLOT)
            if n < 32:
                reads(n)
            for f in pend:
                f()
            pend = []
            if n == 17:
                e(f'buffer_load_dwordx2 v[{vK[0]}:{vK[0] + 1}], off, {srd(S_DBG)}, 0 sc1', 'non')
            if n >= 1:
                mms(n - 1)
        self.stamp(4)
        vA = FR + 16
        e(f's_lshl_b32 s{sT}, s{sTB}, 2')
        e(f's_add_u32 s{sT}, s{sT}, s{sTT}')
        if g == 1:
            e(f'v_mov_b32 v{vZ + 1}, v{vZ}')
            e(f'v_permlane32_swap_b32 v{vZ}, v{vZ + 1}')
            e(f'v_add_f32 v{vZ}, v{vZ}, v{vZ + 1}')
            e(f's_lshl_b32 s{sT + 1}, s{sTT}, 8')
            e(f'v_lshl_add_u32 v{vZ + 1}, v0, 2, s{sT + 1}')
            e(f'ds_write_b32 v{vZ + 1}, v{vZ} offset:{L_Z}', 'zw')
        if vtype:
            e(f'v_bfe_u32 v{vA}, v0, 4, 1')
            e(f'v_lshl_add_u32 v{vA}, v{vA}, 17, v{vVA}')
        else:
            e(f'v_bfe_u32 v{vA + 1}, v0, 2, 1')
            e(f'v_bfe_u32 v{vA + 2}, v0, 3, 1')
            e(f'v_sub_u32 v{vA + 1}, v{vA + 1}, v{vA + 2}')
            e(f'v_lshl_add_u32 v{vA + 1}, v{vA + 1}, 6, v{vL16}')
        for c in range(nch):
            e(f's_mul_i32 s{sT + 1}, s{sJ}, 3')
            e(f's_add_u32 s{sT + 1}, s{sT + 1}, {c if g == 0 else 2}')
            e(f's_and_b32 s{sT + 2}, s{sT + 1}, 15')
            e(f's_lshl_b32 s{sT + 2}, s{sT + 2}, 7')
            e(f's_add_u32 s{sT + 2}, s{sT + 2}, s{sT}')
            acc = ACA + 16 * c
            if vtype:
                e(f's_lshl_b32 s{sT + 2}, s{sT + 2}, 11')
                e(f's_add_u32 s{sT + 2}, s{sT + 2}, {WS_KV + 1024}')
                e(f's_add_u32 s{sT + 3}, s{sT + 2}, 512')
            else:
                e(f's_cmp_lt_u32 s{sT + 1}, 16')
                e(f's_cselect_b32 s{sT + 4}, {fbits(QSCALE)}, 1.0')
                e(f's_cselect_b32 s{sT + 5}, 10, 11')
                e(f's_cselect_b32 s{sT + 6}, {WS_Q}, {WS_KV}')
                e(f's_cselect_b64 vcc, -1, 0')
                e(f's_add_u32 s{sT + 3}, s{sT + 2}, 64')
                e(f's_lshl_b32 s{sT + 2}, s{sT + 2}, s{sT + 5}')
                e(f's_lshl_b32 s{sT + 3}, s{sT + 3}, s{sT + 5}')
                e(f's_add_u32 s{sT + 2}, s{sT + 2}, s{sT + 6}')
                e(f's_add_u32 s{sT + 3}, s{sT + 3}, s{sT + 6}')
                e(f'v_cndmask_b32 v{vA}, v{vA + 1}, v{vL16}, vcc')
                for i in range(16):
                    e(f'v_mul_f32 v{acc + i}, s{sT + 4}, v{acc + i}')
            for i in range(8):
                e(f'v_cvt_pk_bf16_f32 v{acc + i}, v{acc + 2 * i}, v{acc + 2 * i + 1}')
            e(f'buffer_store_dwordx4 {vr(acc, 4)}, v{vA}, {srd(S_WS)}, s{sT + 2} offen sc1', 'qst')
            e(f'buffer_store_dwordx4 {vr(acc + 4, 4)}, v{vA}, {srd(S_WS)}, s{sT + 3} offen sc1', 'qst')
        for i in range(4):
            e(f'v_mov_b32 v{ACA + 8 + i}, -1')
        e(f's_lshl_b32 s{sT + 1}, s{sJ}, 1')
        e(f's_add_u32 s{sT + 1}, s{sT + 1}, s{sG}')
        e(f's_lshl_b32 s{sT + 1}, s{sT + 1}, 6')
        e(f's_add_u32 s{sT + 1}, s{sT + 1}, s{sT}')
        e(f's_lshl_b32 s{sT + 1}, s{sT + 1}, 10')
        e(f's_add_u32 s{sT + 1}, s{sT + 1}, {WS_O}')
        e(f'buffer_store_dwordx4 {vr(ACA + 8, 4)}, v{vL16}, {srd(S_WS)}, s{sT + 1} offen sc1', 'qst')
        e.wait(lg='all')

    def spin(self, name, reload, check):
        e = self.e
        lr, lc = e.newlabel(name + 'r'), e.newlabel(name + 'c')
        check()
        e(f's_cbranch_vccnz {lr}')
        e.label(lc)

        def blk():
            e.paths = [p for p in Emitter().paths]
            e.label(lr)
            e(f's_mov_b32 s{sSPIN}, {SPIN}')
            ll = e.newlabel(name + 'l')
            e.label(ll)
            e('s_sleep 2')
            reload()
            e('s_waitcnt vmcnt(0)')
            check()
            e(f's_cbranch_vccz {lc}')
            e(f's_sub_u32 s{sSPIN}, s{sSPIN}, 1')
            e(f's_cbranch_scc0 {ll}')
            e(f's_branch {lc}')
        self.tail_blocks.append(blk)

    def flag_store(self, soff, tmp):
        e = self.e
        e(f'v_mov_b32 v{tmp}, s{sNON}')
        e(f'v_mov_b32 v{tmp + 1}, s{sNON + 1}')
        e('s_mov_b64 exec, 1')
        e(f'buffer_store_dwordx2 v[{tmp}:{tmp + 1}], off, {srd(S_WS)}, s{soff} sc1', 'flag')
        e('s_mov_b64 exec, -1')

    def kv_load(self, it):
        e = self.e
        b = it % 2

        def k():
            e(f's_add_u32 s{sKV}, s{sKVB}, s{sKVI}')
            e(f'buffer_load_dwordx4 {vr(vK[b], 4)}, v{vL16}, {srd(S_WS)}, s{sKV} offen sc1', f'k{it}')

        def v():
            e(f's_mov_b64 exec, s[{sVM}:{sVM + 1}]')
            e(f'buffer_load_dwordx4 {vr(vV[b], 4)}, v{vVA}, {srd(S_WS)}, s{sKV} offen offset:1024 sc1', f'v{it}')
            e(f'buffer_load_dwordx4 {vr(vV[b] + 4, 4)}, v{vVA}, {srd(S_WS)}, s{sKV} offen offset:1536 sc1', f'v{it}')
            e('s_mov_b64 exec, -1')
            e(f's_add_u32 s{sKVI}, s{sKVI}, 2048')
            e(f's_and_b32 s{sKVI}, s{sKVI}, 32767')
        return k, v

    def gelu_ops(self, c):
        e = self.e
        acc = ACF + 16 * c
        T = ACA + 16
        ops = []
        A = lambda s: ops.append(lambda s=s: e(s))
        for h in range(2):
            rr = range(4 * h, 4 * h + 4)
            for i in rr:
                A(f'v_mul_f32 v{T + i}, v{acc + i}, v{acc + i}')
            for i in rr:
                A(f'v_fma_f32 v{T + i}, v{T + i}, s{sT + 8}, v{T + 8}')
            for i in rr:
                A(f'v_mul_f32 v{T + i}, v{T + i}, v{acc + i}')
            for i in rr:
                A(f'v_exp_f32 v{T + i}, v{T + i}')
            for i in rr:
                A(f'v_mul_f32 v{acc + i}, v{acc + i}, v{acc + 8 + i}')
            for i in rr:
                A(f'v_fma_f32 v{T + i}, v{T + i}, v{vCH}, v{vCH}')
            for i in rr:
                A(f'v_rcp_f32 v{T + i}, v{T + i}')
            for i in rr:
                A(f'v_mul_f32 v{acc + i}, v{acc + i}, v{T + i}')
        for i in range(4):
            A(f'v_cvt_pk_bf16_f32 v{acc + 8 + i}, v{acc + 2 * i}, v{acc + 2 * i + 1}')

        def st():
            e(f'buffer_store_dwordx4 {vr(acc + 8, 4)}, v{vL16}, {srd(S_WS)}, s{sHO} offen sc1', 'hst')
            e(f's_add_u32 s{sHO}, s{sHO}, 65536')
        ops.append(st)
        return ops

    def phase_f(self):
        e = self.e
        order = [(n, c) for n in range(24) for c in range(3)]
        for c in range(3):
            order += [(n, c) for n in range(24, 32)]
        LA = 4
        wf = Win(e, vFR)
        entered = {8}
        fill = []

        def enter(s):
            tags = [f'st{s}']
            if s == 10:
                tags.append('qst')
            e.wait(vm=tags)
            e('s_barrier')
            entered.add(s)
            if 9 <= s <= 12:
                fill.extend(self.dma_list(s + 3, None))
            if s == 9:
                fill.append(self.gate_read)
                fill.append(self.nonce_get)
            if s == 10:
                fill.insert(0, self.flag1)
                fill.append(self.gate_math)
            if s == 12:
                fill.append(self.touch)
            if s == 13:
                fill.append(self.attn_setup)

        def reads(m):
            n, c = order[m]
            s = 8 + n // 4
            if s not in entered:
                enter(s)
            slot = SLOT0 + SLOT * (s % 5)
            wf.ensure(slot, slot + 12288)
            for rd in range(2):
                t = slot + (n % 4) * 3072 + rd * 768 + 32 * c
                e(f'ds_read_b64_tr_b16 {vr(FR + 4 * (m % NFR) + 2 * rd, 2)}, v{vFR} offset:{wf.off(t)}', f'f{m}')

        for m in range(LA):
            reads(m)
        for m in range(96):
            n, c = order[m]
            e.wait(lg=f'f{m}')
            acc = vr(ACF + 16 * c, 16)
            e(f'v_mfma_f32_32x32x16_bf16 {acc}, {vr(FR + 4 * (m % NFR), 4)}, {vr(X + 4 * n, 4)}, {acc if n else 0}')
            if m + LA < 96:
                reads(m + LA)
            if m == 72:
                fill.append(self.attn_init)
                fill.append(self.poll1_issue)
            if m == 81:
                fill.extend(self.gelu_ops(0))
            if m == 88:
                fill.append(self.poll1_check)
            if m == 89:
                fill.extend(self.gelu_ops(1))
            k = 1 if m < 81 else 10
            for _ in range(k):
                if fill:
                    fill.pop(0)()
        e('s_barrier')
        for f in fill:
            f()
        self.stamp(5)
        for f in self.gelu_ops(2):
            f()
        self.stamp(6)

    def gate_read(self):
        e = self.e
        e(f's_lshl_b32 s{sT}, s{sTT}, 8')
        e(f'v_lshl_add_u32 v{vCO}, v0, 2, s{sT}')
        e(f'ds_read_b32 v{vCO}, v{vCO} offset:{L_Z}', 'zr')

    def gate_math(self):
        e = self.e
        e.wait(lg='zr')
        e(f'v_mul_f32 v{vCO}, {fbits(LOG2E)}, v{vCO}')
        e(f'v_exp_f32 v{vCH}, v{vCO}')
        e(f'v_exp_f32 v{vCO}, -v{vCO}')
        e(f'v_add_f32 v{vCH}, 1.0, v{vCH}')
        e(f'v_add_f32 v{vCO}, 1.0, v{vCO}')
        e(f'v_min_f32 v{vCH}, {fbits(2.0 ** 100)}, v{vCH}')
        e(f'v_mov_b32 v{ACA + 24}, {fbits(GC0)}')
        e(f's_mov_b32 s{sT + 8}, {fbits(GC1)}')

    def nonce_get(self):
        e = self.e
        e.wait(vm='non')
        ld = lambda: e(f'buffer_load_dwordx2 v[{vK[0]}:{vK[0] + 1}], off, {srd(S_DBG)}, 0 sc1')
        ck = lambda: e(f'v_cmp_eq_u32 vcc, 0, v{vK[0] + 1}')
        self.spin('non', ld, ck)
        e(f'v_readfirstlane_b32 s{sNON}, v{vK[0]}')
        e(f'v_readfirstlane_b32 s{sNON + 1}, v{vK[0] + 1}')

    def flag1(self):
        e = self.e
        lab = e.newlabel('f1')
        e(f's_cmp_lg_u32 s{sW}, 0')
        e(f's_cbranch_scc1 {lab}')
        snap = e.snapshot()
        e(f's_lshl_b32 s{sT}, s{sJ}, 4')
        e(f's_add_u32 s{sT}, s{sT}, s{sTB}')
        e(f's_lshl_b32 s{sT}, s{sT}, 5')
        e(f's_add_u32 s{sT}, s{sT}, {WS_F1}')
        self.flag_store(sT, vK[0])
        e.paths = e.paths + snap
        e.label(lab)

    def touch(self):
        e = self.e
        lab = e.newlabel('tc')
        e(f's_cmp_lg_u32 s{sW}, 7')
        e(f's_cbranch_scc1 {lab}')
        snap = e.snapshot()
        e(f'v_lshlrev_b32 v{vK[0]}, 7, v0')
        e(f's_mul_i32 s{sT}, s2, {43 * 128}')
        e(f's_lshl_b32 s{sT + 1}, s2, 11')
        e(f's_mov_b64 exec, 0xffff')
        e(f'buffer_load_dword v{vK[0] + 1}, v{vK[0]}, {srd(S_WO)}, s{sT + 1} offen', 'touch')
        e(f's_mov_b32 exec_lo, -1')
        e(f's_mov_b32 exec_hi, 0x7ff')
        e(f'buffer_load_dword v{vK[0] + 2}, v{vK[0]}, {srd(S_WD)}, s{sT} offen', 'touch')
        e('s_mov_b64 exec, -1')
        e.paths = e.paths + snap
        e.label(lab)

    def attn_setup(self):
        e = self.e
        e(f's_mul_i32 s{sHO}, s{sG}, 3')
        e(f's_add_u32 s{sHO}, s{sHO}, s{sUS}')
        e(f's_lshl_b32 s{sHO}, s{sHO}, 4')
        e(f's_add_u32 s{sHO}, s{sHO}, s{sTB}')
        e(f's_lshl_b32 s{sHO}, s{sHO}, 2')
        e(f's_add_u32 s{sHO}, s{sHO}, s{sTT}')
        e(f's_lshl_b32 s{sHO}, s{sHO}, 10')
        e(f's_add_u32 s{sHO}, s{sHO}, {WS_H}')
        e(f's_lshl_b32 s{sKVB}, s{sJ}, 3')
        e(f's_add_u32 s{sKVB}, s{sKVB}, s{sW}')
        e(f's_lshl_b32 s{sKVB}, s{sKVB}, 15')
        e(f's_add_u32 s{sKVB}, s{sKVB}, {WS_KV}')
        e(f's_and_b32 s{sKVI}, s{sTB}, 7')
        e(f's_lshl_b32 s{sKVI}, s{sKVI}, 12')
        for i, add in enumerate((16, 32, 0)):
            e(f's_add_u32 s{sT + i}, s{sJ}, {add}')
            e(f's_mul_i32 s{sT + i}, s{sT + i}, 43691')
            e(f's_lshr_b32 s{sT + i}, s{sT + i}, 17')
            e(f's_lshl_b32 s{sT + i}, s{sT + i}, 4')
        e(f's_lshl_b32 s{sT + 3}, s{sTT}, 2')
        e(f's_add_u32 s{sT}, s{sT}, s{sT + 3}')
        e(f's_add_u32 s{sT + 1}, s{sT + 1}, s{sT + 3}')
        e(f's_add_u32 s{sT + 2}, s{sT + 2}, s{sTB}')
        e(f'v_mov_b32 v{vPA}, s{sT + 2}')
        e(f'v_and_b32 v{vP}, 3, v0')
        e('s_mov_b64 exec, 0xff')
        e(f'v_add_u32 v{vPA}, s{sT + 1}, v{vP}')
        e('s_mov_b64 exec, 0xf')
        e(f'v_add_u32 v{vPA}, s{sT}, v{vP}')
        e('s_mov_b64 exec, -1')
        e(f'v_lshlrev_b32 v{vPA}, 5, v{vPA}')
        e(f'v_add_u32 v{vPA}, {WS_F1}, v{vPA}')
        e(f'v_lshrrev_b32 v{vDD[0]}, 3, v0')
        e(f'v_and_b32 v{vDD[1]}, 7, v0')
        e(f'v_bfe_u32 v{vP}, v0, 4, 1')
        e(f'v_lshlrev_b32 v{vP + 1}, 2, v{vP}')
        e(f'v_xor_b32 v{vDD[1]}, v{vDD[1]}, v{vP + 1}')
        e(f'v_lshlrev_b32 v{vDD[1]}, 4, v{vDD[1]}')
        e(f'v_lshl_add_u32 v{vDD[0]}, v{vDD[0]}, 10, v{vDD[1]}')
        e(f'v_add_u32 v{vDD[1]}, 8192, v{vDD[0]}')
        e(f's_mul_i32 s{sMD}, s{sW}, {WREG}')
        e(f'v_lshrrev_b32 v{vDR[0]}, 5, v0')
        e(f'v_bfe_u32 v{vDR[1]}, v0, 2, 2')
        e(f'v_lshl_add_u32 v{vDR[0]}, v{vDR[0]}, 2, v{vDR[1]}')
        e(f'v_lshlrev_b32 v{vDR[0]}, 7, v{vDR[0]}')
        e(f'v_lshl_add_u32 v{vDR[0]}, v{vP}, 5, v{vDR[0]}')
        e(f'v_bfe_u32 v{vP}, v0, 3, 1')
        e(f'v_lshl_add_u32 v{vDR[0]}, v{vP}, 6, v{vDR[0]}')
        e(f'v_and_b32 v{vP}, 3, v0')
        e(f'v_lshl_add_u32 v{vDR[0]}, v{vP}, 3, v{vDR[0]}')
        e(f'v_add_u32 v{vDR[0]}, s{sMD}, v{vDR[0]}')
        e(f'v_xor_b32 v{vDR[1]}, 64, v{vDR[0]}')
        e(f'v_add_u32 v{vRW}, s{sMD}, v{vL16}')
        e(f's_mul_i32 s{sDO}, s{sW}, {11 * 16384}')
        e(f's_lshl_b32 s{sT}, s{sCB}, 7')
        e(f's_add_u32 s{sDO}, s{sDO}, s{sT}')

    def attn_init(self):
        e = self.e
        for t in range(4):
            for i in range(0, 16, 2):
                e(f'v_mov_b64 {vr(vO[t] + i, 2)}, 0')
        e(f'v_and_b32 v{vP}, 27, v0')
        e(f'v_cmp_eq_u32 vcc, 16, v{vP}')
        e(f'v_mov_b32 v{vP}, 0x3f803f80')
        e(f'v_cndmask_b32 v{vV[0]}, 0, v{vP}, vcc')
        for i in range(1, 16):
            e(f'v_mov_b32 v{vV[0] + i}, v{vV[0]}')

    def poll1_issue(self):
        e = self.e
        e('s_mov_b64 exec, 0xfff')
        e(f'buffer_load_dwordx2 v[{vP}:{vP + 1}], v{vPA}, {srd(S_WS)}, 0 offen sc1', 'p1')
        e('s_mov_b64 exec, -1')

    def poll1_check(self):
        e = self.e
        e.wait(vm='p1')
        e('s_mov_b64 exec, 0xfff')
        ld = lambda: e(f'buffer_load_dwordx2 v[{vP}:{vP + 1}], v{vPA}, {srd(S_WS)}, 0 offen sc1')
        ck = lambda: e(f'v_cmp_ne_u64 vcc, s[{sNON}:{sNON + 1}], v[{vP}:{vP + 1}]')
        self.spin('p1', ld, ck)
        e('s_mov_b64 exec, -1')
        k, v = self.kv_load(0)
        k()
        e(f's_lshl_b32 s{sT}, s{sJ}, 1')
        e(f's_add_u32 s{sT}, s{sT}, s{sG}')
        e(f's_lshl_b32 s{sT}, s{sT}, 4')
        e(f's_add_u32 s{sT}, s{sT}, s{sTB}')
        e(f's_lshl_b32 s{sT}, s{sT}, 12')
        for i in range(4):
            e(f's_add_u32 s{sT + 1}, s{sTT}, {1 + i}')
            e(f's_and_b32 s{sT + 1}, s{sT + 1}, 3')
            e(f's_lshl_b32 s{sT + 1}, s{sT + 1}, 10')
            e(f's_add_u32 s{sT + 1}, s{sT + 1}, s{sT}')
            e(f'buffer_load_dwordx4 {vr(vQ[i], 4)}, v{vL16}, {srd(S_WS)}, s{sT + 1} offen sc1', f'q{i}')
        v()
        e(f's_lshr_b32 s{sT + 1}, s{sRB}, 1')
        e(f's_lshl_b32 s{sT + 1}, s{sT + 1}, 9')
        e(f's_add_u32 s{sT + 1}, s{sT + 1}, {WS_F2}')
        e(f'v_lshl_add_u32 v{vPA}, v0, 5, s{sT + 1}')

    def attention(self):
        e = self.e
        G0 = self.opt['g2start']
        NT = 64

        def qk(t):
            it, sl = divmod(t, 4)
            if sl == 0:
                e.wait(vm=f'k{it}')
            if it == 0:
                e.wait(vm=f'q{sl}')
            e(f'v_mfma_f32_32x32x16_bf16 {vr(vS[t % 2], 16)}, {vr(vK[it % 2], 4)}, {vr(vQ[sl], 4)}, 0')

        def pv(t, hi):
            it, sl = divmod(t, 4)
            if sl == 0 and not hi:
                e.wait(vm=f'v{it}')
            e(f'v_smfmac_f32_32x32x32_bf16 {vr(vO[sl], 16)}, {vr(vV[it % 2] + 4 * hi, 4)}, {vr(vS[t % 2] + 8 * hi, 8)}, v{vIDX}')

        def ex(t, a, b):
            for i in range(a, b):
                e(f'v_exp_f32 v{vS[t % 2] + i}, v{vS[t % 2] + i}')

        def wd_dma(step):
            def f():
                for i in range(2):
                    e(f's_add_u32 m0, s{sMD}, {L_RING + 2048 * (step % 5) + 1024 * i}')
                    e(f'buffer_load_dwordx4 v{vDD[i]}, {srd(S_WD)}, s{sDO} offen lds', f'd{step}')
                e(f's_add_u32 s{sDO}, s{sDO}, 16384')
            return f

        def wo_dma(k):
            def f():
                if k == 0:
                    e(f's_lshl_b32 s{sDO}, s{sW}, 16')
                    e(f's_lshl_b32 s{sT}, s{sCB}, 7')
                    e(f's_add_u32 s{sDO}, s{sDO}, s{sT}')
                for i in range(2):
                    e(f's_add_u32 m0, s{sMD}, {2048 * k + 1024 * i}')
                    e(f'buffer_load_dwordx4 v{vDD[i]}, {srd(S_WO)}, s{sDO} offen lds', 'wo')
                e(f's_add_u32 s{sDO}, s{sDO}, 16384')
            return f

        def h_load(step):
            def f():
                for i in range(2):
                    e(f'buffer_load_dwordx4 {vr(vH[step % 2] + 4 * i, 4)}, v{vL16}, {srd(S_H)}, s{sHO} offen offset:{1024 * i} sc1', f'h{step}')
                e(f's_add_u32 s{sHO}, s{sHO}, 65536')
            return f

        def wd_read(step, jj):
            def f():
                e.wait(vm=f'd{step}')
                for rd in range(2):
                    e(f'ds_read_b64_tr_b16 {vr(vD + 4 * jj + 2 * rd, 2)}, v{vDR[jj]} offset:{L_RING + 2048 * (step % 5) + 1024 * rd}', f'dr{step}_{jj}')
            return f

        def g2(step, sl):
            jj, i = divmod(sl, 2)
            e.wait(vm=f'h{step}', lg=f'dr{step}_{jj}')
            acc = vr(vG[i * 2 + jj], 16)
            e(f'v_mfma_f32_32x32x16_bf16 {acc}, {vr(vD + 4 * jj, 4)}, {vr(vH[step % 2] + 4 * i, 4)}, {acc if step else 0}')

        def sig2_a():
            e.wait(vm='hst')
            e(f'v_mov_b32 v{vP}, {L_CNT}')
            e(f'v_mov_b32 v{vP + 1}, 1')
            e('s_mov_b64 exec, 1')
            e(f'ds_add_rtn_u32 v{vP}, v{vP}, v{vP + 1}', 'cnt2')
            e('s_mov_b64 exec, -1')

        def sig2_b():
            e.wait(lg='cnt2')
            e(f'v_readfirstlane_b32 s{sT}, v{vP}')
            lab = e.newlabel('f2')
            e(f's_cmp_lg_u32 s{sT}, 7')
            e(f's_cbranch_scc1 {lab}')
            snap = e.snapshot()
            e(f's_lshl_b32 s{sT}, s{sTB}, 4')
            e(f's_add_u32 s{sT}, s{sT}, s{sJ}')
            e(f's_lshl_b32 s{sT}, s{sT}, 5')
            e(f's_add_u32 s{sT}, s{sT}, {WS_F2}')
            self.flag_store(sT, vP)
            e.paths = e.paths + snap
            e.label(lab)
            e(f's_mul_i32 s{sHO}, s{sW}, {11 * 65536}')
            e(f's_lshl_b32 s{sT}, s{sRB}, 11')
            e(f's_add_u32 s{sHO}, s{sHO}, s{sT}')

        def poll2_issue():
            e('s_mov_b64 exec, 0xffff')
            e(f'buffer_load_dwordx2 v[{vP}:{vP + 1}], v{vPA}, {srd(S_WS)}, 0 offen sc1', 'p2')
            e('s_mov_b64 exec, -1')

        def poll2_check():
            e.wait(vm='p2')
            e('s_mov_b64 exec, 0xffff')
            ld = lambda: e(f'buffer_load_dwordx2 v[{vP}:{vP + 1}], v{vPA}, {srd(S_WS)}, 0 offen sc1')
            ck = lambda: e(f'v_cmp_ne_u64 vcc, s[{sNON}:{sNON + 1}], v[{vP}:{vP + 1}]')
            self.spin('p2', ld, ck)
            e('s_mov_b64 exec, -1')

        def ored_write(sl):
            def f():
                o = L_RING + 3072 * sl
                e(f'ds_write_b128 v{vRW}, {vr(vO[sl], 4)} offset:{o}', 'orw')
                e(f'ds_write_b128 v{vRW}, {vr(vO[sl] + 4, 4)} offset:{o + 1024}', 'orw')
                e(f'ds_write_b32 v{vRW}, v{vO[sl] + 8} offset:{o + 2048}', 'orw')
            return f

        side = {}
        add = lambda t, p, f: side.setdefault((t, p), []).append(f)
        for it in range(15):
            k, v = self.kv_load(it + 1)
            add(4 * it, 0, k)
            add(4 * it, 0, v)
        for step in range(11):
            it = G0 + step
            add(4 * (it - 2) + 1, 0, wd_dma(step))
            add(4 * (it - 1) + 1, 0, h_load(step))
            add(4 * it - 1, 0, wd_read(step, 0))
            add(4 * it + 1, 0, wd_read(step, 1))
        for k in range(4):
            add(4 * (G0 + 9) + 1 + k, 2, wo_dma(k))
        add(5, 2, sig2_a)
        add(6, 2, sig2_b)
        add(4 * (G0 - 2) + 2, 2, poll2_issue)
        add(4 * (G0 - 1), 2, poll2_check)
        for sl in range(3):
            add(61 + sl, 3, ored_write(sl))
        if self.opt['prio']:
            e('s_setprio 3')
            add(7, 2, lambda: e('s_setprio 2'))
            add(31, 2, lambda: e('s_setprio 1'))
            add(58, 2, lambda: e('s_setprio 0'))

        def run(t, p):
            for f in side.get((t, p), []):
                f()

        qk(0)
        for t in range(NT):
            it, sl = divmod(t, 4)
            ex(t, 0, 2)
            if t > 0:
                pv(t - 1, 1)
            run(t, 0)
            ex(t, 2, 5)
            if t + 1 < NT:
                qk(t + 1)
            run(t, 1)
            ex(t, 5, 10)
            pv(t, 0)
            run(t, 2)
            ex(t, 10, 13)
            if G0 <= it < G0 + 11:
                g2(it - G0, sl)
            ex(t, 13, 16)
            run(t, 3)
            if t in (7, 31):
                self.stamp(7 if t == 7 else 8)
        pv(NT - 1, 1)

    def tail(self):
        e = self.e
        own = vO[3]
        R = vS[0]
        self.stamp(9)
        for i in range(3):
            e(f's_sub_u32 s{sT}, s{sTT}, {1 + i}')
            e(f's_and_b32 s{sT}, s{sT}, 3')
            e(f's_lshl_b32 s{sT + 1}, s{sG}, 2')
            e(f's_add_u32 s{sT}, s{sT}, s{sT + 1}')
            e(f's_mul_i32 s{sT}, s{sT}, {WREG}')
            e(f'v_add_u32 v{10 + i}, s{sT}, v{vL16}')
        e.wait(lg='all')
        e('s_barrier')
        for i in range(3):
            o = L_RING + 3072 * i
            e(f'ds_read_b32 v{R + 24 + i}, v{10 + i} offset:{o + 2048}', f'or{i}')
        for i in range(3):
            o = L_RING + 3072 * i
            e(f'ds_read_b128 {vr(R + 8 * i, 4)}, v{10 + i} offset:{o}', f'oa{i}')
            e(f'ds_read_b128 {vr(R + 8 * i + 4, 4)}, v{10 + i} offset:{o + 1024}', f'oa{i}')
        e(f's_lshl_b32 s{sT}, s{sJ}, 1')
        e(f's_add_u32 s{sT}, s{sT}, s{sG}')
        e(f's_lshl_b32 s{sT}, s{sT}, 4')
        e(f's_add_u32 s{sT}, s{sT}, s{sTB}')
        e(f's_lshl_b32 s{sT}, s{sT}, 2')
        e(f's_add_u32 s{sT}, s{sT}, s{sTT}')
        e(f's_lshl_b32 s{sT}, s{sT}, 10')
        e(f's_add_u32 s{sT}, s{sT}, {WS_O}')
        e.wait(lg='or2')
        e(f'v_add_f32 v{R + 24}, v{R + 24}, v{R + 25}')
        e(f'v_add_f32 v{own + 8}, v{own + 8}, v{R + 26}')
        e(f'v_add_f32 v{own + 8}, v{own + 8}, v{R + 24}')
        for i in range(3):
            e.wait(lg=f'oa{i}')
            for r in range(8):
                e(f'v_add_f32 v{own + r}, v{own + r}, v{R + 8 * i + r}')
        e(f'v_subrev_u32 v{R}, {(127 - 60) << 23}, v{own + 8}')
        e(f'v_cmp_lt_u32 vcc, {120 << 23}, v{R}')
        e('s_cbranch_vccnz Lsafe')
        e.label('Lsafe_done')
        self.tail_blocks.append(self.safe_softmax)
        e(f'v_mul_f32 v{R}, v{own + 8}, v{vCO}')
        e(f'v_rcp_f32 v{R}, v{R}')
        for r in range(8):
            e(f'v_mul_f32 v{own + r}, v{own + r}, v{R}')
        for r in range(4):
            e(f'v_cvt_pk_bf16_f32 v{own + r}, v{own + 2 * r}, v{own + 2 * r + 1}')
        for r in range(4):
            e(f'v_min_u32 v{own + r}, -2, v{own + r}')
        e(f'buffer_store_dwordx4 {vr(own, 4)}, v{vL16}, {srd(S_WS)}, s{sT} offen sc1', 'ost')
        self.stamp(10)
        e('s_barrier')
        WO = vO[0]
        e.wait(vm='wo')
        for k in range(4):
            for jj in range(2):
                for rd in range(2):
                    e(f'ds_read_b64_tr_b16 {vr(WO + 8 * k + 4 * jj + 2 * rd, 2)}, v{vDR[jj]} offset:{2048 * k + 1024 * rd}', 'wor')
        e(f's_lshl_b32 s{sT}, s{sW}, 18')
        e(f's_lshl_b32 s{sT + 1}, s{sRB}, 11')
        e(f's_add_u32 s{sT}, s{sT}, s{sT + 1}')
        e(f's_add_u32 s{sT}, s{sT}, {WS_O}')
        for k in range(1, 4):
            e(f's_add_u32 s{sT + k}, s{sT}, {65536 * k}')
        e(f'v_lshrrev_b32 v{vPA}, 1, v0')
        e(f'v_lshlrev_b32 v{vPA}, 16, v{vPA}')
        e(f'v_and_b32 v{vP}, 1, v0')
        e(f'v_lshl_add_u32 v{vPA}, v{vP}, 10, v{vPA}')
        vFW, vFRd = 10, 12
        e(f'v_and_b32 v{vFW}, 31, v0')
        e(f'v_lshrrev_b32 v{vP}, 5, v0')
        e(f'v_and_b32 v{vP + 1}, 7, v0')
        e(f'v_xor_b32 v{vP}, v{vP}, v{vP + 1}')
        e(f'v_lshlrev_b32 v{vP}, 4, v{vP}')
        e(f'v_lshl_add_u32 v{vFW}, v{vFW}, 8, v{vP}')
        e(f'v_add_u32 v{vFW}, s{sMD}, v{vFW}')
        e(f'v_lshrrev_b32 v{vP}, 3, v0')
        e(f'v_lshlrev_b32 v{vP + 1}, 1, v{vP + 1}')
        e(f'v_xor_b32 v{vP + 1}, v{vP + 1}, v{vP}')
        e(f'v_lshlrev_b32 v{vP + 1}, 4, v{vP + 1}')
        e(f'v_lshl_add_u32 v{vFRd}, v{vP}, 8, v{vP + 1}')
        e(f's_lshl_b32 s{sT + 4}, s{sW}, 11')
        e(f'v_add_u32 v{vFRd}, s{sT + 4}, v{vFRd}')
        e(f'v_xor_b32 v{vFRd + 1}, 16, v{vFRd}')
        e.wait(vm='all')
        e('s_mov_b64 exec, 0xff')
        ld = lambda: e(f'buffer_load_dword v{vP}, v{vPA}, {srd(S_WS)}, s{sT} offen offset:1020 sc1')
        ck = lambda: e(f'v_cmp_eq_u32 vcc, -1, v{vP}')
        ld()
        e.wait(vm='all')
        self.spin('p3', ld, ck)
        e('s_mov_b64 exec, -1')
        self.stamp(11)
        OF = vS[0]

        def old(k, tag=None):
            for i in range(2):
                e(f'buffer_load_dwordx4 {vr(OF + 8 * k + 4 * i, 4)}, v{vL16}, {srd(S_WS)}, s{sT + k} offen offset:{1024 * i} sc1', tag)

        for k in range(4):
            old(k, f'o{k}')
        e.wait(lg='all')
        for k in range(4):
            e.wait(vm=f'o{k}')

            def ck(k=k):
                b = OF + 8 * k
                e(f'v_max3_u32 v{vP}, v{b}, v{b + 1}, v{b + 2}')
                e(f'v_max3_u32 v{vP + 1}, v{b + 3}, v{b + 4}, v{b + 5}')
                e(f'v_max3_u32 v{vP}, v{vP}, v{b + 6}, v{b + 7}')
                e(f'v_max_u32 v{vP}, v{vP}, v{vP + 1}')
                e(f'v_cmp_eq_u32 vcc, -1, v{vP}')
            self.spin(f'o{k}', lambda k=k: old(k), ck)
            for i in range(2):
                for jj in range(2):
                    acc = vr(vG[i * 2 + jj], 16)
                    e(f'v_mfma_f32_32x32x16_bf16 {acc}, {vr(WO + 8 * k + 4 * jj, 4)}, {vr(OF + 8 * k + 4 * i, 4)}, {acc}')
        self.stamp(12)
        for q in range(1, 4):
            e(f'v_xor_b32 v{FR + q}, {32 * q}, v{vFW}')
        for i in range(2):
            for jj in range(2):
                for q in range(4):
                    a = vFW if q == 0 else FR + q
                    e(f'ds_write_b128 v{a}, {vr(vG[i * 2 + jj] + 4 * q, 4)} offset:{8192 * i + 128 * jj}', 'fw')
        e(f'v_lshrrev_b32 v{vP}, 3, v0')
        e(f'v_and_b32 v{vP + 1}, 7, v0')
        e(f'v_lshlrev_b32 v{vP + 1}, 4, v{vP + 1}')
        e(f'v_lshl_add_u32 v{vPA}, v{vP}, 10, v{vP + 1}')
        e(f's_lshl_b32 s{sT}, s{sRB}, 3')
        e(f's_add_u32 s{sT}, s{sT}, s{sW}')
        e(f's_lshl_b32 s{sT}, s{sT}, 13')
        e(f's_lshl_b32 s{sT + 1}, s{sCB}, 7')
        e(f's_add_u32 s{sT}, s{sT}, s{sT + 1}')
        e.wait(lg='all')
        e('s_barrier')
        wr = Win(e, [vFRd, vFRd + 1])
        B = X
        for p in range(8):
            wr.ensure(p * WREG, p * WREG)
            for h in range(2):
                e(f'ds_read_b128 {vr(B + 8 * p + 4 * h, 4)}, v{vFRd + h} offset:{wr.off(p * WREG)}', f'fr{p}')
        for p in range(1, 8):
            e.wait(lg=f'fr{p}')
            for r in range(8):
                e(f'v_add_f32 v{B + r}, v{B + r}, v{B + 8 * p + r}')
        for r in range(4):
            e(f'v_cvt_pk_bf16_f32 v{B + r}, v{B + 2 * r}, v{B + 2 * r + 1}')
        e(f'buffer_store_dwordx4 {vr(B, 4)}, v{vPA}, {srd(S_OUT)}, s{sT} offen')
        if self.stamps:
            e.wait(vm='all')
            self.stamp(13)
            e(f's_lshl_b32 s{sT}, s2, 3')
            e(f's_add_u32 s{sT}, s{sT}, s{sW}')
            e(f's_lshl_b32 s{sT}, s{sT}, 6')
            e(f's_add_u32 s{sT}, s{sT}, {WS_ST}')
            for i in range(14):
                e(f'v_mov_b32 v{B + 8 + i}, s{sSTAMP + i}')
            e('s_mov_b64 exec, 1')
            for i in range(4):
                e(f'buffer_store_dwordx4 {vr(B + 8 + 4 * i, 4)}, off, {srd(S_WS)}, s{sT} offset:{16 * i}')
        e.label('Lexit')
        e('s_endpgm')

    def safe_softmax(self):
        e = self.e
        e.paths = [p for p in Emitter().paths]
        own = vO[3]
        M = vO[0]
        S = vS[0]
        e.label('Lsafe')
        e(f's_and_b32 s{sT + 2}, s{sKVB}, {0xffffffff ^ (3 << 15)}')
        e(f's_mov_b32 s{sT + 3}, s{sT + 2}')
        e(f's_mov_b32 s{sT + 4}, 64')
        e(f'v_mov_b32 v{M}, 0xff800000')
        e.label('Lsafe1')
        e(f'buffer_load_dwordx4 {vr(vK[0], 4)}, v{vL16}, {srd(S_WS)}, s{sT + 3} offen sc1')
        e(f's_add_u32 s{sT + 3}, s{sT + 3}, 2048')
        e('s_waitcnt vmcnt(0)')
        e(f'v_mfma_f32_32x32x16_bf16 {vr(S, 16)}, {vr(vK[0], 4)}, {vr(vQ[3], 4)}, 0')
        for i in range(0, 16, 2):
            e(f'v_max3_f32 v{M}, v{M}, v{S + i}, v{S + i + 1}')
        e(f's_sub_u32 s{sT + 4}, s{sT + 4}, 1')
        e(f's_cmp_lg_u32 s{sT + 4}, 0')
        e('s_cbranch_scc1 Lsafe1')
        e(f'v_mov_b32 v{M + 1}, v{M}')
        e(f'v_permlane32_swap_b32 v{M}, v{M + 1}')
        e(f'v_max_f32 v{M}, v{M}, v{M + 1}')
        e(f'v_sub_f32 v{M}, 0, v{M}')
        for i in range(1, 16):
            e(f'v_mov_b32 v{M + i}, v{M}')
        for i in range(16):
            e(f'v_mov_b32 v{own + i}, 0')
        e(f's_mov_b32 s{sT + 3}, s{sT + 2}')
        e(f's_mov_b32 s{sT + 4}, 64')
        e.label('Lsafe2')
        e(f'buffer_load_dwordx4 {vr(vK[0], 4)}, v{vL16}, {srd(S_WS)}, s{sT + 3} offen sc1')
        e(f's_mov_b64 exec, s[{sVM}:{sVM + 1}]')
        e(f'buffer_load_dwordx4 {vr(vV[0], 4)}, v{vVA}, {srd(S_WS)}, s{sT + 3} offen offset:1024 sc1')
        e(f'buffer_load_dwordx4 {vr(vV[0] + 4, 4)}, v{vVA}, {srd(S_WS)}, s{sT + 3} offen offset:1536 sc1')
        e('s_mov_b64 exec, -1')
        e(f's_add_u32 s{sT + 3}, s{sT + 3}, 2048')
        e('s_waitcnt vmcnt(0)')
        e(f'v_mfma_f32_32x32x16_bf16 {vr(S, 16)}, {vr(vK[0], 4)}, {vr(vQ[3], 4)}, {vr(M, 16)}')
        for i in range(16):
            e(f'v_exp_f32 v{S + i}, v{S + i}')
        for hi in range(2):
            e(f'v_smfmac_f32_32x32x32_bf16 {vr(own, 16)}, {vr(vV[0] + 4 * hi, 4)}, {vr(S + 8 * hi, 8)}, v{vIDX}')
        e(f's_sub_u32 s{sT + 4}, s{sT + 4}, 1')
        e(f's_cmp_lg_u32 s{sT + 4}, 0')
        e('s_cbranch_scc1 Lsafe2')
        e('s_nop 15')
        e('s_branch Lsafe_done')

    def build(self):
        e = self.e
        self.prologue()
        snap = e.snapshot()
        e(f's_cmp_lg_u32 s{sG}, 0')
        e('s_cbranch_scc1 La1')
        e(f's_cmp_ge_u32 s{sJ}, 11')
        e('s_cbranch_scc1 La0v')
        ends = []
        variants = [(None, 0, 0), ('La0v', 0, 1), ('La1', 1, 0), ('La1v', 1, 1)]
        for i, (lab, g, vt) in enumerate(variants):
            e.restore(snap)
            if lab:
                e.label(lab)
            if lab == 'La1':
                e(f's_cmp_ge_u32 s{sJ}, 10')
                e('s_cbranch_scc1 La1v')
            self.phase_a(g, vt)
            if i < 3:
                e('s_branch Lffn')
            ends += e.snapshot()
        e.paths = ends
        e.label('Lffn')
        self.phase_f()
        self.attention()
        self.tail()
        i = 0
        while i < len(self.tail_blocks):
            self.tail_blocks[i]()
            i += 1
        return self.wrap()

    def wrap(self):
        head = open('gated_mix__softmax_full_mha__glu_gated_geglu__prompt.s.ref').read().split('; Override')[0]
        return head + f"""; @launch grid=(256,1,1) block=(512,1,1) lds={LDS_BYTES}
.amdgcn_target "amdgcn-amd-amdhsa--gfx950"
.text
.globl {KNAME}
.p2align 8
.type {KNAME},@function
{KNAME}:
{self.e.text()}
.section .rodata,"a"
.p2align 6
.amdhsa_kernel {KNAME}
  .amdhsa_next_free_vgpr 256
  .amdhsa_next_free_sgpr 102
  .amdhsa_accum_offset 256
  .amdhsa_group_segment_fixed_size 0
  .amdhsa_kernarg_size 88
  .amdhsa_user_sgpr_count 2
  .amdhsa_user_sgpr_kernarg_segment_ptr 1
  .amdhsa_system_sgpr_workgroup_id_x 1
.end_amdhsa_kernel
"""


if __name__ == '__main__':
    out = sys.argv[1]
    stamps = len(sys.argv) > 2 and sys.argv[2] == 'stamps'
    g = Gen(stamps=stamps)
    open(out, 'w').write(g.build())
    print('nops inserted:', g.e.nops, 'lines:', len(g.e.lines))
```

```python
import sys, math, struct
from asmlib import Emitter, Win

KNAME = 'gated_mix__softmax_full_mha__glu_gated_geglu__prompt_kernel'

WS_Q = 0
WS_KV = 2 << 20
WS_O = 6 << 20
WS_F1 = 8 << 20
WS_F2 = WS_F1 + 8192
WS_ST = WS_F1 + 65536
WS_H = 9 << 20
WS_END = 15 << 20

L_GW = 0
L_Z = 1024
SLOT0 = 4096
SLOT = 28672
UPOFF = 12288 + 32
WREG = 20480
L_RING = 8192
L_CNT = 7 * WREG + 18432
LDS_BYTES = 163840

S_X, S_WQ, S_WF, S_WS, S_H, S_WD, S_WO, S_OUT, S_DBG, S_GW = [4 * i + 4 for i in range(10)]
sW, sTT, sG, sJ, sTB, sRB, sCB, sUS = range(44, 52)
sXO, sWO, sFO, sMX, sMW, sMF = range(52, 58)
sNON = 58
sKV, sKVB, sKVI, sHO, sDO, sMD = range(60, 66)
sVM = 66
sT = 68
sSPIN = 84
sSTMP = 86
sSTAMP = 88


def srd(b):
    return f's[{b}:{b + 3}]'


def vr(b, n):
    return f'v[{b}:{b + n - 1}]' if n > 1 else f'v{b}'


def fbits(x):
    return '0x%08x' % struct.unpack('<I', struct.pack('<f', x))[0]


vL16 = 1
vXD = [2, 3]
vWD = [4, 5, 6]
vFD = [7, 8, 9]
vXR = [10, 11, 12, 13]
vWR = 14
vFR = 15
FR = 16
NFR = 5
ACA = 36
ACF = 68
vK = [116, 120]
vCH, vCO, vIDX, vVA = 124, 125, 126, 127
X = 128
vO = [X + 16 * i for i in range(4)]
vQ = [X + 64 + 4 * i for i in range(4)]
vV = [X + 80, X + 88]
vS = [ACA, ACA + 16]
vG = [ACF, ACF + 16, ACF + 32, X + 96]
vH = [X + 112, X + 120]
vD = FR
vDD = [2, 3]
vDR = [4, 5]
vP = 6
vPA = 8
vRW = 9

LOG2E = 1.4426950408889634
QSCALE = 0.25 * LOG2E
GC0 = -2.0 * LOG2E * math.sqrt(2.0 / math.pi)
GC1 = GC0 * 0.044715
SPIN = 400000


class Gen:
    def __init__(self, stamps=False, opt=None):
        self.e = Emitter()
        self.stamps = stamps
        self.nst = 0
        self.opt = dict(g2start=4, prio=True)
        if opt:
            self.opt.update(opt)
        self.tail_blocks = []

    def stamp(self, idx):
        e = self.e
        if self.opt.get('probe') == idx:
            e(f's_memrealtime s[{sSTAMP}:{sSTAMP + 1}]')
            e('s_waitcnt lgkmcnt(0)')
            for p in e.paths:
                p.lg = []
        if not self.stamps:
            return
        e(f"{'s_memtime' if self.stamps == 'cy' else 's_memrealtime'} s[{sSTMP}:{sSTMP + 1}]")
        e('s_waitcnt lgkmcnt(0)')
        for p in e.paths:
            p.lg = []
        e(f's_mov_b32 s{sSTAMP + idx}, s{sSTMP}')
        if idx in (0, 13):
            e(f's_memtime s[{sSTMP}:{sSTMP + 1}]')
            e('s_waitcnt lgkmcnt(0)')
            if idx == 0:
                e(f's_mov_b32 s85, s{sSTMP}')

    def dma_list(self, s, g):
        e = self.e
        slot = SLOT0 + SLOT * (s % 5)
        out = []
        tag = f'st{s}'
        if s < 8:
            for i in range(2):
                def f(i=i):
                    e(f's_add_u32 m0, s{sMX}, {slot + i * 1024 - s * 128}')
                    e(f'buffer_load_dwordx4 v{vXD[i]}, {srd(S_X)}, s{sXO} offen offset:{s * 128} lds', tag)
                out.append(f)
            if s % 2 == g:
                for i in range(3):
                    def f(i=i):
                        e(f's_add_u32 m0, s{sMW}, {slot + 16384 + i * 1024}')
                        e(f'buffer_load_dwordx4 v{vWD[i]}, {srd(S_WQ)}, s{sWO} offen lds', tag)
                        if i == 2:
                            e(f's_add_u32 s{sWO}, s{sWO}, {128 * 3072}')
                    out.append(f)
        else:
            for i in range(3):
                def f(i=i):
                    e(f's_add_u32 m0, s{sMF}, {slot + i * 1024}')
                    e(f'buffer_load_dwordx4 v{vFD[i]}, {srd(S_WF)}, s{sFO} offen lds', tag)
                    if i == 2:
                        e(f's_add_u32 s{sFO}, s{sFO}, {64 * 2752}')
                out.append(f)
        return out

    def prologue(self):
        e = self.e
        self.stamp(0)
        e('s_cmp_ge_u32 s2, 256')
        e('s_cbranch_scc1 Lexit')
        for b, off in ((S_X, 0), (S_WQ, 8), (S_GW, 56), (S_DBG, 72), (S_WS, 80), (S_H, 80), (S_WD, 48), (S_WO, 16), (S_OUT, 64)):
            e(f's_load_dwordx2 s[{b}:{b + 1}], s[0:1], {off}')
        e(f's_load_dwordx4 s[{sT}:{sT + 3}], s[0:1], 32')
        e(f's_memrealtime s[{sNON}:{sNON + 1}]')
        e('v_lshrrev_b32 v2, 6, v0')
        e('v_and_b32 v0, 63, v0')
        e(f'v_readfirstlane_b32 s{sW}, v2')
        e(f'v_lshlrev_b32 v{vL16}, 4, v0')
        e('v_lshrrev_b32 v16, 3, v0')
        e('v_lshrrev_b32 v17, 4, v0')
        e('v_and_b32 v18, 7, v0')
        e('v_xor_b32 v18, v18, v17')
        e('v_lshlrev_b32 v18, 4, v18')
        e(f'v_lshl_add_u32 v{vXD[0]}, v16, 10, v18')
        e(f'v_xor_b32 v{vXD[1]}, 64, v{vXD[0]}')
        e(f'v_add_u32 v{vXD[1]}, 8192, v{vXD[1]}')
        e(f's_and_b32 s{sT + 4}, s2, 7')
        e(f's_lshr_b32 s{sT + 5}, s2, 3')
        e(f's_and_b32 s{sJ}, s2, 3')
        e(f's_lshl_b32 s{sJ}, s{sJ}, 2')
        e(f's_and_b32 s{sT + 6}, s{sT + 5}, 3')
        e(f's_add_u32 s{sJ}, s{sJ}, s{sT + 6}')
        e(f's_lshr_b32 s{sTB}, s{sT + 4}, 2')
        e(f's_lshl_b32 s{sTB}, s{sTB}, 3')
        e(f's_lshr_b32 s{sT + 6}, s{sT + 5}, 2')
        e(f's_add_u32 s{sTB}, s{sTB}, s{sT + 6}')
        e(f's_lshl_b32 s{sRB}, s{sT + 4}, 2')
        e(f's_lshr_b32 s{sT + 6}, s{sT + 5}, 3')
        e(f's_add_u32 s{sRB}, s{sRB}, s{sT + 6}')
        e(f's_and_b32 s{sCB}, s{sT + 5}, 7')
        e(f's_and_b32 s{sTT}, s{sW}, 3')
        e(f's_lshr_b32 s{sG}, s{sW}, 2')
        e(f's_lshl_b32 s{sXO}, s{sTB}, 17')
        e(f's_lshl_b32 s{sT + 6}, s{sW}, 14')
        e(f's_add_u32 s{sXO}, s{sXO}, s{sT + 6}')
        e(f's_lshl_b32 s{sMX}, s{sW}, 11')
        e(f's_mul_i32 s{sMW}, s{sTT}, 3072')
        e(f's_mul_i32 s{sWO}, s{sW}, {16 * 3072}')
        e(f's_mul_i32 s{sT + 6}, s{sJ}, 192')
        e(f's_add_u32 s{sWO}, s{sWO}, s{sT + 6}')
        for b, n in ((S_X, 2048 * 1024), (S_WQ, 512 * 3072), (S_GW, 1024), (S_DBG, 256), (S_WS, WS_END), (S_H, 86 * 65536),
                     (S_WD, 1376 * 1024), (S_WO, 512 * 1024), (S_OUT, 2048 * 1024), (S_WF, 512 * 2752)):
            e(f's_mov_b32 s{b + 2}, {n}')
            e(f's_mov_b32 s{b + 3}, 0x20000')
        for i in range(3):
            e(f'v_add_u32 v16, {64 * i}, v0')
            e('v_mul_u32_u24 v17, 43691, v16')
            e('v_lshrrev_b32 v17, 19, v17')
            e('v_mul_u32_u24 v18, 12, v17')
            e('v_sub_u32 v18, v16, v18')
            e('v_lshlrev_b32 v18, 4, v18')
            e(f'v_mul_u32_u24 v{vWD[i]}, 3072, v17')
            e(f'v_add_u32 v{vWD[i]}, v{vWD[i]}, v18')
            e(f'v_mul_u32_u24 v{vFD[i]}, 2752, v17')
            e(f'v_add_u32 v{vFD[i]}, v{vFD[i]}, v18')
        e('s_waitcnt lgkmcnt(0)')
        self.stamp(1)

    def setup2(self):
        e = self.e
        e(f's_cmp_eq_u32 s{sG}, 0')
        e(f's_cselect_b32 s{S_WF}, s{sT}, s{sT + 2}')
        e(f's_cselect_b32 s{S_WF + 1}, s{sT + 1}, s{sT + 3}')
        e(f's_add_u32 s{S_H}, s{S_H}, {WS_H}')
        e(f's_addc_u32 s{S_H + 1}, s{S_H + 1}, 0')
        e(f's_mul_i32 s{sUS}, s{sJ}, {8 * 43691}')
        e(f's_lshr_b32 s{sUS}, s{sUS}, 17')
        e(f's_lshl_b32 s{sUS}, s{sUS}, 1')
        e(f's_mul_i32 s{sFO}, s{sTT}, {16 * 2752}')
        e(f's_lshl_b32 s{sT + 6}, s{sUS}, 5')
        e(f's_add_u32 s{sFO}, s{sFO}, s{sT + 6}')
        e(f's_mul_i32 s{sMF}, s{sG}, {UPOFF}')
        e(f's_add_u32 s{sMF}, s{sMF}, s{sMW}')
        e(f's_mov_b32 s{sVM}, 0xffff')
        e(f's_mov_b32 s{sVM + 1}, 0xffff')
        e(f's_or_b32 s{sT + 6}, s2, s{sW}')
        e(f's_cmp_lg_u32 s{sT + 6}, 0')
        lab = e.newlabel('nn')
        e(f's_cbranch_scc1 {lab}')
        snap = e.snapshot()
        e(f's_or_b32 s{sNON + 1}, s{sNON + 1}, 0x80000000')
        e(f'v_mov_b32 v16, s{sNON}')
        e(f'v_mov_b32 v17, s{sNON + 1}')
        e('s_mov_b64 exec, 1')
        e(f'buffer_store_dwordx2 v[16:17], off, {srd(S_DBG)}, 0 sc1', 'nst')
        e('s_mov_b64 exec, -1')
        e.paths = e.paths + snap
        e.label(lab)
        e('v_and_b32 v16, 31, v0')
        e(f's_lshl_b32 s{sT + 6}, s{sTT}, 12')
        e('v_lshrrev_b32 v17, 5, v0')
        e('v_bfe_u32 v18, v0, 1, 3')
        e('v_xor_b32 v18, v18, v17')
        e('v_lshlrev_b32 v18, 4, v18')
        e('v_lshl_add_u32 v18, v16, 7, v18')
        e(f'v_add_u32 v{vXR[0]}, s{sT + 6}, v18')
        for ks in range(1, 4):
            e(f'v_xor_b32 v{vXR[ks]}, {32 * ks}, v{vXR[0]}')
        e('v_bfe_u32 v18, v0, 2, 2')
        e('v_lshl_add_u32 v18, v17, 3, v18')
        e('v_mul_u32_u24 v18, 192, v18')
        e('v_and_b32 v19, 3, v0')
        e('v_lshl_add_u32 v18, v19, 3, v18')
        e('v_bfe_u32 v19, v0, 4, 1')
        e(f'v_lshl_add_u32 v{vWR}, v19, 5, v18')
        e(f's_lshl_b32 s{sT + 6}, s{sG}, 7')
        e(f'v_add_u32 v{vWR}, s{sT + 6}, v{vWR}')
        e(f'v_mul_u32_u24 v19, {UPOFF}, v19')
        e(f's_mul_i32 s{sT + 6}, s{sG}, 96')
        e(f'v_add3_u32 v{vFR}, v18, v19, s{sT + 6}')
        e('v_and_b32 v18, 15, v0')
        e('v_lshl_add_u32 v18, v17, 4, v18')
        e(f'v_lshlrev_b32 v{vVA}, 4, v18')
        e(f'v_mov_b32 v{vIDX}, 0xdddddddd')
        e('v_mov_b32 v16, 0')
        e(f'v_mov_b32 v17, {L_CNT}')
        e('ds_write_b32 v17, v16', 'cnt')

    def phase_a(self, g, vtype):
        e = self.e
        nch = 2 if g == 0 else 1
        vGWA, vZ = ACA + 16, ACA + 17
        GWB = [ACA + 20, ACA + 24]
        if g == 1:
            e(f's_mov_b32 m0, {L_GW}')
            e(f'buffer_load_dwordx4 v{vL16}, {srd(S_GW)}, 0 offen lds', 'st0')
        for s in range(5):
            for f in self.dma_list(s, g):
                f()
        self.setup2()
        if g == 1:
            e(f'v_lshrrev_b32 v{vGWA}, 5, v0')
            e(f'v_lshlrev_b32 v{vGWA}, 4, v{vGWA}')
            e(f'v_mov_b32 v{vZ}, 0')
        wx = Win(e, vXR)
        ww = Win(e, vWR)
        frag = lambda n, c: FR + 4 * ((n * nch + c) % 4)

        def reads(n):
            s, ks = divmod(n, 4)
            slot = SLOT0 + SLOT * (s % 5)
            e(f'ds_read_b128 {vr(X + 4 * n, 4)}, v{vXR[ks]} offset:{wx.off(slot)}', f'r{n}_0')
            for c in range(nch):
                for rd in range(2):
                    t = slot + 16384 + ks * 3072 + rd * 768 + 64 * c
                    e(f'ds_read_b64_tr_b16 {vr(frag(n, c) + 2 * rd, 2)}, v{vWR} offset:{ww.off(t)}', f'r{n}_{c}')
            if g == 1:
                e(f'ds_read_b128 {vr(GWB[n % 2], 4)}, v{vGWA} offset:{L_GW + 32 * n}', f'g{n}')

        def mms(n):
            for c in range(nch):
                e.wait(lg=f'r{n}_{c}')
                acc = vr(ACA + 16 * c, 16)
                a, b = vr(frag(n, c), 4), vr(X + 4 * n, 4)
                if vtype:
                    a, b = b, a
                e(f'v_mfma_f32_32x32x16_bf16 {acc}, {a}, {b}, {acc if n else 0}')
            if g == 1:
                e.wait(lg=f'g{n}')
                for i in range(4):
                    e(f'v_dot2c_f32_bf16 v{vZ}, v{X + 4 * n + i}, v{GWB[n % 2] + i}')

        pend = []
        for n in range(33):
            s, ks = divmod(n, 4)
            if ks == 0:
                e.wait(vm=f'st{s}', lg='all')
                e('s_barrier')
                if s in (0, 4):
                    self.stamp(2 + s // 4)
                if 1 <= s <= 7:
                    pend = self.dma_list(s + 4, g)
                if s < 8:
                    slot = SLOT0 + SLOT * (s % 5)
                    wx.ensure(slot, slot)
                    ww.ensure(slot + 16384, slot + SLOT)
            if n < 32:
                reads(n)
            for f in pend:
                f()
            pend = []
            if n == 17:
                e(f'buffer_load_dwordx2 v[{vK[0]}:{vK[0] + 1}], off, {srd(S_DBG)}, 0 sc1', 'non')
            if n >= 1:
                mms(n - 1)
        self.stamp(4)
        vA = FR + 16
        e(f's_lshl_b32 s{sT}, s{sTB}, 2')
        e(f's_add_u32 s{sT}, s{sT}, s{sTT}')
        if g == 1:
            e(f'v_mov_b32 v{vZ + 1}, v{vZ}')
            e(f'v_permlane32_swap_b32 v{vZ}, v{vZ + 1}')
            e(f'v_add_f32 v{vZ}, v{vZ}, v{vZ + 1}')
            e(f's_lshl_b32 s{sT + 1}, s{sTT}, 8')
            e(f'v_lshl_add_u32 v{vZ + 1}, v0, 2, s{sT + 1}')
            e(f'ds_write_b32 v{vZ + 1}, v{vZ} offset:{L_Z}', 'zw')
        if vtype:
            e(f'v_bfe_u32 v{vA}, v0, 4, 1')
            e(f'v_lshl_add_u32 v{vA}, v{vA}, 17, v{vVA}')
        else:
            e(f'v_bfe_u32 v{vA + 1}, v0, 2, 1')
            e(f'v_bfe_u32 v{vA + 2}, v0, 3, 1')
            e(f'v_sub_u32 v{vA + 1}, v{vA + 1}, v{vA + 2}')
            e(f'v_lshl_add_u32 v{vA + 1}, v{vA + 1}, 6, v{vL16}')
        for c in range(nch):
            e(f's_mul_i32 s{sT + 1}, s{sJ}, 3')
            e(f's_add_u32 s{sT + 1}, s{sT + 1}, {c if g == 0 else 2}')
            e(f's_and_b32 s{sT + 2}, s{sT + 1}, 15')
            e(f's_lshl_b32 s{sT + 2}, s{sT + 2}, 7')
            e(f's_add_u32 s{sT + 2}, s{sT + 2}, s{sT}')
            acc = ACA + 16 * c
            if vtype:
                e(f's_lshl_b32 s{sT + 2}, s{sT + 2}, 11')
                e(f's_add_u32 s{sT + 2}, s{sT + 2}, {WS_KV + 1024}')
                e(f's_add_u32 s{sT + 3}, s{sT + 2}, 512')
            else:
                e(f's_cmp_lt_u32 s{sT + 1}, 16')
                e(f's_cselect_b32 s{sT + 4}, {fbits(QSCALE)}, 1.0')
                e(f's_cselect_b32 s{sT + 5}, 10, 11')
                e(f's_cselect_b32 s{sT + 6}, {WS_Q}, {WS_KV}')
                e(f's_cselect_b64 vcc, -1, 0')
                e(f's_add_u32 s{sT + 3}, s{sT + 2}, 64')
                e(f's_lshl_b32 s{sT + 2}, s{sT + 2}, s{sT + 5}')
                e(f's_lshl_b32 s{sT + 3}, s{sT + 3}, s{sT + 5}')
                e(f's_add_u32 s{sT + 2}, s{sT + 2}, s{sT + 6}')
                e(f's_add_u32 s{sT + 3}, s{sT + 3}, s{sT + 6}')
                e(f'v_cndmask_b32 v{vA}, v{vA + 1}, v{vL16}, vcc')
                for i in range(16):
                    e(f'v_mul_f32 v{acc + i}, s{sT + 4}, v{acc + i}')
            for i in range(8):
                e(f'v_cvt_pk_bf16_f32 v{acc + i}, v{acc + 2 * i}, v{acc + 2 * i + 1}')
            e(f'buffer_store_dwordx4 {vr(acc, 4)}, v{vA}, {srd(S_WS)}, s{sT + 2} offen sc1', 'qst')
            e(f'buffer_store_dwordx4 {vr(acc + 4, 4)}, v{vA}, {srd(S_WS)}, s{sT + 3} offen sc1', 'qst')
        for i in range(4):
            e(f'v_mov_b32 v{ACA + 8 + i}, -1')
        e(f's_lshl_b32 s{sT + 1}, s{sJ}, 1')
        e(f's_add_u32 s{sT + 1}, s{sT + 1}, s{sG}')
        e(f's_lshl_b32 s{sT + 1}, s{sT + 1}, 6')
        e(f's_add_u32 s{sT + 1}, s{sT + 1}, s{sT}')
        e(f's_lshl_b32 s{sT + 1}, s{sT + 1}, 10')
        e(f's_add_u32 s{sT + 1}, s{sT + 1}, {WS_O}')
        e(f'buffer_store_dwordx4 {vr(ACA + 8, 4)}, v{vL16}, {srd(S_WS)}, s{sT + 1} offen sc1', 'qst')
        e.wait(lg='all')

    def spin(self, name, reload, check):
        e = self.e
        lr, lc = e.newlabel(name + 'r'), e.newlabel(name + 'c')
        check()
        e(f's_cbranch_vccnz {lr}')
        e.label(lc)

        def blk():
            e.paths = [p for p in Emitter().paths]
            e.label(lr)
            e(f's_mov_b32 s{sSPIN}, {SPIN}')
            ll = e.newlabel(name + 'l')
            e.label(ll)
            e('s_sleep 2')
            reload()
            e('s_waitcnt vmcnt(0)')
            check()
            e(f's_cbranch_vccz {lc}')
            e(f's_sub_u32 s{sSPIN}, s{sSPIN}, 1')
            e(f's_cbranch_scc0 {ll}')
            e(f's_branch {lc}')
        self.tail_blocks.append(blk)

    def flag_store(self, soff, tmp):
        e = self.e
        e(f'v_mov_b32 v{tmp}, s{sNON}')
        e(f'v_mov_b32 v{tmp + 1}, s{sNON + 1}')
        e('s_mov_b64 exec, 1')
        e(f'buffer_store_dwordx2 v[{tmp}:{tmp + 1}], off, {srd(S_WS)}, s{soff} sc1', 'flag')
        e('s_mov_b64 exec, -1')

    def kv_load(self, it):
        e = self.e
        b = it % 2

        def k():
            e(f's_add_u32 s{sKV}, s{sKVB}, s{sKVI}')
            e(f'buffer_load_dwordx4 {vr(vK[b], 4)}, v{vL16}, {srd(S_WS)}, s{sKV} offen sc1', f'k{it}')

        def v():
            e(f's_mov_b64 exec, s[{sVM}:{sVM + 1}]')
            e(f'buffer_load_dwordx4 {vr(vV[b], 4)}, v{vVA}, {srd(S_WS)}, s{sKV} offen offset:1024 sc1', f'v{it}')
            e(f'buffer_load_dwordx4 {vr(vV[b] + 4, 4)}, v{vVA}, {srd(S_WS)}, s{sKV} offen offset:1536 sc1', f'v{it}')
            e('s_mov_b64 exec, -1')
            e(f's_add_u32 s{sKVI}, s{sKVI}, 2048')
            e(f's_and_b32 s{sKVI}, s{sKVI}, 32767')
        return k, v

    def gelu_ops(self, c):
        e = self.e
        acc = ACF + 16 * c
        T = ACA + 16
        ops = []
        A = lambda s: ops.append(lambda s=s: e(s))
        for h in range(2):
            rr = range(4 * h, 4 * h + 4)
            for i in rr:
                A(f'v_mul_f32 v{T + i}, v{acc + i}, v{acc + i}')
            for i in rr:
                A(f'v_fma_f32 v{T + i}, v{T + i}, s{sT + 8}, v{T + 8}')
            for i in rr:
                A(f'v_mul_f32 v{T + i}, v{T + i}, v{acc + i}')
            for i in rr:
                A(f'v_exp_f32 v{T + i}, v{T + i}')
            for i in rr:
                A(f'v_mul_f32 v{acc + i}, v{acc + i}, v{acc + 8 + i}')
            for i in rr:
                A(f'v_fma_f32 v{T + i}, v{T + i}, v{vCH}, v{vCH}')
            for i in rr:
                A(f'v_rcp_f32 v{T + i}, v{T + i}')
            for i in rr:
                A(f'v_mul_f32 v{acc + i}, v{acc + i}, v{T + i}')
        for i in range(4):
            A(f'v_cvt_pk_bf16_f32 v{acc + 8 + i}, v{acc + 2 * i}, v{acc + 2 * i + 1}')

        def st():
            e(f'buffer_store_dwordx4 {vr(acc + 8, 4)}, v{vL16}, {srd(S_WS)}, s{sHO} offen sc1', 'hst')
            e(f's_add_u32 s{sHO}, s{sHO}, 65536')
        ops.append(st)
        return ops

    def phase_f(self):
        e = self.e
        order = [(n, c) for n in range(24) for c in range(3)]
        for c in range(3):
            order += [(n, c) for n in range(24, 32)]
        LA = 4
        wf = Win(e, vFR)
        entered = {8}
        fill = []

        def enter(s):
            tags = [f'st{s}']
            if s == 10:
                tags.append('qst')
            e.wait(vm=tags)
            e('s_barrier')
            entered.add(s)
            if 9 <= s <= 12:
                fill.extend(self.dma_list(s + 3, None))
            if s == 9:
                fill.append(self.gate_read)
                fill.append(self.nonce_get)
            if s == 10:
                fill.insert(0, self.flag1)
                fill.append(self.gate_math)
            if s == 12:
                fill.append(self.touch)
            if s == 13:
                fill.append(self.attn_setup)

        def reads(m):
            n, c = order[m]
            s = 8 + n // 4
            if s not in entered:
                enter(s)
            slot = SLOT0 + SLOT * (s % 5)
            wf.ensure(slot, slot + 12288)
            for rd in range(2):
                t = slot + (n % 4) * 3072 + rd * 768 + 32 * c
                e(f'ds_read_b64_tr_b16 {vr(FR + 4 * (m % NFR) + 2 * rd, 2)}, v{vFR} offset:{wf.off(t)}', f'f{m}')

        for m in range(LA):
            reads(m)
        for m in range(96):
            n, c = order[m]
            e.wait(lg=f'f{m}')
            acc = vr(ACF + 16 * c, 16)
            e(f'v_mfma_f32_32x32x16_bf16 {acc}, {vr(FR + 4 * (m % NFR), 4)}, {vr(X + 4 * n, 4)}, {acc if n else 0}')
            if m + LA < 96:
                reads(m + LA)
            if m == 72:
                fill.append(self.attn_init)
                fill.append(self.poll1_issue)
            if m == 81:
                fill.extend(self.gelu_ops(0))
            if m == 88:
                fill.append(self.poll1_check)
            if m == 89:
                fill.extend(self.gelu_ops(1))
            k = 1 if m < 81 else 10
            for _ in range(k):
                if fill:
                    fill.pop(0)()
        e('s_barrier')
        for f in fill:
            f()
        self.stamp(5)
        for f in self.gelu_ops(2):
            f()
        self.stamp(6)

    def gate_read(self):
        e = self.e
        e(f's_lshl_b32 s{sT}, s{sTT}, 8')
        e(f'v_lshl_add_u32 v{vCO}, v0, 2, s{sT}')
        e(f'ds_read_b32 v{vCO}, v{vCO} offset:{L_Z}', 'zr')

    def gate_math(self):
        e = self.e
        e.wait(lg='zr')
        e(f'v_mul_f32 v{vCO}, {fbits(LOG2E)}, v{vCO}')
        e(f'v_exp_f32 v{vCH}, v{vCO}')
        e(f'v_exp_f32 v{vCO}, -v{vCO}')
        e(f'v_add_f32 v{vCH}, 1.0, v{vCH}')
        e(f'v_add_f32 v{vCO}, 1.0, v{vCO}')
        e(f'v_min_f32 v{vCH}, {fbits(2.0 ** 100)}, v{vCH}')
        e(f'v_mov_b32 v{ACA + 24}, {fbits(GC0)}')
        e(f's_mov_b32 s{sT + 8}, {fbits(GC1)}')

    def nonce_get(self):
        e = self.e
        e.wait(vm='non')
        ld = lambda: e(f'buffer_load_dwordx2 v[{vK[0]}:{vK[0] + 1}], off, {srd(S_DBG)}, 0 sc1')
        ck = lambda: e(f'v_cmp_eq_u32 vcc, 0, v{vK[0] + 1}')
        self.spin('non', ld, ck)
        e(f'v_readfirstlane_b32 s{sNON}, v{vK[0]}')
        e(f'v_readfirstlane_b32 s{sNON + 1}, v{vK[0] + 1}')

    def flag1(self):
        e = self.e
        lab = e.newlabel('f1')
        e(f's_cmp_lg_u32 s{sW}, 0')
        e(f's_cbranch_scc1 {lab}')
        snap = e.snapshot()
        e(f's_lshl_b32 s{sT}, s{sJ}, 4')
        e(f's_add_u32 s{sT}, s{sT}, s{sTB}')
        e(f's_lshl_b32 s{sT}, s{sT}, 5')
        e(f's_add_u32 s{sT}, s{sT}, {WS_F1}')
        self.flag_store(sT, vK[0])
        e.paths = e.paths + snap
        e.label(lab)

    def touch(self):
        e = self.e
        lab = e.newlabel('tc')
        e(f's_cmp_lg_u32 s{sW}, 7')
        e(f's_cbranch_scc1 {lab}')
        snap = e.snapshot()
        e(f'v_lshlrev_b32 v{vK[0]}, 7, v0')
        e(f's_mul_i32 s{sT}, s2, {43 * 128}')
        e(f's_lshl_b32 s{sT + 1}, s2, 11')
        e(f's_mov_b64 exec, 0xffff')
        e(f'buffer_load_dword v{vK[0] + 1}, v{vK[0]}, {srd(S_WO)}, s{sT + 1} offen', 'touch')
        e(f's_mov_b32 exec_lo, -1')
        e(f's_mov_b32 exec_hi, 0x7ff')
        e(f'buffer_load_dword v{vK[0] + 2}, v{vK[0]}, {srd(S_WD)}, s{sT} offen', 'touch')
        e('s_mov_b64 exec, -1')
        e.paths = e.paths + snap
        e.label(lab)

    def attn_setup(self):
        e = self.e
        e(f's_mul_i32 s{sHO}, s{sG}, 3')
        e(f's_add_u32 s{sHO}, s{sHO}, s{sUS}')
        e(f's_lshl_b32 s{sHO}, s{sHO}, 4')
        e(f's_add_u32 s{sHO}, s{sHO}, s{sTB}')
        e(f's_lshl_b32 s{sHO}, s{sHO}, 2')
        e(f's_add_u32 s{sHO}, s{sHO}, s{sTT}')
        e(f's_lshl_b32 s{sHO}, s{sHO}, 10')
        e(f's_add_u32 s{sHO}, s{sHO}, {WS_H}')
        e(f's_lshl_b32 s{sKVB}, s{sJ}, 3')
        e(f's_add_u32 s{sKVB}, s{sKVB}, s{sW}')
        e(f's_lshl_b32 s{sKVB}, s{sKVB}, 15')
        e(f's_add_u32 s{sKVB}, s{sKVB}, {WS_KV}')
        e(f's_and_b32 s{sKVI}, s{sTB}, 7')
        e(f's_lshl_b32 s{sKVI}, s{sKVI}, 12')
        for i, add in enumerate((16, 32, 0)):
            e(f's_add_u32 s{sT + i}, s{sJ}, {add}')
            e(f's_mul_i32 s{sT + i}, s{sT + i}, 43691')
            e(f's_lshr_b32 s{sT + i}, s{sT + i}, 17')
            e(f's_lshl_b32 s{sT + i}, s{sT + i}, 4')
        e(f's_lshl_b32 s{sT + 3}, s{sTT}, 2')
        e(f's_add_u32 s{sT}, s{sT}, s{sT + 3}')
        e(f's_add_u32 s{sT + 1}, s{sT + 1}, s{sT + 3}')
        e(f's_add_u32 s{sT + 2}, s{sT + 2}, s{sTB}')
        e(f'v_mov_b32 v{vPA}, s{sT + 2}')
        e(f'v_and_b32 v{vP}, 3, v0')
        e('s_mov_b64 exec, 0xff')
        e(f'v_add_u32 v{vPA}, s{sT + 1}, v{vP}')
        e('s_mov_b64 exec, 0xf')
        e(f'v_add_u32 v{vPA}, s{sT}, v{vP}')
        e('s_mov_b64 exec, -1')
        e(f'v_lshlrev_b32 v{vPA}, 5, v{vPA}')
        e(f'v_add_u32 v{vPA}, {WS_F1}, v{vPA}')
        e(f'v_lshrrev_b32 v{vDD[0]}, 3, v0')
        e(f'v_and_b32 v{vDD[1]}, 7, v0')
        e(f'v_bfe_u32 v{vP}, v0, 4, 1')
        e(f'v_lshlrev_b32 v{vP + 1}, 2, v{vP}')
        e(f'v_xor_b32 v{vDD[1]}, v{vDD[1]}, v{vP + 1}')
        e(f'v_lshlrev_b32 v{vDD[1]}, 4, v{vDD[1]}')
        e(f'v_lshl_add_u32 v{vDD[0]}, v{vDD[0]}, 10, v{vDD[1]}')
        e(f'v_add_u32 v{vDD[1]}, 8192, v{vDD[0]}')
        e(f's_mul_i32 s{sMD}, s{sW}, {WREG}')
        e(f'v_lshrrev_b32 v{vDR[0]}, 5, v0')
        e(f'v_bfe_u32 v{vDR[1]}, v0, 2, 2')
        e(f'v_lshl_add_u32 v{vDR[0]}, v{vDR[0]}, 2, v{vDR[1]}')
        e(f'v_lshlrev_b32 v{vDR[0]}, 7, v{vDR[0]}')
        e(f'v_lshl_add_u32 v{vDR[0]}, v{vP}, 5, v{vDR[0]}')
        e(f'v_bfe_u32 v{vP}, v0, 3, 1')
        e(f'v_lshl_add_u32 v{vDR[0]}, v{vP}, 6, v{vDR[0]}')
        e(f'v_and_b32 v{vP}, 3, v0')
        e(f'v_lshl_add_u32 v{vDR[0]}, v{vP}, 3, v{vDR[0]}')
        e(f'v_add_u32 v{vDR[0]}, s{sMD}, v{vDR[0]}')
        e(f'v_xor_b32 v{vDR[1]}, 64, v{vDR[0]}')
        e(f'v_add_u32 v{vRW}, s{sMD}, v{vL16}')
        e(f's_mul_i32 s{sDO}, s{sW}, {11 * 16384}')
        e(f's_lshl_b32 s{sT}, s{sCB}, 7')
        e(f's_add_u32 s{sDO}, s{sDO}, s{sT}')

    def attn_init(self):
        e = self.e
        for t in range(4):
            for i in range(0, 16, 2):
                e(f'v_mov_b64 {vr(vO[t] + i, 2)}, 0')
        e(f'v_and_b32 v{vP}, 27, v0')
        e(f'v_cmp_eq_u32 vcc, 16, v{vP}')
        e(f'v_mov_b32 v{vP}, 0x3f803f80')
        e(f'v_cndmask_b32 v{vV[0]}, 0, v{vP}, vcc')
        for i in range(1, 16):
            e(f'v_mov_b32 v{vV[0] + i}, v{vV[0]}')

    def poll1_issue(self):
        e = self.e
        e('s_mov_b64 exec, 0xfff')
        e(f'buffer_load_dwordx2 v[{vP}:{vP + 1}], v{vPA}, {srd(S_WS)}, 0 offen sc1', 'p1')
        e('s_mov_b64 exec, -1')

    def poll1_check(self):
        e = self.e
        e.wait(vm='p1')
        e('s_mov_b64 exec, 0xfff')
        ld = lambda: e(f'buffer_load_dwordx2 v[{vP}:{vP + 1}], v{vPA}, {srd(S_WS)}, 0 offen sc1')
        ck = lambda: e(f'v_cmp_ne_u64 vcc, s[{sNON}:{sNON + 1}], v[{vP}:{vP + 1}]')
        self.spin('p1', ld, ck)
        e('s_mov_b64 exec, -1')
        k, v = self.kv_load(0)
        k()
        e(f's_lshl_b32 s{sT}, s{sJ}, 1')
        e(f's_add_u32 s{sT}, s{sT}, s{sG}')
        e(f's_lshl_b32 s{sT}, s{sT}, 4')
        e(f's_add_u32 s{sT}, s{sT}, s{sTB}')
        e(f's_lshl_b32 s{sT}, s{sT}, 12')
        for i in range(4):
            e(f's_add_u32 s{sT + 1}, s{sTT}, {1 + i}')
            e(f's_and_b32 s{sT + 1}, s{sT + 1}, 3')
            e(f's_lshl_b32 s{sT + 1}, s{sT + 1}, 10')
            e(f's_add_u32 s{sT + 1}, s{sT + 1}, s{sT}')
            e(f'buffer_load_dwordx4 {vr(vQ[i], 4)}, v{vL16}, {srd(S_WS)}, s{sT + 1} offen sc1', f'q{i}')
        v()
        e(f's_lshr_b32 s{sT + 1}, s{sRB}, 1')
        e(f's_lshl_b32 s{sT + 1}, s{sT + 1}, 9')
        e(f's_add_u32 s{sT + 1}, s{sT + 1}, {WS_F2}')
        e(f'v_lshl_add_u32 v{vPA}, v0, 5, s{sT + 1}')

    def attention(self):
        e = self.e
        G0 = self.opt['g2start']
        NT = 64

        def qk(t):
            it, sl = divmod(t, 4)
            if sl == 0:
                e.wait(vm=f'k{it}')
            if it == 0:
                e.wait(vm=f'q{sl}')
            e(f'v_mfma_f32_32x32x16_bf16 {vr(vS[t % 2], 16)}, {vr(vK[it % 2], 4)}, {vr(vQ[sl], 4)}, 0')

        def pv(t, hi):
            it, sl = divmod(t, 4)
            if sl == 0 and not hi:
                e.wait(vm=f'v{it}')
            e(f'v_smfmac_f32_32x32x32_bf16 {vr(vO[sl], 16)}, {vr(vV[it % 2] + 4 * hi, 4)}, {vr(vS[t % 2] + 8 * hi, 8)}, v{vIDX}')

        def ex(t, a, b):
            for i in range(a, b):
                e(f'v_exp_f32 v{vS[t % 2] + i}, v{vS[t % 2] + i}')

        def wd_dma(step):
            def f():
                for i in range(2):
                    e(f's_add_u32 m0, s{sMD}, {L_RING + 2048 * (step % 5) + 1024 * i}')
                    e(f'buffer_load_dwordx4 v{vDD[i]}, {srd(S_WD)}, s{sDO} offen lds', f'd{step}')
                e(f's_add_u32 s{sDO}, s{sDO}, 16384')
            return f

        def wo_dma(k):
            def f():
                if k == 0:
                    e(f's_lshl_b32 s{sDO}, s{sW}, 16')
                    e(f's_lshl_b32 s{sT}, s{sCB}, 7')
                    e(f's_add_u32 s{sDO}, s{sDO}, s{sT}')
                for i in range(2):
                    e(f's_add_u32 m0, s{sMD}, {2048 * k + 1024 * i}')
                    e(f'buffer_load_dwordx4 v{vDD[i]}, {srd(S_WO)}, s{sDO} offen lds', 'wo')
                e(f's_add_u32 s{sDO}, s{sDO}, 16384')
            return f

        def h_load(step):
            def f():
                for i in range(2):
                    e(f'buffer_load_dwordx4 {vr(vH[step % 2] + 4 * i, 4)}, v{vL16}, {srd(S_H)}, s{sHO} offen offset:{1024 * i} sc1', f'h{step}')
                e(f's_add_u32 s{sHO}, s{sHO}, 65536')
            return f

        def wd_read(step, jj):
            def f():
                e.wait(vm=f'd{step}')
                for rd in range(2):
                    e(f'ds_read_b64_tr_b16 {vr(vD + 4 * jj + 2 * rd, 2)}, v{vDR[jj]} offset:{L_RING + 2048 * (step % 5) + 1024 * rd}', f'dr{step}_{jj}')
            return f

        def g2(step, sl):
            jj, i = divmod(sl, 2)
            e.wait(vm=f'h{step}', lg=f'dr{step}_{jj}')
            acc = vr(vG[i * 2 + jj], 16)
            e(f'v_mfma_f32_32x32x16_bf16 {acc}, {vr(vD + 4 * jj, 4)}, {vr(vH[step % 2] + 4 * i, 4)}, {acc if step else 0}')

        def sig2_a():
            e.wait(vm='hst')
            e(f'v_mov_b32 v{vP}, {L_CNT}')
            e(f'v_mov_b32 v{vP + 1}, 1')
            e('s_mov_b64 exec, 1')
            e(f'ds_add_rtn_u32 v{vP}, v{vP}, v{vP + 1}', 'cnt2')
            e('s_mov_b64 exec, -1')

        def sig2_b():
            e.wait(lg='cnt2')
            e(f'v_readfirstlane_b32 s{sT}, v{vP}')
            lab = e.newlabel('f2')
            e(f's_cmp_lg_u32 s{sT}, 7')
            e(f's_cbranch_scc1 {lab}')
            snap = e.snapshot()
            e(f's_lshl_b32 s{sT}, s{sTB}, 4')
            e(f's_add_u32 s{sT}, s{sT}, s{sJ}')
            e(f's_lshl_b32 s{sT}, s{sT}, 5')
            e(f's_add_u32 s{sT}, s{sT}, {WS_F2}')
            self.flag_store(sT, vP)
            e.paths = e.paths + snap
            e.label(lab)
            e(f's_mul_i32 s{sHO}, s{sW}, {11 * 65536}')
            e(f's_lshl_b32 s{sT}, s{sRB}, 11')
            e(f's_add_u32 s{sHO}, s{sHO}, s{sT}')

        def poll2_issue():
            e('s_mov_b64 exec, 0xffff')
            e(f'buffer_load_dwordx2 v[{vP}:{vP + 1}], v{vPA}, {srd(S_WS)}, 0 offen sc1', 'p2')
            e('s_mov_b64 exec, -1')

        def poll2_check():
            e.wait(vm='p2')
            e('s_mov_b64 exec, 0xffff')
            ld = lambda: e(f'buffer_load_dwordx2 v[{vP}:{vP + 1}], v{vPA}, {srd(S_WS)}, 0 offen sc1')
            ck = lambda: e(f'v_cmp_ne_u64 vcc, s[{sNON}:{sNON + 1}], v[{vP}:{vP + 1}]')
            self.spin('p2', ld, ck)
            e('s_mov_b64 exec, -1')

        def ored_write(sl):
            def f():
                o = L_RING + 3072 * sl
                e(f'ds_write_b128 v{vRW}, {vr(vO[sl], 4)} offset:{o}', 'orw')
                e(f'ds_write_b128 v{vRW}, {vr(vO[sl] + 4, 4)} offset:{o + 1024}', 'orw')
                e(f'ds_write_b32 v{vRW}, v{vO[sl] + 8} offset:{o + 2048}', 'orw')
            return f

        side = {}
        add = lambda t, p, f: side.setdefault((t, p), []).append(f)
        for it in range(15):
            k, v = self.kv_load(it + 1)
            add(4 * it, 0, k)
            add(4 * it, 0, v)
        for step in range(11):
            it = G0 + step
            add(4 * (it - 2) + 1, 0, wd_dma(step))
            add(4 * (it - 1) + 1, 0, h_load(step))
            add(4 * it - 1, 0, wd_read(step, 0))
            add(4 * it + 1, 0, wd_read(step, 1))
        for k in range(4):
            add(4 * (G0 + 9) + 1 + k, 2, wo_dma(k))
        add(5, 2, sig2_a)
        add(6, 2, sig2_b)
        add(4 * (G0 - 2) + 2, 2, poll2_issue)
        add(4 * (G0 - 1), 2, poll2_check)
        for sl in range(3):
            add(61 + sl, 3, ored_write(sl))
        if self.opt['prio']:
            e('s_setprio 3')
            add(7, 2, lambda: e('s_setprio 2'))
            add(31, 2, lambda: e('s_setprio 1'))
            add(58, 2, lambda: e('s_setprio 0'))

        def run(t, p):
            for f in side.get((t, p), []):
                f()

        qk(0)
        for t in range(NT):
            it, sl = divmod(t, 4)
            ex(t, 0, 2)
            if t > 0:
                pv(t - 1, 1)
            run(t, 0)
            ex(t, 2, 5)
            if t + 1 < NT:
                qk(t + 1)
            run(t, 1)
            ex(t, 5, 10)
            pv(t, 0)
            run(t, 2)
            ex(t, 10, 13)
            if G0 <= it < G0 + 11:
                g2(it - G0, sl)
            ex(t, 13, 16)
            run(t, 3)
            if t in (7, 31):
                self.stamp(7 if t == 7 else 8)
        pv(NT - 1, 1)

    def tail(self):
        e = self.e
        own = vO[3]
        R = vS[0]
        self.stamp(9)
        for i in range(3):
            e(f's_sub_u32 s{sT}, s{sTT}, {1 + i}')
            e(f's_and_b32 s{sT}, s{sT}, 3')
            e(f's_lshl_b32 s{sT + 1}, s{sG}, 2')
            e(f's_add_u32 s{sT}, s{sT}, s{sT + 1}')
            e(f's_mul_i32 s{sT}, s{sT}, {WREG}')
            e(f'v_add_u32 v{10 + i}, s{sT}, v{vL16}')
        e.wait(lg='all')
        e('s_barrier')
        for i in range(3):
            o = L_RING + 3072 * i
            e(f'ds_read_b32 v{R + 24 + i}, v{10 + i} offset:{o + 2048}', f'or{i}')
        for i in range(3):
            o = L_RING + 3072 * i
            e(f'ds_read_b128 {vr(R + 8 * i, 4)}, v{10 + i} offset:{o}', f'oa{i}')
            e(f'ds_read_b128 {vr(R + 8 * i + 4, 4)}, v{10 + i} offset:{o + 1024}', f'oa{i}')
        e(f's_lshl_b32 s{sT}, s{sJ}, 1')
        e(f's_add_u32 s{sT}, s{sT}, s{sG}')
        e(f's_lshl_b32 s{sT}, s{sT}, 4')
        e(f's_add_u32 s{sT}, s{sT}, s{sTB}')
        e(f's_lshl_b32 s{sT}, s{sT}, 2')
        e(f's_add_u32 s{sT}, s{sT}, s{sTT}')
        e(f's_lshl_b32 s{sT}, s{sT}, 10')
        e(f's_add_u32 s{sT}, s{sT}, {WS_O}')
        e.wait(lg='or2')
        e(f'v_add_f32 v{R + 24}, v{R + 24}, v{R + 25}')
        e(f'v_add_f32 v{own + 8}, v{own + 8}, v{R + 26}')
        e(f'v_add_f32 v{own + 8}, v{own + 8}, v{R + 24}')
        for i in range(3):
            e.wait(lg=f'oa{i}')
            for r in range(8):
                e(f'v_add_f32 v{own + r}, v{own + r}, v{R + 8 * i + r}')
        e(f'v_subrev_u32 v{R}, {(127 - 60) << 23}, v{own + 8}')
        e(f'v_cmp_lt_u32 vcc, {120 << 23}, v{R}')
        e('s_cbranch_vccnz Lsafe')
        e.label('Lsafe_done')
        self.tail_blocks.append(self.safe_softmax)
        e(f'v_mul_f32 v{R}, v{own + 8}, v{vCO}')
        e(f'v_rcp_f32 v{R}, v{R}')
        for r in range(8):
            e(f'v_mul_f32 v{own + r}, v{own + r}, v{R}')
        for r in range(4):
            e(f'v_cvt_pk_bf16_f32 v{own + r}, v{own + 2 * r}, v{own + 2 * r + 1}')
        for r in range(4):
            e(f'v_min_u32 v{own + r}, -2, v{own + r}')
        e(f'buffer_store_dwordx4 {vr(own, 4)}, v{vL16}, {srd(S_WS)}, s{sT} offen sc1', 'ost')
        self.stamp(10)
        e('s_barrier')
        WO = vO[0]
        e.wait(vm='wo')
        for k in range(4):
            for jj in range(2):
                for rd in range(2):
                    e(f'ds_read_b64_tr_b16 {vr(WO + 8 * k + 4 * jj + 2 * rd, 2)}, v{vDR[jj]} offset:{2048 * k + 1024 * rd}', 'wor')
        e(f's_lshl_b32 s{sT}, s{sW}, 18')
        e(f's_lshl_b32 s{sT + 1}, s{sRB}, 11')
        e(f's_add_u32 s{sT}, s{sT}, s{sT + 1}')
        e(f's_add_u32 s{sT}, s{sT}, {WS_O}')
        for k in range(1, 4):
            e(f's_add_u32 s{sT + k}, s{sT}, {65536 * k}')
        e(f'v_lshrrev_b32 v{vPA}, 1, v0')
        e(f'v_lshlrev_b32 v{vPA}, 16, v{vPA}')
        e(f'v_and_b32 v{vP}, 1, v0')
        e(f'v_lshl_add_u32 v{vPA}, v{vP}, 10, v{vPA}')
        vFW, vFRd = 10, 12
        e(f'v_and_b32 v{vFW}, 31, v0')
        e(f'v_lshrrev_b32 v{vP}, 5, v0')
        e(f'v_and_b32 v{vP + 1}, 7, v0')
        e(f'v_xor_b32 v{vP}, v{vP}, v{vP + 1}')
        e(f'v_lshlrev_b32 v{vP}, 4, v{vP}')
        e(f'v_lshl_add_u32 v{vFW}, v{vFW}, 8, v{vP}')
        e(f'v_add_u32 v{vFW}, s{sMD}, v{vFW}')
        e(f'v_lshrrev_b32 v{vP}, 3, v0')
        e(f'v_lshlrev_b32 v{vP + 1}, 1, v{vP + 1}')
        e(f'v_xor_b32 v{vP + 1}, v{vP + 1}, v{vP}')
        e(f'v_lshlrev_b32 v{vP + 1}, 4, v{vP + 1}')
        e(f'v_lshl_add_u32 v{vFRd}, v{vP}, 8, v{vP + 1}')
        e(f's_lshl_b32 s{sT + 4}, s{sW}, 11')
        e(f'v_add_u32 v{vFRd}, s{sT + 4}, v{vFRd}')
        e(f'v_xor_b32 v{vFRd + 1}, 16, v{vFRd}')
        e.wait(vm='all')
        e('s_mov_b64 exec, 0xff')
        ld = lambda: e(f'buffer_load_dword v{vP}, v{vPA}, {srd(S_WS)}, s{sT} offen offset:1020 sc1')
        ck = lambda: e(f'v_cmp_eq_u32 vcc, -1, v{vP}')
        ld()
        e.wait(vm='all')
        self.spin('p3', ld, ck)
        e('s_mov_b64 exec, -1')
        self.stamp(11)
        OF = vS[0]

        def old(k, tag=None):
            for i in range(2):
                e(f'buffer_load_dwordx4 {vr(OF + 8 * k + 4 * i, 4)}, v{vL16}, {srd(S_WS)}, s{sT + k} offen offset:{1024 * i} sc1', tag)

        for k in range(4):
            old(k, f'o{k}')
        e.wait(lg='all')
        for k in range(4):
            e.wait(vm=f'o{k}')

            def ck(k=k):
                b = OF + 8 * k
                e(f'v_max3_u32 v{vP}, v{b}, v{b + 1}, v{b + 2}')
                e(f'v_max3_u32 v{vP + 1}, v{b + 3}, v{b + 4}, v{b + 5}')
                e(f'v_max3_u32 v{vP}, v{vP}, v{b + 6}, v{b + 7}')
                e(f'v_max_u32 v{vP}, v{vP}, v{vP + 1}')
                e(f'v_cmp_eq_u32 vcc, -1, v{vP}')
            self.spin(f'o{k}', lambda k=k: old(k), ck)
            for i in range(2):
                for jj in range(2):
                    acc = vr(vG[i * 2 + jj], 16)
                    e(f'v_mfma_f32_32x32x16_bf16 {acc}, {vr(WO + 8 * k + 4 * jj, 4)}, {vr(OF + 8 * k + 4 * i, 4)}, {acc}')
        self.stamp(12)
        for q in range(1, 4):
            e(f'v_xor_b32 v{FR + q}, {32 * q}, v{vFW}')
        for i in range(2):
            for jj in range(2):
                for q in range(4):
                    a = vFW if q == 0 else FR + q
                    e(f'ds_write_b128 v{a}, {vr(vG[i * 2 + jj] + 4 * q, 4)} offset:{8192 * i + 128 * jj}', 'fw')
        e(f'v_lshrrev_b32 v{vP}, 3, v0')
        e(f'v_and_b32 v{vP + 1}, 7, v0')
        e(f'v_lshlrev_b32 v{vP + 1}, 4, v{vP + 1}')
        e(f'v_lshl_add_u32 v{vPA}, v{vP}, 10, v{vP + 1}')
        e(f's_lshl_b32 s{sT}, s{sRB}, 3')
        e(f's_add_u32 s{sT}, s{sT}, s{sW}')
        e(f's_lshl_b32 s{sT}, s{sT}, 13')
        e(f's_lshl_b32 s{sT + 1}, s{sCB}, 7')
        e(f's_add_u32 s{sT}, s{sT}, s{sT + 1}')
        e.wait(lg='all')
        e('s_barrier')
        wr = Win(e, [vFRd, vFRd + 1])
        B = X
        for p in range(8):
            wr.ensure(p * WREG, p * WREG)
            for h in range(2):
                e(f'ds_read_b128 {vr(B + 8 * p + 4 * h, 4)}, v{vFRd + h} offset:{wr.off(p * WREG)}', f'fr{p}')
        for p in range(1, 8):
            e.wait(lg=f'fr{p}')
            for r in range(8):
                e(f'v_add_f32 v{B + r}, v{B + r}, v{B + 8 * p + r}')
        for r in range(4):
            e(f'v_cvt_pk_bf16_f32 v{B + r}, v{B + 2 * r}, v{B + 2 * r + 1}')
        e(f'buffer_store_dwordx4 {vr(B, 4)}, v{vPA}, {srd(S_OUT)}, s{sT} offen')
        if 'probe' in self.opt:
            e.wait(vm='all')
            self.stamp(13)
            e.label('Lprobe')
            e('s_sleep 1')
            e(f's_memrealtime s[{sSTMP}:{sSTMP + 1}]')
            e('s_waitcnt lgkmcnt(0)')
            e(f's_sub_u32 s{sSTMP}, s{sSTMP}, s{sSTAMP}')
            e(f's_cmp_lt_u32 s{sSTMP}, 6000')
            e('s_cbranch_scc1 Lprobe')
        if self.stamps:
            e.wait(vm='all')
            self.stamp(13)
            e(f's_lshl_b32 s{sT}, s2, 3')
            e(f's_add_u32 s{sT}, s{sT}, s{sW}')
            e(f's_lshl_b32 s{sT}, s{sT}, 6')
            e(f's_add_u32 s{sT}, s{sT}, {WS_ST}')
            for i in range(14):
                e(f'v_mov_b32 v{B + 8 + i}, s{sSTAMP + i}')
            e(f'v_mov_b32 v{B + 22}, s85')
            e(f'v_mov_b32 v{B + 23}, s{sSTMP}')
            e('s_mov_b64 exec, 1')
            for i in range(4):
                e(f'buffer_store_dwordx4 {vr(B + 8 + 4 * i, 4)}, off, {srd(S_WS)}, s{sT} offset:{16 * i}')
        e.label('Lexit')
        e('s_endpgm')

    def safe_softmax(self):
        e = self.e
        e.paths = [p for p in Emitter().paths]
        own = vO[3]
        M = vO[0]
        S = vS[0]
        e.label('Lsafe')
        e(f's_and_b32 s{sT + 2}, s{sKVB}, {0xffffffff ^ (3 << 15)}')
        e(f's_mov_b32 s{sT + 3}, s{sT + 2}')
        e(f's_mov_b32 s{sT + 4}, 64')
        e(f'v_mov_b32 v{M}, 0xff800000')
        e.label('Lsafe1')
        e(f'buffer_load_dwordx4 {vr(vK[0], 4)}, v{vL16}, {srd(S_WS)}, s{sT + 3} offen sc1')
        e(f's_add_u32 s{sT + 3}, s{sT + 3}, 2048')
        e('s_waitcnt vmcnt(0)')
        e(f'v_mfma_f32_32x32x16_bf16 {vr(S, 16)}, {vr(vK[0], 4)}, {vr(vQ[3], 4)}, 0')
        for i in range(0, 16, 2):
            e(f'v_max3_f32 v{M}, v{M}, v{S + i}, v{S + i + 1}')
        e(f's_sub_u32 s{sT + 4}, s{sT + 4}, 1')
        e(f's_cmp_lg_u32 s{sT + 4}, 0')
        e('s_cbranch_scc1 Lsafe1')
        e(f'v_mov_b32 v{M + 1}, v{M}')
        e(f'v_permlane32_swap_b32 v{M}, v{M + 1}')
        e(f'v_max_f32 v{M}, v{M}, v{M + 1}')
        e(f'v_sub_f32 v{M}, 0, v{M}')
        for i in range(1, 16):
            e(f'v_mov_b32 v{M + i}, v{M}')
        for i in range(16):
            e(f'v_mov_b32 v{own + i}, 0')
        e(f's_mov_b32 s{sT + 3}, s{sT + 2}')
        e(f's_mov_b32 s{sT + 4}, 64')
        e.label('Lsafe2')
        e(f'buffer_load_dwordx4 {vr(vK[0], 4)}, v{vL16}, {srd(S_WS)}, s{sT + 3} offen sc1')
        e(f's_mov_b64 exec, s[{sVM}:{sVM + 1}]')
        e(f'buffer_load_dwordx4 {vr(vV[0], 4)}, v{vVA}, {srd(S_WS)}, s{sT + 3} offen offset:1024 sc1')
        e(f'buffer_load_dwordx4 {vr(vV[0] + 4, 4)}, v{vVA}, {srd(S_WS)}, s{sT + 3} offen offset:1536 sc1')
        e('s_mov_b64 exec, -1')
        e(f's_add_u32 s{sT + 3}, s{sT + 3}, 2048')
        e('s_waitcnt vmcnt(0)')
        e(f'v_mfma_f32_32x32x16_bf16 {vr(S, 16)}, {vr(vK[0], 4)}, {vr(vQ[3], 4)}, {vr(M, 16)}')
        for i in range(16):
            e(f'v_exp_f32 v{S + i}, v{S + i}')
        for hi in range(2):
            e(f'v_smfmac_f32_32x32x32_bf16 {vr(own, 16)}, {vr(vV[0] + 4 * hi, 4)}, {vr(S + 8 * hi, 8)}, v{vIDX}')
        e(f's_sub_u32 s{sT + 4}, s{sT + 4}, 1')
        e(f's_cmp_lg_u32 s{sT + 4}, 0')
        e('s_cbranch_scc1 Lsafe2')
        e('s_nop 15')
        e('s_branch Lsafe_done')

    def build(self):
        e = self.e
        self.prologue()
        snap = e.snapshot()
        e(f's_cmp_lg_u32 s{sG}, 0')
        e('s_cbranch_scc1 La1')
        e(f's_cmp_ge_u32 s{sJ}, 11')
        e('s_cbranch_scc1 La0v')
        ends = []
        variants = [(None, 0, 0), ('La0v', 0, 1), ('La1', 1, 0), ('La1v', 1, 1)]
        for i, (lab, g, vt) in enumerate(variants):
            e.restore(snap)
            if lab:
                e.label(lab)
            if lab == 'La1':
                e(f's_cmp_ge_u32 s{sJ}, 10')
                e('s_cbranch_scc1 La1v')
            self.phase_a(g, vt)
            if i < 3:
                e('s_branch Lffn')
            ends += e.snapshot()
        e.paths = ends
        e.label('Lffn')
        self.phase_f()
        self.attention()
        self.tail()
        i = 0
        while i < len(self.tail_blocks):
            self.tail_blocks[i]()
            i += 1
        return self.wrap()

    def wrap(self):
        head = open('gated_mix__softmax_full_mha__glu_gated_geglu__prompt.s.ref').read().split('; Override')[0]
        return head + f"""; @launch grid=(256,1,1) block=(512,1,1) lds={LDS_BYTES}
.amdgcn_target "amdgcn-amd-amdhsa--gfx950"
.text
.globl {KNAME}
.p2align 8
.type {KNAME},@function
{KNAME}:
{self.e.text()}
.section .rodata,"a"
.p2align 6
.amdhsa_kernel {KNAME}
  .amdhsa_next_free_vgpr 256
  .amdhsa_next_free_sgpr 102
  .amdhsa_accum_offset 256
  .amdhsa_group_segment_fixed_size 0
  .amdhsa_kernarg_size 88
  .amdhsa_user_sgpr_count 2
  .amdhsa_user_sgpr_kernarg_segment_ptr 1
  .amdhsa_system_sgpr_workgroup_id_x 1
.end_amdhsa_kernel
"""


if __name__ == '__main__':
    out = sys.argv[1]
    stamps = sys.argv[2] if len(sys.argv) > 2 and sys.argv[2] in ('rt', 'cy') else False
    opt = {}
    for a in sys.argv[2:]:
        if '=' in a:
            k, v = a.split('=')
            opt[k] = int(v)
    g = Gen(stamps=stamps, opt=opt)
    open(out, 'w').write(g.build())
    print('nops inserted:', g.e.nops, 'lines:', len(g.e.lines))
```

```python
import sys, math, struct
from asmlib import Emitter, Win

KNAME = 'gated_mix__softmax_full_mha__glu_gated_geglu__prompt_kernel'

WS_Q = 0
WS_KV = 2 << 20
WS_O = 6 << 20
WS_F1 = 8 << 20
WS_F2 = WS_F1 + 8192
WS_ST = WS_F1 + 65536
WS_H = 9 << 20
WS_END = 15 << 20

L_GW = 0
L_ZERO = 1024
L_Z = 2048
SLOT0 = 4096
SLOT = 28672
UPOFF = 12288 + 32
L_RING = 32768
RINGW = 7168
L_WO = 90112
L_CNT = 161792
LDS_BYTES = 163840

S_X, S_WQ, S_WF, S_WS, S_H, S_WD, S_WO, S_OUT, S_DBG, S_GW = [4 * i + 4 for i in range(10)]
S_WG = 80
sW, sTT, sG, sJ, sTB, sRB, sCB, sUS = range(44, 52)
sXO, sWO, sFO, sMX, sMW, sMF = range(52, 58)
sNON = 58
sKV, sKVB, sKVI, sHO, sDO, sMD = range(60, 66)
sVM = 66
sT = 68
sXO2 = 79
sMO = 85
sEP = [4, 5, 6, 7, 8, 9, 40, 41, 42]
sSPIN = 84
sSTMP = 86
sSTAMP = 88


def srd(b):
    return f's[{b}:{b + 3}]'


def vr(b, n):
    return f'v[{b}:{b + n - 1}]' if n > 1 else f'v{b}'


def fbits(x):
    return '0x%08x' % struct.unpack('<I', struct.pack('<f', x))[0]


vL16 = 1
vXD = [2, 3]
vWD = [4, 5, 6]
vFD = [7, 8, 9]
vXR = [10, 11, 12, 13]
vWR = 14
vFR = 15
FR = 16
NFR = 5
ACA = 36
ACF = 68
vK = [116, 120]
vCH, vCO, vIDX, vVA = 124, 125, 126, 127
X = 128
vO = [X + 16 * i for i in range(4)]
vQ = [X + 64 + 4 * i for i in range(4)]
vV = [ACA, ACA + 8]
vS = [ACA + 16, X + 80]
vG = [ACF, ACF + 16, ACF + 32, X + 96]
vH = [X + 112, X + 120]
vD = FR
vDD = [2, 3]
vDR = [4, 5]
vP = 10
vPA = 6
vRW = [12, 13]

LOG2E = 1.4426950408889634
QSCALE = 0.25 * LOG2E
GC0 = -2.0 * LOG2E * math.sqrt(2.0 / math.pi)
GC1 = GC0 * 0.044715
SPIN = 400000


class Gen:
    def __init__(self, stamps=False, opt=None):
        self.e = Emitter()
        self.stamps = stamps
        self.nst = 0
        self.opt = dict(g2start=4, prio=True, ahead=11, span=11, span2=8, laa=6, lfirst=3, llast=2, spl=24, p1i=74, p1c=80, fk=3, gk=9,
                        oz=9, pa=0, pb=7, pc=50, qw=13, q0=0, qsp=7, vi=40, tch=64, lonly=13, fah=2)
        if opt:
            self.opt.update(opt)
        self.tail_blocks = []

    def stamp(self, idx, sset=0):
        e = self.e
        if 7 <= idx <= 12 and sset != self.opt.get('sset', 0):
            return
        if self.opt.get('probe') == idx:
            e(f's_memrealtime s[{sSTAMP}:{sSTAMP + 1}]')
            e('s_waitcnt lgkmcnt(0)')
            for p in e.paths:
                p.lg = []
        if not self.stamps or not (self.opt.get('smask', 0xffff) | 0x2001) >> idx & 1:
            return
        e(f"{'s_memtime' if self.stamps == 'cy' else 's_memrealtime'} s[{sSTMP}:{sSTMP + 1}]")
        e('s_waitcnt lgkmcnt(0)')
        for p in e.paths:
            p.lg = []
        e(f's_mov_b32 s{sSTAMP + idx}, s{sSTMP}')
        if idx in (0, 13):
            e(f's_memtime s[{sSTMP}:{sSTMP + 1}]')
            e('s_waitcnt lgkmcnt(0)')
            if idx == 0:
                e(f's_mov_b32 s3, s{sSTMP}')

    def dma_list(self, s):
        e = self.e
        slot = SLOT0 + SLOT * (s % 5)
        out = []
        tag = f'st{s}'

        def mk(m0s, m0c, va, rs, so, imm=0, adv=None):
            def f():
                e(f's_add_u32 m0, s{m0s}, {m0c - imm}')
                if adv:
                    e(f's_add_u32 s{so}, s{so}, {adv}')
                e(f'buffer_load_dwordx4 v{va}, {srd(rs)}, s{so} offen' + (f' offset:{imm}' if imm else '') + ' lds', tag)
            out.append(f)
        if s < 8:
            for i in range(4):
                mk(sMX, slot + i * 1024, vXD[i % 2], S_X, sXO if i < 2 else sXO2, imm=s * 128)
            for i in range(3):
                mk(sMW, slot + 16384 + i * 1024, vWD[i], S_WQ, sWO, adv=64 * 3072 if i == 0 and s else None)
        else:
            for i in range(3):
                mk(sMF, slot + i * 1024, vFD[i], S_WF, sFO, adv=64 * 2752 if i == 0 and s > 8 else None)
            if s <= self.opt['lonly']:
                for i in range(3):
                    mk(sMW, slot + i * 1024, vFD[i], S_WG, sFO)
        return out

    def prologue(self):
        e = self.e
        self.stamp(0)
        e('s_cmp_ge_u32 s2, 256')
        e('s_cbranch_scc1 Lexit')
        e(f's_load_dwordx2 s[{S_X}:{S_X + 1}], s[0:1], 0')
        e(f's_load_dwordx2 s[{S_WQ}:{S_WQ + 1}], s[0:1], 8')
        e(f's_getpc_b64 s[{sT}:{sT + 1}]')
        e.label('Lpfbase')
        e(f's_lshr_b32 s{sT + 5}, s2, 3')
        e(f's_lshl_b32 s{sT + 2}, s{sT + 5}, 11')
        e(f'v_lshl_add_u32 v16, v0, 2, s{sT + 2}')
        e('v_min_u32 v16, Lcode_end-Lpfbase-4, v16')
        e('v_lshrrev_b32 v2, 6, v0')
        e('s_mov_b32 exec_lo, 1')
        e('s_mov_b32 exec_hi, 1')
        e(f'global_load_dword v{vK[1]}, v16, s[{sT}:{sT + 1}]', 'pf')
        e('s_mov_b64 exec, -1')
        e(f'v_readfirstlane_b32 s{sW}, v2')
        e('v_and_b32 v0, 63, v0')
        e(f's_and_b32 s{sJ}, s2, 3')
        e(f's_lshl_b32 s{sJ}, s{sJ}, 2')
        e(f's_and_b32 s{sT + 6}, s{sT + 5}, 3')
        e(f's_add_u32 s{sJ}, s{sJ}, s{sT + 6}')
        e(f's_xor_b32 s{sW}, s{sW}, 4')
        e(f's_and_b32 s{sTT}, s{sW}, 3')
        e(f's_lshr_b32 s{sG}, s{sW}, 2')
        e('s_cbranch_scc1 Lload')
        e(f's_cmp_ge_u32 s{sJ}, 11')
        e('s_cbranch_scc1 Lvvv')
        e(f's_cmp_eq_u32 s{sJ}, 10')
        e('s_cbranch_scc1 Lnnv')
        e('s_branch Lnnn')

    def more_args(self, g):
        e = self.e
        lst = [(S_GW, 56), (S_WG, 32), (S_WF, 40)] if g else [(S_WF, 32)]
        for b, off in lst + [(S_DBG, 72), (S_WS, 80), (S_H, 80), (S_WD, 48), (S_WO, 16), (S_OUT, 64)]:
            e(f's_load_dwordx2 s[{b}:{b + 1}], s[0:1], {off}')
        e(f'v_lshlrev_b32 v{vL16}, 4, v0')
        e(f's_and_b32 s{sTB}, s2, 4')
        e(f's_lshl_b32 s{sTB}, s{sTB}, 1')
        e(f's_lshr_b32 s{sT + 6}, s2, 5')
        e(f's_add_u32 s{sTB}, s{sTB}, s{sT + 6}')
        e(f's_mul_i32 s{sMW}, s{sTT}, 3072')

    def piece_rows(self, dst, stride, t):
        e = self.e
        for i in range(3):
            e(f'v_add_u32 v{t}, {64 * i}, v0')
            e(f'v_mul_u32_u24 v{dst[i]}, 43691, v{t}')
            e(f'v_lshrrev_b32 v{dst[i]}, 19, v{dst[i]}')
            e(f'v_mul_u32_u24 v{dst[i]}, {stride - 192}, v{dst[i]}')
            e(f'v_lshl_add_u32 v{dst[i]}, v{t}, 4, v{dst[i]}')

    def srd_consts(self, lst):
        for b, n in lst:
            self.e(f's_mov_b32 s{b + 2}, {n}')
            self.e(f's_mov_b32 s{b + 3}, 0x20000')

    def read_addrs(self, g):
        e = self.e
        e('v_and_b32 v16, 31, v0')
        e(f's_lshl_b32 s{sT + 6}, s{sTT}, 12')
        e('v_lshrrev_b32 v17, 5, v0')
        e('v_bfe_u32 v18, v0, 1, 3')
        e('v_xor_b32 v18, v18, v17')
        e('v_lshlrev_b32 v18, 4, v18')
        e('v_lshl_add_u32 v18, v16, 7, v18')
        e(f'v_add_u32 v{vXR[0]}, s{sT + 6}, v18')
        for ks in range(1, 4):
            e(f'v_xor_b32 v{vXR[ks]}, {32 * ks}, v{vXR[0]}')
        e('v_bfe_u32 v18, v0, 2, 2')
        e('v_lshl_add_u32 v18, v17, 3, v18')
        e('v_mul_u32_u24 v18, 192, v18')
        e('v_and_b32 v19, 3, v0')
        e('v_lshl_add_u32 v18, v19, 3, v18')
        e('v_bfe_u32 v19, v0, 4, 1')
        if g == 0:
            e(f'v_lshl_add_u32 v{vWR}, v19, 5, v18')
        else:
            e('v_xor_b32 v20, v19, v0')
            e('v_and_b32 v20, 1, v20')
            e('v_lshlrev_b32 v20, 10, v20')
            e(f'v_lshl_add_u32 v{vWR}, v17, 4, v20')
        e(f'v_mul_u32_u24 v19, {UPOFF}, v19')
        e(f'v_add_u32 v{vFR}, v18, v19')
        if g:
            e(f'v_add_u32 v{vFR}, 96, v{vFR}')

    def setup2(self, g):
        e = self.e
        self.srd_consts(([(S_WG, 512 * 2752), (S_DBG, 256), (S_WS, WS_END)] if g else []) +
                        [(S_WF, 512 * 2752), (S_H, 86 * 65536), (S_WD, 1376 * 1024), (S_WO, 512 * 1024), (S_OUT, 2048 * 1024)])
        e(f's_mul_i32 s{sUS}, s{sJ}, {8 * 43691}')
        e(f's_lshr_b32 s{sUS}, s{sUS}, 17')
        e(f's_lshl_b32 s{sUS}, s{sUS}, 1')
        e(f's_mul_i32 s{sFO}, s{sTT}, {16 * 2752}')
        e(f's_lshl_b32 s{sT + 10}, s{sUS}, 5')
        e(f's_add_u32 s{sFO}, s{sFO}, s{sT + 10}')
        if g == 0:
            e(f's_add_u32 s{sFO}, s{sFO}, {(self.opt["lonly"] - 8) * 64 * 2752}')
        e(f's_add_u32 s{sMF}, s{sMW}, {g * UPOFF}')
        self.piece_rows(vFD, 2752, vCH)
        e(f's_add_u32 s{S_H}, s{S_H}, {WS_H}\n    s_addc_u32 s{S_H + 1}, s{S_H + 1}, 0')
        e(f's_and_b32 s{sRB}, s2, 7')
        e(f's_lshl_b32 s{sRB}, s{sRB}, 2')
        e(f's_lshr_b32 s{sT + 10}, s2, 6')
        e(f's_add_u32 s{sRB}, s{sRB}, s{sT + 10}')
        e(f's_bfe_u32 s{sCB}, s2, 0x30003')
        e(f's_mov_b32 s{sVM}, 0xffff')
        e(f's_mov_b32 s{sVM + 1}, 0xffff')
        e(f'v_and_b32 v{vVA}, 15, v0')
        e(f'v_lshrrev_b32 v{vCH}, 5, v0')
        e(f'v_lshl_add_u32 v{vVA}, v{vCH}, 4, v{vVA}')
        e(f'v_lshlrev_b32 v{vVA}, 4, v{vVA}')
        e(f'v_mov_b32 v{vIDX}, 0xdddddddd')

    def phase_a_loader(self):
        e = self.e
        GWB = FR
        ZA = ACA
        self.more_args(1)
        e('v_lshrrev_b32 v16, 3, v0')
        e('v_lshrrev_b32 v17, 4, v0')
        e('v_and_b32 v18, 7, v0')
        e('v_xor_b32 v18, v18, v17')
        e('v_lshlrev_b32 v18, 4, v18')
        e(f'v_lshl_add_u32 v{vXD[0]}, v16, 10, v18')
        e(f'v_xor_b32 v{vXD[1]}, 64, v{vXD[0]}')
        e(f'v_add_u32 v{vXD[1]}, 8192, v{vXD[1]}')
        e(f's_lshl_b32 s{sXO}, s{sTB}, 2')
        e(f's_add_u32 s{sXO}, s{sXO}, s{sTT}')
        e(f's_lshl_b32 s{sXO}, s{sXO}, 15')
        e(f's_add_u32 s{sXO2}, s{sXO}, 16384')
        e(f's_lshl_b32 s{sMX}, s{sTT}, 12')
        self.srd_consts(((S_X, 2048 * 1024),))
        e('s_waitcnt lgkmcnt(0)')
        self.stamp(1)
        seq = []
        bound = []
        for s in range(10):
            bound.append(len(seq))
            seq += self.dma_list(s)
        bound += [len(seq)] * 2
        pos = 0

        def issue(upto):
            nonlocal pos
            while pos < min(upto, len(seq)):
                seq[pos]()
                pos += 1
        issue(4)
        e(f's_lshl_b32 s{sWO}, s{sMW}, 4')
        e(f's_mul_i32 s{sT + 6}, s{sJ}, 192')
        e(f's_add_u32 s{sWO}, s{sWO}, s{sT + 6}')
        self.srd_consts(((S_WQ, 512 * 3072), (S_GW, 1024)))
        self.piece_rows(vWD, 3072, 16)
        issue(7)
        e(f's_mov_b32 m0, {L_GW}')
        e(f'buffer_load_dwordx4 v{vL16}, {srd(S_GW)}, 0 offen lds', 'st0')
        issue(12)
        self.read_addrs(1)
        self.setup2(1)
        self.o_offset()
        D = self.opt['ahead']
        issue(7 + D)
        wx = Win(e, vXR)
        for s in range(8):
            slot = SLOT0 + SLOT * (s % 5)
            e.wait(vm=f'st{s}')
            e('s_barrier')
            if s in (0, 4):
                self.stamp(2 + s // 4)
            end = min(bound[s + 2] + D, bound[s + 4])
            issue(min(end, pos + self.opt['lfirst']))
            wx.ensure(slot, slot)
            for ks in range(4):
                n = 4 * s + ks
                e(f'ds_read_b128 {vr(X + 4 * n, 4)}, v{vXR[ks]} offset:{wx.off(slot)}', f'r{n}')
                e(f'ds_read_b128 {vr(GWB + 4 * ks, 4)}, v{vWR} offset:{L_GW + 32 * n}', f'r{n}')
            if s == 5:
                e(f'buffer_load_dwordx2 v[{vK[0]}:{vK[0] + 1}], off, {srd(S_DBG)}, 0 sc1', 'non')
            issue(end - self.opt['llast'])
            for ks in range(4):
                n = 4 * s + ks
                e.wait(lg=f'r{n}')
                e(f'v_mfma_f32_16x16x32_bf16 {vr(ZA, 4)}, {vr(GWB + 4 * ks, 4)}, {vr(X + 4 * n, 4)}, {vr(ZA, 4) if n else 0}')
            issue(end)
        assert pos == len(seq)
        e(f'v_and_b32 v{ZA + 4}, 16, v0')
        e(f'v_cmp_eq_u32 vcc, 0, v{ZA + 4}')
        e(f's_lshl_b32 s{sT + 1}, s{sTT}, 8')
        e(f'v_lshl_add_u32 v{ZA + 4}, v0, 2, s{sT + 1}')
        e(f'v_cndmask_b32 v{ZA}, v{ZA + 1}, v{ZA}, vcc')
        e(f'ds_write_b32 v{ZA + 4}, v{ZA} offset:{L_Z}', 'zw')
        e.wait(vm='st8')
        e('s_barrier')
        self.stamp(4)

    def epi_params(self, types):
        e = self.e
        e(f's_lshl_b32 s{sT + 9}, s{sTB}, 2')
        e(f's_add_u32 s{sT + 9}, s{sT + 9}, s{sTT}')
        if not all(types):
            e(f'v_bfe_u32 v{ACA + 1}, v0, 2, 1')
            e(f'v_bfe_u32 v{ACA + 2}, v0, 3, 1')
            e(f'v_sub_u32 v{ACA + 1}, v{ACA + 1}, v{ACA + 2}')
            e(f'v_lshl_add_u32 v{ACA + 1}, v{ACA + 1}, 6, v{vL16}')
        for c in range(3):
            o0, o1, sc = sEP[2 * c], sEP[2 * c + 1], sEP[6 + c]
            t1, t2 = sXO, sXO2
            e(f's_mul_i32 s{t1}, s{sJ}, 3')
            e(f's_add_u32 s{t1}, s{t1}, {c}')
            e(f's_and_b32 s{o0}, s{t1}, 15')
            e(f's_lshl_b32 s{o0}, s{o0}, 7')
            e(f's_add_u32 s{o0}, s{o0}, s{sT + 9}')
            if types[c]:
                e(f's_lshl_b32 s{o0}, s{o0}, 11')
                e(f's_add_u32 s{o0}, s{o0}, {WS_KV + 1024}')
                e(f's_add_u32 s{o1}, s{o0}, 512')
                e(f'v_bfe_u32 v{ACA + 4 + c}, v0, 4, 1')
                e(f'v_lshl_add_u32 v{ACA + 4 + c}, v{ACA + 4 + c}, 17, v{vVA}')
            else:
                e(f's_cmp_lt_u32 s{t1}, 16')
                e(f's_cselect_b32 s{sc}, {fbits(QSCALE)}, 1.0')
                e(f's_cselect_b32 s{t2}, 10, 11')
                e(f's_cselect_b32 s{sMX}, {WS_Q}, {WS_KV}')
                e('s_cselect_b64 vcc, -1, 0')
                e(f's_lshl_b32 s{o0}, s{o0}, s{t2}')
                e(f's_lshl_b32 s{o1}, 64, s{t2}')
                e(f's_add_u32 s{o0}, s{o0}, s{sMX}')
                e(f's_add_u32 s{o1}, s{o1}, s{o0}')
                e(f'v_cndmask_b32 v{ACA + 4 + c}, v{ACA + 1}, v{vL16}, vcc')

    def phase_a_compute(self, types):
        e = self.e
        self.more_args(0)
        e(f's_memrealtime s[{sNON}:{sNON + 1}]')
        for i in range(4):
            e(f'v_mov_b32 v{ACA + i}, 0')
        e(f'ds_write_b128 v{vL16}, {vr(ACA, 4)} offset:{L_ZERO}', 'z0')
        e(f'v_mov_b32 v17, {L_CNT}')
        e(f'ds_write_b32 v17, v{ACA}', 'z0')
        self.srd_consts(((S_DBG, 256), (S_WS, WS_END)))
        self.o_offset()
        self.read_addrs(0)
        e('s_waitcnt lgkmcnt(0)')
        for p in e.paths:
            p.lg = []
        self.stamp(1)
        if not any(types):
            e(f's_or_b32 s{sT + 6}, s2, s{sW}')
            lab = e.newlabel('nn')
            e(f's_cbranch_scc1 {lab}')
            snap = e.snapshot()
            e(f's_or_b32 s{sNON + 1}, s{sNON + 1}, 0x80000000')
            e(f'v_mov_b32 v16, s{sNON}')
            e(f'v_mov_b32 v17, s{sNON + 1}')
            e('s_mov_b64 exec, 1')
            e(f'buffer_store_dwordx2 v[16:17], off, {srd(S_DBG)}, 0 sc1', 'nst')
            e('s_mov_b64 exec, -1')
            e.paths = e.paths + snap
            e.label(lab)
        self.o_mark()
        fill = self.split(lambda: self.setup2(0)) + self.split(lambda: self.epi_params(types))
        LA = self.opt['laa']
        ring = [FR + 4 * i for i in range(NFR)] + [ACA + 8 + 4 * i for i in range(LA + 1 - NFR)]
        wx = Win(e, vXR)
        ww = Win(e, vWR)

        def reads(m):
            n, c = divmod(m, 3)
            s, ks = divmod(n, 4)
            slot = SLOT0 + SLOT * (s % 5)
            if m % 12 == 0:
                e('s_barrier')
                if s in (0, 4):
                    self.stamp(2 + s // 4)
                wx.ensure(slot, slot)
                ww.ensure(slot + 16384, slot + SLOT)
            if c == 0:
                e(f'ds_read_b128 {vr(X + 4 * n, 4)}, v{vXR[ks]} offset:{wx.off(slot)}', f'a{m}')
            for rd in range(2):
                t = slot + 16384 + ks * 3072 + rd * 768 + 64 * c
                e(f'ds_read_b64_tr_b16 {vr(ring[m % len(ring)] + 2 * rd, 2)}, v{vWR} offset:{ww.off(t)}', f'a{m}')

        for m in range(LA):
            reads(m)
        for m in range(96):
            n, c = divmod(m, 3)
            e.wait(lg=f'a{m}')
            acc = vr(ACF + 16 * c, 16)
            a, b = vr(ring[m % len(ring)], 4), vr(X + 4 * n, 4)
            if types[c]:
                a, b = b, a
            e(f'v_mfma_f32_32x32x16_bf16 {acc}, {a}, {b}, {acc if n else 0}')
            if m + LA < 96:
                reads(m + LA)
            for _ in range(2):
                if fill:
                    fill.pop(0)()
            if m == 70:
                e(f'buffer_load_dwordx2 v[{vK[0]}:{vK[0] + 1}], off, {srd(S_DBG)}, 0 sc1', 'non')
        assert not fill
        for c in range(3):
            acc = ACF + 16 * c
            if not any(types):
                for i in range(16):
                    e(f'v_mul_f32 v{acc + i}, s{sEP[6 + c]}, v{acc + i}')
            for i in range(8):
                e(f'v_cvt_pk_bf16_f32 v{ACA + 8 + 8 * c + i}, v{acc + 2 * i}, v{acc + 2 * i + 1}')

    def qkv_stores(self):
        e = self.e
        out = []
        for c in range(3):
            for h in range(2):
                out.append(lambda c=c, h=h: e(f'buffer_store_dwordx4 {vr(ACA + 8 + 8 * c + 4 * h, 4)}, v{ACA + 4 + c}, {srd(S_WS)}, s{sEP[2 * c + h]} offen sc1', 'qst'))
        return out

    def spin(self, name, reload, check):
        e = self.e
        lr, lc = e.newlabel(name + 'r'), e.newlabel(name + 'c')
        check()
        e(f's_cbranch_vccnz {lr}')
        e.label(lc)

        def blk():
            e.paths = [p for p in Emitter().paths]
            e.label(lr)
            e(f's_mov_b32 s{sSPIN}, {SPIN}')
            ll = e.newlabel(name + 'l')
            e.label(ll)
            e('s_sleep 2')
            reload()
            e('s_waitcnt vmcnt(0)')
            check()
            e(f's_cbranch_vccz {lc}')
            e(f's_sub_u32 s{sSPIN}, s{sSPIN}, 1')
            e(f's_cbranch_scc0 {ll}')
            e(f's_branch {lc}')
        self.tail_blocks.append(blk)

    def flag_store(self, soff, tmp):
        e = self.e
        e(f'v_mov_b32 v{tmp}, s{sNON}')
        e(f'v_mov_b32 v{tmp + 1}, s{sNON + 1}')
        e('s_mov_b64 exec, 1')
        e(f'buffer_store_dwordx2 v[{tmp}:{tmp + 1}], off, {srd(S_WS)}, s{soff} sc1', 'flag')
        e('s_mov_b64 exec, -1')

    def kv_load(self, it):
        e = self.e
        b = it % 2

        def k():
            e(f's_add_u32 s{sKV}, s{sKVB}, s{sKVI}')
            e(f'buffer_load_dwordx4 {vr(vK[b], 4)}, v{vL16}, {srd(S_WS)}, s{sKV} offen sc1', f'k{it}')

        def v():
            e(f's_mov_b64 exec, s[{sVM}:{sVM + 1}]')
            e(f'buffer_load_dwordx4 {vr(vV[b], 4)}, v{vVA}, {srd(S_WS)}, s{sKV} offen offset:1024 sc1', f'v{it}')
            e(f'buffer_load_dwordx4 {vr(vV[b] + 4, 4)}, v{vVA}, {srd(S_WS)}, s{sKV} offen offset:1536 sc1', f'v{it}')
            e('s_mov_b64 exec, -1')
            e(f's_add_u32 s{sKVI}, s{sKVI}, 2048')
            e(f's_and_b32 s{sKVI}, s{sKVI}, 32767')
        return k, v

    def gelu_ops(self, c):
        e = self.e
        acc = ACF + 16 * c
        T = ACA + 16
        ops = []
        A = lambda s: ops.append(lambda s=s: e(s))
        for h in range(2):
            rr = range(4 * h, 4 * h + 4)
            for i in rr:
                A(f'v_mul_f32 v{T + i}, v{acc + i}, v{acc + i}')
            for i in rr:
                A(f'v_fma_f32 v{T + i}, v{T + i}, s{sT + 8}, v{T + 8}')
            for i in rr:
                A(f'v_mul_f32 v{T + i}, v{T + i}, v{acc + i}')
            for i in rr:
                A(f'v_exp_f32 v{T + i}, v{T + i}')
            for i in rr:
                A(f'v_mul_f32 v{acc + i}, v{acc + i}, v{acc + 8 + i}')
            for i in rr:
                A(f'v_fma_f32 v{T + i}, v{T + i}, v{vCH}, v{vCH}')
            for i in rr:
                A(f'v_rcp_f32 v{T + i}, v{T + i}')
            for i in rr:
                A(f'v_mul_f32 v{acc + i}, v{acc + i}, v{T + i}')
        for i in range(4):
            A(f'v_cvt_pk_bf16_f32 v{acc + 8 + i}, v{acc + 2 * i}, v{acc + 2 * i + 1}')

        def st():
            e(f'buffer_store_dwordx4 {vr(acc + 8, 4)}, v{vL16}, {srd(S_WS)}, s{sHO} offen sc1', 'hst')
            e(f's_add_u32 s{sHO}, s{sHO}, 65536')
        ops.append(st)
        return ops

    def split(self, fn):
        real = self.e
        rec = []

        class Rec:
            def __call__(s, text, tag=None):
                rec.append(('i', text, tag))

            def wait(s, vm=None, lg=None):
                rec.append(('w', vm, lg))
        self.e = Rec()
        fn()
        self.e = real
        out, grp = [], []
        for r in rec:
            grp.append(r)
            masked = any(x[0] == 'i' and x[1].startswith('s_mov_b64 exec') for x in grp)
            if (masked and r[1] != 's_mov_b64 exec, -1') or r[0] == 'w':
                continue

            def f(grp=grp):
                for x in grp:
                    if x[0] == 'i':
                        real(x[1], x[2])
                    else:
                        real.wait(vm=x[1], lg=x[2])
            out.append(f)
            grp = []
        assert not grp
        return out

    def phase_f(self, g):
        e = self.e
        o = self.opt
        SPL = o['spl']
        order = [(n, c) for n in range(SPL) for c in range(3)]
        for c in range(3):
            order += [(n, c) for n in range(SPL, 32)]
        CH = 32 - SPL
        LA = 4
        wf = Win(e, vFR)
        entered = {8}
        fill = []
        at = {}
        cur = [0]
        AH = o['fah']

        def pin(m, f):
            at.setdefault(m, []).append(f)

        def sched(s, m0, span):
            if s > 15 or (g == 0 and s <= o['lonly']):
                return
            lst = self.dma_list(s)
            for i, f in enumerate(lst):
                pin(m0 + i * span // len(lst), f)

        def enter(s):
            entered.add(s)
            e.wait(vm=[f'st{s}'] + (['qst'] if s == o['qw'] else []), lg='zw' if s == 9 else None)
            e('s_barrier')
            sched(s + AH, cur[0] + 1, o['span'] if s + AH < 15 else o['span2'])
            if s == 9:
                fill.extend(self.split(self.gate_read))
                fill.append(self.nonce_get)
                fill.extend(self.split(self.attn_setup))
                fill.extend(self.split(self.gate_math))
            if s == o['qw'] and g == 0:
                fill.insert(0, self.flag1)

        def reads(m):
            n, c = order[m]
            s = 8 + n // 4
            if s not in entered:
                enter(s)
            slot = SLOT0 + SLOT * (s % 5)
            wf.ensure(slot, slot + 12288)
            for rd in range(2):
                t = slot + (n % 4) * 3072 + rd * 768 + 32 * c
                e(f'ds_read_b64_tr_b16 {vr(FR + 4 * (m % NFR) + 2 * rd, 2)}, v{vFR} offset:{wf.off(t)}', f'f{m}')

        if g == 0:
            e('s_barrier')
            self.stamp(4)
            for i, f in enumerate(self.qkv_stores()):
                pin(o['q0'] + o['qsp'] * i, f)
            assert o['q0'] + o['qsp'] * 5 < o['vi']
        for s in range(10, 9 + AH):
            sched(s, (s - 10) * 8 // (AH - 1), 8 // (AH - 1))
        for m in range(LA):
            reads(m)
        if o['prio']:
            pin(50, lambda: e('s_setprio 3'))
        g0, g1 = 3 * SPL + CH + 1, 3 * SPL + 2 * CH + 1
        for m in range(96):
            cur[0] = m
            n, c = order[m]
            e.wait(lg=f'f{m}')
            acc = vr(ACF + 16 * c, 16)
            e(f'v_mfma_f32_32x32x16_bf16 {acc}, {vr(FR + 4 * (m % NFR), 4)}, {vr(X + 4 * n, 4)}, {acc if n else 0}')
            if m + LA < 96:
                reads(m + LA)
            if m % 12 == 0 and 24 <= m <= 84:
                self.stamp(5 + m // 12, 1)
            if m == o['vi']:
                fill.extend(self.split(self.v_init))
            if m == 48:
                fill.extend(self.split(self.o_init))
            if m == o['tch'] and g == 0:
                fill.append(self.touch)
            if m == o['p1i']:
                fill.append(self.poll1_issue)
            if m == o['p1c']:
                fill.append(self.poll1_check)
                fill.extend(self.split(self.attn_loads))
            if m == g0:
                fill.extend(self.gelu_ops(0))
            if m == g1:
                fill.extend(self.gelu_ops(1))
            for f in at.pop(m, []):
                f()
            k = o['fk'] if m < min(o['p1c'], g0) else o['gk']
            for _ in range(k):
                if fill:
                    fill.pop(0)()
        assert not at
        for f in fill:
            f()

    def o_offset(self):
        e = self.e
        e(f's_lshl_b32 s{sMO}, s{sJ}, 1')
        e(f's_add_u32 s{sMO}, s{sMO}, s{sG}')
        e(f's_lshl_b32 s{sMO}, s{sMO}, 4')
        e(f's_add_u32 s{sMO}, s{sMO}, s{sTB}')
        e(f's_lshl_b32 s{sMO}, s{sMO}, 2')
        e(f's_add_u32 s{sMO}, s{sMO}, s{sTT}')
        e(f's_lshl_b32 s{sMO}, s{sMO}, 10')
        e(f's_add_u32 s{sMO}, s{sMO}, {WS_O}')

    def o_mark(self):
        e = self.e
        for i in range(4):
            e(f'v_mov_b32 v{ACA + 28 + i}, -1')
        e(f's_add_u32 s{sT}, s{sMO}, 65536')
        e(f'buffer_store_dwordx4 {vr(ACA + 28, 4)}, v{vL16}, {srd(S_WS)}, s{sMO} offen sc1', 'hst')
        e(f'buffer_store_dwordx4 {vr(ACA + 28, 4)}, v{vL16}, {srd(S_WS)}, s{sT} offen sc1', 'hst')

    def gate_read(self):
        e = self.e
        e(f's_lshl_b32 s{sT}, s{sTT}, 8')
        e(f'v_lshl_add_u32 v{vCO}, v0, 2, s{sT}')
        e(f'ds_read_b32 v{vCO}, v{vCO} offset:{L_Z}', 'zr')

    def gate_math(self):
        e = self.e
        e.wait(lg='zr')
        e(f'v_mul_f32 v{vCO}, {fbits(LOG2E)}, v{vCO}')
        e(f'v_exp_f32 v{vCH}, v{vCO}')
        e(f'v_exp_f32 v{vCO}, -v{vCO}')
        e(f'v_add_f32 v{vCH}, 1.0, v{vCH}')
        e(f'v_add_f32 v{vCO}, 1.0, v{vCO}')
        e(f'v_min_f32 v{vCH}, {fbits(2.0 ** 100)}, v{vCH}')
        e(f's_mov_b32 s{sT + 8}, {fbits(GC1)}')

    def nonce_get(self):
        e = self.e
        e.wait(vm='non')
        ld = lambda: e(f'buffer_load_dwordx2 v[{vK[0]}:{vK[0] + 1}], off, {srd(S_DBG)}, 0 sc1')
        ck = lambda: e(f'v_cmp_eq_u32 vcc, 0, v{vK[0] + 1}')
        self.spin('non', ld, ck)
        e(f'v_readfirstlane_b32 s{sNON}, v{vK[0]}')
        e(f'v_readfirstlane_b32 s{sNON + 1}, v{vK[0] + 1}')

    def flag1(self):
        e = self.e
        lab = e.newlabel('f1')
        e(f's_cmp_lg_u32 s{sW}, 0')
        e(f's_cbranch_scc1 {lab}')
        snap = e.snapshot()
        e(f's_lshl_b32 s{sT + 10}, s{sJ}, 4')
        e(f's_add_u32 s{sT + 10}, s{sT + 10}, s{sTB}')
        e(f's_lshl_b32 s{sT + 10}, s{sT + 10}, 5')
        e(f's_add_u32 s{sT + 10}, s{sT + 10}, {WS_F1}')
        self.flag_store(sT + 10, vK[0])
        e.paths = e.paths + snap
        e.label(lab)

    def touch(self):
        e = self.e
        lab = e.newlabel('tc')
        e(f's_cmp_lg_u32 s{sW}, 3')
        e(f's_cbranch_scc1 {lab}')
        snap = e.snapshot()
        e(f'v_lshlrev_b32 v{vK[0]}, 7, v0')
        e(f's_mul_i32 s{sT}, s2, {43 * 128}')
        e(f's_lshl_b32 s{sT + 1}, s2, 11')
        e(f's_mov_b64 exec, 0xffff')
        e(f'buffer_load_dword v{vK[0] + 1}, v{vK[0]}, {srd(S_WO)}, s{sT + 1} offen', 'touch')
        e(f's_mov_b32 exec_lo, -1')
        e(f's_mov_b32 exec_hi, 0x7ff')
        e(f'buffer_load_dword v{vK[0] + 2}, v{vK[0]}, {srd(S_WD)}, s{sT} offen', 'touch')
        e('s_mov_b64 exec, -1')
        e.paths = e.paths + snap
        e.label(lab)

    def attn_setup(self):
        e = self.e
        e(f's_mul_i32 s{sHO}, s{sG}, 3')
        e(f's_add_u32 s{sHO}, s{sHO}, s{sUS}')
        e(f's_lshl_b32 s{sHO}, s{sHO}, 4')
        e(f's_add_u32 s{sHO}, s{sHO}, s{sTB}')
        e(f's_lshl_b32 s{sHO}, s{sHO}, 2')
        e(f's_add_u32 s{sHO}, s{sHO}, s{sTT}')
        e(f's_lshl_b32 s{sHO}, s{sHO}, 10')
        e(f's_add_u32 s{sHO}, s{sHO}, {WS_H}')
        e(f's_lshl_b32 s{sKVB}, s{sJ}, 3')
        e(f's_add_u32 s{sKVB}, s{sKVB}, s{sW}')
        e(f's_lshl_b32 s{sKVB}, s{sKVB}, 15')
        e(f's_add_u32 s{sKVB}, s{sKVB}, {WS_KV}')
        e(f's_and_b32 s{sKVI}, s{sTB}, 7')
        e(f's_lshl_b32 s{sKVI}, s{sKVI}, 12')
        for i, add in enumerate((16, 32, 0)):
            e(f's_add_u32 s{sT + i}, s{sJ}, {add}')
            e(f's_mul_i32 s{sT + i}, s{sT + i}, 43691')
            e(f's_lshr_b32 s{sT + i}, s{sT + i}, 17')
            e(f's_lshl_b32 s{sT + i}, s{sT + i}, 4')
        e(f's_lshl_b32 s{sT + 3}, s{sTT}, 2')
        e(f's_add_u32 s{sT}, s{sT}, s{sT + 3}')
        e(f's_add_u32 s{sT + 1}, s{sT + 1}, s{sT + 3}')
        e(f's_add_u32 s{sT + 2}, s{sT + 2}, s{sTB}')
        e(f'v_mov_b32 v{vPA}, s{sT + 2}')
        e(f'v_and_b32 v{vP}, 3, v0')
        e('s_mov_b64 exec, 0xff')
        e(f'v_add_u32 v{vPA}, s{sT + 1}, v{vP}')
        e('s_mov_b64 exec, 0xf')
        e(f'v_add_u32 v{vPA}, s{sT}, v{vP}')
        e('s_mov_b64 exec, -1')
        e(f'v_lshlrev_b32 v{vPA}, 5, v{vPA}')
        e(f'v_add_u32 v{vPA}, {WS_F1}, v{vPA}')
        e(f'v_lshrrev_b32 v{vDD[0]}, 3, v0')
        e(f'v_and_b32 v{vDD[1]}, 7, v0')
        e(f'v_bfe_u32 v{vP}, v0, 4, 1')
        e(f'v_lshlrev_b32 v{vP + 1}, 2, v{vP}')
        e(f'v_xor_b32 v{vDD[1]}, v{vDD[1]}, v{vP + 1}')
        e(f'v_lshlrev_b32 v{vDD[1]}, 4, v{vDD[1]}')
        e(f'v_lshl_add_u32 v{vDD[0]}, v{vDD[0]}, 10, v{vDD[1]}')
        e(f'v_add_u32 v{vDD[1]}, 8192, v{vDD[0]}')
        e(f's_mul_i32 s{sMD}, s{sW}, {RINGW}')
        e(f'v_lshrrev_b32 v{vDR[0]}, 5, v0')
        e(f'v_bfe_u32 v{vDR[1]}, v0, 2, 2')
        e(f'v_lshl_add_u32 v{vDR[0]}, v{vDR[0]}, 2, v{vDR[1]}')
        e(f'v_lshlrev_b32 v{vDR[0]}, 7, v{vDR[0]}')
        e(f'v_lshl_add_u32 v{vDR[0]}, v{vP}, 5, v{vDR[0]}')
        e(f'v_bfe_u32 v{vP}, v0, 3, 1')
        e(f'v_lshl_add_u32 v{vDR[0]}, v{vP}, 6, v{vDR[0]}')
        e(f'v_and_b32 v{vP}, 3, v0')
        e(f'v_lshl_add_u32 v{vDR[0]}, v{vP}, 3, v{vDR[0]}')
        e(f'v_add_u32 v{vDR[0]}, s{sMD}, v{vDR[0]}')
        e(f'v_xor_b32 v{vDR[1]}, 64, v{vDR[0]}')
        e(f'v_add_u32 v{vRW[0]}, s{sMD}, v{vL16}')
        e(f'v_lshl_add_u32 v{vRW[1]}, v0, 2, s{sMD}')
        e(f's_mul_i32 s{sDO}, s{sW}, {11 * 16384}')
        e(f's_lshl_b32 s{sT}, s{sCB}, 7')
        e(f's_add_u32 s{sDO}, s{sDO}, s{sT}')

    def o_init(self):
        e = self.e
        for t in range(4):
            for i in range(self.opt['oz']):
                e(f'v_mov_b32 v{vO[t] + i}, 0')

    def v_init(self):
        e = self.e
        e(f'v_and_b32 v{vV[0] + 1}, 27, v0')
        e(f'v_cmp_eq_u32 vcc, 16, v{vV[0] + 1}')
        e(f'v_mov_b32 v{vV[0] + 1}, 0x3f803f80')
        e(f'v_cndmask_b32 v{vV[0]}, 0, v{vV[0] + 1}, vcc')
        for i in range(1, 16):
            e(f'v_mov_b32 v{vV[0] + i}, v{vV[0]}')
        e(f'v_mov_b32 v{ACA + 24}, {fbits(GC0)}')

    def poll1_issue(self):
        e = self.e
        e('s_mov_b64 exec, 0xfff')
        e(f'buffer_load_dwordx2 v[{vP}:{vP + 1}], v{vPA}, {srd(S_WS)}, 0 offen sc1', 'p1')
        e('s_mov_b64 exec, -1')

    def poll1_check(self):
        e = self.e
        e.wait(vm='p1')
        e('s_mov_b64 exec, 0xfff')
        ld = lambda: e(f'buffer_load_dwordx2 v[{vP}:{vP + 1}], v{vPA}, {srd(S_WS)}, 0 offen sc1')
        ck = lambda: e(f'v_cmp_ne_u64 vcc, s[{sNON}:{sNON + 1}], v[{vP}:{vP + 1}]')
        self.spin('p1', ld, ck)
        e('s_mov_b64 exec, -1')

    def attn_loads(self):
        e = self.e
        k, v = self.kv_load(0)
        k()
        e(f's_lshl_b32 s{sT}, s{sJ}, 1')
        e(f's_add_u32 s{sT}, s{sT}, s{sG}')
        e(f's_lshl_b32 s{sT}, s{sT}, 4')
        e(f's_add_u32 s{sT}, s{sT}, s{sTB}')
        e(f's_lshl_b32 s{sT}, s{sT}, 12')
        for i in range(4):
            e(f's_add_u32 s{sT + 1}, s{sTT}, {1 + i}')
            e(f's_and_b32 s{sT + 1}, s{sT + 1}, 3')
            e(f's_lshl_b32 s{sT + 1}, s{sT + 1}, 10')
            e(f's_add_u32 s{sT + 1}, s{sT + 1}, s{sT}')
            e(f'buffer_load_dwordx4 {vr(vQ[i], 4)}, v{vL16}, {srd(S_WS)}, s{sT + 1} offen sc1', f'q{i}')
        v()
        e(f's_lshr_b32 s{sT + 1}, s{sRB}, 1')
        e(f's_lshl_b32 s{sT + 1}, s{sT + 1}, 9')
        e(f's_add_u32 s{sT + 1}, s{sT + 1}, {WS_F2}')
        e(f'v_lshl_add_u32 v{vPA}, v0, 5, s{sT + 1}')

    def attention(self):
        e = self.e
        G0 = self.opt['g2start']
        NT = 64

        def qk(t):
            it, sl = divmod(t, 4)
            if sl == 0:
                e.wait(vm=f'k{it}')
            if it == 0:
                e.wait(vm=f'q{sl}')
            e(f'v_mfma_f32_32x32x16_bf16 {vr(vS[t % 2], 16)}, {vr(vK[it % 2], 4)}, {vr(vQ[sl], 4)}, 0')

        def pv(t, hi):
            it, sl = divmod(t, 4)
            if sl == 0 and not hi:
                e.wait(vm=f'v{it}')
            e(f'v_smfmac_f32_32x32x32_bf16 {vr(vO[sl], 16)}, {vr(vV[it % 2] + 4 * hi, 4)}, {vr(vS[t % 2] + 8 * hi, 8)}, v{vIDX}')

        def ex(t, a, b):
            for i in range(a, b):
                e(f'v_exp_f32 v{vS[t % 2] + i}, v{vS[t % 2] + i}')

        def wd_dma(step):
            def f():
                for i in range(2):
                    e(f's_add_u32 m0, s{sMD}, {L_RING + 2048 * (step % 3) + 1024 * i}')
                    e(f'buffer_load_dwordx4 v{vDD[i]}, {srd(S_WD)}, s{sDO} offen lds', f'd{step}')
                e(f's_add_u32 s{sDO}, s{sDO}, 16384')
            return f

        def wo_dma(k):
            def f():
                if k == 0:
                    e(f's_lshl_b32 s{sDO}, s{sW}, 16')
                    e(f's_lshl_b32 s{sT}, s{sCB}, 7')
                    e(f's_add_u32 s{sDO}, s{sDO}, s{sT}')
                    e(f's_lshl_b32 s{sMD}, s{sW}, 13')
                for i in range(2):
                    e(f's_add_u32 m0, s{sMD}, {L_WO + 2048 * k + 1024 * i}')
                    e(f'buffer_load_dwordx4 v{vDD[i]}, {srd(S_WO)}, s{sDO} offen lds', 'wo')
                e(f's_add_u32 s{sDO}, s{sDO}, 16384')
            return f

        def h_load(step):
            def f():
                for i in range(2):
                    e(f'buffer_load_dwordx4 {vr(vH[step % 2] + 4 * i, 4)}, v{vL16}, {srd(S_H)}, s{sHO} offen offset:{1024 * i} sc1', f'h{step}')
                e(f's_add_u32 s{sHO}, s{sHO}, 65536')
            return f

        def wd_read(step, jj):
            def f():
                e.wait(vm=f'd{step}')
                for rd in range(2):
                    e(f'ds_read_b64_tr_b16 {vr(vD + 4 * jj + 2 * rd, 2)}, v{vDR[jj]} offset:{L_RING + 2048 * (step % 3) + 1024 * rd}', f'dr{step}_{jj}')
            return f

        def g2(step, sl):
            jj, i = divmod(sl, 2)
            e.wait(vm=f'h{step}', lg=f'dr{step}_{jj}')
            acc = vr(vG[i * 2 + jj], 16)
            e(f'v_mfma_f32_32x32x16_bf16 {acc}, {vr(vD + 4 * jj, 4)}, {vr(vH[step % 2] + 4 * i, 4)}, {acc if step else 0}')

        def sig2_a():
            e.wait(vm='hst')
            e(f'v_mov_b32 v{vP}, {L_CNT}')
            e(f'v_mov_b32 v{vP + 1}, 1')
            e('s_mov_b64 exec, 1')
            e(f'ds_add_rtn_u32 v{vP}, v{vP}, v{vP + 1}', 'cnt2')
            e('s_mov_b64 exec, -1')

        def sig2_b():
            e.wait(lg='cnt2')
            e(f'v_readfirstlane_b32 s{sT}, v{vP}')
            lab = e.newlabel('f2')
            e(f's_cmp_lg_u32 s{sT}, 7')
            e(f's_cbranch_scc1 {lab}')
            snap = e.snapshot()
            e(f's_lshl_b32 s{sT}, s{sTB}, 4')
            e(f's_add_u32 s{sT}, s{sT}, s{sJ}')
            e(f's_lshl_b32 s{sT}, s{sT}, 5')
            e(f's_add_u32 s{sT}, s{sT}, {WS_F2}')
            self.flag_store(sT, vP)
            e.paths = e.paths + snap
            e.label(lab)
            e(f's_mul_i32 s{sHO}, s{sW}, {11 * 65536}')
            e(f's_lshl_b32 s{sT}, s{sRB}, 11')
            e(f's_add_u32 s{sHO}, s{sHO}, s{sT}')

        def poll2_issue():
            e('s_mov_b64 exec, 0xffff')
            e(f'buffer_load_dwordx2 v[{vP}:{vP + 1}], v{vPA}, {srd(S_WS)}, 0 offen sc1', 'p2')
            e('s_mov_b64 exec, -1')

        def poll2_check():
            e.wait(vm='p2')
            e('s_mov_b64 exec, 0xffff')
            ld = lambda: e(f'buffer_load_dwordx2 v[{vP}:{vP + 1}], v{vPA}, {srd(S_WS)}, 0 offen sc1')
            ck = lambda: e(f'v_cmp_ne_u64 vcc, s[{sNON}:{sNON + 1}], v[{vP}:{vP + 1}]')
            self.spin('p2', ld, ck)
            e('s_mov_b64 exec, -1')

        def cnt_issue():
            e(f'v_mov_b32 v{vPA}, {L_CNT}')
            e(f'ds_read_b32 v{vP}, v{vPA}', 'cnt3')

        def cnt_check():
            e.wait(lg='cnt3')

            def ld():
                e(f'ds_read_b32 v{vP}, v{vPA}')
                e('s_waitcnt lgkmcnt(0)')
            self.spin('c3', ld, lambda: e(f'v_cmp_ne_u32 vcc, 8, v{vP}'))

        def ored_write(sl):
            def f():
                o = L_RING + 2304 * sl
                e(f'ds_write_b128 v{vRW[0]}, {vr(vO[sl], 4)} offset:{o}', 'orw')
                e(f'ds_write_b128 v{vRW[0]}, {vr(vO[sl] + 4, 4)} offset:{o + 1024}', 'orw')
                e(f'ds_write_b32 v{vRW[1]}, v{vO[sl] + 8} offset:{o + 2048}', 'orw')
            return f

        side = {}
        add = lambda t, p, f: side.setdefault((t, p), []).append(f)
        for it in range(15):
            k, v = self.kv_load(it + 1)
            add(4 * it, 0, k)
            add(4 * it, 0, v)
        for step in range(11):
            it = G0 + step
            add(4 * (it - 2) + 1, 0, wd_dma(step))
            add(4 * (it - 1) + 1, 0, h_load(step))
            add(4 * it - 1, 0, wd_read(step, 0))
            add(4 * it + 1, 0, wd_read(step, 1))
        for k in range(4):
            add(4 * (G0 + 9) + 1 + k, 2, wo_dma(k))
        add(4 * (G0 + 9) - 1, 2, cnt_issue)
        add(4 * (G0 + 9), 2, cnt_check)
        add(5, 2, sig2_a)
        add(6, 2, sig2_b)
        add(4 * (G0 - 2) + 2, 2, poll2_issue)
        add(4 * (G0 - 1), 2, poll2_check)
        for sl in range(3):
            add(61 + sl, 3, ored_write(sl))
        if self.opt['prio']:
            add(self.opt['pa'], 2, lambda: e('s_setprio 2'))
            add(self.opt['pb'], 2, lambda: e('s_setprio 1'))
            add(self.opt['pc'], 2, lambda: e('s_setprio 0'))

        def run(t, p):
            for f in side.get((t, p), []):
                f()

        qk(0)
        for t in range(NT):
            it, sl = divmod(t, 4)
            ex(t, 0, 2)
            if t > 0:
                pv(t - 1, 1)
            run(t, 0)
            ex(t, 2, 5)
            if t + 1 < NT:
                qk(t + 1)
            run(t, 1)
            ex(t, 5, 10)
            pv(t, 0)
            run(t, 2)
            ex(t, 10, 13)
            if G0 <= it < G0 + 11:
                g2(it - G0, sl)
            ex(t, 13, 16)
            run(t, 3)
            if t in (7, 31):
                self.stamp(7 if t == 7 else 8)
        pv(NT - 1, 1)

    def tail(self):
        e = self.e
        own = vO[3]
        R = vO[0]
        self.stamp(9)
        for i in range(3):
            e(f's_sub_u32 s{sT}, s{sTT}, {1 + i}')
            e(f's_and_b32 s{sT}, s{sT}, 3')
            e(f's_lshl_b32 s{sT + 1}, s{sG}, 2')
            e(f's_add_u32 s{sT}, s{sT}, s{sT + 1}')
            e(f's_mul_i32 s{sT}, s{sT}, {RINGW}')
            e(f'v_add_u32 v{FR + i}, s{sT}, v{vL16}')
            e(f'v_lshl_add_u32 v{FR + 3 + i}, v0, 2, s{sT}')
        e.wait(lg='all')
        e('s_barrier')
        for i in range(3):
            o = L_RING + 2304 * i
            e(f'ds_read_b32 v{R + 24 + i}, v{FR + 3 + i} offset:{o + 2048}', f'or{i}')
        for i in range(3):
            o = L_RING + 2304 * i
            e(f'ds_read_b128 {vr(R + 8 * i, 4)}, v{FR + i} offset:{o}', f'oa{i}')
            e(f'ds_read_b128 {vr(R + 8 * i + 4, 4)}, v{FR + i} offset:{o + 1024}', f'oa{i}')
        e.wait(lg='or2')
        e(f'v_add_f32 v{R + 24}, v{R + 24}, v{R + 25}')
        e(f'v_add_f32 v{own + 8}, v{own + 8}, v{R + 26}')
        e(f'v_add_f32 v{own + 8}, v{own + 8}, v{R + 24}')
        for i in range(3):
            e.wait(lg=f'oa{i}')
            for r in range(8):
                e(f'v_add_f32 v{own + r}, v{own + r}, v{R + 8 * i + r}')
        e(f'v_subrev_u32 v{R}, {(127 - 60) << 23}, v{own + 8}')
        e(f'v_cmp_lt_u32 vcc, {120 << 23}, v{R}')
        e('s_cbranch_vccnz Lsafe')
        e.label('Lsafe_done')
        self.tail_blocks.append(self.safe_softmax)
        e(f'v_mul_f32 v{R}, v{own + 8}, v{vCO}')
        e(f'v_rcp_f32 v{R}, v{R}')
        for r in range(8):
            e(f'v_mul_f32 v{own + r}, v{own + r}, v{R}')
        for r in range(4):
            e(f'v_cvt_pk_bf16_f32 v{own + r}, v{own + 2 * r}, v{own + 2 * r + 1}')
        for r in range(4):
            e(f'v_min_u32 v{own + r}, -2, v{own + r}')
        e(f'buffer_store_dwordx4 {vr(own, 4)}, v{vL16}, {srd(S_WS)}, s{sMO} offen sc1', 'ost')
        self.stamp(10)
        WO = vO[0]
        e(f's_lshl_b32 s{sT}, s{sW}, 10')
        e(f's_add_u32 s{sT}, s{sT}, {L_WO}')
        for jj in range(2):
            e(f'v_add_u32 v{vDR[jj]}, s{sT}, v{vDR[jj]}')
        e.wait(vm='wo')
        for k in range(4):
            for jj in range(2):
                for rd in range(2):
                    e(f'ds_read_b64_tr_b16 {vr(WO + 8 * k + 4 * jj + 2 * rd, 2)}, v{vDR[jj]} offset:{2048 * k + 1024 * rd}', 'wor')
        e(f's_lshl_b32 s{sT}, s{sW}, 18')
        e(f's_lshl_b32 s{sT + 1}, s{sRB}, 11')
        e(f's_add_u32 s{sT}, s{sT}, s{sT + 1}')
        e(f's_add_u32 s{sT}, s{sT}, {WS_O}')
        for k in range(1, 4):
            e(f's_add_u32 s{sT + k}, s{sT}, {65536 * k}')
        e(f'v_lshrrev_b32 v{vPA}, 1, v0')
        e(f'v_lshlrev_b32 v{vPA}, 16, v{vPA}')
        e(f'v_and_b32 v{vP}, 1, v0')
        e(f'v_lshl_add_u32 v{vPA}, v{vP}, 10, v{vPA}')
        vFW, vFRd = 7, 8
        e(f'v_and_b32 v{vFW}, 31, v0')
        e(f'v_lshrrev_b32 v{vP}, 5, v0')
        e(f'v_and_b32 v{vP + 1}, 7, v0')
        e(f'v_xor_b32 v{vP}, v{vP}, v{vP + 1}')
        e(f'v_lshlrev_b32 v{vP}, 4, v{vP}')
        e(f'v_lshl_add_u32 v{vFW}, v{vFW}, 8, v{vP}')
        e(f's_lshl_b32 s{sT + 4}, s{sW}, 14')
        e(f'v_add_u32 v{vFW}, s{sT + 4}, v{vFW}')
        e(f'v_lshrrev_b32 v{vP}, 3, v0')
        e(f'v_lshlrev_b32 v{vP + 1}, 1, v{vP + 1}')
        e(f'v_xor_b32 v{vP + 1}, v{vP + 1}, v{vP}')
        e(f'v_lshlrev_b32 v{vP + 1}, 4, v{vP + 1}')
        e(f'v_lshl_add_u32 v{vFRd}, v{vP}, 8, v{vP + 1}')
        e(f's_lshl_b32 s{sT + 4}, s{sW}, 11')
        e(f'v_add_u32 v{vFRd}, s{sT + 4}, v{vFRd}')
        e(f'v_xor_b32 v{vFRd + 1}, 16, v{vFRd}')
        e.wait(lg='all')
        e('s_barrier')
        e.wait(vm='all')
        e('s_mov_b64 exec, 0xff')
        ld = lambda: e(f'buffer_load_dword v{vP}, v{vPA}, {srd(S_WS)}, s{sT} offen offset:1020 sc1')
        ck = lambda: e(f'v_cmp_eq_u32 vcc, -1, v{vP}')
        ld()
        e.wait(vm='all')
        self.spin('p3', ld, ck)
        e('s_mov_b64 exec, -1')
        self.stamp(11)
        OF = ACA

        def old(k, tag=None):
            for i in range(2):
                e(f'buffer_load_dwordx4 {vr(OF + 8 * k + 4 * i, 4)}, v{vL16}, {srd(S_WS)}, s{sT + k} offen offset:{1024 * i} sc1', tag)

        for k in range(4):
            old(k, f'o{k}')
        e.wait(lg='all')
        for k in range(4):
            e.wait(vm=f'o{k}')

            def ck(k=k):
                b = OF + 8 * k
                e(f'v_max3_u32 v{vP}, v{b}, v{b + 1}, v{b + 2}')
                e(f'v_max3_u32 v{vP + 1}, v{b + 3}, v{b + 4}, v{b + 5}')
                e(f'v_max3_u32 v{vP}, v{vP}, v{b + 6}, v{b + 7}')
                e(f'v_max_u32 v{vP}, v{vP}, v{vP + 1}')
                e(f'v_cmp_eq_u32 vcc, -1, v{vP}')
            self.spin(f'o{k}', lambda k=k: old(k), ck)
            for i in range(2):
                for jj in range(2):
                    acc = vr(vG[i * 2 + jj], 16)
                    e(f'v_mfma_f32_32x32x16_bf16 {acc}, {vr(WO + 8 * k + 4 * jj, 4)}, {vr(OF + 8 * k + 4 * i, 4)}, {acc}')
        self.stamp(12)
        for q in range(1, 4):
            e(f'v_xor_b32 v{FR + q}, {32 * q}, v{vFW}')
        for i in range(2):
            for jj in range(2):
                for q in range(4):
                    a = vFW if q == 0 else FR + q
                    e(f'ds_write_b128 v{a}, {vr(vG[i * 2 + jj] + 4 * q, 4)} offset:{8192 * i + 128 * jj}', 'fw')
        e(f'v_lshrrev_b32 v{vP}, 3, v0')
        e(f'v_and_b32 v{vP + 1}, 7, v0')
        e(f'v_lshlrev_b32 v{vP + 1}, 4, v{vP + 1}')
        e(f'v_lshl_add_u32 v{vPA}, v{vP}, 10, v{vP + 1}')
        e(f's_lshl_b32 s{sT}, s{sRB}, 3')
        e(f's_add_u32 s{sT}, s{sT}, s{sW}')
        e(f's_lshl_b32 s{sT}, s{sT}, 13')
        e(f's_lshl_b32 s{sT + 1}, s{sCB}, 7')
        e(f's_add_u32 s{sT}, s{sT}, s{sT + 1}')
        e.wait(lg='all')
        e('s_barrier')
        wr = Win(e, [vFRd, vFRd + 1])
        B = X
        for p in range(8):
            wr.ensure(p * 16384, p * 16384)
            for h in range(2):
                e(f'ds_read_b128 {vr(B + 8 * p + 4 * h, 4)}, v{vFRd + h} offset:{wr.off(p * 16384)}', f'fr{p}')
        for p in range(1, 8):
            e.wait(lg=f'fr{p}')
            for r in range(8):
                e(f'v_add_f32 v{B + r}, v{B + r}, v{B + 8 * p + r}')
        for r in range(4):
            e(f'v_cvt_pk_bf16_f32 v{B + r}, v{B + 2 * r}, v{B + 2 * r + 1}')
        e(f'buffer_store_dwordx4 {vr(B, 4)}, v{vPA}, {srd(S_OUT)}, s{sT} offen' + ('', ' sc1', ' nt', ' sc0 sc1', ' sc1 nt')[self.opt.get('ost', 0)])
        if 'probe' in self.opt:
            e.wait(vm='all')
            self.stamp(13)
            e.label('Lprobe')
            e('s_sleep 1')
            e(f's_memrealtime s[{sSTMP}:{sSTMP + 1}]')
            e('s_waitcnt lgkmcnt(0)')
            e(f's_sub_u32 s{sSTMP}, s{sSTMP}, s{sNON if self.opt["probe"] == 99 else sSTAMP}')
            e(f's_cmp_lt_u32 s{sSTMP}, 6000')
            e('s_cbranch_scc1 Lprobe')
        if self.stamps:
            e.wait(vm='all')
            self.stamp(13)
            e(f's_lshl_b32 s{sT}, s2, 3')
            e(f's_add_u32 s{sT}, s{sT}, s{sW}')
            e(f's_lshl_b32 s{sT}, s{sT}, 6')
            e(f's_add_u32 s{sT}, s{sT}, {WS_ST}')
            for i in range(14):
                e(f'v_mov_b32 v{B + 8 + i}, s{sSTAMP + i}')
            e(f'v_mov_b32 v{B + 22}, s3')
            e(f'v_mov_b32 v{B + 23}, s{sSTMP}')
            e('s_mov_b64 exec, 1')
            for i in range(4):
                e(f'buffer_store_dwordx4 {vr(B + 8 + 4 * i, 4)}, off, {srd(S_WS)}, s{sT} offset:{16 * i}')
        e.label('Lexit')
        e('s_endpgm')

    def safe_softmax(self):
        e = self.e
        e.paths = [p for p in Emitter().paths]
        own = vO[3]
        M = vO[0]
        S = vS[0]
        e.label('Lsafe')
        e(f's_and_b32 s{sT + 2}, s{sKVB}, {0xffffffff ^ (3 << 15)}')
        e(f's_mov_b32 s{sT + 3}, s{sT + 2}')
        e(f's_mov_b32 s{sT + 4}, 64')
        e(f'v_mov_b32 v{M}, 0xff800000')
        e.label('Lsafe1')
        e(f'buffer_load_dwordx4 {vr(vK[0], 4)}, v{vL16}, {srd(S_WS)}, s{sT + 3} offen sc1')
        e(f's_add_u32 s{sT + 3}, s{sT + 3}, 2048')
        e('s_waitcnt vmcnt(0)')
        e(f'v_mfma_f32_32x32x16_bf16 {vr(S, 16)}, {vr(vK[0], 4)}, {vr(vQ[3], 4)}, 0')
        for i in range(0, 16, 2):
            e(f'v_max3_f32 v{M}, v{M}, v{S + i}, v{S + i + 1}')
        e(f's_sub_u32 s{sT + 4}, s{sT + 4}, 1')
        e(f's_cmp_lg_u32 s{sT + 4}, 0')
        e('s_cbranch_scc1 Lsafe1')
        e(f'v_mov_b32 v{M + 1}, v{M}')
        e(f'v_permlane32_swap_b32 v{M}, v{M + 1}')
        e(f'v_max_f32 v{M}, v{M}, v{M + 1}')
        e(f'v_sub_f32 v{M}, 0, v{M}')
        for i in range(1, 16):
            e(f'v_mov_b32 v{M + i}, v{M}')
        for i in range(16):
            e(f'v_mov_b32 v{own + i}, 0')
        e(f's_mov_b32 s{sT + 3}, s{sT + 2}')
        e(f's_mov_b32 s{sT + 4}, 64')
        e.label('Lsafe2')
        e(f'buffer_load_dwordx4 {vr(vK[0], 4)}, v{vL16}, {srd(S_WS)}, s{sT + 3} offen sc1')
        e(f's_mov_b64 exec, s[{sVM}:{sVM + 1}]')
        e(f'buffer_load_dwordx4 {vr(vV[0], 4)}, v{vVA}, {srd(S_WS)}, s{sT + 3} offen offset:1024 sc1')
        e(f'buffer_load_dwordx4 {vr(vV[0] + 4, 4)}, v{vVA}, {srd(S_WS)}, s{sT + 3} offen offset:1536 sc1')
        e('s_mov_b64 exec, -1')
        e(f's_add_u32 s{sT + 3}, s{sT + 3}, 2048')
        e('s_waitcnt vmcnt(0)')
        e(f'v_mfma_f32_32x32x16_bf16 {vr(S, 16)}, {vr(vK[0], 4)}, {vr(vQ[3], 4)}, {vr(M, 16)}')
        for i in range(16):
            e(f'v_exp_f32 v{S + i}, v{S + i}')
        for hi in range(2):
            e(f'v_smfmac_f32_32x32x32_bf16 {vr(own, 16)}, {vr(vV[0] + 4 * hi, 4)}, {vr(S + 8 * hi, 8)}, v{vIDX}')
        e(f's_sub_u32 s{sT + 4}, s{sT + 4}, 1')
        e(f's_cmp_lg_u32 s{sT + 4}, 0')
        e('s_cbranch_scc1 Lsafe2')
        e('s_nop 15')
        e('s_branch Lsafe_done')

    def build(self):
        e = self.e
        self.prologue()
        snap = e.snapshot()
        e.label('Lload')
        self.phase_a_loader()
        self.phase_f(1)
        e('s_branch Lffn')
        ends = e.snapshot()
        cends = []
        for lab, types in (('Lnnv', (0, 0, 1)), ('Lvvv', (1, 1, 1)), ('Lnnn', (0, 0, 0))):
            e.restore(snap)
            e.label(lab)
            self.phase_a_compute(types)
            if lab != 'Lnnn':
                e('s_branch Lffn0')
            cends += e.snapshot()
        e.paths = cends
        e.label('Lffn0')
        self.phase_f(0)
        e.paths += ends
        e.label('Lffn')
        self.stamp(5)
        for f in self.gelu_ops(2):
            f()
        self.stamp(6)
        self.attention()
        self.tail()
        i = 0
        while i < len(self.tail_blocks):
            self.tail_blocks[i]()
            i += 1
        e.label('Lcode_end')
        return self.wrap()

    def wrap(self):
        head = open('gated_mix__softmax_full_mha__glu_gated_geglu__prompt.s.ref').read().split('; Override')[0]
        return head + f"""; @launch grid=(256,1,1) block=(512,1,1) lds={LDS_BYTES}
.amdgcn_target "amdgcn-amd-amdhsa--gfx950"
.text
.globl {KNAME}
.p2align 8
.type {KNAME},@function
{KNAME}:
{self.e.text()}
.section .rodata,"a"
.p2align 6
.amdhsa_kernel {KNAME}
  .amdhsa_next_free_vgpr 256
  .amdhsa_next_free_sgpr 102
  .amdhsa_accum_offset 256
  .amdhsa_group_segment_fixed_size 0
  .amdhsa_kernarg_size 88
  .amdhsa_user_sgpr_count 2
  .amdhsa_user_sgpr_kernarg_segment_ptr 1
  .amdhsa_system_sgpr_workgroup_id_x 1
.end_amdhsa_kernel
"""


if __name__ == '__main__':
    out = sys.argv[1]
    stamps = sys.argv[2] if len(sys.argv) > 2 and sys.argv[2] in ('rt', 'cy') else False
    opt = {}
    for a in sys.argv[2:]:
        if '=' in a:
            k, v = a.split('=')
            opt[k] = int(v, 0)
    g = Gen(stamps=stamps, opt=opt)
    open(out, 'w').write(g.build())
    print('nops inserted:', g.e.nops, 'lines:', len(g.e.lines))
```

```python
import sys, math, struct
from asmlib import Emitter, Win

KNAME = 'gated_mix__softmax_full_mha__glu_gated_geglu__prompt_kernel'

WS_Q = 0
WS_KV = 2 << 20
WS_O = 6 << 20
WS_F1 = 8 << 20
WS_F2 = WS_F1 + 8192
WS_ST = WS_F1 + 65536
WS_H = 9 << 20
WS_END = 15 << 20

L_GW = 0
L_ZERO = 1024
L_Z = 2048
SLOT0 = 4096
SLOT = 28672
UPOFF = 12288 + 32
WREG = 20480
L_RING = 8192
L_CNT = 7 * WREG + 18432
LDS_BYTES = 163840

S_X, S_WQ, S_WF, S_WS, S_H, S_WD, S_WO, S_OUT, S_DBG, S_GW = [4 * i + 4 for i in range(10)]
S_WG = 80
sW, sTT, sG, sJ, sTB, sRB, sCB, sUS = range(44, 52)
sXO, sWO, sFO, sMX, sMW, sMF = range(52, 58)
sNON = 58
sKV, sKVB, sKVI, sHO, sDO, sMD = range(60, 66)
sVM = 66
sT = 68
sXO2 = 79
sCH, sXB, sWB, sFB, sR = 60, 61, 62, 64, 65
sSPIN = 84
sSTMP = 86
sSTAMP = 88


def srd(b):
    return f's[{b}:{b + 3}]'


def vr(b, n):
    return f'v[{b}:{b + n - 1}]' if n > 1 else f'v{b}'


def fbits(x):
    return '0x%08x' % struct.unpack('<I', struct.pack('<f', x))[0]


vL16 = 1
vXD = [2, 3]
vWD = [4, 5, 6]
vFD = [7, 8, 9]
vXR = [10, 11, 12, 13]
vWR = 14
vFR = 15
FR = 16
NFR = 5
ACA = 36
ACF = 68
vK = [116, 120]
vCH, vCO, vIDX, vVA = 124, 125, 126, 127
X = 128
vO = [X + 16 * i for i in range(4)]
vQ = [X + 64 + 4 * i for i in range(4)]
vV = [X + 80, X + 88]
vS = [ACA, ACA + 16]
vG = [ACF, ACF + 16, ACF + 32, X + 96]
vH = [X + 112, X + 120]
vD = FR
vDD = [2, 3]
vDR = [4, 5]
vP = 6
vPA = 8
vRW = 9

LOG2E = 1.4426950408889634
QSCALE = 0.25 * LOG2E
GC0 = -2.0 * LOG2E * math.sqrt(2.0 / math.pi)
GC1 = GC0 * 0.044715
SPIN = 400000


class Gen:
    def __init__(self, stamps=False, opt=None):
        self.e = Emitter()
        self.stamps = stamps
        self.nst = 0
        self.opt = dict(g2start=4, prio=True, ahead=14, dsp=4, laa=6, rot=1, lfirst=3, llast=0)
        if opt:
            self.opt.update(opt)
        self.tail_blocks = []

    def stamp(self, idx, sset=0):
        e = self.e
        if 7 <= idx <= 12 and sset != self.opt.get('sset', 0):
            return
        if self.opt.get('probe') == idx:
            e(f's_memrealtime s[{sSTAMP}:{sSTAMP + 1}]')
            e('s_waitcnt lgkmcnt(0)')
            for p in e.paths:
                p.lg = []
        if not self.stamps:
            return
        e(f"{'s_memtime' if self.stamps == 'cy' else 's_memrealtime'} s[{sSTMP}:{sSTMP + 1}]")
        e('s_waitcnt lgkmcnt(0)')
        for p in e.paths:
            p.lg = []
        e(f's_mov_b32 s{sSTAMP + idx}, s{sSTMP}')
        if idx in (0, 13):
            e(f's_memtime s[{sSTMP}:{sSTMP + 1}]')
            e('s_waitcnt lgkmcnt(0)')
            if idx == 0:
                e(f's_mov_b32 s85, s{sSTMP}')

    def dma_list(self, s):
        e = self.e
        slot = SLOT0 + SLOT * (s % 5)
        out = []
        tag = f'st{s}'

        def mk(m0s, m0c, va, rs, so, pre=()):
            def f():
                e(f's_add_u32 m0, s{m0s}, {m0c}')
                for p in pre:
                    e(p)
                e(f'buffer_load_dwordx4 v{va}, {srd(rs)}, s{so} offen lds', tag)
            out.append(f)
        nxt = [f's_add_u32 s{sCH}, s{sR}, {s}', f's_and_b32 s{sCH}, s{sCH}, 7']
        if s < 8:
            for i in range(3):
                mk(sMW, slot + 16384 + i * 1024, vWD[i], S_WQ, sWO,
                   nxt + [f's_mul_i32 s{sWO}, s{sCH}, {64 * 3072}', f's_add_u32 s{sWO}, s{sWO}, s{sWB}'] if i == 0 else
                   ([f's_lshl_b32 s{sXO}, s{sCH}, 7'] if i == 1 else [f's_add_u32 s{sXO}, s{sXO}, s{sXB}']))
            for i in range(4):
                mk(sMX, slot + i * 1024, vXD[i % 2], S_X, sXO if i < 2 else sXO2,
                   [f's_add_u32 s{sXO2}, s{sXO}, 16384'] if i == 0 else ())
        else:
            for i in range(3):
                mk(sMF, slot + i * 1024, vFD[i], S_WF, sFO,
                   nxt + [f's_mul_i32 s{sFO}, s{sCH}, {64 * 2752}', f's_add_u32 s{sFO}, s{sFO}, s{sFB}'] if i == 0 else ())
            if s < 11:
                for i in range(3):
                    mk(sMW, slot + i * 1024, vFD[i], S_WG, sFO)
        return out

    def prologue(self):
        e = self.e
        self.stamp(0)
        e('s_cmp_ge_u32 s2, 256')
        e('s_cbranch_scc1 Lexit')
        for b, off in ((S_X, 0), (S_WQ, 8), (S_GW, 56), (S_WG, 32), (S_WF, 40), (S_DBG, 72), (S_WS, 80), (S_H, 80), (S_WD, 48), (S_WO, 16), (S_OUT, 64)):
            e(f's_load_dwordx2 s[{b}:{b + 1}], s[0:1], {off}')
        e('v_lshrrev_b32 v2, 6, v0')
        e('v_and_b32 v0, 63, v0')
        e(f'v_readfirstlane_b32 s{sW}, v2')
        e(f'v_lshlrev_b32 v{vL16}, 4, v0')
        e(f's_lshr_b32 s{sT + 5}, s2, 3')
        e(f's_and_b32 s{sJ}, s2, 3')
        e(f's_lshl_b32 s{sJ}, s{sJ}, 2')
        e(f's_and_b32 s{sT + 6}, s{sT + 5}, 3')
        e(f's_add_u32 s{sJ}, s{sJ}, s{sT + 6}')
        e(f's_and_b32 s{sTB}, s2, 4')
        e(f's_lshl_b32 s{sTB}, s{sTB}, 1')
        e(f's_lshr_b32 s{sT + 6}, s2, 5')
        e(f's_add_u32 s{sTB}, s{sTB}, s{sT + 6}')
        R = self.opt['rot']
        e(f's_mul_i32 s{sR}, s{sJ}, {2 if R == 8 else 1}')
        e(f's_add_u32 s{sR}, s{sR}, s{sTB}')
        e(f's_and_b32 s{sR}, s{sR}, {R - 1}')
        e(f's_mul_i32 s{sR}, s{sR}, {8 // R}')
        e(f's_xor_b32 s{sW}, s{sW}, 4')
        e(f's_and_b32 s{sTT}, s{sW}, 3')
        e(f's_mul_i32 s{sMW}, s{sTT}, 3072')
        e(f's_lshr_b32 s{sG}, s{sW}, 2')

    def piece_rows(self, dst, stride):
        e = self.e
        for i in range(3):
            e(f'v_add_u32 v16, {64 * i}, v0')
            e('v_mul_u32_u24 v17, 43691, v16')
            e('v_lshrrev_b32 v17, 19, v17')
            e(f'v_mul_u32_u24 v17, {stride - 192}, v17')
            e(f'v_lshl_add_u32 v{dst[i]}, v16, 4, v17')

    def srd_consts(self, lst):
        for b, n in lst:
            self.e(f's_mov_b32 s{b + 2}, {n}')
            self.e(f's_mov_b32 s{b + 3}, 0x20000')

    def setup2(self, g):
        e = self.e
        self.srd_consts(((S_DBG, 256), (S_WS, WS_END), (S_H, 86 * 65536), (S_WD, 1376 * 1024), (S_WO, 512 * 1024),
                         (S_OUT, 2048 * 1024), (S_WF, 512 * 2752), (S_WG, 512 * 2752)))
        if g == 0:
            e(f's_mov_b32 s{S_WF}, s{S_WG}')
            e(f's_mov_b32 s{S_WF + 1}, s{S_WG + 1}')
        e(f's_add_u32 s{S_H}, s{S_H}, {WS_H}')
        e(f's_addc_u32 s{S_H + 1}, s{S_H + 1}, 0')
        e(f's_and_b32 s{sRB}, s2, 7')
        e(f's_lshl_b32 s{sRB}, s{sRB}, 2')
        e(f's_lshr_b32 s{sT + 6}, s2, 6')
        e(f's_add_u32 s{sRB}, s{sRB}, s{sT + 6}')
        e(f's_bfe_u32 s{sCB}, s2, 0x30003')
        e(f's_mul_i32 s{sUS}, s{sJ}, {8 * 43691}')
        e(f's_lshr_b32 s{sUS}, s{sUS}, 17')
        e(f's_lshl_b32 s{sUS}, s{sUS}, 1')
        e(f's_mul_i32 s{sFB}, s{sTT}, {16 * 2752}')
        e(f's_lshl_b32 s{sT + 6}, s{sUS}, 5')
        e(f's_add_u32 s{sFB}, s{sFB}, s{sT + 6}')
        e(f's_add_u32 s{sMF}, s{sMW}, {g * UPOFF}')
        e(f's_mov_b32 s{sVM}, 0xffff')
        e(f's_mov_b32 s{sVM + 1}, 0xffff')
        self.piece_rows(vFD, 2752)
        e('v_and_b32 v16, 31, v0')
        e(f's_lshl_b32 s{sT + 6}, s{sTT}, 12')
        e('v_lshrrev_b32 v17, 5, v0')
        e('v_bfe_u32 v18, v0, 1, 3')
        e('v_xor_b32 v18, v18, v17')
        e('v_lshlrev_b32 v18, 4, v18')
        e('v_lshl_add_u32 v18, v16, 7, v18')
        e(f'v_add_u32 v{vXR[0]}, s{sT + 6}, v18')
        for ks in range(1, 4):
            e(f'v_xor_b32 v{vXR[ks]}, {32 * ks}, v{vXR[0]}')
        e('v_bfe_u32 v18, v0, 2, 2')
        e('v_lshl_add_u32 v18, v17, 3, v18')
        e('v_mul_u32_u24 v18, 192, v18')
        e('v_and_b32 v19, 3, v0')
        e('v_lshl_add_u32 v18, v19, 3, v18')
        e('v_bfe_u32 v19, v0, 4, 1')
        if g == 0:
            e(f'v_lshl_add_u32 v{vWR}, v19, 5, v18')
        else:
            e('v_xor_b32 v20, v19, v0')
            e('v_and_b32 v20, 1, v20')
            e('v_lshlrev_b32 v20, 10, v20')
            e(f'v_lshl_add_u32 v{vWR}, v17, 4, v20')
        e(f'v_mul_u32_u24 v19, {UPOFF}, v19')
        e(f'v_add_u32 v{vFR}, v18, v19')
        if g:
            e(f'v_add_u32 v{vFR}, 96, v{vFR}')
        e('v_and_b32 v18, 15, v0')
        e('v_lshl_add_u32 v18, v17, 4, v18')
        e(f'v_lshlrev_b32 v{vVA}, 4, v18')
        e(f'v_mov_b32 v{vIDX}, 0xdddddddd')

    def phase_a_loader(self):
        e = self.e
        GWB = FR
        ZA = ACA
        e('v_lshrrev_b32 v16, 3, v0')
        e('v_lshrrev_b32 v17, 4, v0')
        e('v_and_b32 v18, 7, v0')
        e('v_xor_b32 v18, v18, v17')
        e('v_lshlrev_b32 v18, 4, v18')
        e(f'v_lshl_add_u32 v{vXD[0]}, v16, 10, v18')
        e(f'v_xor_b32 v{vXD[1]}, 64, v{vXD[0]}')
        e(f'v_add_u32 v{vXD[1]}, 8192, v{vXD[1]}')
        e(f's_lshl_b32 s{sXB}, s{sTB}, 2')
        e(f's_add_u32 s{sXB}, s{sXB}, s{sTT}')
        e(f's_lshl_b32 s{sXB}, s{sXB}, 15')
        e(f's_lshl_b32 s{sMX}, s{sTT}, 12')
        e(f's_lshl_b32 s{sWB}, s{sMW}, 4')
        e(f's_mul_i32 s{sT + 6}, s{sJ}, 192')
        e(f's_add_u32 s{sWB}, s{sWB}, s{sT + 6}')
        self.srd_consts(((S_X, 2048 * 1024), (S_WQ, 512 * 3072), (S_GW, 1024)))
        self.piece_rows(vWD, 3072)
        e('s_waitcnt lgkmcnt(0)')
        self.stamp(1)
        seq = []
        bound = []
        for s in range(11):
            bound.append(len(seq))
            seq += self.dma_list(s)
        bound.append(len(seq))
        pos = 0

        def issue(upto):
            nonlocal pos
            while pos < min(upto, len(seq)):
                seq[pos]()
                pos += 1
        issue(7)
        e(f's_lshl_b32 s{sT + 6}, s{sR}, 7')
        e(f'v_add_u32 v16, s{sT + 6}, v{vL16}')
        e(f's_mov_b32 m0, {L_GW}')
        e('v_and_b32 v16, 1023, v16')
        e(f'buffer_load_dwordx4 v16, {srd(S_GW)}, 0 offen lds', 'st0')
        issue(11)
        self.setup2(1)
        D = self.opt['ahead']
        issue(7 + D)
        wx = Win(e, vXR)
        for s in range(8):
            slot = SLOT0 + SLOT * (s % 5)
            e.wait(vm=f'st{s}')
            e('s_barrier')
            if s in (0, 4):
                self.stamp(2 + s // 4)
            end = min(bound[s + 2] + D, bound[s + 4]) if s < 7 else len(seq)
            issue(min(end, pos + self.opt['lfirst']))
            wx.ensure(slot, slot)
            for ks in range(4):
                n = 4 * s + ks
                e(f'ds_read_b128 {vr(X + 4 * n, 4)}, v{vXR[ks]} offset:{wx.off(slot)}', f'r{n}')
                if not self.opt.get('nogate'):
                    e(f'ds_read_b128 {vr(GWB + 4 * ks, 4)}, v{vWR} offset:{L_GW + 32 * n}', f'r{n}')
            if s == 5:
                e(f'buffer_load_dwordx2 v[{vK[0]}:{vK[0] + 1}], off, {srd(S_DBG)}, 0 sc1', 'non')
            issue(end - self.opt['llast'])
            for ks in range(4):
                n = 4 * s + ks
                e.wait(lg=f'r{n}')
                if not self.opt.get('nogate'):
                    e(f'v_mfma_f32_16x16x32_bf16 {vr(ZA, 4)}, {vr(GWB + 4 * ks, 4)}, {vr(X + 4 * n, 4)}, {vr(ZA, 4) if n else 0}')
            issue(end)
        e(f'v_and_b32 v{ZA + 4}, 16, v0')
        e(f'v_cmp_eq_u32 vcc, 0, v{ZA + 4}')
        e(f's_lshl_b32 s{sT + 1}, s{sTT}, 8')
        e(f'v_lshl_add_u32 v{ZA + 4}, v0, 2, s{sT + 1}')
        e(f'v_cndmask_b32 v{ZA}, v{ZA + 1}, v{ZA}, vcc')
        e(f'ds_write_b32 v{ZA + 4}, v{ZA} offset:{L_Z}', 'zw')
        e.wait(vm='st8')
        e('s_barrier')
        self.stamp(4)

    def compute_prologue(self):
        e = self.e
        lab = e.newlabel('pf')
        e(f's_cmp_lg_u32 s{sTT}, 0')
        e(f's_cbranch_scc1 {lab}')
        snap = e.snapshot()
        e(f's_getpc_b64 s[{sT}:{sT + 1}]')
        e(f's_lshr_b32 s{sT + 2}, s2, 3')
        e(f's_lshl_b32 s{sT + 2}, s{sT + 2}, 11')
        e(f'v_lshl_add_u32 v16, v0, 7, s{sT + 2}')
        e('v_min_u32 v16, Lcode_end-Lpfbase-4, v16')
        e.label('Lpfbase')
        e('s_mov_b64 exec, 0xffff')
        e(f'global_load_dword v{vK[1]}, v16, s[{sT}:{sT + 1}]', 'pf')
        e('s_mov_b64 exec, -1')
        e.paths = e.paths + snap
        e.label(lab)
        e(f's_memrealtime s[{sNON}:{sNON + 1}]')
        for i in range(4):
            e(f'v_mov_b32 v{ACA + i}, 0')
        e(f'ds_write_b128 v{vL16}, {vr(ACA, 4)} offset:{L_ZERO}', 'z0')
        e(f'v_mov_b32 v17, {L_CNT}')
        e(f'ds_write_b32 v17, v{ACA}', 'z0')
        e('s_waitcnt lgkmcnt(0)')
        for p in e.paths:
            p.lg = []
        self.stamp(1)
        self.setup2(0)
        e(f's_or_b32 s{sT + 6}, s2, s{sW}')
        e(f's_cmp_lg_u32 s{sT + 6}, 0')
        lab = e.newlabel('nn')
        e(f's_cbranch_scc1 {lab}')
        snap = e.snapshot()
        e(f's_or_b32 s{sNON + 1}, s{sNON + 1}, 0x80000000')
        e(f'v_mov_b32 v16, s{sNON}')
        e(f'v_mov_b32 v17, s{sNON + 1}')
        e('s_mov_b64 exec, 1')
        e(f'buffer_store_dwordx2 v[16:17], off, {srd(S_DBG)}, 0 sc1', 'nst')
        e('s_mov_b64 exec, -1')
        e.paths = e.paths + snap
        e.label(lab)
        e(f'v_bfe_u32 v{ACA}, v0, 4, 1')
        e(f'v_lshl_add_u32 v{ACA}, v{ACA}, 17, v{vVA}')
        e(f'v_bfe_u32 v{ACA + 1}, v0, 2, 1')
        e(f'v_bfe_u32 v{ACA + 2}, v0, 3, 1')
        e(f'v_sub_u32 v{ACA + 1}, v{ACA + 1}, v{ACA + 2}')
        e(f'v_lshl_add_u32 v{ACA + 1}, v{ACA + 1}, 6, v{vL16}')
        e(f's_lshl_b32 s{sT + 9}, s{sTB}, 2')
        e(f's_add_u32 s{sT + 9}, s{sT + 9}, s{sTT}')
        for c in range(3):
            o0, o1, sc = sT + 3 * c, sT + 3 * c + 1, sT + 3 * c + 2
            t1, t2 = sXO, sXO2
            e(f's_mul_i32 s{t1}, s{sJ}, 3')
            e(f's_add_u32 s{t1}, s{t1}, {c}')
            e(f's_and_b32 s{o0}, s{t1}, 15')
            e(f's_lshl_b32 s{o0}, s{o0}, 7')
            e(f's_add_u32 s{o0}, s{o0}, s{sT + 9}')
            e(f's_cmp_lt_u32 s{t1}, 16')
            e(f's_cselect_b32 s{sc}, {fbits(QSCALE)}, 1.0')
            e(f's_cselect_b32 s{t2}, 10, 11')
            e(f's_cselect_b32 s{sMX}, {WS_Q}, {WS_KV}')
            e('s_cselect_b64 vcc, -1, 0')
            e(f's_lshl_b32 s{o0}, s{o0}, s{t2}')
            e(f's_lshl_b32 s{o1}, 64, s{t2}')
            e(f's_add_u32 s{o0}, s{o0}, s{sMX}')
            e(f'v_cndmask_b32 v{ACA + 4 + c}, v{ACA + 1}, v{vL16}, vcc')
            e(f's_cmp_ge_u32 s{t1}, 32')
            e(f's_cselect_b32 s{o1}, 512, s{o1}')
            e(f's_cselect_b32 s{t2}, 1024, 0')
            e('s_cselect_b64 vcc, -1, 0')
            e(f's_add_u32 s{o0}, s{o0}, s{t2}')
            e(f's_add_u32 s{o1}, s{o1}, s{o0}')
            e(f'v_cndmask_b32 v{ACA + 4 + c}, v{ACA + 4 + c}, v{ACA}, vcc')

    def phase_a_compute(self, types):
        e = self.e
        LA = self.opt['laa']
        ring = [FR + 4 * i for i in range(NFR)] + [ACA + 8 + 4 * i for i in range(LA + 1 - NFR)]
        wx = Win(e, vXR)
        ww = Win(e, vWR)
        if self.opt.get('noqkv'):
            for s in range(8):
                e('s_barrier')
                if s in (0, 4):
                    self.stamp(2 + s // 4)
            e(f'buffer_load_dwordx2 v[{vK[0]}:{vK[0] + 1}], off, {srd(S_DBG)}, 0 sc1', 'non')
            return

        def reads(m):
            n, c = divmod(m, 3)
            s, ks = divmod(n, 4)
            slot = SLOT0 + SLOT * (s % 5)
            if m % 12 == 0:
                e('s_barrier')
                if s in (0, 4):
                    self.stamp(2 + s // 4)
                if s == 8:
                    return
                wx.ensure(slot, slot)
                ww.ensure(slot + 16384, slot + SLOT)
            if c == 0:
                e(f'ds_read_b128 {vr(X + 4 * n, 4)}, v{vXR[ks]} offset:{wx.off(slot)}', f'a{m}')
            for rd in range(2):
                t = slot + 16384 + ks * 3072 + rd * 768 + 64 * c
                e(f'ds_read_b64_tr_b16 {vr(ring[m % len(ring)] + 2 * rd, 2)}, v{vWR} offset:{ww.off(t)}', f'a{m}')

        for m in range(LA):
            reads(m)
        for m in range(96):
            n, c = divmod(m, 3)
            e.wait(lg=f'a{m}')
            acc = vr(ACF + 16 * c, 16)
            a, b = vr(ring[m % len(ring)], 4), vr(X + 4 * n, 4)
            if types[c]:
                a, b = b, a
            e(f'v_mfma_f32_32x32x16_bf16 {acc}, {a}, {b}, {acc if n else 0}')
            if m + LA < 96:
                reads(m + LA)
            if m == 70:
                e(f'buffer_load_dwordx2 v[{vK[0]}:{vK[0] + 1}], off, {srd(S_DBG)}, 0 sc1', 'non')

    def qkv_epilogue(self):
        e = self.e
        e('s_barrier')
        self.stamp(4)
        for c in range(3):
            acc = ACF + 16 * c
            for h in range(2):
                for i in range(8 * h, 8 * h + 8):
                    e(f'v_mul_f32 v{acc + i}, s{sT + 3 * c + 2}, v{acc + i}')
                d = ACA + 8 + 8 * c + 4 * h
                for i in range(4):
                    e(f'v_cvt_pk_bf16_f32 v{d + i}, v{acc + 8 * h + 2 * i}, v{acc + 8 * h + 2 * i + 1}')
                e(f'buffer_store_dwordx4 {vr(d, 4)}, v{ACA + 4 + c}, {srd(S_WS)}, s{sT + 3 * c + h} offen sc1', 'qst')

    def spin(self, name, reload, check):
        e = self.e
        lr, lc = e.newlabel(name + 'r'), e.newlabel(name + 'c')
        check()
        e(f's_cbranch_vccnz {lr}')
        e.label(lc)

        def blk():
            e.paths = [p for p in Emitter().paths]
            e.label(lr)
            e(f's_mov_b32 s{sSPIN}, {SPIN}')
            ll = e.newlabel(name + 'l')
            e.label(ll)
            e('s_sleep 2')
            reload()
            e('s_waitcnt vmcnt(0)')
            check()
            e(f's_cbranch_vccz {lc}')
            e(f's_sub_u32 s{sSPIN}, s{sSPIN}, 1')
            e(f's_cbranch_scc0 {ll}')
            e(f's_branch {lc}')
        self.tail_blocks.append(blk)

    def flag_store(self, soff, tmp):
        e = self.e
        e(f'v_mov_b32 v{tmp}, s{sNON}')
        e(f'v_mov_b32 v{tmp + 1}, s{sNON + 1}')
        e('s_mov_b64 exec, 1')
        e(f'buffer_store_dwordx2 v[{tmp}:{tmp + 1}], off, {srd(S_WS)}, s{soff} sc1', 'flag')
        e('s_mov_b64 exec, -1')

    def kv_load(self, it):
        e = self.e
        b = it % 2

        def k():
            e(f's_add_u32 s{sKV}, s{sKVB}, s{sKVI}')
            e(f'buffer_load_dwordx4 {vr(vK[b], 4)}, v{vL16}, {srd(S_WS)}, s{sKV} offen sc1', f'k{it}')

        def v():
            e(f's_mov_b64 exec, s[{sVM}:{sVM + 1}]')
            e(f'buffer_load_dwordx4 {vr(vV[b], 4)}, v{vVA}, {srd(S_WS)}, s{sKV} offen offset:1024 sc1', f'v{it}')
            e(f'buffer_load_dwordx4 {vr(vV[b] + 4, 4)}, v{vVA}, {srd(S_WS)}, s{sKV} offen offset:1536 sc1', f'v{it}')
            e('s_mov_b64 exec, -1')
            e(f's_add_u32 s{sKVI}, s{sKVI}, 2048')
            e(f's_and_b32 s{sKVI}, s{sKVI}, 32767')
        return k, v

    def gelu_ops(self, c):
        e = self.e
        acc = ACF + 16 * c
        T = ACA + 16
        ops = []
        A = lambda s: ops.append(lambda s=s: e(s))
        for h in range(2):
            rr = range(4 * h, 4 * h + 4)
            for i in rr:
                A(f'v_mul_f32 v{T + i}, v{acc + i}, v{acc + i}')
            for i in rr:
                A(f'v_fma_f32 v{T + i}, v{T + i}, s{sT + 8}, v{T + 8}')
            for i in rr:
                A(f'v_mul_f32 v{T + i}, v{T + i}, v{acc + i}')
            for i in rr:
                A(f'v_exp_f32 v{T + i}, v{T + i}')
            for i in rr:
                A(f'v_mul_f32 v{acc + i}, v{acc + i}, v{acc + 8 + i}')
            for i in rr:
                A(f'v_fma_f32 v{T + i}, v{T + i}, v{vCH}, v{vCH}')
            for i in rr:
                A(f'v_rcp_f32 v{T + i}, v{T + i}')
            for i in rr:
                A(f'v_mul_f32 v{acc + i}, v{acc + i}, v{T + i}')
        for i in range(4):
            A(f'v_cvt_pk_bf16_f32 v{acc + 8 + i}, v{acc + 2 * i}, v{acc + 2 * i + 1}')

        def st():
            e(f'buffer_store_dwordx4 {vr(acc + 8, 4)}, v{vL16}, {srd(S_WS)}, s{sHO} offen sc1', 'hst')
            e(f's_add_u32 s{sHO}, s{sHO}, 65536')
        ops.append(st)
        return ops

    def split(self, fn):
        real = self.e
        rec = []

        class Rec:
            def __call__(s, text, tag=None):
                rec.append(('i', text, tag))

            def wait(s, vm=None, lg=None):
                rec.append(('w', vm, lg))
        self.e = Rec()
        fn()
        self.e = real
        out, grp = [], []
        for r in rec:
            grp.append(r)
            masked = any(x[0] == 'i' and x[1].startswith('s_mov_b64 exec') for x in grp)
            if (masked and r[1] != 's_mov_b64 exec, -1') or r[0] == 'w':
                continue

            def f(grp=grp):
                for x in grp:
                    if x[0] == 'i':
                        real(x[1], x[2])
                    else:
                        real.wait(vm=x[1], lg=x[2])
            out.append(f)
            grp = []
        assert not grp
        return out

    def phase_f(self):
        e = self.e
        order = [(n, c) for n in range(24) for c in range(3)]
        for c in range(3):
            order += [(n, c) for n in range(24, 32)]
        LA = 4
        wf = Win(e, vFR)
        entered = {8}
        fill = []
        at = {}
        cur = [0]

        def pin(m, f):
            at.setdefault(m, []).append(f)

        def sched_dma(s, m0):
            for i, f in enumerate(self.dma_list(s)):
                pin(m0 + 1 + self.opt['dsp'] * i, f)

        def enter(s):
            tags = [f'st{s}']
            if s == 10:
                tags.append('qst')
            e.wait(vm=tags, lg='zw' if s == 9 else None)
            if not self.opt.get('nobar'):
                e('s_barrier')
            entered.add(s)
            if 9 <= s <= 12:
                sched_dma(s + 3, cur[0])
            if s == 9:
                fill.extend(self.split(self.gate_read))
                fill.append(self.nonce_get)
            if s == 10:
                fill.insert(0, self.flag1)
                fill.extend(self.split(self.gate_math))
                fill.extend(self.split(self.o_mark))
            if s == 13:
                fill.append(self.touch)
                fill.extend(self.split(self.attn_setup))

        def reads(m):
            n, c = order[m]
            s = 8 + n // 4
            if s not in entered:
                enter(s)
            slot = SLOT0 + SLOT * (s % 5)
            wf.ensure(slot, slot + 12288)
            for rd in range(2):
                t = slot + (n % 4) * 3072 + rd * 768 + 32 * c
                e(f'ds_read_b64_tr_b16 {vr(FR + 4 * (m % NFR) + 2 * rd, 2)}, v{vFR} offset:{wf.off(t)}', f'f{m}')

        for i, f in enumerate(self.dma_list(11)):
            pin(3 * i, f)
        for m in range(LA):
            reads(m)
        for m in range(96):
            cur[0] = m
            n, c = order[m]
            e.wait(lg=f'f{m}')
            acc = vr(ACF + 16 * c, 16)
            e(f'v_mfma_f32_32x32x16_bf16 {acc}, {vr(FR + 4 * (m % NFR), 4)}, {vr(X + 4 * n, 4)}, {acc if n else 0}')
            if m + LA < 96:
                reads(m + LA)
            if m % 12 == 0 and 12 <= m <= 72:
                self.stamp(6 + m // 12, 1)
            if m == 72:
                assert not fill
                fill.append(self.poll1_issue)
                fill.extend(self.split(self.attn_init))
            if m == 80:
                fill.append(self.poll1_check)
                fill.extend(self.split(self.attn_loads))
            if m == 81:
                fill.extend(self.gelu_ops(0))
            if m == 89:
                fill.extend(self.gelu_ops(1))
            for f in at.get(m, []):
                if not self.opt.get('nodma'):
                    f()
            k = 6 if m < 72 else (7 if m < 80 else 12)
            for _ in range(k):
                if fill:
                    fill.pop(0)()
        e('s_barrier')
        for f in fill:
            f()
        self.stamp(5)
        for f in self.gelu_ops(2):
            f()
        self.stamp(6)

    def o_mark(self):
        e = self.e
        for i in range(4):
            e(f'v_mov_b32 v{ACA + i}, -1')
        e(f's_lshl_b32 s{sT + 1}, s{sJ}, 1')
        e(f's_add_u32 s{sT + 1}, s{sT + 1}, s{sG}')
        e(f's_lshl_b32 s{sT + 1}, s{sT + 1}, 4')
        e(f's_add_u32 s{sT + 1}, s{sT + 1}, s{sTB}')
        e(f's_lshl_b32 s{sT + 1}, s{sT + 1}, 2')
        e(f's_add_u32 s{sT + 1}, s{sT + 1}, s{sTT}')
        e(f's_lshl_b32 s{sT + 1}, s{sT + 1}, 10')
        e(f's_add_u32 s{sT + 1}, s{sT + 1}, {WS_O}')
        e(f'buffer_store_dwordx4 {vr(ACA, 4)}, v{vL16}, {srd(S_WS)}, s{sT + 1} offen sc1', 'hst')

    def gate_read(self):
        e = self.e
        e(f's_lshl_b32 s{sT}, s{sTT}, 8')
        e(f'v_lshl_add_u32 v{vCO}, v0, 2, s{sT}')
        e(f'ds_read_b32 v{vCO}, v{vCO} offset:{L_Z}', 'zr')

    def gate_math(self):
        e = self.e
        e.wait(lg='zr')
        e(f'v_mul_f32 v{vCO}, {fbits(LOG2E)}, v{vCO}')
        e(f'v_exp_f32 v{vCH}, v{vCO}')
        e(f'v_exp_f32 v{vCO}, -v{vCO}')
        e(f'v_add_f32 v{vCH}, 1.0, v{vCH}')
        e(f'v_add_f32 v{vCO}, 1.0, v{vCO}')
        e(f'v_min_f32 v{vCH}, {fbits(2.0 ** 100)}, v{vCH}')
        e(f'v_mov_b32 v{ACA + 24}, {fbits(GC0)}')
        e(f's_mov_b32 s{sT + 8}, {fbits(GC1)}')

    def nonce_get(self):
        e = self.e
        e.wait(vm='non')
        ld = lambda: e(f'buffer_load_dwordx2 v[{vK[0]}:{vK[0] + 1}], off, {srd(S_DBG)}, 0 sc1')
        ck = lambda: e(f'v_cmp_eq_u32 vcc, 0, v{vK[0] + 1}')
        self.spin('non', ld, ck)
        e(f'v_readfirstlane_b32 s{sNON}, v{vK[0]}')
        e(f'v_readfirstlane_b32 s{sNON + 1}, v{vK[0] + 1}')

    def flag1(self):
        e = self.e
        lab = e.newlabel('f1')
        e(f's_cmp_lg_u32 s{sW}, 0')
        e(f's_cbranch_scc1 {lab}')
        snap = e.snapshot()
        e(f's_lshl_b32 s{sT}, s{sJ}, 4')
        e(f's_add_u32 s{sT}, s{sT}, s{sTB}')
        e(f's_lshl_b32 s{sT}, s{sT}, 5')
        e(f's_add_u32 s{sT}, s{sT}, {WS_F1}')
        self.flag_store(sT, vK[0])
        e.paths = e.paths + snap
        e.label(lab)

    def touch(self):
        e = self.e
        lab = e.newlabel('tc')
        e(f's_cmp_lg_u32 s{sW}, 7')
        e(f's_cbranch_scc1 {lab}')
        snap = e.snapshot()
        e(f'v_lshlrev_b32 v{vK[0]}, 7, v0')
        e(f's_mul_i32 s{sT}, s2, {43 * 128}')
        e(f's_lshl_b32 s{sT + 1}, s2, 11')
        e(f's_mov_b64 exec, 0xffff')
        e(f'buffer_load_dword v{vK[0] + 1}, v{vK[0]}, {srd(S_WO)}, s{sT + 1} offen', 'touch')
        e(f's_mov_b32 exec_lo, -1')
        e(f's_mov_b32 exec_hi, 0x7ff')
        e(f'buffer_load_dword v{vK[0] + 2}, v{vK[0]}, {srd(S_WD)}, s{sT} offen', 'touch')
        e('s_mov_b64 exec, -1')
        e.paths = e.paths + snap
        e.label(lab)

    def attn_setup(self):
        e = self.e
        e(f's_mul_i32 s{sHO}, s{sG}, 3')
        e(f's_add_u32 s{sHO}, s{sHO}, s{sUS}')
        e(f's_lshl_b32 s{sHO}, s{sHO}, 4')
        e(f's_add_u32 s{sHO}, s{sHO}, s{sTB}')
        e(f's_lshl_b32 s{sHO}, s{sHO}, 2')
        e(f's_add_u32 s{sHO}, s{sHO}, s{sTT}')
        e(f's_lshl_b32 s{sHO}, s{sHO}, 10')
        e(f's_add_u32 s{sHO}, s{sHO}, {WS_H}')
        e(f's_lshl_b32 s{sKVB}, s{sJ}, 3')
        e(f's_add_u32 s{sKVB}, s{sKVB}, s{sW}')
        e(f's_lshl_b32 s{sKVB}, s{sKVB}, 15')
        e(f's_add_u32 s{sKVB}, s{sKVB}, {WS_KV}')
        e(f's_and_b32 s{sKVI}, s{sTB}, 7')
        e(f's_lshl_b32 s{sKVI}, s{sKVI}, 12')
        for i, add in enumerate((16, 32, 0)):
            e(f's_add_u32 s{sT + i}, s{sJ}, {add}')
            e(f's_mul_i32 s{sT + i}, s{sT + i}, 43691')
            e(f's_lshr_b32 s{sT + i}, s{sT + i}, 17')
            e(f's_lshl_b32 s{sT + i}, s{sT + i}, 4')
        e(f's_lshl_b32 s{sT + 3}, s{sTT}, 2')
        e(f's_add_u32 s{sT}, s{sT}, s{sT + 3}')
        e(f's_add_u32 s{sT + 1}, s{sT + 1}, s{sT + 3}')
        e(f's_add_u32 s{sT + 2}, s{sT + 2}, s{sTB}')
        e(f'v_mov_b32 v{vPA}, s{sT + 2}')
        e(f'v_and_b32 v{vP}, 3, v0')
        e('s_mov_b64 exec, 0xff')
        e(f'v_add_u32 v{vPA}, s{sT + 1}, v{vP}')
        e('s_mov_b64 exec, 0xf')
        e(f'v_add_u32 v{vPA}, s{sT}, v{vP}')
        e('s_mov_b64 exec, -1')
        e(f'v_lshlrev_b32 v{vPA}, 5, v{vPA}')
        e(f'v_add_u32 v{vPA}, {WS_F1}, v{vPA}')
        e(f'v_lshrrev_b32 v{vDD[0]}, 3, v0')
        e(f'v_and_b32 v{vDD[1]}, 7, v0')
        e(f'v_bfe_u32 v{vP}, v0, 4, 1')
        e(f'v_lshlrev_b32 v{vP + 1}, 2, v{vP}')
        e(f'v_xor_b32 v{vDD[1]}, v{vDD[1]}, v{vP + 1}')
        e(f'v_lshlrev_b32 v{vDD[1]}, 4, v{vDD[1]}')
        e(f'v_lshl_add_u32 v{vDD[0]}, v{vDD[0]}, 10, v{vDD[1]}')
        e(f'v_add_u32 v{vDD[1]}, 8192, v{vDD[0]}')
        e(f's_mul_i32 s{sMD}, s{sW}, {WREG}')
        e(f'v_lshrrev_b32 v{vDR[0]}, 5, v0')
        e(f'v_bfe_u32 v{vDR[1]}, v0, 2, 2')
        e(f'v_lshl_add_u32 v{vDR[0]}, v{vDR[0]}, 2, v{vDR[1]}')
        e(f'v_lshlrev_b32 v{vDR[0]}, 7, v{vDR[0]}')
        e(f'v_lshl_add_u32 v{vDR[0]}, v{vP}, 5, v{vDR[0]}')
        e(f'v_bfe_u32 v{vP}, v0, 3, 1')
        e(f'v_lshl_add_u32 v{vDR[0]}, v{vP}, 6, v{vDR[0]}')
        e(f'v_and_b32 v{vP}, 3, v0')
        e(f'v_lshl_add_u32 v{vDR[0]}, v{vP}, 3, v{vDR[0]}')
        e(f'v_add_u32 v{vDR[0]}, s{sMD}, v{vDR[0]}')
        e(f'v_xor_b32 v{vDR[1]}, 64, v{vDR[0]}')
        e(f'v_add_u32 v{vRW}, s{sMD}, v{vL16}')
        e(f's_mul_i32 s{sDO}, s{sW}, {11 * 16384}')
        e(f's_lshl_b32 s{sT}, s{sCB}, 7')
        e(f's_add_u32 s{sDO}, s{sDO}, s{sT}')

    def attn_init(self):
        e = self.e
        for t in range(4):
            for i in range(0, 16, 2):
                e(f'v_mov_b64 {vr(vO[t] + i, 2)}, 0')
        e(f'v_and_b32 v{vV[0] + 1}, 27, v0')
        e(f'v_cmp_eq_u32 vcc, 16, v{vV[0] + 1}')
        e(f'v_mov_b32 v{vV[0] + 1}, 0x3f803f80')
        e(f'v_cndmask_b32 v{vV[0]}, 0, v{vV[0] + 1}, vcc')
        for i in range(1, 16):
            e(f'v_mov_b32 v{vV[0] + i}, v{vV[0]}')

    def poll1_issue(self):
        e = self.e
        e('s_mov_b64 exec, 0xfff')
        e(f'buffer_load_dwordx2 v[{vP}:{vP + 1}], v{vPA}, {srd(S_WS)}, 0 offen sc1', 'p1')
        e('s_mov_b64 exec, -1')

    def poll1_check(self):
        e = self.e
        e.wait(vm='p1')
        e('s_mov_b64 exec, 0xfff')
        ld = lambda: e(f'buffer_load_dwordx2 v[{vP}:{vP + 1}], v{vPA}, {srd(S_WS)}, 0 offen sc1')
        ck = lambda: e(f'v_cmp_ne_u64 vcc, s[{sNON}:{sNON + 1}], v[{vP}:{vP + 1}]')
        self.spin('p1', ld, ck)
        e('s_mov_b64 exec, -1')

    def attn_loads(self):
        e = self.e
        k, v = self.kv_load(0)
        k()
        e(f's_lshl_b32 s{sT}, s{sJ}, 1')
        e(f's_add_u32 s{sT}, s{sT}, s{sG}')
        e(f's_lshl_b32 s{sT}, s{sT}, 4')
        e(f's_add_u32 s{sT}, s{sT}, s{sTB}')
        e(f's_lshl_b32 s{sT}, s{sT}, 12')
        for i in range(4):
            e(f's_add_u32 s{sT + 1}, s{sTT}, {1 + i}')
            e(f's_and_b32 s{sT + 1}, s{sT + 1}, 3')
            e(f's_lshl_b32 s{sT + 1}, s{sT + 1}, 10')
            e(f's_add_u32 s{sT + 1}, s{sT + 1}, s{sT}')
            e(f'buffer_load_dwordx4 {vr(vQ[i], 4)}, v{vL16}, {srd(S_WS)}, s{sT + 1} offen sc1', f'q{i}')
        v()
        e(f's_lshr_b32 s{sT + 1}, s{sRB}, 1')
        e(f's_lshl_b32 s{sT + 1}, s{sT + 1}, 9')
        e(f's_add_u32 s{sT + 1}, s{sT + 1}, {WS_F2}')
        e(f'v_lshl_add_u32 v{vPA}, v0, 5, s{sT + 1}')

    def attention(self):
        e = self.e
        G0 = self.opt['g2start']
        NT = 64

        def qk(t):
            it, sl = divmod(t, 4)
            if sl == 0:
                e.wait(vm=f'k{it}')
            if it == 0:
                e.wait(vm=f'q{sl}')
            e(f'v_mfma_f32_32x32x16_bf16 {vr(vS[t % 2], 16)}, {vr(vK[it % 2], 4)}, {vr(vQ[sl], 4)}, 0')

        def pv(t, hi):
            it, sl = divmod(t, 4)
            if sl == 0 and not hi:
                e.wait(vm=f'v{it}')
            e(f'v_smfmac_f32_32x32x32_bf16 {vr(vO[sl], 16)}, {vr(vV[it % 2] + 4 * hi, 4)}, {vr(vS[t % 2] + 8 * hi, 8)}, v{vIDX}')

        def ex(t, a, b):
            for i in range(a, b):
                e(f'v_exp_f32 v{vS[t % 2] + i}, v{vS[t % 2] + i}')

        def wd_dma(step):
            def f():
                for i in range(2):
                    e(f's_add_u32 m0, s{sMD}, {L_RING + 2048 * (step % 5) + 1024 * i}')
                    e(f'buffer_load_dwordx4 v{vDD[i]}, {srd(S_WD)}, s{sDO} offen lds', f'd{step}')
                e(f's_add_u32 s{sDO}, s{sDO}, 16384')
            return f

        def wo_dma(k):
            def f():
                if k == 0:
                    e(f's_lshl_b32 s{sDO}, s{sW}, 16')
                    e(f's_lshl_b32 s{sT}, s{sCB}, 7')
                    e(f's_add_u32 s{sDO}, s{sDO}, s{sT}')
                for i in range(2):
                    e(f's_add_u32 m0, s{sMD}, {2048 * k + 1024 * i}')
                    e(f'buffer_load_dwordx4 v{vDD[i]}, {srd(S_WO)}, s{sDO} offen lds', 'wo')
                e(f's_add_u32 s{sDO}, s{sDO}, 16384')
            return f

        def h_load(step):
            def f():
                for i in range(2):
                    e(f'buffer_load_dwordx4 {vr(vH[step % 2] + 4 * i, 4)}, v{vL16}, {srd(S_H)}, s{sHO} offen offset:{1024 * i} sc1', f'h{step}')
                e(f's_add_u32 s{sHO}, s{sHO}, 65536')
            return f

        def wd_read(step, jj):
            def f():
                e.wait(vm=f'd{step}')
                for rd in range(2):
                    e(f'ds_read_b64_tr_b16 {vr(vD + 4 * jj + 2 * rd, 2)}, v{vDR[jj]} offset:{L_RING + 2048 * (step % 5) + 1024 * rd}', f'dr{step}_{jj}')
            return f

        def g2(step, sl):
            jj, i = divmod(sl, 2)
            e.wait(vm=f'h{step}', lg=f'dr{step}_{jj}')
            acc = vr(vG[i * 2 + jj], 16)
            e(f'v_mfma_f32_32x32x16_bf16 {acc}, {vr(vD + 4 * jj, 4)}, {vr(vH[step % 2] + 4 * i, 4)}, {acc if step else 0}')

        def sig2_a():
            e.wait(vm='hst')
            e(f'v_mov_b32 v{vP}, {L_CNT}')
            e(f'v_mov_b32 v{vP + 1}, 1')
            e('s_mov_b64 exec, 1')
            e(f'ds_add_rtn_u32 v{vP}, v{vP}, v{vP + 1}', 'cnt2')
            e('s_mov_b64 exec, -1')

        def sig2_b():
            e.wait(lg='cnt2')
            e(f'v_readfirstlane_b32 s{sT}, v{vP}')
            lab = e.newlabel('f2')
            e(f's_cmp_lg_u32 s{sT}, 7')
            e(f's_cbranch_scc1 {lab}')
            snap = e.snapshot()
            e(f's_lshl_b32 s{sT}, s{sTB}, 4')
            e(f's_add_u32 s{sT}, s{sT}, s{sJ}')
            e(f's_lshl_b32 s{sT}, s{sT}, 5')
            e(f's_add_u32 s{sT}, s{sT}, {WS_F2}')
            self.flag_store(sT, vP)
            e.paths = e.paths + snap
            e.label(lab)
            e(f's_mul_i32 s{sHO}, s{sW}, {11 * 65536}')
            e(f's_lshl_b32 s{sT}, s{sRB}, 11')
            e(f's_add_u32 s{sHO}, s{sHO}, s{sT}')

        def poll2_issue():
            e('s_mov_b64 exec, 0xffff')
            e(f'buffer_load_dwordx2 v[{vP}:{vP + 1}], v{vPA}, {srd(S_WS)}, 0 offen sc1', 'p2')
            e('s_mov_b64 exec, -1')

        def poll2_check():
            e.wait(vm='p2')
            e('s_mov_b64 exec, 0xffff')
            ld = lambda: e(f'buffer_load_dwordx2 v[{vP}:{vP + 1}], v{vPA}, {srd(S_WS)}, 0 offen sc1')
            ck = lambda: e(f'v_cmp_ne_u64 vcc, s[{sNON}:{sNON + 1}], v[{vP}:{vP + 1}]')
            self.spin('p2', ld, ck)
            e('s_mov_b64 exec, -1')

        def ored_write(sl):
            def f():
                o = L_RING + 3072 * sl
                e(f'ds_write_b128 v{vRW}, {vr(vO[sl], 4)} offset:{o}', 'orw')
                e(f'ds_write_b128 v{vRW}, {vr(vO[sl] + 4, 4)} offset:{o + 1024}', 'orw')
                e(f'ds_write_b32 v{vRW}, v{vO[sl] + 8} offset:{o + 2048}', 'orw')
            return f

        side = {}
        add = lambda t, p, f: side.setdefault((t, p), []).append(f)
        for it in range(15):
            k, v = self.kv_load(it + 1)
            add(4 * it, 0, k)
            add(4 * it, 0, v)
        for step in range(11):
            it = G0 + step
            add(4 * (it - 2) + 1, 0, wd_dma(step))
            add(4 * (it - 1) + 1, 0, h_load(step))
            add(4 * it - 1, 0, wd_read(step, 0))
            add(4 * it + 1, 0, wd_read(step, 1))
        for k in range(4):
            add(4 * (G0 + 9) + 1 + k, 2, wo_dma(k))
        add(5, 2, sig2_a)
        add(6, 2, sig2_b)
        add(4 * (G0 - 2) + 2, 2, poll2_issue)
        add(4 * (G0 - 1), 2, poll2_check)
        for sl in range(3):
            add(61 + sl, 3, ored_write(sl))
        if self.opt['prio']:
            e('s_setprio 3')
            add(7, 2, lambda: e('s_setprio 2'))
            add(31, 2, lambda: e('s_setprio 1'))
            add(58, 2, lambda: e('s_setprio 0'))

        def run(t, p):
            for f in side.get((t, p), []):
                f()

        qk(0)
        for t in range(NT):
            it, sl = divmod(t, 4)
            ex(t, 0, 2)
            if t > 0:
                pv(t - 1, 1)
            run(t, 0)
            ex(t, 2, 5)
            if t + 1 < NT:
                qk(t + 1)
            run(t, 1)
            ex(t, 5, 10)
            pv(t, 0)
            run(t, 2)
            ex(t, 10, 13)
            if G0 <= it < G0 + 11:
                g2(it - G0, sl)
            ex(t, 13, 16)
            run(t, 3)
            if t in (7, 31):
                self.stamp(7 if t == 7 else 8)
        pv(NT - 1, 1)

    def tail(self):
        e = self.e
        own = vO[3]
        R = vS[0]
        self.stamp(9)
        for i in range(3):
            e(f's_sub_u32 s{sT}, s{sTT}, {1 + i}')
            e(f's_and_b32 s{sT}, s{sT}, 3')
            e(f's_lshl_b32 s{sT + 1}, s{sG}, 2')
            e(f's_add_u32 s{sT}, s{sT}, s{sT + 1}')
            e(f's_mul_i32 s{sT}, s{sT}, {WREG}')
            e(f'v_add_u32 v{10 + i}, s{sT}, v{vL16}')
        e.wait(lg='all')
        e('s_barrier')
        for i in range(3):
            o = L_RING + 3072 * i
            e(f'ds_read_b32 v{R + 24 + i}, v{10 + i} offset:{o + 2048}', f'or{i}')
        for i in range(3):
            o = L_RING + 3072 * i
            e(f'ds_read_b128 {vr(R + 8 * i, 4)}, v{10 + i} offset:{o}', f'oa{i}')
            e(f'ds_read_b128 {vr(R + 8 * i + 4, 4)}, v{10 + i} offset:{o + 1024}', f'oa{i}')
        e(f's_lshl_b32 s{sT}, s{sJ}, 1')
        e(f's_add_u32 s{sT}, s{sT}, s{sG}')
        e(f's_lshl_b32 s{sT}, s{sT}, 4')
        e(f's_add_u32 s{sT}, s{sT}, s{sTB}')
        e(f's_lshl_b32 s{sT}, s{sT}, 2')
        e(f's_add_u32 s{sT}, s{sT}, s{sTT}')
        e(f's_lshl_b32 s{sT}, s{sT}, 10')
        e(f's_add_u32 s{sT}, s{sT}, {WS_O}')
        e.wait(lg='or2')
        e(f'v_add_f32 v{R + 24}, v{R + 24}, v{R + 25}')
        e(f'v_add_f32 v{own + 8}, v{own + 8}, v{R + 26}')
        e(f'v_add_f32 v{own + 8}, v{own + 8}, v{R + 24}')
        for i in range(3):
            e.wait(lg=f'oa{i}')
            for r in range(8):
                e(f'v_add_f32 v{own + r}, v{own + r}, v{R + 8 * i + r}')
        e(f'v_subrev_u32 v{R}, {(127 - 60) << 23}, v{own + 8}')
        e(f'v_cmp_lt_u32 vcc, {120 << 23}, v{R}')
        e('s_cbranch_vccnz Lsafe')
        e.label('Lsafe_done')
        self.tail_blocks.append(self.safe_softmax)
        e(f'v_mul_f32 v{R}, v{own + 8}, v{vCO}')
        e(f'v_rcp_f32 v{R}, v{R}')
        for r in range(8):
            e(f'v_mul_f32 v{own + r}, v{own + r}, v{R}')
        for r in range(4):
            e(f'v_cvt_pk_bf16_f32 v{own + r}, v{own + 2 * r}, v{own + 2 * r + 1}')
        for r in range(4):
            e(f'v_min_u32 v{own + r}, -2, v{own + r}')
        e(f'buffer_store_dwordx4 {vr(own, 4)}, v{vL16}, {srd(S_WS)}, s{sT} offen sc1', 'ost')
        self.stamp(10)
        e('s_barrier')
        WO = vO[0]
        e.wait(vm='wo')
        for k in range(4):
            for jj in range(2):
                for rd in range(2):
                    e(f'ds_read_b64_tr_b16 {vr(WO + 8 * k + 4 * jj + 2 * rd, 2)}, v{vDR[jj]} offset:{2048 * k + 1024 * rd}', 'wor')
        e(f's_lshl_b32 s{sT}, s{sW}, 18')
        e(f's_lshl_b32 s{sT + 1}, s{sRB}, 11')
        e(f's_add_u32 s{sT}, s{sT}, s{sT + 1}')
        e(f's_add_u32 s{sT}, s{sT}, {WS_O}')
        for k in range(1, 4):
            e(f's_add_u32 s{sT + k}, s{sT}, {65536 * k}')
        e(f'v_lshrrev_b32 v{vPA}, 1, v0')
        e(f'v_lshlrev_b32 v{vPA}, 16, v{vPA}')
        e(f'v_and_b32 v{vP}, 1, v0')
        e(f'v_lshl_add_u32 v{vPA}, v{vP}, 10, v{vPA}')
        vFW, vFRd = 10, 12
        e(f'v_and_b32 v{vFW}, 31, v0')
        e(f'v_lshrrev_b32 v{vP}, 5, v0')
        e(f'v_and_b32 v{vP + 1}, 7, v0')
        e(f'v_xor_b32 v{vP}, v{vP}, v{vP + 1}')
        e(f'v_lshlrev_b32 v{vP}, 4, v{vP}')
        e(f'v_lshl_add_u32 v{vFW}, v{vFW}, 8, v{vP}')
        e(f'v_add_u32 v{vFW}, s{sMD}, v{vFW}')
        e(f'v_lshrrev_b32 v{vP}, 3, v0')
        e(f'v_lshlrev_b32 v{vP + 1}, 1, v{vP + 1}')
        e(f'v_xor_b32 v{vP + 1}, v{vP + 1}, v{vP}')
        e(f'v_lshlrev_b32 v{vP + 1}, 4, v{vP + 1}')
        e(f'v_lshl_add_u32 v{vFRd}, v{vP}, 8, v{vP + 1}')
        e(f's_lshl_b32 s{sT + 4}, s{sW}, 11')
        e(f'v_add_u32 v{vFRd}, s{sT + 4}, v{vFRd}')
        e(f'v_xor_b32 v{vFRd + 1}, 16, v{vFRd}')
        e.wait(vm='all')
        e('s_mov_b64 exec, 0xff')
        ld = lambda: e(f'buffer_load_dword v{vP}, v{vPA}, {srd(S_WS)}, s{sT} offen offset:1020 sc1')
        ck = lambda: e(f'v_cmp_eq_u32 vcc, -1, v{vP}')
        ld()
        e.wait(vm='all')
        self.spin('p3', ld, ck)
        e('s_mov_b64 exec, -1')
        self.stamp(11)
        OF = vS[0]

        def old(k, tag=None):
            for i in range(2):
                e(f'buffer_load_dwordx4 {vr(OF + 8 * k + 4 * i, 4)}, v{vL16}, {srd(S_WS)}, s{sT + k} offen offset:{1024 * i} sc1', tag)

        for k in range(4):
            old(k, f'o{k}')
        e.wait(lg='all')
        for k in range(4):
            e.wait(vm=f'o{k}')

            def ck(k=k):
                b = OF + 8 * k
                e(f'v_max3_u32 v{vP}, v{b}, v{b + 1}, v{b + 2}')
                e(f'v_max3_u32 v{vP + 1}, v{b + 3}, v{b + 4}, v{b + 5}')
                e(f'v_max3_u32 v{vP}, v{vP}, v{b + 6}, v{b + 7}')
                e(f'v_max_u32 v{vP}, v{vP}, v{vP + 1}')
                e(f'v_cmp_eq_u32 vcc, -1, v{vP}')
            self.spin(f'o{k}', lambda k=k: old(k), ck)
            for i in range(2):
                for jj in range(2):
                    acc = vr(vG[i * 2 + jj], 16)
                    e(f'v_mfma_f32_32x32x16_bf16 {acc}, {vr(WO + 8 * k + 4 * jj, 4)}, {vr(OF + 8 * k + 4 * i, 4)}, {acc}')
        self.stamp(12)
        for q in range(1, 4):
            e(f'v_xor_b32 v{FR + q}, {32 * q}, v{vFW}')
        for i in range(2):
            for jj in range(2):
                for q in range(4):
                    a = vFW if q == 0 else FR + q
                    e(f'ds_write_b128 v{a}, {vr(vG[i * 2 + jj] + 4 * q, 4)} offset:{8192 * i + 128 * jj}', 'fw')
        e(f'v_lshrrev_b32 v{vP}, 3, v0')
        e(f'v_and_b32 v{vP + 1}, 7, v0')
        e(f'v_lshlrev_b32 v{vP + 1}, 4, v{vP + 1}')
        e(f'v_lshl_add_u32 v{vPA}, v{vP}, 10, v{vP + 1}')
        e(f's_lshl_b32 s{sT}, s{sRB}, 3')
        e(f's_add_u32 s{sT}, s{sT}, s{sW}')
        e(f's_lshl_b32 s{sT}, s{sT}, 13')
        e(f's_lshl_b32 s{sT + 1}, s{sCB}, 7')
        e(f's_add_u32 s{sT}, s{sT}, s{sT + 1}')
        e.wait(lg='all')
        e('s_barrier')
        wr = Win(e, [vFRd, vFRd + 1])
        B = X
        for p in range(8):
            wr.ensure(p * WREG, p * WREG)
            for h in range(2):
                e(f'ds_read_b128 {vr(B + 8 * p + 4 * h, 4)}, v{vFRd + h} offset:{wr.off(p * WREG)}', f'fr{p}')
        for p in range(1, 8):
            e.wait(lg=f'fr{p}')
            for r in range(8):
                e(f'v_add_f32 v{B + r}, v{B + r}, v{B + 8 * p + r}')
        for r in range(4):
            e(f'v_cvt_pk_bf16_f32 v{B + r}, v{B + 2 * r}, v{B + 2 * r + 1}')
        e(f'buffer_store_dwordx4 {vr(B, 4)}, v{vPA}, {srd(S_OUT)}, s{sT} offen')
        if 'probe' in self.opt:
            e.wait(vm='all')
            self.stamp(13)
            e.label('Lprobe')
            e('s_sleep 1')
            e(f's_memrealtime s[{sSTMP}:{sSTMP + 1}]')
            e('s_waitcnt lgkmcnt(0)')
            e(f's_sub_u32 s{sSTMP}, s{sSTMP}, s{sSTAMP}')
            e(f's_cmp_lt_u32 s{sSTMP}, 6000')
            e('s_cbranch_scc1 Lprobe')
        if self.stamps:
            e.wait(vm='all')
            self.stamp(13)
            e(f's_lshl_b32 s{sT}, s2, 3')
            e(f's_add_u32 s{sT}, s{sT}, s{sW}')
            e(f's_lshl_b32 s{sT}, s{sT}, 6')
            e(f's_add_u32 s{sT}, s{sT}, {WS_ST}')
            for i in range(14):
                e(f'v_mov_b32 v{B + 8 + i}, s{sSTAMP + i}')
            e(f'v_mov_b32 v{B + 22}, s85')
            e(f'v_mov_b32 v{B + 23}, s{sSTMP}')
            e('s_mov_b64 exec, 1')
            for i in range(4):
                e(f'buffer_store_dwordx4 {vr(B + 8 + 4 * i, 4)}, off, {srd(S_WS)}, s{sT} offset:{16 * i}')
        e.label('Lexit')
        e('s_endpgm')

    def safe_softmax(self):
        e = self.e
        e.paths = [p for p in Emitter().paths]
        own = vO[3]
        M = vO[0]
        S = vS[0]
        e.label('Lsafe')
        e(f's_and_b32 s{sT + 2}, s{sKVB}, {0xffffffff ^ (3 << 15)}')
        e(f's_mov_b32 s{sT + 3}, s{sT + 2}')
        e(f's_mov_b32 s{sT + 4}, 64')
        e(f'v_mov_b32 v{M}, 0xff800000')
        e.label('Lsafe1')
        e(f'buffer_load_dwordx4 {vr(vK[0], 4)}, v{vL16}, {srd(S_WS)}, s{sT + 3} offen sc1')
        e(f's_add_u32 s{sT + 3}, s{sT + 3}, 2048')
        e('s_waitcnt vmcnt(0)')
        e(f'v_mfma_f32_32x32x16_bf16 {vr(S, 16)}, {vr(vK[0], 4)}, {vr(vQ[3], 4)}, 0')
        for i in range(0, 16, 2):
            e(f'v_max3_f32 v{M}, v{M}, v{S + i}, v{S + i + 1}')
        e(f's_sub_u32 s{sT + 4}, s{sT + 4}, 1')
        e(f's_cmp_lg_u32 s{sT + 4}, 0')
        e('s_cbranch_scc1 Lsafe1')
        e(f'v_mov_b32 v{M + 1}, v{M}')
        e(f'v_permlane32_swap_b32 v{M}, v{M + 1}')
        e(f'v_max_f32 v{M}, v{M}, v{M + 1}')
        e(f'v_sub_f32 v{M}, 0, v{M}')
        for i in range(1, 16):
            e(f'v_mov_b32 v{M + i}, v{M}')
        for i in range(16):
            e(f'v_mov_b32 v{own + i}, 0')
        e(f's_mov_b32 s{sT + 3}, s{sT + 2}')
        e(f's_mov_b32 s{sT + 4}, 64')
        e.label('Lsafe2')
        e(f'buffer_load_dwordx4 {vr(vK[0], 4)}, v{vL16}, {srd(S_WS)}, s{sT + 3} offen sc1')
        e(f's_mov_b64 exec, s[{sVM}:{sVM + 1}]')
        e(f'buffer_load_dwordx4 {vr(vV[0], 4)}, v{vVA}, {srd(S_WS)}, s{sT + 3} offen offset:1024 sc1')
        e(f'buffer_load_dwordx4 {vr(vV[0] + 4, 4)}, v{vVA}, {srd(S_WS)}, s{sT + 3} offen offset:1536 sc1')
        e('s_mov_b64 exec, -1')
        e(f's_add_u32 s{sT + 3}, s{sT + 3}, 2048')
        e('s_waitcnt vmcnt(0)')
        e(f'v_mfma_f32_32x32x16_bf16 {vr(S, 16)}, {vr(vK[0], 4)}, {vr(vQ[3], 4)}, {vr(M, 16)}')
        for i in range(16):
            e(f'v_exp_f32 v{S + i}, v{S + i}')
        for hi in range(2):
            e(f'v_smfmac_f32_32x32x32_bf16 {vr(own, 16)}, {vr(vV[0] + 4 * hi, 4)}, {vr(S + 8 * hi, 8)}, v{vIDX}')
        e(f's_sub_u32 s{sT + 4}, s{sT + 4}, 1')
        e(f's_cmp_lg_u32 s{sT + 4}, 0')
        e('s_cbranch_scc1 Lsafe2')
        e('s_nop 15')
        e('s_branch Lsafe_done')

    def build(self):
        e = self.e
        self.prologue()
        e('s_cbranch_scc0 Lcomp')
        snap = e.snapshot()
        self.phase_a_loader()
        e('s_branch Lffn')
        ends = e.snapshot()
        e.restore(snap)
        e.label('Lcomp')
        self.compute_prologue()
        e(f's_cmp_ge_u32 s{sJ}, 11')
        e('s_cbranch_scc1 Lvvv')
        e(f's_cmp_eq_u32 s{sJ}, 10')
        e('s_cbranch_scc1 Lnnv')
        snap = e.snapshot()
        cends = []
        for lab, types in ((None, (0, 0, 0)), ('Lnnv', (0, 0, 1)), ('Lvvv', (1, 1, 1))):
            e.restore(snap)
            if lab:
                e.label(lab)
            self.phase_a_compute(types)
            if lab != 'Lvvv':
                e('s_branch Lqkve')
            cends += e.snapshot()
        e.paths = cends
        e.label('Lqkve')
        self.qkv_epilogue()
        e.paths = e.paths + ends
        e.label('Lffn')
        self.phase_f()
        self.attention()
        self.tail()
        i = 0
        while i < len(self.tail_blocks):
            self.tail_blocks[i]()
            i += 1
        e.label('Lcode_end')
        return self.wrap()

    def wrap(self):
        head = open('gated_mix__softmax_full_mha__glu_gated_geglu__prompt.s.ref').read().split('; Override')[0]
        return head + f"""; @launch grid=(256,1,1) block=(512,1,1) lds={LDS_BYTES}
.amdgcn_target "amdgcn-amd-amdhsa--gfx950"
.text
.globl {KNAME}
.p2align 8
.type {KNAME},@function
{KNAME}:
{self.e.text()}
.section .rodata,"a"
.p2align 6
.amdhsa_kernel {KNAME}
  .amdhsa_next_free_vgpr 256
  .amdhsa_next_free_sgpr 102
  .amdhsa_accum_offset 256
  .amdhsa_group_segment_fixed_size 0
  .amdhsa_kernarg_size 88
  .amdhsa_user_sgpr_count 2
  .amdhsa_user_sgpr_kernarg_segment_ptr 1
  .amdhsa_system_sgpr_workgroup_id_x 1
.end_amdhsa_kernel
"""


if __name__ == '__main__':
    out = sys.argv[1]
    stamps = sys.argv[2] if len(sys.argv) > 2 and sys.argv[2] in ('rt', 'cy') else False
    opt = {}
    for a in sys.argv[2:]:
        if '=' in a:
            k, v = a.split('=')
            opt[k] = int(v)
    g = Gen(stamps=stamps, opt=opt)
    open(out, 'w').write(g.build())
    print('nops inserted:', g.e.nops, 'lines:', len(g.e.lines))
```

```python
import sys, math, struct
from asmlib import Emitter, Win

KNAME = 'gated_mix__softmax_full_mha__glu_gated_geglu__prompt_kernel'

WS_Q = 0
WS_KV = 2 << 20
WS_O = 6 << 20
WS_F1 = 8 << 20
WS_F2 = WS_F1 + 8192
WS_ST = WS_F1 + 65536
WS_H = 9 << 20
WS_END = 15 << 20

L_GW = 0
L_Z = 1024
SLOT0 = 4096
SLOT = 32768
NSLOT = 4
UPOFF = 12288
L_RING = 4096
RINGW = 7168
L_WO = 69632
L_CNT = 161792
LDS_BYTES = 163840

S_X, S_WQ, S_WF, S_WS, S_H, S_WD, S_WO, S_OUT, S_DBG, S_GW = [4 * i + 4 for i in range(10)]
S_WG = 80
sW, sTT, sG, sJ, sTB, sRB, sCB, sUS = range(44, 52)
sXO, sWO, sFO, sMX, sMW, sMF = range(52, 58)
sNON = 58
sKV, sKVB, sKVI, sHO, sDO, sMD = range(60, 66)
sVM = 66
sT = 68
sGC = 76
sQO = 78
sXO2 = 79
sSPIN = 84
sMO = 85
sMG = 3
sR = 73
sE0, sE1, sE2 = 4, 5, 6
sSTMP = 86
sSTAMP = 88


def srd(b):
    return f's[{b}:{b + 3}]'


def vr(b, n):
    return f'v[{b}:{b + n - 1}]' if n > 1 else f'v{b}'


def fbits(x):
    return '0x%08x' % struct.unpack('<I', struct.pack('<f', x))[0]


vL16 = 1
vXD = [2, 3]
vWD = 4
vFD = 5
vXR = [6, 7]
vWR = [8, 2]
vFR = [9, 10, 11]
FR = 16
NFR = 5
ACA = 36
ACF = 68
vK = [116, 120]
vCH, vIDX, vVA = 124, 126, 127
X = 128
vO = [X + 16 * i for i in range(4)]
vQ = [X + 64 + 4 * i for i in range(4)]
vV = [ACA, ACA + 8]
vS = [ACA + 16, X + 80]
vG = [ACF, ACF + 16, ACF + 32, X + 96]
vH = [X + 112, X + 120]
vD = FR
vCO = FR + 8
vDD = [2, 3]
vDR = [12, 13]
vP = 14
vPA = 6
vRW = [7, 8]

LOG2E = 1.4426950408889634
QSCALE = 0.25 * LOG2E
GC0 = -2.0 * LOG2E * math.sqrt(2.0 / math.pi)
GC1 = GC0 * 0.044715
SPIN = 400000


class Gen:
    def __init__(self, stamps=False, opt=None):
        self.e = Emitter()
        self.stamps = stamps
        self.nst = 0
        self.opt = dict(g2start=5, prio=True, ahead=8, span=8, lfirst=3, p1i=84, p1c=95, fk=3, gk=5, lpre=80, cpre=80,
                        oz=9, pa=0, pb=8, pc=56, qw=12, q0=0, qsp=2, vi=40, tch=64, om=56, lonly=11, kv1=1, s2t=6, rot=4)
        if opt:
            self.opt.update(opt)
        self.tail_blocks = []

    def stamp(self, idx, sset=0):
        e = self.e
        if 7 <= idx <= 12 and sset != self.opt.get('sset', 0):
            return
        if self.opt.get('probe') == idx:
            e(f's_memrealtime s[{sSTAMP}:{sSTAMP + 1}]')
            e('s_waitcnt lgkmcnt(0)')
            for p in e.paths:
                p.lg = []
        if not self.stamps or not (self.opt.get('smask', 0x2001) | 0x2001) >> idx & 1:
            return
        en = [i for i in range(14) if (self.opt.get('smask', 0x2001) | 0x2001) >> i & 1]
        assert len(en) <= 7
        r = sSTAMP + 2 * en.index(idx)
        e(f"{'s_memtime' if self.stamps == 'cy' else 's_memrealtime'} s[{r}:{r + 1}]")

    def dma_list(self, s, ty):
        e = self.e
        slot = SLOT0 + SLOT * (s % NSLOT)
        out = []
        tag = f'st{s}'

        def mk(m0s, m0c, va, rs, so, imm=0, pre=()):
            def f():
                e(f's_add_u32 m0, s{m0s}, {m0c - imm}')
                for p in pre:
                    e(p)
                e(f'buffer_load_dwordx4 v{va}, {srd(rs)}, s{so} offen' + (f' offset:{imm}' if imm else '') + ' lds', tag)
            out.append(f)
        t = sT + 6

        def step(so, n):
            return [f's_cmp_eq_u32 s{sR}, {-s % 8}', f's_cselect_b32 s{t}, -7, 1', f's_mul_i32 s{t}, s{t}, {n}', f's_add_u32 s{so}, s{so}, s{t}']
        if s < 8:
            for i in range(4):
                mk(sMX, slot + i * 1024, vXD[i % 2], S_X, sXO if i < 2 else sXO2,
                   pre=step(sXO, 128) if i == 0 and s else ([f's_add_u32 s{sXO2}, s{sXO}, 16384'] if i == 1 else ()))
            for i in range(4 if ty else 2):
                mk(sMW, slot + 16384 + i * 1024, vWD, S_WQ, sWO, imm=64 * i, pre=step(sWO, 64 * 3072) if i == 0 and s else ())
        else:
            for i in range(3):
                mk(sMF, slot + i * 1024, vFD, S_WF, sFO, imm=64 * i, pre=step(sFO, 64 * 2752) if i == 0 and s > 8 else ())
            if s <= self.opt['lonly']:
                for i in range(3):
                    mk(sMG, slot + i * 1024, vFD, S_WG, sFO, imm=64 * i)
        return out

    def prologue(self):
        e = self.e
        self.stamp(0)
        e('s_cmp_ge_u32 s2, 256')
        e('s_cbranch_scc1 Lexit')
        e(f's_load_dwordx2 s[{S_X}:{S_X + 1}], s[0:1], 0')
        e(f's_load_dwordx2 s[{S_WQ}:{S_WQ + 1}], s[0:1], 8')
        e(f's_getpc_b64 s[{sT}:{sT + 1}]')
        e.label('Lpfbase')
        e(f's_lshr_b32 s{sT + 2}, s2, 3')
        e(f's_lshl_b32 s{sT + 2}, s{sT + 2}, 11')
        e(f'v_lshl_add_u32 v16, v0, 2, s{sT + 2}')
        e('v_min_u32 v16, Lcode_end-Lpfbase-4, v16')
        e('v_lshrrev_b32 v2, 6, v0')
        e('s_mov_b32 exec_lo, 1')
        e('s_mov_b32 exec_hi, 1')
        e(f'global_load_dword v{vK[1]}, v16, s[{sT}:{sT + 1}]', 'pf')
        e('s_mov_b64 exec, -1')
        e(f'v_readfirstlane_b32 s{sW}, v2')
        e('v_and_b32 v0, 63, v0')
        e(f's_xor_b32 s{sW}, s{sW}, 4')
        e(f's_and_b32 s{sTT}, s{sW}, 3')
        e(f's_lshr_b32 s{sG}, s{sW}, 2')
        e('s_cbranch_scc1 Lload')
        e('s_bitcmp1_b32 s2, 3')
        e('s_cbranch_scc1 Lcomp1')
        e('s_branch Lcomp0')

    def more_args(self, g):
        e = self.e
        lst = [(S_GW, 56), (S_WG, 32), (S_WF, 40)] if g else [(S_WF, 32)]
        for b, off in lst + [(S_DBG, 72), (S_WS, 80), (S_H, 80), (S_WD, 48), (S_WO, 16), (S_OUT, 64)]:
            e(f's_load_dwordx2 s[{b}:{b + 1}], s[0:1], {off}')
        e(f'v_lshlrev_b32 v{vL16}, 4, v0')
        e(f's_and_b32 s{sTB}, s2, 4')
        e(f's_lshl_b32 s{sTB}, s{sTB}, 1')
        e(f's_lshr_b32 s{sT + 6}, s2, 5')
        e(f's_add_u32 s{sTB}, s{sTB}, s{sT + 6}')
        e(f's_and_b32 s{sJ}, s2, 3')
        e(f's_lshl_b32 s{sJ}, s{sJ}, 2')
        e(f's_bfe_u32 s{sT + 6}, s2, 0x20003')
        e(f's_add_u32 s{sJ}, s{sJ}, s{sT + 6}')
        R = self.opt['rot']
        e(f's_and_b32 s{sR}, s{sTB}, {R - 1}')
        e(f's_mul_i32 s{sR}, s{sR}, {8 // R}')

    def quad_rows(self, dst, stride, t):
        e = self.e
        e(f'v_lshrrev_b32 v{t}, 4, v0')
        e(f'v_and_b32 v{t}, 2, v{t}')
        e(f'v_xor_b32 v{t}, v{t}, v0')
        e(f'v_and_b32 v{t}, 3, v{t}')
        e(f'v_lshrrev_b32 v{dst}, 2, v0')
        e(f'v_mul_u32_u24 v{dst}, {stride}, v{dst}')
        e(f'v_lshl_add_u32 v{dst}, v{t}, 4, v{dst}')

    def tr_base(self, dst, gstride, t):
        e = self.e
        e(f'v_lshrrev_b32 v{dst}, 5, v0')
        e(f'v_mul_u32_u24 v{dst}, {gstride}, v{dst}')
        e(f'v_bfe_u32 v{t}, v0, 4, 1')
        e(f'v_mul_u32_u24 v{t}, {512 + 32}, v{t}')
        e(f'v_add_u32 v{dst}, v{dst}, v{t}')
        e(f'v_bfe_u32 v{t}, v0, 2, 2')
        e(f'v_lshl_add_u32 v{dst}, v{t}, 6, v{dst}')
        e(f'v_and_b32 v{t}, 3, v0')
        e(f'v_lshl_add_u32 v{dst}, v{t}, 3, v{dst}')

    def srd_consts(self, lst):
        for b, n in lst:
            self.e(f's_mov_b32 s{b + 2}, {n}')
            self.e(f's_mov_b32 s{b + 3}, 0x20000')

    def x_read_addrs(self):
        e = self.e
        e('v_and_b32 v16, 15, v0')
        e(f's_lshl_b32 s{sT + 6}, s{sTT}, 12')
        e('v_lshrrev_b32 v17, 4, v0')
        e('v_lshrrev_b32 v18, 1, v16')
        e('v_xor_b32 v18, v18, v17')
        e('v_lshlrev_b32 v18, 4, v18')
        e('v_lshl_add_u32 v18, v16, 7, v18')
        e(f'v_add_u32 v{vXR[0]}, s{sT + 6}, v18')
        e(f'v_xor_b32 v{vXR[1]}, 64, v{vXR[0]}')

    def nchains(self, g, ty):
        return 2 if (ty and g == 0) else 3

    def setup2(self, g, ty):
        e = self.e
        t = sT
        self.srd_consts(([(S_WG, 512 * 2752), (S_DBG, 256)] if g else []) +
                        [(S_WF, 512 * 2752), (S_WS, WS_END), (S_H, 86 * 65536), (S_WD, 1376 * 1024), (S_WO, 512 * 1024), (S_OUT, 2048 * 1024)])
        e(f's_lshr_b32 s{sUS}, s{sJ}, 2')
        e(f's_mul_i32 s{sUS}, s{sUS}, 22')
        e(f's_bfe_u32 s{t}, s{sJ}, 0x10001')
        e(f's_mul_i32 s{t}, s{t}, {5 if ty else 16}')
        e(f's_add_u32 s{sUS}, s{sUS}, s{t}')
        if ty:
            e(f's_add_u32 s{sUS}, s{sUS}, 6')
        else:
            e(f's_min_u32 s{sUS}, s{sUS}, 80')
        e(f's_mul_i32 s{sFO}, s{sTT}, {16 * 2752}')
        e(f's_lshr_b32 s{t}, s{sUS}, 1')
        e(f's_lshl_b32 s{t}, s{t}, 6')
        e(f's_add_u32 s{sFO}, s{sFO}, s{t}')
        e(f's_add_u32 s{t}, s{sR}, {0 if g else self.opt["lonly"] - 8}')
        e(f's_and_b32 s{t}, s{t}, 7')
        e(f's_mul_i32 s{t}, s{t}, {64 * 2752}')
        e(f's_add_u32 s{sFO}, s{sFO}, s{t}')
        e(f's_mul_i32 s{sMG}, s{sTT}, 3072')
        e(f's_add_u32 s{sMF}, s{sMG}, {g * UPOFF}')
        self.quad_rows(vFD, 2752, vP)
        first = g * self.nchains(0, ty)
        self.tr_base(vP + 1, 3072, vP)
        for c in range(self.nchains(g, ty)):
            if ty:
                e(f's_and_b32 s{t}, s{sUS}, 1')
                e(f's_add_u32 s{t}, s{t}, {first + c}')
                e(f's_lshr_b32 s{t + 1}, s{t}, 1')
                e(f's_lshl_b32 s{t + 1}, s{t + 1}, 10')
                e(f's_and_b32 s{t}, s{t}, 1')
                e(f's_lshl_b32 s{t}, s{t}, 5')
                e(f'v_xor_b32 v{vFR[c]}, s{t}, v{vP + 1}')
                e(f'v_add_u32 v{vFR[c]}, s{t + 1}, v{vFR[c]}')
            else:
                u = first + c
                e(f'v_xor_b32 v{vFR[c]}, {(u & 1) * 32}, v{vP + 1}')
                e(f'v_add_u32 v{vFR[c]}, {(u >> 1) * 1024}, v{vFR[c]}')
        e(f's_add_u32 s{S_H}, s{S_H}, {WS_H}\n    s_addc_u32 s{S_H + 1}, s{S_H + 1}, 0')
        e(f's_and_b32 s{sRB}, s2, 7')
        e(f's_lshl_b32 s{sRB}, s{sRB}, 2')
        e(f's_lshr_b32 s{t}, s2, 6')
        e(f's_add_u32 s{sRB}, s{sRB}, s{t}')
        e(f's_bfe_u32 s{sCB}, s2, 0x30003')
        e(f's_mov_b32 s{sVM}, 0xffff')
        e(f's_mov_b32 s{sVM + 1}, 0xffff')
        e(f's_mov_b32 s{sGC}, {fbits(GC1)}')
        e(f's_mov_b32 s{sGC + 1}, s{sGC}')
        e(f'v_and_b32 v{vVA}, 15, v0')
        e(f'v_lshrrev_b32 v{vP}, 5, v0')
        e(f'v_lshl_add_u32 v{vVA}, v{vP}, 4, v{vVA}')
        e(f'v_lshlrev_b32 v{vVA}, 4, v{vVA}')
        e(f'v_mov_b32 v{vIDX}, 0xdddddddd')
        e(f's_lshl_b32 s{t}, s{sTB}, 2')
        e(f's_add_u32 s{t}, s{t}, s{sTT}')
        e(f's_add_u32 s{sHO}, s{sUS}, {first}')
        e(f's_lshl_b32 s{sHO}, s{sHO}, 6')
        e(f's_add_u32 s{sHO}, s{sHO}, s{t}')
        e(f's_lshl_b32 s{sHO}, s{sHO}, 10')
        e(f's_add_u32 s{sHO}, s{sHO}, {WS_H}')
        e(f's_lshl_b32 s{sQO}, s{sJ}, 7')
        e(f's_add_u32 s{sMO}, s{sQO}, s{t}')
        e(f's_lshl_b32 s{sMO}, s{sMO}, 10')
        e(f's_add_u32 s{sMO}, s{sMO}, {g * 65536}')
        e(f's_and_b32 s{sQO}, s{sMO}, {0xffffffff ^ 0xc00}')
        e(f's_add_u32 s{sMO}, s{sMO}, {WS_O}')
        if g == 0:
            e(f's_lshr_b32 s{t + 1}, s{sJ}, 1')
            if ty:
                e(f's_and_b32 s{sE0}, s{t + 1}, 3')
                e(f's_lshl_b32 s{sE0}, s{sE0}, 9')
                e(f's_add_u32 s{sE0}, s{sE0}, s{t}')
                e(f's_cmp_lt_u32 s{t + 1}, 4\n    s_cselect_b32 s{sE2}, {fbits(QSCALE)}, 1.0\n    s_cselect_b32 s{t + 1}, 10, 11\n    s_cselect_b32 s{t + 2}, {WS_Q}, {WS_KV}')
                e(f's_lshl_b32 s{sE0}, s{sE0}, s{t + 1}')
                e(f's_lshl_b32 s{sE1}, 64, s{t + 1}')
                e(f's_add_u32 s{sE0}, s{sE0}, s{t + 2}')
            else:
                e(f's_lshl_b32 s{sE0}, s{t + 1}, 8')
                e(f's_add_u32 s{sE0}, s{sE0}, s{t}')
                e(f's_lshl_b32 s{sE0}, s{sE0}, 11')
                e(f's_add_u32 s{sE0}, s{sE0}, {WS_KV}')
                e(f's_add_u32 s{sE1}, s{sE0}, {2 * 131072}')
                e(f'v_bfe_u32 v{vWD}, v0, 4, 1')
                e(f'v_lshl_add_u32 v{vWD}, v{vWD}, 17, v{vVA}')
        e(f's_lshl_b32 s{sKVB}, s{sJ}, 3')
        e(f's_add_u32 s{sKVB}, s{sKVB}, s{sW}')
        e(f's_lshl_b32 s{sKVB}, s{sKVB}, 15')
        e(f's_add_u32 s{sKVB}, s{sKVB}, {WS_KV}')
        e(f's_and_b32 s{sKVI}, s{sTB}, 7')
        e(f's_lshl_b32 s{sKVI}, s{sKVI}, 12')
        e(f's_mul_i32 s{sMD}, s{sW}, {RINGW}')
        e(f's_mul_i32 s{sDO}, s{sW}, {11 * 16384}')
        e(f's_lshl_b32 s{t}, s{sCB}, 7')
        e(f's_add_u32 s{sDO}, s{sDO}, s{t}')
        e(f'v_lshrrev_b32 v{vDR[0]}, 5, v0')
        e(f'v_bfe_u32 v{vP}, v0, 2, 2')
        e(f'v_lshl_add_u32 v{vDR[0]}, v{vDR[0]}, 3, v{vP}')
        e(f'v_lshlrev_b32 v{vDR[0]}, 7, v{vDR[0]}')
        e(f'v_bfe_u32 v{vP}, v0, 4, 1')
        e(f'v_lshl_add_u32 v{vDR[0]}, v{vP}, 5, v{vDR[0]}')
        e(f'v_bfe_u32 v{vP}, v0, 3, 1')
        e(f'v_lshl_add_u32 v{vDR[0]}, v{vP}, 6, v{vDR[0]}')
        e(f'v_and_b32 v{vP}, 3, v0')
        e(f'v_lshl_add_u32 v{vDR[0]}, v{vP}, 3, v{vDR[0]}')
        e(f'v_add_u32 v{vDR[0]}, s{sMD}, v{vDR[0]}')
        e(f'v_xor_b32 v{vDR[1]}, 64, v{vDR[0]}')

    def loader_head(self):
        e = self.e
        self.more_args(1)
        e('v_lshrrev_b32 v16, 3, v0')
        e('v_lshrrev_b32 v17, 4, v0')
        e('v_and_b32 v18, 7, v0')
        e('v_xor_b32 v18, v18, v17')
        e('v_lshlrev_b32 v18, 4, v18')
        e(f'v_lshl_add_u32 v{vXD[0]}, v16, 10, v18')
        e(f'v_xor_b32 v{vXD[1]}, 64, v{vXD[0]}')
        e(f'v_add_u32 v{vXD[1]}, 8192, v{vXD[1]}')
        e(f's_lshl_b32 s{sXO}, s{sTB}, 2')
        e(f's_add_u32 s{sXO}, s{sXO}, s{sTT}')
        e(f's_lshl_b32 s{sXO}, s{sXO}, 8')
        e(f's_add_u32 s{sXO}, s{sXO}, s{sR}')
        e(f's_lshl_b32 s{sXO}, s{sXO}, 7')
        e(f's_lshl_b32 s{sMX}, s{sTT}, 12')
        self.srd_consts(((S_X, 2048 * 1024), (S_WQ, 512 * 3072), (S_GW, 1024)))
        self.quad_rows(vWD, 3072, 16)
        e(f's_lshr_b32 s{sT}, s{sJ}, 1')
        e(f's_and_b32 s{sT + 1}, s{sJ}, 1')
        e(f's_cselect_b32 s{sT + 2}, 0, 2048')
        e(f's_add_u32 s{sT + 3}, s{sT + 1}, 7')
        e(f's_lshl_b32 s{sT}, s{sT}, s{sT + 3}')
        e(f's_add_u32 s{sT}, s{sT}, s{sT + 2}')
        e(f's_lshl_b32 s{sWO}, s{sR}, 2')
        e(f's_add_u32 s{sWO}, s{sWO}, s{sTT}')
        e(f's_mul_i32 s{sWO}, s{sWO}, {16 * 3072}')
        e(f's_add_u32 s{sWO}, s{sWO}, s{sT}')
        e(f's_add_u32 s{sT + 3}, s{sT + 1}, 11')
        e(f's_lshl_b32 s{sMW}, s{sTT}, s{sT + 3}')
        e('s_waitcnt lgkmcnt(0)')
        self.stamp(1)
        for f in self.dma_list(0, 0):
            f()
        e(f's_lshl_b32 s{sT}, s{sR}, 7')
        e(f'v_add_u32 v16, s{sT}, v{vL16}')
        e('v_and_b32 v16, 1023, v16')
        e(f's_mov_b32 m0, {L_GW}')
        e('s_bitcmp1_b32 s2, 3')
        e(f'buffer_load_dwordx4 v16, {srd(S_GW)}, 0 offen lds', 'st0')
        e('s_cbranch_scc0 Lload0')

    def phase_a_loader(self, ty):
        e = self.e
        GWB = FR
        ZA = ACA
        seq = []
        bound = []
        for s in range(10):
            bound.append(len(seq))
            seq += self.dma_list(s, ty)
        bound += [len(seq)] * 2
        pos = 6

        def issue(upto):
            nonlocal pos
            while pos < min(upto, len(seq)):
                seq[pos]()
                pos += 1
        issue(12)
        self.x_read_addrs()
        e(f'v_and_b32 v{vWR[0]}, 48, v0')
        fill = self.split(lambda: self.setup2(1, ty))
        for _ in range(self.opt['lpre']):
            fill.pop(0)()
        D = self.opt['ahead']
        issue(bound[1] + D)
        wx = Win(e, vXR)
        for s in range(8):
            slot = SLOT0 + SLOT * (s % NSLOT)
            e.wait(vm=f'st{s}')
            e('s_barrier')
            if s in (0, 4):
                self.stamp(2 + s // 4)
            end = min(bound[s + 2] + D, bound[max(s + 3, 4)])
            issue(min(end, pos + self.opt['lfirst']))
            wx.ensure(slot, slot + 2048)
            for ks in range(2):
                n = 2 * s + ks
                e(f'ds_read_b128 {vr(GWB + 4 * ks, 4)}, v{vWR[0]} offset:{L_GW + 64 * n}', f'r{n}')
                for tg in range(2):
                    e(f'ds_read_b128 {vr(X + 8 * n + 4 * tg, 4)}, v{vXR[ks]} offset:{wx.off(slot + 2048 * tg)}', f'r{n}')
            if s == 5:
                e(f'buffer_load_dwordx2 v[{vK[0]}:{vK[0] + 1}], off, {srd(S_DBG)}, 0 sc1', 'non')
            issue(end)
            for ks in range(2):
                n = 2 * s + ks
                e.wait(lg=f'r{n}')
                for tg in range(2):
                    z = vr(ZA + 4 * tg, 4)
                    e(f'v_mfma_f32_16x16x32_bf16 {z}, {vr(GWB + 4 * ks, 4)}, {vr(X + 8 * n + 4 * tg, 4)}, {z if n else 0}')
            for _ in range(40):
                if fill:
                    fill.pop(0)()
            if s == 3:
                assert not fill
        assert pos == len(seq)
        e(f'v_and_b32 v{ZA + 8}, 16, v0')
        e(f'v_cmp_eq_u32 vcc, 0, v{ZA + 8}')
        e(f's_lshl_b32 s{sT + 1}, s{sTT}, 8')
        e(f'v_lshl_add_u32 v{ZA + 8}, v0, 2, s{sT + 1}')
        e(f'v_cndmask_b32 v{ZA}, v{ZA + 4}, v{ZA}, vcc')
        e(f'ds_write_b32 v{ZA + 8}, v{ZA} offset:{L_Z}', 'zw')
        e.wait(vm='st8')
        e('s_barrier')
        self.stamp(4)

    def qkv_acc(self, ty, ct, tg):
        if ty:
            return (ACF + 8 * ct if ct < 6 else ACA + 16 + 8 * (ct - 6)) + 4 * tg
        return ACA + 16 * (ct >> 1) + 8 * tg + 4 * (ct & 1)

    def qkv_pack(self, ty, i):
        e = self.e
        src = self.qkv_acc(1, i, 0) if ty else ACA + 8 * i
        dst = ACA + 4 * i if (ty and i < 4) else src
        ops = []
        if ty:
            ops += [f'v_mul_f32 v{src + r}, s{sE2}, v{src + r}' for r in range(8)]
        ops += [f'v_cvt_pk_bf16_f32 v{dst + r}, v{src + 2 * r}, v{src + 2 * r + 1}' for r in (0, 1, 2, 3)]
        ops += [f'v_permlane16_swap_b32 v{dst + r}, v{dst + 2 + r}' for r in range(2)]

        def st():
            if ty:
                e(f'buffer_store_dwordx4 {vr(dst, 4)}, v{vL16}, {srd(S_WS)}, s{sE0} offen sc1', 'qst')
                e(f's_add_u32 s{sE0}, s{sE0}, s{sE1}')
            else:
                e(f'buffer_store_dwordx4 {vr(dst, 4)}, v{vWD}, {srd(S_WS)}, s{sE1 if i >> 1 else sE0} offen offset:{1024 + 512 * (i & 1)} sc1', 'qst')
        return [lambda o=o: e(o) for o in ops], st

    def phase_a_compute(self, ty):
        e = self.e
        NC = 8 if ty else 4
        self.more_args(0)
        e(f's_memrealtime s[{sNON}:{sNON + 1}]')
        e('v_mov_b32 v16, 0')
        e(f'v_mov_b32 v17, {L_CNT}')
        e('ds_write_b32 v17, v16', 'z0')
        self.srd_consts(((S_DBG, 256),))
        self.x_read_addrs()
        self.tr_base(vWR[0], NC * 512, 16)
        e(f'v_xor_b32 v{vWR[1]}, 32, v{vWR[0]}')
        e('s_waitcnt lgkmcnt(0)')
        for p in e.paths:
            p.lg = []
        self.stamp(1)
        if not ty:
            e(f's_or_b32 s{sT + 6}, s2, s{sW}')
            lab = e.newlabel('nn')
            e(f's_cbranch_scc1 {lab}')
            snap = e.snapshot()
            e(f's_or_b32 s{sNON + 1}, s{sNON + 1}, 0x80000000')
            e(f'v_mov_b32 v16, s{sNON}')
            e(f'v_mov_b32 v17, s{sNON + 1}')
            e('s_mov_b64 exec, 1')
            e(f'buffer_store_dwordx2 v[16:17], off, {srd(S_DBG)}, 0 sc1', 'nst')
            e('s_mov_b64 exec, -1')
            e.paths = e.paths + snap
            e.label(lab)
        fill = self.split(lambda: self.setup2(0, ty))
        for _ in range(self.opt['cpre']):
            fill.pop(0)()
        LA = 4
        wx = Win(e, vXR)
        ww = Win(e, vWR)
        M = 16 * NC

        def reads(m):
            n, ct = divmod(m, NC)
            s, ks = divmod(n, 2)
            slot = SLOT0 + SLOT * (s % NSLOT)
            if m % (2 * NC) == 0:
                e('s_barrier')
                if s in (0, 4):
                    self.stamp(2 + s // 4)
                wx.ensure(slot, slot + 2048)
                ww.ensure(slot + 16384, slot + SLOT)
            if ct == 0:
                for tg in range(2):
                    e(f'ds_read_b128 {vr(X + 8 * n + 4 * tg, 4)}, v{vXR[ks]} offset:{wx.off(slot + 2048 * tg)}', f'a{m}')
            for rd in range(2):
                t = slot + 16384 + ks * NC * 1024 + (ct >> 1) * 1024 + rd * 256
                e(f'ds_read_b64_tr_b16 {vr(FR + 4 * (m % NFR) + 2 * rd, 2)}, v{vWR[ct & 1]} offset:{ww.off(t)}', f'a{m}')

        for m in range(LA):
            reads(m)
        for m in range(M):
            n, ct = divmod(m, NC)
            e.wait(lg=f'a{m}')
            for tg in range(2):
                acc = vr(self.qkv_acc(ty, ct, tg), 4)
                a, b = vr(FR + 4 * (m % NFR), 4), vr(X + 8 * n + 4 * tg, 4)
                if not ty:
                    a, b = b, a
                e(f'v_mfma_f32_16x16x32_bf16 {acc}, {a}, {b}, {acc if n else 0}')
                if tg == 0 and m + LA < M:
                    reads(m + LA)
            for _ in range(1 if ty else 3):
                if fill:
                    fill.pop(0)()
            if m == M * 3 // 4:
                e(f'buffer_load_dwordx2 v[{vK[0]}:{vK[0] + 1}], off, {srd(S_DBG)}, 0 sc1', 'non')
        assert not fill
        for i in range(4):
            for f in self.qkv_pack(ty, i)[0]:
                f()
        e('s_barrier')
        self.stamp(4)

    def spin(self, name, reload, check):
        e = self.e
        lr, lc = e.newlabel(name + 'r'), e.newlabel(name + 'c')
        check()
        e(f's_cbranch_vccnz {lr}')
        e.label(lc)

        def blk():
            e.paths = [p for p in Emitter().paths]
            e.label(lr)
            e(f's_mov_b32 s{sSPIN}, {SPIN}')
            ll = e.newlabel(name + 'l')
            e.label(ll)
            e('s_sleep 2')
            reload()
            e('s_waitcnt vmcnt(0)')
            check()
            e(f's_cbranch_vccz {lc}')
            e(f's_sub_u32 s{sSPIN}, s{sSPIN}, 1')
            e(f's_cbranch_scc0 {ll}')
            e(f's_branch {lc}')
        self.tail_blocks.append(blk)

    def flag_store(self, soff, tmp):
        e = self.e
        e(f'v_mov_b32 v{tmp}, s{sNON}')
        e(f'v_mov_b32 v{tmp + 1}, s{sNON + 1}')
        e('s_mov_b64 exec, 1')
        e(f'buffer_store_dwordx2 v[{tmp}:{tmp + 1}], off, {srd(S_WS)}, s{soff} sc1', 'flag')
        e('s_mov_b64 exec, -1')

    def kv_load(self, it):
        e = self.e
        b = it % 2

        def k():
            e(f's_add_u32 s{sKV}, s{sKVB}, s{sKVI}')
            e(f'buffer_load_dwordx4 {vr(vK[b], 4)}, v{vL16}, {srd(S_WS)}, s{sKV} offen sc1', f'k{it}')

        def v():
            e(f's_mov_b64 exec, s[{sVM}:{sVM + 1}]')
            e(f'buffer_load_dwordx4 {vr(vV[b], 4)}, v{vVA}, {srd(S_WS)}, s{sKV} offen offset:1024 sc1', f'v{it}')
            e(f'buffer_load_dwordx4 {vr(vV[b] + 4, 4)}, v{vVA}, {srd(S_WS)}, s{sKV} offen offset:1536 sc1', f'v{it}')
            e('s_mov_b64 exec, -1')
            e(f's_add_u32 s{sKVI}, s{sKVI}, 2048')
            e(f's_and_b32 s{sKVI}, s{sKVI}, 32767')
        return k, v

    def gelu(self, c):
        e = self.e
        acc = ACF + 16 * c
        T = ACA + 16
        P = lambda b, i: vr(b + 2 * i, 2)
        for i in range(4):
            e(f'v_pk_mul_f32 {P(T, i)}, {P(acc, i)}, {P(acc, i)}')
        for i in range(4):
            e(f'v_pk_fma_f32 {P(T, i)}, {P(T, i)}, s[{sGC}:{sGC + 1}], {vr(T + 8, 2)}')
        for i in range(4):
            e(f'v_pk_mul_f32 {P(T, i)}, {P(T, i)}, {P(acc, i)}')
        for i in range(8):
            e(f'v_exp_f32 v{T + i}, v{T + i}')
        for i in range(4):
            e(f'v_pk_mul_f32 {P(acc, i)}, {P(acc, i)}, {P(acc + 8, i)}')
        for i in range(4):
            ch = vr(T + 10 + 2 * (i // 2), 2)
            e(f'v_pk_fma_f32 {P(T, i)}, {P(T, i)}, {ch}, {ch}')
        for i in range(8):
            e(f'v_rcp_f32 v{T + i}, v{T + i}')
        for i in range(4):
            e(f'v_pk_mul_f32 {P(acc, i)}, {P(acc, i)}, {P(T, i)}')
        for i in (0, 2, 1, 3):
            e(f'v_cvt_pk_bf16_f32 v{acc + 8 + i}, v{acc + 2 * i}, v{acc + 2 * i + 1}')
        e(f's_add_u32 s{sT}, s{sHO}, {65536 * c}')
        for r in range(2):
            e(f'v_permlane16_swap_b32 v{acc + 8 + r}, v{acc + 10 + r}')
        e(f'buffer_store_dwordx4 {vr(acc + 8, 4)}, v{vL16}, {srd(S_WS)}, s{sT} offen sc1', 'hst')

    def split(self, fn):
        real = self.e
        rec = []

        class Rec:
            def __call__(s, text, tag=None):
                rec.append(('i', text, tag))

            def wait(s, vm=None, lg=None):
                rec.append(('w', vm, lg))
        self.e = Rec()
        fn()
        self.e = real
        out, grp = [], []
        for r in rec:
            grp.append(r)
            masked = any(x[0] == 'i' and x[1].startswith('s_mov_b64 exec') for x in grp)
            if (masked and r[1] != 's_mov_b64 exec, -1') or r[0] == 'w':
                continue

            def f(grp=grp):
                for x in grp:
                    if x[0] == 'i':
                        real(x[1], x[2])
                    else:
                        real.wait(vm=x[1], lg=x[2])
            out.append(f)
            grp = []
        assert not grp
        return out

    def phase_f(self, g, ty):
        e = self.e
        o = self.opt
        NC = self.nchains(g, ty)
        PS = 4 * NC
        M = 8 * PS
        sc = lambda m: m * PS // 12
        LA = 4
        wf = Win(e, vFR[:NC])
        fill = []
        at = {}
        cur = [0]

        def pin(m, f):
            at.setdefault(m, []).append(f)

        def sched(s, m0, span):
            if s > 15 or (g == 0 and s <= o['lonly']):
                return
            lst = self.dma_list(s, ty)
            for i, f in enumerate(lst):
                pin(m0 + i * span // len(lst), f)

        def enter(s):
            e.wait(vm=[f'st{s}'] + (['qst'] if s == o['qw'] else []), lg='zw' if s == 9 else None)
            e('s_barrier')
            sched(s + 2, cur[0] + 1, sc(o['span']))
            if s == 9:
                fill.extend(self.split(self.gate_read))
                fill.append(self.nonce_get)
                fill.extend(self.split(self.attn_setup))
                fill.extend(self.split(self.gate_math))
            if s == o['qw'] and g == 0:
                fill.insert(0, self.flag1)

        def reads(m):
            s = 8 + m // PS
            if m % PS == 0 and m:
                enter(s)
            ks, r = divmod(m % PS, 2 * NC)
            c, gu = divmod(r, 2)
            slot = SLOT0 + SLOT * (s % NSLOT)
            wf.ensure(slot, slot + 2 * UPOFF)
            for rd in range(2):
                t = slot + gu * UPOFF + ks * 6144 + rd * 256
                e(f'ds_read_b64_tr_b16 {vr(FR + 4 * (m % NFR) + 2 * rd, 2)}, v{vFR[c]} offset:{wf.off(t)}', f'f{m}')

        if g == 0:
            for i in range(4):
                pin(o['q0'] + o['qsp'] * i, self.qkv_pack(ty, i)[1])
            if ty:
                for i in range(4, 8):
                    ops, st = self.qkv_pack(ty, i)
                    m0 = o['q0'] + o['qsp'] * (i - 1)
                    for k, f in enumerate(ops):
                        pin(m0 + k * o['qsp'] // len(ops), f)
                    pin(m0 + o['qsp'], st)
            assert o['q0'] + o['qsp'] * 7 < sc(o['vi'])
        sched(10, 0, PS - LA)
        for m in range(LA):
            reads(m)
        if o['prio']:
            pin(sc(50), lambda: e('s_setprio 3'))
        for m in range(M):
            cur[0] = m
            n, r = divmod(m, 2 * NC)
            c, gu = divmod(r, 2)
            e.wait(lg=f'f{m}')
            for tg in range(2):
                acc = vr(ACF + 16 * c + 8 * gu + 4 * tg, 4)
                e(f'v_mfma_f32_16x16x32_bf16 {acc}, {vr(FR + 4 * (m % NFR), 4)}, {vr(X + 8 * n + 4 * tg, 4)}, {acc if n else 0}')
                if tg == 0 and m + LA < M:
                    reads(m + LA)
            if m % PS == 0 and 2 * PS <= m:
                self.stamp(5 + m // PS, 1)
            if m == sc(o['vi']):
                fill.extend(self.split(self.v_init))
            if m == sc(48):
                fill.extend(self.split(self.o_init))
            if m == sc(o['om']):
                fill.extend(self.split(self.o_mark))
            if m == sc(o['tch']) and g == 0:
                fill.append(self.touch)
            if m == sc(o['p1i']):
                fill.append(self.poll1_issue)
            if m == sc(o['p1c']):
                fill.append(self.poll1_check)
                fill.extend(self.split(self.attn_loads))
            for f in at.pop(m, []):
                f()
            k = o['fk'] if m < sc(o['p1c']) else o['gk']
            for _ in range(k * 3 // NC):
                if fill:
                    fill.pop(0)()
        assert not at
        for f in fill:
            f()
        self.stamp(5)
        if NC == 3:
            self.gelu(2)

    def o_mark(self):
        e = self.e
        for i in range(4):
            e(f'v_mov_b32 v{ACA + 16 + i}, -1')
        e(f'buffer_store_dwordx4 {vr(ACA + 16, 4)}, v{vL16}, {srd(S_WS)}, s{sMO} offen sc1', 'hst')

    def gate_read(self):
        e = self.e
        e(f's_lshl_b32 s{sT}, s{sTT}, 8')
        e(f'v_and_b32 v{vCH}, 15, v0')
        e(f'v_lshl_add_u32 v{vCH}, v{vCH}, 2, s{sT}')
        e(f'v_add_u32 v{vCH}, {L_Z}, v{vCH}')
        e(f'ds_read2_b32 {vr(vCH, 2)}, v{vCH} offset0:0 offset1:16', 'zr')

    def gate_math(self):
        e = self.e
        e.wait(lg='zr')
        for i in range(2):
            e(f'v_mul_f32 v{vCH + i}, {fbits(LOG2E)}, v{vCH + i}')
        for i in range(2):
            e(f'v_exp_f32 v{vCH + i}, v{vCH + i}')
        for i in range(2):
            e(f'v_add_f32 v{vCH + i}, 1.0, v{vCH + i}')

    def nonce_get(self):
        e = self.e
        e.wait(vm='non')
        ld = lambda: e(f'buffer_load_dwordx2 v[{vK[0]}:{vK[0] + 1}], off, {srd(S_DBG)}, 0 sc1')
        ck = lambda: e(f'v_cmp_eq_u32 vcc, 0, v{vK[0] + 1}')
        self.spin('non', ld, ck)
        e(f'v_readfirstlane_b32 s{sNON}, v{vK[0]}')
        e(f'v_readfirstlane_b32 s{sNON + 1}, v{vK[0] + 1}')

    def flag1(self):
        e = self.e
        lab = e.newlabel('f1')
        e(f's_cmp_lg_u32 s{sW}, 0')
        e(f's_cbranch_scc1 {lab}')
        snap = e.snapshot()
        e(f's_lshl_b32 s{sT + 7}, s{sJ}, 4')
        e(f's_add_u32 s{sT + 7}, s{sT + 7}, s{sTB}')
        e(f's_lshl_b32 s{sT + 7}, s{sT + 7}, 5')
        e(f's_add_u32 s{sT + 7}, s{sT + 7}, {WS_F1}')
        self.flag_store(sT + 7, vK[0])
        e.paths = e.paths + snap
        e.label(lab)

    def touch(self):
        e = self.e
        lab = e.newlabel('tc')
        e(f's_cmp_lg_u32 s{sW}, 3')
        e(f's_cbranch_scc1 {lab}')
        snap = e.snapshot()
        e(f'v_lshlrev_b32 v{vK[0]}, 7, v0')
        e(f's_mul_i32 s{sT}, s2, {43 * 128}')
        e(f's_lshl_b32 s{sT + 1}, s2, 11')
        e(f's_mov_b64 exec, 0xffff')
        e(f'buffer_load_dword v{vK[0] + 1}, v{vK[0]}, {srd(S_WO)}, s{sT + 1} offen', 'touch')
        e(f's_mov_b32 exec_lo, -1')
        e(f's_mov_b32 exec_hi, 0x7ff')
        e(f'buffer_load_dword v{vK[0] + 2}, v{vK[0]}, {srd(S_WD)}, s{sT} offen', 'touch')
        e('s_mov_b64 exec, -1')
        e.paths = e.paths + snap
        e.label(lab)

    def attn_setup(self):
        e = self.e
        e(f's_lshr_b32 s{sT + 2}, s{sJ}, 2')
        e(f's_lshl_b32 s{sT + 2}, s{sT + 2}, 5')
        e(f's_lshl_b32 s{sT + 3}, s{sTT}, 2')
        e(f's_add_u32 s{sT}, s{sT + 2}, s{sT + 3}')
        e(f's_add_u32 s{sT}, s{sT}, {9 * 16}')
        e(f's_and_b32 s{sT + 1}, s{sJ}, 14')
        e(f's_lshl_b32 s{sT + 1}, s{sT + 1}, 4')
        e(f's_add_u32 s{sT + 1}, s{sT + 1}, s{sT + 3}')
        e(f's_add_u32 s{sT + 2}, s{sT + 2}, s{sTB}')
        e(f's_add_u32 s{sT + 2}, s{sT + 2}, 16')
        e(f'v_mov_b32 v{vPA}, s{sT + 2}')
        e(f'v_and_b32 v{vP}, 3, v0')
        e('s_mov_b64 exec, 0xff')
        e(f'v_add_u32 v{vPA}, s{sT + 1}, v{vP}')
        e('s_mov_b64 exec, 0xf')
        e(f'v_add_u32 v{vPA}, s{sT}, v{vP}')
        e('s_mov_b64 exec, -1')
        e(f'v_lshlrev_b32 v{vPA}, 5, v{vPA}')
        e(f'v_add_u32 v{vPA}, {WS_F1}, v{vPA}')
        e(f'v_lshrrev_b32 v{vDD[0]}, 3, v0')
        e(f'v_lshrrev_b32 v{vP}, 2, v0')
        e(f'v_and_b32 v{vP}, 4, v{vP}')
        e(f'v_xor_b32 v{vP}, v{vP}, v0')
        e(f'v_and_b32 v{vP}, 7, v{vP}')
        e(f'v_lshlrev_b32 v{vP}, 4, v{vP}')
        e(f'v_lshl_add_u32 v{vDD[0]}, v{vDD[0]}, 10, v{vP}')
        e(f'v_add_u32 v{vDD[1]}, 8192, v{vDD[0]}')
        e(f'v_add_u32 v{vRW[0]}, s{sMD}, v{vL16}')
        e(f'v_lshl_add_u32 v{vRW[1]}, v0, 2, s{sMD}')

    def o_init(self):
        e = self.e
        for t in range(4):
            for i in range(self.opt['oz']):
                e(f'v_mov_b32 v{vO[t] + i}, 0')

    def v_init(self):
        e = self.e
        e(f'v_and_b32 v{vV[0] + 1}, 27, v0')
        e(f'v_cmp_eq_u32 vcc, 16, v{vV[0] + 1}')
        e(f'v_mov_b32 v{vV[0] + 1}, 0x3f803f80')
        e(f'v_cndmask_b32 v{vV[0]}, 0, v{vV[0] + 1}, vcc')
        for i in range(1, 16):
            e(f'v_mov_b32 v{vV[0] + i}, v{vV[0]}')
        e(f'v_mov_b32 v{ACA + 24}, {fbits(GC0)}')
        e(f'v_mov_b32 v{ACA + 25}, v{ACA + 24}')
        for i in range(4):
            e(f'v_min_f32 v{ACA + 26 + i}, {fbits(2.0 ** 100)}, v{vCH + i // 2}')

    def poll1_issue(self):
        e = self.e
        e('s_mov_b64 exec, 0xfff')
        e(f'buffer_load_dwordx2 v[{vP}:{vP + 1}], v{vPA}, {srd(S_WS)}, 0 offen sc1', 'p1')
        e('s_mov_b64 exec, -1')

    def poll1_check(self):
        e = self.e
        e.wait(vm='p1')
        e('s_mov_b64 exec, 0xfff')
        ld = lambda: e(f'buffer_load_dwordx2 v[{vP}:{vP + 1}], v{vPA}, {srd(S_WS)}, 0 offen sc1')
        ck = lambda: e(f'v_cmp_ne_u64 vcc, s[{sNON}:{sNON + 1}], v[{vP}:{vP + 1}]')
        self.spin('p1', ld, ck)
        e('s_mov_b64 exec, -1')

    def attn_loads(self):
        e = self.e
        k, v = self.kv_load(0)
        k()
        for i in range(4):
            e(f's_add_u32 s{sT + 1}, s{sTT}, {1 + i}')
            e(f's_and_b32 s{sT + 1}, s{sT + 1}, 3')
            e(f's_lshl_b32 s{sT + 1}, s{sT + 1}, 10')
            e(f's_add_u32 s{sT + 1}, s{sT + 1}, s{sQO}')
            e(f'buffer_load_dwordx4 {vr(vQ[i], 4)}, v{vL16}, {srd(S_WS)}, s{sT + 1} offen sc1', f'q{i}')
        v()
        if self.opt['kv1']:
            k, v = self.kv_load(1)
            k()
            v()
        e(f's_lshr_b32 s{sT + 1}, s{sRB}, 1')
        e(f's_lshl_b32 s{sT + 1}, s{sT + 1}, 9')
        e(f's_add_u32 s{sT + 1}, s{sT + 1}, {WS_F2}')
        e(f'v_lshl_add_u32 v{vPA}, v0, 5, s{sT + 1}')

    def attention(self):
        e = self.e
        G0 = self.opt['g2start']
        NT = 64

        def qk(t):
            it, sl = divmod(t, 4)
            if sl == 0:
                e.wait(vm=f'k{it}')
            if it == 0:
                e.wait(vm=f'q{sl}')
            e(f'v_mfma_f32_32x32x16_bf16 {vr(vS[t % 2], 16)}, {vr(vK[it % 2], 4)}, {vr(vQ[sl], 4)}, 0')

        def pv(t, hi):
            it, sl = divmod(t, 4)
            if sl == 0 and not hi:
                e.wait(vm=f'v{it}')
            e(f'v_smfmac_f32_32x32x32_bf16 {vr(vO[sl], 16)}, {vr(vV[it % 2] + 4 * hi, 4)}, {vr(vS[t % 2] + 8 * hi, 8)}, v{vIDX}')

        def ex(t, a, b):
            for i in range(a, b):
                e(f'v_exp_f32 v{vS[t % 2] + i}, v{vS[t % 2] + i}')

        def wd_dma(step):
            def f():
                for i in range(2):
                    e(f's_add_u32 m0, s{sMD}, {L_RING + 2048 * (step % 3) + 1024 * i}')
                    e(f'buffer_load_dwordx4 v{vDD[i]}, {srd(S_WD)}, s{sDO} offen lds', f'd{step}')
                e(f's_add_u32 s{sDO}, s{sDO}, 16384')
            return f

        def wo_dma(k):
            def f():
                if k == 0:
                    e(f's_lshl_b32 s{sDO}, s{sW}, 16')
                    e(f's_lshl_b32 s{sT}, s{sCB}, 7')
                    e(f's_add_u32 s{sDO}, s{sDO}, s{sT}')
                    e(f's_lshl_b32 s{sMD}, s{sW}, 13')
                for i in range(2):
                    e(f's_add_u32 m0, s{sMD}, {L_WO + 2048 * k + 1024 * i}')
                    e(f'buffer_load_dwordx4 v{vDD[i]}, {srd(S_WO)}, s{sDO} offen lds', 'wo')
                e(f's_add_u32 s{sDO}, s{sDO}, 16384')
            return f

        def h_load(step):
            def f():
                for i in range(2):
                    e(f'buffer_load_dwordx4 {vr(vH[step % 2] + 4 * i, 4)}, v{vL16}, {srd(S_H)}, s{sHO} offen offset:{1024 * i} sc1', f'h{step}')
                e(f's_add_u32 s{sHO}, s{sHO}, 65536')
            return f

        def wd_read(step, jj):
            def f():
                e.wait(vm=f'd{step}')
                for rd in range(2):
                    e(f'ds_read_b64_tr_b16 {vr(vD + 4 * jj + 2 * rd, 2)}, v{vDR[jj]} offset:{L_RING + 2048 * (step % 3) + 512 * rd}', f'dr{step}_{jj}')
            return f

        def g2(step, sl):
            jj, i = divmod(sl, 2)
            e.wait(vm=f'h{step}', lg=f'dr{step}_{jj}')
            acc = vr(vG[i * 2 + jj], 16)
            e(f'v_mfma_f32_32x32x16_bf16 {acc}, {vr(vD + 4 * jj, 4)}, {vr(vH[step % 2] + 4 * i, 4)}, {acc if step else 0}')

        def sig2_a():
            e.wait(vm='hst')
            e(f'v_mov_b32 v{vP}, {L_CNT}')
            e(f'v_mov_b32 v{vP + 1}, 1')
            e('s_mov_b64 exec, 1')
            e(f'ds_add_rtn_u32 v{vP}, v{vP}, v{vP + 1}', 'cnt2')
            e('s_mov_b64 exec, -1')

        def sig2_b():
            e.wait(lg='cnt2')
            e(f'v_readfirstlane_b32 s{sT}, v{vP}')
            lab = e.newlabel('f2')
            e(f's_cmp_lg_u32 s{sT}, 7')
            e(f's_cbranch_scc1 {lab}')
            snap = e.snapshot()
            e(f's_lshl_b32 s{sT}, s{sTB}, 4')
            e(f's_add_u32 s{sT}, s{sT}, s{sJ}')
            e(f's_lshl_b32 s{sT}, s{sT}, 5')
            e(f's_add_u32 s{sT}, s{sT}, {WS_F2}')
            self.flag_store(sT, vP)
            e.paths = e.paths + snap
            e.label(lab)
            e(f's_mul_i32 s{sHO}, s{sW}, {11 * 65536}')
            e(f's_lshl_b32 s{sT}, s{sRB}, 11')
            e(f's_add_u32 s{sHO}, s{sHO}, s{sT}')

        def poll2_issue():
            e('s_mov_b64 exec, 0xffff')
            e(f'buffer_load_dwordx2 v[{vP}:{vP + 1}], v{vPA}, {srd(S_WS)}, 0 offen sc1', 'p2')
            e('s_mov_b64 exec, -1')

        def poll2_check():
            e.wait(vm='p2')
            e('s_mov_b64 exec, 0xffff')
            ld = lambda: e(f'buffer_load_dwordx2 v[{vP}:{vP + 1}], v{vPA}, {srd(S_WS)}, 0 offen sc1')
            ck = lambda: e(f'v_cmp_ne_u64 vcc, s[{sNON}:{sNON + 1}], v[{vP}:{vP + 1}]')
            self.spin('p2', ld, ck)
            e('s_mov_b64 exec, -1')

        def cnt_issue():
            e(f'v_mov_b32 v{vPA}, {L_CNT}')
            e(f'ds_read_b32 v{vP}, v{vPA}', 'cnt3')

        def cnt_check():
            e.wait(lg='cnt3')

            def ld():
                e(f'ds_read_b32 v{vP}, v{vPA}')
                e('s_waitcnt lgkmcnt(0)')
            self.spin('c3', ld, lambda: e(f'v_cmp_ne_u32 vcc, 8, v{vP}'))

        def co_read():
            e(f's_lshl_b32 s{sT}, s{sTT}, 8')
            e(f'v_lshl_add_u32 v{vCO}, v0, 2, s{sT}')
            e(f'ds_read_b32 v{vCO}, v{vCO} offset:{L_Z}', 'zr2')

        def co_math():
            e.wait(lg='zr2')
            e(f'v_mul_f32 v{vCO}, {fbits(-LOG2E)}, v{vCO}')
            e(f'v_exp_f32 v{vCO}, v{vCO}')

        def ored_write(sl):
            def f():
                o = L_RING + 2304 * sl
                e(f'ds_write_b128 v{vRW[0]}, {vr(vO[sl], 4)} offset:{o}', 'orw')
                e(f'ds_write_b128 v{vRW[0]}, {vr(vO[sl] + 4, 4)} offset:{o + 1024}', 'orw')
                e(f'ds_write_b32 v{vRW[1]}, v{vO[sl] + 8} offset:{o + 2048}', 'orw')
            return f

        side = {}
        add = lambda t, p, f: side.setdefault((t, p), []).append(f)
        for it in range(self.opt['kv1'], 15):
            k, v = self.kv_load(it + 1)
            add(4 * it, 0, k)
            add(4 * it, 0, v)
        for step in range(11):
            it = G0 + step
            add(4 * (it - 2) + 1, 0, wd_dma(step))
            add(4 * (it - 1) + 1, 0, h_load(step))
            add(4 * it - 1, 0, wd_read(step, 0))
            add(4 * it + 1, 0, wd_read(step, 1))
        for k in range(4):
            add(4 * (G0 + 8) + 2 + k, 2, wo_dma(k))
        add(4 * (G0 + 8), 2, cnt_issue)
        add(4 * (G0 + 8) + 1, 2, cnt_check)
        add(2, 2, co_read)
        add(3, 2, co_math)
        add(self.opt['s2t'], 2, sig2_a)
        add(self.opt['s2t'] + 1, 2, sig2_b)
        add(4 * (G0 - 2) + 2, 2, poll2_issue)
        add(4 * (G0 - 1), 2, poll2_check)
        for sl in range(3):
            add(61 + sl, 3, ored_write(sl))
        if self.opt['prio']:
            add(self.opt['pa'], 2, lambda: e('s_setprio 2'))
            add(self.opt['pb'], 2, lambda: e('s_setprio 1'))
            add(self.opt['pc'], 2, lambda: e('s_setprio 0'))

        def run(t, p):
            for f in side.get((t, p), []):
                f()

        qk(0)
        for t in range(NT):
            it, sl = divmod(t, 4)
            ex(t, 0, 2)
            if t > 0:
                pv(t - 1, 1)
            run(t, 0)
            ex(t, 2, 5)
            if t + 1 < NT:
                qk(t + 1)
            run(t, 1)
            ex(t, 5, 10)
            pv(t, 0)
            run(t, 2)
            ex(t, 10, 13)
            if G0 <= it < G0 + 11:
                g2(it - G0, sl)
            ex(t, 13, 16)
            run(t, 3)
            if t in (7, 31):
                self.stamp(7 if t == 7 else 8)
        pv(NT - 1, 1)

    def tail(self):
        e = self.e
        own = vO[3]
        R = vO[0]
        self.stamp(9)
        for i in range(3):
            e(f's_sub_u32 s{sT}, s{sTT}, {1 + i}')
            e(f's_and_b32 s{sT}, s{sT}, 3')
            e(f's_lshl_b32 s{sT + 1}, s{sG}, 2')
            e(f's_add_u32 s{sT}, s{sT}, s{sT + 1}')
            e(f's_mul_i32 s{sT}, s{sT}, {RINGW}')
            e(f'v_add_u32 v{FR + i}, s{sT}, v{vL16}')
            e(f'v_lshl_add_u32 v{FR + 3 + i}, v0, 2, s{sT}')
        e.wait(lg='all')
        e('s_barrier')
        for i in range(3):
            o = L_RING + 2304 * i
            e(f'ds_read_b32 v{R + 24 + i}, v{FR + 3 + i} offset:{o + 2048}', f'or{i}')
        for i in range(3):
            o = L_RING + 2304 * i
            e(f'ds_read_b128 {vr(R + 8 * i, 4)}, v{FR + i} offset:{o}', f'oa{i}')
            e(f'ds_read_b128 {vr(R + 8 * i + 4, 4)}, v{FR + i} offset:{o + 1024}', f'oa{i}')
        e.wait(lg='or2')
        e(f'v_add_f32 v{R + 24}, v{R + 24}, v{R + 25}')
        e(f'v_add_f32 v{own + 8}, v{own + 8}, v{R + 26}')
        e(f'v_add_f32 v{own + 8}, v{own + 8}, v{R + 24}')
        for i in range(3):
            e.wait(lg=f'oa{i}')
            for r in range(8):
                e(f'v_add_f32 v{own + r}, v{own + r}, v{R + 8 * i + r}')
        e(f'v_subrev_u32 v{R}, {(127 - 60) << 23}, v{own + 8}')
        e(f'v_cmp_lt_u32 vcc, {120 << 23}, v{R}')
        e('s_cbranch_vccnz Lsafe')
        e.label('Lsafe_done')
        self.tail_blocks.append(self.safe_softmax)
        e(f'v_fma_f32 v{R}, v{own + 8}, v{vCO}, v{own + 8}')
        e(f'v_rcp_f32 v{R}, v{R}')
        for r in range(8):
            e(f'v_mul_f32 v{own + r}, v{own + r}, v{R}')
        for r in range(4):
            e(f'v_cvt_pk_bf16_f32 v{own + r}, v{own + 2 * r}, v{own + 2 * r + 1}')
        for r in range(4):
            e(f'v_min_u32 v{own + r}, -2, v{own + r}')
        e(f'buffer_store_dwordx4 {vr(own, 4)}, v{vL16}, {srd(S_WS)}, s{sMO} offen sc1', 'ost')
        self.stamp(10)
        WO = vO[0]
        e(f's_lshl_b32 s{sT}, s{sW}, 10')
        e(f's_add_u32 s{sT}, s{sT}, {L_WO}')
        e(f'v_and_b32 v{vP}, 32, v0')
        e(f'v_lshlrev_b32 v{vP}, 4, v{vP}')
        e(f'v_sub_u32 v{vP}, s{sT}, v{vP}')
        for jj in range(2):
            e(f'v_add_u32 v{vDR[jj]}, v{vP}, v{vDR[jj]}')
        e.wait(vm='wo')
        for k in range(4):
            for jj in range(2):
                for rd in range(2):
                    e(f'ds_read_b64_tr_b16 {vr(WO + 8 * k + 4 * jj + 2 * rd, 2)}, v{vDR[jj]} offset:{2048 * k + 1024 * rd}', 'wor')
        e(f's_lshl_b32 s{sT}, s{sW}, 18')
        e(f's_lshl_b32 s{sT + 1}, s{sRB}, 11')
        e(f's_add_u32 s{sT}, s{sT}, s{sT + 1}')
        e(f's_add_u32 s{sT}, s{sT}, {WS_O}')
        for k in range(1, 4):
            e(f's_add_u32 s{sT + k}, s{sT}, {65536 * k}')
        e(f'v_lshrrev_b32 v{vPA}, 1, v0')
        e(f'v_lshlrev_b32 v{vPA}, 16, v{vPA}')
        e(f'v_and_b32 v{vP}, 1, v0')
        e(f'v_lshl_add_u32 v{vPA}, v{vP}, 10, v{vPA}')
        vFW, vFRd = 9, 10
        e(f'v_and_b32 v{vFW}, 31, v0')
        e(f'v_lshrrev_b32 v{vP}, 5, v0')
        e(f'v_and_b32 v{vP + 1}, 7, v0')
        e(f'v_xor_b32 v{vP}, v{vP}, v{vP + 1}')
        e(f'v_lshlrev_b32 v{vP}, 4, v{vP}')
        e(f'v_lshl_add_u32 v{vFW}, v{vFW}, 8, v{vP}')
        e(f's_lshl_b32 s{sT + 4}, s{sW}, 14')
        e(f'v_add_u32 v{vFW}, s{sT + 4}, v{vFW}')
        e(f'v_lshrrev_b32 v{vP}, 3, v0')
        e(f'v_lshlrev_b32 v{vP + 1}, 1, v{vP + 1}')
        e(f'v_xor_b32 v{vP + 1}, v{vP + 1}, v{vP}')
        e(f'v_lshlrev_b32 v{vP + 1}, 4, v{vP + 1}')
        e(f'v_lshl_add_u32 v{vFRd}, v{vP}, 8, v{vP + 1}')
        e(f's_lshl_b32 s{sT + 4}, s{sW}, 11')
        e(f'v_add_u32 v{vFRd}, s{sT + 4}, v{vFRd}')
        e(f'v_xor_b32 v{vFRd + 1}, 16, v{vFRd}')
        e.wait(lg='all')
        e('s_barrier')
        e.wait(vm='all')
        e('s_mov_b64 exec, 0xff')
        ld = lambda: e(f'buffer_load_dword v{vP}, v{vPA}, {srd(S_WS)}, s{sT} offen offset:1020 sc1')
        ck = lambda: e(f'v_cmp_eq_u32 vcc, -1, v{vP}')
        ld()
        e.wait(vm='all')
        self.spin('p3', ld, ck)
        e('s_mov_b64 exec, -1')
        self.stamp(11)
        OF = ACA

        def old(k, tag=None):
            for i in range(2):
                e(f'buffer_load_dwordx4 {vr(OF + 8 * k + 4 * i, 4)}, v{vL16}, {srd(S_WS)}, s{sT + k} offen offset:{1024 * i} sc1', tag)

        for k in range(4):
            old(k, f'o{k}')
        e.wait(lg='all')
        for k in range(4):
            e.wait(vm=f'o{k}')

            def ck(k=k):
                b = OF + 8 * k
                e(f'v_max3_u32 v{vP}, v{b}, v{b + 1}, v{b + 2}')
                e(f'v_max3_u32 v{vP + 1}, v{b + 3}, v{b + 4}, v{b + 5}')
                e(f'v_max3_u32 v{vP}, v{vP}, v{b + 6}, v{b + 7}')
                e(f'v_max_u32 v{vP}, v{vP}, v{vP + 1}')
                e(f'v_cmp_eq_u32 vcc, -1, v{vP}')
            self.spin(f'o{k}', lambda k=k: old(k), ck)
            for i in range(2):
                for jj in range(2):
                    acc = vr(vG[i * 2 + jj], 16)
                    e(f'v_mfma_f32_32x32x16_bf16 {acc}, {vr(WO + 8 * k + 4 * jj, 4)}, {vr(OF + 8 * k + 4 * i, 4)}, {acc}')
        self.stamp(12)
        for q in range(1, 4):
            e(f'v_xor_b32 v{FR + q}, {32 * q}, v{vFW}')
        for i in range(2):
            for jj in range(2):
                for q in range(4):
                    a = vFW if q == 0 else FR + q
                    e(f'ds_write_b128 v{a}, {vr(vG[i * 2 + jj] + 4 * q, 4)} offset:{8192 * i + 128 * jj}', 'fw')
        e(f'v_lshrrev_b32 v{vP}, 3, v0')
        e(f'v_and_b32 v{vP + 1}, 7, v0')
        e(f'v_lshlrev_b32 v{vP + 1}, 4, v{vP + 1}')
        e(f'v_lshl_add_u32 v{vPA}, v{vP}, 10, v{vP + 1}')
        e(f's_lshl_b32 s{sT}, s{sRB}, 3')
        e(f's_add_u32 s{sT}, s{sT}, s{sW}')
        e(f's_lshl_b32 s{sT}, s{sT}, 13')
        e(f's_lshl_b32 s{sT + 1}, s{sCB}, 7')
        e(f's_add_u32 s{sT}, s{sT}, s{sT + 1}')
        e.wait(lg='all')
        e('s_barrier')
        wr = Win(e, [vFRd, vFRd + 1])
        B = X
        for p in range(8):
            wr.ensure(p * 16384, p * 16384)
            for h in range(2):
                e(f'ds_read_b128 {vr(B + 8 * p + 4 * h, 4)}, v{vFRd + h} offset:{wr.off(p * 16384)}', f'fr{p}')
        for p in range(1, 8):
            e.wait(lg=f'fr{p}')
            for r in range(8):
                e(f'v_add_f32 v{B + r}, v{B + r}, v{B + 8 * p + r}')
        for r in range(4):
            e(f'v_cvt_pk_bf16_f32 v{B + r}, v{B + 2 * r}, v{B + 2 * r + 1}')
        e(f'buffer_store_dwordx4 {vr(B, 4)}, v{vPA}, {srd(S_OUT)}, s{sT} offen' + ('', ' sc1', ' nt', ' sc0 sc1', ' sc1 nt')[self.opt.get('ost', 1)])
        if 'probe' in self.opt:
            e.wait(vm='all')
            self.stamp(13)
            e.label('Lprobe')
            e('s_sleep 1')
            e(f's_memrealtime s[{sSTMP}:{sSTMP + 1}]')
            e('s_waitcnt lgkmcnt(0)')
            e(f's_sub_u32 s{sSTMP}, s{sSTMP}, s{sNON if self.opt["probe"] == 99 else sSTAMP}')
            e(f's_cmp_lt_u32 s{sSTMP}, 6000')
            e('s_cbranch_scc1 Lprobe')
        if self.stamps:
            e.wait(vm='all')
            self.stamp(13)
            e(f's_lshl_b32 s{sT}, s2, 3')
            e(f's_add_u32 s{sT}, s{sT}, s{sW}')
            e(f's_lshl_b32 s{sT}, s{sT}, 6')
            e(f's_add_u32 s{sT}, s{sT}, {WS_ST}')
            e('s_waitcnt lgkmcnt(0)')
            en = [i for i in range(14) if (self.opt.get('smask', 0x2001) | 0x2001) >> i & 1]
            for k, i in enumerate(en):
                e(f'v_mov_b32 v{B + 8 + i}, s{sSTAMP + 2 * k}')
            e('s_mov_b64 exec, 1')
            for i in range(4):
                e(f'buffer_store_dwordx4 {vr(B + 8 + 4 * i, 4)}, off, {srd(S_WS)}, s{sT} offset:{16 * i}')
        e.label('Lexit')
        e('s_endpgm')

    def safe_softmax(self):
        e = self.e
        e.paths = [p for p in Emitter().paths]
        own = vO[3]
        M = vO[0]
        S = vS[0]
        e.label('Lsafe')
        e(f's_and_b32 s{sT + 2}, s{sKVB}, {0xffffffff ^ (3 << 15)}')
        e(f's_mov_b32 s{sT + 3}, s{sT + 2}')
        e(f's_mov_b32 s{sT + 4}, 64')
        e(f'v_mov_b32 v{M}, 0xff800000')
        e.label('Lsafe1')
        e(f'buffer_load_dwordx4 {vr(vK[0], 4)}, v{vL16}, {srd(S_WS)}, s{sT + 3} offen sc1')
        e(f's_add_u32 s{sT + 3}, s{sT + 3}, 2048')
        e('s_waitcnt vmcnt(0)')
        e(f'v_mfma_f32_32x32x16_bf16 {vr(S, 16)}, {vr(vK[0], 4)}, {vr(vQ[3], 4)}, 0')
        for i in range(0, 16, 2):
            e(f'v_max3_f32 v{M}, v{M}, v{S + i}, v{S + i + 1}')
        e(f's_sub_u32 s{sT + 4}, s{sT + 4}, 1')
        e(f's_cmp_lg_u32 s{sT + 4}, 0')
        e('s_cbranch_scc1 Lsafe1')
        e(f'v_mov_b32 v{M + 1}, v{M}')
        e(f'v_permlane32_swap_b32 v{M}, v{M + 1}')
        e(f'v_max_f32 v{M}, v{M}, v{M + 1}')
        e(f'v_sub_f32 v{M}, 0, v{M}')
        for i in range(1, 16):
            e(f'v_mov_b32 v{M + i}, v{M}')
        for i in range(16):
            e(f'v_mov_b32 v{own + i}, 0')
        e(f's_mov_b32 s{sT + 3}, s{sT + 2}')
        e(f's_mov_b32 s{sT + 4}, 64')
        e.label('Lsafe2')
        e(f'buffer_load_dwordx4 {vr(vK[0], 4)}, v{vL16}, {srd(S_WS)}, s{sT + 3} offen sc1')
        e(f's_mov_b64 exec, s[{sVM}:{sVM + 1}]')
        e(f'buffer_load_dwordx4 {vr(vV[0], 4)}, v{vVA}, {srd(S_WS)}, s{sT + 3} offen offset:1024 sc1')
        e(f'buffer_load_dwordx4 {vr(vV[0] + 4, 4)}, v{vVA}, {srd(S_WS)}, s{sT + 3} offen offset:1536 sc1')
        e('s_mov_b64 exec, -1')
        e(f's_add_u32 s{sT + 3}, s{sT + 3}, 2048')
        e('s_waitcnt vmcnt(0)')
        e(f'v_mfma_f32_32x32x16_bf16 {vr(S, 16)}, {vr(vK[0], 4)}, {vr(vQ[3], 4)}, {vr(M, 16)}')
        for i in range(16):
            e(f'v_exp_f32 v{S + i}, v{S + i}')
        for hi in range(2):
            e(f'v_smfmac_f32_32x32x32_bf16 {vr(own, 16)}, {vr(vV[0] + 4 * hi, 4)}, {vr(S + 8 * hi, 8)}, v{vIDX}')
        e(f's_sub_u32 s{sT + 4}, s{sT + 4}, 1')
        e(f's_cmp_lg_u32 s{sT + 4}, 0')
        e('s_cbranch_scc1 Lsafe2')
        e('s_nop 15')
        e('s_branch Lsafe_done')

    def build(self):
        e = self.e
        self.prologue()
        snap = e.snapshot()
        e.label('Lload')
        self.loader_head()
        lsnap = e.snapshot()
        ends = []
        for ty in (1, 0):
            e.restore(lsnap)
            if ty == 0:
                e.label('Lload0')
            self.phase_a_loader(ty)
            self.phase_f(1, ty)
            e('s_branch Lffn')
            ends += e.snapshot()
        for ty in (0, 1):
            e.restore(snap)
            e.label(f'Lcomp{ty}')
            self.phase_a_compute(ty)
            self.phase_f(0, ty)
            if ty == 0:
                e('s_branch Lffn')
            ends += e.snapshot()
        e.paths = ends
        e.label('Lffn')
        self.gelu(0)
        self.gelu(1)
        self.stamp(6)
        self.attention()
        self.tail()
        i = 0
        while i < len(self.tail_blocks):
            self.tail_blocks[i]()
            i += 1
        e.label('Lcode_end')
        return self.wrap()

    def wrap(self):
        head = open('gated_mix__softmax_full_mha__glu_gated_geglu__prompt.s.ref').read().split('; Override')[0]
        return head + f"""; @launch grid=(256,1,1) block=(512,1,1) lds={LDS_BYTES}
.amdgcn_target "amdgcn-amd-amdhsa--gfx950"
.text
.globl {KNAME}
.p2align 8
.type {KNAME},@function
{KNAME}:
{self.e.text()}
.section .rodata,"a"
.p2align 6
.amdhsa_kernel {KNAME}
  .amdhsa_next_free_vgpr 256
  .amdhsa_next_free_sgpr 102
  .amdhsa_accum_offset 256
  .amdhsa_group_segment_fixed_size 0
  .amdhsa_kernarg_size 88
  .amdhsa_user_sgpr_count 2
  .amdhsa_user_sgpr_kernarg_segment_ptr 1
  .amdhsa_system_sgpr_workgroup_id_x 1
.end_amdhsa_kernel
"""


if __name__ == '__main__':
    out = sys.argv[1]
    stamps = sys.argv[2] if len(sys.argv) > 2 and sys.argv[2] in ('rt', 'cy') else False
    opt = {}
    for a in sys.argv[2:]:
        if '=' in a:
            k, v = a.split('=')
            opt[k] = int(v, 0)
    g = Gen(stamps=stamps, opt=opt)
    open(out, 'w').write(g.build())
    print('nops inserted:', g.e.nops, 'lines:', len(g.e.lines))
```

```python
import sys, math, struct
from asmlib import Emitter, Win

KNAME = 'gated_mix__softmax_full_mha__glu_gated_geglu__prompt_kernel'

WS_Q = 0
WS_KV = 2 << 20
WS_O = 6 << 20
WS_F1 = 8 << 20
WS_F2 = WS_F1 + 32768
WS_ST = WS_F1 + 65536
WS_H = 9 << 20
WS_END = 15 << 20

L_GW = 0
L_Z = 1024
SLOT0 = 4096
UPOFF = 12288
L_RING = 28672
RINGW = 7168
L_WO = 86016
L_CNT = 161792
LDS_BYTES = 163840

S_X, S_WQ, S_WF, S_WS, S_H, S_WD, S_WO, S_OUT, S_DBG, S_GW = [4 * i + 4 for i in range(10)]
S_WG = 80
sW, sTT, sG, sJ, sTB, sRB, sCB, sUS = range(44, 52)
sXO, sWO, sFO, sMX, sMW, sMF = range(52, 58)
sNON = 58
sKV, sKVB, sKVI, sHO, sDO, sMD = range(60, 66)
sVM = 66
sT = 68
sGC = 76
sQO = 78
sXO2 = 79
sSPIN = 84
sMO = 85
sMG = 3
sO = [4, 5, 6, 7, 8, 9, 10, 11]
sPEND = 43
sR = 73
sE0, sE1, sE2 = 4, 5, 6
sSTMP = 86
sSTAMP = 88


def region(s, ty):
    if ty and s < 8:
        return SLOT0 + 32768 * (s % 4), 32768
    k = (s - 8) % 6
    return (SLOT0 + 131072 if k == 0 else SLOT0 + 24576 * (k - 1)), 24576


def free_after(s, ty):
    a, n = region(s, ty)
    need = -1
    for k in range(s):
        b, m = region(k, ty)
        if a < b + m and b < a + n:
            need = max(need, k + (1 if ty and k < 8 else 2))
    return need


def srd(b):
    return f's[{b}:{b + 3}]'


def vr(b, n):
    return f'v[{b}:{b + n - 1}]' if n > 1 else f'v{b}'


def fbits(x):
    return '0x%08x' % struct.unpack('<I', struct.pack('<f', x))[0]


vL16 = 1
vXD = [2, 3]
vWD = 4
vFD = 5
vXR = [6, 7]
vWR = [8, 2]
vFR = [9, 10, 11]
FR = 16
NFR = 5
ACA = 36
ACF = 68
vK = [116, 120]
vCH, vIDX, vVA = 124, 126, 127
X = 128
vO = [X + 16 * i for i in range(4)]
vQ = [X + 64 + 4 * i for i in range(4)]
vV = [ACA, ACA + 8]
vS = [ACA + 16, X + 80]
vG = [ACF, ACF + 16, ACF + 32, X + 96]
vH = [X + 112, X + 120]
vD = FR
vCO = FR + 8
vDD = [2, 3]
vDR = [12, 13]
vP = 14
vPA = 6
vRW = [7, 8]
vHA = [9, 10]
vKA = 124
vRR = FR + 10

LOG2E = 1.4426950408889634
QSCALE = 0.25 * LOG2E
GC0 = -2.0 * LOG2E * math.sqrt(2.0 / math.pi)
GC1 = GC0 * 0.044715
SPIN = 400000


class Gen:
    def __init__(self, stamps=False, opt=None):
        self.e = Emitter()
        self.stamps = stamps
        self.nst = 0
        self.opt = dict(g2start=5, prio=True, ahead=9, span=10, fah=3, late=3, hold=2, lfirst=3, p1i=84, p1c=200, pg=0, gsp=2, fk=2, gk=3, lpre=80, cpre=200,
                        oz=9, pa=8, pb=44, pc=60, qw=11, q0=0, qsp=1, vi=40, tch=64, om=56, lonly=15, kv1=1, s2t=6, rot=2, laa=7, wpf=1, zm=1, qsc=0, hl=2, hsp=1, n_p1i=66, n_p1c=78, fs=7, rbx=1, lp=1, eb=1, sl3=2, sl1=4, sl2=8, lsp=4)
        if opt:
            self.opt.update(opt)
        self.tail_blocks = []

    def stamp(self, idx, sset=0):
        e = self.e
        if self.opt.get('sset') == 4:
            if 7 <= idx <= 9 and sset != 4:
                return
        elif 7 <= idx <= 12 and sset != self.opt.get('sset', 0):
            return
        if self.opt.get('probe') == idx:
            e(f's_memrealtime s[{sSTAMP}:{sSTAMP + 1}]')
            e('s_waitcnt lgkmcnt(0)')
            for p in e.paths:
                p.lg = []
        if not self.stamps or not (self.opt.get('smask', 0x2001) | 0x2001) >> idx & 1:
            return
        en = [i for i in range(14) if (self.opt.get('smask', 0x2001) | 0x2001) >> i & 1]
        assert len(en) <= 7
        r = sSTAMP + 2 * en.index(idx)
        e(f"{'s_memtime' if self.stamps == 'cy' else 's_memrealtime'} s[{r}:{r + 1}]")

    def dma_list(self, s, ty, part=3, first=False):
        e = self.e
        slot = region(s, ty)[0]
        out = []
        tag = f'st{s}'

        def mk(m0s, m0c, va, rs, so, imm=0, pre=()):
            def f():
                e(f's_add_u32 m0, s{m0s}, {m0c - imm}')
                for p in pre:
                    e(p)
                e(f'buffer_load_dwordx4 v{va}, {srd(rs)}, s{so} offen' + (f' offset:{imm}' if imm else '') + ' lds', tag)
            out.append(f)
        t = sT + 6

        def step(so, n):
            return [f's_cmp_eq_u32 s{sR}, {-s % 8}', f's_cselect_b32 s{t}, -7, 1', f's_mul_i32 s{t}, s{t}, {n}', f's_add_u32 s{so}, s{so}, s{t}']
        if s < 8:
            for i in range(4):
                mk(sMX, slot + i * 1024, vXD[i % 2], S_X, sXO if i < 2 else sXO2,
                   pre=step(sXO, 128) if i == 0 and s else ([f's_add_u32 s{sXO2}, s{sXO}, 16384'] if i == 1 else ()))
            for i in range(4 if ty else 2):
                mk(sMW, slot + 16384 + i * 1024, vWD, S_WQ, sWO, imm=64 * i, pre=step(sWO, 64 * 3072) if i == 0 and s else ())
        else:
            for h in range(2):
                if part >> h & 1:
                    for i in range(3):
                        mk(sMG, slot + h * UPOFF + i * 1024, vFD, S_WF if h else S_WG, sFO, imm=64 * i,
                           pre=step(sFO, 64 * 2752) if not out and not first else ())
        return out

    def prologue(self):
        e = self.e
        self.stamp(0)
        e('s_cmp_ge_u32 s2, 256')
        e('s_cbranch_scc1 Lexit')
        e(f's_load_dwordx2 s[{S_X}:{S_X + 1}], s[0:1], 0')
        e(f's_load_dwordx2 s[{S_WQ}:{S_WQ + 1}], s[0:1], 8')
        e(f's_getpc_b64 s[{sT}:{sT + 1}]')
        e.label('Lpfbase')
        e(f's_lshr_b32 s{sT + 2}, s2, 3')
        e(f's_lshl_b32 s{sT + 2}, s{sT + 2}, 11')
        e(f'v_lshl_add_u32 v16, v0, 2, s{sT + 2}')
        e('v_min_u32 v16, Lcode_end-Lpfbase-4, v16')
        e('v_lshrrev_b32 v2, 6, v0')
        e('s_mov_b32 exec_lo, 1')
        e('s_mov_b32 exec_hi, 1')
        e(f'global_load_dword v{vK[1]}, v16, s[{sT}:{sT + 1}]', 'pf')
        e('s_mov_b64 exec, -1')
        e(f'v_readfirstlane_b32 s{sW}, v2')
        e('v_and_b32 v0, 63, v0')
        e(f's_xor_b32 s{sW}, s{sW}, 4')
        e(f's_and_b32 s{sTT}, s{sW}, 3')
        e(f's_lshr_b32 s{sG}, s{sW}, 2')
        e('s_cbranch_scc1 Lload')
        e('s_bitcmp1_b32 s2, 3')
        e('s_cbranch_scc1 Lcomp1')
        e('s_branch Lcomp0')

    def more_args(self, g):
        e = self.e
        lst = ([(S_GW, 56)] if g else []) + [(S_WG, 32), (S_WF, 40)]
        for b, off in lst + [(S_DBG, 72), (S_WS, 80), (S_H, 80), (S_WD, 48), (S_WO, 16), (S_OUT, 64)]:
            e(f's_load_dwordx2 s[{b}:{b + 1}], s[0:1], {off}')
        e(f'v_lshlrev_b32 v{vL16}, 4, v0')
        e(f's_and_b32 s{sTB}, s2, 4')
        e(f's_lshl_b32 s{sTB}, s{sTB}, 1')
        e(f's_lshr_b32 s{sT + 6}, s2, 5')
        e(f's_add_u32 s{sTB}, s{sTB}, s{sT + 6}')
        e(f's_and_b32 s{sJ}, s2, 3')
        e(f's_lshl_b32 s{sJ}, s{sJ}, 2')
        e(f's_bfe_u32 s{sT + 6}, s2, 0x20003')
        e(f's_add_u32 s{sJ}, s{sJ}, s{sT + 6}')
        R = self.opt['rot']
        e(f's_and_b32 s{sR}, s{sTB}, {R - 1}')
        e(f's_mul_i32 s{sR}, s{sR}, {8 // R}')

    def quad_rows(self, dst, stride, t):
        e = self.e
        e(f'v_lshrrev_b32 v{t}, 4, v0')
        e(f'v_and_b32 v{t}, 2, v{t}')
        e(f'v_xor_b32 v{t}, v{t}, v0')
        e(f'v_and_b32 v{t}, 3, v{t}')
        e(f'v_lshrrev_b32 v{dst}, 2, v0')
        e(f'v_mul_u32_u24 v{dst}, {stride}, v{dst}')
        e(f'v_lshl_add_u32 v{dst}, v{t}, 4, v{dst}')

    def tr_base(self, dst, gstride, t):
        e = self.e
        e(f'v_lshrrev_b32 v{dst}, 5, v0')
        e(f'v_mul_u32_u24 v{dst}, {gstride}, v{dst}')
        e(f'v_bfe_u32 v{t}, v0, 4, 1')
        e(f'v_mul_u32_u24 v{t}, {512 + 32}, v{t}')
        e(f'v_add_u32 v{dst}, v{dst}, v{t}')
        e(f'v_bfe_u32 v{t}, v0, 2, 2')
        e(f'v_lshl_add_u32 v{dst}, v{t}, 6, v{dst}')
        e(f'v_and_b32 v{t}, 3, v0')
        e(f'v_lshl_add_u32 v{dst}, v{t}, 3, v{dst}')

    def srd_consts(self, lst):
        for b, n in lst:
            self.e(f's_mov_b32 s{b + 2}, {n}')
            self.e(f's_mov_b32 s{b + 3}, 0x20000')

    def x_read_addrs(self):
        e = self.e
        e('v_and_b32 v16, 15, v0')
        e(f's_lshl_b32 s{sT + 6}, s{sTT}, 12')
        e('v_lshrrev_b32 v17, 4, v0')
        e('v_lshrrev_b32 v18, 1, v16')
        e('v_xor_b32 v18, v18, v17')
        e('v_lshlrev_b32 v18, 4, v18')
        e('v_lshl_add_u32 v18, v16, 7, v18')
        e(f'v_add_u32 v{vXR[0]}, s{sT + 6}, v18')
        e(f'v_xor_b32 v{vXR[1]}, 64, v{vXR[0]}')

    def topt(self, ty):
        o = dict(self.opt)
        if ty:
            o.update({k[2:]: v for k, v in self.opt.items() if k.startswith('n_')})
        return o

    def nchains(self, g, ty):
        return 2 if (ty and g == 0) else 3

    def setup2(self, g, ty):
        e = self.e
        t = sT
        self.srd_consts(([(S_DBG, 256)] if g else []) +
                        [(S_WG, 512 * 2752), (S_WF, 512 * 2752), (S_WS, WS_END), (S_H, 86 * 65536), (S_WD, 1376 * 1024), (S_WO, 512 * 1024), (S_OUT, 2048 * 1024)])
        e(f's_lshr_b32 s{sUS}, s{sJ}, 2')
        e(f's_mul_i32 s{sUS}, s{sUS}, 22')
        e(f's_bfe_u32 s{t}, s{sJ}, 0x10001')
        e(f's_mul_i32 s{t}, s{t}, {5 if ty else 16}')
        e(f's_add_u32 s{sUS}, s{sUS}, s{t}')
        if ty:
            e(f's_add_u32 s{sUS}, s{sUS}, 6')
        else:
            e(f's_min_u32 s{sUS}, s{sUS}, 80')
        e(f's_mul_i32 s{sFO}, s{sTT}, {16 * 2752}')
        e(f's_lshr_b32 s{t}, s{sUS}, 1')
        e(f's_lshl_b32 s{t}, s{t}, 6')
        e(f's_add_u32 s{sFO}, s{sFO}, s{t}')
        e(f's_add_u32 s{t}, s{sR}, {0 if g else self.topt(ty)["lonly"] + 1 - 8}')
        e(f's_and_b32 s{t}, s{t}, 7')
        e(f's_mul_i32 s{t}, s{t}, {64 * 2752}')
        e(f's_add_u32 s{sFO}, s{sFO}, s{t}')
        e(f's_mul_i32 s{sMG}, s{sTT}, 3072')
        self.quad_rows(vFD, 2752, vP)
        first = g * self.nchains(0, ty)
        self.tr_base(vP + 1, 3072, vP)
        for c in range(self.nchains(g, ty)):
            if ty:
                e(f's_and_b32 s{t}, s{sUS}, 1')
                e(f's_add_u32 s{t}, s{t}, {first + c}')
                e(f's_lshr_b32 s{t + 1}, s{t}, 1')
                e(f's_lshl_b32 s{t + 1}, s{t + 1}, 10')
                e(f's_and_b32 s{t}, s{t}, 1')
                e(f's_lshl_b32 s{t}, s{t}, 5')
                e(f'v_xor_b32 v{vFR[c]}, s{t}, v{vP + 1}')
                e(f'v_add_u32 v{vFR[c]}, s{t + 1}, v{vFR[c]}')
            else:
                u = first + c
                e(f'v_xor_b32 v{vFR[c]}, {(u & 1) * 32}, v{vP + 1}')
                e(f'v_add_u32 v{vFR[c]}, {(u >> 1) * 1024}, v{vFR[c]}')
        e(f's_add_u32 s{S_H}, s{S_H}, {WS_H}\n    s_addc_u32 s{S_H + 1}, s{S_H + 1}, 0')
        e(f's_and_b32 s{sRB}, s2, 7')
        if self.opt['rbx']:
            e(f's_xor_b32 s{sRB}, s{sRB}, 4')
        e(f's_lshl_b32 s{sRB}, s{sRB}, 2')
        e(f's_lshr_b32 s{t}, s2, 6')
        e(f's_add_u32 s{sRB}, s{sRB}, s{t}')
        e(f's_bfe_u32 s{sCB}, s2, 0x30003')
        e(f's_mov_b32 s{sVM}, 0xffff')
        e(f's_mov_b32 s{sVM + 1}, 0xffff')
        e(f's_mov_b32 s{sGC}, {fbits(GC1)}')
        e(f's_mov_b32 s{sGC + 1}, s{sGC}')
        e(f'v_and_b32 v{vVA}, 15, v0')
        e(f'v_lshrrev_b32 v{vP}, 5, v0')
        e(f'v_lshl_add_u32 v{vVA}, v{vP}, 4, v{vVA}')
        e(f'v_lshlrev_b32 v{vVA}, 4, v{vVA}')
        e(f'v_mov_b32 v{vIDX}, 0xdddddddd')
        e(f's_lshl_b32 s{t}, s{sTB}, 2')
        e(f's_add_u32 s{t}, s{t}, s{sTT}')
        e(f's_add_u32 s{sHO}, s{sUS}, {first}')
        e(f's_lshl_b32 s{sHO}, s{sHO}, 6')
        e(f's_add_u32 s{sHO}, s{sHO}, s{t}')
        e(f's_lshl_b32 s{sHO}, s{sHO}, 10')
        e(f's_add_u32 s{sHO}, s{sHO}, {WS_H}')
        e(f's_lshl_b32 s{sQO}, s{sJ}, 7')
        e(f's_add_u32 s{sMO}, s{sQO}, s{t}')
        e(f's_lshl_b32 s{sMO}, s{sMO}, 10')
        e(f's_add_u32 s{sMO}, s{sMO}, {g * 65536}')
        e(f's_and_b32 s{sQO}, s{sMO}, {0xffffffff ^ 0xc00}')
        e(f's_add_u32 s{sMO}, s{sMO}, {WS_O}')
        if g == 0:
            e(f's_lshr_b32 s{t + 1}, s{sJ}, 1')
            if ty:
                e(f's_and_b32 s{sE0}, s{t + 1}, 3')
                e(f's_lshl_b32 s{sE0}, s{sE0}, 9')
                e(f's_add_u32 s{sE0}, s{sE0}, s{t}')
                e(f's_cmp_lt_u32 s{t + 1}, 4\n    s_cselect_b32 s{sE2}, {fbits(QSCALE)}, 1.0\n    s_cselect_b32 s{t + 1}, 10, 11\n    s_cselect_b32 s{t + 2}, {WS_Q}, {WS_KV}')
                e(f's_lshl_b32 s{sE0}, s{sE0}, s{t + 1}')
                e(f's_lshl_b32 s{sE1}, 64, s{t + 1}')
                e(f's_add_u32 s{sE0}, s{sE0}, s{t + 2}')
            else:
                e(f's_lshl_b32 s{sE0}, s{t + 1}, 8')
                e(f's_add_u32 s{sE0}, s{sE0}, s{t}')
                e(f's_lshl_b32 s{sE0}, s{sE0}, 11')
                e(f's_add_u32 s{sE0}, s{sE0}, {WS_KV}')
                e(f's_add_u32 s{sE1}, s{sE0}, {2 * 131072}')
                e(f'v_bfe_u32 v{vWD}, v0, 4, 1')
                e(f'v_lshl_add_u32 v{vWD}, v{vWD}, 17, v{vVA}')
        e(f's_lshl_b32 s{sKVB}, s{sJ}, 3')
        e(f's_add_u32 s{sKVB}, s{sKVB}, s{sW}')
        e(f's_lshl_b32 s{sKVB}, s{sKVB}, 15')
        e(f's_add_u32 s{sKVB}, s{sKVB}, {WS_KV}')
        e(f's_and_b32 s{sKVI}, s{sTB}, 7')
        e(f's_lshl_b32 s{sKVI}, s{sKVI}, 12')
        e(f's_mul_i32 s{sMD}, s{sW}, {RINGW}')
        e(f's_mul_i32 s{sDO}, s{sW}, {11 * 16384}')
        e(f's_lshl_b32 s{t}, s{sCB}, 7')
        e(f's_add_u32 s{sDO}, s{sDO}, s{t}')
        e(f'v_lshrrev_b32 v{vDR[0]}, 5, v0')
        e(f'v_bfe_u32 v{vP}, v0, 2, 2')
        e(f'v_lshl_add_u32 v{vDR[0]}, v{vDR[0]}, 3, v{vP}')
        e(f'v_lshlrev_b32 v{vDR[0]}, 7, v{vDR[0]}')
        e(f'v_bfe_u32 v{vP}, v0, 4, 1')
        e(f'v_lshl_add_u32 v{vDR[0]}, v{vP}, 5, v{vDR[0]}')
        e(f'v_bfe_u32 v{vP}, v0, 3, 1')
        e(f'v_lshl_add_u32 v{vDR[0]}, v{vP}, 6, v{vDR[0]}')
        e(f'v_and_b32 v{vP}, 3, v0')
        e(f'v_lshl_add_u32 v{vDR[0]}, v{vP}, 3, v{vDR[0]}')
        e(f'v_add_u32 v{vDR[0]}, s{sMD}, v{vDR[0]}')
        e(f'v_xor_b32 v{vDR[1]}, 64, v{vDR[0]}')

    def loader_head(self):
        e = self.e
        self.more_args(1)
        e('v_lshrrev_b32 v16, 3, v0')
        e('v_lshrrev_b32 v17, 4, v0')
        e('v_and_b32 v18, 7, v0')
        e('v_xor_b32 v18, v18, v17')
        e('v_lshlrev_b32 v18, 4, v18')
        e(f'v_lshl_add_u32 v{vXD[0]}, v16, 10, v18')
        e(f'v_xor_b32 v{vXD[1]}, 64, v{vXD[0]}')
        e(f'v_add_u32 v{vXD[1]}, 8192, v{vXD[1]}')
        e(f's_lshl_b32 s{sXO}, s{sTB}, 2')
        e(f's_add_u32 s{sXO}, s{sXO}, s{sTT}')
        e(f's_lshl_b32 s{sXO}, s{sXO}, 8')
        e(f's_add_u32 s{sXO}, s{sXO}, s{sR}')
        e(f's_lshl_b32 s{sXO}, s{sXO}, 7')
        e(f's_lshl_b32 s{sMX}, s{sTT}, 12')
        self.srd_consts(((S_X, 2048 * 1024), (S_WQ, 512 * 3072), (S_GW, 1024)))
        self.quad_rows(vWD, 3072, 16)
        e(f's_lshr_b32 s{sT}, s{sJ}, 1')
        e(f's_and_b32 s{sT + 1}, s{sJ}, 1')
        e(f's_cselect_b32 s{sT + 2}, 0, 2048')
        e(f's_add_u32 s{sT + 3}, s{sT + 1}, 7')
        e(f's_lshl_b32 s{sT}, s{sT}, s{sT + 3}')
        e(f's_add_u32 s{sT}, s{sT}, s{sT + 2}')
        e(f's_lshl_b32 s{sWO}, s{sR}, 2')
        e(f's_add_u32 s{sWO}, s{sWO}, s{sTT}')
        e(f's_mul_i32 s{sWO}, s{sWO}, {16 * 3072}')
        e(f's_add_u32 s{sWO}, s{sWO}, s{sT}')
        e(f's_add_u32 s{sT + 3}, s{sT + 1}, 11')
        e(f's_lshl_b32 s{sMW}, s{sTT}, s{sT + 3}')
        e(f's_mul_i32 s{sT + 1}, s{sT + 1}, {region(0, 0)[0] - region(0, 1)[0]}')
        e(f's_sub_u32 s{sMX}, s{sMX}, s{sT + 1}')
        e(f's_sub_u32 s{sMW}, s{sMW}, s{sT + 1}')
        e('s_waitcnt lgkmcnt(0)')
        self.stamp(1)
        for f in self.dma_list(0, 0):
            f()
        e(f's_add_u32 s{sMX}, s{sMX}, s{sT + 1}')
        e(f's_add_u32 s{sMW}, s{sMW}, s{sT + 1}')
        e(f's_lshl_b32 s{sT}, s{sR}, 7')
        e(f'v_add_u32 v16, s{sT}, v{vL16}')
        e('v_and_b32 v16, 1023, v16')
        e(f's_mov_b32 m0, {L_GW}')
        e('s_bitcmp1_b32 s2, 3')
        e(f'buffer_load_dwordx4 v16, {srd(S_GW)}, 0 offen lds', 'st0')
        e('s_cbranch_scc0 Lload0')

    def phase_a_loader(self, ty):
        e = self.e
        GWB = FR
        ZA = ACA
        o = self.topt(ty)
        seq = []
        bound = []
        last = 7 + o['fah']
        for s in range(last + 1):
            bound.append(len(seq))
            seq += self.dma_list(s, ty, first=(s == 8))
        bound.append(len(seq))
        pos = 6

        def limit(b):
            k = 0
            while k <= last and free_after(k, ty) <= b:
                k += 1
            return bound[k]

        def issue(upto):
            nonlocal pos
            while pos < min(upto, len(seq)):
                seq[pos]()
                pos += 1
        issue(12)
        self.x_read_addrs()
        e(f'v_and_b32 v{vWR[0]}, 48, v0')
        fill = self.split(lambda: self.setup2(1, ty))
        for _ in range(min(len(fill), self.opt['lpre'])):
            fill.pop(0)()
        D = o['ahead']
        issue(min(bound[1] + D, limit(-1)))
        wx = Win(e, vXR)
        for s in range(8):
            slot = region(s, ty)[0]
            e.wait(vm=f'st{s}')
            e('s_barrier')
            if s in (0, 4):
                self.stamp(2 + s // 4)
            end = min(bound[s + 2] + D, limit(s))
            issue(min(end, pos + self.opt['lfirst']))
            wx.ensure(slot, slot + 2048)
            for ks in range(2):
                n = 2 * s + ks
                e(f'ds_read_b128 {vr(GWB + 4 * ks, 4)}, v{vWR[0]} offset:{L_GW + 64 * n}', f'r{n}')
                for tg in range(2):
                    e(f'ds_read_b128 {vr(X + 8 * n + 4 * tg, 4)}, v{vXR[ks]} offset:{wx.off(slot + 2048 * tg)}', f'r{n}')
            if s == 5:
                e(f'buffer_load_dwordx2 v[{vK[0]}:{vK[0] + 1}], off, {srd(S_DBG)}, 0 sc1', 'non')
            issue(end)
            for ks in range(2):
                n = 2 * s + ks
                e.wait(lg=f'r{n}')
                for tg in range(2):
                    z = vr(ZA + 4 * tg, 4)
                    e(f'v_mfma_f32_16x16x32_bf16 {z}, {vr(GWB + 4 * ks, 4)}, {vr(X + 8 * n + 4 * tg, 4)}, {z if n else 0}')
            for _ in range(40):
                if fill:
                    fill.pop(0)()
            if s == 3:
                assert not fill
        self.left = seq[pos:]
        e(f'v_and_b32 v{ZA + 8}, 16, v0')
        e(f'v_cmp_eq_u32 vcc, 0, v{ZA + 8}')
        e(f's_lshl_b32 s{sT + 1}, s{sTT}, 8')
        e(f'v_lshl_add_u32 v{ZA + 8}, v0, 2, s{sT + 1}')
        e(f'v_cndmask_b32 v{ZA}, v{ZA + 4}, v{ZA}, vcc')
        e(f'ds_write_b32 v{ZA + 8}, v{ZA} offset:{L_Z}', 'zw')
        e.wait(vm='st8')
        e('s_barrier')
        self.stamp(4)

    def qkv_acc(self, ty, ct, tg):
        if ty:
            return (ACF + 8 * ct if ct < 6 else ACA + 16 + 8 * (ct - 6)) + 4 * tg
        return ACA + 16 * (ct >> 1) + 8 * tg + 4 * (ct & 1)

    def qkv_pack(self, ty, i):
        e = self.e
        src = self.qkv_acc(1, i, 0) if ty else ACA + 8 * i
        dst = ACA + 4 * i if (ty and i < 4) else src
        ops = []
        if ty:
            ops += [f'v_mul_f32 v{src + r}, s{sE2}, v{src + r}' for r in range(8)]
        ops += [f'v_cvt_pk_bf16_f32 v{dst + r}, v{src + 2 * r}, v{src + 2 * r + 1}' for r in (0, 1, 2, 3)]
        ops += [f'v_permlane16_swap_b32 v{dst + r}, v{dst + 2 + r}' for r in range(2)]

        def st():
            if self.opt.get('x_nost'):
                return
            if ty:
                e(f'buffer_store_dwordx4 {vr(dst, 4)}, v{vL16}, {srd(S_WS)}, s{sE0} offen sc1', 'qst')
                e(f's_add_u32 s{sE0}, s{sE0}, s{sE1}')
            else:
                e(f'buffer_store_dwordx4 {vr(dst, 4)}, v{vWD}, {srd(S_WS)}, s{sE1 if i >> 1 else sE0} offen offset:{1024 + 512 * (i & 1)} sc1', 'qst')
        return [lambda o=o: e(o) for o in ops], st

    def phase_a_compute(self, ty):
        e = self.e
        NC = 8 if ty else 4
        self.more_args(0)
        e(f's_memrealtime s[{sNON}:{sNON + 1}]')
        e('v_mov_b32 v16, 0')
        e(f'v_mov_b32 v17, {L_CNT}')
        e('ds_write_b32 v17, v16', 'z0')
        self.srd_consts(((S_DBG, 256),))
        self.x_read_addrs()
        self.tr_base(vWR[0], NC * 512, 16)
        e(f'v_xor_b32 v{vWR[1]}, 32, v{vWR[0]}')
        e('s_waitcnt lgkmcnt(0)')
        for p in e.paths:
            p.lg = []
        self.stamp(1)
        if not ty:
            e(f's_or_b32 s{sT + 6}, s2, s{sW}')
            lab = e.newlabel('nn')
            e(f's_cbranch_scc1 {lab}')
            snap = e.snapshot()
            e(f's_or_b32 s{sNON + 1}, s{sNON + 1}, 0x80000000')
            e(f'v_mov_b32 v16, s{sNON}')
            e(f'v_mov_b32 v17, s{sNON + 1}')
            e('s_mov_b64 exec, 1')
            e(f'buffer_store_dwordx2 v[16:17], off, {srd(S_DBG)}, 0 sc1', 'nst')
            e('s_mov_b64 exec, -1')
            e.paths = e.paths + snap
            e.label(lab)
        fill = self.split(lambda: self.setup2(0, ty))
        for _ in range(min(len(fill), self.opt['cpre'])):
            fill.pop(0)()
        LA = self.opt['laa'] if ty else 4
        ring = [FR + 4 * i for i in range(NFR)] + [ACA + 4 * i for i in range(LA + 1 - NFR)]
        wx = Win(e, vXR)
        ww = Win(e, vWR)
        M = 16 * NC

        def reads(m):
            n, ct = divmod(m, NC)
            s, ks = divmod(n, 2)
            slot = region(s, ty)[0]
            if m % (2 * NC) == 0:
                if ty:
                    e.wait(lg='all')
                e('s_barrier')
                if s in (0, 4):
                    self.stamp(2 + s // 4)
                wx.ensure(slot, slot + 2048)
                ww.ensure(slot + 16384, slot + 32768)
            if ct == 0:
                for tg in range(2):
                    e(f'ds_read_b128 {vr(X + 8 * n + 4 * tg, 4)}, v{vXR[ks]} offset:{wx.off(slot + 2048 * tg)}', f'a{m}')
            for rd in range(2):
                t = slot + 16384 + ks * NC * 1024 + (ct >> 1) * 1024 + rd * 256
                e(f'ds_read_b64_tr_b16 {vr(ring[m % len(ring)] + 2 * rd, 2)}, v{vWR[ct & 1]} offset:{ww.off(t)}', f'a{m}')

        rp = 0

        def advance(m, most):
            nonlocal rp
            for _ in range(most):
                hold = self.opt['hold'] if ty and rp and rp % (2 * NC) == 0 else 0
                if rp < M and rp <= m + LA - hold:
                    reads(rp)
                    rp += 1

        advance(-1, LA)
        for m in range(M):
            n, ct = divmod(m, NC)
            e.wait(lg=f'a{m}')
            for tg in range(2):
                acc = vr(self.qkv_acc(ty, ct, tg), 4)
                a, b = vr(ring[m % len(ring)], 4), vr(X + 8 * n + 4 * tg, 4)
                if not ty:
                    a, b = b, a
                e(f'v_mfma_f32_16x16x32_bf16 {acc}, {a}, {b}, {acc if n else 0}')
                advance(m, 1)
            for _ in range(1 if ty else 3):
                if fill:
                    fill.pop(0)()
            if m == M * 3 // 4:
                e(f'buffer_load_dwordx2 v[{vK[0]}:{vK[0] + 1}], off, {srd(S_DBG)}, 0 sc1', 'non')
        assert not fill
        for i in range(4):
            for f in self.qkv_pack(ty, i)[0]:
                f()
        e('s_barrier')
        self.stamp(4)

    def spin(self, name, reload, check, sleep=2):
        e = self.e
        lr, lc = e.newlabel(name + 'r'), e.newlabel(name + 'c')
        check()
        e(f's_cbranch_vccnz {lr}')
        e.label(lc)

        def blk():
            e.paths = [p for p in Emitter().paths]
            e.label(lr)
            e(f's_mov_b32 s{sSPIN}, {SPIN}')
            ll = e.newlabel(name + 'l')
            e.label(ll)
            e(f's_sleep {sleep}')
            reload()
            e('s_waitcnt vmcnt(0)')
            check()
            e(f's_cbranch_vccz {lc}')
            e(f's_sub_u32 s{sSPIN}, s{sSPIN}, 1')
            e(f's_cbranch_scc0 {ll}')
            e(f's_branch {lc}')
        self.tail_blocks.append(blk)

    def flag_store(self, soff, tmp):
        e = self.e
        e(f'v_mov_b32 v{tmp}, s{sNON}')
        e(f'v_mov_b32 v{tmp + 1}, s{sNON + 1}')
        e('s_mov_b64 exec, 1')
        e(f'buffer_store_dwordx2 v[{tmp}:{tmp + 1}], off, {srd(S_WS)}, s{soff} sc1', 'flag')
        e('s_mov_b64 exec, -1')

    def kv_load(self, it):
        e = self.e
        b = it % 2

        def k():
            e(f'buffer_load_dwordx4 {vr(vK[b], 4)}, v{vKA}, {srd(S_WS)}, s{sKVI} offen sc1', f'k{it}')

        def v():
            e(f's_mov_b64 exec, s[{sVM}:{sVM + 1}]')
            e(f'buffer_load_dwordx4 {vr(vV[b], 4)}, v{vKA + 1}, {srd(S_WS)}, s{sKVI} offen offset:1024 sc1', f'v{it}')
            e(f'buffer_load_dwordx4 {vr(vV[b] + 4, 4)}, v{vKA + 1}, {srd(S_WS)}, s{sKVI} offen offset:1536 sc1', f'v{it}')
            e('s_mov_b64 exec, -1')
        return k, v

    def kv_adv(self, part=3):
        if part & 1:
            self.e(f's_addk_i32 s{sKVI}, 2048')
        if part & 2:
            self.e(f's_bitset0_b32 s{sKVI}, 15')

    def gelu(self, c):
        e = self.e
        acc = ACF + 16 * c
        T = ACA + 16
        P = lambda b, i: vr(b + 2 * i, 2)
        for i in range(4):
            e(f'v_pk_mul_f32 {P(T, i)}, {P(acc, i)}, {P(acc, i)}')
        for i in range(4):
            e(f'v_pk_fma_f32 {P(T, i)}, {P(T, i)}, s[{sGC}:{sGC + 1}], {vr(T + 8, 2)}')
        for i in range(4):
            e(f'v_pk_mul_f32 {P(T, i)}, {P(T, i)}, {P(acc, i)}')
        for i in range(8):
            e(f'v_exp_f32 v{T + i}, v{T + i}')
        for i in range(4):
            e(f'v_pk_mul_f32 {P(acc, i)}, {P(acc, i)}, {P(acc + 8, i)}')
        for i in range(4):
            ch = vr(T + 10 + 2 * (i // 2), 2)
            e(f'v_pk_fma_f32 {P(T, i)}, {P(T, i)}, {ch}, {ch}')
        for i in range(8):
            e(f'v_rcp_f32 v{T + i}, v{T + i}')
        for i in range(4):
            e(f'v_pk_mul_f32 {P(acc, i)}, {P(acc, i)}, {P(T, i)}')
        for i in (0, 2, 1, 3):
            e(f'v_cvt_pk_bf16_f32 v{acc + 8 + i}, v{acc + 2 * i}, v{acc + 2 * i + 1}')
        for r in range(2):
            e(f'v_permlane16_swap_b32 v{acc + 8 + r}, v{acc + 10 + r}')

    def h_store(self, c):
        e = self.e
        e(f's_add_u32 s{sT}, s{sHO}, {65536 * c}')
        e(f'buffer_store_dwordx4 {vr(ACF + 16 * c + 8, 4)}, v{vL16}, {srd(S_WS)}, s{sT} offen sc1', 'hst')

    def split(self, fn):
        real = self.e
        rec = []

        class Rec:
            def __call__(s, text, tag=None):
                rec.append(('i', text, tag))

            def wait(s, vm=None, lg=None):
                rec.append(('w', vm, lg))
        self.e = Rec()
        fn()
        self.e = real
        out, grp = [], []
        for r in rec:
            grp.append(r)
            masked = any(x[0] == 'i' and x[1].startswith('s_mov_b64 exec') for x in grp)
            if (masked and r[1] != 's_mov_b64 exec, -1') or r[0] == 'w':
                continue

            def f(grp=grp):
                for x in grp:
                    if x[0] == 'i':
                        real(x[1], x[2])
                    else:
                        real.wait(vm=x[1], lg=x[2])
            out.append(f)
            grp = []
        assert not grp
        return out

    def phase_f(self, g, ty):
        e = self.e
        o = self.topt(ty)
        NC = self.nchains(g, ty)
        PS = 4 * NC
        M = 8 * PS
        sc = lambda m: m * PS // 12
        LA = 4
        wf = Win(e, vFR[:NC])
        fill = []
        at = {}
        cur = [0]
        polled = False

        def pin(m, f):
            at.setdefault(m, []).append(f)

        def sched(s, m0, span, extra=()):
            part = 0
            if s <= 15:
                assert free_after(s, ty) <= s - o['fah']
                part = (3 if g else 0) if s <= o['lonly'] else (o['late'] if g == 0 else 3 - o['late'])
            lst = list(extra) + (self.dma_list(s, ty, part, first=(g == 0 and s == o['lonly'] + 1)) if part else [])
            for i, f in enumerate(lst):
                pin(m0 + i * span // len(lst), f)

        def enter(s):
            e.wait(vm=[f'st{s}'] + (['qst'] if s == o['qw'] else []), lg='zw' if s == 9 else None)
            e('s_barrier')
            sched(s + o['fah'], cur[0] + 1, sc(o['span']))
            if s == 9:
                fill.extend(self.split(self.gate_read))
                fill.append(self.nonce_get)
                fill.extend(self.split(self.attn_setup))
                fill.extend(self.split(self.gate_math))
            if s == o['qw'] and g == 0:
                fill.insert(0, self.flag1)

        def reads(m):
            s = 8 + m // PS
            if m % PS == 0 and m:
                enter(s)
            ks, r = divmod(m % PS, 2 * NC)
            c, gu = divmod(r, 2)
            slot = region(s, ty)[0]
            wf.ensure(slot, slot + 2 * UPOFF)
            for rd in range(2):
                t = slot + gu * UPOFF + ks * 6144 + rd * 256
                e(f'ds_read_b64_tr_b16 {vr(FR + 4 * (m % NFR) + 2 * rd, 2)}, v{vFR[c]} offset:{wf.off(t)}', f'f{m}')

        if g == 0:
            for i in range(4):
                pin(o['q0'] + o['qsp'] * i, self.qkv_pack(ty, i)[1])
            if ty:
                for i in range(4, 8):
                    ops, st = self.qkv_pack(ty, i)
                    m0 = o['q0'] + o['qsp'] * (i - 1)
                    for k, f in enumerate(ops):
                        pin(m0 + k * o['qsp'] // len(ops), f)
                    pin(m0 + o['qsp'], st)
            assert o['q0'] + o['qsp'] * 7 < sc(o['vi'])
        sched(8 + o['fah'], 0, PS - LA, self.left if g else ())
        for m in range(LA):
            reads(m)
        if o['prio']:
            pin(sc(50), lambda: e('s_setprio 3'))
        for m in range(M):
            cur[0] = m
            n, r = divmod(m, 2 * NC)
            c, gu = divmod(r, 2)
            e.wait(lg=[f'f{m + k}' for k in range(o['wpf'] if m % o['wpf'] == 0 else 1)])
            for tg in range(2):
                acc = vr(ACF + 16 * c + 8 * gu + 4 * tg, 4)
                e(f'v_mfma_f32_16x16x32_bf16 {acc}, {vr(FR + 4 * (m % NFR), 4)}, {vr(X + 8 * n + 4 * tg, 4)}, {acc if n else 0}')
                if tg == 0 and m + LA < M:
                    reads(m + LA)
            if m % PS == 0 and 2 * PS <= m:
                self.stamp(5 + m // PS, 1)
            if m == sc(o['vi']):
                fill.extend(self.split(self.v_init))
            if m == sc(48) and not o['zm']:
                fill.extend(self.split(self.o_init))
            if m == sc(o['om']):
                fill.extend(self.split(self.o_mark))
            if m == sc(o['tch']) and g == 0:
                fill.append(self.touch)
            if m == sc(o['p1i']):
                fill.append(self.poll1_issue)
            if m == sc(o['p1c']):
                fill.append(self.poll1_check)
                for grp in self.attn_loads_early():
                    fill.append(grp)
                    fill.extend([lambda: None] * o['lsp'])
                polled = True
            for f in at.pop(m, []):
                f()
            k = o['fk'] if m < sc(o['p1c']) else o['gk']
            for _ in range(k * 3 // NC):
                if fill:
                    fill.pop(0)()
        assert not at
        self.stamp(5)
        ge = []
        chains = list(range(NC))[::-1] if o['hl'] else list(range(NC))
        for c in chains:
            ge += self.split(lambda: self.gelu(c))
        NS = NC - o['hl']
        stored = 0
        for k, f in enumerate(ge):
            if not polled and k == o['pg']:
                fill.append(self.poll1_check)
                fill.append(lambda: self.stamp(7, 3))
                for grp in self.attn_loads_early():
                    fill.append(grp)
                    fill.extend([lambda: None] * o['lsp'])
                fill.append(lambda: self.stamp(8, 3))
                polled = True
            f()
            if fill and k % o['gsp'] == 0:
                fill.pop(0)()
            if polled and not fill and stored < NS and (stored + 1) * len(ge) // NC <= k:
                self.h_store(chains[stored])
                stored += 1
        for f in fill:
            f()
        for c in range(stored, NS):
            self.h_store(chains[c])

    def o_mark(self):
        e = self.e
        for i in range(4):
            e(f'v_mov_b32 v{ACA + 16 + i}, -1')
        e(f'buffer_store_dwordx4 {vr(ACA + 16, 4)}, v{vL16}, {srd(S_WS)}, s{sMO} offen sc1', 'hst')

    def gate_read(self):
        e = self.e
        e(f's_lshl_b32 s{sT}, s{sTT}, 8')
        e(f'v_and_b32 v{vCH}, 15, v0')
        e(f'v_lshl_add_u32 v{vCH}, v{vCH}, 2, s{sT}')
        e(f'v_add_u32 v{vCH}, {L_Z}, v{vCH}')
        e(f'ds_read2_b32 {vr(vCH, 2)}, v{vCH} offset0:0 offset1:16', 'zr')

    def gate_math(self):
        e = self.e
        e.wait(lg='zr')
        for i in range(2):
            e(f'v_mul_f32 v{vCH + i}, {fbits(LOG2E)}, v{vCH + i}')
        for i in range(2):
            e(f'v_exp_f32 v{vCH + i}, v{vCH + i}')
        for i in range(2):
            e(f'v_add_f32 v{vCH + i}, 1.0, v{vCH + i}')

    def nonce_get(self):
        e = self.e
        e.wait(vm='non')
        ld = lambda: e(f'buffer_load_dwordx2 v[{vK[0]}:{vK[0] + 1}], off, {srd(S_DBG)}, 0 sc1')
        ck = lambda: e(f'v_cmp_eq_u32 vcc, 0, v{vK[0] + 1}')
        self.spin('non', ld, ck)
        e(f'v_readfirstlane_b32 s{sNON}, v{vK[0]}')
        e(f'v_readfirstlane_b32 s{sNON + 1}, v{vK[0] + 1}')

    def flag1(self):
        e = self.e
        lab = e.newlabel('f1')
        e(f's_cmp_lg_u32 s{sW}, 0')
        e(f's_cbranch_scc1 {lab}')
        snap = e.snapshot()
        e(f's_lshl_b32 s{sT + 7}, s{sJ}, 4')
        e(f's_add_u32 s{sT + 7}, s{sT + 7}, s{sTB}')
        e(f's_lshl_b32 s{sT + 7}, s{sT + 7}, {self.opt["fs"]}')
        e(f's_add_u32 s{sT + 7}, s{sT + 7}, {WS_F1}')
        self.flag_store(sT + 7, vK[0])
        e.paths = e.paths + snap
        e.label(lab)

    def touch(self):
        e = self.e
        lab = e.newlabel('tc')
        e(f's_cmp_lg_u32 s{sW}, 3')
        e(f's_cbranch_scc1 {lab}')
        snap = e.snapshot()
        e(f'v_lshlrev_b32 v{vK[0]}, 7, v0')
        e(f's_mul_i32 s{sT}, s2, {43 * 128}')
        e(f's_lshl_b32 s{sT + 1}, s2, 11')
        e(f's_mov_b64 exec, 0xffff')
        e(f'buffer_load_dword v{vK[0] + 1}, v{vK[0]}, {srd(S_WO)}, s{sT + 1} offen', 'touch')
        e(f's_mov_b32 exec_lo, -1')
        e(f's_mov_b32 exec_hi, 0x7ff')
        e(f'buffer_load_dword v{vK[0] + 2}, v{vK[0]}, {srd(S_WD)}, s{sT} offen', 'touch')
        e('s_mov_b64 exec, -1')
        e.paths = e.paths + snap
        e.label(lab)

    def attn_setup(self):
        e = self.e
        e(f's_lshr_b32 s{sT + 2}, s{sJ}, 2')
        e(f's_lshl_b32 s{sT + 2}, s{sT + 2}, 5')
        e(f's_lshl_b32 s{sT + 3}, s{sTT}, 2')
        e(f's_add_u32 s{sT}, s{sT + 2}, s{sT + 3}')
        e(f's_add_u32 s{sT}, s{sT}, {9 * 16}')
        e(f's_and_b32 s{sT + 1}, s{sJ}, 14')
        e(f's_lshl_b32 s{sT + 1}, s{sT + 1}, 4')
        e(f's_add_u32 s{sT + 1}, s{sT + 1}, s{sT + 3}')
        e(f's_add_u32 s{sT + 2}, s{sT + 2}, s{sTB}')
        e(f's_add_u32 s{sT + 2}, s{sT + 2}, 16')
        e(f'v_mov_b32 v{vPA}, s{sT + 2}')
        e(f'v_and_b32 v{vP}, 3, v0')
        e('s_mov_b64 exec, 0xff')
        e(f'v_add_u32 v{vPA}, s{sT + 1}, v{vP}')
        e('s_mov_b64 exec, 0xf')
        e(f'v_add_u32 v{vPA}, s{sT}, v{vP}')
        e('s_mov_b64 exec, -1')
        e(f'v_lshlrev_b32 v{vPA}, {self.opt["fs"]}, v{vPA}')
        e(f'v_add_u32 v{vPA}, {WS_F1}, v{vPA}')
        e(f'v_lshrrev_b32 v{vDD[0]}, 3, v0')
        e(f'v_lshrrev_b32 v{vP}, 2, v0')
        e(f'v_and_b32 v{vP}, 4, v{vP}')
        e(f'v_xor_b32 v{vP}, v{vP}, v0')
        e(f'v_and_b32 v{vP}, 7, v{vP}')
        e(f'v_lshlrev_b32 v{vP}, 4, v{vP}')
        e(f'v_lshl_add_u32 v{vDD[0]}, v{vDD[0]}, 10, v{vP}')
        e(f'v_add_u32 v{vDD[1]}, {8192 - 1024}, v{vDD[0]}')
        e(f'v_add_u32 v{vRW[0]}, s{sMD}, v{vL16}')
        e(f'v_lshl_add_u32 v{vRW[1]}, v0, 2, s{sMD}')

    def o_init(self):
        e = self.e
        for t in range(4):
            for i in range(self.opt['oz']):
                e(f'v_mov_b32 v{vO[t] + i}, 0')

    def v_init(self):
        e = self.e
        e(f'v_and_b32 v{vV[0] + 1}, 27, v0')
        e(f'v_cmp_eq_u32 vcc, 16, v{vV[0] + 1}')
        e(f'v_mov_b32 v{vV[0] + 1}, 0x3f803f80')
        e(f'v_cndmask_b32 v{vV[0]}, 0, v{vV[0] + 1}, vcc')
        for i in range(1, 16):
            e(f'v_mov_b32 v{vV[0] + i}, v{vV[0]}')
        e(f'v_mov_b32 v{ACA + 24}, {fbits(GC0)}')
        e(f'v_mov_b32 v{ACA + 25}, v{ACA + 24}')
        for i in range(4):
            e(f'v_min_f32 v{ACA + 26 + i}, {fbits(2.0 ** 100)}, v{vCH + i // 2}')
        e(f'v_add_u32 v{vKA}, s{sKVB}, v{vL16}')
        e(f'v_add_u32 v{vKA + 1}, s{sKVB}, v{vVA}')

    def poll1_issue(self):
        e = self.e
        e('s_mov_b64 exec, 0x1ff')
        e(f'buffer_load_dwordx2 v[{vP}:{vP + 1}], v{vPA}, {srd(S_WS)}, 0 offen sc1', 'p1')
        e('s_mov_b64 exec, -1')

    def poll1_check(self):
        e = self.e
        e.wait(vm='p1')
        e('s_mov_b64 exec, 0x1ff')
        e(f'v_cmp_ne_u64 vcc, s[{sNON}:{sNON + 1}], v[{vP}:{vP + 1}]')
        e('s_mov_b64 exec, -1')
        e(f's_mov_b32 s{sPEND}, vcc_lo')

    def attn_load_groups(self):
        e = self.e
        k0, v0 = self.kv_load(0)
        k1, v1 = self.kv_load(1)

        def q(i):
            e(f's_add_u32 s{sT + 1}, s{sTT}, {1 + i}')
            e(f's_and_b32 s{sT + 1}, s{sT + 1}, 3')
            e(f's_lshl_b32 s{sT + 1}, s{sT + 1}, 10')
            e(f's_add_u32 s{sT + 1}, s{sT + 1}, s{sQO}')
            e(f'buffer_load_dwordx4 {vr(vQ[i], 4)}, v{vL16}, {srd(S_WS)}, s{sT + 1} offen' + (' sc1' if self.opt['qsc'] else ''), f'q{i}')
        return [k0, lambda: q(0), lambda: (v0(), self.kv_adv()), lambda: q(1), lambda: q(2), lambda: q(3), k1, lambda: (v1(), self.kv_adv())]

    def attn_loads_early(self):
        e = self.e
        out = []
        for n, f in enumerate(self.attn_load_groups()):
            def g(f=f, n=n):
                lab = e.newlabel('al')
                e(f's_cmp_lg_u32 s{sPEND}, 0')
                e(f's_cbranch_scc1 {lab}')
                if n == 0:
                    skip = e.snapshot()
                    for p in skip:
                        p.g = 'pend'
                else:
                    skip = [p for p in e.paths if p.g == 'pend']
                    e.paths = [p for p in e.paths if p.g != 'pend']
                f()
                e.paths = e.paths + skip
                e.label(lab)
            out.append(g)
        return out

    def attn_loads_late(self):
        e = self.e
        e(f's_cmp_lg_u32 s{sPEND}, 0')
        e('s_cbranch_scc1 Llate')
        e.label('Llate_done')
        e.paths = [p for p in e.paths if p.g != 'pend']

        def blk():
            e.paths = [p for p in Emitter().paths]
            e.label('Llate')
            e('s_mov_b64 exec, 0x1ff')
            ld = lambda: e(f'buffer_load_dwordx2 v[{vP}:{vP + 1}], v{vPA}, {srd(S_WS)}, 0 offen sc1')
            ck = lambda: e(f'v_cmp_ne_u64 vcc, s[{sNON}:{sNON + 1}], v[{vP}:{vP + 1}]')
            ld()
            e('s_waitcnt vmcnt(0)')
            self.spin('p1', ld, ck, self.opt['sl1'])
            e('s_mov_b64 exec, -1')
            for f in self.attn_load_groups():
                f()
            e('s_waitcnt vmcnt(0)')
            e('s_branch Llate_done')
        self.tail_blocks.append(blk)

    def attention(self):
        e = self.e
        G0 = self.opt['g2start']
        NT = 64

        def qk(t):
            it, sl = divmod(t, 4)
            if sl == 0:
                e.wait(vm=f'k{it}')
            if it == 0:
                e.wait(vm=f'q{sl}')
            e(f'v_mfma_f32_32x32x16_bf16 {vr(vS[t % 2], 16)}, {vr(vK[it % 2], 4)}, {vr(vQ[sl], 4)}, 0')

        def pv(t, hi):
            it, sl = divmod(t, 4)
            if sl == 0 and not hi:
                e.wait(vm=f'v{it}')
            e(f'v_smfmac_f32_32x32x32_bf16 {vr(vO[sl], 16)}, {vr(vV[it % 2] + 4 * hi, 4)}, {vr(vS[t % 2] + 8 * hi, 8)}, v{vIDX}')

        def ex(t, a, b):
            for i in range(a, b):
                e(f'v_exp_f32 v{vS[t % 2] + i}, v{vS[t % 2] + i}')

        def stage_dma(rs, i, tag):
            return lambda: e(f'buffer_load_dwordx4 v{vDD[i]}, {srd(rs)}, s{sDO} offen' + (' offset:1024' if i else '') + ' lds', tag)

        def wo_first():
            e(f's_lshl_b32 s{sDO}, s{sW}, 16')
            e(f's_lshl_b32 s{sT}, s{sCB}, 7')
            e(f's_add_u32 s{sDO}, s{sDO}, s{sT}')
            e(f's_lshl_b32 s{sMD}, s{sW}, 13')

        def h_load(step, i):
            return lambda: e(f'buffer_load_dwordx4 {vr(vH[step % 2] + 4 * i, 4)}, v{vHA[i]}, {srd(S_H)}, s{sHO} offen sc1', f'h{step}')

        def wd_read(step, jj):
            def f():
                e.wait(vm=f'd{step}')
                for rd in range(2):
                    e(f'ds_read_b64_tr_b16 {vr(vD + 4 * jj + 2 * rd, 2)}, v{vDR[jj]} offset:{L_RING + 2048 * (step % 3) + 512 * rd}', f'dr{step}_{jj}')
            return f

        def g2(step, sl):
            jj, i = divmod(sl, 2)
            e.wait(vm=f'h{step}', lg=f'dr{step}_{jj}')
            acc = vr(vG[i * 2 + jj], 16)
            e(f'v_mfma_f32_32x32x16_bf16 {acc}, {vr(vD + 4 * jj, 4)}, {vr(vH[step % 2] + 4 * i, 4)}, {acc if step else 0}')

        def sig2_a():
            e.wait(vm='hst')
            e(f'v_mov_b32 v{vP}, {L_CNT}')
            e(f'v_mov_b32 v{vP + 1}, 1')
            e('s_mov_b64 exec, 1')
            e(f'ds_add_rtn_u32 v{vP}, v{vP}, v{vP + 1}', 'cnt2')
            e('s_mov_b64 exec, -1')

        def sig2_b():
            e.wait(lg='cnt2')
            e(f'v_readfirstlane_b32 s{sT}, v{vP}')
            lab = e.newlabel('f2')
            e(f's_cmp_lg_u32 s{sT}, 7')
            e(f's_cbranch_scc1 {lab}')
            snap = e.snapshot()
            e(f's_lshl_b32 s{sT}, s{sTB}, 4')
            e(f's_add_u32 s{sT}, s{sT}, s{sJ}')
            e(f's_lshl_b32 s{sT}, s{sT}, {self.opt["fs"]}')
            e(f's_add_u32 s{sT}, s{sT}, {WS_F2}')
            self.flag_store(sT, vP)
            e.paths = e.paths + snap
            e.label(lab)
            e(f's_and_b32 s{sT}, s{sW}, 1')
            e(f's_lshl_b32 s{sT}, s{sT}, 10')
            e(f'v_add_u32 v{vHA[0]}, s{sT}, v{vL16}')
            e(f'v_xor_b32 v{vHA[1]}, 1024, v{vHA[0]}')
            e(f's_mul_i32 s{sHO}, s{sW}, {11 * 65536}')
            e(f's_lshl_b32 s{sT}, s{sRB}, 11')
            e(f's_add_u32 s{sHO}, s{sHO}, s{sT}')

        def poll2_issue():
            e(f's_lshr_b32 s{sT + 1}, s{sRB}, 1')
            e(f's_lshl_b32 s{sT + 1}, s{sT + 1}, {4 + self.opt["fs"]}')
            e(f's_add_u32 s{sT + 1}, s{sT + 1}, {WS_F2}')
            e(f'v_lshl_add_u32 v{vPA}, v0, {self.opt["fs"]}, s{sT + 1}')
            e('s_mov_b64 exec, 0xffff')
            e(f'buffer_load_dwordx2 v[{vP}:{vP + 1}], v{vPA}, {srd(S_WS)}, 0 offen sc1', 'p2')
            e('s_mov_b64 exec, -1')

        def poll2_check():
            e.wait(vm='p2')
            e('s_mov_b64 exec, 0xffff')
            ld = lambda: e(f'buffer_load_dwordx2 v[{vP}:{vP + 1}], v{vPA}, {srd(S_WS)}, 0 offen sc1')
            ck = lambda: e(f'v_cmp_ne_u64 vcc, s[{sNON}:{sNON + 1}], v[{vP}:{vP + 1}]')
            self.spin('p2', ld, ck, self.opt['sl2'])
            e('s_mov_b64 exec, -1')

        def cnt_issue():
            e(f'v_mov_b32 v{vPA}, {L_CNT}')
            e(f'ds_read_b32 v{vP}, v{vPA}', 'cnt3')

        def cnt_check():
            e.wait(lg='cnt3')

            def ld():
                e(f'ds_read_b32 v{vP}, v{vPA}')
                e('s_waitcnt lgkmcnt(0)')
            self.spin('c3', ld, lambda: e(f'v_cmp_ne_u32 vcc, 8, v{vP}'))

        def co_read():
            e(f's_lshl_b32 s{sT}, s{sTT}, 8')
            e(f'v_lshl_add_u32 v{vCO}, v0, 2, s{sT}')
            e(f'ds_read_b32 v{vCO}, v{vCO} offset:{L_Z}', 'zr2')

        def co_math():
            e.wait(lg='zr2')
            e(f'v_mul_f32 v{vCO}, {fbits(-LOG2E)}, v{vCO}')
            e(f'v_exp_f32 v{vCO}, v{vCO}')

        def ored_addr(i):
            def f():
                e(f's_sub_u32 s{sT}, s{sTT}, {1 + i}')
                e(f's_and_b32 s{sT}, s{sT}, 3')
                e(f's_lshl_b32 s{sT + 1}, s{sG}, 2')
                e(f's_add_u32 s{sT}, s{sT}, s{sT + 1}')
                e(f's_mul_i32 s{sT}, s{sT}, {RINGW}')
                e(f'v_add_u32 v{vRR + i}, s{sT}, v{vL16}')
                e(f'v_lshl_add_u32 v{vRR + 3 + i}, v0, 2, s{sT}')
            return f

        def o_addr():
            e(f's_lshr_b32 s{sO[0]}, s{sW}, 1')
            e(f's_lshl_b32 s{sO[0]}, s{sO[0]}, 19')
            e(f's_lshl_b32 s{sT}, s{sRB}, 11')
            e(f's_add_u32 s{sO[0]}, s{sO[0]}, s{sT}')
            e(f's_add_u32 s{sO[0]}, s{sO[0]}, {WS_O}')

        def o_addr2():
            for k in range(1, 8):
                e(f's_add_u32 s{sO[k]}, s{sO[0]}, {65536 * k}')

        def o_addr3():
            e(f'v_and_b32 v{vPA}, 1024, v{vHA[0]}')
            e(f'v_lshl_add_u32 v{vPA}, v0, 16, v{vPA}')

        def ored_write(sl):
            def f():
                o = L_RING + 2304 * sl
                e(f'ds_write_b128 v{vRW[0]}, {vr(vO[sl], 4)} offset:{o}', 'orw')
                e(f'ds_write_b128 v{vRW[0]}, {vr(vO[sl] + 4, 4)} offset:{o + 1024}', 'orw')
                e(f'ds_write_b32 v{vRW[1]}, v{vO[sl] + 8} offset:{o + 2048}', 'orw')
            return f

        side = {}
        add = lambda t, p, f: side.setdefault((t, p), []).append(f)
        I = lambda text: (lambda: e(text))
        for it in range(16):
            t = 4 * it
            st = it - G0
            add(t, 1, lambda it=it, st=st: e.wait(vm=[f'v{it}', f'h{st}'], lg=f'dr{st}_0'))
            add(t + 2, 2, lambda it=it, st=st: e.wait(vm=[f'k{it + 1}', f'd{st + 1}'], lg=f'dr{st}_1'))
            if 1 <= it < 15:
                add(t, 0, self.kv_load(it + 1)[1])
                add(t, 2, self.kv_adv)
            if it < 14:
                add(t + 2, 1, self.kv_load(it + 2)[0])
        for step in range(11):
            t = 4 * (G0 + step)
            add(t - 7, 2, I(f's_add_u32 m0, s{sMD}, {L_RING + 2048 * (step % 3)}'))
            add(t - 7, 4, stage_dma(S_WD, 0, f'd{step}'))
            add(t - 6, 0, stage_dma(S_WD, 1, f'd{step}'))
            add(t - 6, 0, I(f's_addk_i32 s{sDO}, 16384'))
            add(t - 4, 4, h_load(step, 0))
            add(t - 3, 1, h_load(step, 1))
            add(t - 3, 2, I(f's_add_u32 s{sHO}, s{sHO}, 65536'))
            add(t - 1, 0, wd_read(step, 0))
            add(t + 1, 0, wd_read(step, 1))
        t = 4 * (G0 + 8) + 2
        add(t, 4, wo_first)
        for k in range(4):
            add(t + 1 + k, 1, I(f's_add_u32 m0, s{sMD}, {L_WO + 2048 * k}'))
            add(t + 1 + k, 2, stage_dma(S_WO, 0, 'wo'))
            add(t + 1 + k, 2, stage_dma(S_WO, 1, 'wo'))
            add(t + 1 + k, 4, I(f's_addk_i32 s{sDO}, 16384'))
        add(4 * (G0 + 8), 2, cnt_issue)
        add(4 * (G0 + 8) + 1, 2, cnt_check)
        for c in range(self.opt['hl']):
            add(c * self.opt['hsp'], 2, lambda c=c: self.h_store(c))
        for i in range(3):
            add(22 + 4 * i, 2, ored_addr(i))
        add(34, 2, o_addr)
        add(38, 2, o_addr2)
        add(58, 2, o_addr3)
        add(2, 2, co_read)
        add(3, 2, co_math)
        add(self.opt['s2t'], 2, sig2_a)
        add(self.opt['s2t'] + 1, 2, sig2_b)
        add(4 * (G0 - 2) + 2, 2, poll2_issue)
        add(4 * (G0 - 1), 2, poll2_check)
        for sl in range(3):
            add(61 + sl, 3, ored_write(sl))
        if self.opt['prio']:
            add(self.opt['pa'], 2, lambda: e('s_setprio 2'))
            add(self.opt['pb'], 2, lambda: e('s_setprio 1'))
            add(self.opt['pc'], 2, lambda: e('s_setprio 0'))

        def run(t, p):
            for f in side.get((t, p), []):
                f()

        def zero(sl):
            e(f'v_mfma_f32_32x32x16_bf16 {vr(vO[sl], 16)}, {vr(vD, 4)}, {vr(vD, 4)}, 0')

        if self.opt['zm']:
            for i in range(4):
                e(f'v_mov_b32 v{vD + i}, 0')
        qk(0)
        self.stamp(9, 3)
        if self.opt['zm']:
            zero(0)
        for t in range(NT):
            it, sl = divmod(t, 4)
            ex(t, 0, 2)
            if t > 0:
                pv(t - 1, 1)
            run(t, 0)
            ex(t, 2, 5)
            if t + 1 < NT:
                qk(t + 1)
            run(t, 1)
            ex(t, 5, 10)
            pv(t, 0)
            run(t, 2)
            ex(t, 10, 13)
            if G0 <= it < G0 + 11:
                g2(it - G0, sl)
            if t < 3 and self.opt['zm']:
                zero(t + 1)
            run(t, 4)
            ex(t, 13, 16)
            run(t, 3)
            if t in (7, 31):
                self.stamp(7 if t == 7 else 8)
        pv(NT - 1, 1)

    def tail(self):
        e = self.e
        own = vO[3]
        R = vO[0]
        P2 = lambda b, i: vr(b + 2 * i, 2)
        self.stamp(9)
        ld = lambda tag=None: e(f'buffer_load_dword v{vP}, v{vPA}, {srd(S_WS)}, s{sO[0]} offen offset:1020 sc1', tag)
        OF = ACA

        def old(kk, tag=None):
            for k in (2 * kk, 2 * kk + 1):
                e(f'buffer_load_dwordx4 {vr(OF + 4 * k, 4)}, v{vHA[0]}, {srd(S_WS)}, s{sO[k]} offen sc1', tag)

        e.wait(vm='wo', lg='all')
        e('s_barrier')
        e('s_mov_b64 exec, 0xff')
        ld('p3')
        e('s_mov_b64 exec, -1')
        for i in range(3):
            e(f'ds_read_b32 v{R + 24 + i}, v{vRR + 3 + i} offset:{L_RING + 2304 * i + 2048}', f'or{i}')
        for i in range(3):
            o = L_RING + 2304 * i
            e(f'ds_read_b128 {vr(R + 8 * i, 4)}, v{vRR + i} offset:{o}', f'oa{i}')
            e(f'ds_read_b128 {vr(R + 8 * i + 4, 4)}, v{vRR + i} offset:{o + 1024}', f'oa{i}')
        e.wait(lg='or2')
        e(f'v_add_f32 v{R + 24}, v{R + 24}, v{R + 25}')
        e(f'v_add_f32 v{own + 8}, v{own + 8}, v{R + 26}')
        e(f'v_add_f32 v{own + 8}, v{own + 8}, v{R + 24}')
        e(f'v_subrev_u32 v{R + 24}, {(127 - 60) << 23}, v{own + 8}')
        e(f'v_cmp_lt_u32 vcc, {120 << 23}, v{R + 24}')
        e(f'v_fma_f32 v{R + 28}, v{own + 8}, v{vCO}, v{own + 8}')
        e(f'v_rcp_f32 v{R + 28}, v{R + 28}')
        for i in range(3):
            e.wait(lg=f'oa{i}')
            for r in range(4):
                e(f'v_pk_add_f32 {P2(own, r)}, {P2(own, r)}, {P2(R + 8 * i, r)}')
        e('s_cbranch_vccnz Lsafe')
        e.label('Lsafe_done')
        self.tail_blocks.append(self.safe_softmax)
        e(f'v_mov_b32 v{R + 29}, v{R + 28}')
        for r in range(4):
            e(f'v_pk_mul_f32 {P2(own, r)}, {P2(own, r)}, {vr(R + 28, 2)}')
        for r in range(4):
            e(f'v_cvt_pk_bf16_f32 v{vK[0] + r}, v{own + 2 * r}, v{own + 2 * r + 1}')
        for r in range(4):
            e(f'v_min_u32 v{vK[0] + r}, -2, v{vK[0] + r}')
        e(f'buffer_store_dwordx4 {vr(vK[0], 4)}, v{vL16}, {srd(S_WS)}, s{sMO} offen sc1', 'ost')
        self.stamp(10)
        vFW, vFRd, vOA = FR, FR + 4, FR + 6
        WO = vO[0]
        PRE = X + 64
        e(f's_lshr_b32 s{sT + 1}, s{sW}, 1')
        e(f's_lshl_b32 s{sT + 2}, s{sT + 1}, 14')
        e(f's_mul_i32 s{sT + 3}, s{sW}, {RINGW}')
        e(f's_sub_u32 s{sT + 2}, s{sT + 2}, s{sT + 3}')
        e(f's_add_u32 s{sT + 2}, s{sT + 2}, {L_WO}')
        e(f'v_and_b32 v{vP + 1}, 32, v0')
        e(f'v_lshlrev_b32 v{vP + 1}, 4, v{vP + 1}')
        e(f'v_sub_u32 v{vP + 1}, s{sT + 2}, v{vP + 1}')
        for jj in range(2):
            e(f'v_add_u32 v{vDR[jj]}, v{vP + 1}, v{vDR[jj]}')

        def wo_reads(k):
            for jj in range(2):
                for rd in range(2):
                    e(f'ds_read_b64_tr_b16 {vr(WO + 8 * k + 4 * jj + 2 * rd, 2)}, v{vDR[jj]} offset:{2048 * k + 1024 * rd}', 'wor')

        def addrs():
            t0, t1 = vK[1], vK[1] + 1
            e(f'v_and_b32 v{vFW}, 31, v0')
            e(f'v_lshrrev_b32 v{t0}, 5, v0')
            e(f'v_and_b32 v{t1}, 7, v0')
            e(f'v_xor_b32 v{t0}, v{t0}, v{t1}')
            e(f'v_lshlrev_b32 v{t0}, 4, v{t0}')
            e(f'v_lshl_add_u32 v{vFW}, v{vFW}, 8, v{t0}')
            e(f's_lshl_b32 s{sT}, s{sW}, 14')
            e(f'v_add_u32 v{vFW}, s{sT}, v{vFW}')
            for q in range(1, 4):
                e(f'v_xor_b32 v{vFW + q}, {32 * q}, v{vFW}')
            e(f'v_lshrrev_b32 v{t0}, 3, v0')
            e(f'v_lshlrev_b32 v{vOA}, 4, v{t1}')
            e(f'v_lshl_add_u32 v{vOA}, v{t0}, 10, v{vOA}')
            e(f'v_lshlrev_b32 v{t1}, 1, v{t1}')
            e(f'v_xor_b32 v{t1}, v{t1}, v{t0}')
            e(f'v_lshlrev_b32 v{t1}, 4, v{t1}')
            e(f'v_lshl_add_u32 v{vFRd}, v{t0}, 8, v{t1}')
            e(f's_and_b32 s{sT + 2}, s{sW}, 1')
            e(f's_lshl_b32 s{sT + 3}, s{sT + 2}, 3')
            e(f's_add_u32 s{sT + 3}, s{sT + 3}, s{sT + 1}')
            e(f's_lshl_b32 s{sT + 3}, s{sT + 3}, 11')
            e(f'v_add_u32 v{vFRd}, s{sT + 3}, v{vFRd}')
            e(f'v_xor_b32 v{vFRd + 1}, 16, v{vFRd}')
            for h in range(2):
                e(f'v_add_u32 v{vRR + h}, 65536, v{vFRd + h}')
                e(f'v_xor_b32 v{vRR + 2 + h}, {16384 + 8192}, v{vFRd + h}')
                e(f'v_xor_b32 v{vRR + 4 + h}, {16384 + 8192}, v{vRR + h}')
            e(f's_lshl_b32 s{sT + 2}, s{sT + 2}, 2')
            e(f's_add_u32 s{sT + 2}, s{sT + 2}, s{sT + 1}')
            e(f's_lshl_b32 s{sT}, s{sRB}, 3')
            e(f's_add_u32 s{sT}, s{sT}, s{sT + 2}')
            e(f's_lshl_b32 s{sT}, s{sT}, 13')
            e(f's_lshl_b32 s{sT + 1}, s{sCB}, 7')
            e(f's_add_u32 s{sT}, s{sT}, s{sT + 1}')

        def slab_write(i, n):
            jj, q = divmod(n, 4)
            e(f'ds_write_b128 v{vFW + q}, {vr(vG[2 * i + jj] + 4 * q, 4)} offset:{8192 * i + 128 * jj}', f'sw{i}')

        def slab_reads(dst, lo, hi, tag):
            for p in range(4):
                for h in range(2):
                    e(f'ds_read_b128 {vr(dst + 8 * p + 4 * h, 4)}, v{(hi if p >> 1 else lo) + h} offset:{32768 * (p & 1)}', f'{tag}{p}')

        def pre_adds():
            for p in range(1, 4):
                e.wait(lg=f'pr{p}')
                for r in range(8):
                    e(f'v_add_f32 v{PRE + r}, v{PRE + r}, v{PRE + 8 * p + r}')

        def mm(kk, between=None):
            e.wait(vm=f'o{kk}')

            def ck():
                b = OF + 8 * kk
                e(f'v_max3_u32 v{vP}, v{b}, v{b + 1}, v{b + 2}')
                e(f'v_max3_u32 v{vP + 1}, v{b + 3}, v{b + 4}, v{b + 5}')
                e(f'v_max3_u32 v{vP}, v{vP}, v{b + 6}, v{b + 7}')
                e(f'v_max_u32 v{vP}, v{vP}, v{vP + 1}')
                e(f'v_cmp_eq_u32 vcc, -1, v{vP}')
            self.spin(f'o{kk}', lambda: [old(q) for q in range(kk, 4)], ck, self.opt['sl3'])
            for n, (jj, k) in enumerate(((0, 2 * kk), (0, 2 * kk + 1), (1, 2 * kk), (1, 2 * kk + 1))):
                acc = vr(vG[jj], 16)
                e(f'v_mfma_f32_32x32x16_bf16 {acc}, {vr(WO + 8 * k + 4 * jj, 4)}, {vr(OF + 4 * k, 4)}, {acc}')
                if between:
                    between(n)

        for k in range(2):
            wo_reads(k)
        e.wait(vm='p3')
        e('s_mov_b64 exec, 0xff')
        e(f'v_cmp_eq_u32 vcc, -1, v{vP}')
        e('s_mov_b64 exec, -1')
        e('s_cbranch_vccnz Lo_late')
        snap = e.snapshot()
        for kk in range(4):
            old(kk, f'o{kk}')
            for k in range(2 + 2 * kk, min(8, 4 + 2 * kk)):
                wo_reads(k)
        self.stamp(7, 4)
        addrs()
        e.wait(lg='all')
        e('s_barrier')
        self.stamp(11)
        for kk in range(2):
            mm(kk, lambda n, kk=kk: slab_write(1, 4 * kk + n))
        if self.opt['eb']:
            mm(2)
        e.wait(lg='all')
        e('s_barrier')
        self.stamp(8, 4)
        slab_reads(PRE, vRR + 2, vRR + 4, 'pr')
        if not self.opt['eb']:
            mm(2)
        mm(3)
        pre_adds()
        ready = e.snapshot()

        def late():
            e.restore(snap)
            e.label('Lo_late')
            for k in range(2, 8):
                wo_reads(k)
            self.stamp(7, 4)
            addrs()
            e.wait(lg='all')
            e('s_barrier')
            self.stamp(11)
            LP = self.opt['lp']
            for n in range(8):
                if LP == 0 and n % 2 == 0:
                    old(n // 2, f'o{n // 2}')
                slab_write(1, n)
            if LP == 1:
                for kk in range(4):
                    old(kk, f'o{kk}')
            e.wait(lg='all')
            e('s_barrier')
            slab_reads(PRE, vRR + 2, vRR + 4, 'pr')
            if LP == 2:
                for kk in range(4):
                    old(kk, f'o{kk}')
            self.stamp(8, 4)
            pre_adds()
            for kk in range(4):
                mm(kk)
            e('s_nop 8')
            e('s_branch Lo_done')
        self.tail_blocks.append(late)
        e.label('Lo_done')
        self.stamp(12)
        for n in range(8):
            if n == 4:
                e('s_nop 1')
            slab_write(0, n)
        e.wait(lg='all')
        e('s_barrier')
        B = X
        slab_reads(B, vFRd, vRR, 'fr')
        for p in range(4):
            e.wait(lg=f'fr{p}')
            for r in range(4):
                e(f'v_pk_add_f32 {P2(PRE, r)}, {P2(PRE, r)}, {P2(B + 8 * p, r)}')
        for r in range(4):
            e(f'v_cvt_pk_bf16_f32 v{B + r}, v{PRE + 2 * r}, v{PRE + 2 * r + 1}')
        e(f'buffer_store_dwordx4 {vr(B, 4)}, v{vOA}, {srd(S_OUT)}, s{sT} offen sc1')
        if 'probe' in self.opt:
            e.wait(vm='all')
            self.stamp(13)
            e.label('Lprobe')
            e('s_sleep 1')
            e(f's_memrealtime s[{sSTMP}:{sSTMP + 1}]')
            e('s_waitcnt lgkmcnt(0)')
            e(f's_sub_u32 s{sSTMP}, s{sSTMP}, s{sNON if self.opt["probe"] == 99 else sSTAMP}')
            e(f's_cmp_lt_u32 s{sSTMP}, 6000')
            e('s_cbranch_scc1 Lprobe')
        if self.stamps:
            e.wait(vm='all')
            self.stamp(13)
            e(f's_lshl_b32 s{sT}, s2, 3')
            e(f's_add_u32 s{sT}, s{sT}, s{sW}')
            e(f's_lshl_b32 s{sT}, s{sT}, 6')
            e(f's_add_u32 s{sT}, s{sT}, {WS_ST}')
            e('s_waitcnt lgkmcnt(0)')
            en = [i for i in range(14) if (self.opt.get('smask', 0x2001) | 0x2001) >> i & 1]
            for k, i in enumerate(en):
                e(f'v_mov_b32 v{B + 8 + i}, s{sSTAMP + 2 * k}')
            e('s_mov_b64 exec, 1')
            for i in range(4):
                e(f'buffer_store_dwordx4 {vr(B + 8 + 4 * i, 4)}, off, {srd(S_WS)}, s{sT} offset:{16 * i}')
        e.label('Lexit')
        e('s_endpgm')

    def safe_softmax(self):
        e = self.e
        e.paths = [p for p in Emitter().paths]
        own = vO[3]
        M = vO[0]
        S = vS[0]
        e.label('Lsafe')
        e(f's_and_b32 s{sT + 2}, s{sKVB}, {0xffffffff ^ (3 << 15)}')
        e(f's_mov_b32 s{sT + 3}, s{sT + 2}')
        e(f's_mov_b32 s{sT + 4}, 64')
        e(f'v_mov_b32 v{M}, 0xff800000')
        e.label('Lsafe1')
        e(f'buffer_load_dwordx4 {vr(vK[0], 4)}, v{vL16}, {srd(S_WS)}, s{sT + 3} offen sc1')
        e(f's_add_u32 s{sT + 3}, s{sT + 3}, 2048')
        e('s_waitcnt vmcnt(0)')
        e(f'v_mfma_f32_32x32x16_bf16 {vr(S, 16)}, {vr(vK[0], 4)}, {vr(vQ[3], 4)}, 0')
        for i in range(0, 16, 2):
            e(f'v_max3_f32 v{M}, v{M}, v{S + i}, v{S + i + 1}')
        e(f's_sub_u32 s{sT + 4}, s{sT + 4}, 1')
        e(f's_cmp_lg_u32 s{sT + 4}, 0')
        e('s_cbranch_scc1 Lsafe1')
        e(f'v_mov_b32 v{M + 1}, v{M}')
        e(f'v_permlane32_swap_b32 v{M}, v{M + 1}')
        e(f'v_max_f32 v{M}, v{M}, v{M + 1}')
        e(f'v_sub_f32 v{M}, 0, v{M}')
        for i in range(1, 16):
            e(f'v_mov_b32 v{M + i}, v{M}')
        for i in range(16):
            e(f'v_mov_b32 v{own + i}, 0')
        e(f's_mov_b32 s{sT + 3}, s{sT + 2}')
        e(f's_mov_b32 s{sT + 4}, 64')
        e.label('Lsafe2')
        e(f'buffer_load_dwordx4 {vr(vK[0], 4)}, v{vL16}, {srd(S_WS)}, s{sT + 3} offen sc1')
        e(f's_mov_b64 exec, s[{sVM}:{sVM + 1}]')
        e(f'buffer_load_dwordx4 {vr(vV[0], 4)}, v{vVA}, {srd(S_WS)}, s{sT + 3} offen offset:1024 sc1')
        e(f'buffer_load_dwordx4 {vr(vV[0] + 4, 4)}, v{vVA}, {srd(S_WS)}, s{sT + 3} offen offset:1536 sc1')
        e('s_mov_b64 exec, -1')
        e(f's_add_u32 s{sT + 3}, s{sT + 3}, 2048')
        e('s_waitcnt vmcnt(0)')
        e(f'v_mfma_f32_32x32x16_bf16 {vr(S, 16)}, {vr(vK[0], 4)}, {vr(vQ[3], 4)}, {vr(M, 16)}')
        for i in range(16):
            e(f'v_exp_f32 v{S + i}, v{S + i}')
        for hi in range(2):
            e(f'v_smfmac_f32_32x32x32_bf16 {vr(own, 16)}, {vr(vV[0] + 4 * hi, 4)}, {vr(S + 8 * hi, 8)}, v{vIDX}')
        e(f's_sub_u32 s{sT + 4}, s{sT + 4}, 1')
        e(f's_cmp_lg_u32 s{sT + 4}, 0')
        e('s_cbranch_scc1 Lsafe2')
        e('s_nop 15')
        e(f'v_fma_f32 v{vO[0] + 28}, v{own + 8}, v{vCO}, v{own + 8}')
        e(f'v_rcp_f32 v{vO[0] + 28}, v{vO[0] + 28}')
        e('s_branch Lsafe_done')

    def build(self):
        e = self.e
        self.prologue()
        snap = e.snapshot()
        e.label('Lload')
        self.loader_head()
        lsnap = e.snapshot()
        ends = []
        for ty in (1, 0):
            e.restore(lsnap)
            if ty == 0:
                e.label('Lload0')
            self.phase_a_loader(ty)
            self.phase_f(1, ty)
            e('s_branch Lffn')
            ends += e.snapshot()
        for ty in (0, 1):
            e.restore(snap)
            e.label(f'Lcomp{ty}')
            self.phase_a_compute(ty)
            self.phase_f(0, ty)
            if ty == 0:
                e('s_branch Lffn')
            ends += e.snapshot()
        e.paths = ends
        e.label('Lffn')
        self.attn_loads_late()
        self.stamp(6)
        self.attention()
        self.tail()
        i = 0
        while i < len(self.tail_blocks):
            self.tail_blocks[i]()
            i += 1
        e.label('Lcode_end')
        return self.wrap()

    def wrap(self):
        head = open('gated_mix__softmax_full_mha__glu_gated_geglu__prompt.s.ref').read().split('; Override')[0]
        return head + f"""; @launch grid=(256,1,1) block=(512,1,1) lds={LDS_BYTES}
.amdgcn_target "amdgcn-amd-amdhsa--gfx950"
.text
.globl {KNAME}
.p2align 8
.type {KNAME},@function
{KNAME}:
{self.e.text()}
.section .rodata,"a"
.p2align 6
.amdhsa_kernel {KNAME}
  .amdhsa_next_free_vgpr 256
  .amdhsa_next_free_sgpr 102
  .amdhsa_accum_offset 256
  .amdhsa_group_segment_fixed_size 0
  .amdhsa_kernarg_size 88
  .amdhsa_user_sgpr_count 2
  .amdhsa_user_sgpr_kernarg_segment_ptr 1
  .amdhsa_system_sgpr_workgroup_id_x 1
.end_amdhsa_kernel
"""


if __name__ == '__main__':
    out = sys.argv[1]
    stamps = sys.argv[2] if len(sys.argv) > 2 and sys.argv[2] in ('rt', 'cy') else False
    opt = {}
    for a in sys.argv[2:]:
        if '=' in a:
            k, v = a.split('=')
            opt[k] = int(v, 0)
    g = Gen(stamps=stamps, opt=opt)
    open(out, 'w').write(g.build())
    print('nops inserted:', g.e.nops, 'lines:', len(g.e.lines))
```

```python
import sys, math, struct
from asmlib import Emitter, Win

KNAME = 'gated_mix__softmax_full_mha__glu_gated_geglu__prompt_kernel'

WS_Q = 0
WS_KV = 2 << 20
WS_O = 6 << 20
WS_F1 = 8 << 20
WS_F2 = WS_F1 + 32768
WS_ST = WS_F1 + 65536
WS_H = 9 << 20
WS_END = 15 << 20

L_GW = 0
L_Z = 1024
SLOT0 = 4096
UPOFF = 12288
L_RING = 28672
RINGW = 7168
L_WO = 86016
L_CNT = 161792
LDS_BYTES = 163840

S_X, S_WQ, S_WF, S_WS, S_H, S_WD, S_WO, S_OUT, S_DBG, S_GW = [4 * i + 4 for i in range(10)]
S_WG = 80
sW, sTT, sG, sJ, sTB, sRB, sCB, sUS = range(44, 52)
sXO, sWO, sFO, sMX, sMW, sMF = range(52, 58)
sNON = 58
sKV, sKVB, sKVI, sHO, sDO, sMD = range(60, 66)
sVM = 66
sT = 68
sGC = 76
sQO = 78
sXO2 = 79
sSPIN = 84
sMO = 85
sMG = 3
sO = [4, 5, 6, 7, 8, 9, 10, 11]
sPEND = 43
sR = 73
sE0, sE1, sE2 = 4, 5, 6
sSTMP = 86
sSTAMP = 88


def region(s, ty):
    if ty and s < 8:
        return SLOT0 + 32768 * (s % 4), 32768
    k = (s - 8) % 6
    return (SLOT0 + 131072 if k == 0 else SLOT0 + 24576 * (k - 1)), 24576


def free_after(s, ty):
    a, n = region(s, ty)
    need = -1
    for k in range(s):
        b, m = region(k, ty)
        if a < b + m and b < a + n:
            need = max(need, k + (1 if ty and k < 8 else 2))
    return need


def srd(b):
    return f's[{b}:{b + 3}]'


def vr(b, n):
    return f'v[{b}:{b + n - 1}]' if n > 1 else f'v{b}'


def fbits(x):
    return '0x%08x' % struct.unpack('<I', struct.pack('<f', x))[0]


vL16 = 1
vXD = [2, 3]
vWD = 4
vFD = 5
vXR = [6, 7]
vWR = [8, 2]
vFR = [9, 10, 11]
FR = 16
NFR = 5
ACA = 36
ACF = 68
vK = [116, 120]
vCH, vIDX, vVA = 124, 126, 127
X = 128
vO = [X + 16 * i for i in range(4)]
vQ = [X + 64 + 4 * i for i in range(4)]
vV = [ACA, ACA + 8]
vS = [ACA + 16, X + 80]
vG = [ACF, ACF + 16, ACF + 32, X + 96]
vH = [X + 112, X + 120]
vD = FR
vCO = FR + 8
vDD = [2, 3]
vDR = [12, 13]
vP = 14
vPA = 6
vRW = [7, 8]
vHA = [9, 10]
vKA = 124
vRR = FR + 10

LOG2E = 1.4426950408889634
QSCALE = 0.25 * LOG2E
GC0 = -2.0 * LOG2E * math.sqrt(2.0 / math.pi)
GC1 = GC0 * 0.044715
SPIN = 400000


class Gen:
    def __init__(self, stamps=False, opt=None):
        self.e = Emitter()
        self.stamps = stamps
        self.nst = 0
        self.opt = dict(g2start=5, prio=True, ahead=9, span=10, fah=3, late=3, hold=2, lfirst=3, p1i=84, p1c=200, pg=0, gsp=2, fk=2, gk=3, lpre=80, cpre=200,
                        oz=9, pa=8, pb=44, pc=60, qw=11, q0=0, qsp=1, vi=40, tch=64, om=56, lonly=15, kv1=1, s2t=6, rot=2, laa=7, wpf=1, zm=1, qsc=0, hl=2, hsp=1, n_p1i=66, n_p1c=78, fs=7, rbx=1, lp=1, eb=1, tlb=0, tlm=0x3f, sl3=2, sl1=4, sl2=8, lsp=4)
        if opt:
            self.opt.update(opt)
        self.tail_blocks = []

    def stamp(self, idx, sset=0):
        e = self.e
        if self.opt.get('sset') == 4:
            if 7 <= idx <= 9 and sset != 4:
                return
        elif 7 <= idx <= 12 and sset != self.opt.get('sset', 0):
            return
        if self.opt.get('probe') == idx:
            e(f's_memrealtime s[{sSTAMP}:{sSTAMP + 1}]')
            e('s_waitcnt lgkmcnt(0)')
            for p in e.paths:
                p.lg = []
        if not self.stamps or not (self.opt.get('smask', 0x2001) | 0x2001) >> idx & 1:
            return
        en = [i for i in range(14) if (self.opt.get('smask', 0x2001) | 0x2001) >> i & 1]
        assert len(en) <= 7
        r = sSTAMP + 2 * en.index(idx)
        e(f"{'s_memtime' if self.stamps == 'cy' else 's_memrealtime'} s[{r}:{r + 1}]")

    def dma_list(self, s, ty, part=3, first=False):
        e = self.e
        slot = region(s, ty)[0]
        out = []
        tag = f'st{s}'

        def mk(m0s, m0c, va, rs, so, imm=0, pre=()):
            def f():
                e(f's_add_u32 m0, s{m0s}, {m0c - imm}')
                for p in pre:
                    e(p)
                e(f'buffer_load_dwordx4 v{va}, {srd(rs)}, s{so} offen' + (f' offset:{imm}' if imm else '') + ' lds', tag)
            out.append(f)
        t = sT + 6

        def step(so, n):
            return [f's_cmp_eq_u32 s{sR}, {-s % 8}', f's_cselect_b32 s{t}, -7, 1', f's_mul_i32 s{t}, s{t}, {n}', f's_add_u32 s{so}, s{so}, s{t}']
        if s < 8:
            for i in range(4):
                mk(sMX, slot + i * 1024, vXD[i % 2], S_X, sXO if i < 2 else sXO2,
                   pre=step(sXO, 128) if i == 0 and s else ([f's_add_u32 s{sXO2}, s{sXO}, 16384'] if i == 1 else ()))
            for i in range(4 if ty else 2):
                mk(sMW, slot + 16384 + i * 1024, vWD, S_WQ, sWO, imm=64 * i, pre=step(sWO, 64 * 3072) if i == 0 and s else ())
        else:
            for h in range(2):
                if part >> h & 1:
                    for i in range(3):
                        mk(sMG, slot + h * UPOFF + i * 1024, vFD, S_WF if h else S_WG, sFO, imm=64 * i,
                           pre=step(sFO, 64 * 2752) if not out and not first else ())
        return out

    def prologue(self):
        e = self.e
        self.stamp(0)
        e('s_cmp_ge_u32 s2, 256')
        e('s_cbranch_scc1 Lexit')
        e(f's_load_dwordx2 s[{S_X}:{S_X + 1}], s[0:1], 0')
        e(f's_load_dwordx2 s[{S_WQ}:{S_WQ + 1}], s[0:1], 8')
        e(f's_getpc_b64 s[{sT}:{sT + 1}]')
        e.label('Lpfbase')
        e(f's_lshr_b32 s{sT + 2}, s2, 3')
        e(f's_lshl_b32 s{sT + 2}, s{sT + 2}, 11')
        e(f'v_lshl_add_u32 v16, v0, 2, s{sT + 2}')
        e('v_min_u32 v16, Lcode_end-Lpfbase-4, v16')
        e('v_lshrrev_b32 v2, 6, v0')
        e('s_mov_b32 exec_lo, 1')
        e('s_mov_b32 exec_hi, 1')
        e(f'global_load_dword v{vK[1]}, v16, s[{sT}:{sT + 1}]', 'pf')
        e('s_mov_b64 exec, -1')
        e(f'v_readfirstlane_b32 s{sW}, v2')
        e('v_and_b32 v0, 63, v0')
        e(f's_xor_b32 s{sW}, s{sW}, 4')
        e(f's_and_b32 s{sTT}, s{sW}, 3')
        e(f's_lshr_b32 s{sG}, s{sW}, 2')
        e('s_cbranch_scc1 Lload')
        e('s_bitcmp1_b32 s2, 3')
        e('s_cbranch_scc1 Lcomp1')
        e('s_branch Lcomp0')

    def more_args(self, g):
        e = self.e
        lst = ([(S_GW, 56)] if g else []) + [(S_WG, 32), (S_WF, 40)]
        for b, off in lst + [(S_DBG, 72), (S_WS, 80), (S_H, 80), (S_WD, 48), (S_WO, 16), (S_OUT, 64)]:
            e(f's_load_dwordx2 s[{b}:{b + 1}], s[0:1], {off}')
        e(f'v_lshlrev_b32 v{vL16}, 4, v0')
        e(f's_and_b32 s{sTB}, s2, 4')
        e(f's_lshl_b32 s{sTB}, s{sTB}, 1')
        e(f's_lshr_b32 s{sT + 6}, s2, 5')
        e(f's_add_u32 s{sTB}, s{sTB}, s{sT + 6}')
        e(f's_and_b32 s{sJ}, s2, 3')
        e(f's_lshl_b32 s{sJ}, s{sJ}, 2')
        e(f's_bfe_u32 s{sT + 6}, s2, 0x20003')
        e(f's_add_u32 s{sJ}, s{sJ}, s{sT + 6}')
        R = self.opt['rot']
        e(f's_and_b32 s{sR}, s{sTB}, {R - 1}')
        e(f's_mul_i32 s{sR}, s{sR}, {8 // R}')

    def quad_rows(self, dst, stride, t):
        e = self.e
        e(f'v_lshrrev_b32 v{t}, 4, v0')
        e(f'v_and_b32 v{t}, 2, v{t}')
        e(f'v_xor_b32 v{t}, v{t}, v0')
        e(f'v_and_b32 v{t}, 3, v{t}')
        e(f'v_lshrrev_b32 v{dst}, 2, v0')
        e(f'v_mul_u32_u24 v{dst}, {stride}, v{dst}')
        e(f'v_lshl_add_u32 v{dst}, v{t}, 4, v{dst}')

    def tr_base(self, dst, gstride, t):
        e = self.e
        e(f'v_lshrrev_b32 v{dst}, 5, v0')
        e(f'v_mul_u32_u24 v{dst}, {gstride}, v{dst}')
        e(f'v_bfe_u32 v{t}, v0, 4, 1')
        e(f'v_mul_u32_u24 v{t}, {512 + 32}, v{t}')
        e(f'v_add_u32 v{dst}, v{dst}, v{t}')
        e(f'v_bfe_u32 v{t}, v0, 2, 2')
        e(f'v_lshl_add_u32 v{dst}, v{t}, 6, v{dst}')
        e(f'v_and_b32 v{t}, 3, v0')
        e(f'v_lshl_add_u32 v{dst}, v{t}, 3, v{dst}')

    def srd_consts(self, lst):
        for b, n in lst:
            self.e(f's_mov_b32 s{b + 2}, {n}')
            self.e(f's_mov_b32 s{b + 3}, 0x20000')

    def x_read_addrs(self):
        e = self.e
        e('v_and_b32 v16, 15, v0')
        e(f's_lshl_b32 s{sT + 6}, s{sTT}, 12')
        e('v_lshrrev_b32 v17, 4, v0')
        e('v_lshrrev_b32 v18, 1, v16')
        e('v_xor_b32 v18, v18, v17')
        e('v_lshlrev_b32 v18, 4, v18')
        e('v_lshl_add_u32 v18, v16, 7, v18')
        e(f'v_add_u32 v{vXR[0]}, s{sT + 6}, v18')
        e(f'v_xor_b32 v{vXR[1]}, 64, v{vXR[0]}')

    def topt(self, ty):
        o = dict(self.opt)
        if ty:
            o.update({k[2:]: v for k, v in self.opt.items() if k.startswith('n_')})
        return o

    def nchains(self, g, ty):
        return 2 if (ty and g == 0) else 3

    def setup2(self, g, ty):
        e = self.e
        t = sT
        self.srd_consts(([(S_DBG, 256)] if g else []) +
                        [(S_WG, 512 * 2752), (S_WF, 512 * 2752), (S_WS, WS_END), (S_H, 86 * 65536), (S_WD, 1376 * 1024), (S_WO, 512 * 1024), (S_OUT, 2048 * 1024)])
        e(f's_lshr_b32 s{sUS}, s{sJ}, 2')
        e(f's_mul_i32 s{sUS}, s{sUS}, 22')
        e(f's_bfe_u32 s{t}, s{sJ}, 0x10001')
        e(f's_mul_i32 s{t}, s{t}, {5 if ty else 16}')
        e(f's_add_u32 s{sUS}, s{sUS}, s{t}')
        if ty:
            e(f's_add_u32 s{sUS}, s{sUS}, 6')
        else:
            e(f's_min_u32 s{sUS}, s{sUS}, 80')
        e(f's_mul_i32 s{sFO}, s{sTT}, {16 * 2752}')
        e(f's_lshr_b32 s{t}, s{sUS}, 1')
        e(f's_lshl_b32 s{t}, s{t}, 6')
        e(f's_add_u32 s{sFO}, s{sFO}, s{t}')
        e(f's_add_u32 s{t}, s{sR}, {0 if g else self.topt(ty)["lonly"] + 1 - 8}')
        e(f's_and_b32 s{t}, s{t}, 7')
        e(f's_mul_i32 s{t}, s{t}, {64 * 2752}')
        e(f's_add_u32 s{sFO}, s{sFO}, s{t}')
        e(f's_mul_i32 s{sMG}, s{sTT}, 3072')
        self.quad_rows(vFD, 2752, vP)
        first = g * self.nchains(0, ty)
        self.tr_base(vP + 1, 3072, vP)
        for c in range(self.nchains(g, ty)):
            if ty:
                e(f's_and_b32 s{t}, s{sUS}, 1')
                e(f's_add_u32 s{t}, s{t}, {first + c}')
                e(f's_lshr_b32 s{t + 1}, s{t}, 1')
                e(f's_lshl_b32 s{t + 1}, s{t + 1}, 10')
                e(f's_and_b32 s{t}, s{t}, 1')
                e(f's_lshl_b32 s{t}, s{t}, 5')
                e(f'v_xor_b32 v{vFR[c]}, s{t}, v{vP + 1}')
                e(f'v_add_u32 v{vFR[c]}, s{t + 1}, v{vFR[c]}')
            else:
                u = first + c
                e(f'v_xor_b32 v{vFR[c]}, {(u & 1) * 32}, v{vP + 1}')
                e(f'v_add_u32 v{vFR[c]}, {(u >> 1) * 1024}, v{vFR[c]}')
        e(f's_add_u32 s{S_H}, s{S_H}, {WS_H}\n    s_addc_u32 s{S_H + 1}, s{S_H + 1}, 0')
        e(f's_and_b32 s{sRB}, s2, 7')
        if self.opt['rbx']:
            e(f's_xor_b32 s{sRB}, s{sRB}, 4')
        e(f's_lshl_b32 s{sRB}, s{sRB}, 2')
        e(f's_lshr_b32 s{t}, s2, 6')
        e(f's_add_u32 s{sRB}, s{sRB}, s{t}')
        e(f's_bfe_u32 s{sCB}, s2, 0x30003')
        e(f's_mov_b32 s{sVM}, 0xffff')
        e(f's_mov_b32 s{sVM + 1}, 0xffff')
        e(f's_mov_b32 s{sGC}, {fbits(GC1)}')
        e(f's_mov_b32 s{sGC + 1}, s{sGC}')
        e(f'v_and_b32 v{vVA}, 15, v0')
        e(f'v_lshrrev_b32 v{vP}, 5, v0')
        e(f'v_lshl_add_u32 v{vVA}, v{vP}, 4, v{vVA}')
        e(f'v_lshlrev_b32 v{vVA}, 4, v{vVA}')
        e(f'v_mov_b32 v{vIDX}, 0xdddddddd')
        e(f's_lshl_b32 s{t}, s{sTB}, 2')
        e(f's_add_u32 s{t}, s{t}, s{sTT}')
        e(f's_add_u32 s{sHO}, s{sUS}, {first}')
        e(f's_lshl_b32 s{sHO}, s{sHO}, 6')
        e(f's_add_u32 s{sHO}, s{sHO}, s{t}')
        e(f's_lshl_b32 s{sHO}, s{sHO}, 10')
        e(f's_add_u32 s{sHO}, s{sHO}, {WS_H}')
        e(f's_lshl_b32 s{sQO}, s{sJ}, 7')
        e(f's_add_u32 s{sMO}, s{sQO}, s{t}')
        e(f's_lshl_b32 s{sMO}, s{sMO}, 10')
        e(f's_add_u32 s{sMO}, s{sMO}, {g * 65536}')
        e(f's_and_b32 s{sQO}, s{sMO}, {0xffffffff ^ 0xc00}')
        e(f's_add_u32 s{sMO}, s{sMO}, {WS_O}')
        if g == 0:
            e(f's_lshr_b32 s{t + 1}, s{sJ}, 1')
            if ty:
                e(f's_and_b32 s{sE0}, s{t + 1}, 3')
                e(f's_lshl_b32 s{sE0}, s{sE0}, 9')
                e(f's_add_u32 s{sE0}, s{sE0}, s{t}')
                e(f's_cmp_lt_u32 s{t + 1}, 4\n    s_cselect_b32 s{sE2}, {fbits(QSCALE)}, 1.0\n    s_cselect_b32 s{t + 1}, 10, 11\n    s_cselect_b32 s{t + 2}, {WS_Q}, {WS_KV}')
                e(f's_lshl_b32 s{sE0}, s{sE0}, s{t + 1}')
                e(f's_lshl_b32 s{sE1}, 64, s{t + 1}')
                e(f's_add_u32 s{sE0}, s{sE0}, s{t + 2}')
            else:
                e(f's_lshl_b32 s{sE0}, s{t + 1}, 8')
                e(f's_add_u32 s{sE0}, s{sE0}, s{t}')
                e(f's_lshl_b32 s{sE0}, s{sE0}, 11')
                e(f's_add_u32 s{sE0}, s{sE0}, {WS_KV}')
                e(f's_add_u32 s{sE1}, s{sE0}, {2 * 131072}')
                e(f'v_bfe_u32 v{vWD}, v0, 4, 1')
                e(f'v_lshl_add_u32 v{vWD}, v{vWD}, 17, v{vVA}')
        e(f's_lshl_b32 s{sKVB}, s{sJ}, 3')
        e(f's_add_u32 s{sKVB}, s{sKVB}, s{sW}')
        e(f's_lshl_b32 s{sKVB}, s{sKVB}, 15')
        e(f's_add_u32 s{sKVB}, s{sKVB}, {WS_KV}')
        e(f's_and_b32 s{sKVI}, s{sTB}, 7')
        e(f's_lshl_b32 s{sKVI}, s{sKVI}, 12')
        e(f's_mul_i32 s{sMD}, s{sW}, {RINGW}')
        e(f's_mul_i32 s{sDO}, s{sW}, {11 * 16384}')
        e(f's_lshl_b32 s{t}, s{sCB}, 7')
        e(f's_add_u32 s{sDO}, s{sDO}, s{t}')
        e(f'v_lshrrev_b32 v{vDR[0]}, 5, v0')
        e(f'v_bfe_u32 v{vP}, v0, 2, 2')
        e(f'v_lshl_add_u32 v{vDR[0]}, v{vDR[0]}, 3, v{vP}')
        e(f'v_lshlrev_b32 v{vDR[0]}, 7, v{vDR[0]}')
        e(f'v_bfe_u32 v{vP}, v0, 4, 1')
        e(f'v_lshl_add_u32 v{vDR[0]}, v{vP}, 5, v{vDR[0]}')
        e(f'v_bfe_u32 v{vP}, v0, 3, 1')
        e(f'v_lshl_add_u32 v{vDR[0]}, v{vP}, 6, v{vDR[0]}')
        e(f'v_and_b32 v{vP}, 3, v0')
        e(f'v_lshl_add_u32 v{vDR[0]}, v{vP}, 3, v{vDR[0]}')
        e(f'v_add_u32 v{vDR[0]}, s{sMD}, v{vDR[0]}')
        e(f'v_xor_b32 v{vDR[1]}, 64, v{vDR[0]}')

    def loader_head(self):
        e = self.e
        self.more_args(1)
        e('v_lshrrev_b32 v16, 3, v0')
        e('v_lshrrev_b32 v17, 4, v0')
        e('v_and_b32 v18, 7, v0')
        e('v_xor_b32 v18, v18, v17')
        e('v_lshlrev_b32 v18, 4, v18')
        e(f'v_lshl_add_u32 v{vXD[0]}, v16, 10, v18')
        e(f'v_xor_b32 v{vXD[1]}, 64, v{vXD[0]}')
        e(f'v_add_u32 v{vXD[1]}, 8192, v{vXD[1]}')
        e(f's_lshl_b32 s{sXO}, s{sTB}, 2')
        e(f's_add_u32 s{sXO}, s{sXO}, s{sTT}')
        e(f's_lshl_b32 s{sXO}, s{sXO}, 8')
        e(f's_add_u32 s{sXO}, s{sXO}, s{sR}')
        e(f's_lshl_b32 s{sXO}, s{sXO}, 7')
        e(f's_lshl_b32 s{sMX}, s{sTT}, 12')
        self.srd_consts(((S_X, 2048 * 1024), (S_WQ, 512 * 3072), (S_GW, 1024)))
        self.quad_rows(vWD, 3072, 16)
        e(f's_lshr_b32 s{sT}, s{sJ}, 1')
        e(f's_and_b32 s{sT + 1}, s{sJ}, 1')
        e(f's_cselect_b32 s{sT + 2}, 0, 2048')
        e(f's_add_u32 s{sT + 3}, s{sT + 1}, 7')
        e(f's_lshl_b32 s{sT}, s{sT}, s{sT + 3}')
        e(f's_add_u32 s{sT}, s{sT}, s{sT + 2}')
        e(f's_lshl_b32 s{sWO}, s{sR}, 2')
        e(f's_add_u32 s{sWO}, s{sWO}, s{sTT}')
        e(f's_mul_i32 s{sWO}, s{sWO}, {16 * 3072}')
        e(f's_add_u32 s{sWO}, s{sWO}, s{sT}')
        e(f's_add_u32 s{sT + 3}, s{sT + 1}, 11')
        e(f's_lshl_b32 s{sMW}, s{sTT}, s{sT + 3}')
        e(f's_mul_i32 s{sT + 1}, s{sT + 1}, {region(0, 0)[0] - region(0, 1)[0]}')
        e(f's_sub_u32 s{sMX}, s{sMX}, s{sT + 1}')
        e(f's_sub_u32 s{sMW}, s{sMW}, s{sT + 1}')
        e('s_waitcnt lgkmcnt(0)')
        self.stamp(1)
        for f in self.dma_list(0, 0):
            f()
        e(f's_add_u32 s{sMX}, s{sMX}, s{sT + 1}')
        e(f's_add_u32 s{sMW}, s{sMW}, s{sT + 1}')
        e(f's_lshl_b32 s{sT}, s{sR}, 7')
        e(f'v_add_u32 v16, s{sT}, v{vL16}')
        e('v_and_b32 v16, 1023, v16')
        e(f's_mov_b32 m0, {L_GW}')
        e('s_bitcmp1_b32 s2, 3')
        e(f'buffer_load_dwordx4 v16, {srd(S_GW)}, 0 offen lds', 'st0')
        e('s_cbranch_scc0 Lload0')

    def phase_a_loader(self, ty):
        e = self.e
        GWB = FR
        ZA = ACA
        o = self.topt(ty)
        seq = []
        bound = []
        last = 7 + o['fah']
        for s in range(last + 1):
            bound.append(len(seq))
            seq += self.dma_list(s, ty, first=(s == 8))
        bound.append(len(seq))
        pos = 6

        def limit(b):
            k = 0
            while k <= last and free_after(k, ty) <= b:
                k += 1
            return bound[k]

        def issue(upto):
            nonlocal pos
            while pos < min(upto, len(seq)):
                seq[pos]()
                pos += 1
        issue(12)
        self.x_read_addrs()
        e(f'v_and_b32 v{vWR[0]}, 48, v0')
        fill = self.split(lambda: self.setup2(1, ty))
        for _ in range(min(len(fill), self.opt['lpre'])):
            fill.pop(0)()
        D = o['ahead']
        issue(min(bound[1] + D, limit(-1)))
        wx = Win(e, vXR)
        for s in range(8):
            slot = region(s, ty)[0]
            e.wait(vm=f'st{s}')
            e('s_barrier')
            if s in (0, 4):
                self.stamp(2 + s // 4)
            end = min(bound[s + 2] + D, limit(s))
            issue(min(end, pos + self.opt['lfirst']))
            wx.ensure(slot, slot + 2048)
            for ks in range(2):
                n = 2 * s + ks
                e(f'ds_read_b128 {vr(GWB + 4 * ks, 4)}, v{vWR[0]} offset:{L_GW + 64 * n}', f'r{n}')
                for tg in range(2):
                    e(f'ds_read_b128 {vr(X + 8 * n + 4 * tg, 4)}, v{vXR[ks]} offset:{wx.off(slot + 2048 * tg)}', f'r{n}')
            if s == 5:
                e(f'buffer_load_dwordx2 v[{vK[0]}:{vK[0] + 1}], off, {srd(S_DBG)}, 0 sc1', 'non')
            issue(end)
            for ks in range(2):
                n = 2 * s + ks
                e.wait(lg=f'r{n}')
                for tg in range(2):
                    z = vr(ZA + 4 * tg, 4)
                    e(f'v_mfma_f32_16x16x32_bf16 {z}, {vr(GWB + 4 * ks, 4)}, {vr(X + 8 * n + 4 * tg, 4)}, {z if n else 0}')
            for _ in range(40):
                if fill:
                    fill.pop(0)()
            if s == 3:
                assert not fill
        self.left = seq[pos:]
        e(f'v_and_b32 v{ZA + 8}, 16, v0')
        e(f'v_cmp_eq_u32 vcc, 0, v{ZA + 8}')
        e(f's_lshl_b32 s{sT + 1}, s{sTT}, 8')
        e(f'v_lshl_add_u32 v{ZA + 8}, v0, 2, s{sT + 1}')
        e(f'v_cndmask_b32 v{ZA}, v{ZA + 4}, v{ZA}, vcc')
        e(f'ds_write_b32 v{ZA + 8}, v{ZA} offset:{L_Z}', 'zw')
        e.wait(vm='st8')
        e('s_barrier')
        self.stamp(4)

    def qkv_acc(self, ty, ct, tg):
        if ty:
            return (ACF + 8 * ct if ct < 6 else ACA + 16 + 8 * (ct - 6)) + 4 * tg
        return ACA + 16 * (ct >> 1) + 8 * tg + 4 * (ct & 1)

    def qkv_pack(self, ty, i):
        e = self.e
        src = self.qkv_acc(1, i, 0) if ty else ACA + 8 * i
        dst = ACA + 4 * i if (ty and i < 4) else src
        ops = []
        if ty:
            ops += [f'v_mul_f32 v{src + r}, s{sE2}, v{src + r}' for r in range(8)]
        ops += [f'v_cvt_pk_bf16_f32 v{dst + r}, v{src + 2 * r}, v{src + 2 * r + 1}' for r in (0, 1, 2, 3)]
        ops += [f'v_permlane16_swap_b32 v{dst + r}, v{dst + 2 + r}' for r in range(2)]

        def st():
            if self.opt.get('x_nost'):
                return
            if ty:
                e(f'buffer_store_dwordx4 {vr(dst, 4)}, v{vL16}, {srd(S_WS)}, s{sE0} offen sc1', 'qst')
                e(f's_add_u32 s{sE0}, s{sE0}, s{sE1}')
            else:
                e(f'buffer_store_dwordx4 {vr(dst, 4)}, v{vWD}, {srd(S_WS)}, s{sE1 if i >> 1 else sE0} offen offset:{1024 + 512 * (i & 1)} sc1', 'qst')
        return [lambda o=o: e(o) for o in ops], st

    def phase_a_compute(self, ty):
        e = self.e
        NC = 8 if ty else 4
        self.more_args(0)
        e(f's_memrealtime s[{sNON}:{sNON + 1}]')
        e('v_mov_b32 v16, 0')
        e(f'v_mov_b32 v17, {L_CNT}')
        e('ds_write_b32 v17, v16', 'z0')
        self.srd_consts(((S_DBG, 256),))
        self.x_read_addrs()
        self.tr_base(vWR[0], NC * 512, 16)
        e(f'v_xor_b32 v{vWR[1]}, 32, v{vWR[0]}')
        e('s_waitcnt lgkmcnt(0)')
        for p in e.paths:
            p.lg = []
        self.stamp(1)
        if not ty:
            e(f's_or_b32 s{sT + 6}, s2, s{sW}')
            lab = e.newlabel('nn')
            e(f's_cbranch_scc1 {lab}')
            snap = e.snapshot()
            e(f's_or_b32 s{sNON + 1}, s{sNON + 1}, 0x80000000')
            e(f'v_mov_b32 v16, s{sNON}')
            e(f'v_mov_b32 v17, s{sNON + 1}')
            e('s_mov_b64 exec, 1')
            e(f'buffer_store_dwordx2 v[16:17], off, {srd(S_DBG)}, 0 sc1', 'nst')
            e('s_mov_b64 exec, -1')
            e.paths = e.paths + snap
            e.label(lab)
        fill = self.split(lambda: self.setup2(0, ty))
        if self.opt['tlb']:
            G = self.opt['tlb']
            for _ in range(14):
                fill.pop(0)()
            lab = e.newlabel('tl')
            e(f's_cmp_lg_u32 s{sTT}, 3')
            e(f's_cbranch_scc1 {lab}')
            snap = e.snapshot()
            e(f'v_lshlrev_b32 v16, {G}, v0')
            for k, (rs, n) in enumerate(((S_WS, WS_END), (S_WG, 512 * 2752), (S_WF, 512 * 2752), (S_WD, 1376 * 1024), (S_WO, 512 * 1024), (S_OUT, 2048 * 1024))):
                if self.opt['tlm'] >> k & 1:
                    e(f's_mov_b64 exec, {hex((1 << -(-n >> G)) - 1)}')
                    e(f'buffer_load_dword v{vK[1] + 1}, v16, {srd(rs)}, 0 offen sc1', 'tlb')
            e('s_mov_b64 exec, -1')
            e.paths = e.paths + snap
            e.label(lab)
        for _ in range(min(len(fill), self.opt['cpre'])):
            fill.pop(0)()
        LA = self.opt['laa'] if ty else 4
        ring = [FR + 4 * i for i in range(NFR)] + [ACA + 4 * i for i in range(LA + 1 - NFR)]
        wx = Win(e, vXR)
        ww = Win(e, vWR)
        M = 16 * NC

        def reads(m):
            n, ct = divmod(m, NC)
            s, ks = divmod(n, 2)
            slot = region(s, ty)[0]
            if m % (2 * NC) == 0:
                if ty:
                    e.wait(lg='all')
                e('s_barrier')
                if s in (0, 4):
                    self.stamp(2 + s // 4)
                wx.ensure(slot, slot + 2048)
                ww.ensure(slot + 16384, slot + 32768)
            if ct == 0:
                for tg in range(2):
                    e(f'ds_read_b128 {vr(X + 8 * n + 4 * tg, 4)}, v{vXR[ks]} offset:{wx.off(slot + 2048 * tg)}', f'a{m}')
            for rd in range(2):
                t = slot + 16384 + ks * NC * 1024 + (ct >> 1) * 1024 + rd * 256
                e(f'ds_read_b64_tr_b16 {vr(ring[m % len(ring)] + 2 * rd, 2)}, v{vWR[ct & 1]} offset:{ww.off(t)}', f'a{m}')

        rp = 0

        def advance(m, most):
            nonlocal rp
            for _ in range(most):
                hold = self.opt['hold'] if ty and rp and rp % (2 * NC) == 0 else 0
                if rp < M and rp <= m + LA - hold:
                    reads(rp)
                    rp += 1

        advance(-1, LA)
        for m in range(M):
            n, ct = divmod(m, NC)
            e.wait(lg=f'a{m}')
            for tg in range(2):
                acc = vr(self.qkv_acc(ty, ct, tg), 4)
                a, b = vr(ring[m % len(ring)], 4), vr(X + 8 * n + 4 * tg, 4)
                if not ty:
                    a, b = b, a
                e(f'v_mfma_f32_16x16x32_bf16 {acc}, {a}, {b}, {acc if n else 0}')
                advance(m, 1)
            for _ in range(1 if ty else 3):
                if fill:
                    fill.pop(0)()
            if m == M * 3 // 4:
                e(f'buffer_load_dwordx2 v[{vK[0]}:{vK[0] + 1}], off, {srd(S_DBG)}, 0 sc1', 'non')
        assert not fill
        for i in range(4):
            for f in self.qkv_pack(ty, i)[0]:
                f()
        e('s_barrier')
        self.stamp(4)

    def spin(self, name, reload, check, sleep=2):
        e = self.e
        lr, lc = e.newlabel(name + 'r'), e.newlabel(name + 'c')
        check()
        e(f's_cbranch_vccnz {lr}')
        e.label(lc)

        def blk():
            e.paths = [p for p in Emitter().paths]
            e.label(lr)
            e(f's_mov_b32 s{sSPIN}, {SPIN}')
            ll = e.newlabel(name + 'l')
            e.label(ll)
            e(f's_sleep {sleep}')
            reload()
            e('s_waitcnt vmcnt(0)')
            check()
            e(f's_cbranch_vccz {lc}')
            e(f's_sub_u32 s{sSPIN}, s{sSPIN}, 1')
            e(f's_cbranch_scc0 {ll}')
            e(f's_branch {lc}')
        self.tail_blocks.append(blk)

    def flag_store(self, soff, tmp):
        e = self.e
        e(f'v_mov_b32 v{tmp}, s{sNON}')
        e(f'v_mov_b32 v{tmp + 1}, s{sNON + 1}')
        e('s_mov_b64 exec, 1')
        e(f'buffer_store_dwordx2 v[{tmp}:{tmp + 1}], off, {srd(S_WS)}, s{soff} sc1', 'flag')
        e('s_mov_b64 exec, -1')

    def kv_load(self, it):
        e = self.e
        b = it % 2

        def k():
            e(f'buffer_load_dwordx4 {vr(vK[b], 4)}, v{vKA}, {srd(S_WS)}, s{sKVI} offen sc1', f'k{it}')

        def v():
            e(f's_mov_b64 exec, s[{sVM}:{sVM + 1}]')
            e(f'buffer_load_dwordx4 {vr(vV[b], 4)}, v{vKA + 1}, {srd(S_WS)}, s{sKVI} offen offset:1024 sc1', f'v{it}')
            e(f'buffer_load_dwordx4 {vr(vV[b] + 4, 4)}, v{vKA + 1}, {srd(S_WS)}, s{sKVI} offen offset:1536 sc1', f'v{it}')
            e('s_mov_b64 exec, -1')
        return k, v

    def kv_adv(self, part=3):
        if part & 1:
            self.e(f's_addk_i32 s{sKVI}, 2048')
        if part & 2:
            self.e(f's_bitset0_b32 s{sKVI}, 15')

    def gelu(self, c):
        e = self.e
        acc = ACF + 16 * c
        T = ACA + 16
        P = lambda b, i: vr(b + 2 * i, 2)
        for i in range(4):
            e(f'v_pk_mul_f32 {P(T, i)}, {P(acc, i)}, {P(acc, i)}')
        for i in range(4):
            e(f'v_pk_fma_f32 {P(T, i)}, {P(T, i)}, s[{sGC}:{sGC + 1}], {vr(T + 8, 2)}')
        for i in range(4):
            e(f'v_pk_mul_f32 {P(T, i)}, {P(T, i)}, {P(acc, i)}')
        for i in range(8):
            e(f'v_exp_f32 v{T + i}, v{T + i}')
        for i in range(4):
            e(f'v_pk_mul_f32 {P(acc, i)}, {P(acc, i)}, {P(acc + 8, i)}')
        for i in range(4):
            ch = vr(T + 10 + 2 * (i // 2), 2)
            e(f'v_pk_fma_f32 {P(T, i)}, {P(T, i)}, {ch}, {ch}')
        for i in range(8):
            e(f'v_rcp_f32 v{T + i}, v{T + i}')
        for i in range(4):
            e(f'v_pk_mul_f32 {P(acc, i)}, {P(acc, i)}, {P(T, i)}')
        for i in (0, 2, 1, 3):
            e(f'v_cvt_pk_bf16_f32 v{acc + 8 + i}, v{acc + 2 * i}, v{acc + 2 * i + 1}')
        for r in range(2):
            e(f'v_permlane16_swap_b32 v{acc + 8 + r}, v{acc + 10 + r}')

    def h_store(self, c):
        e = self.e
        e(f's_add_u32 s{sT}, s{sHO}, {65536 * c}')
        e(f'buffer_store_dwordx4 {vr(ACF + 16 * c + 8, 4)}, v{vL16}, {srd(S_WS)}, s{sT} offen sc1', 'hst')

    def split(self, fn):
        real = self.e
        rec = []

        class Rec:
            def __call__(s, text, tag=None):
                rec.append(('i', text, tag))

            def wait(s, vm=None, lg=None):
                rec.append(('w', vm, lg))
        self.e = Rec()
        fn()
        self.e = real
        out, grp = [], []
        for r in rec:
            grp.append(r)
            masked = any(x[0] == 'i' and x[1].startswith('s_mov_b64 exec') for x in grp)
            if (masked and r[1] != 's_mov_b64 exec, -1') or r[0] == 'w':
                continue

            def f(grp=grp):
                for x in grp:
                    if x[0] == 'i':
                        real(x[1], x[2])
                    else:
                        real.wait(vm=x[1], lg=x[2])
            out.append(f)
            grp = []
        assert not grp
        return out

    def phase_f(self, g, ty):
        e = self.e
        o = self.topt(ty)
        NC = self.nchains(g, ty)
        PS = 4 * NC
        M = 8 * PS
        sc = lambda m: m * PS // 12
        LA = 4
        wf = Win(e, vFR[:NC])
        fill = []
        at = {}
        cur = [0]
        polled = False

        def pin(m, f):
            at.setdefault(m, []).append(f)

        def sched(s, m0, span, extra=()):
            part = 0
            if s <= 15:
                assert free_after(s, ty) <= s - o['fah']
                part = (3 if g else 0) if s <= o['lonly'] else (o['late'] if g == 0 else 3 - o['late'])
            lst = list(extra) + (self.dma_list(s, ty, part, first=(g == 0 and s == o['lonly'] + 1)) if part else [])
            for i, f in enumerate(lst):
                pin(m0 + i * span // len(lst), f)

        def enter(s):
            e.wait(vm=[f'st{s}'] + (['qst'] if s == o['qw'] else []), lg='zw' if s == 9 else None)
            e('s_barrier')
            sched(s + o['fah'], cur[0] + 1, sc(o['span']))
            if s == 9:
                fill.extend(self.split(self.gate_read))
                fill.append(self.nonce_get)
                fill.extend(self.split(self.attn_setup))
                fill.extend(self.split(self.gate_math))
            if s == o['qw'] and g == 0:
                fill.insert(0, self.flag1)

        def reads(m):
            s = 8 + m // PS
            if m % PS == 0 and m:
                enter(s)
            ks, r = divmod(m % PS, 2 * NC)
            c, gu = divmod(r, 2)
            slot = region(s, ty)[0]
            wf.ensure(slot, slot + 2 * UPOFF)
            for rd in range(2):
                t = slot + gu * UPOFF + ks * 6144 + rd * 256
                e(f'ds_read_b64_tr_b16 {vr(FR + 4 * (m % NFR) + 2 * rd, 2)}, v{vFR[c]} offset:{wf.off(t)}', f'f{m}')

        if g == 0:
            for i in range(4):
                pin(o['q0'] + o['qsp'] * i, self.qkv_pack(ty, i)[1])
            if ty:
                for i in range(4, 8):
                    ops, st = self.qkv_pack(ty, i)
                    m0 = o['q0'] + o['qsp'] * (i - 1)
                    for k, f in enumerate(ops):
                        pin(m0 + k * o['qsp'] // len(ops), f)
                    pin(m0 + o['qsp'], st)
            assert o['q0'] + o['qsp'] * 7 < sc(o['vi'])
        sched(8 + o['fah'], 0, PS - LA, self.left if g else ())
        for m in range(LA):
            reads(m)
        if o['prio']:
            pin(sc(50), lambda: e('s_setprio 3'))
        for m in range(M):
            cur[0] = m
            n, r = divmod(m, 2 * NC)
            c, gu = divmod(r, 2)
            e.wait(lg=[f'f{m + k}' for k in range(o['wpf'] if m % o['wpf'] == 0 else 1)])
            for tg in range(2):
                acc = vr(ACF + 16 * c + 8 * gu + 4 * tg, 4)
                e(f'v_mfma_f32_16x16x32_bf16 {acc}, {vr(FR + 4 * (m % NFR), 4)}, {vr(X + 8 * n + 4 * tg, 4)}, {acc if n else 0}')
                if tg == 0 and m + LA < M:
                    reads(m + LA)
            if m % PS == 0 and 2 * PS <= m:
                self.stamp(5 + m // PS, 1)
            if m == sc(o['vi']):
                fill.extend(self.split(self.v_init))
            if m == sc(48) and not o['zm']:
                fill.extend(self.split(self.o_init))
            if m == sc(o['om']):
                fill.extend(self.split(self.o_mark))
            if m == sc(o['tch']) and g == 0:
                fill.append(self.touch)
            if m == sc(o['p1i']):
                fill.append(self.poll1_issue)
            if m == sc(o['p1c']):
                fill.append(self.poll1_check)
                for grp in self.attn_loads_early():
                    fill.append(grp)
                    fill.extend([lambda: None] * o['lsp'])
                polled = True
            for f in at.pop(m, []):
                f()
            k = o['fk'] if m < sc(o['p1c']) else o['gk']
            for _ in range(k * 3 // NC):
                if fill:
                    fill.pop(0)()
        assert not at
        self.stamp(5)
        ge = []
        chains = list(range(NC))[::-1] if o['hl'] else list(range(NC))
        for c in chains:
            ge += self.split(lambda: self.gelu(c))
        NS = NC - o['hl']
        stored = 0
        for k, f in enumerate(ge):
            if not polled and k == o['pg']:
                fill.append(self.poll1_check)
                fill.append(lambda: self.stamp(7, 3))
                for grp in self.attn_loads_early():
                    fill.append(grp)
                    fill.extend([lambda: None] * o['lsp'])
                fill.append(lambda: self.stamp(8, 3))
                polled = True
            f()
            if fill and k % o['gsp'] == 0:
                fill.pop(0)()
            if polled and not fill and stored < NS and (stored + 1) * len(ge) // NC <= k:
                self.h_store(chains[stored])
                stored += 1
        for f in fill:
            f()
        for c in range(stored, NS):
            self.h_store(chains[c])

    def o_mark(self):
        e = self.e
        for i in range(4):
            e(f'v_mov_b32 v{ACA + 16 + i}, -1')
        e(f'buffer_store_dwordx4 {vr(ACA + 16, 4)}, v{vL16}, {srd(S_WS)}, s{sMO} offen sc1', 'hst')

    def gate_read(self):
        e = self.e
        e(f's_lshl_b32 s{sT}, s{sTT}, 8')
        e(f'v_and_b32 v{vCH}, 15, v0')
        e(f'v_lshl_add_u32 v{vCH}, v{vCH}, 2, s{sT}')
        e(f'v_add_u32 v{vCH}, {L_Z}, v{vCH}')
        e(f'ds_read2_b32 {vr(vCH, 2)}, v{vCH} offset0:0 offset1:16', 'zr')

    def gate_math(self):
        e = self.e
        e.wait(lg='zr')
        for i in range(2):
            e(f'v_mul_f32 v{vCH + i}, {fbits(LOG2E)}, v{vCH + i}')
        for i in range(2):
            e(f'v_exp_f32 v{vCH + i}, v{vCH + i}')
        for i in range(2):
            e(f'v_add_f32 v{vCH + i}, 1.0, v{vCH + i}')

    def nonce_get(self):
        e = self.e
        e.wait(vm='non')
        ld = lambda: e(f'buffer_load_dwordx2 v[{vK[0]}:{vK[0] + 1}], off, {srd(S_DBG)}, 0 sc1')
        ck = lambda: e(f'v_cmp_eq_u32 vcc, 0, v{vK[0] + 1}')
        self.spin('non', ld, ck)
        e(f'v_readfirstlane_b32 s{sNON}, v{vK[0]}')
        e(f'v_readfirstlane_b32 s{sNON + 1}, v{vK[0] + 1}')

    def flag1(self):
        e = self.e
        lab = e.newlabel('f1')
        e(f's_cmp_lg_u32 s{sW}, 0')
        e(f's_cbranch_scc1 {lab}')
        snap = e.snapshot()
        e(f's_lshl_b32 s{sT + 7}, s{sJ}, 4')
        e(f's_add_u32 s{sT + 7}, s{sT + 7}, s{sTB}')
        e(f's_lshl_b32 s{sT + 7}, s{sT + 7}, {self.opt["fs"]}')
        e(f's_add_u32 s{sT + 7}, s{sT + 7}, {WS_F1}')
        self.flag_store(sT + 7, vK[0])
        e.paths = e.paths + snap
        e.label(lab)

    def touch(self):
        e = self.e
        lab = e.newlabel('tc')
        e(f's_cmp_lg_u32 s{sW}, 3')
        e(f's_cbranch_scc1 {lab}')
        snap = e.snapshot()
        e(f'v_lshlrev_b32 v{vK[0]}, 7, v0')
        e(f's_mul_i32 s{sT}, s2, {43 * 128}')
        e(f's_lshl_b32 s{sT + 1}, s2, 11')
        e(f's_mov_b64 exec, 0xffff')
        e(f'buffer_load_dword v{vK[0] + 1}, v{vK[0]}, {srd(S_WO)}, s{sT + 1} offen', 'touch')
        e(f's_mov_b32 exec_lo, -1')
        e(f's_mov_b32 exec_hi, 0x7ff')
        e(f'buffer_load_dword v{vK[0] + 2}, v{vK[0]}, {srd(S_WD)}, s{sT} offen', 'touch')
        e('s_mov_b64 exec, -1')
        e.paths = e.paths + snap
        e.label(lab)

    def attn_setup(self):
        e = self.e
        e(f's_lshr_b32 s{sT + 2}, s{sJ}, 2')
        e(f's_lshl_b32 s{sT + 2}, s{sT + 2}, 5')
        e(f's_lshl_b32 s{sT + 3}, s{sTT}, 2')
        e(f's_add_u32 s{sT}, s{sT + 2}, s{sT + 3}')
        e(f's_add_u32 s{sT}, s{sT}, {9 * 16}')
        e(f's_and_b32 s{sT + 1}, s{sJ}, 14')
        e(f's_lshl_b32 s{sT + 1}, s{sT + 1}, 4')
        e(f's_add_u32 s{sT + 1}, s{sT + 1}, s{sT + 3}')
        e(f's_add_u32 s{sT + 2}, s{sT + 2}, s{sTB}')
        e(f's_add_u32 s{sT + 2}, s{sT + 2}, 16')
        e(f'v_mov_b32 v{vPA}, s{sT + 2}')
        e(f'v_and_b32 v{vP}, 3, v0')
        e('s_mov_b64 exec, 0xff')
        e(f'v_add_u32 v{vPA}, s{sT + 1}, v{vP}')
        e('s_mov_b64 exec, 0xf')
        e(f'v_add_u32 v{vPA}, s{sT}, v{vP}')
        e('s_mov_b64 exec, -1')
        e(f'v_lshlrev_b32 v{vPA}, {self.opt["fs"]}, v{vPA}')
        e(f'v_add_u32 v{vPA}, {WS_F1}, v{vPA}')
        e(f'v_lshrrev_b32 v{vDD[0]}, 3, v0')
        e(f'v_lshrrev_b32 v{vP}, 2, v0')
        e(f'v_and_b32 v{vP}, 4, v{vP}')
        e(f'v_xor_b32 v{vP}, v{vP}, v0')
        e(f'v_and_b32 v{vP}, 7, v{vP}')
        e(f'v_lshlrev_b32 v{vP}, 4, v{vP}')
        e(f'v_lshl_add_u32 v{vDD[0]}, v{vDD[0]}, 10, v{vP}')
        e(f'v_add_u32 v{vDD[1]}, {8192 - 1024}, v{vDD[0]}')
        e(f'v_add_u32 v{vRW[0]}, s{sMD}, v{vL16}')
        e(f'v_lshl_add_u32 v{vRW[1]}, v0, 2, s{sMD}')

    def o_init(self):
        e = self.e
        for t in range(4):
            for i in range(self.opt['oz']):
                e(f'v_mov_b32 v{vO[t] + i}, 0')

    def v_init(self):
        e = self.e
        e(f'v_and_b32 v{vV[0] + 1}, 27, v0')
        e(f'v_cmp_eq_u32 vcc, 16, v{vV[0] + 1}')
        e(f'v_mov_b32 v{vV[0] + 1}, 0x3f803f80')
        e(f'v_cndmask_b32 v{vV[0]}, 0, v{vV[0] + 1}, vcc')
        for i in range(1, 16):
            e(f'v_mov_b32 v{vV[0] + i}, v{vV[0]}')
        e(f'v_mov_b32 v{ACA + 24}, {fbits(GC0)}')
        e(f'v_mov_b32 v{ACA + 25}, v{ACA + 24}')
        for i in range(4):
            e(f'v_min_f32 v{ACA + 26 + i}, {fbits(2.0 ** 100)}, v{vCH + i // 2}')
        e(f'v_add_u32 v{vKA}, s{sKVB}, v{vL16}')
        e(f'v_add_u32 v{vKA + 1}, s{sKVB}, v{vVA}')

    def poll1_issue(self):
        e = self.e
        e('s_mov_b64 exec, 0x1ff')
        e(f'buffer_load_dwordx2 v[{vP}:{vP + 1}], v{vPA}, {srd(S_WS)}, 0 offen sc1', 'p1')
        e('s_mov_b64 exec, -1')

    def poll1_check(self):
        e = self.e
        e.wait(vm='p1')
        e('s_mov_b64 exec, 0x1ff')
        e(f'v_cmp_ne_u64 vcc, s[{sNON}:{sNON + 1}], v[{vP}:{vP + 1}]')
        e('s_mov_b64 exec, -1')
        e(f's_mov_b32 s{sPEND}, vcc_lo')

    def attn_load_groups(self):
        e = self.e
        k0, v0 = self.kv_load(0)
        k1, v1 = self.kv_load(1)

        def q(i):
            e(f's_add_u32 s{sT + 1}, s{sTT}, {1 + i}')
            e(f's_and_b32 s{sT + 1}, s{sT + 1}, 3')
            e(f's_lshl_b32 s{sT + 1}, s{sT + 1}, 10')
            e(f's_add_u32 s{sT + 1}, s{sT + 1}, s{sQO}')
            e(f'buffer_load_dwordx4 {vr(vQ[i], 4)}, v{vL16}, {srd(S_WS)}, s{sT + 1} offen' + (' sc1' if self.opt['qsc'] else ''), f'q{i}')
        return [k0, lambda: q(0), lambda: (v0(), self.kv_adv()), lambda: q(1), lambda: q(2), lambda: q(3), k1, lambda: (v1(), self.kv_adv())]

    def attn_loads_early(self):
        e = self.e
        out = []
        for n, f in enumerate(self.attn_load_groups()):
            def g(f=f, n=n):
                lab = e.newlabel('al')
                e(f's_cmp_lg_u32 s{sPEND}, 0')
                e(f's_cbranch_scc1 {lab}')
                if n == 0:
                    skip = e.snapshot()
                    for p in skip:
                        p.g = 'pend'
                else:
                    skip = [p for p in e.paths if p.g == 'pend']
                    e.paths = [p for p in e.paths if p.g != 'pend']
                f()
                e.paths = e.paths + skip
                e.label(lab)
            out.append(g)
        return out

    def attn_loads_late(self):
        e = self.e
        e(f's_cmp_lg_u32 s{sPEND}, 0')
        e('s_cbranch_scc1 Llate')
        e.label('Llate_done')
        e.paths = [p for p in e.paths if p.g != 'pend']

        def blk():
            e.paths = [p for p in Emitter().paths]
            e.label('Llate')
            e('s_mov_b64 exec, 0x1ff')
            ld = lambda: e(f'buffer_load_dwordx2 v[{vP}:{vP + 1}], v{vPA}, {srd(S_WS)}, 0 offen sc1')
            ck = lambda: e(f'v_cmp_ne_u64 vcc, s[{sNON}:{sNON + 1}], v[{vP}:{vP + 1}]')
            ld()
            e('s_waitcnt vmcnt(0)')
            self.spin('p1', ld, ck, self.opt['sl1'])
            e('s_mov_b64 exec, -1')
            for f in self.attn_load_groups():
                f()
            e('s_waitcnt vmcnt(0)')
            e('s_branch Llate_done')
        self.tail_blocks.append(blk)

    def attention(self):
        e = self.e
        G0 = self.opt['g2start']
        NT = 64

        def qk(t):
            it, sl = divmod(t, 4)
            if sl == 0:
                e.wait(vm=f'k{it}')
            if it == 0:
                e.wait(vm=f'q{sl}')
            e(f'v_mfma_f32_32x32x16_bf16 {vr(vS[t % 2], 16)}, {vr(vK[it % 2], 4)}, {vr(vQ[sl], 4)}, 0')

        def pv(t, hi):
            it, sl = divmod(t, 4)
            if sl == 0 and not hi:
                e.wait(vm=f'v{it}')
            e(f'v_smfmac_f32_32x32x32_bf16 {vr(vO[sl], 16)}, {vr(vV[it % 2] + 4 * hi, 4)}, {vr(vS[t % 2] + 8 * hi, 8)}, v{vIDX}')

        def ex(t, a, b):
            for i in range(a, b):
                e(f'v_exp_f32 v{vS[t % 2] + i}, v{vS[t % 2] + i}')

        def stage_dma(rs, i, tag):
            return lambda: e(f'buffer_load_dwordx4 v{vDD[i]}, {srd(rs)}, s{sDO} offen' + (' offset:1024' if i else '') + ' lds', tag)

        def wo_first():
            e(f's_lshl_b32 s{sDO}, s{sW}, 16')
            e(f's_lshl_b32 s{sT}, s{sCB}, 7')
            e(f's_add_u32 s{sDO}, s{sDO}, s{sT}')
            e(f's_lshl_b32 s{sMD}, s{sW}, 13')

        def h_load(step, i):
            return lambda: e(f'buffer_load_dwordx4 {vr(vH[step % 2] + 4 * i, 4)}, v{vHA[i]}, {srd(S_H)}, s{sHO} offen sc1', f'h{step}')

        def wd_read(step, jj):
            def f():
                e.wait(vm=f'd{step}')
                for rd in range(2):
                    e(f'ds_read_b64_tr_b16 {vr(vD + 4 * jj + 2 * rd, 2)}, v{vDR[jj]} offset:{L_RING + 2048 * (step % 3) + 512 * rd}', f'dr{step}_{jj}')
            return f

        def g2(step, sl):
            jj, i = divmod(sl, 2)
            e.wait(vm=f'h{step}', lg=f'dr{step}_{jj}')
            acc = vr(vG[i * 2 + jj], 16)
            e(f'v_mfma_f32_32x32x16_bf16 {acc}, {vr(vD + 4 * jj, 4)}, {vr(vH[step % 2] + 4 * i, 4)}, {acc if step else 0}')

        def sig2_a():
            e.wait(vm='hst')
            e(f'v_mov_b32 v{vP}, {L_CNT}')
            e(f'v_mov_b32 v{vP + 1}, 1')
            e('s_mov_b64 exec, 1')
            e(f'ds_add_rtn_u32 v{vP}, v{vP}, v{vP + 1}', 'cnt2')
            e('s_mov_b64 exec, -1')

        def sig2_b():
            e.wait(lg='cnt2')
            e(f'v_readfirstlane_b32 s{sT}, v{vP}')
            lab = e.newlabel('f2')
            e(f's_cmp_lg_u32 s{sT}, 7')
            e(f's_cbranch_scc1 {lab}')
            snap = e.snapshot()
            e(f's_lshl_b32 s{sT}, s{sTB}, 4')
            e(f's_add_u32 s{sT}, s{sT}, s{sJ}')
            e(f's_lshl_b32 s{sT}, s{sT}, {self.opt["fs"]}')
            e(f's_add_u32 s{sT}, s{sT}, {WS_F2}')
            self.flag_store(sT, vP)
            e.paths = e.paths + snap
            e.label(lab)
            e(f's_and_b32 s{sT}, s{sW}, 1')
            e(f's_lshl_b32 s{sT}, s{sT}, 10')
            e(f'v_add_u32 v{vHA[0]}, s{sT}, v{vL16}')
            e(f'v_xor_b32 v{vHA[1]}, 1024, v{vHA[0]}')
            e(f's_mul_i32 s{sHO}, s{sW}, {11 * 65536}')
            e(f's_lshl_b32 s{sT}, s{sRB}, 11')
            e(f's_add_u32 s{sHO}, s{sHO}, s{sT}')

        def poll2_issue():
            e(f's_lshr_b32 s{sT + 1}, s{sRB}, 1')
            e(f's_lshl_b32 s{sT + 1}, s{sT + 1}, {4 + self.opt["fs"]}')
            e(f's_add_u32 s{sT + 1}, s{sT + 1}, {WS_F2}')
            e(f'v_lshl_add_u32 v{vPA}, v0, {self.opt["fs"]}, s{sT + 1}')
            e('s_mov_b64 exec, 0xffff')
            e(f'buffer_load_dwordx2 v[{vP}:{vP + 1}], v{vPA}, {srd(S_WS)}, 0 offen sc1', 'p2')
            e('s_mov_b64 exec, -1')

        def poll2_check():
            e.wait(vm='p2')
            e('s_mov_b64 exec, 0xffff')
            ld = lambda: e(f'buffer_load_dwordx2 v[{vP}:{vP + 1}], v{vPA}, {srd(S_WS)}, 0 offen sc1')
            ck = lambda: e(f'v_cmp_ne_u64 vcc, s[{sNON}:{sNON + 1}], v[{vP}:{vP + 1}]')
            self.spin('p2', ld, ck, self.opt['sl2'])
            e('s_mov_b64 exec, -1')

        def cnt_issue():
            e(f'v_mov_b32 v{vPA}, {L_CNT}')
            e(f'ds_read_b32 v{vP}, v{vPA}', 'cnt3')

        def cnt_check():
            e.wait(lg='cnt3')

            def ld():
                e(f'ds_read_b32 v{vP}, v{vPA}')
                e('s_waitcnt lgkmcnt(0)')
            self.spin('c3', ld, lambda: e(f'v_cmp_ne_u32 vcc, 8, v{vP}'))

        def co_read():
            e(f's_lshl_b32 s{sT}, s{sTT}, 8')
            e(f'v_lshl_add_u32 v{vCO}, v0, 2, s{sT}')
            e(f'ds_read_b32 v{vCO}, v{vCO} offset:{L_Z}', 'zr2')

        def co_math():
            e.wait(lg='zr2')
            e(f'v_mul_f32 v{vCO}, {fbits(-LOG2E)}, v{vCO}')
            e(f'v_exp_f32 v{vCO}, v{vCO}')

        def ored_addr(i):
            def f():
                e(f's_sub_u32 s{sT}, s{sTT}, {1 + i}')
                e(f's_and_b32 s{sT}, s{sT}, 3')
                e(f's_lshl_b32 s{sT + 1}, s{sG}, 2')
                e(f's_add_u32 s{sT}, s{sT}, s{sT + 1}')
                e(f's_mul_i32 s{sT}, s{sT}, {RINGW}')
                e(f'v_add_u32 v{vRR + i}, s{sT}, v{vL16}')
                e(f'v_lshl_add_u32 v{vRR + 3 + i}, v0, 2, s{sT}')
            return f

        def o_addr():
            e(f's_lshr_b32 s{sO[0]}, s{sW}, 1')
            e(f's_lshl_b32 s{sO[0]}, s{sO[0]}, 19')
            e(f's_lshl_b32 s{sT}, s{sRB}, 11')
            e(f's_add_u32 s{sO[0]}, s{sO[0]}, s{sT}')
            e(f's_add_u32 s{sO[0]}, s{sO[0]}, {WS_O}')

        def o_addr2():
            for k in range(1, 8):
                e(f's_add_u32 s{sO[k]}, s{sO[0]}, {65536 * k}')

        def o_addr3():
            e(f'v_and_b32 v{vPA}, 1024, v{vHA[0]}')
            e(f'v_lshl_add_u32 v{vPA}, v0, 16, v{vPA}')

        def ored_write(sl):
            def f():
                o = L_RING + 2304 * sl
                e(f'ds_write_b128 v{vRW[0]}, {vr(vO[sl], 4)} offset:{o}', 'orw')
                e(f'ds_write_b128 v{vRW[0]}, {vr(vO[sl] + 4, 4)} offset:{o + 1024}', 'orw')
                e(f'ds_write_b32 v{vRW[1]}, v{vO[sl] + 8} offset:{o + 2048}', 'orw')
            return f

        side = {}
        add = lambda t, p, f: side.setdefault((t, p), []).append(f)
        I = lambda text: (lambda: e(text))
        for it in range(16):
            t = 4 * it
            st = it - G0
            add(t, 1, lambda it=it, st=st: e.wait(vm=[f'v{it}', f'h{st}'], lg=f'dr{st}_0'))
            add(t + 2, 2, lambda it=it, st=st: e.wait(vm=[f'k{it + 1}', f'd{st + 1}'], lg=f'dr{st}_1'))
            if 1 <= it < 15:
                add(t, 0, self.kv_load(it + 1)[1])
                add(t, 2, self.kv_adv)
            if it < 14:
                add(t + 2, 1, self.kv_load(it + 2)[0])
        for step in range(11):
            t = 4 * (G0 + step)
            add(t - 7, 2, I(f's_add_u32 m0, s{sMD}, {L_RING + 2048 * (step % 3)}'))
            add(t - 7, 4, stage_dma(S_WD, 0, f'd{step}'))
            add(t - 6, 0, stage_dma(S_WD, 1, f'd{step}'))
            add(t - 6, 0, I(f's_addk_i32 s{sDO}, 16384'))
            add(t - 4, 4, h_load(step, 0))
            add(t - 3, 1, h_load(step, 1))
            add(t - 3, 2, I(f's_add_u32 s{sHO}, s{sHO}, 65536'))
            add(t - 1, 0, wd_read(step, 0))
            add(t + 1, 0, wd_read(step, 1))
        t = 4 * (G0 + 8) + 2
        add(t, 4, wo_first)
        for k in range(4):
            add(t + 1 + k, 1, I(f's_add_u32 m0, s{sMD}, {L_WO + 2048 * k}'))
            add(t + 1 + k, 2, stage_dma(S_WO, 0, 'wo'))
            add(t + 1 + k, 2, stage_dma(S_WO, 1, 'wo'))
            add(t + 1 + k, 4, I(f's_addk_i32 s{sDO}, 16384'))
        add(4 * (G0 + 8), 2, cnt_issue)
        add(4 * (G0 + 8) + 1, 2, cnt_check)
        for c in range(self.opt['hl']):
            add(c * self.opt['hsp'], 2, lambda c=c: self.h_store(c))
        for i in range(3):
            add(22 + 4 * i, 2, ored_addr(i))
        add(34, 2, o_addr)
        add(38, 2, o_addr2)
        add(58, 2, o_addr3)
        add(2, 2, co_read)
        add(3, 2, co_math)
        add(self.opt['s2t'], 2, sig2_a)
        add(self.opt['s2t'] + 1, 2, sig2_b)
        add(4 * (G0 - 2) + 2, 2, poll2_issue)
        add(4 * (G0 - 1), 2, poll2_check)
        for sl in range(3):
            add(61 + sl, 3, ored_write(sl))
        if self.opt['prio']:
            add(self.opt['pa'], 2, lambda: e('s_setprio 2'))
            add(self.opt['pb'], 2, lambda: e('s_setprio 1'))
            add(self.opt['pc'], 2, lambda: e('s_setprio 0'))

        def run(t, p):
            for f in side.get((t, p), []):
                f()

        def zero(sl):
            e(f'v_mfma_f32_32x32x16_bf16 {vr(vO[sl], 16)}, {vr(vD, 4)}, {vr(vD, 4)}, 0')

        if self.opt['zm']:
            for i in range(4):
                e(f'v_mov_b32 v{vD + i}, 0')
        qk(0)
        self.stamp(9, 3)
        if self.opt['zm']:
            zero(0)
        for t in range(NT):
            it, sl = divmod(t, 4)
            ex(t, 0, 2)
            if t > 0:
                pv(t - 1, 1)
            run(t, 0)
            ex(t, 2, 5)
            if t + 1 < NT:
                qk(t + 1)
            run(t, 1)
            ex(t, 5, 10)
            pv(t, 0)
            run(t, 2)
            ex(t, 10, 13)
            if G0 <= it < G0 + 11:
                g2(it - G0, sl)
            if t < 3 and self.opt['zm']:
                zero(t + 1)
            run(t, 4)
            ex(t, 13, 16)
            run(t, 3)
            if t in (7, 31):
                self.stamp(7 if t == 7 else 8)
        pv(NT - 1, 1)

    def tail(self):
        e = self.e
        own = vO[3]
        R = vO[0]
        P2 = lambda b, i: vr(b + 2 * i, 2)
        self.stamp(9)
        ld = lambda tag=None: e(f'buffer_load_dword v{vP}, v{vPA}, {srd(S_WS)}, s{sO[0]} offen offset:1020 sc1', tag)
        OF = ACA

        def old(kk, tag=None):
            for k in (2 * kk, 2 * kk + 1):
                e(f'buffer_load_dwordx4 {vr(OF + 4 * k, 4)}, v{vHA[0]}, {srd(S_WS)}, s{sO[k]} offen sc1', tag)

        e.wait(vm='wo', lg='all')
        e('s_barrier')
        e('s_mov_b64 exec, 0xff')
        ld('p3')
        e('s_mov_b64 exec, -1')
        for i in range(3):
            e(f'ds_read_b32 v{R + 24 + i}, v{vRR + 3 + i} offset:{L_RING + 2304 * i + 2048}', f'or{i}')
        for i in range(3):
            o = L_RING + 2304 * i
            e(f'ds_read_b128 {vr(R + 8 * i, 4)}, v{vRR + i} offset:{o}', f'oa{i}')
            e(f'ds_read_b128 {vr(R + 8 * i + 4, 4)}, v{vRR + i} offset:{o + 1024}', f'oa{i}')
        e.wait(lg='or2')
        e(f'v_add_f32 v{R + 24}, v{R + 24}, v{R + 25}')
        e(f'v_add_f32 v{own + 8}, v{own + 8}, v{R + 26}')
        e(f'v_add_f32 v{own + 8}, v{own + 8}, v{R + 24}')
        e(f'v_subrev_u32 v{R + 24}, {(127 - 60) << 23}, v{own + 8}')
        e(f'v_cmp_lt_u32 vcc, {120 << 23}, v{R + 24}')
        e(f'v_fma_f32 v{R + 28}, v{own + 8}, v{vCO}, v{own + 8}')
        e(f'v_rcp_f32 v{R + 28}, v{R + 28}')
        for i in range(3):
            e.wait(lg=f'oa{i}')
            for r in range(4):
                e(f'v_pk_add_f32 {P2(own, r)}, {P2(own, r)}, {P2(R + 8 * i, r)}')
        e('s_cbranch_vccnz Lsafe')
        e.label('Lsafe_done')
        self.tail_blocks.append(self.safe_softmax)
        e(f'v_mov_b32 v{R + 29}, v{R + 28}')
        for r in range(4):
            e(f'v_pk_mul_f32 {P2(own, r)}, {P2(own, r)}, {vr(R + 28, 2)}')
        for r in range(4):
            e(f'v_cvt_pk_bf16_f32 v{vK[0] + r}, v{own + 2 * r}, v{own + 2 * r + 1}')
        for r in range(4):
            e(f'v_min_u32 v{vK[0] + r}, -2, v{vK[0] + r}')
        e(f'buffer_store_dwordx4 {vr(vK[0], 4)}, v{vL16}, {srd(S_WS)}, s{sMO} offen sc1', 'ost')
        self.stamp(10)
        vFW, vFRd, vOA = FR, FR + 4, FR + 6
        WO = vO[0]
        PRE = X + 64
        e(f's_lshr_b32 s{sT + 1}, s{sW}, 1')
        e(f's_lshl_b32 s{sT + 2}, s{sT + 1}, 14')
        e(f's_mul_i32 s{sT + 3}, s{sW}, {RINGW}')
        e(f's_sub_u32 s{sT + 2}, s{sT + 2}, s{sT + 3}')
        e(f's_add_u32 s{sT + 2}, s{sT + 2}, {L_WO}')
        e(f'v_and_b32 v{vP + 1}, 32, v0')
        e(f'v_lshlrev_b32 v{vP + 1}, 4, v{vP + 1}')
        e(f'v_sub_u32 v{vP + 1}, s{sT + 2}, v{vP + 1}')
        for jj in range(2):
            e(f'v_add_u32 v{vDR[jj]}, v{vP + 1}, v{vDR[jj]}')

        def wo_reads(k):
            for jj in range(2):
                for rd in range(2):
                    e(f'ds_read_b64_tr_b16 {vr(WO + 8 * k + 4 * jj + 2 * rd, 2)}, v{vDR[jj]} offset:{2048 * k + 1024 * rd}', 'wor')

        def addrs():
            t0, t1 = vK[1], vK[1] + 1
            e(f'v_and_b32 v{vFW}, 31, v0')
            e(f'v_lshrrev_b32 v{t0}, 5, v0')
            e(f'v_and_b32 v{t1}, 7, v0')
            e(f'v_xor_b32 v{t0}, v{t0}, v{t1}')
            e(f'v_lshlrev_b32 v{t0}, 4, v{t0}')
            e(f'v_lshl_add_u32 v{vFW}, v{vFW}, 8, v{t0}')
            e(f's_lshl_b32 s{sT}, s{sW}, 14')
            e(f'v_add_u32 v{vFW}, s{sT}, v{vFW}')
            for q in range(1, 4):
                e(f'v_xor_b32 v{vFW + q}, {32 * q}, v{vFW}')
            e(f'v_lshrrev_b32 v{t0}, 3, v0')
            e(f'v_lshlrev_b32 v{vOA}, 4, v{t1}')
            e(f'v_lshl_add_u32 v{vOA}, v{t0}, 10, v{vOA}')
            e(f'v_lshlrev_b32 v{t1}, 1, v{t1}')
            e(f'v_xor_b32 v{t1}, v{t1}, v{t0}')
            e(f'v_lshlrev_b32 v{t1}, 4, v{t1}')
            e(f'v_lshl_add_u32 v{vFRd}, v{t0}, 8, v{t1}')
            e(f's_and_b32 s{sT + 2}, s{sW}, 1')
            e(f's_lshl_b32 s{sT + 3}, s{sT + 2}, 3')
            e(f's_add_u32 s{sT + 3}, s{sT + 3}, s{sT + 1}')
            e(f's_lshl_b32 s{sT + 3}, s{sT + 3}, 11')
            e(f'v_add_u32 v{vFRd}, s{sT + 3}, v{vFRd}')
            e(f'v_xor_b32 v{vFRd + 1}, 16, v{vFRd}')
            for h in range(2):
                e(f'v_add_u32 v{vRR + h}, 65536, v{vFRd + h}')
                e(f'v_xor_b32 v{vRR + 2 + h}, {16384 + 8192}, v{vFRd + h}')
                e(f'v_xor_b32 v{vRR + 4 + h}, {16384 + 8192}, v{vRR + h}')
            e(f's_lshl_b32 s{sT + 2}, s{sT + 2}, 2')
            e(f's_add_u32 s{sT + 2}, s{sT + 2}, s{sT + 1}')
            e(f's_lshl_b32 s{sT}, s{sRB}, 3')
            e(f's_add_u32 s{sT}, s{sT}, s{sT + 2}')
            e(f's_lshl_b32 s{sT}, s{sT}, 13')
            e(f's_lshl_b32 s{sT + 1}, s{sCB}, 7')
            e(f's_add_u32 s{sT}, s{sT}, s{sT + 1}')

        def slab_write(i, n):
            jj, q = divmod(n, 4)
            e(f'ds_write_b128 v{vFW + q}, {vr(vG[2 * i + jj] + 4 * q, 4)} offset:{8192 * i + 128 * jj}', f'sw{i}')

        def slab_reads(dst, lo, hi, tag):
            for p in range(4):
                for h in range(2):
                    e(f'ds_read_b128 {vr(dst + 8 * p + 4 * h, 4)}, v{(hi if p >> 1 else lo) + h} offset:{32768 * (p & 1)}', f'{tag}{p}')

        def pre_adds():
            for p in range(1, 4):
                e.wait(lg=f'pr{p}')
                for r in range(8):
                    e(f'v_add_f32 v{PRE + r}, v{PRE + r}, v{PRE + 8 * p + r}')

        def mm(kk, between=None):
            e.wait(vm=f'o{kk}')

            def ck():
                b = OF + 8 * kk
                e(f'v_max3_u32 v{vP}, v{b}, v{b + 1}, v{b + 2}')
                e(f'v_max3_u32 v{vP + 1}, v{b + 3}, v{b + 4}, v{b + 5}')
                e(f'v_max3_u32 v{vP}, v{vP}, v{b + 6}, v{b + 7}')
                e(f'v_max_u32 v{vP}, v{vP}, v{vP + 1}')
                e(f'v_cmp_eq_u32 vcc, -1, v{vP}')
            self.spin(f'o{kk}', lambda: [old(q) for q in range(kk, 4)], ck, self.opt['sl3'])
            for n, (jj, k) in enumerate(((0, 2 * kk), (0, 2 * kk + 1), (1, 2 * kk), (1, 2 * kk + 1))):
                acc = vr(vG[jj], 16)
                e(f'v_mfma_f32_32x32x16_bf16 {acc}, {vr(WO + 8 * k + 4 * jj, 4)}, {vr(OF + 4 * k, 4)}, {acc}')
                if between:
                    between(n)

        for k in range(2):
            wo_reads(k)
        e.wait(vm='p3')
        e('s_mov_b64 exec, 0xff')
        e(f'v_cmp_eq_u32 vcc, -1, v{vP}')
        e('s_mov_b64 exec, -1')
        e('s_cbranch_vccnz Lo_late')
        snap = e.snapshot()
        for kk in range(4):
            old(kk, f'o{kk}')
            for k in range(2 + 2 * kk, min(8, 4 + 2 * kk)):
                wo_reads(k)
        self.stamp(7, 4)
        addrs()
        e.wait(lg='all')
        e('s_barrier')
        self.stamp(11)
        for kk in range(2):
            mm(kk, lambda n, kk=kk: slab_write(1, 4 * kk + n))
        if self.opt['eb']:
            mm(2)
        e.wait(lg='all')
        e('s_barrier')
        self.stamp(8, 4)
        slab_reads(PRE, vRR + 2, vRR + 4, 'pr')
        if not self.opt['eb']:
            mm(2)
        mm(3)
        pre_adds()
        ready = e.snapshot()

        def late():
            e.restore(snap)
            e.label('Lo_late')
            for k in range(2, 8):
                wo_reads(k)
            self.stamp(7, 4)
            addrs()
            e.wait(lg='all')
            e('s_barrier')
            self.stamp(11)
            LP = self.opt['lp']
            for n in range(8):
                if LP == 0 and n % 2 == 0:
                    old(n // 2, f'o{n // 2}')
                slab_write(1, n)
            if LP == 1:
                for kk in range(4):
                    old(kk, f'o{kk}')
            e.wait(lg='all')
            e('s_barrier')
            slab_reads(PRE, vRR + 2, vRR + 4, 'pr')
            if LP == 2:
                for kk in range(4):
                    old(kk, f'o{kk}')
            self.stamp(8, 4)
            pre_adds()
            for kk in range(4):
                mm(kk)
            e('s_nop 8')
            e('s_branch Lo_done')
        self.tail_blocks.append(late)
        e.label('Lo_done')
        self.stamp(12)
        for n in range(8):
            if n == 4:
                e('s_nop 1')
            slab_write(0, n)
        e.wait(lg='all')
        e('s_barrier')
        B = X
        slab_reads(B, vFRd, vRR, 'fr')
        for p in range(4):
            e.wait(lg=f'fr{p}')
            for r in range(4):
                e(f'v_pk_add_f32 {P2(PRE, r)}, {P2(PRE, r)}, {P2(B + 8 * p, r)}')
        for r in range(4):
            e(f'v_cvt_pk_bf16_f32 v{B + r}, v{PRE + 2 * r}, v{PRE + 2 * r + 1}')
        e(f'buffer_store_dwordx4 {vr(B, 4)}, v{vOA}, {srd(S_OUT)}, s{sT} offen sc1')
        if 'probe' in self.opt:
            e.wait(vm='all')
            self.stamp(13)
            e.label('Lprobe')
            e('s_sleep 1')
            e(f's_memrealtime s[{sSTMP}:{sSTMP + 1}]')
            e('s_waitcnt lgkmcnt(0)')
            e(f's_sub_u32 s{sSTMP}, s{sSTMP}, s{sNON if self.opt["probe"] == 99 else sSTAMP}')
            e(f's_cmp_lt_u32 s{sSTMP}, 6000')
            e('s_cbranch_scc1 Lprobe')
        if self.stamps:
            e.wait(vm='all')
            self.stamp(13)
            e(f's_lshl_b32 s{sT}, s2, 3')
            e(f's_add_u32 s{sT}, s{sT}, s{sW}')
            e(f's_lshl_b32 s{sT}, s{sT}, 6')
            e(f's_add_u32 s{sT}, s{sT}, {WS_ST}')
            e('s_waitcnt lgkmcnt(0)')
            en = [i for i in range(14) if (self.opt.get('smask', 0x2001) | 0x2001) >> i & 1]
            for k, i in enumerate(en):
                e(f'v_mov_b32 v{B + 8 + i}, s{sSTAMP + 2 * k}')
            e('s_mov_b64 exec, 1')
            for i in range(4):
                e(f'buffer_store_dwordx4 {vr(B + 8 + 4 * i, 4)}, off, {srd(S_WS)}, s{sT} offset:{16 * i}')
        e.label('Lexit')
        e('s_endpgm')

    def safe_softmax(self):
        e = self.e
        e.paths = [p for p in Emitter().paths]
        own = vO[3]
        M = vO[0]
        S = vS[0]
        e.label('Lsafe')
        e(f's_and_b32 s{sT + 2}, s{sKVB}, {0xffffffff ^ (3 << 15)}')
        e(f's_mov_b32 s{sT + 3}, s{sT + 2}')
        e(f's_mov_b32 s{sT + 4}, 64')
        e(f'v_mov_b32 v{M}, 0xff800000')
        e.label('Lsafe1')
        e(f'buffer_load_dwordx4 {vr(vK[0], 4)}, v{vL16}, {srd(S_WS)}, s{sT + 3} offen sc1')
        e(f's_add_u32 s{sT + 3}, s{sT + 3}, 2048')
        e('s_waitcnt vmcnt(0)')
        e(f'v_mfma_f32_32x32x16_bf16 {vr(S, 16)}, {vr(vK[0], 4)}, {vr(vQ[3], 4)}, 0')
        for i in range(0, 16, 2):
            e(f'v_max3_f32 v{M}, v{M}, v{S + i}, v{S + i + 1}')
        e(f's_sub_u32 s{sT + 4}, s{sT + 4}, 1')
        e(f's_cmp_lg_u32 s{sT + 4}, 0')
        e('s_cbranch_scc1 Lsafe1')
        e(f'v_mov_b32 v{M + 1}, v{M}')
        e(f'v_permlane32_swap_b32 v{M}, v{M + 1}')
        e(f'v_max_f32 v{M}, v{M}, v{M + 1}')
        e(f'v_sub_f32 v{M}, 0, v{M}')
        for i in range(1, 16):
            e(f'v_mov_b32 v{M + i}, v{M}')
        for i in range(16):
            e(f'v_mov_b32 v{own + i}, 0')
        e(f's_mov_b32 s{sT + 3}, s{sT + 2}')
        e(f's_mov_b32 s{sT + 4}, 64')
        e.label('Lsafe2')
        e(f'buffer_load_dwordx4 {vr(vK[0], 4)}, v{vL16}, {srd(S_WS)}, s{sT + 3} offen sc1')
        e(f's_mov_b64 exec, s[{sVM}:{sVM + 1}]')
        e(f'buffer_load_dwordx4 {vr(vV[0], 4)}, v{vVA}, {srd(S_WS)}, s{sT + 3} offen offset:1024 sc1')
        e(f'buffer_load_dwordx4 {vr(vV[0] + 4, 4)}, v{vVA}, {srd(S_WS)}, s{sT + 3} offen offset:1536 sc1')
        e('s_mov_b64 exec, -1')
        e(f's_add_u32 s{sT + 3}, s{sT + 3}, 2048')
        e('s_waitcnt vmcnt(0)')
        e(f'v_mfma_f32_32x32x16_bf16 {vr(S, 16)}, {vr(vK[0], 4)}, {vr(vQ[3], 4)}, {vr(M, 16)}')
        for i in range(16):
            e(f'v_exp_f32 v{S + i}, v{S + i}')
        for hi in range(2):
            e(f'v_smfmac_f32_32x32x32_bf16 {vr(own, 16)}, {vr(vV[0] + 4 * hi, 4)}, {vr(S + 8 * hi, 8)}, v{vIDX}')
        e(f's_sub_u32 s{sT + 4}, s{sT + 4}, 1')
        e(f's_cmp_lg_u32 s{sT + 4}, 0')
        e('s_cbranch_scc1 Lsafe2')
        e('s_nop 15')
        e(f'v_fma_f32 v{vO[0] + 28}, v{own + 8}, v{vCO}, v{own + 8}')
        e(f'v_rcp_f32 v{vO[0] + 28}, v{vO[0] + 28}')
        e('s_branch Lsafe_done')

    def build(self):
        e = self.e
        self.prologue()
        snap = e.snapshot()
        e.label('Lload')
        self.loader_head()
        lsnap = e.snapshot()
        ends = []
        for ty in (1, 0):
            e.restore(lsnap)
            if ty == 0:
                e.label('Lload0')
            self.phase_a_loader(ty)
            self.phase_f(1, ty)
            e('s_branch Lffn')
            ends += e.snapshot()
        for ty in (0, 1):
            e.restore(snap)
            e.label(f'Lcomp{ty}')
            self.phase_a_compute(ty)
            self.phase_f(0, ty)
            if ty == 0:
                e('s_branch Lffn')
            ends += e.snapshot()
        e.paths = ends
        e.label('Lffn')
        self.attn_loads_late()
        self.stamp(6)
        self.attention()
        self.tail()
        i = 0
        while i < len(self.tail_blocks):
            self.tail_blocks[i]()
            i += 1
        e.label('Lcode_end')
        return self.wrap()

    def wrap(self):
        head = open('gated_mix__softmax_full_mha__glu_gated_geglu__prompt.s.ref').read().split('; Override')[0]
        return head + f"""; @launch grid=(256,1,1) block=(512,1,1) lds={LDS_BYTES}
.amdgcn_target "amdgcn-amd-amdhsa--gfx950"
.text
.globl {KNAME}
.p2align 8
.type {KNAME},@function
{KNAME}:
{self.e.text()}
.section .rodata,"a"
.p2align 6
.amdhsa_kernel {KNAME}
  .amdhsa_next_free_vgpr 256
  .amdhsa_next_free_sgpr 102
  .amdhsa_accum_offset 256
  .amdhsa_group_segment_fixed_size 0
  .amdhsa_kernarg_size 88
  .amdhsa_user_sgpr_count 2
  .amdhsa_user_sgpr_kernarg_segment_ptr 1
  .amdhsa_system_sgpr_workgroup_id_x 1
.end_amdhsa_kernel
"""


if __name__ == '__main__':
    out = sys.argv[1]
    stamps = sys.argv[2] if len(sys.argv) > 2 and sys.argv[2] in ('rt', 'cy') else False
    opt = {}
    for a in sys.argv[2:]:
        if '=' in a:
            k, v = a.split('=')
            opt[k] = int(v, 0)
    g = Gen(stamps=stamps, opt=opt)
    open(out, 'w').write(g.build())
    print('nops inserted:', g.e.nops, 'lines:', len(g.e.lines))
```

```python
import sys, math, struct
from asmlib import Emitter, Win

KNAME = 'gated_mix__softmax_full_mha__glu_gated_geglu__prompt_kernel'

WS_Q = 0
WS_KV = 2 << 20
WS_O = 6 << 20
WS_F1 = 8 << 20
WS_F2 = WS_F1 + 32768
WS_ST = WS_F1 + 65536
WS_H = 9 << 20
WS_END = 15 << 20

L_GW = 0
L_Z = 1024
SLOT0 = 4096
UPOFF = 12288
QOFF = 24576
L_QX = 147456
L_RING = 4096
RINGW = 7168
L_WO = 61440
L_CNT = 161792
LDS_BYTES = 163840

S_X, S_WQ, S_WF, S_WS, S_H, S_WD, S_WO, S_OUT, S_DBG, S_GW = [4 * i + 4 for i in range(10)]
S_WG = 80
sW, sTT, sG, sJ, sTB, sRB, sCB, sUS = range(44, 52)
sXO, sWO, sFO, sMX, sMW, sMF = range(52, 58)
sNON = 58
sKV, sKVB, sKVI, sHO, sDO, sMD = range(60, 66)
sVM = 66
sT = 68
sGC = 76
sQW = 78
sXO2 = 79
sSPIN = 84
sMO = 85
sMG = 3
sO = [4, 5, 6, 7, 8, 9, 10, 11]
sR = 73
sE = [4, 5, 6, 7]
sSTMP = 86
sSTAMP = 88


def region(s):
    return SLOT0 + 28672 * (s % 5)


def srd(b):
    return f's[{b}:{b + 3}]'


def vr(b, n):
    return f'v[{b}:{b + n - 1}]' if n > 1 else f'v{b}'


def fbits(x):
    return '0x%08x' % struct.unpack('<I', struct.pack('<f', x))[0]


vL16 = 1
vXD = [2, 3]
vWD = 4
vFD = 5
vXR = [6, 7]
vWR = [8, 2]
vFR = [9, 10, 11]
FR = 16
NFR = 5
ACA = 36
ACF = 68
vK = [116, 120]
vCH, vIDX, vVA = 124, 126, 127
vQR = 126
QA = ACA + 16
X = 128
vO = [X + 16 * i for i in range(4)]
vQ = [X + 64 + 4 * i for i in range(4)]
vV = [ACA, ACA + 8]
vS = [ACA + 16, X + 80]
vG = [ACF, ACF + 16, ACF + 32, X + 96]
vH = [X + 112, X + 120]
vD = FR
vCO = FR + 8
vDD = [2, 3]
vDR = [12, 13]
vP = 14
vPA = 6
vRW = [7, 8]
vHA = [9, 10]
vKA = 124
vRR = FR + 10

LOG2E = 1.4426950408889634
QSCALE = 0.25 * LOG2E
GC0 = -2.0 * LOG2E * math.sqrt(2.0 / math.pi)
GC1 = GC0 * 0.044715
SPIN = 400000


class Gen:
    def __init__(self, stamps=False, opt=None):
        self.e = Emitter()
        self.stamps = stamps
        self.nst = 0
        self.opt = dict(g2start=5, prio=True, ahead=12, span=12, fah=2, omf=0, lfirst=3, p1i=70, p1c=80, fk=2, gk=3, lpre=60, cpre=200,
                        pa=8, pb=44, pc=60, qw=10, qe=4, q0=0, qsp=1, om=2, s2t=6, rot=4, rj=0, zm=1, hl=0, hsp=1,
                        fs=7, lp=1, eb=1, sl1=4, sl2=8, sl3=2, lsp=4)
        if opt:
            self.opt.update(opt)
        self.tail_blocks = []

    def stamp(self, idx, sset=0):
        e = self.e
        if self.opt.get('sset') == 4:
            if 7 <= idx <= 9 and sset != 4:
                return
        elif 7 <= idx <= 12 and sset != self.opt.get('sset', 0):
            return
        if self.opt.get('probe') == idx:
            e(f's_memrealtime s[{sSTAMP}:{sSTAMP + 1}]')
            e('s_waitcnt lgkmcnt(0)')
            for p in e.paths:
                p.lg = []
        if not self.stamps or not (self.opt.get('smask', 0x2001) | 0x2001) >> idx & 1:
            return
        en = [i for i in range(14) if (self.opt.get('smask', 0x2001) | 0x2001) >> i & 1]
        assert len(en) <= 7
        r = sSTAMP + 2 * en.index(idx)
        e(f"{'s_memtime' if self.stamps == 'cy' else 's_memrealtime'} s[{r}:{r + 1}]")

    def dma_list(self, s):
        e = self.e
        slot = region(s)
        out = []
        tag = f'st{s}'

        def mk(m0s, m0c, va, rs, so, imm=0, pre=()):
            def f():
                e(f's_add_u32 m0, s{m0s}, {m0c - imm}')
                for p in pre:
                    e(p)
                e(f'buffer_load_dwordx4 v{va}, {srd(rs)}, s{so} offen' + (f' offset:{imm}' if imm else '') + ' lds', tag)
            out.append(f)
        t = sT + 6

        def step(so, n):
            if s % 8 == 0:
                return ()
            return [f's_cmp_eq_u32 s{sR}, {-s % 8}', f's_cselect_b32 s{t}, -7, 1', f's_mul_i32 s{t}, s{t}, {n}', f's_add_u32 s{so}, s{so}, s{t}']
        if s < 8:
            for i in range(4):
                mk(sMX, slot + i * 1024, vXD[i % 2], S_X, sXO if i < 2 else sXO2,
                   pre=step(sXO, 128) if i == 0 else ([f's_add_u32 s{sXO2}, s{sXO}, 16384'] if i == 1 else ()))
            for i in range(2):
                mk(sMW, slot + 16384 + i * 1024, vWD, S_WQ, sWO, imm=64 * i, pre=step(sWO, 64 * 3072) if i == 0 else ())
        else:
            mk(sMF, slot + QOFF, vWD, S_WQ, sQW, pre=step(sQW, 64 * 3072))
            for h in range(2):
                for i in range(3):
                    mk(sMG, slot + h * UPOFF + i * 1024, vFD, S_WF if h else S_WG, sFO, imm=64 * i,
                       pre=step(sFO, 64 * 2752) if h + i == 0 else ())
        return out

    def prologue(self):
        e = self.e
        self.stamp(0)
        e('s_cmp_ge_u32 s2, 256')
        e('s_cbranch_scc1 Lexit')
        e(f's_load_dwordx2 s[{S_X}:{S_X + 1}], s[0:1], 0')
        e(f's_load_dwordx2 s[{S_WQ}:{S_WQ + 1}], s[0:1], 8')
        e(f's_getpc_b64 s[{sT}:{sT + 1}]')
        e.label('Lpfbase')
        e(f's_lshr_b32 s{sT + 2}, s2, 3')
        e(f's_lshl_b32 s{sT + 2}, s{sT + 2}, 11')
        e(f'v_lshl_add_u32 v16, v0, 2, s{sT + 2}')
        e('v_min_u32 v16, Lcode_end-Lpfbase-4, v16')
        e('v_lshrrev_b32 v2, 6, v0')
        e('s_mov_b32 exec_lo, 1')
        e('s_mov_b32 exec_hi, 1')
        e(f'global_load_dword v{vK[1]}, v16, s[{sT}:{sT + 1}]', 'pf')
        e('s_mov_b64 exec, -1')
        e(f'v_readfirstlane_b32 s{sW}, v2')
        e('v_and_b32 v0, 63, v0')
        e(f's_xor_b32 s{sW}, s{sW}, 4')
        e(f's_and_b32 s{sTT}, s{sW}, 3')
        e(f's_lshr_b32 s{sG}, s{sW}, 2')
        e('s_cbranch_scc1 Lload')
        e('s_bitcmp1_b32 s2, 3')
        e('s_cbranch_scc1 Lcomp1')
        e('s_branch Lcomp0')

    def more_args(self, g):
        e = self.e
        lst = [(S_GW, 56), (S_WG, 32), (S_WF, 40)] if g else []
        for b, off in lst + [(S_DBG, 72), (S_WS, 80), (S_H, 80), (S_WD, 48), (S_WO, 16), (S_OUT, 64)]:
            e(f's_load_dwordx2 s[{b}:{b + 1}], s[0:1], {off}')
        e(f'v_lshlrev_b32 v{vL16}, 4, v0')
        e(f's_and_b32 s{sTB}, s2, 4')
        e(f's_lshl_b32 s{sTB}, s{sTB}, 1')
        e(f's_lshr_b32 s{sT + 6}, s2, 5')
        e(f's_add_u32 s{sTB}, s{sTB}, s{sT + 6}')
        e(f's_and_b32 s{sJ}, s2, 3')
        e(f's_lshl_b32 s{sJ}, s{sJ}, 2')
        e(f's_bfe_u32 s{sT + 6}, s2, 0x20003')
        e(f's_add_u32 s{sJ}, s{sJ}, s{sT + 6}')
        R = self.opt['rot']
        e(f's_mul_i32 s{sR}, s{sJ}, {self.opt["rj"]}')
        e(f's_add_u32 s{sR}, s{sR}, s{sTB}')
        e(f's_and_b32 s{sR}, s{sR}, {R - 1}')
        e(f's_mul_i32 s{sR}, s{sR}, {8 // R}')

    def quad_rows(self, dst, stride, t):
        e = self.e
        e(f'v_lshrrev_b32 v{t}, 4, v0')
        e(f'v_and_b32 v{t}, 2, v{t}')
        e(f'v_xor_b32 v{t}, v{t}, v0')
        e(f'v_and_b32 v{t}, 3, v{t}')
        e(f'v_lshrrev_b32 v{dst}, 2, v0')
        e(f'v_mul_u32_u24 v{dst}, {stride}, v{dst}')
        e(f'v_lshl_add_u32 v{dst}, v{t}, 4, v{dst}')

    def tr_base(self, dst, gstride, t):
        e = self.e
        e(f'v_lshrrev_b32 v{dst}, 5, v0')
        e(f'v_mul_u32_u24 v{dst}, {gstride}, v{dst}')
        e(f'v_bfe_u32 v{t}, v0, 4, 1')
        e(f'v_mul_u32_u24 v{t}, {512 + 32}, v{t}')
        e(f'v_add_u32 v{dst}, v{dst}, v{t}')
        e(f'v_bfe_u32 v{t}, v0, 2, 2')
        e(f'v_lshl_add_u32 v{dst}, v{t}, 6, v{dst}')
        e(f'v_and_b32 v{t}, 3, v0')
        e(f'v_lshl_add_u32 v{dst}, v{t}, 3, v{dst}')

    def srd_consts(self, lst):
        for b, n in lst:
            self.e(f's_mov_b32 s{b + 2}, {n}')
            self.e(f's_mov_b32 s{b + 3}, 0x20000')

    def x_read_addrs(self):
        e = self.e
        e('v_and_b32 v16, 15, v0')
        e(f's_lshl_b32 s{sT + 6}, s{sTT}, 12')
        e('v_lshrrev_b32 v17, 4, v0')
        e('v_lshrrev_b32 v18, 1, v16')
        e('v_xor_b32 v18, v18, v17')
        e('v_lshlrev_b32 v18, 4, v18')
        e('v_lshl_add_u32 v18, v16, 7, v18')
        e(f'v_add_u32 v{vXR[0]}, s{sT + 6}, v18')
        e(f'v_xor_b32 v{vXR[1]}, 64, v{vXR[0]}')

    def setup2(self, g, ty):
        e = self.e
        t = sT
        self.srd_consts(([(S_DBG, 256), (S_WG, 512 * 2752), (S_WF, 512 * 2752)] if g else []) +
                        [(S_WS, WS_END), (S_H, 86 * 65536), (S_WD, 1376 * 1024), (S_WO, 512 * 1024), (S_OUT, 2048 * 1024)])
        e(f's_lshl_b32 s{sUS}, s{sJ}, 4')
        e(f's_add_u32 s{sUS}, s{sUS}, 2')
        e(f's_mul_i32 s{sUS}, s{sUS}, 43691')
        e(f's_lshr_b32 s{sUS}, s{sUS}, 17')
        if g:
            e(f's_lshl_b32 s{t + 1}, s{sR}, 2')
            e(f's_add_u32 s{t + 1}, s{t + 1}, s{sTT}')
            e(f's_mul_i32 s{sFO}, s{t + 1}, {16 * 2752}')
            e(f's_lshr_b32 s{t}, s{sUS}, 1')
            e(f's_lshl_b32 s{t}, s{t}, 6')
            e(f's_add_u32 s{sFO}, s{sFO}, s{t}')
            e(f's_mul_i32 s{sQW}, s{t + 1}, {16 * 3072}')
            e(f's_lshl_b32 s{t}, s{sJ}, 6')
            e(f's_add_u32 s{sQW}, s{sQW}, s{t}')
            e(f's_mul_i32 s{sMG}, s{sTT}, 3072')
            e(f's_lshl_b32 s{sMF}, s{sTT}, 10')
            self.quad_rows(vFD, 2752, vP)
        first = 0 if g else 3
        self.tr_base(vP + 1, 3072, vP)
        for c in range(3):
            e(f's_and_b32 s{t}, s{sUS}, 1')
            e(f's_add_u32 s{t}, s{t}, {first + c}')
            e(f's_lshr_b32 s{t + 1}, s{t}, 1')
            e(f's_lshl_b32 s{t + 1}, s{t + 1}, 10')
            e(f's_and_b32 s{t}, s{t}, 1')
            e(f's_lshl_b32 s{t}, s{t}, 5')
            e(f'v_xor_b32 v{vFR[c]}, s{t}, v{vP + 1}')
            e(f'v_add_u32 v{vFR[c]}, s{t + 1}, v{vFR[c]}')
        e(f'v_lshrrev_b32 v{vP}, 5, v0')
        e(f'v_lshlrev_b32 v{vVA}, 11, v{vP}')
        e(f'v_sub_u32 v{vQR}, v{vP + 1}, v{vVA}')
        if g:
            e(f'v_xor_b32 v{vQR}, 32, v{vQR}')
        e(f's_add_u32 s{S_H}, s{S_H}, {WS_H}\n    s_addc_u32 s{S_H + 1}, s{S_H + 1}, 0')
        e(f's_and_b32 s{sRB}, s2, 7')
        e(f's_xor_b32 s{sRB}, s{sRB}, 4')
        e(f's_lshl_b32 s{sRB}, s{sRB}, 2')
        e(f's_lshr_b32 s{t}, s2, 6')
        e(f's_add_u32 s{sRB}, s{sRB}, s{t}')
        e(f's_bfe_u32 s{sCB}, s2, 0x30003')
        e(f's_mov_b32 s{sVM}, 0xffff')
        e(f's_mov_b32 s{sVM + 1}, 0xffff')
        e(f's_mov_b32 s{sGC}, {fbits(GC1)}')
        e(f's_mov_b32 s{sGC + 1}, s{sGC}')
        e(f'v_and_b32 v{vVA}, 15, v0')
        e(f'v_lshl_add_u32 v{vVA}, v{vP}, 4, v{vVA}')
        e(f'v_lshlrev_b32 v{vVA}, 4, v{vVA}')
        e(f's_lshl_b32 s{t}, s{sTB}, 2')
        e(f's_add_u32 s{t}, s{t}, s{sTT}')
        e(f's_add_u32 s{sHO}, s{sUS}, {first}')
        e(f's_lshl_b32 s{sHO}, s{sHO}, 6')
        e(f's_add_u32 s{sHO}, s{sHO}, s{t}')
        e(f's_lshl_b32 s{sHO}, s{sHO}, 10')
        e(f's_add_u32 s{sHO}, s{sHO}, {WS_H}')
        e(f's_lshl_b32 s{sMO}, s{sJ}, 7')
        e(f's_add_u32 s{sMO}, s{sMO}, s{t}')
        e(f's_lshl_b32 s{sMO}, s{sMO}, 10')
        e(f's_add_u32 s{sMO}, s{sMO}, {g * 65536 + WS_O}')
        if g == 0:
            e(f's_lshr_b32 s{sE[0]}, s{sJ}, 1')
            e(f's_lshl_b32 s{sE[0]}, s{sE[0]}, 8')
            e(f's_add_u32 s{sE[0]}, s{sE[0]}, s{t}')
            e(f's_lshl_b32 s{sE[0]}, s{sE[0]}, 11')
            e(f's_add_u32 s{sE[0]}, s{sE[0]}, {WS_KV + 1024 * ty}')
            for i in range(1, 4):
                e(f's_add_u32 s{sE[i]}, s{sE[0]}, {262144 * (i >> 1) + 512 * (i & 1) if ty else 131072 * i}')
            if ty:
                e(f'v_bfe_u32 v{vWD}, v0, 4, 1')
                e(f'v_lshl_add_u32 v{vWD}, v{vWD}, 17, v{vVA}')
            else:
                e(f'v_mov_b32 v{vWD}, v{vL16}')
        e(f's_lshl_b32 s{sKVB}, s{sJ}, 3')
        e(f's_add_u32 s{sKVB}, s{sKVB}, s{sW}')
        e(f's_lshl_b32 s{sKVB}, s{sKVB}, 15')
        e(f's_add_u32 s{sKVB}, s{sKVB}, {WS_KV}')
        e(f's_and_b32 s{sKVI}, s{sTB}, 7')
        e(f's_lshl_b32 s{sKVI}, s{sKVI}, 12')
        e(f's_and_b32 s{sKV}, s{sJ}, 14')
        e(f's_lshl_b32 s{sKV}, s{sKV}, 2')
        e(f's_add_u32 s{sKV}, s{sKV}, s{sTT}')
        e(f's_lshl_b32 s{sKV}, s{sKV}, {2 + self.opt["fs"]}')
        e(f's_add_u32 s{sKV}, s{sKV}, {WS_F1}')
        e(f's_mul_i32 s{sMD}, s{sW}, {RINGW}')
        e(f's_mul_i32 s{sDO}, s{sW}, {11 * 16384}')
        e(f's_lshl_b32 s{t}, s{sCB}, 7')
        e(f's_add_u32 s{sDO}, s{sDO}, s{t}')
        e(f'v_bfe_u32 v{vDR[0]}, v0, 2, 2')
        e(f'v_lshl_add_u32 v{vDR[0]}, v{vP}, 3, v{vDR[0]}')
        e(f'v_lshlrev_b32 v{vDR[0]}, 7, v{vDR[0]}')
        e(f'v_bfe_u32 v{vP}, v0, 4, 1')
        e(f'v_lshl_add_u32 v{vDR[0]}, v{vP}, 5, v{vDR[0]}')
        e(f'v_bfe_u32 v{vP}, v0, 3, 1')
        e(f'v_lshl_add_u32 v{vDR[0]}, v{vP}, 6, v{vDR[0]}')
        e(f'v_and_b32 v{vP}, 3, v0')
        e(f'v_lshl_add_u32 v{vDR[0]}, v{vP}, 3, v{vDR[0]}')
        e(f'v_add_u32 v{vDR[0]}, s{sMD}, v{vDR[0]}')
        e(f'v_xor_b32 v{vDR[1]}, 64, v{vDR[0]}')

    def phase_a_loader(self):
        e = self.e
        o = self.opt
        GWB = FR
        ZA = ACF
        self.more_args(1)
        e('v_lshrrev_b32 v16, 3, v0')
        e('v_lshrrev_b32 v17, 4, v0')
        e('v_and_b32 v18, 7, v0')
        e('v_xor_b32 v18, v18, v17')
        e('v_lshlrev_b32 v18, 4, v18')
        e(f'v_lshl_add_u32 v{vXD[0]}, v16, 10, v18')
        e(f'v_xor_b32 v{vXD[1]}, 64, v{vXD[0]}')
        e(f'v_add_u32 v{vXD[1]}, 8192, v{vXD[1]}')
        e(f's_lshl_b32 s{sXO}, s{sTB}, 2')
        e(f's_add_u32 s{sXO}, s{sXO}, s{sTT}')
        e(f's_lshl_b32 s{sXO}, s{sXO}, 8')
        e(f's_add_u32 s{sXO}, s{sXO}, s{sR}')
        e(f's_lshl_b32 s{sXO}, s{sXO}, 7')
        e(f's_lshl_b32 s{sMX}, s{sTT}, 12')
        self.srd_consts(((S_X, 2048 * 1024), (S_WQ, 512 * 3072), (S_GW, 1024)))
        self.quad_rows(vWD, 3072, 16)
        e(f's_lshr_b32 s{sT}, s{sJ}, 1')
        e(f's_and_b32 s{sT + 1}, s{sJ}, 1')
        e(f's_lshl_b32 s{sT + 1}, s{sT + 1}, 3')
        e(f's_add_u32 s{sT}, s{sT}, s{sT + 1}')
        e(f's_lshl_b32 s{sT}, s{sT}, 7')
        e(f's_lshl_b32 s{sWO}, s{sR}, 2')
        e(f's_add_u32 s{sWO}, s{sWO}, s{sTT}')
        e(f's_mul_i32 s{sWO}, s{sWO}, {16 * 3072}')
        e(f's_add_u32 s{sWO}, s{sWO}, s{sT}')
        e(f's_addk_i32 s{sWO}, 1024')
        e(f's_lshl_b32 s{sMW}, s{sTT}, 11')
        e('s_waitcnt lgkmcnt(0)')
        self.stamp(1)
        seq = []
        bound = []
        last = 7 + o['fah']
        for s in range(last + 1):
            bound.append(len(seq))
            seq += self.dma_list(s)
        bound.append(len(seq))
        pos = 0

        def issue(upto):
            nonlocal pos
            while pos < min(upto, len(seq)):
                seq[pos]()
                pos += 1
        issue(6)
        e(f's_lshl_b32 s{sT}, s{sR}, 7')
        e(f'v_add_u32 v16, s{sT}, v{vL16}')
        e(f's_mov_b32 m0, {L_GW}')
        e('v_and_b32 v16, 1023, v16')
        e(f'buffer_load_dwordx4 v16, {srd(S_GW)}, 0 offen lds', 'st0')
        issue(12)
        self.x_read_addrs()
        e(f'v_and_b32 v{vWR[0]}, 48, v0')
        fill = self.split(lambda: self.setup2(1, 0)) + self.split(self.v_const)
        for _ in range(min(len(fill), o['lpre'])):
            fill.pop(0)()
        D = o['ahead']
        issue(bound[1] + D)
        wx = Win(e, vXR)
        for s in range(8):
            slot = region(s)
            e.wait(vm=f'st{s}')
            e('s_barrier')
            if s in (0, 4):
                self.stamp(2 + s // 4)
            end = min(bound[s + 2] + D, bound[min(max(s + 4, 5), last + 1)])
            issue(min(end, pos + o['lfirst']))
            wx.ensure(slot, slot + 2048)
            for ks in range(2):
                n = 2 * s + ks
                e(f'ds_read_b128 {vr(GWB + 4 * ks, 4)}, v{vWR[0]} offset:{L_GW + 64 * n}', f'r{n}')
                for tg in range(2):
                    e(f'ds_read_b128 {vr(X + 8 * n + 4 * tg, 4)}, v{vXR[ks]} offset:{wx.off(slot + 2048 * tg)}', f'r{n}')
            if s == 6:
                e(f'buffer_load_dwordx2 v[{vK[0]}:{vK[0] + 1}], off, {srd(S_DBG)}, 0 sc1', 'non')
            issue(end)
            for ks in range(2):
                n = 2 * s + ks
                e.wait(lg=f'r{n}')
                for tg in range(2):
                    z = vr(ZA + 4 * tg, 4)
                    e(f'v_mfma_f32_16x16x32_bf16 {z}, {vr(GWB + 4 * ks, 4)}, {vr(X + 8 * n + 4 * tg, 4)}, {z if n else 0}')
            for _ in range(30):
                if fill:
                    fill.pop(0)()
            if s == 3:
                assert not fill
        self.left = seq[pos:]
        e(f'v_and_b32 v{vP}, 16, v0')
        e(f'v_cmp_eq_u32 vcc, 0, v{vP}')
        e(f's_lshl_b32 s{sT + 1}, s{sTT}, 8')
        e(f'v_lshl_add_u32 v{vP}, v0, 2, s{sT + 1}')
        e(f'v_cndmask_b32 v{vP + 1}, v{ZA + 4}, v{ZA}, vcc')
        e(f'ds_write_b32 v{vP}, v{vP + 1} offset:{L_Z}', 'zw')
        e.wait(vm='st8')
        e('s_barrier')
        self.stamp(4)

    def pack8(self, src, dst):
        e = self.e
        for r in range(4):
            e(f'v_cvt_pk_bf16_f32 v{dst + r}, v{src + 2 * r}, v{src + 2 * r + 1}')
        for r in range(2):
            e(f'v_permlane16_swap_b32 v{dst + r}, v{dst + 2 + r}')

    def phase_a_compute(self, ty):
        e = self.e
        NC = 4
        self.more_args(0)
        e(f's_memrealtime s[{sNON}:{sNON + 1}]')
        e('v_mov_b32 v16, 0')
        e(f'v_mov_b32 v17, {L_CNT}')
        e('ds_write_b32 v17, v16', 'z0')
        self.srd_consts(((S_DBG, 256),))
        self.x_read_addrs()
        self.tr_base(vWR[0], NC * 512, 16)
        e(f'v_xor_b32 v{vWR[1]}, 32, v{vWR[0]}')
        e('s_waitcnt lgkmcnt(0)')
        for p in e.paths:
            p.lg = []
        self.stamp(1)
        if not ty:
            e(f's_or_b32 s{sT + 6}, s2, s{sW}')
            lab = e.newlabel('nn')
            e(f's_cbranch_scc1 {lab}')
            snap = e.snapshot()
            e(f's_or_b32 s{sNON + 1}, s{sNON + 1}, 0x80000000')
            e(f'v_mov_b32 v16, s{sNON}')
            e(f'v_mov_b32 v17, s{sNON + 1}')
            e('s_mov_b64 exec, 1')
            e(f'buffer_store_dwordx2 v[16:17], off, {srd(S_DBG)}, 0 sc1', 'nst')
            e('s_mov_b64 exec, -1')
            e.paths = e.paths + snap
            e.label(lab)
        fill = self.split(lambda: self.setup2(0, ty))
        for _ in range(min(len(fill), self.opt['cpre'])):
            fill.pop(0)()
        LA = 4
        wx = Win(e, vXR)
        ww = Win(e, vWR)
        M = 16 * NC

        def reads(m, rd):
            n, ct = divmod(m, NC)
            s, ks = divmod(n, 2)
            slot = region(s)
            if m % (2 * NC) == 0 and rd == 0:
                e('s_barrier')
                if s in (0, 4):
                    self.stamp(2 + s // 4)
                wx.ensure(slot, slot + 2048)
                ww.ensure(slot + 16384, slot + 24576)
            if ct == 0:
                e(f'ds_read_b128 {vr(X + 8 * n + 4 * rd, 4)}, v{vXR[ks]} offset:{wx.off(slot + 2048 * rd)}', f'a{m}')
            t = slot + 16384 + ks * NC * 1024 + (ct >> 1) * 1024 + rd * 256
            e(f'ds_read_b64_tr_b16 {vr(FR + 4 * (m % NFR) + 2 * rd, 2)}, v{vWR[ct & 1]} offset:{ww.off(t)}', f'a{m}')

        for m in range(LA):
            reads(m, 0)
            reads(m, 1)
        for m in range(M):
            n, ct = divmod(m, NC)
            e.wait(lg=f'a{m}')
            for tg in range(2):
                acc = vr(ACA + 16 * (ct >> 1) + 8 * tg + 4 * (ct & 1) if ty else ACA + 8 * ct + 4 * tg, 4)
                a, b = vr(FR + 4 * (m % NFR), 4), vr(X + 8 * n + 4 * tg, 4)
                if ty:
                    a, b = b, a
                e(f'v_mfma_f32_16x16x32_bf16 {acc}, {a}, {b}, {acc if n else 0}')
                if m + LA < M:
                    reads(m + LA, tg)
            for _ in range(3):
                if fill:
                    fill.pop(0)()
            if m == M * 7 // 8:
                e(f'buffer_load_dwordx2 v[{vK[0]}:{vK[0] + 1}], off, {srd(S_DBG)}, 0 sc1', 'non')
        assert not fill

    def kv_store(self, i):
        self.e(f'buffer_store_dwordx4 {vr(ACA + 4 * i, 4)}, v{vWD}, {srd(S_WS)}, s{sE[i]} offen sc1', 'qst')

    def spin(self, name, reload, check, sleep=2):
        e = self.e
        lr, lc = e.newlabel(name + 'r'), e.newlabel(name + 'c')
        check()
        e(f's_cbranch_vccnz {lr}')
        e.label(lc)

        def blk():
            e.paths = [p for p in Emitter().paths]
            e.label(lr)
            e(f's_mov_b32 s{sSPIN}, {SPIN}')
            ll = e.newlabel(name + 'l')
            e.label(ll)
            e(f's_sleep {sleep}')
            reload()
            e('s_waitcnt vmcnt(0)')
            check()
            e(f's_cbranch_vccz {lc}')
            e(f's_sub_u32 s{sSPIN}, s{sSPIN}, 1')
            e(f's_cbranch_scc0 {ll}')
            e(f's_branch {lc}')
        self.tail_blocks.append(blk)

    def flag_store(self, soff, tmp):
        e = self.e
        e(f'v_mov_b32 v{tmp}, s{sNON}')
        e(f'v_mov_b32 v{tmp + 1}, s{sNON + 1}')
        e('s_mov_b64 exec, 1')
        e(f'buffer_store_dwordx2 v[{tmp}:{tmp + 1}], off, {srd(S_WS)}, s{soff} sc1', 'flag')
        e('s_mov_b64 exec, -1')

    def kv_load(self, it):
        e = self.e
        b = it % 2

        def k():
            e(f'buffer_load_dwordx4 {vr(vK[b], 4)}, v{vKA}, {srd(S_WS)}, s{sKVI} offen sc1', f'k{it}')

        def v():
            e(f's_mov_b64 exec, s[{sVM}:{sVM + 1}]')
            e(f'buffer_load_dwordx4 {vr(vV[b], 4)}, v{vKA + 1}, {srd(S_WS)}, s{sKVI} offen offset:1024 sc1', f'v{it}')
            e(f'buffer_load_dwordx4 {vr(vV[b] + 4, 4)}, v{vKA + 1}, {srd(S_WS)}, s{sKVI} offen offset:1536 sc1', f'v{it}')
            e('s_mov_b64 exec, -1')
        return k, v

    def kv_adv(self, part=3):
        if part & 1:
            self.e(f's_addk_i32 s{sKVI}, 2048')
        if part & 2:
            self.e(f's_bitset0_b32 s{sKVI}, 15')

    def gelu(self, c, pk=True):
        e = self.e
        acc = ACF + 16 * c
        T = ACA + 16
        P = lambda b, i: vr(b + 2 * i, 2)
        if not pk:
            real = e

            def e(text):
                if not text.startswith('v_pk_'):
                    return real(text)
                op, rest = text.split(None, 1)
                for h in range(2):
                    ops = [f'{o[0]}{int(o[2:o.index(":")]) + h}' for o in rest.split(', ')]
                    real(op.replace('v_pk_', 'v_') + ' ' + ', '.join(ops))
        for i in range(4):
            e(f'v_pk_mul_f32 {P(T, i)}, {P(acc, i)}, {P(acc, i)}')
        for i in range(4):
            e(f'v_pk_fma_f32 {P(T, i)}, {P(T, i)}, s[{sGC}:{sGC + 1}], {vr(T + 8, 2)}')
        for i in range(4):
            e(f'v_pk_mul_f32 {P(T, i)}, {P(T, i)}, {P(acc, i)}')
        for i in range(8):
            e(f'v_exp_f32 v{T + i}, v{T + i}')
        for i in range(4):
            e(f'v_pk_mul_f32 {P(acc, i)}, {P(acc, i)}, {P(acc + 8, i)}')
        for i in range(4):
            ch = vr(T + 10 + 2 * (i // 2), 2)
            e(f'v_pk_fma_f32 {P(T, i)}, {P(T, i)}, {ch}, {ch}')
        for i in range(8):
            e(f'v_rcp_f32 v{T + i}, v{T + i}')
        for i in range(4):
            e(f'v_pk_mul_f32 {P(acc, i)}, {P(acc, i)}, {P(T, i)}')
        for i in (0, 2, 1, 3):
            e(f'v_cvt_pk_bf16_f32 v{acc + 8 + i}, v{acc + 2 * i}, v{acc + 2 * i + 1}')
        for r in range(2):
            e(f'v_permlane16_swap_b32 v{acc + 8 + r}, v{acc + 10 + r}')

    def h_store(self, c):
        e = self.e
        e(f's_add_u32 s{sT}, s{sHO}, {65536 * c}')
        e(f'buffer_store_dwordx4 {vr(ACF + 16 * c + 8, 4)}, v{vL16}, {srd(S_WS)}, s{sT} offen sc1', 'hst')

    def split(self, fn):
        real = self.e
        rec = []

        class Rec:
            def __call__(s, text, tag=None):
                rec.append(('i', text, tag))

            def wait(s, vm=None, lg=None):
                rec.append(('w', vm, lg))
        self.e = Rec()
        fn()
        self.e = real
        out, grp = [], []
        for r in rec:
            grp.append(r)
            masked = any(x[0] == 'i' and x[1].startswith('s_mov_b64 exec') for x in grp)
            if (masked and r[1] != 's_mov_b64 exec, -1') or r[0] == 'w':
                continue

            def f(grp=grp):
                for x in grp:
                    if x[0] == 'i':
                        real(x[1], x[2])
                    else:
                        real.wait(vm=x[1], lg=x[2])
            out.append(f)
            grp = []
        assert not grp
        return out

    def phase_f(self, g, NC):
        e = self.e
        o = self.opt
        order = []
        for s in range(8):
            for item in ([(0, -1), (1, -1)] if s == 7 else []):
                order.append((2 * s + item[0], -1))
            for ks in range(2):
                order += [(2 * s + ks, r) for r in range(0 if s == 7 else -1, 2 * NC)]
        PS = 4 * NC + 2
        M = 8 * PS
        sc = lambda m: m * PS // 12
        LA = 4
        wf = Win(e, vFR[:NC] + [vQR])
        fill = []
        at = {}
        cur = [0]

        def pin(m, f):
            at.setdefault(m, []).append(f)

        def sched(s, m0, span, extra=()):
            lst = list(extra) + (self.dma_list(s) if g and s <= 15 else [])
            for i, f in enumerate(lst):
                pin(m0 + i * span // len(lst), f)

        def enter(s):
            e.wait(vm=[f'st{s}'] + (['qst'] if s == o['qw'] else []), lg='zw' if s == 9 else None)
            e('s_barrier')
            sched(s + o['fah'], cur[0] + 1, sc(o['span']))
            if s == 9:
                fill.extend(self.split(self.gate_read))
                fill.append(self.nonce_get)
                fill.extend(self.split(self.attn_setup))
                fill.extend(self.split(self.gate_math))
                if g == 0:
                    fill.extend(self.split(self.v_const))
            if s == o['qw'] and g == 0:
                fill.insert(0, self.flag1)

        def reads(m, rd):
            s = 8 + m // PS
            if m % PS == 0 and m and rd == 0:
                enter(s)
            n, r = order[m]
            slot = region(s)
            wf.ensure(slot, slot + 28672)
            if r < 0:
                va, t = vQR, slot + QOFF + (n % 2) * 2048 + rd * 256
            else:
                va, t = vFR[r // 2], slot + (r % 2) * UPOFF + (n % 2) * 6144 + rd * 256
            e(f'ds_read_b64_tr_b16 {vr(FR + 4 * (m % NFR) + 2 * rd, 2)}, v{va} offset:{wf.off(t)}', f'f{m}')

        assert o['fah'] <= 3
        if g == 0:
            for i in range(o['qe'], 4):
                pin(o['q0'] + o['qsp'] * (i - o['qe']), lambda i=i: self.kv_store(i))
            assert o['q0'] + o['qsp'] * 3 < PS - LA
        sched(8 + o['fah'], 0, PS - LA, self.left if g else ())
        for m in range(LA):
            reads(m, 0)
            reads(m, 1)
        if o['prio']:
            pin(sc(50), lambda: e('s_setprio 3'))
        for m in range(M):
            cur[0] = m
            n, r = order[m]
            e.wait(lg=f'f{m}')
            for tg in range(2):
                acc = vr((QA if r < 0 else ACF + 8 * r) + 4 * tg, 4)
                e(f'v_mfma_f32_16x16x32_bf16 {acc}, {vr(FR + 4 * (m % NFR), 4)}, {vr(X + 8 * n + 4 * tg, 4)}, {acc if n else 0}')
                if m + LA < M:
                    reads(m + LA, tg)
            if m % PS == 0 and 2 * PS <= m:
                self.stamp(5 + m // PS, 1)
            if o['omf'] and m == sc(o['omf']):
                fill.extend(self.split(lambda: self.o_mark(X)))
            if m == sc(o['p1i']):
                fill.append(self.poll1_issue)
            if m == sc(o['p1c']):
                fill.append(self.poll1_check)
                for grp in self.attn_loads_early():
                    fill.append(grp)
                    fill.extend([lambda: None] * o['lsp'])
            if m == 5 * PS:
                assert not fill
                fill.extend(self.split(lambda: self.q_addrs(g)))
            if m == 7 * PS + 3:
                fill = self.split(self.q_pack) + fill
            for f in at.pop(m, []):
                f()
            for _ in range(o['fk'] if m < 7 * PS + 3 else o['gk']):
                if fill:
                    fill.pop(0)()
        assert not at
        for f in fill:
            f()
        e.wait(lg='all')
        e('s_barrier')
        self.stamp(5)
        for i in range(3):
            e(f'ds_read_b128 {vr(vQ[i], 4)}, v{vQ[i]}', f'q{i}')
        if NC == 3:
            self.gelu(2)
            self.h_store(2)

    def q_addrs(self, g):
        e = self.e
        for i in range(3):
            e(f's_add_u32 s{sT}, s{sTT}, {1 + i}')
            e(f's_and_b32 s{sT}, s{sT}, 3')
            e(f's_lshl_b32 s{sT}, s{sT}, 10')
            e(f's_add_u32 s{sT}, s{sT}, {L_QX + 4096 * g}')
            e(f'v_add_u32 v{vQ[i]}, s{sT}, v{vL16}')
        e(f's_lshl_b32 s{sT}, s{sW}, 10')
        e(f's_add_u32 s{sT}, s{sT}, {L_QX}')
        e(f'v_add_u32 v{vQ[0] + 1}, s{sT}, v{vL16}')

    def q_pack(self):
        e = self.e
        for r in range(8):
            e(f'v_mul_f32 v{QA + r}, {fbits(QSCALE)}, v{QA + r}')
        self.pack8(QA, vQ[3])
        e(f'ds_write_b128 v{vQ[0] + 1}, {vr(vQ[3], 4)}', 'qw')

    def o_mark(self, d=vH[0]):
        e = self.e
        for i in range(4):
            e(f'v_mov_b32 v{d + i}, -1')
        e(f'buffer_store_dwordx4 {vr(d, 4)}, v{vL16}, {srd(S_WS)}, s{sMO} offen sc1', 'hst')

    def gate_read(self):
        e = self.e
        e(f's_lshl_b32 s{sT}, s{sTT}, 8')
        e(f'v_and_b32 v{vCH}, 15, v0')
        e(f'v_lshl_add_u32 v{vCH}, v{vCH}, 2, s{sT}')
        e(f'v_add_u32 v{vCH}, {L_Z}, v{vCH}')
        e(f'ds_read2_b32 {vr(vCH, 2)}, v{vCH} offset0:0 offset1:16', 'zr')

    def gate_math(self):
        e = self.e
        e.wait(lg='zr')
        for i in range(2):
            e(f'v_mul_f32 v{vCH + i}, {fbits(LOG2E)}, v{vCH + i}')
        for i in range(2):
            e(f'v_exp_f32 v{vCH + i}, v{vCH + i}')
        for i in range(2):
            e(f'v_add_f32 v{vCH + i}, 1.0, v{vCH + i}')
        e(f'v_mov_b32 v{ACA + 24}, {fbits(GC0)}')
        e(f'v_mov_b32 v{ACA + 25}, v{ACA + 24}')
        for i in range(4):
            e(f'v_min_f32 v{ACA + 26 + i}, {fbits(2.0 ** 100)}, v{vCH + i // 2}')
        e(f'v_add_u32 v{vKA}, s{sKVB}, v{vL16}')
        e(f'v_add_u32 v{vKA + 1}, s{sKVB}, v{vVA}')

    def nonce_get(self):
        e = self.e
        e.wait(vm='non')
        ld = lambda: e(f'buffer_load_dwordx2 v[{vK[0]}:{vK[0] + 1}], off, {srd(S_DBG)}, 0 sc1')
        ck = lambda: e(f'v_cmp_eq_u32 vcc, 0, v{vK[0] + 1}')
        self.spin('non', ld, ck)
        e(f'v_readfirstlane_b32 s{sNON}, v{vK[0]}')
        e(f'v_readfirstlane_b32 s{sNON + 1}, v{vK[0] + 1}')

    def flag1(self):
        e = self.e
        lab = e.newlabel('f1')
        e(f's_cmp_lg_u32 s{sW}, 0')
        e(f's_cbranch_scc1 {lab}')
        snap = e.snapshot()
        e(f's_lshl_b32 s{sT + 7}, s{sJ}, 4')
        e(f's_add_u32 s{sT + 7}, s{sT + 7}, s{sTB}')
        e(f's_lshl_b32 s{sT + 7}, s{sT + 7}, {self.opt["fs"]}')
        e(f's_add_u32 s{sT + 7}, s{sT + 7}, {WS_F1}')
        self.flag_store(sT + 7, vK[0])
        e.paths = e.paths + snap
        e.label(lab)

    def attn_setup(self):
        e = self.e
        e(f'v_and_b32 v{vPA}, 4, v0')
        e(f'v_mul_u32_u24 v{vPA}, 3, v{vPA}')
        e(f'v_add_u32 v{vPA}, v{vPA}, v0')
        e(f'v_lshl_add_u32 v{vPA}, v{vPA}, {self.opt["fs"]}, s{sKV}')
        e(f'v_lshrrev_b32 v{vDD[0]}, 3, v0')
        e(f'v_lshrrev_b32 v{vP}, 2, v0')
        e(f'v_and_b32 v{vP}, 4, v{vP}')
        e(f'v_xor_b32 v{vP}, v{vP}, v0')
        e(f'v_and_b32 v{vP}, 7, v{vP}')
        e(f'v_lshlrev_b32 v{vP}, 4, v{vP}')
        e(f'v_lshl_add_u32 v{vDD[0]}, v{vDD[0]}, 10, v{vP}')
        e(f'v_add_u32 v{vDD[1]}, {8192 - 1024}, v{vDD[0]}')
        e(f'v_add_u32 v{vRW[0]}, s{sMD}, v{vL16}')
        e(f'v_lshl_add_u32 v{vRW[1]}, v0, 2, s{sMD}')

    def v_const(self):
        e = self.e
        e(f'v_and_b32 v{vV[0] + 1}, 27, v0')
        e(f'v_cmp_eq_u32 vcc, 16, v{vV[0] + 1}')
        e(f'v_mov_b32 v{vV[0] + 1}, 0x3f803f80')
        e(f'v_cndmask_b32 v{vV[0]}, 0, v{vV[0] + 1}, vcc')
        for i in range(1, 16):
            e(f'v_mov_b32 v{vV[0] + i}, v{vV[0]}')

    def poll1_issue(self):
        e = self.e
        e('s_mov_b64 exec, 0xff')
        e(f'buffer_load_dwordx2 v[{vP}:{vP + 1}], v{vPA}, {srd(S_WS)}, 0 offen sc1', 'p1')
        e('s_mov_b64 exec, -1')

    def poll1_check(self):
        e = self.e
        e.wait(vm='p1')
        e('s_mov_b64 exec, 0xff')
        e(f'v_cmp_ne_u64 vcc, s[{sNON}:{sNON + 1}], v[{vP}:{vP + 1}]')
        e('s_mov_b64 exec, -1')

    def attn_load_groups(self):
        e = self.e
        k0, v0 = self.kv_load(0)
        k1, v1 = self.kv_load(1)

        return [k0, lambda: (v0(), self.kv_adv()), k1, lambda: (v1(), self.kv_adv())]

    def attn_loads_early(self):
        e = self.e
        out = []
        for n, f in enumerate(self.attn_load_groups()):
            def g(f=f, n=n):
                lab = e.newlabel('al')
                e(f's_cbranch_vccnz {lab}')
                if n == 0:
                    skip = e.snapshot()
                    for p in skip:
                        p.g = 'pend'
                else:
                    skip = [p for p in e.paths if p.g == 'pend']
                    e.paths = [p for p in e.paths if p.g != 'pend']
                f()
                e.paths = e.paths + skip
                e.label(lab)
            out.append(g)
        return out

    def attn_loads_late(self):
        e = self.e
        e('s_cbranch_vccnz Llate')
        e.label('Llate_done')
        e.paths = [p for p in e.paths if p.g != 'pend']

        def blk():
            e.paths = [p for p in Emitter().paths]
            e.label('Llate')
            e('s_mov_b64 exec, 0xff')
            ld = lambda: e(f'buffer_load_dwordx2 v[{vP}:{vP + 1}], v{vPA}, {srd(S_WS)}, 0 offen sc1')
            ck = lambda: e(f'v_cmp_ne_u64 vcc, s[{sNON}:{sNON + 1}], v[{vP}:{vP + 1}]')
            ld()
            e('s_waitcnt vmcnt(0)')
            self.spin('p1', ld, ck, self.opt['sl1'])
            e('s_mov_b64 exec, -1')
            for f in self.attn_load_groups():
                f()
            e('s_waitcnt vmcnt(0)')
            e('s_branch Llate_done')
        self.tail_blocks.append(blk)

    def attention(self):
        e = self.e
        G0 = self.opt['g2start']
        NT = 64

        def qk(t):
            it, sl = divmod(t, 4)
            if sl == 0:
                e.wait(vm=f'k{it}')
            if it == 0:
                e.wait(lg=f'q{sl}')
            e(f'v_mfma_f32_32x32x16_bf16 {vr(vS[t % 2], 16)}, {vr(vK[it % 2], 4)}, {vr(vQ[sl], 4)}, 0')

        def pv(t, hi):
            it, sl = divmod(t, 4)
            if sl == 0 and not hi:
                e.wait(vm=f'v{it}')
            e(f'v_smfmac_f32_32x32x32_bf16 {vr(vO[sl], 16)}, {vr(vV[it % 2] + 4 * hi, 4)}, {vr(vS[t % 2] + 8 * hi, 8)}, v{vIDX}')

        def ex(t, a, b):
            for i in range(a, b):
                e(f'v_exp_f32 v{vS[t % 2] + i}, v{vS[t % 2] + i}')

        def stage_dma(rs, i, tag):
            return lambda: e(f'buffer_load_dwordx4 v{vDD[i]}, {srd(rs)}, s{sDO} offen' + (' offset:1024' if i else '') + ' lds', tag)

        def wo_first():
            e(f's_lshl_b32 s{sDO}, s{sW}, 16')
            e(f's_lshl_b32 s{sT}, s{sCB}, 7')
            e(f's_add_u32 s{sDO}, s{sDO}, s{sT}')
            e(f's_lshl_b32 s{sMD}, s{sW}, 13')

        def h_load(step, i):
            return lambda: e(f'buffer_load_dwordx4 {vr(vH[step % 2] + 4 * i, 4)}, v{vHA[i]}, {srd(S_H)}, s{sHO} offen sc1', f'h{step}')

        def wd_read(step, jj):
            def f():
                e.wait(vm=f'd{step}')
                for rd in range(2):
                    e(f'ds_read_b64_tr_b16 {vr(vD + 4 * jj + 2 * rd, 2)}, v{vDR[jj]} offset:{L_RING + 2048 * (step % 3) + 512 * rd}', f'dr{step}_{jj}')
            return f

        def g2(step, sl):
            jj, i = divmod(sl, 2)
            e.wait(vm=f'h{step}', lg=f'dr{step}_{jj}')
            acc = vr(vG[i * 2 + jj], 16)
            e(f'v_mfma_f32_32x32x16_bf16 {acc}, {vr(vD + 4 * jj, 4)}, {vr(vH[step % 2] + 4 * i, 4)}, {acc if step else 0}')

        def sig2_a():
            e.wait(vm='hst')
            e(f'v_mov_b32 v{vP}, {L_CNT}')
            e(f'v_mov_b32 v{vP + 1}, 1')
            e('s_mov_b64 exec, 1')
            e(f'ds_add_rtn_u32 v{vP}, v{vP}, v{vP + 1}', 'cnt2')
            e('s_mov_b64 exec, -1')

        def sig2_b():
            e.wait(lg='cnt2')
            e(f'v_readfirstlane_b32 s{sT}, v{vP}')
            lab = e.newlabel('f2')
            e(f's_cmp_lg_u32 s{sT}, 7')
            e(f's_cbranch_scc1 {lab}')
            snap = e.snapshot()
            e(f's_lshl_b32 s{sT}, s{sTB}, 4')
            e(f's_add_u32 s{sT}, s{sT}, s{sJ}')
            e(f's_lshl_b32 s{sT}, s{sT}, {self.opt["fs"]}')
            e(f's_add_u32 s{sT}, s{sT}, {WS_F2}')
            self.flag_store(sT, vP)
            e.paths = e.paths + snap
            e.label(lab)
            e(f's_and_b32 s{sT}, s{sW}, 1')
            e(f's_lshl_b32 s{sT}, s{sT}, 10')
            e(f'v_add_u32 v{vHA[0]}, s{sT}, v{vL16}')
            e(f'v_xor_b32 v{vHA[1]}, 1024, v{vHA[0]}')
            e(f's_mul_i32 s{sHO}, s{sW}, {11 * 65536}')
            e(f's_lshl_b32 s{sT}, s{sRB}, 11')
            e(f's_add_u32 s{sHO}, s{sHO}, s{sT}')

        def poll2_issue():
            e(f's_lshr_b32 s{sT + 1}, s{sRB}, 1')
            e(f's_lshl_b32 s{sT + 1}, s{sT + 1}, {4 + self.opt["fs"]}')
            e(f's_add_u32 s{sT + 1}, s{sT + 1}, {WS_F2}')
            e(f'v_lshl_add_u32 v{vPA}, v0, {self.opt["fs"]}, s{sT + 1}')
            e('s_mov_b64 exec, 0xffff')
            e(f'buffer_load_dwordx2 v[{vP}:{vP + 1}], v{vPA}, {srd(S_WS)}, 0 offen sc1', 'p2')
            e('s_mov_b64 exec, -1')

        def poll2_check():
            e.wait(vm='p2')
            e('s_mov_b64 exec, 0xffff')
            ld = lambda: e(f'buffer_load_dwordx2 v[{vP}:{vP + 1}], v{vPA}, {srd(S_WS)}, 0 offen sc1')
            ck = lambda: e(f'v_cmp_ne_u64 vcc, s[{sNON}:{sNON + 1}], v[{vP}:{vP + 1}]')
            self.spin('p2', ld, ck, self.opt['sl2'])
            e('s_mov_b64 exec, -1')

        def co_read():
            e(f's_lshl_b32 s{sT}, s{sTT}, 8')
            e(f'v_lshl_add_u32 v{vCO}, v0, 2, s{sT}')
            e(f'ds_read_b32 v{vCO}, v{vCO} offset:{L_Z}', 'zr2')

        def co_math():
            e.wait(lg='zr2')
            e(f'v_mul_f32 v{vCO}, {fbits(-LOG2E)}, v{vCO}')
            e(f'v_exp_f32 v{vCO}, v{vCO}')

        def ored_addr(i):
            def f():
                e(f's_sub_u32 s{sT}, s{sTT}, {1 + i}')
                e(f's_and_b32 s{sT}, s{sT}, 3')
                e(f's_lshl_b32 s{sT + 1}, s{sG}, 2')
                e(f's_add_u32 s{sT}, s{sT}, s{sT + 1}')
                e(f's_mul_i32 s{sT}, s{sT}, {RINGW}')
                e(f'v_add_u32 v{vRR + i}, s{sT}, v{vL16}')
                e(f'v_lshl_add_u32 v{vRR + 3 + i}, v0, 2, s{sT}')
            return f

        def o_addr():
            e(f's_lshr_b32 s{sO[0]}, s{sW}, 1')
            e(f's_lshl_b32 s{sO[0]}, s{sO[0]}, 19')
            e(f's_lshl_b32 s{sT}, s{sRB}, 11')
            e(f's_add_u32 s{sO[0]}, s{sO[0]}, s{sT}')
            e(f's_add_u32 s{sO[0]}, s{sO[0]}, {WS_O}')

        def o_addr2():
            for k in range(1, 8):
                e(f's_add_u32 s{sO[k]}, s{sO[0]}, {65536 * k}')

        def o_addr3():
            e(f'v_and_b32 v{vPA}, 1024, v{vHA[0]}')
            e(f'v_lshl_add_u32 v{vPA}, v0, 16, v{vPA}')

        def ored_write(sl):
            def f():
                o = L_RING + 2304 * sl
                e(f'ds_write_b128 v{vRW[0]}, {vr(vO[sl], 4)} offset:{o}', 'orw')
                e(f'ds_write_b128 v{vRW[0]}, {vr(vO[sl] + 4, 4)} offset:{o + 1024}', 'orw')
                e(f'ds_write_b32 v{vRW[1]}, v{vO[sl] + 8} offset:{o + 2048}', 'orw')
            return f

        side = {}
        add = lambda t, p, f: side.setdefault((t, p), []).append(f)
        I = lambda text: (lambda: e(text))
        for it in range(16):
            t = 4 * it
            st = it - G0
            add(t, 1, lambda it=it, st=st: e.wait(vm=[f'v{it}', f'h{st}'], lg=f'dr{st}_0'))
            add(t + 2, 2, lambda it=it, st=st: e.wait(vm=[f'k{it + 1}', f'd{st + 1}'], lg=f'dr{st}_1'))
            if 1 <= it < 15:
                add(t, 0, self.kv_load(it + 1)[1])
                add(t, 2, self.kv_adv)
            if it < 14:
                add(t + 2, 1, self.kv_load(it + 2)[0])
        for step in range(11):
            t = 4 * (G0 + step)
            add(t - 7, 2, I(f's_add_u32 m0, s{sMD}, {L_RING + 2048 * (step % 3)}'))
            add(t - 7, 4, stage_dma(S_WD, 0, f'd{step}'))
            add(t - 6, 0, stage_dma(S_WD, 1, f'd{step}'))
            add(t - 6, 0, I(f's_addk_i32 s{sDO}, 16384'))
            add(t - 4, 4, h_load(step, 0))
            add(t - 3, 1, h_load(step, 1))
            add(t - 3, 2, I(f's_add_u32 s{sHO}, s{sHO}, 65536'))
            add(t - 1, 0, wd_read(step, 0))
            add(t + 1, 0, wd_read(step, 1))
        t = 4 * (G0 + 8) + 2
        add(t, 4, wo_first)
        for k in range(4):
            add(t + 1 + k, 1, I(f's_add_u32 m0, s{sMD}, {L_WO + 2048 * k}'))
            add(t + 1 + k, 2, stage_dma(S_WO, 0, 'wo'))
            add(t + 1 + k, 2, stage_dma(S_WO, 1, 'wo'))
            add(t + 1 + k, 4, I(f's_addk_i32 s{sDO}, 16384'))
        if not self.opt['omf']:
            add(self.opt['om'], 2, self.o_mark)
        for c in range(self.opt['hl']):
            add(c * self.opt['hsp'], 2, lambda c=c: self.h_store(c))
        for i in range(3):
            add(22 + 4 * i, 2, ored_addr(i))
        add(34, 2, o_addr)
        add(38, 2, o_addr2)
        add(58, 2, o_addr3)
        add(2, 2, co_read)
        add(3, 2, co_math)
        add(self.opt['s2t'], 2, sig2_a)
        add(self.opt['s2t'] + 1, 2, sig2_b)
        add(4 * (G0 - 2) + 2, 2, poll2_issue)
        add(4 * (G0 - 1), 2, poll2_check)
        for sl in range(3):
            add(61 + sl, 3, ored_write(sl))
        if self.opt['prio']:
            add(self.opt['pa'], 2, lambda: e('s_setprio 2'))
            add(self.opt['pb'], 2, lambda: e('s_setprio 1'))
            add(self.opt['pc'], 2, lambda: e('s_setprio 0'))

        def run(t, p):
            for f in side.get((t, p), []):
                f()

        def zero(sl):
            e(f'v_mfma_f32_32x32x16_bf16 {vr(vO[sl], 16)}, {vr(vD, 4)}, {vr(vD, 4)}, 0')

        e(f'v_mov_b32 v{vIDX}, 0xdddddddd')
        for i in range(4):
            e(f'v_mov_b32 v{vD + i}, 0')
        qk(0)
        self.stamp(9, 3)
        if self.opt['zm']:
            zero(0)
        for t in range(NT):
            it, sl = divmod(t, 4)
            ex(t, 0, 2)
            if t > 0:
                pv(t - 1, 1)
            run(t, 0)
            ex(t, 2, 5)
            if t + 1 < NT:
                qk(t + 1)
            run(t, 1)
            ex(t, 5, 10)
            pv(t, 0)
            run(t, 2)
            ex(t, 10, 13)
            if G0 <= it < G0 + 11:
                g2(it - G0, sl)
            if t < 3 and self.opt['zm']:
                zero(t + 1)
            run(t, 4)
            ex(t, 13, 16)
            run(t, 3)
            if t in (7, 31):
                self.stamp(7 if t == 7 else 8)
            if t in (3, 5, 7):
                self.stamp(10 + (t - 3) // 2, 3)
        pv(NT - 1, 1)

    def tail(self):
        e = self.e
        own = vO[3]
        R = vO[0]
        P2 = lambda b, i: vr(b + 2 * i, 2)
        self.stamp(9)
        ld = lambda tag=None: e(f'buffer_load_dword v{vP}, v{vPA}, {srd(S_WS)}, s{sO[0]} offen offset:1020 sc1', tag)
        OF = ACA

        def old(kk, tag=None):
            for k in (2 * kk, 2 * kk + 1):
                e(f'buffer_load_dwordx4 {vr(OF + 4 * k, 4)}, v{vHA[0]}, {srd(S_WS)}, s{sO[k]} offen sc1', tag)

        e.wait(vm='wo', lg='all')
        e('s_barrier')
        e('s_mov_b64 exec, 0xff')
        ld('p3')
        e('s_mov_b64 exec, -1')
        for i in range(3):
            e(f'ds_read_b32 v{R + 24 + i}, v{vRR + 3 + i} offset:{L_RING + 2304 * i + 2048}', f'or{i}')
        for i in range(3):
            o = L_RING + 2304 * i
            e(f'ds_read_b128 {vr(R + 8 * i, 4)}, v{vRR + i} offset:{o}', f'oa{i}')
            e(f'ds_read_b128 {vr(R + 8 * i + 4, 4)}, v{vRR + i} offset:{o + 1024}', f'oa{i}')
        e.wait(lg='or2')
        e(f'v_add_f32 v{R + 24}, v{R + 24}, v{R + 25}')
        e(f'v_add_f32 v{own + 8}, v{own + 8}, v{R + 26}')
        e(f'v_add_f32 v{own + 8}, v{own + 8}, v{R + 24}')
        e(f'v_subrev_u32 v{R + 24}, {(127 - 60) << 23}, v{own + 8}')
        e(f'v_cmp_lt_u32 vcc, {120 << 23}, v{R + 24}')
        e(f'v_fma_f32 v{R + 28}, v{own + 8}, v{vCO}, v{own + 8}')
        e(f'v_rcp_f32 v{R + 28}, v{R + 28}')
        for i in range(3):
            e.wait(lg=f'oa{i}')
            for r in range(4):
                e(f'v_pk_add_f32 {P2(own, r)}, {P2(own, r)}, {P2(R + 8 * i, r)}')
        e('s_cbranch_vccnz Lsafe')
        e.label('Lsafe_done')
        self.tail_blocks.append(self.safe_softmax)
        e(f'v_mov_b32 v{R + 29}, v{R + 28}')
        for r in range(4):
            e(f'v_pk_mul_f32 {P2(own, r)}, {P2(own, r)}, {vr(R + 28, 2)}')
        for r in range(4):
            e(f'v_cvt_pk_bf16_f32 v{vK[0] + r}, v{own + 2 * r}, v{own + 2 * r + 1}')
        for r in range(4):
            e(f'v_min_u32 v{vK[0] + r}, -2, v{vK[0] + r}')
        e(f'buffer_store_dwordx4 {vr(vK[0], 4)}, v{vL16}, {srd(S_WS)}, s{sMO} offen sc1', 'ost')
        self.stamp(10)
        vFW, vFRd, vOA = FR, FR + 4, FR + 6
        WO = vO[0]
        PRE = X + 64
        e(f's_lshr_b32 s{sT + 1}, s{sW}, 1')
        e(f's_lshl_b32 s{sT + 2}, s{sT + 1}, 14')
        e(f's_mul_i32 s{sT + 3}, s{sW}, {RINGW}')
        e(f's_sub_u32 s{sT + 2}, s{sT + 2}, s{sT + 3}')
        e(f's_add_u32 s{sT + 2}, s{sT + 2}, {L_WO}')
        e(f'v_and_b32 v{vP + 1}, 32, v0')
        e(f'v_lshlrev_b32 v{vP + 1}, 4, v{vP + 1}')
        e(f'v_sub_u32 v{vP + 1}, s{sT + 2}, v{vP + 1}')
        for jj in range(2):
            e(f'v_add_u32 v{vDR[jj]}, v{vP + 1}, v{vDR[jj]}')

        def wo_reads(k):
            for jj in range(2):
                for rd in range(2):
                    e(f'ds_read_b64_tr_b16 {vr(WO + 8 * k + 4 * jj + 2 * rd, 2)}, v{vDR[jj]} offset:{2048 * k + 1024 * rd}', 'wor')

        def addrs():
            t0, t1 = vK[1], vK[1] + 1
            e(f'v_and_b32 v{vFW}, 31, v0')
            e(f'v_lshrrev_b32 v{t0}, 5, v0')
            e(f'v_and_b32 v{t1}, 7, v0')
            e(f'v_xor_b32 v{t0}, v{t0}, v{t1}')
            e(f'v_lshlrev_b32 v{t0}, 4, v{t0}')
            e(f'v_lshl_add_u32 v{vFW}, v{vFW}, 8, v{t0}')
            e(f's_lshl_b32 s{sT}, s{sW}, 14')
            e(f'v_add_u32 v{vFW}, s{sT}, v{vFW}')
            for q in range(1, 4):
                e(f'v_xor_b32 v{vFW + q}, {32 * q}, v{vFW}')
            e(f'v_lshrrev_b32 v{t0}, 3, v0')
            e(f'v_lshlrev_b32 v{vOA}, 4, v{t1}')
            e(f'v_lshl_add_u32 v{vOA}, v{t0}, 10, v{vOA}')
            e(f'v_lshlrev_b32 v{t1}, 1, v{t1}')
            e(f'v_xor_b32 v{t1}, v{t1}, v{t0}')
            e(f'v_lshlrev_b32 v{t1}, 4, v{t1}')
            e(f'v_lshl_add_u32 v{vFRd}, v{t0}, 8, v{t1}')
            e(f's_and_b32 s{sT + 2}, s{sW}, 1')
            e(f's_lshl_b32 s{sT + 3}, s{sT + 2}, 3')
            e(f's_add_u32 s{sT + 3}, s{sT + 3}, s{sT + 1}')
            e(f's_lshl_b32 s{sT + 3}, s{sT + 3}, 11')
            e(f'v_add_u32 v{vFRd}, s{sT + 3}, v{vFRd}')
            e(f'v_xor_b32 v{vFRd + 1}, 16, v{vFRd}')
            for h in range(2):
                e(f'v_add_u32 v{vRR + h}, 65536, v{vFRd + h}')
                e(f'v_xor_b32 v{vRR + 2 + h}, {16384 + 8192}, v{vFRd + h}')
                e(f'v_xor_b32 v{vRR + 4 + h}, {16384 + 8192}, v{vRR + h}')
            e(f's_lshl_b32 s{sT + 2}, s{sT + 2}, 2')
            e(f's_add_u32 s{sT + 2}, s{sT + 2}, s{sT + 1}')
            e(f's_lshl_b32 s{sT}, s{sRB}, 3')
            e(f's_add_u32 s{sT}, s{sT}, s{sT + 2}')
            e(f's_lshl_b32 s{sT}, s{sT}, 13')
            e(f's_lshl_b32 s{sT + 1}, s{sCB}, 7')
            e(f's_add_u32 s{sT}, s{sT}, s{sT + 1}')

        def slab_write(i, n):
            jj, q = divmod(n, 4)
            e(f'ds_write_b128 v{vFW + q}, {vr(vG[2 * i + jj] + 4 * q, 4)} offset:{8192 * i + 128 * jj}', f'sw{i}')

        def slab_reads(dst, lo, hi, tag):
            for p in range(4):
                for h in range(2):
                    e(f'ds_read_b128 {vr(dst + 8 * p + 4 * h, 4)}, v{(hi if p >> 1 else lo) + h} offset:{32768 * (p & 1)}', f'{tag}{p}')

        def pre_adds():
            for p in range(1, 4):
                e.wait(lg=f'pr{p}')
                for r in range(8):
                    e(f'v_add_f32 v{PRE + r}, v{PRE + r}, v{PRE + 8 * p + r}')

        def mm(kk, between=None):
            e.wait(vm=f'o{kk}')

            def ck():
                b = OF + 8 * kk
                e(f'v_max3_u32 v{vP}, v{b}, v{b + 1}, v{b + 2}')
                e(f'v_max3_u32 v{vP + 1}, v{b + 3}, v{b + 4}, v{b + 5}')
                e(f'v_max3_u32 v{vP}, v{vP}, v{b + 6}, v{b + 7}')
                e(f'v_max_u32 v{vP}, v{vP}, v{vP + 1}')
                e(f'v_cmp_eq_u32 vcc, -1, v{vP}')
            self.spin(f'o{kk}', lambda: [old(q) for q in range(kk, 4)], ck, self.opt['sl3'])
            for n, (jj, k) in enumerate(((0, 2 * kk), (0, 2 * kk + 1), (1, 2 * kk), (1, 2 * kk + 1))):
                acc = vr(vG[jj], 16)
                e(f'v_mfma_f32_32x32x16_bf16 {acc}, {vr(WO + 8 * k + 4 * jj, 4)}, {vr(OF + 4 * k, 4)}, {acc}')
                if between:
                    between(n)

        for k in range(2):
            wo_reads(k)
        e.wait(vm='p3')
        e('s_mov_b64 exec, 0xff')
        e(f'v_cmp_eq_u32 vcc, -1, v{vP}')
        e('s_mov_b64 exec, -1')
        e('s_cbranch_vccnz Lo_late')
        snap = e.snapshot()
        for kk in range(4):
            old(kk, f'o{kk}')
            for k in range(2 + 2 * kk, min(8, 4 + 2 * kk)):
                wo_reads(k)
        self.stamp(7, 4)
        addrs()
        e.wait(lg='all')
        e('s_barrier')
        self.stamp(11)
        for kk in range(2):
            mm(kk, lambda n, kk=kk: slab_write(1, 4 * kk + n))
        if self.opt['eb']:
            mm(2)
        e.wait(lg='all')
        e('s_barrier')
        self.stamp(8, 4)
        slab_reads(PRE, vRR + 2, vRR + 4, 'pr')
        if not self.opt['eb']:
            mm(2)
        mm(3)
        pre_adds()
        ready = e.snapshot()

        def late():
            e.restore(snap)
            e.label('Lo_late')
            for k in range(2, 8):
                wo_reads(k)
            self.stamp(7, 4)
            addrs()
            e.wait(lg='all')
            e('s_barrier')
            self.stamp(11)
            LP = self.opt['lp']
            for n in range(8):
                if LP == 0 and n % 2 == 0:
                    old(n // 2, f'o{n // 2}')
                slab_write(1, n)
            if LP == 1:
                for kk in range(4):
                    old(kk, f'o{kk}')
            e.wait(lg='all')
            e('s_barrier')
            slab_reads(PRE, vRR + 2, vRR + 4, 'pr')
            if LP == 2:
                for kk in range(4):
                    old(kk, f'o{kk}')
            self.stamp(8, 4)
            pre_adds()
            for kk in range(4):
                mm(kk)
            e('s_nop 8')
            e('s_branch Lo_done')
        self.tail_blocks.append(late)
        e.label('Lo_done')
        self.stamp(12)
        for n in range(8):
            if n == 4:
                e('s_nop 1')
            slab_write(0, n)
        e.wait(lg='all')
        e('s_barrier')
        B = X
        slab_reads(B, vFRd, vRR, 'fr')
        for p in range(4):
            e.wait(lg=f'fr{p}')
            for r in range(4):
                e(f'v_pk_add_f32 {P2(PRE, r)}, {P2(PRE, r)}, {P2(B + 8 * p, r)}')
        for r in range(4):
            e(f'v_cvt_pk_bf16_f32 v{B + r}, v{PRE + 2 * r}, v{PRE + 2 * r + 1}')
        e(f'buffer_store_dwordx4 {vr(B, 4)}, v{vOA}, {srd(S_OUT)}, s{sT} offen sc1')
        if 'probe' in self.opt:
            e.wait(vm='all')
            self.stamp(13)
            e.label('Lprobe')
            e('s_sleep 1')
            e(f's_memrealtime s[{sSTMP}:{sSTMP + 1}]')
            e('s_waitcnt lgkmcnt(0)')
            e(f's_sub_u32 s{sSTMP}, s{sSTMP}, s{sNON if self.opt["probe"] == 99 else sSTAMP}')
            e(f's_cmp_lt_u32 s{sSTMP}, 6000')
            e('s_cbranch_scc1 Lprobe')
        if self.stamps:
            e.wait(vm='all')
            self.stamp(13)
            e(f's_lshl_b32 s{sT}, s2, 3')
            e(f's_add_u32 s{sT}, s{sT}, s{sW}')
            e(f's_lshl_b32 s{sT}, s{sT}, 6')
            e(f's_add_u32 s{sT}, s{sT}, {WS_ST}')
            e('s_waitcnt lgkmcnt(0)')
            en = [i for i in range(14) if (self.opt.get('smask', 0x2001) | 0x2001) >> i & 1]
            for k, i in enumerate(en):
                e(f'v_mov_b32 v{B + 8 + i}, s{sSTAMP + 2 * k}')
            e('s_mov_b64 exec, 1')
            for i in range(4):
                e(f'buffer_store_dwordx4 {vr(B + 8 + 4 * i, 4)}, off, {srd(S_WS)}, s{sT} offset:{16 * i}')
        e.label('Lexit')
        e('s_endpgm')

    def safe_softmax(self):
        e = self.e
        e.paths = [p for p in Emitter().paths]
        own = vO[3]
        M = vO[0]
        S = vS[0]
        e.label('Lsafe')
        e(f's_and_b32 s{sT + 2}, s{sKVB}, {0xffffffff ^ (3 << 15)}')
        e(f's_mov_b32 s{sT + 3}, s{sT + 2}')
        e(f's_mov_b32 s{sT + 4}, 64')
        e(f'v_mov_b32 v{M}, 0xff800000')
        e.label('Lsafe1')
        e(f'buffer_load_dwordx4 {vr(vK[0], 4)}, v{vL16}, {srd(S_WS)}, s{sT + 3} offen sc1')
        e(f's_add_u32 s{sT + 3}, s{sT + 3}, 2048')
        e('s_waitcnt vmcnt(0)')
        e(f'v_mfma_f32_32x32x16_bf16 {vr(S, 16)}, {vr(vK[0], 4)}, {vr(vQ[3], 4)}, 0')
        for i in range(0, 16, 2):
            e(f'v_max3_f32 v{M}, v{M}, v{S + i}, v{S + i + 1}')
        e(f's_sub_u32 s{sT + 4}, s{sT + 4}, 1')
        e(f's_cmp_lg_u32 s{sT + 4}, 0')
        e('s_cbranch_scc1 Lsafe1')
        e(f'v_mov_b32 v{M + 1}, v{M}')
        e(f'v_permlane32_swap_b32 v{M}, v{M + 1}')
        e(f'v_max_f32 v{M}, v{M}, v{M + 1}')
        e(f'v_sub_f32 v{M}, 0, v{M}')
        for i in range(1, 16):
            e(f'v_mov_b32 v{M + i}, v{M}')
        for i in range(16):
            e(f'v_mov_b32 v{own + i}, 0')
        e(f's_mov_b32 s{sT + 3}, s{sT + 2}')
        e(f's_mov_b32 s{sT + 4}, 64')
        e.label('Lsafe2')
        e(f'buffer_load_dwordx4 {vr(vK[0], 4)}, v{vL16}, {srd(S_WS)}, s{sT + 3} offen sc1')
        e(f's_mov_b64 exec, s[{sVM}:{sVM + 1}]')
        e(f'buffer_load_dwordx4 {vr(vV[0], 4)}, v{vVA}, {srd(S_WS)}, s{sT + 3} offen offset:1024 sc1')
        e(f'buffer_load_dwordx4 {vr(vV[0] + 4, 4)}, v{vVA}, {srd(S_WS)}, s{sT + 3} offen offset:1536 sc1')
        e('s_mov_b64 exec, -1')
        e(f's_add_u32 s{sT + 3}, s{sT + 3}, 2048')
        e('s_waitcnt vmcnt(0)')
        e(f'v_mfma_f32_32x32x16_bf16 {vr(S, 16)}, {vr(vK[0], 4)}, {vr(vQ[3], 4)}, {vr(M, 16)}')
        for i in range(16):
            e(f'v_exp_f32 v{S + i}, v{S + i}')
        for hi in range(2):
            e(f'v_smfmac_f32_32x32x32_bf16 {vr(own, 16)}, {vr(vV[0] + 4 * hi, 4)}, {vr(S + 8 * hi, 8)}, v{vIDX}')
        e(f's_sub_u32 s{sT + 4}, s{sT + 4}, 1')
        e(f's_cmp_lg_u32 s{sT + 4}, 0')
        e('s_cbranch_scc1 Lsafe2')
        e('s_nop 15')
        e(f'v_fma_f32 v{vO[0] + 28}, v{own + 8}, v{vCO}, v{own + 8}')
        e(f'v_rcp_f32 v{vO[0] + 28}, v{vO[0] + 28}')
        e('s_branch Lsafe_done')

    def build(self):
        e = self.e
        self.prologue()
        e.drop = (None, ('v_mfma',), ('v_mfma', 'ds_read_b64_tr'), ('ds_read_b64_tr',))[self.opt.get('x_drop', 0)]
        snap = e.snapshot()
        e.label('Lload')
        self.phase_a_loader()
        self.phase_f(1, 3)
        e('s_branch Lffn')
        ends = e.snapshot()
        cends = []
        for ty in (0, 1):
            e.restore(snap)
            e.label(f'Lcomp{ty}')
            self.phase_a_compute(ty)
            if ty == 0:
                e('s_branch Lpack')
            cends += e.snapshot()
        e.paths = cends
        e.label('Lpack')
        e(f's_mul_i32 s{sT}, s{sJ}, 43691')
        e(f's_lshr_b32 s{sT}, s{sT}, 17')
        e(f's_mul_i32 s{sT}, s{sT}, 3')
        for i in range(4):
            self.pack8(ACA + 8 * i, ACA + 4 * i)
            if i < self.opt['qe']:
                self.kv_store(i)
        e(f's_cmp_eq_u32 s{sT}, s{sJ}')
        e('s_cbranch_scc1 Lsix')
        snap = e.snapshot()
        for NC in (2, 3):
            e.restore(snap)
            if NC == 3:
                e.label('Lsix')
            e('s_barrier')
            self.stamp(4)
            self.phase_f(0, NC)
            if NC == 2:
                e('s_branch Lffn')
            ends += e.snapshot()
        e.paths = ends
        e.label('Lffn')
        e.drop = None
        for c in (1, 0):
            self.gelu(c)
            if c >= self.opt['hl']:
                self.h_store(c)
        self.attn_loads_late()
        self.stamp(6)
        self.attention()
        self.tail()
        i = 0
        while i < len(self.tail_blocks):
            self.tail_blocks[i]()
            i += 1
        e.label('Lcode_end')
        return self.wrap()

    def wrap(self):
        head = open('gated_mix__softmax_full_mha__glu_gated_geglu__prompt.s.ref').read().split('; Override')[0]
        return head + f"""; @launch grid=(256,1,1) block=(512,1,1) lds={LDS_BYTES}
.amdgcn_target "amdgcn-amd-amdhsa--gfx950"
.text
.globl {KNAME}
.p2align 8
.type {KNAME},@function
{KNAME}:
{self.e.text()}
.section .rodata,"a"
.p2align 6
.amdhsa_kernel {KNAME}
  .amdhsa_next_free_vgpr 256
  .amdhsa_next_free_sgpr 102
  .amdhsa_accum_offset 256
  .amdhsa_group_segment_fixed_size 0
  .amdhsa_kernarg_size 88
  .amdhsa_user_sgpr_count 2
  .amdhsa_user_sgpr_kernarg_segment_ptr 1
  .amdhsa_system_sgpr_workgroup_id_x 1
.end_amdhsa_kernel
"""


if __name__ == '__main__':
    out = sys.argv[1]
    stamps = sys.argv[2] if len(sys.argv) > 2 and sys.argv[2] in ('rt', 'cy') else False
    opt = {}
    for a in sys.argv[2:]:
        if '=' in a:
            k, v = a.split('=')
            opt[k] = int(v, 0)
    g = Gen(stamps=stamps, opt=opt)
    open(out, 'w').write(g.build())
    print('nops inserted:', g.e.nops, 'lines:', len(g.e.lines))
```

```python
import sys, math, struct
from asmlib import Emitter, Win

KNAME = 'gated_mix__softmax_full_mha__glu_gated_geglu__prompt_kernel'

WS_Q = 0
WS_KV = 2 << 20
WS_O = 6 << 20
WS_F1 = 8 << 20
WS_F2 = WS_F1 + 32768
WS_ST = WS_F1 + 65536
WS_H = 9 << 20
WS_END = 15 << 20

L_GW = 0
L_Z = 1024
SLOT0 = 4096
UPOFF = 12288
QOFF = 24576
L_QX = 147456
L_RING = 4096
RINGW = 7168
L_WO = 65536
L_PRE1 = 131072
L_CNT = 2048
LDS_BYTES = 163840

S_X, S_WQ, S_WF, S_WS, S_H, S_WD, S_WO, S_OUT, S_DBG, S_GW = [4 * i + 4 for i in range(10)]
S_WG = 80
sW, sTT, sG, sJ, sTB, sRB, sCB, sUS = range(44, 52)
sXO, sWO, sFO, sMX, sMW, sMF = range(52, 58)
sNON = 58
sKV, sKVB, sKVI, sHO, sDO, sMD = range(60, 66)
sVM = 66
sT = 68
sGC = 76
sQX = [40, 41, 42, 43]
sQW = 78
sXO2 = 79
sSPIN = 84
sMO = 85
sMG = 3
sO = [4, 5, 6, 7, 8, 9, 10, 11]
sR = 73
sE = [4, 5, 6, 7]
sSTMP = 86
sSTAMP = 88


def region(s):
    return SLOT0 + 28672 * (s % 5)


def srd(b):
    return f's[{b}:{b + 3}]'


def vr(b, n):
    return f'v[{b}:{b + n - 1}]' if n > 1 else f'v{b}'


def fbits(x):
    return '0x%08x' % struct.unpack('<I', struct.pack('<f', x))[0]


vL16 = 1
vXD = [2, 3]
vWD = 4
vFD = 5
vXR = [6, 7]
vWR = [8, 2]
vFR = [9, 10, 11]
FR = 16
NFR = 5
ACA = 36
ACF = 68
vK = [116, 120]
vCH, vIDX, vVA = 124, 126, 127
vQR = 126
QA = ACA + 16
X = 128
vO = [X + 16 * i for i in range(4)]
vQ = [X + 64 + 4 * i for i in range(4)]
vV = [ACA, ACA + 8]
vS = [ACA + 16, X + 80]
vG = [ACF, ACF + 16, ACF + 32, X + 96]
vH = [X + 112, X + 120]
vD = FR
vCO = FR + 8
vDD = [2, 3]
vDR = [12, 13]
vP = 14
vPA = 6
vRW = [7, 8]
vHA = [9, 10]
vKA = 124
vRR = FR + 10

LOG2E = 1.4426950408889634
QSCALE = 0.25 * LOG2E
GC0 = -2.0 * LOG2E * math.sqrt(2.0 / math.pi)
GC1 = GC0 * 0.044715
SPIN = 400000


class Gen:
    def __init__(self, stamps=False, opt=None):
        self.e = Emitter()
        self.stamps = stamps
        self.nst = 0
        self.opt = dict(g2start=5, prio=True, ahead=12, span=12, fah=2, omf=0, lfirst=3, p1i=70, p1c=80, gsp=10, g0=0, fk=2, gk=3, lpre=60, cpre=200,
                        pa=7, pb=54, pc=200, ol=3, yl=3, woi=8, qw=12, vs=11, qe=2, q0=12, qsp=2, om=2, s2t=5, rot=4, rj=0, zm=1, hl=0, hsp=1,
                        fs=7, lp=1, eb=1, sl1=4, sl2=8, sl3=2, lsp=4)
        if opt:
            self.opt.update(opt)
        self.tail_blocks = []

    def stamp(self, idx, sset=0):
        e = self.e
        if self.opt.get('sset') == 4:
            if 7 <= idx <= 9 and sset != 4:
                return
        elif 7 <= idx <= 12 and sset != self.opt.get('sset', 0):
            return
        if self.opt.get('probe') == idx:
            e(f's_memrealtime s[{sSTAMP}:{sSTAMP + 1}]')
            e('s_waitcnt lgkmcnt(0)')
            for p in e.paths:
                p.lg = []
        if not self.stamps or not (self.opt.get('smask', 0x2001) | 0x2001) >> idx & 1:
            return
        en = [i for i in range(14) if (self.opt.get('smask', 0x2001) | 0x2001) >> i & 1]
        assert len(en) <= 7
        r = sSTAMP + 2 * en.index(idx)
        e(f"{'s_memtime' if self.stamps == 'cy' else 's_memrealtime'} s[{r}:{r + 1}]")

    def dma_list(self, s):
        e = self.e
        slot = region(s)
        out = []
        tag = f'st{s}'

        def mk(m0s, m0c, va, rs, so, imm=0, pre=()):
            def f():
                e(f's_add_u32 m0, s{m0s}, {m0c - imm}')
                for p in pre:
                    e(p)
                e(f'buffer_load_dwordx4 v{va}, {srd(rs)}, s{so} offen' + (f' offset:{imm}' if imm else '') + ' lds', tag)
            out.append(f)
        t = sT + 6

        def step(so, n):
            if s % 8 == 0:
                return ()
            return [f's_cmp_eq_u32 s{sR}, {-s % 8}', f's_cselect_b32 s{t}, -7, 1', f's_mul_i32 s{t}, s{t}, {n}', f's_add_u32 s{so}, s{so}, s{t}']
        if s < 8:
            for i in range(4):
                mk(sMX, slot + i * 1024, vXD[i % 2], S_X, sXO if i < 2 else sXO2,
                   pre=step(sXO, 128) if i == 0 else ([f's_add_u32 s{sXO2}, s{sXO}, 16384'] if i == 1 else ()))
            for i in range(2):
                mk(sMW, slot + 16384 + i * 1024, vWD, S_WQ, sWO, imm=64 * i, pre=step(sWO, 64 * 3072) if i == 0 else ())
        else:
            mk(sMF, slot + QOFF, vWD, S_WQ, sQW, pre=step(sQW, 64 * 3072))
            for h in range(2):
                for i in range(3):
                    mk(sMG, slot + h * UPOFF + i * 1024, vFD, S_WF if h else S_WG, sFO, imm=64 * i,
                       pre=step(sFO, 64 * 2752) if h + i == 0 else ())
        return out

    def prologue(self):
        e = self.e
        self.stamp(0)
        e('s_cmp_ge_u32 s2, 256')
        e('s_cbranch_scc1 Lexit')
        e(f's_load_dwordx2 s[{S_X}:{S_X + 1}], s[0:1], 0')
        e(f's_load_dwordx2 s[{S_WQ}:{S_WQ + 1}], s[0:1], 8')
        e(f's_getpc_b64 s[{sT}:{sT + 1}]')
        e.label('Lpfbase')
        e(f's_lshr_b32 s{sT + 2}, s2, 3')
        e(f's_lshl_b32 s{sT + 2}, s{sT + 2}, 11')
        e(f'v_lshl_add_u32 v16, v0, 2, s{sT + 2}')
        e('v_min_u32 v16, Lcode_end-Lpfbase-4, v16')
        e('v_lshrrev_b32 v2, 6, v0')
        e('s_mov_b32 exec_lo, 1')
        e('s_mov_b32 exec_hi, 1')
        e(f'global_load_dword v{vK[1]}, v16, s[{sT}:{sT + 1}]', 'pf')
        e('s_mov_b64 exec, -1')
        e(f'v_readfirstlane_b32 s{sW}, v2')
        e('v_and_b32 v0, 63, v0')
        e(f's_xor_b32 s{sW}, s{sW}, 4')
        e(f's_and_b32 s{sTT}, s{sW}, 3')
        e(f's_lshr_b32 s{sG}, s{sW}, 2')
        e('s_cbranch_scc1 Lload')
        e('s_bitcmp1_b32 s2, 3')
        e('s_cbranch_scc1 Lcomp1')
        e('s_branch Lcomp0')

    def more_args(self, g):
        e = self.e
        lst = [(S_GW, 56), (S_WG, 32), (S_WF, 40)] if g else []
        for b, off in lst + [(S_DBG, 72), (S_WS, 80), (S_H, 80), (S_WD, 48), (S_WO, 16), (S_OUT, 64)]:
            e(f's_load_dwordx2 s[{b}:{b + 1}], s[0:1], {off}')
        e(f'v_lshlrev_b32 v{vL16}, 4, v0')
        e(f's_and_b32 s{sTB}, s2, 4')
        e(f's_lshl_b32 s{sTB}, s{sTB}, 1')
        e(f's_lshr_b32 s{sT + 6}, s2, 5')
        e(f's_add_u32 s{sTB}, s{sTB}, s{sT + 6}')
        e(f's_and_b32 s{sJ}, s2, 3')
        e(f's_lshl_b32 s{sJ}, s{sJ}, 2')
        e(f's_bfe_u32 s{sT + 6}, s2, 0x20003')
        e(f's_add_u32 s{sJ}, s{sJ}, s{sT + 6}')
        R = self.opt['rot']
        e(f's_mul_i32 s{sR}, s{sJ}, {self.opt["rj"]}')
        e(f's_add_u32 s{sR}, s{sR}, s{sTB}')
        e(f's_and_b32 s{sR}, s{sR}, {R - 1}')
        e(f's_mul_i32 s{sR}, s{sR}, {8 // R}')

    def quad_rows(self, dst, stride, t):
        e = self.e
        e(f'v_lshrrev_b32 v{t}, 4, v0')
        e(f'v_and_b32 v{t}, 2, v{t}')
        e(f'v_xor_b32 v{t}, v{t}, v0')
        e(f'v_and_b32 v{t}, 3, v{t}')
        e(f'v_lshrrev_b32 v{dst}, 2, v0')
        e(f'v_mul_u32_u24 v{dst}, {stride}, v{dst}')
        e(f'v_lshl_add_u32 v{dst}, v{t}, 4, v{dst}')

    def tr_base(self, dst, gstride, t):
        e = self.e
        e(f'v_lshrrev_b32 v{dst}, 5, v0')
        e(f'v_mul_u32_u24 v{dst}, {gstride}, v{dst}')
        e(f'v_bfe_u32 v{t}, v0, 4, 1')
        e(f'v_mul_u32_u24 v{t}, {512 + 32}, v{t}')
        e(f'v_add_u32 v{dst}, v{dst}, v{t}')
        e(f'v_bfe_u32 v{t}, v0, 2, 2')
        e(f'v_lshl_add_u32 v{dst}, v{t}, 6, v{dst}')
        e(f'v_and_b32 v{t}, 3, v0')
        e(f'v_lshl_add_u32 v{dst}, v{t}, 3, v{dst}')

    def srd_consts(self, lst):
        for b, n in lst:
            self.e(f's_mov_b32 s{b + 2}, {n}')
            self.e(f's_mov_b32 s{b + 3}, 0x20000')

    def x_read_addrs(self):
        e = self.e
        e('v_and_b32 v16, 15, v0')
        e(f's_lshl_b32 s{sT + 6}, s{sTT}, 12')
        e('v_lshrrev_b32 v17, 4, v0')
        e('v_lshrrev_b32 v18, 1, v16')
        e('v_xor_b32 v18, v18, v17')
        e('v_lshlrev_b32 v18, 4, v18')
        e('v_lshl_add_u32 v18, v16, 7, v18')
        e(f'v_add_u32 v{vXR[0]}, s{sT + 6}, v18')
        e(f'v_xor_b32 v{vXR[1]}, 64, v{vXR[0]}')

    def setup2(self, g, ty):
        e = self.e
        t = sT
        self.srd_consts(([(S_DBG, 256), (S_WG, 512 * 2752), (S_WF, 512 * 2752)] if g else []) +
                        [(S_WS, WS_END), (S_H, 86 * 65536), (S_WD, 1376 * 1024), (S_WO, 512 * 1024), (S_OUT, 2048 * 1024)])
        e(f's_lshl_b32 s{sUS}, s{sJ}, 4')
        e(f's_add_u32 s{sUS}, s{sUS}, 2')
        e(f's_mul_i32 s{sUS}, s{sUS}, 43691')
        e(f's_lshr_b32 s{sUS}, s{sUS}, 17')
        if g:
            e(f's_lshl_b32 s{t + 1}, s{sR}, 2')
            e(f's_add_u32 s{t + 1}, s{t + 1}, s{sTT}')
            e(f's_mul_i32 s{sFO}, s{t + 1}, {16 * 2752}')
            e(f's_lshr_b32 s{t}, s{sUS}, 1')
            e(f's_lshl_b32 s{t}, s{t}, 6')
            e(f's_add_u32 s{sFO}, s{sFO}, s{t}')
            e(f's_mul_i32 s{sQW}, s{t + 1}, {16 * 3072}')
            e(f's_lshl_b32 s{t}, s{sJ}, 6')
            e(f's_add_u32 s{sQW}, s{sQW}, s{t}')
            e(f's_mul_i32 s{sMG}, s{sTT}, 3072')
            e(f's_lshl_b32 s{sMF}, s{sTT}, 10')
            self.quad_rows(vFD, 2752, vP)
        first = 0 if g else 3
        self.tr_base(vP + 1, 3072, vP)
        for c in range(3):
            e(f's_and_b32 s{t}, s{sUS}, 1')
            e(f's_add_u32 s{t}, s{t}, {first + c}')
            e(f's_lshr_b32 s{t + 1}, s{t}, 1')
            e(f's_lshl_b32 s{t + 1}, s{t + 1}, 10')
            e(f's_and_b32 s{t}, s{t}, 1')
            e(f's_lshl_b32 s{t}, s{t}, 5')
            e(f'v_xor_b32 v{vFR[c]}, s{t}, v{vP + 1}')
            e(f'v_add_u32 v{vFR[c]}, s{t + 1}, v{vFR[c]}')
        e(f'v_lshrrev_b32 v{vP}, 5, v0')
        e(f'v_lshlrev_b32 v{vVA}, 11, v{vP}')
        e(f'v_sub_u32 v{vQR}, v{vP + 1}, v{vVA}')
        if g:
            e(f'v_xor_b32 v{vQR}, 32, v{vQR}')
        e(f's_add_u32 s{S_H}, s{S_H}, {WS_H}\n    s_addc_u32 s{S_H + 1}, s{S_H + 1}, 0')
        e(f's_and_b32 s{sRB}, s2, 7')
        e(f's_xor_b32 s{sRB}, s{sRB}, 4')
        e(f's_lshl_b32 s{sRB}, s{sRB}, 2')
        e(f's_lshr_b32 s{t}, s2, 6')
        e(f's_add_u32 s{sRB}, s{sRB}, s{t}')
        e(f's_bfe_u32 s{sCB}, s2, 0x30003')
        e(f's_mov_b32 s{sVM}, 0xffff')
        e(f's_mov_b32 s{sVM + 1}, 0xffff')
        e(f's_mov_b32 s{sGC}, {fbits(GC1)}')
        e(f's_mov_b32 s{sGC + 1}, s{sGC}')
        e(f'v_and_b32 v{vVA}, 15, v0')
        e(f'v_lshl_add_u32 v{vVA}, v{vP}, 4, v{vVA}')
        e(f'v_lshlrev_b32 v{vVA}, 4, v{vVA}')
        e(f's_lshl_b32 s{t}, s{sTB}, 2')
        e(f's_add_u32 s{t}, s{t}, s{sTT}')
        e(f's_add_u32 s{sHO}, s{sUS}, {first}')
        e(f's_lshl_b32 s{sHO}, s{sHO}, 6')
        e(f's_add_u32 s{sHO}, s{sHO}, s{t}')
        e(f's_lshl_b32 s{sHO}, s{sHO}, 10')
        e(f's_add_u32 s{sHO}, s{sHO}, {WS_H}')
        e(f's_lshl_b32 s{sMO}, s{sJ}, 7')
        e(f's_add_u32 s{sMO}, s{sMO}, s{t}')
        e(f's_lshl_b32 s{sMO}, s{sMO}, 10')
        e(f's_add_u32 s{sMO}, s{sMO}, {g * 65536 + WS_O}')
        if g == 0:
            e(f's_lshr_b32 s{sE[0]}, s{sJ}, 1')
            e(f's_lshl_b32 s{sE[0]}, s{sE[0]}, 8')
            e(f's_add_u32 s{sE[0]}, s{sE[0]}, s{t}')
            e(f's_lshl_b32 s{sE[0]}, s{sE[0]}, 11')
            e(f's_add_u32 s{sE[0]}, s{sE[0]}, {WS_KV + 1024 * ty}')
            for i in range(1, 4):
                e(f's_add_u32 s{sE[i]}, s{sE[0]}, {262144 * (i >> 1) + 512 * (i & 1) if ty else 131072 * i}')
            if ty:
                e(f'v_bfe_u32 v{vWD}, v0, 4, 1')
                e(f'v_lshl_add_u32 v{vWD}, v{vWD}, 17, v{vVA}')
            else:
                e(f'v_mov_b32 v{vWD}, v{vL16}')
        e(f's_lshl_b32 s{sKVB}, s{sJ}, 3')
        e(f's_add_u32 s{sKVB}, s{sKVB}, s{sW}')
        e(f's_lshl_b32 s{sKVB}, s{sKVB}, 15')
        e(f's_add_u32 s{sKVB}, s{sKVB}, {WS_KV}')
        e(f's_and_b32 s{sKVI}, s{sTB}, 7')
        e(f's_lshl_b32 s{sKVI}, s{sKVI}, 12')
        e(f's_and_b32 s{sKV}, s{sJ}, 14')
        e(f's_lshl_b32 s{sKV}, s{sKV}, 2')
        e(f's_add_u32 s{sKV}, s{sKV}, s{sTT}')
        e(f's_lshl_b32 s{sKV}, s{sKV}, {2 + self.opt["fs"]}')
        e(f's_add_u32 s{sKV}, s{sKV}, {WS_F1}')
        for i in range(4):
            e(f's_add_u32 s{sQX[i]}, s{sTT}, {1 + i}')
            e(f's_and_b32 s{sQX[i]}, s{sQX[i]}, 3')
            e(f's_lshl_b32 s{sQX[i]}, s{sQX[i]}, 10')
            e(f's_add_u32 s{sQX[i]}, s{sQX[i]}, {L_QX + 4096 * g}')
        e(f's_mul_i32 s{sMD}, s{sW}, {RINGW}')
        e(f's_mul_i32 s{sDO}, s{sW}, {11 * 16384}')
        e(f's_lshl_b32 s{t}, s{sCB}, 7')
        e(f's_add_u32 s{sDO}, s{sDO}, s{t}')
        e(f'v_bfe_u32 v{vDR[0]}, v0, 2, 2')
        e(f'v_lshl_add_u32 v{vDR[0]}, v{vP}, 3, v{vDR[0]}')
        e(f'v_lshlrev_b32 v{vDR[0]}, 7, v{vDR[0]}')
        e(f'v_bfe_u32 v{vP}, v0, 4, 1')
        e(f'v_lshl_add_u32 v{vDR[0]}, v{vP}, 5, v{vDR[0]}')
        e(f'v_bfe_u32 v{vP}, v0, 3, 1')
        e(f'v_lshl_add_u32 v{vDR[0]}, v{vP}, 6, v{vDR[0]}')
        e(f'v_and_b32 v{vP}, 3, v0')
        e(f'v_lshl_add_u32 v{vDR[0]}, v{vP}, 3, v{vDR[0]}')
        e(f'v_add_u32 v{vDR[0]}, s{sMD}, v{vDR[0]}')
        e(f'v_xor_b32 v{vDR[1]}, 64, v{vDR[0]}')

    def phase_a_loader(self):
        e = self.e
        o = self.opt
        GWB = FR
        ZA = ACF
        self.more_args(1)
        e('v_lshrrev_b32 v16, 3, v0')
        e('v_lshrrev_b32 v17, 4, v0')
        e('v_and_b32 v18, 7, v0')
        e('v_xor_b32 v18, v18, v17')
        e('v_lshlrev_b32 v18, 4, v18')
        e(f'v_lshl_add_u32 v{vXD[0]}, v16, 10, v18')
        e(f'v_xor_b32 v{vXD[1]}, 64, v{vXD[0]}')
        e(f'v_add_u32 v{vXD[1]}, 8192, v{vXD[1]}')
        e(f's_lshl_b32 s{sXO}, s{sTB}, 2')
        e(f's_add_u32 s{sXO}, s{sXO}, s{sTT}')
        e(f's_lshl_b32 s{sXO}, s{sXO}, 8')
        e(f's_add_u32 s{sXO}, s{sXO}, s{sR}')
        e(f's_lshl_b32 s{sXO}, s{sXO}, 7')
        e(f's_lshl_b32 s{sMX}, s{sTT}, 12')
        self.srd_consts(((S_X, 2048 * 1024), (S_WQ, 512 * 3072), (S_GW, 1024)))
        self.quad_rows(vWD, 3072, 16)
        e(f's_lshr_b32 s{sT}, s{sJ}, 1')
        e(f's_and_b32 s{sT + 1}, s{sJ}, 1')
        e(f's_lshl_b32 s{sT + 1}, s{sT + 1}, 3')
        e(f's_add_u32 s{sT}, s{sT}, s{sT + 1}')
        e(f's_lshl_b32 s{sT}, s{sT}, 7')
        e(f's_lshl_b32 s{sWO}, s{sR}, 2')
        e(f's_add_u32 s{sWO}, s{sWO}, s{sTT}')
        e(f's_mul_i32 s{sWO}, s{sWO}, {16 * 3072}')
        e(f's_add_u32 s{sWO}, s{sWO}, s{sT}')
        e(f's_addk_i32 s{sWO}, 1024')
        e(f's_lshl_b32 s{sMW}, s{sTT}, 11')
        e('s_waitcnt lgkmcnt(0)')
        self.stamp(1)
        seq = []
        bound = []
        last = 7 + o['fah']
        for s in range(last + 1):
            bound.append(len(seq))
            seq += self.dma_list(s)
        bound.append(len(seq))
        pos = 0

        def issue(upto):
            nonlocal pos
            while pos < min(upto, len(seq)):
                seq[pos]()
                pos += 1
        issue(6)
        e(f's_lshl_b32 s{sT}, s{sR}, 7')
        e(f'v_add_u32 v16, s{sT}, v{vL16}')
        e(f's_mov_b32 m0, {L_GW}')
        e('v_and_b32 v16, 1023, v16')
        e(f'buffer_load_dwordx4 v16, {srd(S_GW)}, 0 offen lds', 'st0')
        issue(12)
        self.x_read_addrs()
        e(f'v_and_b32 v{vWR[0]}, 48, v0')
        fill = self.split(lambda: self.setup2(1, 0)) + self.split(self.v_const)
        for _ in range(min(len(fill), o['lpre'])):
            fill.pop(0)()
        D = o['ahead']
        issue(bound[1] + D)
        wx = Win(e, vXR)
        for s in range(8):
            slot = region(s)
            e.wait(vm=f'st{s}')
            e('s_barrier')
            if s in (0, 4):
                self.stamp(2 + s // 4)
            end = min(bound[s + 2] + D, bound[min(max(s + 4, 5), last + 1)])
            issue(min(end, pos + o['lfirst']))
            wx.ensure(slot, slot + 2048)
            for ks in range(2):
                n = 2 * s + ks
                e(f'ds_read_b128 {vr(GWB + 4 * ks, 4)}, v{vWR[0]} offset:{L_GW + 64 * n}', f'r{n}')
                for tg in range(2):
                    e(f'ds_read_b128 {vr(X + 8 * n + 4 * tg, 4)}, v{vXR[ks]} offset:{wx.off(slot + 2048 * tg)}', f'r{n}')
            if s == 6:
                e(f'buffer_load_dwordx2 v[{vK[0]}:{vK[0] + 1}], off, {srd(S_DBG)}, 0 sc1', 'non')
            issue(end)
            for ks in range(2):
                n = 2 * s + ks
                e.wait(lg=f'r{n}')
                for tg in range(2):
                    z = vr(ZA + 4 * tg, 4)
                    e(f'v_mfma_f32_16x16x32_bf16 {z}, {vr(GWB + 4 * ks, 4)}, {vr(X + 8 * n + 4 * tg, 4)}, {z if n else 0}')
            for _ in range(34):
                if fill:
                    fill.pop(0)()
            if s == 3:
                assert not fill
        self.left = seq[pos:]
        e(f'v_and_b32 v{vP}, 16, v0')
        e(f'v_cmp_eq_u32 vcc, 0, v{vP}')
        e(f's_lshl_b32 s{sT + 1}, s{sTT}, 8')
        e(f'v_lshl_add_u32 v{vP}, v0, 2, s{sT + 1}')
        e(f'v_cndmask_b32 v{vP + 1}, v{ZA + 4}, v{ZA}, vcc')
        e(f'ds_write_b32 v{vP}, v{vP + 1} offset:{L_Z}', 'zw')
        e.wait(vm='st8')
        e('s_barrier')
        self.stamp(4)

    def pack8(self, src, dst):
        e = self.e
        for r in range(4):
            e(f'v_cvt_pk_bf16_f32 v{dst + r}, v{src + 2 * r}, v{src + 2 * r + 1}')
        for r in range(2):
            e(f'v_permlane16_swap_b32 v{dst + r}, v{dst + 2 + r}')

    def phase_a_compute(self, ty):
        e = self.e
        NC = 4
        self.more_args(0)
        e(f's_memrealtime s[{sNON}:{sNON + 1}]')
        e('v_mov_b32 v16, 0')
        e(f'v_mov_b32 v17, {L_CNT}')
        e('ds_write2_b32 v17, v16, v16 offset0:0 offset1:1', 'z0')
        self.srd_consts(((S_DBG, 256),))
        self.x_read_addrs()
        self.tr_base(vWR[0], NC * 512, 16)
        e(f'v_xor_b32 v{vWR[1]}, 32, v{vWR[0]}')
        e('s_waitcnt lgkmcnt(0)')
        for p in e.paths:
            p.lg = []
        self.stamp(1)
        if not ty:
            e(f's_or_b32 s{sT + 6}, s2, s{sW}')
            lab = e.newlabel('nn')
            e(f's_cbranch_scc1 {lab}')
            snap = e.snapshot()
            e(f's_or_b32 s{sNON + 1}, s{sNON + 1}, 0x80000000')
            e(f'v_mov_b32 v16, s{sNON}')
            e(f'v_mov_b32 v17, s{sNON + 1}')
            e('s_mov_b64 exec, 1')
            e(f'buffer_store_dwordx2 v[16:17], off, {srd(S_DBG)}, 0 sc1', 'nst')
            e('s_mov_b64 exec, -1')
            e.paths = e.paths + snap
            e.label(lab)
        fill = self.split(lambda: self.setup2(0, ty))
        for _ in range(min(len(fill), self.opt['cpre'])):
            fill.pop(0)()
        LA = 4
        wx = Win(e, vXR)
        ww = Win(e, vWR)
        M = 16 * NC

        def reads(m, rd):
            n, ct = divmod(m, NC)
            s, ks = divmod(n, 2)
            slot = region(s)
            if m % (2 * NC) == 0 and rd == 0:
                e('s_barrier')
                if s in (0, 4):
                    self.stamp(2 + s // 4)
                wx.ensure(slot, slot + 2048)
                ww.ensure(slot + 16384, slot + 24576)
            if ct == 0:
                e(f'ds_read_b128 {vr(X + 8 * n + 4 * rd, 4)}, v{vXR[ks]} offset:{wx.off(slot + 2048 * rd)}', f'a{m}')
            t = slot + 16384 + ks * NC * 1024 + (ct >> 1) * 1024 + rd * 256
            e(f'ds_read_b64_tr_b16 {vr(FR + 4 * (m % NFR) + 2 * rd, 2)}, v{vWR[ct & 1]} offset:{ww.off(t)}', f'a{m}')

        for m in range(LA):
            reads(m, 0)
            reads(m, 1)
        for m in range(M):
            n, ct = divmod(m, NC)
            e.wait(lg=f'a{m}')
            for tg in range(2):
                acc = vr(ACA + 16 * (ct >> 1) + 8 * tg + 4 * (ct & 1) if ty else ACA + 8 * ct + 4 * tg, 4)
                a, b = vr(FR + 4 * (m % NFR), 4), vr(X + 8 * n + 4 * tg, 4)
                if ty:
                    a, b = b, a
                e(f'v_mfma_f32_16x16x32_bf16 {acc}, {a}, {b}, {acc if n else 0}')
                if m + LA < M:
                    reads(m + LA, tg)
            for _ in range(3):
                if fill:
                    fill.pop(0)()
            if m == M * 7 // 8:
                e(f'buffer_load_dwordx2 v[{vK[0]}:{vK[0] + 1}], off, {srd(S_DBG)}, 0 sc1', 'non')
        assert not fill

    def kv_store(self, i):
        self.e(f'buffer_store_dwordx4 {vr(ACA + 4 * i, 4)}, v{vWD}, {srd(S_WS)}, s{sE[i]} offen sc1', 'qst')

    def spin(self, name, reload, check, sleep=2):
        e = self.e
        lr, lc = e.newlabel(name + 'r'), e.newlabel(name + 'c')
        check()
        e(f's_cbranch_vccnz {lr}')
        e.label(lc)

        def blk():
            e.paths = [p for p in Emitter().paths]
            e.label(lr)
            e(f's_mov_b32 s{sSPIN}, {SPIN}')
            ll = e.newlabel(name + 'l')
            e.label(ll)
            e(f's_sleep {sleep}')
            reload()
            e('s_waitcnt vmcnt(0)')
            check()
            e(f's_cbranch_vccz {lc}')
            e(f's_sub_u32 s{sSPIN}, s{sSPIN}, 1')
            e(f's_cbranch_scc0 {ll}')
            e(f's_branch {lc}')
        self.tail_blocks.append(blk)

    def flag_store(self, soff, tmp):
        e = self.e
        e(f'v_mov_b32 v{tmp}, s{sNON}')
        e(f'v_mov_b32 v{tmp + 1}, s{sNON + 1}')
        e('s_mov_b64 exec, 1')
        e(f'buffer_store_dwordx2 v[{tmp}:{tmp + 1}], off, {srd(S_WS)}, s{soff} sc1', 'flag')
        e('s_mov_b64 exec, -1')

    def kv_load(self, it):
        e = self.e
        b = it % 2

        def k():
            e(f'buffer_load_dwordx4 {vr(vK[b], 4)}, v{vKA}, {srd(S_WS)}, s{sKVI} offen sc1', f'k{it}')

        def v():
            e(f's_mov_b64 exec, s[{sVM}:{sVM + 1}]')
            e(f'buffer_load_dwordx4 {vr(vV[b], 4)}, v{vKA + 1}, {srd(S_WS)}, s{sKVI} offen offset:1024 sc1', f'v{it}')
            e(f'buffer_load_dwordx4 {vr(vV[b] + 4, 4)}, v{vKA + 1}, {srd(S_WS)}, s{sKVI} offen offset:1536 sc1', f'v{it}')
            e('s_mov_b64 exec, -1')
        return k, v

    def kv_adv(self, part=3):
        if part & 1:
            self.e(f's_addk_i32 s{sKVI}, 2048')
        if part & 2:
            self.e(f's_bitset0_b32 s{sKVI}, 15')

    def gelu(self, c, pk=True):
        e = self.e
        acc = ACF + 16 * c
        T = ACA + 16
        P = lambda b, i: vr(b + 2 * i, 2)
        if not pk:
            real = e

            def e(text):
                if not text.startswith('v_pk_'):
                    return real(text)
                op, rest = text.split(None, 1)
                for h in range(2):
                    ops = [f'{o[0]}{int(o[2:o.index(":")]) + h}' for o in rest.split(', ')]
                    real(op.replace('v_pk_', 'v_') + ' ' + ', '.join(ops))
        for i in range(4):
            e(f'v_pk_mul_f32 {P(T, i)}, {P(acc, i)}, {P(acc, i)}')
        for i in range(4):
            e(f'v_pk_fma_f32 {P(T, i)}, {P(T, i)}, s[{sGC}:{sGC + 1}], {vr(T + 8, 2)}')
        for i in range(4):
            e(f'v_pk_mul_f32 {P(T, i)}, {P(T, i)}, {P(acc, i)}')
        for i in range(8):
            e(f'v_exp_f32 v{T + i}, v{T + i}')
        for i in range(4):
            e(f'v_pk_mul_f32 {P(acc, i)}, {P(acc, i)}, {P(acc + 8, i)}')
        for i in range(4):
            ch = vr(T + 10 + 2 * (i // 2), 2)
            e(f'v_pk_fma_f32 {P(T, i)}, {P(T, i)}, {ch}, {ch}')
        for i in range(8):
            e(f'v_rcp_f32 v{T + i}, v{T + i}')
        for i in range(4):
            e(f'v_pk_mul_f32 {P(acc, i)}, {P(acc, i)}, {P(T, i)}')
        for i in (0, 2, 1, 3):
            e(f'v_cvt_pk_bf16_f32 v{acc + 8 + i}, v{acc + 2 * i}, v{acc + 2 * i + 1}')
        for r in range(2):
            e(f'v_permlane16_swap_b32 v{acc + 8 + r}, v{acc + 10 + r}')

    def h_store(self, c):
        e = self.e
        e(f's_add_u32 s{sT}, s{sHO}, {65536 * c}')
        e(f'buffer_store_dwordx4 {vr(ACF + 16 * c + 8, 4)}, v{vL16}, {srd(S_WS)}, s{sT} offen sc1', 'hst')

    def split(self, fn):
        real = self.e
        rec = []

        class Rec:
            def __call__(s, text, tag=None):
                rec.append(('i', text, tag))

            def wait(s, vm=None, lg=None):
                rec.append(('w', vm, lg))
        self.e = Rec()
        fn()
        self.e = real
        out, grp = [], []
        for r in rec:
            grp.append(r)
            masked = any(x[0] == 'i' and x[1].startswith('s_mov_b64 exec') for x in grp)
            if (masked and r[1] != 's_mov_b64 exec, -1') or r[0] == 'w':
                continue

            def f(grp=grp):
                for x in grp:
                    if x[0] == 'i':
                        real(x[1], x[2])
                    else:
                        real.wait(vm=x[1], lg=x[2])
            out.append(f)
            grp = []
        assert not grp
        return out

    def phase_f(self, g, NC):
        e = self.e
        o = self.opt
        order = []
        for s in range(8):
            for item in ([(0, -1), (1, -1)] if s == 7 else []):
                order.append((2 * s + item[0], -1))
            for ks in range(2):
                order += [(2 * s + ks, r) for r in range(0 if s == 7 else -1, 2 * NC)]
        PS = 4 * NC + 2
        M = 8 * PS
        sc = lambda m: m * PS // 12
        LA = 4
        wf = Win(e, vFR[:NC] + [vQR])
        fill = []
        at = {}
        cur = [0]

        def pin(m, f):
            at.setdefault(m, []).append(f)

        def sched(s, m0, span, extra=()):
            lst = list(extra) + (self.dma_list(s) if g and s <= 15 else [])
            for i, f in enumerate(lst):
                pin(m0 + i * span // len(lst), f)

        def enter(s):
            e.wait(vm=[f'st{s}'] + (['qst'] if s == o['qw'] else []), lg='zw' if s == 9 else None)
            e('s_barrier')
            sched(s + o['fah'], cur[0] + 1, sc(o['span']))
            if s == 9:
                fill.extend(self.split(self.gate_read))
                fill.append(self.nonce_get)
                fill.extend(self.split(self.attn_setup))
                fill.extend(self.split(self.gate_math))
            if s == o['vs'] and g == 0:
                fill.extend(self.split(self.v_const))
            if s == o['qw'] and g == 0:
                fill.insert(0, self.flag1)

        def reads(m, rd):
            s = 8 + m // PS
            if m % PS == 0 and m and rd == 0:
                enter(s)
            n, r = order[m]
            slot = region(s)
            wf.ensure(slot, slot + 28672)
            if r < 0:
                va, t = vQR, slot + QOFF + (n % 2) * 2048 + rd * 256
            else:
                va, t = vFR[r // 2], slot + (r % 2) * UPOFF + (n % 2) * 6144 + rd * 256
            e(f'ds_read_b64_tr_b16 {vr(FR + 4 * (m % NFR) + 2 * rd, 2)}, v{va} offset:{wf.off(t)}', f'f{m}')

        assert o['fah'] <= 3
        if g == 0:
            for i in range(o['qe'], 4):
                pin(sc(o['q0'] + o['qsp'] * (i - o['qe'])), lambda i=i: self.kv_store(i))
            assert sc(o['q0'] + o['qsp'] * (3 - o['qe'])) < (min(o['vs'], o['qw']) - 8) * PS - LA
        sched(8 + o['fah'], 0, PS - LA, self.left if g else ())
        for m in range(LA):
            reads(m, 0)
            reads(m, 1)
        if o['prio']:
            pin(sc(50), lambda: e('s_setprio 3'))
        for m in range(M):
            cur[0] = m
            n, r = order[m]
            e.wait(lg=f'f{m}')
            for tg in range(2):
                acc = vr((QA if r < 0 else ACF + 8 * r) + 4 * tg, 4)
                e(f'v_mfma_f32_16x16x32_bf16 {acc}, {vr(FR + 4 * (m % NFR), 4)}, {vr(X + 8 * n + 4 * tg, 4)}, {acc if n else 0}')
                if m + LA < M:
                    reads(m + LA, tg)
            if m % PS == 0 and 2 * PS <= m:
                self.stamp(5 + m // PS, 1)
            if o['omf'] and m == sc(o['omf']):
                fill.extend(self.split(lambda: self.o_mark(X)))
            if m == sc(o['p1i']):
                fill.append(self.poll1_issue)
            if m == sc(o['p1c']):
                fill.append(self.poll1_check)
                for grp in self.attn_loads_early():
                    fill.append(grp)
                    fill.extend([lambda: None] * o['lsp'])
            if m == 5 * PS:
                assert not fill
                fill.extend(self.split(lambda: self.q_addrs(g)))
            if m == 7 * PS + 3:
                fill = self.split(self.q_pack) + fill
            for f in at.pop(m, []):
                f()
            for _ in range(o['fk'] if m < 7 * PS + 3 else o['gk']):
                if fill:
                    fill.pop(0)()
        assert not at
        for f in fill:
            f()
        e.wait(lg='all')
        e('s_barrier')
        self.stamp(5)
        for i in range(3):
            e(f'ds_read_b128 {vr(vQ[i], 4)}, v{vQ[i]}', f'q{i}')
        side = []
        if o['p1c'] >= 96:
            side = [self.poll1_check] + self.attn_loads_early()
        ge, ends = [], []
        for c in range(NC - 1, -1, -1):
            ge += self.split(lambda: self.gelu(c))
            ends.append((len(ge), c))
        for k, f in enumerate(ge):
            if side and k >= o['g0'] * (1 - g) and k % o['gsp'] == 0:
                side.pop(0)()
            f()
            if not side and ends[0][0] <= k + 1 and ends[0][1] >= o['hl']:
                self.h_store(ends.pop(0)[1])
        assert not side and len(ends) == o['hl']

    def q_addrs(self, g):
        e = self.e
        for i in range(3):
            e(f'v_add_u32 v{vQ[i]}, s{sQX[i]}, v{vL16}')
        e(f'v_add_u32 v{vQ[0] + 1}, s{sQX[3]}, v{vL16}')

    def q_pack(self):
        e = self.e
        for r in range(8):
            e(f'v_mul_f32 v{QA + r}, {fbits(QSCALE)}, v{QA + r}')
        self.pack8(QA, vQ[3])
        e(f'ds_write_b128 v{vQ[0] + 1}, {vr(vQ[3], 4)}', 'qw')

    def o_mark(self, d=vH[0]):
        e = self.e
        for i in range(4):
            e(f'v_mov_b32 v{d + i}, -1')
        e(f'buffer_store_dwordx4 {vr(d, 4)}, v{vL16}, {srd(S_WS)}, s{sMO} offen sc1', 'hst')

    def gate_read(self):
        e = self.e
        e(f's_lshl_b32 s{sT}, s{sTT}, 8')
        e(f'v_and_b32 v{vCH}, 15, v0')
        e(f'v_lshl_add_u32 v{vCH}, v{vCH}, 2, s{sT}')
        e(f'v_add_u32 v{vCH}, {L_Z}, v{vCH}')
        e(f'ds_read2_b32 {vr(vCH, 2)}, v{vCH} offset0:0 offset1:16', 'zr')

    def gate_math(self):
        e = self.e
        e.wait(lg='zr')
        for i in range(2):
            e(f'v_mul_f32 v{vCH + i}, {fbits(LOG2E)}, v{vCH + i}')
        for i in range(2):
            e(f'v_exp_f32 v{vCH + i}, v{vCH + i}')
        for i in range(2):
            e(f'v_add_f32 v{vCH + i}, 1.0, v{vCH + i}')
        e(f'v_mov_b32 v{ACA + 24}, {fbits(GC0)}')
        e(f'v_mov_b32 v{ACA + 25}, v{ACA + 24}')
        for i in range(4):
            e(f'v_min_f32 v{ACA + 26 + i}, {fbits(2.0 ** 100)}, v{vCH + i // 2}')
        e(f'v_add_u32 v{vKA}, s{sKVB}, v{vL16}')
        e(f'v_add_u32 v{vKA + 1}, s{sKVB}, v{vVA}')

    def nonce_get(self):
        e = self.e
        e.wait(vm='non')
        ld = lambda: e(f'buffer_load_dwordx2 v[{vK[0]}:{vK[0] + 1}], off, {srd(S_DBG)}, 0 sc1')
        ck = lambda: e(f'v_cmp_eq_u32 vcc, 0, v{vK[0] + 1}')
        self.spin('non', ld, ck)
        e(f'v_readfirstlane_b32 s{sNON}, v{vK[0]}')
        e(f'v_readfirstlane_b32 s{sNON + 1}, v{vK[0] + 1}')

    def flag1(self):
        e = self.e
        lab = e.newlabel('f1')
        e(f's_cmp_lg_u32 s{sW}, 0')
        e(f's_cbranch_scc1 {lab}')
        snap = e.snapshot()
        e(f's_lshl_b32 s{sT + 7}, s{sJ}, 4')
        e(f's_add_u32 s{sT + 7}, s{sT + 7}, s{sTB}')
        e(f's_lshl_b32 s{sT + 7}, s{sT + 7}, {self.opt["fs"]}')
        e(f's_add_u32 s{sT + 7}, s{sT + 7}, {WS_F1}')
        self.flag_store(sT + 7, vK[0])
        e.paths = e.paths + snap
        e.label(lab)

    def attn_setup(self):
        e = self.e
        e(f'v_and_b32 v{vPA}, 4, v0')
        e(f'v_mul_u32_u24 v{vPA}, 3, v{vPA}')
        e(f'v_add_u32 v{vPA}, v{vPA}, v0')
        e(f'v_lshl_add_u32 v{vPA}, v{vPA}, {self.opt["fs"]}, s{sKV}')
        e(f'v_lshrrev_b32 v{vDD[0]}, 3, v0')
        e(f'v_lshrrev_b32 v{vP}, 2, v0')
        e(f'v_and_b32 v{vP}, 4, v{vP}')
        e(f'v_xor_b32 v{vP}, v{vP}, v0')
        e(f'v_and_b32 v{vP}, 7, v{vP}')
        e(f'v_lshlrev_b32 v{vP}, 4, v{vP}')
        e(f'v_lshl_add_u32 v{vDD[0]}, v{vDD[0]}, 10, v{vP}')
        e(f'v_add_u32 v{vDD[1]}, {8192 - 1024}, v{vDD[0]}')
        e(f'v_add_u32 v{vRW[0]}, s{sMD}, v{vL16}')
        e(f'v_lshl_add_u32 v{vRW[1]}, v0, 2, s{sMD}')

    def v_const(self):
        e = self.e
        e(f'v_and_b32 v{vV[0] + 1}, 27, v0')
        e(f'v_cmp_eq_u32 vcc, 16, v{vV[0] + 1}')
        e(f'v_mov_b32 v{vV[0] + 1}, 0x3f803f80')
        e(f'v_cndmask_b32 v{vV[0]}, 0, v{vV[0] + 1}, vcc')
        for i in range(1, 16):
            e(f'v_mov_b32 v{vV[0] + i}, v{vV[0]}')

    def poll1_issue(self):
        e = self.e
        e('s_mov_b64 exec, 0xff')
        e(f'buffer_load_dwordx2 v[{vP}:{vP + 1}], v{vPA}, {srd(S_WS)}, 0 offen sc1', 'p1')
        e('s_mov_b64 exec, -1')

    def poll1_check(self):
        e = self.e
        e.wait(vm='p1')
        e('s_mov_b64 exec, 0xff')
        e(f'v_cmp_ne_u64 vcc, s[{sNON}:{sNON + 1}], v[{vP}:{vP + 1}]')
        e('s_mov_b64 exec, -1')

    def attn_load_groups(self):
        e = self.e
        k0, v0 = self.kv_load(0)
        k1, v1 = self.kv_load(1)

        return [k0, lambda: (v0(), self.kv_adv()), k1, lambda: (v1(), self.kv_adv())]

    def attn_loads_early(self):
        e = self.e
        out = []
        for n, f in enumerate(self.attn_load_groups()):
            def g(f=f, n=n):
                lab = e.newlabel('al')
                e(f's_cbranch_vccnz {lab}')
                if n == 0:
                    skip = e.snapshot()
                    for p in skip:
                        p.g = 'pend'
                else:
                    skip = [p for p in e.paths if p.g == 'pend']
                    e.paths = [p for p in e.paths if p.g != 'pend']
                f()
                e.paths = e.paths + skip
                e.label(lab)
            out.append(g)
        return out

    def attn_loads_late(self):
        e = self.e
        e('s_cbranch_vccnz Llate')
        e.label('Llate_done')
        e.paths = [p for p in e.paths if p.g != 'pend']

        def blk():
            e.paths = [p for p in Emitter().paths]
            e.label('Llate')
            e('s_mov_b64 exec, 0xff')
            ld = lambda: e(f'buffer_load_dwordx2 v[{vP}:{vP + 1}], v{vPA}, {srd(S_WS)}, 0 offen sc1')
            ck = lambda: e(f'v_cmp_ne_u64 vcc, s[{sNON}:{sNON + 1}], v[{vP}:{vP + 1}]')
            ld()
            e('s_waitcnt vmcnt(0)')
            self.spin('p1', ld, ck, self.opt['sl1'])
            e('s_mov_b64 exec, -1')
            for f in self.attn_load_groups():
                f()
            e('s_waitcnt vmcnt(0)')
            e('s_branch Llate_done')
        self.tail_blocks.append(blk)

    def attention(self):
        e = self.e
        G0 = self.opt['g2start']
        NT = 64

        def qk(t):
            it, sl = divmod(t, 4)
            if sl == 0:
                e.wait(vm=f'k{it}')
            if it == 0:
                e.wait(lg=f'q{sl}')
            e(f'v_mfma_f32_32x32x16_bf16 {vr(vS[t % 2], 16)}, {vr(vK[it % 2], 4)}, {vr(vQ[sl], 4)}, 0')

        def pv(t, hi):
            it, sl = divmod(t, 4)
            if sl == 0 and not hi:
                e.wait(vm=f'v{it}')
            e(f'v_smfmac_f32_32x32x32_bf16 {vr(vO[sl], 16)}, {vr(vV[it % 2] + 4 * hi, 4)}, {vr(vS[t % 2] + 8 * hi, 8)}, v{vIDX}')

        def ex(t, a, b):
            for i in range(a, b):
                e(f'v_exp_f32 v{vS[t % 2] + i}, v{vS[t % 2] + i}')

        def stage_dma(rs, so, i, tag):
            return lambda: e(f'buffer_load_dwordx4 v{vDD[i]}, {srd(rs)}, s{so} offen' + (' offset:1024' if i else '') + ' lds', tag)

        def wo_first():
            e(f's_lshl_b32 s{sWO}, s{sW}, 16')
            e(f's_lshl_b32 s{sT}, s{sCB}, 7')
            e(f's_add_u32 s{sWO}, s{sWO}, s{sT}')
            e(f's_lshl_b32 s{sMW}, s{sW}, 13')

        def h_load(step, i):
            return lambda: e(f'buffer_load_dwordx4 {vr(vH[step % 2] + 4 * i, 4)}, v{vHA[i]}, {srd(S_H)}, s{sHO} offen sc1', f'h{step}')

        def wd_read(step, jj):
            def f():
                e.wait(vm=f'd{step}')
                for rd in range(2):
                    e(f'ds_read_b64_tr_b16 {vr(vD + 4 * jj + 2 * rd, 2)}, v{vDR[jj]} offset:{L_RING + 2048 * (step % 3) + 512 * rd}', f'dr{step}_{jj}')
            return f

        def g2(step, sl):
            jj, i = divmod(sl, 2)
            e.wait(vm=f'h{step}', lg=f'dr{step}_{jj}')
            acc = vr(vG[i * 2 + jj], 16)
            e(f'v_mfma_f32_32x32x16_bf16 {acc}, {vr(vD + 4 * jj, 4)}, {vr(vH[step % 2] + 4 * i, 4)}, {acc if step else 0}')

        def sig2_a():
            e.wait(vm='hst')
            e(f'v_mov_b32 v{vP}, {L_CNT}')
            e(f'v_mov_b32 v{vP + 1}, 1')
            e('s_mov_b64 exec, 1')
            e(f'ds_add_rtn_u32 v{vP}, v{vP}, v{vP + 1}', 'cnt2')
            e('s_mov_b64 exec, -1')

        def sig2_b():
            e.wait(lg='cnt2')
            e(f'v_readfirstlane_b32 s{sT}, v{vP}')
            lab = e.newlabel('f2')
            e(f's_cmp_lg_u32 s{sT}, 7')
            e(f's_cbranch_scc1 {lab}')
            snap = e.snapshot()
            e(f's_lshl_b32 s{sT}, s{sTB}, 4')
            e(f's_add_u32 s{sT}, s{sT}, s{sJ}')
            e(f's_lshl_b32 s{sT}, s{sT}, {self.opt["fs"]}')
            e(f's_add_u32 s{sT}, s{sT}, {WS_F2}')
            self.flag_store(sT, vP)
            e.paths = e.paths + snap
            e.label(lab)
            e(f's_and_b32 s{sT}, s{sW}, 1')
            e(f's_lshl_b32 s{sT}, s{sT}, 10')
            e(f'v_add_u32 v{vHA[0]}, s{sT}, v{vL16}')
            e(f'v_xor_b32 v{vHA[1]}, 1024, v{vHA[0]}')
            e(f's_mul_i32 s{sHO}, s{sW}, {11 * 65536}')
            e(f's_lshl_b32 s{sT}, s{sRB}, 11')
            e(f's_add_u32 s{sHO}, s{sHO}, s{sT}')

        def poll2_issue():
            e(f's_lshr_b32 s{sT + 1}, s{sRB}, 1')
            e(f's_lshl_b32 s{sT + 1}, s{sT + 1}, {4 + self.opt["fs"]}')
            e(f's_add_u32 s{sT + 1}, s{sT + 1}, {WS_F2}')
            e(f'v_lshl_add_u32 v{vPA}, v0, {self.opt["fs"]}, s{sT + 1}')
            e('s_mov_b64 exec, 0xffff')
            e(f'buffer_load_dwordx2 v[{vP}:{vP + 1}], v{vPA}, {srd(S_WS)}, 0 offen sc1', 'p2')
            e('s_mov_b64 exec, -1')

        def poll2_check():
            e.wait(vm='p2')
            e('s_mov_b64 exec, 0xffff')
            ld = lambda: e(f'buffer_load_dwordx2 v[{vP}:{vP + 1}], v{vPA}, {srd(S_WS)}, 0 offen sc1')
            ck = lambda: e(f'v_cmp_ne_u64 vcc, s[{sNON}:{sNON + 1}], v[{vP}:{vP + 1}]')
            self.spin('p2', ld, ck, self.opt['sl2'])
            e('s_mov_b64 exec, -1')

        def co_read():
            e(f's_lshl_b32 s{sT}, s{sTT}, 8')
            e(f'v_lshl_add_u32 v{vCO}, v0, 2, s{sT}')
            e(f'ds_read_b32 v{vCO}, v{vCO} offset:{L_Z}', 'zr2')

        def co_math():
            e.wait(lg='zr2')
            e(f'v_mul_f32 v{vCO}, {fbits(-LOG2E)}, v{vCO}')
            e(f'v_exp_f32 v{vCO}, v{vCO}')

        def ored_addr(i):
            def f():
                e(f's_sub_u32 s{sT}, s{sTT}, {1 + i}')
                e(f's_and_b32 s{sT}, s{sT}, 3')
                e(f's_lshl_b32 s{sT + 1}, s{sG}, 2')
                e(f's_add_u32 s{sT}, s{sT}, s{sT + 1}')
                e(f's_mul_i32 s{sT}, s{sT}, {RINGW}')
                e(f'v_add_u32 v{vRR + i}, s{sT}, v{vL16}')
                e(f'v_lshl_add_u32 v{vRR + 3 + i}, v0, 2, s{sT}')
            return f

        def o_addr():
            e(f's_lshr_b32 s{sO[0]}, s{sW}, 1')
            e(f's_lshl_b32 s{sO[0]}, s{sO[0]}, 19')
            e(f's_lshl_b32 s{sT}, s{sRB}, 11')
            e(f's_add_u32 s{sO[0]}, s{sO[0]}, s{sT}')
            e(f's_add_u32 s{sO[0]}, s{sO[0]}, {WS_O}')

        def o_addr2():
            for k in range(1, 8):
                e(f's_add_u32 s{sO[k]}, s{sO[0]}, {65536 * k}')

        def ored_write(sl, part):
            o = L_RING + 2304 * sl
            if part < 2:
                return lambda: e(f'ds_write_b128 v{vRW[0]}, {vr(vO[sl] + 4 * part, 4)} offset:{o + 1024 * part}', 'orw')
            return lambda: e(f'ds_write_b32 v{vRW[1]}, v{vO[sl] + 8} offset:{o + 2048}', 'orw')

        side = {}
        add = lambda t, p, f: side.setdefault((t, p), []).append(f)
        I = lambda text: (lambda: e(text))
        for it in range(16):
            t = 4 * it
            st = it - G0
            add(t, 1, lambda it=it, st=st: e.wait(vm=[f'v{it}', f'h{st}'], lg=f'dr{st}_0'))
            add(t + 2, 2, lambda it=it, st=st: e.wait(vm=[f'k{it + 1}', f'd{st + 1}'], lg=f'dr{st}_1'))
            if 1 <= it < 15:
                add(t, 0, self.kv_load(it + 1)[1])
                add(t, 2, self.kv_adv)
            if it < 14:
                add(t + 2, 1, self.kv_load(it + 2)[0])
        for step in range(11):
            t = 4 * (G0 + step)
            add(t - 7, 2, I(f's_add_u32 m0, s{sMD}, {L_RING + 2048 * (step % 3)}'))
            add(t - 7, 4, stage_dma(S_WD, sDO, 0, f'd{step}'))
            add(t - 6, 0, stage_dma(S_WD, sDO, 1, f'd{step}'))
            add(t - 6, 0, I(f's_addk_i32 s{sDO}, 16384'))
            add(t - 4, 4, h_load(step, 0))
            add(t - 3, 1, h_load(step, 1))
            add(t - 3, 2, I(f's_add_u32 s{sHO}, s{sHO}, 65536'))
            add(t - 1, 0, wd_read(step, 0))
            add(t + 1, 0, wd_read(step, 1))
        t = 4 * self.opt['woi'] + 3
        add(t - 1, 4, wo_first)
        for k in range(4):
            add(t + 4 * k, 1, I(f's_add_u32 m0, s{sMW}, {L_WO + 2048 * k}'))
            add(t + 4 * k, 2, stage_dma(S_WO, sWO, 0, 'wo'))
            add(t + 4 * k, 2, stage_dma(S_WO, sWO, 1, 'wo'))
            add(t + 4 * k, 4, I(f's_addk_i32 s{sWO}, 16384'))
        if not self.opt['omf']:
            add(self.opt['om'], 2, self.o_mark)
        for c in range(self.opt['hl']):
            add(c * self.opt['hsp'], 2, lambda c=c: self.h_store(c))
        for i in range(3):
            add(22 + 4 * i, 2, ored_addr(i))
        add(34, 2, o_addr)
        add(38, 2, o_addr2)
        add(2, 2, co_read)
        add(3, 2, co_math)
        add(self.opt['s2t'], 2, sig2_a)
        add(self.opt['s2t'] + 1, 2, sig2_b)
        add(4 * (G0 - 2) + 2, 2, poll2_issue)
        add(4 * (G0 - 1), 2, poll2_check)
        for sl in range(3):
            add(61 + sl, 4, ored_write(sl, 0))
            add(62 + sl, 0, ored_write(sl, 1))
            add(62 + sl, 0, ored_write(sl, 2))
        if self.opt['prio']:
            add(self.opt['pa'], 2, lambda: e('s_setprio 2'))
            add(self.opt['pb'], 2, lambda: e('s_setprio 1'))
            add(self.opt['pc'], 2, lambda: e('s_setprio 0'))

        def run(t, p):
            for f in side.get((t, p), []):
                f()

        def zero(sl):
            e(f'v_mfma_f32_32x32x16_bf16 {vr(vO[sl], 16)}, {vr(vD, 4)}, {vr(vD, 4)}, 0')

        e(f'v_mov_b32 v{vIDX}, 0xdddddddd')
        for i in range(4):
            e(f'v_mov_b32 v{vD + i}, 0')
        qk(0)
        self.stamp(9, 3)
        if self.opt['zm']:
            zero(0)
        for t in range(NT):
            it, sl = divmod(t, 4)
            ex(t, 0, 2)
            if t > 0:
                pv(t - 1, 1)
            run(t, 0)
            ex(t, 2, 5)
            if t + 1 < NT:
                qk(t + 1)
            run(t, 1)
            ex(t, 5, 10)
            pv(t, 0)
            run(t, 2)
            ex(t, 10, 13)
            if G0 <= it < G0 + 11:
                g2(it - G0, sl)
            if t < 3 and self.opt['zm']:
                zero(t + 1)
            run(t, 4)
            ex(t, 13, 16)
            run(t, 3)
            if t in (7, 31):
                self.stamp(7 if t == 7 else 8)
            if t in (3, 5, 7):
                self.stamp(10 + (t - 3) // 2, 3)
        pv(NT - 1, 1)
        run(NT, 0)

    def tail(self):
        e = self.e
        own = vO[3]
        R = vO[0]
        WO = vO[0]
        OFR = [vH[0], vH[1], ACA + 16, ACA + 24]
        PRE = X + 64
        vFW, vPW, vOA = FR, FR + 4, FR + 9
        vFRd, vPR = vK[1], vRR
        HEADS = (1, 3, 5, 7, 0, 2, 4, 6)
        P2 = lambda b, i: vr(b + 2 * i, 2)

        def o_reduce(g):
            for i in range(3):
                e(f'ds_read_b32 v{R + 24 + i}, v{vRR + 3 + i} offset:{L_RING + 2304 * i + 2048}', f'or{i}')
            for i in range(3):
                o = L_RING + 2304 * i
                e(f'ds_read_b128 {vr(R + 8 * i, 4)}, v{vRR + i} offset:{o}', f'oa{i}')
                e(f'ds_read_b128 {vr(R + 8 * i + 4, 4)}, v{vRR + i} offset:{o + 1024}', f'oa{i}')
            e.wait(lg='or2')
            e(f'v_add_f32 v{R + 24}, v{R + 24}, v{R + 25}')
            e(f'v_add_f32 v{own + 8}, v{own + 8}, v{R + 26}')
            e(f'v_add_f32 v{own + 8}, v{own + 8}, v{R + 24}')
            e(f'v_subrev_u32 v{R + 24}, {(127 - 60) << 23}, v{own + 8}')
            e(f'v_cmp_lt_u32 vcc, {120 << 23}, v{R + 24}')
            e(f'v_fma_f32 v{R + 28}, v{own + 8}, v{vCO}, v{own + 8}')
            e(f'v_rcp_f32 v{R + 28}, v{R + 28}')
            for i in range(3):
                e.wait(lg=f'oa{i}')
                for r in range(4):
                    if g:
                        for h in range(2):
                            e(f'v_add_f32 v{own + 2 * r + h}, v{own + 2 * r + h}, v{R + 8 * i + 2 * r + h}')
                    else:
                        e(f'v_pk_add_f32 {P2(own, r)}, {P2(own, r)}, {P2(R + 8 * i, r)}')
            e('s_cbranch_vccnz Lsafe')
            e.label(f'Lsafe_done{g}')
            for r in range(8):
                e(f'v_mul_f32 v{own + r}, v{own + r}, v{R + 28}')
            for r in range(4):
                e(f'v_cvt_pk_bf16_f32 v{vK[0] + r}, v{own + 2 * r}, v{own + 2 * r + 1}')
            for r in range(4):
                e(f'v_min_u32 v{vK[0] + r}, -2, v{vK[0] + r}')
            e(f'buffer_store_dwordx4 {vr(vK[0], 4)}, v{vL16}, {srd(S_WS)}, s{sMO} offen sc1', 'ost')
            self.stamp(10)
            e(f's_lshr_b32 s{sT + 1}, s{sW}, 1')
            e(f's_lshl_b32 s{sT + 2}, s{sT + 1}, 14')
            e(f's_mul_i32 s{sT + 3}, s{sW}, {RINGW}')
            e(f's_sub_u32 s{sT + 2}, s{sT + 2}, s{sT + 3}')
            e(f's_add_u32 s{sT + 2}, s{sT + 2}, {L_WO}')
            e(f'v_and_b32 v{vP + 1}, 32, v0')
            e(f'v_lshlrev_b32 v{vP + 1}, 4, v{vP + 1}')
            e(f'v_sub_u32 v{vP + 1}, s{sT + 2}, v{vP + 1}')
            for jj in range(2):
                e(f'v_add_u32 v{vDR[jj]}, v{vP + 1}, v{vDR[jj]}')

        def old(kk, tag=None):
            for n in (2 * kk, 2 * kk + 1):
                e(f'buffer_load_dwordx4 {vr(OFR[kk] + 4 * (n & 1), 4)}, v{vHA[0]}, {srd(S_WS)}, s{sO[HEADS[n]]} offen sc1', tag)

        def wo_reads(n):
            for jj in range(2):
                for rd in range(2):
                    e(f'ds_read_b64_tr_b16 {vr(WO + 8 * n + 4 * jj + 2 * rd, 2)}, v{vDR[jj]} offset:{2048 * HEADS[n] + 1024 * rd}', f'wor{n}')

        def addrs(g, part=3):
            t0, t1 = vK[1] + 2, vK[1] + 3
            if part & 1:
                e(f'v_and_b32 v{vPW}, 31, v0')
                e(f'v_lshrrev_b32 v{t0}, 5, v0')
                e(f'v_and_b32 v{t1}, 7, v0')
                e(f'v_xor_b32 v{t0}, v{t0}, v{t1}')
                e(f'v_lshlrev_b32 v{t0}, 4, v{t0}')
                e(f'v_lshl_add_u32 v{vPW}, v{vPW}, 8, v{t0}')
                e(f's_lshl_b32 s{sT}, s{sTT}, 13')
                e(f's_add_u32 s{sT}, s{sT}, {98304 * g}')
                e(f'v_add_u32 v{vPW}, s{sT}, v{vPW}')
                for q in range(1, 4):
                    e(f'v_xor_b32 v{vPW + q}, {32 * q}, v{vPW}')
            if not part & 2:
                return
            e(f'v_lshrrev_b32 v{t0}, 3, v0')
            e(f'v_lshlrev_b32 v{vOA}, 4, v{t1}')
            e(f'v_lshl_add_u32 v{vOA}, v{t0}, 10, v{vOA}')
            e(f'v_lshlrev_b32 v{t1}, 1, v{t1}')
            e(f'v_xor_b32 v{t1}, v{t1}, v{t0}')
            e(f'v_lshlrev_b32 v{t1}, 4, v{t1}')
            e(f'v_lshl_add_u32 v{t1}, v{t0}, 8, v{t1}')
            e(f's_and_b32 s{sT + 2}, s{sW}, 1')
            e(f's_lshl_b32 s{sT + 2}, s{sT + 2}, 2')
            e(f's_add_u32 s{sT + 2}, s{sT + 2}, s{sT + 1}')
            e(f's_lshl_b32 s{sT + 3}, s{sT + 2}, 11')
            e(f'v_add_u32 v{vFRd}, s{sT + 3}, v{t1}')
            e(f'v_xor_b32 v{vFRd + 1}, 16, v{vFRd}')
            for h in range(2):
                e(f'v_xor_b32 v{vPR + h}, {8192 + L_PRE1}, v{vFRd + h}')
            for p in range(2):
                for h in range(2):
                    e(f'ds_read_b128 {vr(PRE + 8 * p + 4 * h, 4)}, v{vPR + h} offset:{16384 * p}', 'pr')
            for h in range(2):
                e(f'v_xor_b32 v{vPR + 2 + h}, 8192, v{vFRd + h}')
                e(f'v_add_u32 v{vPR + 4 + h}, 98304, v{vFRd + h}')
            e(f's_lshl_b32 s{sT}, s{sRB}, 3')
            e(f's_add_u32 s{sT}, s{sT}, s{sT + 2}')
            e(f's_lshl_b32 s{sT}, s{sT}, 13')
            e(f's_lshl_b32 s{sT + 1}, s{sCB}, 7')
            e(f's_add_u32 s{sT}, s{sT}, s{sT + 1}')

        def slab_write(g, i, n):
            jj, q = divmod(n, 4)
            e(f'ds_write_b128 v{vPW + q}, {vr(vG[2 * i + jj] + 4 * q, 4)} offset:{32768 * (i ^ g ^ 1) + 128 * jj}', 'sw')

        def mf(jj, n):
            acc = vr(vG[jj], 16)
            e(f'v_mfma_f32_32x32x16_bf16 {acc}, {vr(WO + 8 * n + 4 * jj, 4)}, {vr(OFR[n >> 1] + 4 * (n & 1), 4)}, {acc}')

        def mm(kk, between=None, jjs=(0, 1)):
            e.wait(vm=f'o{kk}')

            def ck():
                b = OFR[kk]
                e(f'v_max3_u32 v{vP}, v{b}, v{b + 1}, v{b + 2}')
                e(f'v_max3_u32 v{vP + 1}, v{b + 3}, v{b + 4}, v{b + 5}')
                e(f'v_max3_u32 v{vP}, v{vP}, v{b + 6}, v{b + 7}')
                e(f'v_max_u32 v{vP}, v{vP}, v{vP + 1}')
                e(f'v_cmp_eq_u32 vcc, -1, v{vP}')
            self.spin(f'o{kk}', lambda: [old(q) for q in range(kk, (kk | 1) + 1)], ck, self.opt['sl3'])
            for i, (jj, n) in enumerate(((0, 2 * kk), (0, 2 * kk + 1), (1, 2 * kk), (1, 2 * kk + 1))):
                if jj in jjs:
                    mf(jj, n)
                if between:
                    between(i)

        self.stamp(9)
        e(f's_cmp_lg_u32 s{sG}, 0')
        e.wait(vm='wo', lg='all')
        e('s_cbranch_scc1 Ltail1')
        snap = e.snapshot()
        self.tail_blocks.append(self.safe_softmax)

        def first_group():
            e.restore(snap)
            e.label('Ltail1')
            e('s_setprio 3')
            e(f'v_mov_b32 v{vPA}, {L_CNT}')
            e(f'v_mov_b32 v{vP}, 1')
            e('s_mov_b64 exec, 1')
            e(f'ds_add_u32 v{vPA}, v{vP} offset:4')
            e('s_mov_b64 exec, -1')

            def ld():
                e(f'ds_read_b64 {vr(vP, 2)}, v{vPA}')
                e('s_waitcnt lgkmcnt(0)')

            def ck():
                e(f'v_add_u32 v{vP}, v{vP}, v{vP + 1}')
                e(f'v_cmp_ne_u32 vcc, 12, v{vP}')
            ld()
            for p in e.paths:
                p.lg = []
            self.spin('g1', ld, ck, 1)
            o_reduce(1)
            addrs(1, 1)
            e('s_setprio 0')
            for n in range(8):
                wo_reads(n)
                slab_write(1, 1, n)
            e.wait(lg='all')
            e('s_barrier')
            for kk in range(4 if self.opt['ol'] == 0 else 2):
                old(kk, f'o{kk}')
            addrs(1, 2)
            e('s_barrier')
            self.stamp(11)
            finish(1, self.opt['ol'])
            e('s_branch Ltail2')
        self.tail_blocks.insert(0, first_group)

        def finish(g, late, k0=0):
            def pre_add(i):
                e.wait(lg='pr')
                for r in range(2 * i, 2 * i + 2):
                    e(f'v_add_f32 v{PRE + r}, v{PRE + r}, v{PRE + 8 + r}')
            for kk in range(k0, 4):
                if late == kk + 1:
                    for q in range(2, 4):
                        old(q, f'o{q}')
                e.wait(lg=f'wor{2 * kk + 1}')
                mm(kk, pre_add if kk == 3 else None)
            self.stamp(12)
            for n in range(8):
                slab_write(g, 0, n)
            e.wait(lg='all')

        e('s_setprio 3')
        e('s_barrier')
        for kk in range(2):
            old(kk, f'o{kk}')
        o_reduce(0)
        YL = self.opt['yl']
        lateld = lambda: [old(q, f'o{q}') for q in range(2, 4)]
        if YL == 0:
            lateld()
        for n in range(4):
            wo_reads(n)
        addrs(0, 1)
        e('s_barrier')
        for kk in range(2):
            if YL == kk + 1:
                lateld()
            e.wait(lg=f'wor{2 * kk + 1}')

            def lds_work(i, kk=kk):
                slab_write(0, 1, 4 * kk + i)
                if i % 2:
                    wo_reads(4 + 2 * kk + i // 2)
            mm(kk, lds_work)
        if YL == 3:
            lateld()
        addrs(0, 2)
        self.stamp(11)
        finish(0, 0, 2)
        e.label('Ltail2')
        e('s_barrier')
        B = X
        src = [(vPR + 2, 0), (vPR + 2, 16384), (vPR + 4, 0), (vPR + 4, 16384), (vFRd, 32768), (vFRd, 49152)]
        for p, (va, off) in enumerate(src):
            for h in range(2):
                e(f'ds_read_b128 {vr(B + 8 * p + 4 * h, 4)}, v{va + h} offset:{off}', f'fr{p}')
        for p in range(6):
            e.wait(lg=f'fr{p}')
            for r in range(4):
                e(f'v_pk_add_f32 {P2(PRE, r)}, {P2(PRE, r)}, {P2(B + 8 * p, r)}')
        for r in range(4):
            e(f'v_cvt_pk_bf16_f32 v{B + r}, v{PRE + 2 * r}, v{PRE + 2 * r + 1}')
        e(f'buffer_store_dwordx4 {vr(B, 4)}, v{vOA}, {srd(S_OUT)}, s{sT} offen sc1')
        if 'probe' in self.opt:
            e.wait(vm='all')
            self.stamp(13)
            e.label('Lprobe')
            e('s_sleep 1')
            e(f's_memrealtime s[{sSTMP}:{sSTMP + 1}]')
            e('s_waitcnt lgkmcnt(0)')
            e(f's_sub_u32 s{sSTMP}, s{sSTMP}, s{sNON if self.opt["probe"] == 99 else sSTAMP}')
            e(f's_cmp_lt_u32 s{sSTMP}, 6000')
            e('s_cbranch_scc1 Lprobe')
        if self.stamps:
            e.wait(vm='all')
            self.stamp(13)
            e(f's_lshl_b32 s{sT}, s2, 3')
            e(f's_add_u32 s{sT}, s{sT}, s{sW}')
            e(f's_lshl_b32 s{sT}, s{sT}, 6')
            e(f's_add_u32 s{sT}, s{sT}, {WS_ST}')
            e('s_waitcnt lgkmcnt(0)')
            en = [i for i in range(14) if (self.opt.get('smask', 0x2001) | 0x2001) >> i & 1]
            for k, i in enumerate(en):
                e(f'v_mov_b32 v{B + 8 + i}, s{sSTAMP + 2 * k}')
            e('s_mov_b64 exec, 1')
            for i in range(4):
                e(f'buffer_store_dwordx4 {vr(B + 8 + 4 * i, 4)}, off, {srd(S_WS)}, s{sT} offset:{16 * i}')
        e.label('Lexit')
        e('s_endpgm')

    def safe_softmax(self):
        e = self.e
        e.paths = [p for p in Emitter().paths]
        own = vO[3]
        M = vO[0]
        S = vS[0]
        e.label('Lsafe')
        e(f's_and_b32 s{sT + 2}, s{sKVB}, {0xffffffff ^ (3 << 15)}')
        e(f's_mov_b32 s{sT + 3}, s{sT + 2}')
        e(f's_mov_b32 s{sT + 4}, 64')
        e(f'v_mov_b32 v{M}, 0xff800000')
        e.label('Lsafe1')
        e(f'buffer_load_dwordx4 {vr(vK[0], 4)}, v{vL16}, {srd(S_WS)}, s{sT + 3} offen sc1')
        e(f's_add_u32 s{sT + 3}, s{sT + 3}, 2048')
        e('s_waitcnt vmcnt(0)')
        e(f'v_mfma_f32_32x32x16_bf16 {vr(S, 16)}, {vr(vK[0], 4)}, {vr(vQ[3], 4)}, 0')
        for i in range(0, 16, 2):
            e(f'v_max3_f32 v{M}, v{M}, v{S + i}, v{S + i + 1}')
        e(f's_sub_u32 s{sT + 4}, s{sT + 4}, 1')
        e(f's_cmp_lg_u32 s{sT + 4}, 0')
        e('s_cbranch_scc1 Lsafe1')
        e(f'v_mov_b32 v{M + 1}, v{M}')
        e(f'v_permlane32_swap_b32 v{M}, v{M + 1}')
        e(f'v_max_f32 v{M}, v{M}, v{M + 1}')
        e(f'v_sub_f32 v{M}, 0, v{M}')
        for i in range(1, 16):
            e(f'v_mov_b32 v{M + i}, v{M}')
        for i in range(16):
            e(f'v_mov_b32 v{own + i}, 0')
        e(f's_mov_b32 s{sT + 3}, s{sT + 2}')
        e(f's_mov_b32 s{sT + 4}, 64')
        e.label('Lsafe2')
        e(f'buffer_load_dwordx4 {vr(vK[0], 4)}, v{vL16}, {srd(S_WS)}, s{sT + 3} offen sc1')
        e(f's_mov_b64 exec, s[{sVM}:{sVM + 1}]')
        e(f'buffer_load_dwordx4 {vr(vV[0], 4)}, v{vVA}, {srd(S_WS)}, s{sT + 3} offen offset:1024 sc1')
        e(f'buffer_load_dwordx4 {vr(vV[0] + 4, 4)}, v{vVA}, {srd(S_WS)}, s{sT + 3} offen offset:1536 sc1')
        e('s_mov_b64 exec, -1')
        e(f's_add_u32 s{sT + 3}, s{sT + 3}, 2048')
        e('s_waitcnt vmcnt(0)')
        e(f'v_mfma_f32_32x32x16_bf16 {vr(S, 16)}, {vr(vK[0], 4)}, {vr(vQ[3], 4)}, {vr(M, 16)}')
        for i in range(16):
            e(f'v_exp_f32 v{S + i}, v{S + i}')
        for hi in range(2):
            e(f'v_smfmac_f32_32x32x32_bf16 {vr(own, 16)}, {vr(vV[0] + 4 * hi, 4)}, {vr(S + 8 * hi, 8)}, v{vIDX}')
        e(f's_sub_u32 s{sT + 4}, s{sT + 4}, 1')
        e(f's_cmp_lg_u32 s{sT + 4}, 0')
        e('s_cbranch_scc1 Lsafe2')
        e('s_nop 15')
        e(f'v_fma_f32 v{vO[0] + 28}, v{own + 8}, v{vCO}, v{own + 8}')
        e(f'v_rcp_f32 v{vO[0] + 28}, v{vO[0] + 28}')
        e(f's_cmp_lg_u32 s{sG}, 0')
        e('s_cbranch_scc1 Lsafe_done1')
        e('s_branch Lsafe_done0')

    def build(self):
        e = self.e
        self.prologue()
        e.drop = (None, ('v_mfma',), ('v_mfma', 'ds_read_b64_tr'), ('ds_read_b64_tr',))[self.opt.get('x_drop', 0)]
        snap = e.snapshot()
        e.label('Lload')
        self.phase_a_loader()
        self.phase_f(1, 3)
        e('s_branch Lffn')
        ends = e.snapshot()
        cends = []
        for ty in (0, 1):
            e.restore(snap)
            e.label(f'Lcomp{ty}')
            self.phase_a_compute(ty)
            if ty == 0:
                e('s_branch Lpack')
            cends += e.snapshot()
        e.paths = cends
        e.label('Lpack')
        e(f's_mul_i32 s{sT}, s{sJ}, 43691')
        e(f's_lshr_b32 s{sT}, s{sT}, 17')
        e(f's_mul_i32 s{sT}, s{sT}, 3')
        for i in range(4):
            self.pack8(ACA + 8 * i, ACA + 4 * i)
            if i < self.opt['qe']:
                self.kv_store(i)
        e(f's_cmp_eq_u32 s{sT}, s{sJ}')
        e('s_cbranch_scc1 Lsix')
        snap = e.snapshot()
        for NC in (2, 3):
            e.restore(snap)
            if NC == 3:
                e.label('Lsix')
            e('s_barrier')
            self.stamp(4)
            self.phase_f(0, NC)
            if NC == 2:
                e('s_branch Lffn')
            ends += e.snapshot()
        e.paths = ends
        e.label('Lffn')
        e.drop = None
        self.attn_loads_late()
        self.stamp(6)
        self.attention()
        self.tail()
        i = 0
        while i < len(self.tail_blocks):
            self.tail_blocks[i]()
            i += 1
        e.label('Lcode_end')
        return self.wrap()

    def wrap(self):
        head = open('gated_mix__softmax_full_mha__glu_gated_geglu__prompt.s.ref').read().split('; Override')[0]
        return head + f"""; @launch grid=(256,1,1) block=(512,1,1) lds={LDS_BYTES}
.amdgcn_target "amdgcn-amd-amdhsa--gfx950"
.text
.globl {KNAME}
.p2align 8
.type {KNAME},@function
{KNAME}:
{self.e.text()}
.section .rodata,"a"
.p2align 6
.amdhsa_kernel {KNAME}
  .amdhsa_next_free_vgpr 256
  .amdhsa_next_free_sgpr 102
  .amdhsa_accum_offset 256
  .amdhsa_group_segment_fixed_size 0
  .amdhsa_kernarg_size 88
  .amdhsa_user_sgpr_count 2
  .amdhsa_user_sgpr_kernarg_segment_ptr 1
  .amdhsa_system_sgpr_workgroup_id_x 1
.end_amdhsa_kernel
"""


if __name__ == '__main__':
    out = sys.argv[1]
    stamps = sys.argv[2] if len(sys.argv) > 2 and sys.argv[2] in ('rt', 'cy') else False
    opt = {}
    for a in sys.argv[2:]:
        if '=' in a:
            k, v = a.split('=')
            opt[k] = int(v, 0)
    g = Gen(stamps=stamps, opt=opt)
    open(out, 'w').write(g.build())
    print('nops inserted:', g.e.nops, 'lines:', len(g.e.lines))
```

```python
import sys, math, struct
from asmlib import Emitter, Win

KNAME = 'gated_mix__softmax_full_mha__glu_gated_geglu__prompt_kernel'

WS_Q = 0
WS_KV = 2 << 20
WS_O = 6 << 20
WS_F1 = 8 << 20
WS_F2 = WS_F1 + 32768
WS_ST = WS_F1 + 65536
WS_H = 9 << 20
HBLK = 86 * 2048
WS_END = 15 << 20

L_GW = 0
L_Z = 1024
SLOT0 = 4096
UPOFF = 12288
QOFF = 24576
L_QX = 147456
L_RING = 4096
RINGW = 7168
L_WO = 65536
L_PRE1 = 131072
L_CNT = 2048
LDS_BYTES = 163840

S_X, S_WQ, S_WF, S_WS, S_H, S_WD, S_WO, S_OUT, S_DBG, S_GW = [4 * i + 4 for i in range(10)]
S_WG = 80
sW, sTT, sG, sJ, sTB, sRB, sCB, sUS = range(44, 52)
sXO, sWO, sFO, sMX, sMW, sMF = range(52, 58)
sNON = 58
sKV, sKVB, sKVI, sHO, sDO, sMD = range(60, 66)
sVM = 66
sT = 68
sGC = 76
sQX = [40, 41, 42, 43]
sQW = 78
sXO2 = 79
sSPIN = 84
sMO = 85
sMG = 3
sO = [4, 5]
sR = 73
sE = [4, 5, 6, 7]
sSTMP = 86
sSTAMP = 88


def region(s):
    return SLOT0 + 28672 * (s % 5)


def srd(b):
    return f's[{b}:{b + 3}]'


def vr(b, n):
    return f'v[{b}:{b + n - 1}]' if n > 1 else f'v{b}'


def fbits(x):
    return '0x%08x' % struct.unpack('<I', struct.pack('<f', x))[0]


vL16 = 1
vXD = [2, 3]
vWD = 4
vFD = 5
vXR = [6, 7]
vWR = [8, 2]
vFR = [9, 10, 11]
FR = 16
NFR = 5
ACA = 36
ACF = 68
vK = [116, 120]
vCH, vIDX, vVA = 124, 126, 127
vQR = 126
QA = ACA + 16
X = 128
vO = [X + 16 * i for i in range(4)]
vQ = [X + 64 + 4 * i for i in range(4)]
vV = [ACA, ACA + 8]
vS = [ACA + 16, X + 80]
vG = [ACF, ACF + 16, ACF + 32, X + 96]
vH = [X + 112, X + 120]
vD = FR
vCO = FR + 8
vDD = [2, 3]
vDR = [12, 13]
vP = 14
vPA = 6
vRW = [7, 8]
vHA = [9, 10]
vKA = 124
vRR = FR + 10

LOG2E = 1.4426950408889634
QSCALE = 0.25 * LOG2E
GC0 = -2.0 * LOG2E * math.sqrt(2.0 / math.pi)
GC1 = GC0 * 0.044715
SPIN = 400000
FL = ('', ' sc1', ' nt', ' sc1 nt')


class Gen:
    def __init__(self, stamps=False, opt=None):
        self.e = Emitter()
        self.stamps = stamps
        self.nst = 0
        self.opt = dict(g2start=5, prio=True, ahead=12, span=12, fah=2, omf=0, lfirst=3, as2=6, ahead2=8, tlb=0, dsplit=1, ys=0, fw=0, fx=0, fh=1, p1i=70, p1c=80, gsp=10, g0=0, fk=2, gk=3, lpre=60, cpre=40, lfk=20, llast=2, lsp2=1,
                        pa=7, pb=54, pc=200, ol=3, yl=3, woi=8, qw=12, vs=11, qe=2, q0=12, qsp=2, om=2, s2t=5, rot=4, rj=0, zm=1, hl=0, hsp=1,
                        fs=7, lp=1, eb=1, sl1=4, sl2=8, sl3=2, lsp=4)
        if opt:
            self.opt.update(opt)
        self.tail_blocks = []

    def stamp(self, idx, sset=0):
        e = self.e
        if self.opt.get('sset') == 4:
            if 7 <= idx <= 9 and sset != 4:
                return
        elif 7 <= idx <= 12 and sset != self.opt.get('sset', 0):
            return
        if self.opt.get('probe') == idx:
            e(f's_memrealtime s[{sSTAMP}:{sSTAMP + 1}]')
            e('s_waitcnt lgkmcnt(0)')
            for p in e.paths:
                p.lg = []
        if not self.stamps or not (self.opt.get('smask', 0x2001) | 0x2001) >> idx & 1:
            return
        en = [i for i in range(14) if (self.opt.get('smask', 0x2001) | 0x2001) >> i & 1]
        assert len(en) <= 7
        r = sSTAMP + 2 * en.index(idx)
        e(f"{'s_memtime' if self.stamps == 'cy' else 's_memrealtime'} s[{r}:{r + 1}]")

    def dma_list(self, s):
        e = self.e
        slot = region(s)
        out = []
        tag = f'st{s}'

        def mk(m0s, m0c, va, rs, so, imm=0, pre=()):
            def f(part=3):
                if part & 1:
                    e(f's_add_u32 m0, s{m0s}, {m0c - imm}')
                    for p in pre:
                        e(p)
                if part & 2:
                    e(f'buffer_load_dwordx4 v{va}, {srd(rs)}, s{so} offen' + (f' offset:{imm}' if imm else '') + (FL[self.opt['fx']] if rs == S_X else '') + ' lds', tag)
            f.dma = True
            out.append(f)
        t = sT + 6

        def step(so, n):
            if s % 8 == 0:
                return ()
            if s % (8 // self.opt['rot']):
                return [f's_add_u32 s{so}, s{so}, {n}']
            return [f's_cmp_eq_u32 s{sR}, {-s % 8}', f's_cselect_b32 s{t}, -7, 1', f's_mul_i32 s{t}, s{t}, {n}', f's_add_u32 s{so}, s{so}, s{t}']
        if s < 8:
            for i in range(4):
                mk(sMX, slot + i * 1024, vXD[i % 2], S_X, sXO if i < 2 else sXO2,
                   pre=step(sXO, 128) if i == 0 else ([f's_add_u32 s{sXO2}, s{sXO}, 16384'] if i == 1 else ()))
            for i in range(2):
                mk(sMW, slot + 16384 + i * 1024, vWD, S_WQ, sWO, imm=64 * i, pre=step(sWO, 64 * 3072) if i == 0 else ())
        else:
            mk(sMF, slot + QOFF, vWD, S_WQ, sQW, pre=step(sQW, 64 * 3072))
            for h in range(2):
                for i in range(3):
                    mk(sMG, slot + h * UPOFF + i * 1024, vFD, S_WF if h else S_WG, sFO, imm=64 * i,
                       pre=step(sFO, 64 * 2752) if h + i == 0 else ())
        return out

    def prologue(self):
        e = self.e
        self.stamp(0)
        e('s_cmp_ge_u32 s2, 256')
        e('s_cbranch_scc1 Lexit')
        e(f's_load_dwordx2 s[{S_X}:{S_X + 1}], s[0:1], 0')
        e(f's_load_dwordx2 s[{S_WQ}:{S_WQ + 1}], s[0:1], 8')
        e(f's_getpc_b64 s[{sT}:{sT + 1}]')
        e.label('Lpfbase')
        e(f's_lshr_b32 s{sT + 2}, s2, 3')
        e(f's_lshl_b32 s{sT + 2}, s{sT + 2}, 11')
        e(f'v_lshl_add_u32 v16, v0, 2, s{sT + 2}')
        e('v_min_u32 v16, Lcode_end-Lpfbase-4, v16')
        e('v_lshrrev_b32 v2, 6, v0')
        e('s_mov_b32 exec_lo, 1')
        e('s_mov_b32 exec_hi, 1')
        e(f'global_load_dword v{vK[1]}, v16, s[{sT}:{sT + 1}]', 'pf')
        e('s_mov_b64 exec, -1')
        e(f'v_readfirstlane_b32 s{sW}, v2')
        e('v_and_b32 v0, 63, v0')
        e(f's_xor_b32 s{sW}, s{sW}, 4')
        e(f's_and_b32 s{sTT}, s{sW}, 3')
        e(f's_lshr_b32 s{sG}, s{sW}, 2')
        e('s_cbranch_scc1 Lload')
        e('s_bitcmp1_b32 s2, 3')
        e('s_cbranch_scc1 Lcomp1')
        e('s_branch Lcomp0')

    def ids_tb(self):
        e = self.e
        R = self.opt['rot']
        e(f's_and_b32 s{sTB}, s2, 4')
        e(f's_lshl_b32 s{sTB}, s{sTB}, 1')
        e(f's_lshr_b32 s{sT + 6}, s2, 5')
        e(f's_add_u32 s{sTB}, s{sTB}, s{sT + 6}')
        e(f's_and_b32 s{sR}, s{sTB}, {R - 1}')
        e(f's_mul_i32 s{sR}, s{sR}, {8 // R}')

    def more_args(self, g):
        e = self.e
        lst = [(S_WG, 32), (S_WF, 40)] if g else [(S_GW, 56)]
        for b, off in lst + [(S_DBG, 72), (S_WS, 80), (S_H, 80), (S_WD, 48), (S_WO, 16), (S_OUT, 64)]:
            e(f's_load_dwordx2 s[{b}:{b + 1}], s[0:1], {off}')
        e(f'v_lshlrev_b32 v{vL16}, 4, v0')

    def ids_j(self):
        e = self.e
        e(f's_and_b32 s{sJ}, s2, 3')
        e(f's_lshl_b32 s{sJ}, s{sJ}, 2')
        e(f's_bfe_u32 s{sT + 6}, s2, 0x20003')
        e(f's_add_u32 s{sJ}, s{sJ}, s{sT + 6}')

    def quad_rows(self, dst, stride, t):
        e = self.e
        e(f'v_lshrrev_b32 v{t}, 4, v0')
        e(f'v_and_b32 v{t}, 2, v{t}')
        e(f'v_xor_b32 v{t}, v{t}, v0')
        e(f'v_and_b32 v{t}, 3, v{t}')
        e(f'v_lshrrev_b32 v{dst}, 2, v0')
        e(f'v_mul_u32_u24 v{dst}, {stride}, v{dst}')
        e(f'v_lshl_add_u32 v{dst}, v{t}, 4, v{dst}')

    def tr_base(self, dst, gstride, t):
        e = self.e
        e(f'v_lshrrev_b32 v{dst}, 5, v0')
        e(f'v_mul_u32_u24 v{dst}, {gstride}, v{dst}')
        e(f'v_bfe_u32 v{t}, v0, 4, 1')
        e(f'v_mul_u32_u24 v{t}, {512 + 32}, v{t}')
        e(f'v_add_u32 v{dst}, v{dst}, v{t}')
        e(f'v_bfe_u32 v{t}, v0, 2, 2')
        e(f'v_lshl_add_u32 v{dst}, v{t}, 6, v{dst}')
        e(f'v_and_b32 v{t}, 3, v0')
        e(f'v_lshl_add_u32 v{dst}, v{t}, 3, v{dst}')

    def srd_consts(self, lst):
        for b, n in lst:
            self.e(f's_mov_b32 s{b + 2}, {n}')
            self.e(f's_mov_b32 s{b + 3}, 0x20000')

    def x_read_addrs(self):
        e = self.e
        e('v_and_b32 v16, 15, v0')
        e(f's_lshl_b32 s{sT + 6}, s{sTT}, 12')
        e('v_lshrrev_b32 v17, 4, v0')
        e('v_lshrrev_b32 v18, 1, v16')
        e('v_xor_b32 v18, v18, v17')
        e('v_lshlrev_b32 v18, 4, v18')
        e('v_lshl_add_u32 v18, v16, 7, v18')
        e(f'v_add_u32 v{vXR[0]}, s{sT + 6}, v18')
        e(f'v_xor_b32 v{vXR[1]}, 64, v{vXR[0]}')

    def setup2(self, g, ty):
        e = self.e
        t = sT
        self.srd_consts(([(S_DBG, 256), (S_WG, 512 * 2752), (S_WF, 512 * 2752)] if g else []) +
                        [(S_WS, WS_END), (S_H, HBLK), (S_WD, 1376 * 1024), (S_WO, 512 * 1024), (S_OUT, 2048 * 1024)])
        e(f's_lshl_b32 s{sUS}, s{sJ}, 4')
        e(f's_add_u32 s{sUS}, s{sUS}, 2')
        e(f's_mul_i32 s{sUS}, s{sUS}, 43691')
        e(f's_lshr_b32 s{sUS}, s{sUS}, 17')
        if g:
            e(f's_lshl_b32 s{t + 1}, s{sR}, 2')
            e(f's_add_u32 s{t + 1}, s{t + 1}, s{sTT}')
            e(f's_mul_i32 s{sFO}, s{t + 1}, {16 * 2752}')
            e(f's_lshr_b32 s{t}, s{sUS}, 1')
            e(f's_lshl_b32 s{t}, s{t}, 6')
            e(f's_add_u32 s{sFO}, s{sFO}, s{t}')
            e(f's_mul_i32 s{sQW}, s{t + 1}, {16 * 3072}')
            e(f's_lshl_b32 s{t}, s{sJ}, 6')
            e(f's_add_u32 s{sQW}, s{sQW}, s{t}')
            e(f's_mul_i32 s{sMG}, s{sTT}, 3072')
            e(f's_lshl_b32 s{sMF}, s{sTT}, 10')
            self.quad_rows(vFD, 2752, vP)
        first = 0 if g else 3
        self.tr_base(vP + 1, 3072, vP)
        for c in range(3):
            e(f's_and_b32 s{t}, s{sUS}, 1')
            e(f's_add_u32 s{t}, s{t}, {first + c}')
            e(f's_lshr_b32 s{t + 1}, s{t}, 1')
            e(f's_lshl_b32 s{t + 1}, s{t + 1}, 10')
            e(f's_and_b32 s{t}, s{t}, 1')
            e(f's_lshl_b32 s{t}, s{t}, 5')
            e(f'v_xor_b32 v{vFR[c]}, s{t}, v{vP + 1}')
            e(f'v_add_u32 v{vFR[c]}, s{t + 1}, v{vFR[c]}')
        e(f'v_lshrrev_b32 v{vP}, 5, v0')
        e(f'v_lshlrev_b32 v{vVA}, 11, v{vP}')
        e(f'v_sub_u32 v{vQR}, v{vP + 1}, v{vVA}')
        if g:
            e(f'v_xor_b32 v{vQR}, 32, v{vQR}')
        e(f's_and_b32 s{sRB}, s2, 7')
        e(f's_xor_b32 s{sRB}, s{sRB}, 4')
        e(f's_lshl_b32 s{sRB}, s{sRB}, 2')
        e(f's_lshr_b32 s{t}, s2, 6')
        e(f's_add_u32 s{sRB}, s{sRB}, s{t}')
        e(f's_mul_i32 s{t}, s{sRB}, {HBLK}')
        e(f's_add_u32 s{t}, s{t}, {WS_H}')
        e(f's_add_u32 s{S_H}, s{S_H}, s{t}\n    s_addc_u32 s{S_H + 1}, s{S_H + 1}, 0')
        e(f's_bfe_u32 s{sCB}, s2, 0x30003')
        e(f's_mov_b32 s{sVM}, 0xffff')
        e(f's_mov_b32 s{sVM + 1}, 0xffff')
        e(f's_mov_b32 s{sGC}, {fbits(GC1)}')
        e(f's_mov_b32 s{sGC + 1}, s{sGC}')
        e(f'v_and_b32 v{vVA}, 15, v0')
        e(f'v_lshl_add_u32 v{vVA}, v{vP}, 4, v{vVA}')
        e(f'v_lshlrev_b32 v{vVA}, 4, v{vVA}')
        e(f's_lshl_b32 s{t}, s{sTB}, 2')
        e(f's_add_u32 s{t}, s{t}, s{sTT}')
        e(f's_lshr_b32 s{sHO}, s{t}, 1')
        e(f's_mul_i32 s{sHO}, s{sHO}, 86')
        e(f's_add_u32 s{sHO}, s{sHO}, s{sUS}')
        e(f's_lshl_b32 s{sHO}, s{sHO}, 1')
        e(f's_and_b32 s{t + 1}, s{t}, 1')
        e(f's_add_u32 s{sHO}, s{sHO}, s{t + 1}')
        e(f's_lshl_b32 s{sHO}, s{sHO}, 10')
        e(f's_add_u32 s{sHO}, s{sHO}, {WS_H + 2048 * first}')
        e(f's_lshl_b32 s{sMO}, s{t}, 4')
        e(f's_add_u32 s{sMO}, s{sMO}, s{sJ}')
        e(f's_lshl_b32 s{sMO}, s{sMO}, 11')
        e(f's_add_u32 s{sMO}, s{sMO}, {g * 1024 + WS_O}')
        if g == 0:
            e(f's_lshr_b32 s{sE[0]}, s{sJ}, 1')
            e(f's_lshl_b32 s{sE[0]}, s{sE[0]}, 8')
            e(f's_add_u32 s{sE[0]}, s{sE[0]}, s{t}')
            e(f's_lshl_b32 s{sE[0]}, s{sE[0]}, 11')
            e(f's_add_u32 s{sE[0]}, s{sE[0]}, {WS_KV + 1024 * ty}')
            for i in range(1, 4):
                e(f's_add_u32 s{sE[i]}, s{sE[0]}, {262144 * (i >> 1) + 512 * (i & 1) if ty else 131072 * i}')
            if ty:
                e(f'v_bfe_u32 v{vWD}, v0, 4, 1')
                e(f'v_lshl_add_u32 v{vWD}, v{vWD}, 17, v{vVA}')
            else:
                e(f'v_mov_b32 v{vWD}, v{vL16}')
        e(f's_lshl_b32 s{sKVB}, s{sJ}, 3')
        e(f's_add_u32 s{sKVB}, s{sKVB}, s{sW}')
        e(f's_lshl_b32 s{sKVB}, s{sKVB}, 15')
        e(f's_add_u32 s{sKVB}, s{sKVB}, {WS_KV}')
        e(f's_and_b32 s{sKVI}, s{sTB}, 7')
        e(f's_lshl_b32 s{sKVI}, s{sKVI}, 12')
        e(f's_and_b32 s{sKV}, s{sJ}, 14')
        e(f's_lshl_b32 s{sKV}, s{sKV}, 2')
        e(f's_add_u32 s{sKV}, s{sKV}, s{sTT}')
        e(f's_lshl_b32 s{sKV}, s{sKV}, {2 + self.opt["fs"]}')
        e(f's_add_u32 s{sKV}, s{sKV}, {WS_F1}')
        for i in range(4):
            e(f's_add_u32 s{sQX[i]}, s{sTT}, {1 + i}')
            e(f's_and_b32 s{sQX[i]}, s{sQX[i]}, 3')
            e(f's_lshl_b32 s{sQX[i]}, s{sQX[i]}, 10')
            e(f's_add_u32 s{sQX[i]}, s{sQX[i]}, {L_QX + 4096 * g}')
        e(f's_mul_i32 s{sMD}, s{sW}, {RINGW}')
        e(f's_mul_i32 s{sDO}, s{sW}, {11 * 16384}')
        e(f's_lshl_b32 s{t}, s{sCB}, 7')
        e(f's_add_u32 s{sDO}, s{sDO}, s{t}')
        e(f'v_bfe_u32 v{vDR[0]}, v0, 2, 2')
        e(f'v_lshl_add_u32 v{vDR[0]}, v{vP}, 3, v{vDR[0]}')
        e(f'v_lshlrev_b32 v{vDR[0]}, 7, v{vDR[0]}')
        e(f'v_bfe_u32 v{vP}, v0, 4, 1')
        e(f'v_lshl_add_u32 v{vDR[0]}, v{vP}, 5, v{vDR[0]}')
        e(f'v_bfe_u32 v{vP}, v0, 3, 1')
        e(f'v_lshl_add_u32 v{vDR[0]}, v{vP}, 6, v{vDR[0]}')
        e(f'v_and_b32 v{vP}, 3, v0')
        e(f'v_lshl_add_u32 v{vDR[0]}, v{vP}, 3, v{vDR[0]}')
        e(f'v_add_u32 v{vDR[0]}, s{sMD}, v{vDR[0]}')
        e(f'v_xor_b32 v{vDR[1]}, 64, v{vDR[0]}')

    def phase_a_loader(self):
        e = self.e
        o = self.opt
        seq = []
        bound = []
        last = 7 + o['fah']
        for s in range(last + 1):
            bound.append(len(seq))
            seq += self.dma_list(s)
        bound.append(len(seq))
        pos = 0

        def issue(upto):
            nonlocal pos
            while pos < min(upto, len(seq)):
                seq[pos]()
                pos += 1
        self.ids_tb()
        e('v_lshrrev_b32 v16, 3, v0')
        e('v_lshrrev_b32 v17, 4, v0')
        e('v_and_b32 v18, 7, v0')
        e('v_xor_b32 v18, v18, v17')
        e('v_lshlrev_b32 v18, 4, v18')
        e(f'v_lshl_add_u32 v{vXD[0]}, v16, 10, v18')
        e(f'v_xor_b32 v{vXD[1]}, 64, v{vXD[0]}')
        e(f'v_add_u32 v{vXD[1]}, 8192, v{vXD[1]}')
        e(f's_lshl_b32 s{sXO}, s{sTB}, 2')
        e(f's_add_u32 s{sXO}, s{sXO}, s{sTT}')
        e(f's_lshl_b32 s{sXO}, s{sXO}, 8')
        e(f's_add_u32 s{sXO}, s{sXO}, s{sR}')
        e(f's_lshl_b32 s{sXO}, s{sXO}, 7')
        e(f's_lshl_b32 s{sMX}, s{sTT}, 12')
        self.srd_consts(((S_X, 2048 * 1024),))
        e('s_waitcnt lgkmcnt(0)')
        self.stamp(1)
        issue(4)
        self.ids_j()
        self.srd_consts(((S_WQ, 512 * 3072),))
        self.quad_rows(vWD, 3072, 16)
        e(f's_lshr_b32 s{sT}, s{sJ}, 1')
        e(f's_and_b32 s{sT + 1}, s{sJ}, 1')
        e(f's_lshl_b32 s{sT + 1}, s{sT + 1}, 3')
        e(f's_add_u32 s{sT}, s{sT}, s{sT + 1}')
        e(f's_lshl_b32 s{sT}, s{sT}, 7')
        e(f's_lshl_b32 s{sWO}, s{sR}, 2')
        e(f's_add_u32 s{sWO}, s{sWO}, s{sTT}')
        e(f's_mul_i32 s{sWO}, s{sWO}, {16 * 3072}')
        e(f's_add_u32 s{sWO}, s{sWO}, s{sT}')
        e(f's_addk_i32 s{sWO}, 1024')
        e(f's_lshl_b32 s{sMW}, s{sTT}, 11')
        issue(6)
        self.more_args(1)
        issue(12)
        self.x_read_addrs()
        e('s_waitcnt lgkmcnt(0)')
        fill = self.split(lambda: self.setup2(1, 0)) + self.split(self.v_const)
        for _ in range(min(len(fill), o['lpre'])):
            fill.pop(0)()
        D = o['ahead']
        issue(bound[1] + D)
        wx = Win(e, vXR)
        for s in range(8):
            slot = region(s)
            e.wait(vm=f'st{s}', lg='all')
            e('s_barrier')
            if s in (0, 4):
                self.stamp(2 + s // 4)
            end = max(pos, min(bound[s + 2] + (D if s < o['as2'] else o['ahead2']), bound[min(max(s + 4, 5), last + 1)]))
            issue(min(end, pos + o['lfirst']))
            wx.ensure(slot, slot + 2048)
            for ks in range(2):
                n = 2 * s + ks
                for tg in range(2):
                    e(f'ds_read_b128 {vr(X + 8 * n + 4 * tg, 4)}, v{vXR[ks]} offset:{wx.off(slot + 2048 * tg)}', f'r{n}')
            if s == 6:
                e(f'buffer_load_dwordx2 v[{vK[0]}:{vK[0] + 1}], off, {srd(S_DBG)}, 0 sc1', 'non')

            work = [fill.pop(0) for _ in range(min(len(fill), o['lfk']))]
            gaps = max(1, end - pos - o['llast'] + 1)
            done = 0
            for k in range(gaps):
                if k:
                    issue(pos + 1)
                upto = len(work) * (k + 1) // gaps if o['lsp2'] else (len(work) if k == gaps - 1 else 0)
                while done < upto:
                    work[done]()
                    done += 1
            issue(end)
        assert not fill
        self.left = seq[pos:]
        e.wait(vm='st8', lg='all')
        e('s_barrier')
        self.stamp(4)

    def pack8(self, src, dst):
        e = self.e
        for r in range(4):
            e(f'v_cvt_pk_bf16_f32 v{dst + r}, v{src + 2 * r}, v{src + 2 * r + 1}')
        for r in range(2):
            e(f'v_permlane16_swap_b32 v{dst + r}, v{dst + 2 + r}')

    def phase_a_compute(self, ty):
        e = self.e
        NC = 4
        self.more_args(0)
        if self.opt['tlb']:
            e(f's_load_dwordx4 s[{S_WG}:{S_WG + 3}], s[0:1], 32')
        self.ids_tb()
        self.ids_j()
        e(f's_memrealtime s[{sNON}:{sNON + 1}]')
        e('v_mov_b32 v16, 0')
        e(f'v_mov_b32 v17, {L_CNT}')
        e('ds_write2_b32 v17, v16, v16 offset0:0 offset1:1', 'z0')
        self.srd_consts(((S_DBG, 256), (S_GW, 1024)))
        ZA, GWB, vGA = ACF, ACF + 8, vXD[1]
        e(f's_lshl_b32 s{sT}, s{sR}, 7')
        e(f'v_add_u32 v{vP}, s{sT}, v{vL16}')
        e(f'v_and_b32 v{vP}, 1023, v{vP}')
        e(f'v_and_b32 v{vGA}, 48, v0')
        e(f's_mov_b32 m0, {L_GW}')
        self.x_read_addrs()
        self.tr_base(vWR[0], NC * 512, 16)
        e(f'v_xor_b32 v{vWR[1]}, 32, v{vWR[0]}')
        e('s_waitcnt lgkmcnt(0)')
        for p in e.paths:
            p.lg = []
        self.stamp(1)
        e(f'buffer_load_dwordx4 v{vP}, {srd(S_GW)}, 0 offen lds', 'gw')
        if self.opt['tlb']:
            G = self.opt['tlb']
            lab = e.newlabel('tl')
            e(f's_cmp_lg_u32 s{sTT}, 3')
            e(f's_cbranch_scc1 {lab}')
            snap = e.snapshot()
            e(f'v_lshlrev_b32 v16, {G}, v0')
            e(f's_mov_b64 exec, {hex((1 << -(-(512 * 2752) >> G)) - 1)}')
            for k in range(2):
                e(f'global_load_dword v{vK[1] + 1}, v16, s[{S_WG + 2 * k}:{S_WG + 2 * k + 1}]', 'tlb')
            e('s_mov_b64 exec, -1')
            e.paths = e.paths + snap
            e.label(lab)
        if not ty:
            e(f's_or_b32 s{sT + 6}, s2, s{sW}')
            lab = e.newlabel('nn')
            e(f's_cbranch_scc1 {lab}')
            snap = e.snapshot()
            e(f's_or_b32 s{sNON + 1}, s{sNON + 1}, 0x80000000')
            e(f'v_mov_b32 v16, s{sNON}')
            e(f'v_mov_b32 v17, s{sNON + 1}')
            e('s_mov_b64 exec, 1')
            e(f'buffer_store_dwordx2 v[16:17], off, {srd(S_DBG)}, 0 sc1', 'nst')
            e('s_mov_b64 exec, -1')
            e.paths = e.paths + snap
            e.label(lab)
        fill = self.split(lambda: self.setup2(0, ty))
        for _ in range(min(len(fill), self.opt['cpre'])):
            fill.pop(0)()
        LA = 4
        wx = Win(e, vXR)
        ww = Win(e, vWR)
        M = 16 * NC
        GL = 2

        def gate(n, buf):
            for tg in range(2):
                z = vr(ZA + 4 * tg, 4)
                e(f'v_mfma_f32_16x16x32_bf16 {z}, {vr(buf, 4)}, {vr(X + 8 * n + 4 * tg, 4)}, {z if n else 0}')

        def reads(m, rd):
            n, ct = divmod(m, NC)
            s, ks = divmod(n, 2)
            slot = region(s)
            if m % (2 * NC) == 0 and rd == 0:
                e('s_barrier')
                if s in (0, 4):
                    self.stamp(2 + s // 4)
                wx.ensure(slot, slot + 2048)
                ww.ensure(slot + 16384, slot + 24576)
            if ct == 0:
                e(f'ds_read_b128 {vr(X + 8 * n + 4 * rd, 4)}, v{vXR[ks]} offset:{wx.off(slot + 2048 * rd)}', f'a{m}')
            if ct == 2 and rd == 0 and n >= GL:
                e.wait(vm='gw')
                e(f'ds_read_b128 {vr(GWB + 4 * (n % 2), 4)}, v{vGA} offset:{L_GW + 64 * (n - GL)}', f'a{m}')
            t = slot + 16384 + ks * NC * 1024 + (ct >> 1) * 1024 + rd * 256
            e(f'ds_read_b64_tr_b16 {vr(FR + 4 * (m % NFR) + 2 * rd, 2)}, v{vWR[ct & 1]} offset:{ww.off(t)}', f'a{m}')

        for m in range(LA):
            reads(m, 0)
            reads(m, 1)
        for m in range(M):
            n, ct = divmod(m, NC)
            e.wait(lg=f'a{m}')
            for tg in range(2):
                acc = vr(ACA + 16 * (ct >> 1) + 8 * tg + 4 * (ct & 1) if ty else ACA + 8 * ct + 4 * tg, 4)
                a, b = vr(FR + 4 * (m % NFR), 4), vr(X + 8 * n + 4 * tg, 4)
                if ty:
                    a, b = b, a
                e(f'v_mfma_f32_16x16x32_bf16 {acc}, {a}, {b}, {acc if n else 0}')
                if m + LA < M:
                    reads(m + LA, tg)
                if tg == 0:
                    for _ in range(2):
                        if fill:
                            fill.pop(0)()
            if ct == 2 and n >= GL:
                gate(n - GL, GWB + 4 * (n % 2))
            if m == M - LA - 1:
                for k in range(GL):
                    e(f'ds_read_b128 {vr(GWB + 8 + 4 * k, 4)}, v{vGA} offset:{L_GW + 64 * (16 - GL + k)}', 'gl')
            if m == M * 7 // 8:
                e(f'buffer_load_dwordx2 v[{vK[0]}:{vK[0] + 1}], off, {srd(S_DBG)}, 0 sc1', 'non')
        assert not fill
        e.wait(lg='gl')
        for k in range(GL):
            gate(16 - GL + k, GWB + 8 + 4 * k)

    def z_write(self):
        e = self.e
        e(f'v_and_b32 v{vP}, 16, v0')
        e(f'v_cmp_eq_u32 vcc, 0, v{vP}')
        e(f's_lshl_b32 s{sT + 1}, s{sTT}, 8')
        e(f'v_lshl_add_u32 v{vP}, v0, 2, s{sT + 1}')
        e(f'v_cndmask_b32 v{vP + 1}, v{ACF + 4}, v{ACF}, vcc')
        e(f'ds_write_b32 v{vP}, v{vP + 1} offset:{L_Z}', 'zw')

    def kv_store(self, i):
        self.e(f'buffer_store_dwordx4 {vr(ACA + 4 * i, 4)}, v{vWD}, {srd(S_WS)}, s{sE[i]} offen sc1', 'qst')

    def spin(self, name, reload, check, sleep=2):
        e = self.e
        lr, lc = e.newlabel(name + 'r'), e.newlabel(name + 'c')
        check()
        e(f's_cbranch_vccnz {lr}')
        e.label(lc)

        def blk():
            e.paths = [p for p in Emitter().paths]
            e.label(lr)
            e(f's_mov_b32 s{sSPIN}, {SPIN}')
            ll = e.newlabel(name + 'l')
            e.label(ll)
            e(f's_sleep {sleep}')
            reload()
            e('s_waitcnt vmcnt(0)')
            check()
            e(f's_cbranch_vccz {lc}')
            e(f's_sub_u32 s{sSPIN}, s{sSPIN}, 1')
            e(f's_cbranch_scc0 {ll}')
            e(f's_branch {lc}')
        self.tail_blocks.append(blk)

    def flag_store(self, soff, tmp):
        e = self.e
        e(f'v_mov_b32 v{tmp}, s{sNON}')
        e(f'v_mov_b32 v{tmp + 1}, s{sNON + 1}')
        e('s_mov_b64 exec, 1')
        e(f'buffer_store_dwordx2 v[{tmp}:{tmp + 1}], off, {srd(S_WS)}, s{soff} sc1', 'flag')
        e('s_mov_b64 exec, -1')

    def kv_load(self, it):
        e = self.e
        b = it % 2

        def k():
            e(f'buffer_load_dwordx4 {vr(vK[b], 4)}, v{vKA}, {srd(S_WS)}, s{sKVI} offen' + FL[self.opt['fh']], f'k{it}')

        def v():
            e(f's_mov_b64 exec, s[{sVM}:{sVM + 1}]')
            e(f'buffer_load_dwordx4 {vr(vV[b], 4)}, v{vKA + 1}, {srd(S_WS)}, s{sKVI} offen offset:1024' + FL[self.opt['fh']], f'v{it}')
            e(f'buffer_load_dwordx4 {vr(vV[b] + 4, 4)}, v{vKA + 1}, {srd(S_WS)}, s{sKVI} offen offset:1536' + FL[self.opt['fh']], f'v{it}')
            e('s_mov_b64 exec, -1')
        return k, v

    def kv_adv(self, part=3):
        if part & 1:
            self.e(f's_addk_i32 s{sKVI}, 2048')
        if part & 2:
            self.e(f's_bitset0_b32 s{sKVI}, 15')

    def gelu(self, c, pk=True):
        e = self.e
        acc = ACF + 16 * c
        T = ACA + 16
        P = lambda b, i: vr(b + 2 * i, 2)
        if not pk:
            real = e

            def e(text):
                if not text.startswith('v_pk_'):
                    return real(text)
                op, rest = text.split(None, 1)
                for h in range(2):
                    ops = [f'{o[0]}{int(o[2:o.index(":")]) + h}' for o in rest.split(', ')]
                    real(op.replace('v_pk_', 'v_') + ' ' + ', '.join(ops))
        for i in range(4):
            e(f'v_pk_mul_f32 {P(T, i)}, {P(acc, i)}, {P(acc, i)}')
        for i in range(4):
            e(f'v_pk_fma_f32 {P(T, i)}, {P(T, i)}, s[{sGC}:{sGC + 1}], {vr(T + 8, 2)}')
        for i in range(4):
            e(f'v_pk_mul_f32 {P(T, i)}, {P(T, i)}, {P(acc, i)}')
        for i in range(8):
            e(f'v_exp_f32 v{T + i}, v{T + i}')
        for i in range(4):
            e(f'v_pk_mul_f32 {P(acc, i)}, {P(acc, i)}, {P(acc + 8, i)}')
        for i in range(4):
            ch = vr(T + 10 + 2 * (i // 2), 2)
            e(f'v_pk_fma_f32 {P(T, i)}, {P(T, i)}, {ch}, {ch}')
        for i in range(8):
            e(f'v_rcp_f32 v{T + i}, v{T + i}')
        for i in range(4):
            e(f'v_pk_mul_f32 {P(acc, i)}, {P(acc, i)}, {P(T, i)}')
        for i in (0, 2, 1, 3):
            e(f'v_cvt_pk_bf16_f32 v{acc + 8 + i}, v{acc + 2 * i}, v{acc + 2 * i + 1}')
        for r in range(2):
            e(f'v_permlane16_swap_b32 v{acc + 8 + r}, v{acc + 10 + r}')

    def h_store(self, c):
        e = self.e
        e(f's_add_u32 s{sT}, s{sHO}, {2048 * c}')
        e(f'buffer_store_dwordx4 {vr(ACF + 16 * c + 8, 4)}, v{vL16}, {srd(S_WS)}, s{sT} offen sc1', 'hst')

    def split(self, fn):
        real = self.e
        rec = []

        class Rec:
            def __call__(s, text, tag=None):
                rec.append(('i', text, tag))

            def wait(s, vm=None, lg=None):
                rec.append(('w', vm, lg))
        self.e = Rec()
        fn()
        self.e = real
        out, grp = [], []
        for r in rec:
            grp.append(r)
            masked = any(x[0] == 'i' and x[1].startswith('s_mov_b64 exec') for x in grp)
            if (masked and r[1] != 's_mov_b64 exec, -1') or r[0] == 'w':
                continue

            def f(grp=grp):
                for x in grp:
                    if x[0] == 'i':
                        real(x[1], x[2])
                    else:
                        real.wait(vm=x[1], lg=x[2])
            out.append(f)
            grp = []
        assert not grp
        return out

    def phase_f(self, g, NC):
        e = self.e
        o = self.opt
        order = []
        for s in range(8):
            for item in ([(0, -1), (1, -1)] if s == 7 else []):
                order.append((2 * s + item[0], -1))
            for ks in range(2):
                order += [(2 * s + ks, r) for r in range(0 if s == 7 else -1, 2 * NC)]
        PS = 4 * NC + 2
        M = 8 * PS
        sc = lambda m: m * PS // 12
        LA = 4
        wf = Win(e, vFR[:NC] + [vQR])
        fill = []
        at = {}
        cur = [0]

        def pin(m, f):
            at.setdefault(m, []).append(f)

        def sched(s, m0, span, extra=()):
            lst = list(extra) + (self.dma_list(s) if g and s <= 15 else [])
            for i, f in enumerate(lst):
                pin(m0 + i * span // len(lst), f)

        def enter(s):
            e.wait(vm=[f'st{s}'] + (['qst'] if s == o['qw'] else []), lg='zw' if s == 9 else None)
            e('s_barrier')
            sched(s + o['fah'], cur[0] + 1, sc(o['span']))
            if s == 9:
                fill.extend(self.split(self.gate_read))
                fill.append(self.nonce_get)
                fill.extend(self.split(self.attn_setup))
                fill.extend(self.split(self.gate_math))
            if s == o['vs'] and g == 0:
                fill.extend(self.split(self.v_const))
            if s == o['qw'] and g == 0:
                fill.insert(0, self.flag1)

        def reads(m, rd):
            s = 8 + m // PS
            if m % PS == 0 and m and rd == 0:
                enter(s)
            n, r = order[m]
            slot = region(s)
            wf.ensure(slot, slot + 28672)
            if r < 0:
                va, t = vQR, slot + QOFF + (n % 2) * 2048 + rd * 256
            else:
                va, t = vFR[r // 2], slot + (r % 2) * UPOFF + (n % 2) * 6144 + rd * 256
            e(f'ds_read_b64_tr_b16 {vr(FR + 4 * (m % NFR) + 2 * rd, 2)}, v{va} offset:{wf.off(t)}', f'f{m}')

        assert o['fah'] <= 3
        if g == 0:
            for i in range(o['qe'], 4):
                pin(sc(o['q0'] + o['qsp'] * (i - o['qe'])), lambda i=i: self.kv_store(i))
            assert sc(o['q0'] + o['qsp'] * (3 - o['qe'])) < (min(o['vs'], o['qw']) - 8) * PS - LA
        sched(8 + o['fah'], 0, PS - LA, self.left if g else ())
        for m in range(LA):
            reads(m, 0)
            reads(m, 1)
        if o['prio']:
            pin(sc(50), lambda: e('s_setprio 3'))
        for m in range(M):
            cur[0] = m
            n, r = order[m]
            e.wait(lg=f'f{m}')
            for tg in range(2):
                acc = vr((QA if r < 0 else ACF + 8 * r) + 4 * tg, 4)
                e(f'v_mfma_f32_16x16x32_bf16 {acc}, {vr(FR + 4 * (m % NFR), 4)}, {vr(X + 8 * n + 4 * tg, 4)}, {acc if n else 0}')
                if m + LA < M:
                    reads(m + LA, tg)
                nf = o['fk'] if m < 7 * PS + 4 else o['gk']
                if tg == 0:
                    lead = at.get(m, [None])[0]
                    if o['dsplit'] and getattr(lead, 'dma', False):
                        lead(1)
                        at[m][0] = lambda lead=lead: lead(2)
                    for _ in range(min(nf, 2) - (lead is not None)):
                        if fill:
                            fill.pop(0)()
            if m % PS == 0 and 2 * PS <= m:
                self.stamp(5 + m // PS, 1)
            if o['omf'] and m == sc(o['omf']):
                fill.extend(self.split(lambda: self.o_mark(X)))
            if m == sc(o['p1i']):
                fill.append(self.poll1_issue)
            if m == sc(o['p1c']):
                fill.append(self.poll1_check)
                for grp in self.attn_loads_early():
                    fill.append(grp)
                    fill.extend([lambda: None] * o['lsp'])
            if m == 5 * PS:
                assert not fill
                fill.extend(self.split(lambda: self.q_addrs(g)))
            if m == 7 * PS + 3:
                fill = self.split(self.q_pack) + fill
            for f in at.pop(m, []):
                f()
            for _ in range(nf - 2):
                if fill:
                    fill.pop(0)()
        assert not at
        for f in fill:
            f()
        e.wait(lg='all')
        e('s_barrier')
        self.stamp(5)
        for i in range(3):
            e(f'ds_read_b128 {vr(vQ[i], 4)}, v{vQ[i]}', f'q{i}')
        side = []
        if o['p1c'] >= 96:
            side = [self.poll1_check] + self.attn_loads_early()
        ge, ends = [], []
        for c in range(NC - 1, -1, -1):
            ge += self.split(lambda: self.gelu(c))
            ends.append((len(ge), c))
        for k, f in enumerate(ge):
            if side and k >= o['g0'] * (1 - g) and k % o['gsp'] == 0:
                side.pop(0)()
            f()
            if not side and ends[0][0] <= k + 1 and ends[0][1] >= o['hl']:
                self.h_store(ends.pop(0)[1])
        assert not side and len(ends) == o['hl']
        if o['ys'] and g == 0:
            assert o['hl'] == 0 and not o['omf']
            self.o_mark()
            self.sig2_a()
            self.sig2_b()
        if o['ys']:
            e('s_setprio 2')

    def q_addrs(self, g):
        e = self.e
        for i in range(3):
            e(f'v_add_u32 v{vQ[i]}, s{sQX[i]}, v{vL16}')
        e(f'v_add_u32 v{vQ[0] + 1}, s{sQX[3]}, v{vL16}')

    def q_pack(self):
        e = self.e
        for r in range(8):
            e(f'v_mul_f32 v{QA + r}, {fbits(QSCALE)}, v{QA + r}')
        self.pack8(QA, vQ[3])
        e(f'ds_write_b128 v{vQ[0] + 1}, {vr(vQ[3], 4)}', 'qw')

    def o_mark(self, d=vH[0]):
        e = self.e
        for i in range(4):
            e(f'v_mov_b32 v{d + i}, -1')
        e(f'buffer_store_dwordx4 {vr(d, 4)}, v{vL16}, {srd(S_WS)}, s{sMO} offen sc1', 'hst')

    def gate_read(self):
        e = self.e
        e(f's_lshl_b32 s{sT}, s{sTT}, 8')
        e(f'v_and_b32 v{vCH}, 15, v0')
        e(f'v_lshl_add_u32 v{vCH}, v{vCH}, 2, s{sT}')
        e(f'v_add_u32 v{vCH}, {L_Z}, v{vCH}')
        e(f'ds_read2_b32 {vr(vCH, 2)}, v{vCH} offset0:0 offset1:16', 'zr')

    def gate_math(self):
        e = self.e
        e.wait(lg='zr')
        for i in range(2):
            e(f'v_mul_f32 v{vCH + i}, {fbits(LOG2E)}, v{vCH + i}')
        for i in range(2):
            e(f'v_exp_f32 v{vCH + i}, v{vCH + i}')
        for i in range(2):
            e(f'v_add_f32 v{vCH + i}, 1.0, v{vCH + i}')
        e(f'v_mov_b32 v{ACA + 24}, {fbits(GC0)}')
        e(f'v_mov_b32 v{ACA + 25}, v{ACA + 24}')
        for i in range(4):
            e(f'v_min_f32 v{ACA + 26 + i}, {fbits(2.0 ** 100)}, v{vCH + i // 2}')
        e(f'v_add_u32 v{vKA}, s{sKVB}, v{vL16}')
        e(f'v_add_u32 v{vKA + 1}, s{sKVB}, v{vVA}')

    def nonce_get(self):
        e = self.e
        e.wait(vm='non')
        ld = lambda: e(f'buffer_load_dwordx2 v[{vK[0]}:{vK[0] + 1}], off, {srd(S_DBG)}, 0 sc1')
        ck = lambda: e(f'v_cmp_eq_u32 vcc, 0, v{vK[0] + 1}')
        self.spin('non', ld, ck)
        e(f'v_readfirstlane_b32 s{sNON}, v{vK[0]}')
        e(f'v_readfirstlane_b32 s{sNON + 1}, v{vK[0] + 1}')

    def flag1(self):
        e = self.e
        lab = e.newlabel('f1')
        e(f's_cmp_lg_u32 s{sW}, 0')
        e(f's_cbranch_scc1 {lab}')
        snap = e.snapshot()
        e(f's_lshl_b32 s{sT + 7}, s{sJ}, 4')
        e(f's_add_u32 s{sT + 7}, s{sT + 7}, s{sTB}')
        e(f's_lshl_b32 s{sT + 7}, s{sT + 7}, {self.opt["fs"]}')
        e(f's_add_u32 s{sT + 7}, s{sT + 7}, {WS_F1}')
        self.flag_store(sT + 7, vK[0])
        e.paths = e.paths + snap
        e.label(lab)

    def attn_setup(self):
        e = self.e
        e(f'v_and_b32 v{vPA}, 4, v0')
        e(f'v_mul_u32_u24 v{vPA}, 3, v{vPA}')
        e(f'v_add_u32 v{vPA}, v{vPA}, v0')
        e(f'v_lshl_add_u32 v{vPA}, v{vPA}, {self.opt["fs"]}, s{sKV}')
        e(f'v_lshrrev_b32 v{vDD[0]}, 3, v0')
        e(f'v_lshrrev_b32 v{vP}, 2, v0')
        e(f'v_and_b32 v{vP}, 4, v{vP}')
        e(f'v_xor_b32 v{vP}, v{vP}, v0')
        e(f'v_and_b32 v{vP}, 7, v{vP}')
        e(f'v_lshlrev_b32 v{vP}, 4, v{vP}')
        e(f'v_lshl_add_u32 v{vDD[0]}, v{vDD[0]}, 10, v{vP}')
        e(f'v_add_u32 v{vDD[1]}, {8192 - 1024}, v{vDD[0]}')
        e(f'v_add_u32 v{vRW[0]}, s{sMD}, v{vL16}')
        e(f'v_lshl_add_u32 v{vRW[1]}, v0, 2, s{sMD}')

    def v_const(self):
        e = self.e
        e(f'v_and_b32 v{vV[0] + 1}, 27, v0')
        e(f'v_cmp_eq_u32 vcc, 16, v{vV[0] + 1}')
        e(f'v_mov_b32 v{vV[0] + 1}, 0x3f803f80')
        e(f'v_cndmask_b32 v{vV[0]}, 0, v{vV[0] + 1}, vcc')
        for i in range(1, 16):
            e(f'v_mov_b32 v{vV[0] + i}, v{vV[0]}')

    def poll1_issue(self):
        e = self.e
        e('s_mov_b64 exec, 0xff')
        e(f'buffer_load_dwordx2 v[{vP}:{vP + 1}], v{vPA}, {srd(S_WS)}, 0 offen sc1', 'p1')
        e('s_mov_b64 exec, -1')

    def poll1_check(self):
        e = self.e
        e.wait(vm='p1')
        e('s_mov_b64 exec, 0xff')
        e(f'v_cmp_ne_u64 vcc, s[{sNON}:{sNON + 1}], v[{vP}:{vP + 1}]')
        e('s_mov_b64 exec, -1')

    def attn_load_groups(self):
        e = self.e
        k0, v0 = self.kv_load(0)
        k1, v1 = self.kv_load(1)

        return [k0, lambda: (v0(), self.kv_adv()), k1, lambda: (v1(), self.kv_adv())]

    def attn_loads_early(self):
        e = self.e
        out = []
        for n, f in enumerate(self.attn_load_groups()):
            def g(f=f, n=n):
                lab = e.newlabel('al')
                e(f's_cbranch_vccnz {lab}')
                if n == 0:
                    skip = e.snapshot()
                    for p in skip:
                        p.g = 'pend'
                else:
                    skip = [p for p in e.paths if p.g == 'pend']
                    e.paths = [p for p in e.paths if p.g != 'pend']
                f()
                e.paths = e.paths + skip
                e.label(lab)
            out.append(g)
        return out

    def attn_loads_late(self):
        e = self.e
        e('s_cbranch_vccnz Llate')
        e.label('Llate_done')
        e.paths = [p for p in e.paths if p.g != 'pend']

        def blk():
            e.paths = [p for p in Emitter().paths]
            e.label('Llate')
            e('s_mov_b64 exec, 0xff')
            ld = lambda: e(f'buffer_load_dwordx2 v[{vP}:{vP + 1}], v{vPA}, {srd(S_WS)}, 0 offen sc1')
            ck = lambda: e(f'v_cmp_ne_u64 vcc, s[{sNON}:{sNON + 1}], v[{vP}:{vP + 1}]')
            ld()
            e('s_waitcnt vmcnt(0)')
            self.spin('p1', ld, ck, self.opt['sl1'])
            e('s_mov_b64 exec, -1')
            for f in self.attn_load_groups():
                f()
            e('s_waitcnt vmcnt(0)')
            e('s_branch Llate_done')
        self.tail_blocks.append(blk)

    def sig2_a(self):
        e = self.e
        e.wait(vm='hst')
        e(f'v_mov_b32 v{vP}, {L_CNT}')
        e(f'v_mov_b32 v{vP + 1}, 1')
        e('s_mov_b64 exec, 1')
        e(f'ds_add_rtn_u32 v{vP}, v{vP}, v{vP + 1}', 'cnt2')
        e('s_mov_b64 exec, -1')

    def sig2_b(self):
        e = self.e
        e.wait(lg='cnt2')
        e(f'v_readfirstlane_b32 s{sT}, v{vP}')
        lab = e.newlabel('f2')
        e(f's_cmp_lg_u32 s{sT}, 7')
        e(f's_cbranch_scc1 {lab}')
        snap = e.snapshot()
        e(f's_lshl_b32 s{sT}, s{sTB}, 4')
        e(f's_add_u32 s{sT}, s{sT}, s{sJ}')
        e(f's_lshl_b32 s{sT}, s{sT}, {self.opt["fs"]}')
        e(f's_add_u32 s{sT}, s{sT}, {WS_F2}')
        self.flag_store(sT, vP)
        e.paths = e.paths + snap
        e.label(lab)

    def attention(self):
        e = self.e
        G0 = self.opt['g2start']
        NT = 64

        def qk(t):
            it, sl = divmod(t, 4)
            if sl == 0:
                e.wait(vm=f'k{it}')
            if it == 0:
                e.wait(lg=f'q{sl}')
            e(f'v_mfma_f32_32x32x16_bf16 {vr(vS[t % 2], 16)}, {vr(vK[it % 2], 4)}, {vr(vQ[sl], 4)}, 0')

        def pv(t, hi):
            it, sl = divmod(t, 4)
            if sl == 0 and not hi:
                e.wait(vm=f'v{it}')
            e(f'v_smfmac_f32_32x32x32_bf16 {vr(vO[sl], 16)}, {vr(vV[it % 2] + 4 * hi, 4)}, {vr(vS[t % 2] + 8 * hi, 8)}, v{vIDX}')

        def ex(t, a, b):
            for i in range(a, b):
                e(f'v_exp_f32 v{vS[t % 2] + i}, v{vS[t % 2] + i}')

        def stage_dma(rs, so, i, tag):
            return lambda: e(f'buffer_load_dwordx4 v{vDD[i]}, {srd(rs)}, s{so} offen' + (' offset:1024' if i else '') + FL[self.opt['fw']] + ' lds', tag)

        def wo_first():
            e(f's_lshl_b32 s{sWO}, s{sW}, 16')
            e(f's_lshl_b32 s{sT}, s{sCB}, 7')
            e(f's_add_u32 s{sWO}, s{sWO}, s{sT}')
            e(f's_lshl_b32 s{sMW}, s{sW}, 13')

        def h_load(step, i):
            return lambda: e(f'buffer_load_dwordx4 {vr(vH[step % 2] + 4 * i, 4)}, v{vHA[i]}, {srd(S_H)}, s{sHO} offen' + FL[self.opt['fh']], f'h{step}')

        def wd_read(step, jj):
            def f():
                e.wait(vm=f'd{step}')
                for rd in range(2):
                    e(f'ds_read_b64_tr_b16 {vr(vD + 4 * jj + 2 * rd, 2)}, v{vDR[jj]} offset:{L_RING + 2048 * (step % 3) + 512 * rd}', f'dr{step}_{jj}')
            return f

        def g2(step, sl):
            jj, i = divmod(sl, 2)
            e.wait(vm=f'h{step}', lg=f'dr{step}_{jj}')
            acc = vr(vG[i * 2 + jj], 16)
            e(f'v_mfma_f32_32x32x16_bf16 {acc}, {vr(vD + 4 * jj, 4)}, {vr(vH[step % 2] + 4 * i, 4)}, {acc if step else 0}')

        def only_g1(fn):
            def f():
                if not self.opt['ys']:
                    return fn()
                lab = e.newlabel('g1')
                e(f's_cmp_eq_u32 s{sG}, 0')
                e(f's_cbranch_scc1 {lab}')
                snap = e.snapshot()
                fn()
                for p in snap:
                    p.vm = [t if t != 'hst' else None for t in p.vm]
                e.paths = e.paths + snap
                e.label(lab)
            return f

        def h_addrs():
            e(f's_and_b32 s{sT}, s{sW}, 1')
            e(f's_lshl_b32 s{sT}, s{sT}, 10')
            e(f'v_add_u32 v{vHA[0]}, s{sT}, v{vL16}')
            e(f'v_xor_b32 v{vHA[1]}, 1024, v{vHA[0]}')
            e(f's_mul_i32 s{sHO}, s{sW}, {11 * 2048}')

        def poll2_issue():
            e(f's_lshr_b32 s{sT + 1}, s{sRB}, 1')
            e(f's_lshl_b32 s{sT + 1}, s{sT + 1}, {4 + self.opt["fs"]}')
            e(f's_add_u32 s{sT + 1}, s{sT + 1}, {WS_F2}')
            e(f'v_lshl_add_u32 v{vPA}, v0, {self.opt["fs"]}, s{sT + 1}')
            e('s_mov_b64 exec, 0xffff')
            e(f'buffer_load_dwordx2 v[{vP}:{vP + 1}], v{vPA}, {srd(S_WS)}, 0 offen sc1', 'p2')
            e('s_mov_b64 exec, -1')

        def poll2_check():
            e.wait(vm='p2')
            e('s_mov_b64 exec, 0xffff')
            ld = lambda: e(f'buffer_load_dwordx2 v[{vP}:{vP + 1}], v{vPA}, {srd(S_WS)}, 0 offen sc1')
            ck = lambda: e(f'v_cmp_ne_u64 vcc, s[{sNON}:{sNON + 1}], v[{vP}:{vP + 1}]')
            self.spin('p2', ld, ck, self.opt['sl2'])
            e('s_mov_b64 exec, -1')

        def co_read():
            e(f's_lshl_b32 s{sT}, s{sTT}, 8')
            e(f'v_lshl_add_u32 v{vCO}, v0, 2, s{sT}')
            e(f'ds_read_b32 v{vCO}, v{vCO} offset:{L_Z}', 'zr2')

        def co_math():
            e.wait(lg='zr2')
            e(f'v_mul_f32 v{vCO}, {fbits(-LOG2E)}, v{vCO}')
            e(f'v_exp_f32 v{vCO}, v{vCO}')

        def ored_addr(i):
            def f():
                e(f's_sub_u32 s{sT}, s{sTT}, {1 + i}')
                e(f's_and_b32 s{sT}, s{sT}, 3')
                e(f's_lshl_b32 s{sT + 1}, s{sG}, 2')
                e(f's_add_u32 s{sT}, s{sT}, s{sT + 1}')
                e(f's_mul_i32 s{sT}, s{sT}, {RINGW}')
                e(f'v_add_u32 v{vRR + i}, s{sT}, v{vL16}')
                e(f'v_lshl_add_u32 v{vRR + 3 + i}, v0, 2, s{sT}')
            return f

        def o_addr():
            e(f's_lshl_b32 s{sO[0]}, s{sRB}, 1')
            e(f's_and_b32 s{sT}, s{sW}, 1')
            e(f's_add_u32 s{sO[0]}, s{sO[0]}, s{sT}')
            e(f's_lshl_b32 s{sO[0]}, s{sO[0]}, 2')

        def o_addr2():
            e(f's_lshr_b32 s{sT}, s{sW}, 1')
            e(f's_add_u32 s{sO[0]}, s{sO[0]}, s{sT}')
            e(f's_lshl_b32 s{sO[0]}, s{sO[0]}, 13')
            e(f's_add_u32 s{sO[0]}, s{sO[0]}, {WS_O}')
            e(f's_add_u32 s{sO[1]}, s{sO[0]}, 4096')

        def ored_write(sl, part):
            o = L_RING + 2304 * sl
            if part < 2:
                return lambda: e(f'ds_write_b128 v{vRW[0]}, {vr(vO[sl] + 4 * part, 4)} offset:{o + 1024 * part}', 'orw')
            return lambda: e(f'ds_write_b32 v{vRW[1]}, v{vO[sl] + 8} offset:{o + 2048}', 'orw')

        side = {}
        add = lambda t, p, f: side.setdefault((t, p), []).append(f)
        I = lambda text: (lambda: e(text))
        for it in range(16):
            t = 4 * it
            st = it - G0
            add(t, 1, lambda it=it, st=st: e.wait(vm=[f'v{it}', f'h{st}'], lg=f'dr{st}_0'))
            add(t + 2, 2, lambda it=it, st=st: e.wait(vm=[f'k{it + 1}', f'd{st + 1}'], lg=f'dr{st}_1'))
            if 1 <= it < 15:
                add(t, 0, self.kv_load(it + 1)[1])
                add(t, 2, self.kv_adv)
            if it < 14:
                add(t + 2, 1, self.kv_load(it + 2)[0])
        for step in range(11):
            t = 4 * (G0 + step)
            add(t - 7, 2, I(f's_add_u32 m0, s{sMD}, {L_RING + 2048 * (step % 3)}'))
            add(t - 7, 4, stage_dma(S_WD, sDO, 0, f'd{step}'))
            add(t - 6, 0, stage_dma(S_WD, sDO, 1, f'd{step}'))
            add(t - 6, 0, I(f's_addk_i32 s{sDO}, 16384'))
            add(t - 4, 4, h_load(step, 0))
            add(t - 3, 1, h_load(step, 1))
            add(t - 3, 2, I(f's_addk_i32 s{sHO}, 2048'))
            add(t - 1, 0, wd_read(step, 0))
            add(t + 1, 0, wd_read(step, 1))
        t = 4 * self.opt['woi'] + 3
        add(t - 1, 4, wo_first)
        for k in range(4):
            add(t + 4 * k, 1, I(f's_add_u32 m0, s{sMW}, {L_WO + 2048 * k}'))
            add(t + 4 * k, 2, stage_dma(S_WO, sWO, 0, 'wo'))
            add(t + 4 * k, 2, stage_dma(S_WO, sWO, 1, 'wo'))
            add(t + 4 * k, 4, I(f's_addk_i32 s{sWO}, 16384'))
        if not self.opt['omf']:
            add(self.opt['om'], 2, only_g1(self.o_mark))
        for c in range(self.opt['hl']):
            add(c * self.opt['hsp'], 2, lambda c=c: self.h_store(c))
        for i in range(3):
            add(22 + 4 * i, 2, ored_addr(i))
        add(34, 2, o_addr)
        add(38, 2, o_addr2)
        add(2, 2, co_read)
        add(3, 2, co_math)
        add(self.opt['s2t'], 2, only_g1(self.sig2_a))
        add(self.opt['s2t'] + 1, 2, only_g1(self.sig2_b))
        add(self.opt['s2t'] + 2, 2, h_addrs)
        add(4 * (G0 - 2) + 2, 2, poll2_issue)
        add(4 * (G0 - 1), 2, poll2_check)
        for sl in range(3):
            add(61 + sl, 4, ored_write(sl, 0))
            add(*((62 + sl, 0) if sl < 2 else (63, 3)), ored_write(sl, 1))
            add(*((62 + sl, 0) if sl < 2 else (63, 3)), ored_write(sl, 2))
        if self.opt['prio']:
            add(self.opt['pa'], 2, lambda: e('s_setprio 2'))
            add(self.opt['pb'], 2, lambda: e('s_setprio 1'))
            add(self.opt['pc'], 2, lambda: e('s_setprio 0'))

        def run(t, p):
            for f in side.get((t, p), []):
                f()

        def zero(sl):
            e(f'v_mfma_f32_32x32x16_bf16 {vr(vO[sl], 16)}, {vr(vD, 4)}, {vr(vD, 4)}, 0')

        e(f'v_mov_b32 v{vIDX}, 0xdddddddd')
        for i in range(4):
            e(f'v_mov_b32 v{vD + i}, 0')
        qk(0)
        self.stamp(9, 3)
        if self.opt['zm']:
            zero(0)
        for t in range(NT):
            it, sl = divmod(t, 4)
            ex(t, 0, 2)
            if t > 0:
                pv(t - 1, 1)
            run(t, 0)
            ex(t, 2, 5)
            if t + 1 < NT:
                qk(t + 1)
            run(t, 1)
            ex(t, 5, 10)
            pv(t, 0)
            run(t, 2)
            ex(t, 10, 13)
            if G0 <= it < G0 + 11:
                g2(it - G0, sl)
            if t < 3 and self.opt['zm']:
                zero(t + 1)
            run(t, 4)
            ex(t, 13, 16)
            run(t, 3)
            if t in (7, 31):
                self.stamp(7 if t == 7 else 8)
            if t in (3, 5, 7):
                self.stamp(10 + (t - 3) // 2, 3)
        pv(NT - 1, 1)
        run(NT, 0)

    def tail(self):
        e = self.e
        own = vO[3]
        R = vO[0]
        WO = vO[0]
        OFR = [vH[0], vH[1], ACA + 16, ACA + 24]
        PRE = X + 64
        vFW, vPW, vOA = FR, FR + 4, FR + 9
        vFRd, vPR = vK[1], vRR
        HEADS = (1, 3, 5, 7, 0, 2, 4, 6)
        P2 = lambda b, i: vr(b + 2 * i, 2)

        def o_reduce(g):
            for i in range(3):
                e(f'ds_read_b32 v{R + 24 + i}, v{vRR + 3 + i} offset:{L_RING + 2304 * i + 2048}', f'or{i}')
            for i in range(3):
                o = L_RING + 2304 * i
                e(f'ds_read_b128 {vr(R + 8 * i, 4)}, v{vRR + i} offset:{o}', f'oa{i}')
                e(f'ds_read_b128 {vr(R + 8 * i + 4, 4)}, v{vRR + i} offset:{o + 1024}', f'oa{i}')
            if g == 0:
                for kk in range(2):
                    old(kk, f'o{kk}')
            e.wait(lg='or2')
            e(f'v_add_f32 v{R + 24}, v{R + 24}, v{R + 25}')
            e(f'v_add_f32 v{own + 8}, v{own + 8}, v{R + 26}')
            e(f'v_add_f32 v{own + 8}, v{own + 8}, v{R + 24}')
            e(f'v_subrev_u32 v{R + 24}, {(127 - 60) << 23}, v{own + 8}')
            e(f'v_cmp_lt_u32 vcc, {120 << 23}, v{R + 24}')
            e(f'v_fma_f32 v{R + 28}, v{own + 8}, v{vCO}, v{own + 8}')
            e(f'v_rcp_f32 v{R + 28}, v{R + 28}')
            for i in range(3):
                e.wait(lg=f'oa{i}')
                for r in range(4):
                    if g:
                        for h in range(2):
                            e(f'v_add_f32 v{own + 2 * r + h}, v{own + 2 * r + h}, v{R + 8 * i + 2 * r + h}')
                    else:
                        e(f'v_pk_add_f32 {P2(own, r)}, {P2(own, r)}, {P2(R + 8 * i, r)}')
            e('s_cbranch_vccnz Lsafe')
            e.label(f'Lsafe_done{g}')
            for r in range(8):
                e(f'v_mul_f32 v{own + r}, v{own + r}, v{R + 28}')
            for r in range(4):
                e(f'v_cvt_pk_bf16_f32 v{vK[0] + r}, v{own + 2 * r}, v{own + 2 * r + 1}')
            for r in range(4):
                e(f'v_min_u32 v{vK[0] + r}, -2, v{vK[0] + r}')
            e(f'buffer_store_dwordx4 {vr(vK[0], 4)}, v{vL16}, {srd(S_WS)}, s{sMO} offen sc1', 'ost')
            self.stamp(10)
            e(f's_lshr_b32 s{sT + 1}, s{sW}, 1')
            e(f's_lshl_b32 s{sT + 2}, s{sT + 1}, 14')
            e(f's_mul_i32 s{sT + 3}, s{sW}, {RINGW}')
            e(f's_sub_u32 s{sT + 2}, s{sT + 2}, s{sT + 3}')
            e(f's_add_u32 s{sT + 2}, s{sT + 2}, {L_WO}')
            e(f'v_and_b32 v{vP + 1}, 32, v0')
            e(f'v_lshlrev_b32 v{vP + 1}, 4, v{vP + 1}')
            e(f'v_sub_u32 v{vP + 1}, s{sT + 2}, v{vP + 1}')
            for jj in range(2):
                e(f'v_add_u32 v{vDR[jj]}, v{vP + 1}, v{vDR[jj]}')

        def old(kk, tag=None):
            for n in (2 * kk, 2 * kk + 1):
                e(f'buffer_load_dwordx4 {vr(OFR[kk] + 4 * (n & 1), 4)}, v{vL16}, {srd(S_WS)}, s{sO[HEADS[n] >> 2]} offen offset:{1024 * (HEADS[n] & 3)} sc1', tag)

        def wo_reads(n):
            for jj in range(2):
                for rd in range(2):
                    e(f'ds_read_b64_tr_b16 {vr(WO + 8 * n + 4 * jj + 2 * rd, 2)}, v{vDR[jj]} offset:{2048 * HEADS[n] + 1024 * rd}', f'wor{n}')

        def addrs(g, part=3):
            t0, t1 = vK[1] + 2, vK[1] + 3
            if part & 1:
                e(f'v_and_b32 v{vPW}, 31, v0')
                e(f'v_lshrrev_b32 v{t0}, 5, v0')
                e(f'v_and_b32 v{t1}, 7, v0')
                e(f'v_xor_b32 v{t0}, v{t0}, v{t1}')
                e(f'v_lshlrev_b32 v{t0}, 4, v{t0}')
                e(f'v_lshl_add_u32 v{vPW}, v{vPW}, 8, v{t0}')
                e(f's_lshl_b32 s{sT}, s{sTT}, 13')
                e(f's_add_u32 s{sT}, s{sT}, {98304 * g}')
                e(f'v_add_u32 v{vPW}, s{sT}, v{vPW}')
                for q in range(1, 4):
                    e(f'v_xor_b32 v{vPW + q}, {32 * q}, v{vPW}')
            if not part & 2:
                return
            e(f'v_lshrrev_b32 v{t0}, 3, v0')
            e(f'v_lshlrev_b32 v{vOA}, 4, v{t1}')
            e(f'v_lshl_add_u32 v{vOA}, v{t0}, 10, v{vOA}')
            e(f'v_lshlrev_b32 v{t1}, 1, v{t1}')
            e(f'v_xor_b32 v{t1}, v{t1}, v{t0}')
            e(f'v_lshlrev_b32 v{t1}, 4, v{t1}')
            e(f'v_lshl_add_u32 v{t1}, v{t0}, 8, v{t1}')
            e(f's_and_b32 s{sT + 2}, s{sW}, 1')
            e(f's_lshl_b32 s{sT + 2}, s{sT + 2}, 2')
            e(f's_add_u32 s{sT + 2}, s{sT + 2}, s{sT + 1}')
            e(f's_lshl_b32 s{sT + 3}, s{sT + 2}, 11')
            e(f'v_add_u32 v{vFRd}, s{sT + 3}, v{t1}')
            e(f'v_xor_b32 v{vFRd + 1}, 16, v{vFRd}')
            for h in range(2):
                e(f'v_xor_b32 v{vPR + h}, {8192 + L_PRE1}, v{vFRd + h}')
            for p in range(2):
                for h in range(2):
                    e(f'ds_read_b128 {vr(PRE + 8 * p + 4 * h, 4)}, v{vPR + h} offset:{16384 * p}', 'pr')
            for h in range(2):
                e(f'v_xor_b32 v{vPR + 2 + h}, 8192, v{vFRd + h}')
                e(f'v_add_u32 v{vPR + 4 + h}, 98304, v{vFRd + h}')
            e(f's_lshl_b32 s{sT}, s{sRB}, 3')
            e(f's_add_u32 s{sT}, s{sT}, s{sT + 2}')
            e(f's_lshl_b32 s{sT}, s{sT}, 13')
            e(f's_lshl_b32 s{sT + 1}, s{sCB}, 7')
            e(f's_add_u32 s{sT}, s{sT}, s{sT + 1}')

        def slab_write(g, i, n):
            jj, q = divmod(n, 4)
            e(f'ds_write_b128 v{vPW + q}, {vr(vG[2 * i + jj] + 4 * q, 4)} offset:{32768 * (i ^ g ^ 1) + 128 * jj}', 'sw')

        def mf(jj, n):
            acc = vr(vG[jj], 16)
            e(f'v_mfma_f32_32x32x16_bf16 {acc}, {vr(WO + 8 * n + 4 * jj, 4)}, {vr(OFR[n >> 1] + 4 * (n & 1), 4)}, {acc}')

        def mm(kk, between=None, jjs=(0, 1)):
            e.wait(vm=f'o{kk}')

            def ck():
                b = OFR[kk]
                e(f'v_max3_u32 v{vP}, v{b}, v{b + 1}, v{b + 2}')
                e(f'v_max3_u32 v{vP + 1}, v{b + 3}, v{b + 4}, v{b + 5}')
                e(f'v_max3_u32 v{vP}, v{vP}, v{b + 6}, v{b + 7}')
                e(f'v_max_u32 v{vP}, v{vP}, v{vP + 1}')
                e(f'v_cmp_eq_u32 vcc, -1, v{vP}')
            self.spin(f'o{kk}', lambda: [old(q) for q in range(kk, (kk | 1) + 1)], ck, self.opt['sl3'])
            for i, (jj, n) in enumerate(((0, 2 * kk), (0, 2 * kk + 1), (1, 2 * kk), (1, 2 * kk + 1))):
                if jj in jjs:
                    mf(jj, n)
                if between:
                    between(i)

        self.stamp(9)
        e(f's_cmp_lg_u32 s{sG}, 0')
        e('s_setprio 3')
        e.wait(vm='wo', lg='all')
        e('s_cbranch_scc1 Ltail1')
        snap = e.snapshot()
        self.tail_blocks.append(self.safe_softmax)

        def first_group():
            e.restore(snap)
            e.label('Ltail1')
            e(f'v_mov_b32 v{vPA}, {L_CNT}')
            e(f'v_mov_b32 v{vP}, 1')
            e('s_mov_b64 exec, 1')
            e(f'ds_add_u32 v{vPA}, v{vP} offset:4')
            e('s_mov_b64 exec, -1')

            def ld():
                e(f'ds_read_b64 {vr(vP, 2)}, v{vPA}')
                e('s_waitcnt lgkmcnt(0)')

            def ck():
                e(f'v_add_u32 v{vP}, v{vP}, v{vP + 1}')
                e(f'v_cmp_ne_u32 vcc, 12, v{vP}')
            ld()
            for p in e.paths:
                p.lg = []
            self.spin('g1', ld, ck, 1)
            o_reduce(1)
            addrs(1, 1)
            e('s_setprio 0')
            for n in range(8):
                wo_reads(n)
                slab_write(1, 1, n)
            e.wait(lg='all')
            e('s_barrier')
            for kk in range(4 if self.opt['ol'] == 0 else 2):
                old(kk, f'o{kk}')
            addrs(1, 2)
            e('s_barrier')
            self.stamp(11)
            finish(1, self.opt['ol'])
            e('s_branch Ltail2')
        self.tail_blocks.insert(0, first_group)

        def finish(g, late, k0=0):
            def pre_add(i):
                e.wait(lg='pr')
                for r in range(2 * i, 2 * i + 2):
                    e(f'v_add_f32 v{PRE + r}, v{PRE + r}, v{PRE + 8 + r}')
            for kk in range(k0, 4):
                if late == kk + 1:
                    for q in range(2, 4):
                        old(q, f'o{q}')
                e.wait(lg=f'wor{2 * kk + 1}')
                mm(kk, pre_add if kk == 3 else None)
            self.stamp(12)
            for n in range(8):
                slab_write(g, 0, n)
            e.wait(lg='all')

        e('s_barrier')
        o_reduce(0)
        YL = self.opt['yl']
        lateld = lambda: [old(q, f'o{q}') for q in range(2, 4)]
        if YL == 0:
            lateld()
        for n in range(4):
            wo_reads(n)
        addrs(0, 1)
        e('s_barrier')
        for kk in range(2):
            if YL == kk + 1:
                lateld()
            e.wait(lg=f'wor{2 * kk + 1}')

            def lds_work(i, kk=kk):
                slab_write(0, 1, 4 * kk + i)
                if i % 2:
                    wo_reads(4 + 2 * kk + i // 2)
            mm(kk, lds_work)
        if YL == 3:
            lateld()
        addrs(0, 2)
        self.stamp(11)
        finish(0, 0, 2)
        e.label('Ltail2')
        e('s_barrier')
        B = X
        src = [(vPR + 2, 0), (vPR + 2, 16384), (vPR + 4, 0), (vPR + 4, 16384), (vFRd, 32768), (vFRd, 49152)]
        for p, (va, off) in enumerate(src):
            for h in range(2):
                e(f'ds_read_b128 {vr(B + 8 * p + 4 * h, 4)}, v{va + h} offset:{off}', f'fr{p}')
        for p in range(6):
            e.wait(lg=f'fr{p}')
            for r in range(4):
                e(f'v_pk_add_f32 {P2(PRE, r)}, {P2(PRE, r)}, {P2(B + 8 * p, r)}')
        for r in range(4):
            e(f'v_cvt_pk_bf16_f32 v{B + r}, v{PRE + 2 * r}, v{PRE + 2 * r + 1}')
        e(f'buffer_store_dwordx4 {vr(B, 4)}, v{vOA}, {srd(S_OUT)}, s{sT} offen sc1')
        if 'probe' in self.opt:
            e.wait(vm='all')
            self.stamp(13)
            e.label('Lprobe')
            e('s_sleep 1')
            e(f's_memrealtime s[{sSTMP}:{sSTMP + 1}]')
            e('s_waitcnt lgkmcnt(0)')
            e(f's_sub_u32 s{sSTMP}, s{sSTMP}, s{sNON if self.opt["probe"] == 99 else sSTAMP}')
            e(f's_cmp_lt_u32 s{sSTMP}, 6000')
            e('s_cbranch_scc1 Lprobe')
        if self.stamps:
            e.wait(vm='all')
            self.stamp(13)
            e(f's_lshl_b32 s{sT}, s2, 3')
            e(f's_add_u32 s{sT}, s{sT}, s{sW}')
            e(f's_lshl_b32 s{sT}, s{sT}, 6')
            e(f's_add_u32 s{sT}, s{sT}, {WS_ST}')
            e('s_waitcnt lgkmcnt(0)')
            en = [i for i in range(14) if (self.opt.get('smask', 0x2001) | 0x2001) >> i & 1]
            for k, i in enumerate(en):
                e(f'v_mov_b32 v{B + 8 + i}, s{sSTAMP + 2 * k}')
            e('s_mov_b64 exec, 1')
            for i in range(4):
                e(f'buffer_store_dwordx4 {vr(B + 8 + 4 * i, 4)}, off, {srd(S_WS)}, s{sT} offset:{16 * i}')
        e.label('Lexit')
        e('s_endpgm')

    def safe_softmax(self):
        e = self.e
        e.paths = [p for p in Emitter().paths]
        own = vO[3]
        M = vO[0]
        S = vS[0]
        e.label('Lsafe')
        e(f's_and_b32 s{sT + 2}, s{sKVB}, {0xffffffff ^ (3 << 15)}')
        e(f's_mov_b32 s{sT + 3}, s{sT + 2}')
        e(f's_mov_b32 s{sT + 4}, 64')
        e(f'v_mov_b32 v{M}, 0xff800000')
        e.label('Lsafe1')
        e(f'buffer_load_dwordx4 {vr(vK[0], 4)}, v{vL16}, {srd(S_WS)}, s{sT + 3} offen sc1')
        e(f's_add_u32 s{sT + 3}, s{sT + 3}, 2048')
        e('s_waitcnt vmcnt(0)')
        e(f'v_mfma_f32_32x32x16_bf16 {vr(S, 16)}, {vr(vK[0], 4)}, {vr(vQ[3], 4)}, 0')
        for i in range(0, 16, 2):
            e(f'v_max3_f32 v{M}, v{M}, v{S + i}, v{S + i + 1}')
        e(f's_sub_u32 s{sT + 4}, s{sT + 4}, 1')
        e(f's_cmp_lg_u32 s{sT + 4}, 0')
        e('s_cbranch_scc1 Lsafe1')
        e(f'v_mov_b32 v{M + 1}, v{M}')
        e(f'v_permlane32_swap_b32 v{M}, v{M + 1}')
        e(f'v_max_f32 v{M}, v{M}, v{M + 1}')
        e(f'v_sub_f32 v{M}, 0, v{M}')
        for i in range(1, 16):
            e(f'v_mov_b32 v{M + i}, v{M}')
        for i in range(16):
            e(f'v_mov_b32 v{own + i}, 0')
        e(f's_mov_b32 s{sT + 3}, s{sT + 2}')
        e(f's_mov_b32 s{sT + 4}, 64')
        e.label('Lsafe2')
        e(f'buffer_load_dwordx4 {vr(vK[0], 4)}, v{vL16}, {srd(S_WS)}, s{sT + 3} offen sc1')
        e(f's_mov_b64 exec, s[{sVM}:{sVM + 1}]')
        e(f'buffer_load_dwordx4 {vr(vV[0], 4)}, v{vVA}, {srd(S_WS)}, s{sT + 3} offen offset:1024 sc1')
        e(f'buffer_load_dwordx4 {vr(vV[0] + 4, 4)}, v{vVA}, {srd(S_WS)}, s{sT + 3} offen offset:1536 sc1')
        e('s_mov_b64 exec, -1')
        e(f's_add_u32 s{sT + 3}, s{sT + 3}, 2048')
        e('s_waitcnt vmcnt(0)')
        e(f'v_mfma_f32_32x32x16_bf16 {vr(S, 16)}, {vr(vK[0], 4)}, {vr(vQ[3], 4)}, {vr(M, 16)}')
        for i in range(16):
            e(f'v_exp_f32 v{S + i}, v{S + i}')
        for hi in range(2):
            e(f'v_smfmac_f32_32x32x32_bf16 {vr(own, 16)}, {vr(vV[0] + 4 * hi, 4)}, {vr(S + 8 * hi, 8)}, v{vIDX}')
        e(f's_sub_u32 s{sT + 4}, s{sT + 4}, 1')
        e(f's_cmp_lg_u32 s{sT + 4}, 0')
        e('s_cbranch_scc1 Lsafe2')
        e('s_nop 15')
        e(f'v_fma_f32 v{vO[0] + 28}, v{own + 8}, v{vCO}, v{own + 8}')
        e(f'v_rcp_f32 v{vO[0] + 28}, v{vO[0] + 28}')
        e(f's_cmp_lg_u32 s{sG}, 0')
        e('s_cbranch_scc1 Lsafe_done1')
        e('s_branch Lsafe_done0')

    def build(self):
        e = self.e
        self.prologue()
        e.drop = (None, ('v_mfma',), ('v_mfma', 'ds_read_b64_tr'), ('ds_read_b64_tr',))[self.opt.get('x_drop', 0)]
        snap = e.snapshot()
        e.label('Lload')
        self.phase_a_loader()
        self.phase_f(1, 3)
        e('s_branch Lffn')
        ends = e.snapshot()
        cends = []
        for ty in (0, 1):
            e.restore(snap)
            e.label(f'Lcomp{ty}')
            self.phase_a_compute(ty)
            if ty == 0:
                e('s_branch Lpack')
            cends += e.snapshot()
        e.paths = cends
        e.label('Lpack')
        e(f's_mul_i32 s{sT}, s{sJ}, 43691')
        e(f's_lshr_b32 s{sT}, s{sT}, 17')
        e(f's_mul_i32 s{sT}, s{sT}, 3')
        for i in range(4):
            self.pack8(ACA + 8 * i, ACA + 4 * i)
            if i < self.opt['qe']:
                self.kv_store(i)
        self.z_write()
        e(f's_cmp_eq_u32 s{sT}, s{sJ}')
        e('s_cbranch_scc1 Lsix')
        snap = e.snapshot()
        for NC in (2, 3):
            e.restore(snap)
            if NC == 3:
                e.label('Lsix')
            e('s_barrier')
            self.stamp(4)
            self.phase_f(0, NC)
            if NC == 2:
                e('s_branch Lffn')
            ends += e.snapshot()
        e.paths = ends
        e.label('Lffn')
        e.drop = None
        self.attn_loads_late()
        self.stamp(6)
        self.attention()
        self.tail()
        i = 0
        while i < len(self.tail_blocks):
            self.tail_blocks[i]()
            i += 1
        e.label('Lcode_end')
        return self.wrap()

    def wrap(self):
        head = open('gated_mix__softmax_full_mha__glu_gated_geglu__prompt.s.ref').read().split('; Override')[0]
        return head + f"""; @launch grid=(256,1,1) block=(512,1,1) lds={LDS_BYTES}
.amdgcn_target "amdgcn-amd-amdhsa--gfx950"
.text
.globl {KNAME}
.p2align 8
.type {KNAME},@function
{KNAME}:
{self.e.text()}
.section .rodata,"a"
.p2align 6
.amdhsa_kernel {KNAME}
  .amdhsa_next_free_vgpr 256
  .amdhsa_next_free_sgpr 102
  .amdhsa_accum_offset 256
  .amdhsa_group_segment_fixed_size 0
  .amdhsa_kernarg_size 88
  .amdhsa_user_sgpr_count 2
  .amdhsa_user_sgpr_kernarg_segment_ptr 1
  .amdhsa_system_sgpr_workgroup_id_x 1
.end_amdhsa_kernel
"""


if __name__ == '__main__':
    out = sys.argv[1]
    stamps = sys.argv[2] if len(sys.argv) > 2 and sys.argv[2] in ('rt', 'cy') else False
    opt = {}
    for a in sys.argv[2:]:
        if '=' in a:
            k, v = a.split('=')
            opt[k] = int(v, 0)
    g = Gen(stamps=stamps, opt=opt)
    open(out, 'w').write(g.build())
    print('nops inserted:', g.e.nops, 'lines:', len(g.e.lines))
```

```python
import sys, math, struct
from asmlib import Emitter, Win

KNAME = 'gated_mix__softmax_full_mha__glu_gated_geglu__prompt_kernel'

WS_Q = 0
WS_KV = 2 << 20
WS_O = 6 << 20
WS_F1 = 8 << 20
WS_F2 = WS_F1 + 32768
WS_ST = WS_F1 + 65536
WS_H = 9 << 20
HBLK = 86 * 2048
WS_END = 15 << 20

L_GW = 0
L_Z = 1024
SLOT0 = 4096
UPOFF = 12288
QOFF = 24576
L_QX = 147456
L_RING = 4096
RINGW = 7168
L_WO = 65536
L_PRE1 = 131072
L_CNT = 2048
LDS_BYTES = 163840

S_X, S_WQ, S_WF, S_WS, S_H, S_WD, S_WO, S_OUT, S_DBG, S_GW = [4 * i + 4 for i in range(10)]
S_WG = 80
sW, sTT, sG, sJ, sTB, sRB, sCB, sUS = range(44, 52)
sXO, sWO, sFO, sMX, sMW, sMF = range(52, 58)
sNON = 58
sKV, sKVB, sKVI, sHO, sDO, sMD = range(60, 66)
sVM = 66
sT = 68
sGC = 76
sQX = [40, 41, 42, 43]
sQW = 78
sXO2 = 79
sSPIN = 84
sMO = 85
sMG = 3
sO = [4, 5]
sR = 73
sE = [4, 5, 6, 7]
sSTMP = 86
sSTAMP = 88


def region(s):
    return SLOT0 + 28672 * (s % 5)


def srd(b):
    return f's[{b}:{b + 3}]'


def vr(b, n):
    return f'v[{b}:{b + n - 1}]' if n > 1 else f'v{b}'


def fbits(x):
    return '0x%08x' % struct.unpack('<I', struct.pack('<f', x))[0]


vL16 = 1
vXD = [2, 3]
vWD = 4
vFD = 5
vXR = [6, 7]
vWR = [8, 2]
vFR = [9, 10, 11]
FR = 16
NFR = 5
ACA = 36
ACF = 68
vK = [116, 120]
vCH, vIDX, vVA = 124, 126, 127
vQR = 126
QA = ACA + 16
X = 128
vO = [X + 16 * i for i in range(4)]
vQ = [X + 64 + 4 * i for i in range(4)]
vV = [ACA, ACA + 8]
vS = [ACA + 16, X + 80]
vG = [ACF, ACF + 16, ACF + 32, X + 96]
vH = [X + 112, X + 120]
vD = FR
vCO = FR + 8
vDD = [2, 3]
vDR = [12, 13]
vP = 14
vPA = 6
vRW = [7, 8]
vHA = [9, 10]
vKA = 124
vRR = FR + 10

LOG2E = 1.4426950408889634
QSCALE = 0.25 * LOG2E
GC0 = -2.0 * LOG2E * math.sqrt(2.0 / math.pi)
GC1 = GC0 * 0.044715
SPIN = 400000
FL = ('', ' sc1', ' nt', ' sc1 nt')


class Gen:
    def __init__(self, stamps=False, opt=None):
        self.e = Emitter()
        self.stamps = stamps
        self.nst = 0
        self.opt = dict(g2start=5, prio=True, ahead=12, span=12, fah=2, omf=0, lfirst=3, as2=6, ahead2=8, tlb=0, bt=0, dsplit=1, ys=0, fw=0, fx=0, fh=1, p1i=70, p1c=80, gsp=10, g0=0, fk=2, gk=3, lpre=60, cpre=40, lfk=20, llast=2, lsp2=1,
                        pa=7, pb=54, pc=200, ol=3, yl=3, woi=8, qw=12, vs=11, qe=2, q0=12, qsp=2, om=2, s2t=5, rot=4, rj=0, zm=1, hl=0, hsp=1,
                        fs=7, lp=1, eb=1, sl1=4, sl2=8, sl3=2, lsp=4)
        if opt:
            self.opt.update(opt)
        self.tail_blocks = []

    def stamp(self, idx, sset=0):
        e = self.e
        if self.opt.get('sset') == 4:
            if 7 <= idx <= 9 and sset != 4:
                return
        elif 7 <= idx <= 12 and sset != self.opt.get('sset', 0):
            return
        if self.opt.get('probe') == idx:
            e(f's_memrealtime s[{sSTAMP}:{sSTAMP + 1}]')
            e('s_waitcnt lgkmcnt(0)')
            for p in e.paths:
                p.lg = []
        if not self.stamps or not (self.opt.get('smask', 0x2001) | 0x2001) >> idx & 1:
            return
        en = [i for i in range(14) if (self.opt.get('smask', 0x2001) | 0x2001) >> i & 1]
        assert len(en) <= 7
        r = sSTAMP + 2 * en.index(idx)
        e(f"{'s_memtime' if self.stamps == 'cy' else 's_memrealtime'} s[{r}:{r + 1}]")

    def dma_list(self, s):
        e = self.e
        slot = region(s)
        out = []
        tag = f'st{s}'

        def mk(m0s, m0c, va, rs, so, imm=0, pre=()):
            def f(part=3):
                if part & 1:
                    e(f's_add_u32 m0, s{m0s}, {m0c - imm}')
                    for p in pre:
                        e(p)
                if part & 2:
                    e(f'buffer_load_dwordx4 v{va}, {srd(rs)}, s{so} offen' + (f' offset:{imm}' if imm else '') + (FL[self.opt['fx']] if rs == S_X else '') + ' lds', tag)
            f.dma = True
            out.append(f)
        t = sT + 6

        def step(so, n):
            if s % 8 == 0:
                return ()
            if s % (8 // self.opt['rot']):
                return [f's_add_u32 s{so}, s{so}, {n}']
            return [f's_cmp_eq_u32 s{sR}, {-s % 8}', f's_cselect_b32 s{t}, -7, 1', f's_mul_i32 s{t}, s{t}, {n}', f's_add_u32 s{so}, s{so}, s{t}']
        if s < 8:
            for i in range(4):
                mk(sMX, slot + i * 1024, vXD[i % 2], S_X, sXO if i < 2 else sXO2,
                   pre=step(sXO, 128) if i == 0 else ([f's_add_u32 s{sXO2}, s{sXO}, 16384'] if i == 1 else ()))
            for i in range(2):
                mk(sMW, slot + 16384 + i * 1024, vWD, S_WQ, sWO, imm=64 * i, pre=step(sWO, 64 * 3072) if i == 0 else ())
        else:
            mk(sMF, slot + QOFF, vWD, S_WQ, sQW, pre=step(sQW, 64 * 3072))
            for h in range(2):
                for i in range(3):
                    mk(sMG, slot + h * UPOFF + i * 1024, vFD, S_WF if h else S_WG, sFO, imm=64 * i,
                       pre=step(sFO, 64 * 2752) if h + i == 0 else ())
        return out

    def prologue(self):
        e = self.e
        self.stamp(0)
        e('s_cmp_ge_u32 s2, 256')
        e('s_cbranch_scc1 Lexit')
        e(f's_load_dwordx2 s[{S_X}:{S_X + 1}], s[0:1], 0')
        e(f's_load_dwordx2 s[{S_WQ}:{S_WQ + 1}], s[0:1], 8')
        e(f's_getpc_b64 s[{sT}:{sT + 1}]')
        e.label('Lpfbase')
        e(f's_lshr_b32 s{sT + 2}, s2, 3')
        e(f's_lshl_b32 s{sT + 2}, s{sT + 2}, 11')
        e(f'v_lshl_add_u32 v16, v0, 2, s{sT + 2}')
        e('v_min_u32 v16, Lcode_end-Lpfbase-4, v16')
        e('v_lshrrev_b32 v2, 6, v0')
        e('s_mov_b32 exec_lo, 1')
        e('s_mov_b32 exec_hi, 1')
        e(f'global_load_dword v{vK[1]}, v16, s[{sT}:{sT + 1}]', 'pf')
        e('s_mov_b64 exec, -1')
        e(f'v_readfirstlane_b32 s{sW}, v2')
        e('v_and_b32 v0, 63, v0')
        e(f's_xor_b32 s{sW}, s{sW}, 4')
        e(f's_and_b32 s{sTT}, s{sW}, 3')
        e(f's_lshr_b32 s{sG}, s{sW}, 2')
        e('s_cbranch_scc1 Lload')
        e('s_bitcmp1_b32 s2, 3')
        e('s_cbranch_scc1 Lcomp1')
        e('s_branch Lcomp0')

    def ids_tb(self):
        e = self.e
        R = self.opt['rot']
        e(f's_and_b32 s{sTB}, s2, 4')
        e(f's_lshl_b32 s{sTB}, s{sTB}, 1')
        e(f's_lshr_b32 s{sT + 6}, s2, 5')
        e(f's_add_u32 s{sTB}, s{sTB}, s{sT + 6}')
        e(f's_and_b32 s{sR}, s{sTB}, {R - 1}')
        e(f's_mul_i32 s{sR}, s{sR}, {8 // R}')

    def more_args(self, g):
        e = self.e
        lst = [(S_WG, 32), (S_WF, 40)] if g else [(S_GW, 56)]
        for b, off in lst + [(S_DBG, 72), (S_WS, 80), (S_H, 80), (S_WD, 48), (S_WO, 16), (S_OUT, 64)]:
            e(f's_load_dwordx2 s[{b}:{b + 1}], s[0:1], {off}')
        e(f'v_lshlrev_b32 v{vL16}, 4, v0')

    def ids_j(self):
        e = self.e
        e(f's_and_b32 s{sJ}, s2, 3')
        e(f's_lshl_b32 s{sJ}, s{sJ}, 2')
        e(f's_bfe_u32 s{sT + 6}, s2, 0x20003')
        e(f's_add_u32 s{sJ}, s{sJ}, s{sT + 6}')

    def quad_rows(self, dst, stride, t):
        e = self.e
        e(f'v_lshrrev_b32 v{t}, 4, v0')
        e(f'v_and_b32 v{t}, 2, v{t}')
        e(f'v_xor_b32 v{t}, v{t}, v0')
        e(f'v_and_b32 v{t}, 3, v{t}')
        e(f'v_lshrrev_b32 v{dst}, 2, v0')
        e(f'v_mul_u32_u24 v{dst}, {stride}, v{dst}')
        e(f'v_lshl_add_u32 v{dst}, v{t}, 4, v{dst}')

    def tr_base(self, dst, gstride, t):
        e = self.e
        e(f'v_lshrrev_b32 v{dst}, 5, v0')
        e(f'v_mul_u32_u24 v{dst}, {gstride}, v{dst}')
        e(f'v_bfe_u32 v{t}, v0, 4, 1')
        e(f'v_mul_u32_u24 v{t}, {512 + 32}, v{t}')
        e(f'v_add_u32 v{dst}, v{dst}, v{t}')
        e(f'v_bfe_u32 v{t}, v0, 2, 2')
        e(f'v_lshl_add_u32 v{dst}, v{t}, 6, v{dst}')
        e(f'v_and_b32 v{t}, 3, v0')
        e(f'v_lshl_add_u32 v{dst}, v{t}, 3, v{dst}')

    def srd_consts(self, lst):
        for b, n in lst:
            self.e(f's_mov_b32 s{b + 2}, {n}')
            self.e(f's_mov_b32 s{b + 3}, 0x20000')

    def x_read_addrs(self):
        e = self.e
        e('v_and_b32 v16, 15, v0')
        e(f's_lshl_b32 s{sT + 6}, s{sTT}, 12')
        e('v_lshrrev_b32 v17, 4, v0')
        e('v_lshrrev_b32 v18, 1, v16')
        e('v_xor_b32 v18, v18, v17')
        e('v_lshlrev_b32 v18, 4, v18')
        e('v_lshl_add_u32 v18, v16, 7, v18')
        e(f'v_add_u32 v{vXR[0]}, s{sT + 6}, v18')
        e(f'v_xor_b32 v{vXR[1]}, 64, v{vXR[0]}')

    def setup2(self, g, ty):
        e = self.e
        t = sT
        self.srd_consts(([(S_DBG, 256), (S_WG, 512 * 2752), (S_WF, 512 * 2752)] if g else []) +
                        [(S_WS, WS_END), (S_H, HBLK), (S_WD, 1376 * 1024), (S_WO, 512 * 1024), (S_OUT, 2048 * 1024)])
        e(f's_lshl_b32 s{sUS}, s{sJ}, 4')
        e(f's_add_u32 s{sUS}, s{sUS}, 2')
        e(f's_mul_i32 s{sUS}, s{sUS}, 43691')
        e(f's_lshr_b32 s{sUS}, s{sUS}, 17')
        if g:
            e(f's_lshl_b32 s{t + 1}, s{sR}, 2')
            e(f's_add_u32 s{t + 1}, s{t + 1}, s{sTT}')
            e(f's_mul_i32 s{sFO}, s{t + 1}, {16 * 2752}')
            e(f's_lshr_b32 s{t}, s{sUS}, 1')
            e(f's_lshl_b32 s{t}, s{t}, 6')
            e(f's_add_u32 s{sFO}, s{sFO}, s{t}')
            e(f's_mul_i32 s{sQW}, s{t + 1}, {16 * 3072}')
            e(f's_lshl_b32 s{t}, s{sJ}, 6')
            e(f's_add_u32 s{sQW}, s{sQW}, s{t}')
            e(f's_mul_i32 s{sMG}, s{sTT}, 3072')
            e(f's_lshl_b32 s{sMF}, s{sTT}, 10')
            self.quad_rows(vFD, 2752, vP)
        first = 0 if g else 3
        self.tr_base(vP + 1, 3072, vP)
        for c in range(3):
            e(f's_and_b32 s{t}, s{sUS}, 1')
            e(f's_add_u32 s{t}, s{t}, {first + c}')
            e(f's_lshr_b32 s{t + 1}, s{t}, 1')
            e(f's_lshl_b32 s{t + 1}, s{t + 1}, 10')
            e(f's_and_b32 s{t}, s{t}, 1')
            e(f's_lshl_b32 s{t}, s{t}, 5')
            e(f'v_xor_b32 v{vFR[c]}, s{t}, v{vP + 1}')
            e(f'v_add_u32 v{vFR[c]}, s{t + 1}, v{vFR[c]}')
        e(f'v_lshrrev_b32 v{vP}, 5, v0')
        e(f'v_lshlrev_b32 v{vVA}, 11, v{vP}')
        e(f'v_sub_u32 v{vQR}, v{vP + 1}, v{vVA}')
        if g:
            e(f'v_xor_b32 v{vQR}, 32, v{vQR}')
        e(f's_and_b32 s{sRB}, s2, 7')
        e(f's_xor_b32 s{sRB}, s{sRB}, 4')
        e(f's_lshl_b32 s{sRB}, s{sRB}, 2')
        e(f's_lshr_b32 s{t}, s2, 6')
        e(f's_add_u32 s{sRB}, s{sRB}, s{t}')
        e(f's_mul_i32 s{t}, s{sRB}, {HBLK}')
        e(f's_add_u32 s{t}, s{t}, {WS_H}')
        e(f's_add_u32 s{S_H}, s{S_H}, s{t}\n    s_addc_u32 s{S_H + 1}, s{S_H + 1}, 0')
        e(f's_bfe_u32 s{sCB}, s2, 0x30003')
        e(f's_mov_b32 s{sVM}, 0xffff')
        e(f's_mov_b32 s{sVM + 1}, 0xffff')
        e(f's_mov_b32 s{sGC}, {fbits(GC1)}')
        e(f's_mov_b32 s{sGC + 1}, s{sGC}')
        e(f'v_and_b32 v{vVA}, 15, v0')
        e(f'v_lshl_add_u32 v{vVA}, v{vP}, 4, v{vVA}')
        e(f'v_lshlrev_b32 v{vVA}, 4, v{vVA}')
        e(f's_lshl_b32 s{t}, s{sTB}, 2')
        e(f's_add_u32 s{t}, s{t}, s{sTT}')
        e(f's_lshr_b32 s{sHO}, s{t}, 1')
        e(f's_mul_i32 s{sHO}, s{sHO}, 86')
        e(f's_add_u32 s{sHO}, s{sHO}, s{sUS}')
        e(f's_lshl_b32 s{sHO}, s{sHO}, 1')
        e(f's_and_b32 s{t + 1}, s{t}, 1')
        e(f's_add_u32 s{sHO}, s{sHO}, s{t + 1}')
        e(f's_lshl_b32 s{sHO}, s{sHO}, 10')
        e(f's_add_u32 s{sHO}, s{sHO}, {WS_H + 2048 * first}')
        e(f's_lshl_b32 s{sMO}, s{t}, 4')
        e(f's_add_u32 s{sMO}, s{sMO}, s{sJ}')
        e(f's_lshl_b32 s{sMO}, s{sMO}, 11')
        e(f's_add_u32 s{sMO}, s{sMO}, {g * 1024 + WS_O}')
        if g == 0:
            e(f's_lshr_b32 s{sE[0]}, s{sJ}, 1')
            e(f's_lshl_b32 s{sE[0]}, s{sE[0]}, 8')
            e(f's_add_u32 s{sE[0]}, s{sE[0]}, s{t}')
            e(f's_lshl_b32 s{sE[0]}, s{sE[0]}, 11')
            e(f's_add_u32 s{sE[0]}, s{sE[0]}, {WS_KV + 1024 * ty}')
            for i in range(1, 4):
                e(f's_add_u32 s{sE[i]}, s{sE[0]}, {262144 * (i >> 1) + 512 * (i & 1) if ty else 131072 * i}')
            if ty:
                e(f'v_bfe_u32 v{vWD}, v0, 4, 1')
                e(f'v_lshl_add_u32 v{vWD}, v{vWD}, 17, v{vVA}')
            else:
                e(f'v_mov_b32 v{vWD}, v{vL16}')
        e(f's_lshl_b32 s{sKVB}, s{sJ}, 3')
        e(f's_add_u32 s{sKVB}, s{sKVB}, s{sW}')
        e(f's_lshl_b32 s{sKVB}, s{sKVB}, 15')
        e(f's_add_u32 s{sKVB}, s{sKVB}, {WS_KV}')
        e(f's_and_b32 s{sKVI}, s{sTB}, 7')
        e(f's_lshl_b32 s{sKVI}, s{sKVI}, 12')
        e(f's_and_b32 s{sKV}, s{sJ}, 14')
        e(f's_lshl_b32 s{sKV}, s{sKV}, 2')
        e(f's_add_u32 s{sKV}, s{sKV}, s{sTT}')
        e(f's_lshl_b32 s{sKV}, s{sKV}, {2 + self.opt["fs"]}')
        e(f's_add_u32 s{sKV}, s{sKV}, {WS_F1}')
        for i in range(4):
            e(f's_add_u32 s{sQX[i]}, s{sTT}, {1 + i}')
            e(f's_and_b32 s{sQX[i]}, s{sQX[i]}, 3')
            e(f's_lshl_b32 s{sQX[i]}, s{sQX[i]}, 10')
            e(f's_add_u32 s{sQX[i]}, s{sQX[i]}, {L_QX + 4096 * g}')
        e(f's_mul_i32 s{sMD}, s{sW}, {RINGW}')
        e(f's_mul_i32 s{sDO}, s{sW}, {11 * 16384}')
        e(f's_lshl_b32 s{t}, s{sCB}, 7')
        e(f's_add_u32 s{sDO}, s{sDO}, s{t}')
        e(f'v_bfe_u32 v{vDR[0]}, v0, 2, 2')
        e(f'v_lshl_add_u32 v{vDR[0]}, v{vP}, 3, v{vDR[0]}')
        e(f'v_lshlrev_b32 v{vDR[0]}, 7, v{vDR[0]}')
        e(f'v_bfe_u32 v{vP}, v0, 4, 1')
        e(f'v_lshl_add_u32 v{vDR[0]}, v{vP}, 5, v{vDR[0]}')
        e(f'v_bfe_u32 v{vP}, v0, 3, 1')
        e(f'v_lshl_add_u32 v{vDR[0]}, v{vP}, 6, v{vDR[0]}')
        e(f'v_and_b32 v{vP}, 3, v0')
        e(f'v_lshl_add_u32 v{vDR[0]}, v{vP}, 3, v{vDR[0]}')
        e(f'v_add_u32 v{vDR[0]}, s{sMD}, v{vDR[0]}')
        e(f'v_xor_b32 v{vDR[1]}, 64, v{vDR[0]}')

    def phase_a_loader(self):
        e = self.e
        o = self.opt
        seq = []
        bound = []
        last = 7 + o['fah']
        for s in range(last + 1):
            bound.append(len(seq))
            seq += self.dma_list(s)
        bound.append(len(seq))
        pos = 0

        def issue(upto):
            nonlocal pos
            while pos < min(upto, len(seq)):
                seq[pos]()
                pos += 1
        self.ids_tb()
        e('v_lshrrev_b32 v16, 3, v0')
        e('v_lshrrev_b32 v17, 4, v0')
        e('v_and_b32 v18, 7, v0')
        e('v_xor_b32 v18, v18, v17')
        e('v_lshlrev_b32 v18, 4, v18')
        e(f'v_lshl_add_u32 v{vXD[0]}, v16, 10, v18')
        e(f'v_xor_b32 v{vXD[1]}, 64, v{vXD[0]}')
        e(f'v_add_u32 v{vXD[1]}, 8192, v{vXD[1]}')
        e(f's_lshl_b32 s{sXO}, s{sTB}, 2')
        e(f's_add_u32 s{sXO}, s{sXO}, s{sTT}')
        e(f's_lshl_b32 s{sXO}, s{sXO}, 8')
        e(f's_add_u32 s{sXO}, s{sXO}, s{sR}')
        e(f's_lshl_b32 s{sXO}, s{sXO}, 7')
        e(f's_lshl_b32 s{sMX}, s{sTT}, 12')
        self.srd_consts(((S_X, 2048 * 1024),))
        e('s_waitcnt lgkmcnt(0)')
        self.stamp(1)
        issue(4)
        self.ids_j()
        self.srd_consts(((S_WQ, 512 * 3072),))
        self.quad_rows(vWD, 3072, 16)
        e(f's_lshr_b32 s{sT}, s{sJ}, 1')
        e(f's_and_b32 s{sT + 1}, s{sJ}, 1')
        e(f's_lshl_b32 s{sT + 1}, s{sT + 1}, 3')
        e(f's_add_u32 s{sT}, s{sT}, s{sT + 1}')
        e(f's_lshl_b32 s{sT}, s{sT}, 7')
        e(f's_lshl_b32 s{sWO}, s{sR}, 2')
        e(f's_add_u32 s{sWO}, s{sWO}, s{sTT}')
        e(f's_mul_i32 s{sWO}, s{sWO}, {16 * 3072}')
        e(f's_add_u32 s{sWO}, s{sWO}, s{sT}')
        e(f's_addk_i32 s{sWO}, 1024')
        e(f's_lshl_b32 s{sMW}, s{sTT}, 11')
        issue(6)
        self.more_args(1)
        issue(12)
        self.x_read_addrs()
        e('s_waitcnt lgkmcnt(0)')
        fill = self.split(lambda: self.setup2(1, 0)) + self.split(self.v_const)
        for _ in range(min(len(fill), o['lpre'])):
            fill.pop(0)()
        D = o['ahead']
        issue(bound[1] + D)
        wx = Win(e, vXR)
        for s in range(8):
            slot = region(s)
            e.wait(vm=f'st{s}', lg='all')
            e('s_barrier')
            if s in (0, 4):
                self.stamp(2 + s // 4)
            end = max(pos, min(bound[s + 2] + (D if s < o['as2'] else o['ahead2']), bound[min(max(s + 4, 5), last + 1)]))
            issue(min(end, pos + o['lfirst']))
            wx.ensure(slot, slot + 2048)
            for ks in range(2):
                n = 2 * s + ks
                for tg in range(2):
                    e(f'ds_read_b128 {vr(X + 8 * n + 4 * tg, 4)}, v{vXR[ks]} offset:{wx.off(slot + 2048 * tg)}', f'r{n}')
            if s == 6:
                e(f'buffer_load_dwordx2 v[{vK[0]}:{vK[0] + 1}], off, {srd(S_DBG)}, 0 sc1', 'non')

            work = [fill.pop(0) for _ in range(min(len(fill), o['lfk']))]
            gaps = max(1, end - pos - o['llast'] + 1)
            done = 0
            for k in range(gaps):
                if k:
                    issue(pos + 1)
                upto = len(work) * (k + 1) // gaps if o['lsp2'] else (len(work) if k == gaps - 1 else 0)
                while done < upto:
                    work[done]()
                    done += 1
            issue(end)
        assert not fill
        self.left = seq[pos:]
        e.wait(vm='st8', lg='all')
        e('s_barrier')
        self.stamp(4)

    def pack8(self, src, dst):
        e = self.e
        for r in range(4):
            e(f'v_cvt_pk_bf16_f32 v{dst + r}, v{src + 2 * r}, v{src + 2 * r + 1}')
        for r in range(2):
            e(f'v_permlane16_swap_b32 v{dst + r}, v{dst + 2 + r}')

    def phase_a_compute(self, ty):
        e = self.e
        NC = 4
        self.more_args(0)
        if self.opt['tlb'] or self.opt['bt']:
            e(f's_load_dwordx4 s[{S_WG}:{S_WG + 3}], s[0:1], 32')
        self.ids_tb()
        self.ids_j()
        e(f's_memrealtime s[{sNON}:{sNON + 1}]')
        e('v_mov_b32 v16, 0')
        e(f'v_mov_b32 v17, {L_CNT}')
        e('ds_write2_b32 v17, v16, v16 offset0:0 offset1:1', 'z0')
        self.srd_consts(((S_DBG, 256), (S_GW, 1024)))
        ZA, GWB, vGA = ACF, ACF + 8, vXD[1]
        e(f's_lshl_b32 s{sT}, s{sR}, 7')
        e(f'v_add_u32 v{vP}, s{sT}, v{vL16}')
        e(f'v_and_b32 v{vP}, 1023, v{vP}')
        e(f'v_and_b32 v{vGA}, 48, v0')
        e(f's_mov_b32 m0, {L_GW}')
        self.x_read_addrs()
        self.tr_base(vWR[0], NC * 512, 16)
        e(f'v_xor_b32 v{vWR[1]}, 32, v{vWR[0]}')
        e('s_waitcnt lgkmcnt(0)')
        for p in e.paths:
            p.lg = []
        self.stamp(1)
        e(f'buffer_load_dwordx4 v{vP}, {srd(S_GW)}, 0 offen lds', 'gw')
        if self.opt['bt']:
            lab = e.newlabel('bt')
            e(f's_cmp_lg_u32 s{sTT}, 2')
            e(f's_cbranch_scc1 {lab}')
            snap = e.snapshot()
            for k, (b, n) in enumerate(((S_X, 64), (S_WQ, 48), (S_WG, 43), (S_WG + 2, 43), (S_WD, 43), (S_WO, 16))):
                if self.opt['bt'] >> k & 1:
                    e(f's_mul_i32 s{sT}, s2, {n * 128}')
                    e(f'v_lshl_add_u32 v16, v0, 7, s{sT}')
                    e(f's_bfm_b64 exec, {n}, 0' if n < 64 else 's_mov_b64 exec, -1')
                    e(f'global_load_dword v{vK[1] + 2}, v16, s[{b}:{b + 1}]', 'bt')
                    e('s_mov_b64 exec, -1')
            e.paths = e.paths + snap
            e.label(lab)
        if self.opt['tlb']:
            G = self.opt['tlb']
            lab = e.newlabel('tl')
            e(f's_cmp_lg_u32 s{sTT}, 3')
            e(f's_cbranch_scc1 {lab}')
            snap = e.snapshot()
            e(f'v_lshlrev_b32 v16, {G}, v0')
            e(f's_mov_b64 exec, {hex((1 << -(-(512 * 2752) >> G)) - 1)}')
            for k in range(2):
                e(f'global_load_dword v{vK[1] + 1}, v16, s[{S_WG + 2 * k}:{S_WG + 2 * k + 1}]', 'tlb')
            e('s_mov_b64 exec, -1')
            e.paths = e.paths + snap
            e.label(lab)
        if not ty:
            e(f's_or_b32 s{sT + 6}, s2, s{sW}')
            lab = e.newlabel('nn')
            e(f's_cbranch_scc1 {lab}')
            snap = e.snapshot()
            e(f's_or_b32 s{sNON + 1}, s{sNON + 1}, 0x80000000')
            e(f'v_mov_b32 v16, s{sNON}')
            e(f'v_mov_b32 v17, s{sNON + 1}')
            e('s_mov_b64 exec, 1')
            e(f'buffer_store_dwordx2 v[16:17], off, {srd(S_DBG)}, 0 sc1', 'nst')
            e('s_mov_b64 exec, -1')
            e.paths = e.paths + snap
            e.label(lab)
        fill = self.split(lambda: self.setup2(0, ty))
        for _ in range(min(len(fill), self.opt['cpre'])):
            fill.pop(0)()
        LA = 4
        wx = Win(e, vXR)
        ww = Win(e, vWR)
        M = 16 * NC
        GL = 2

        def gate(n, buf):
            for tg in range(2):
                z = vr(ZA + 4 * tg, 4)
                e(f'v_mfma_f32_16x16x32_bf16 {z}, {vr(buf, 4)}, {vr(X + 8 * n + 4 * tg, 4)}, {z if n else 0}')

        def reads(m, rd):
            n, ct = divmod(m, NC)
            s, ks = divmod(n, 2)
            slot = region(s)
            if m % (2 * NC) == 0 and rd == 0:
                e('s_barrier')
                if s in (0, 4):
                    self.stamp(2 + s // 4)
                wx.ensure(slot, slot + 2048)
                ww.ensure(slot + 16384, slot + 24576)
            if ct == 0:
                e(f'ds_read_b128 {vr(X + 8 * n + 4 * rd, 4)}, v{vXR[ks]} offset:{wx.off(slot + 2048 * rd)}', f'a{m}')
            if ct == 2 and rd == 0 and n >= GL:
                e.wait(vm='gw')
                e(f'ds_read_b128 {vr(GWB + 4 * (n % 2), 4)}, v{vGA} offset:{L_GW + 64 * (n - GL)}', f'a{m}')
            t = slot + 16384 + ks * NC * 1024 + (ct >> 1) * 1024 + rd * 256
            e(f'ds_read_b64_tr_b16 {vr(FR + 4 * (m % NFR) + 2 * rd, 2)}, v{vWR[ct & 1]} offset:{ww.off(t)}', f'a{m}')

        for m in range(LA):
            reads(m, 0)
            reads(m, 1)
        for m in range(M):
            n, ct = divmod(m, NC)
            e.wait(lg=f'a{m}')
            for tg in range(2):
                acc = vr(ACA + 16 * (ct >> 1) + 8 * tg + 4 * (ct & 1) if ty else ACA + 8 * ct + 4 * tg, 4)
                a, b = vr(FR + 4 * (m % NFR), 4), vr(X + 8 * n + 4 * tg, 4)
                if ty:
                    a, b = b, a
                e(f'v_mfma_f32_16x16x32_bf16 {acc}, {a}, {b}, {acc if n else 0}')
                if m + LA < M:
                    reads(m + LA, tg)
                if tg == 0:
                    for _ in range(2):
                        if fill:
                            fill.pop(0)()
            if ct == 2 and n >= GL:
                gate(n - GL, GWB + 4 * (n % 2))
            if m == M - LA - 1:
                for k in range(GL):
                    e(f'ds_read_b128 {vr(GWB + 8 + 4 * k, 4)}, v{vGA} offset:{L_GW + 64 * (16 - GL + k)}', 'gl')
            if m == M * 7 // 8:
                e(f'buffer_load_dwordx2 v[{vK[0]}:{vK[0] + 1}], off, {srd(S_DBG)}, 0 sc1', 'non')
        assert not fill
        e.wait(lg='gl')
        for k in range(GL):
            gate(16 - GL + k, GWB + 8 + 4 * k)

    def z_write(self):
        e = self.e
        e(f'v_and_b32 v{vP}, 16, v0')
        e(f'v_cmp_eq_u32 vcc, 0, v{vP}')
        e(f's_lshl_b32 s{sT + 1}, s{sTT}, 8')
        e(f'v_lshl_add_u32 v{vP}, v0, 2, s{sT + 1}')
        e(f'v_cndmask_b32 v{vP + 1}, v{ACF + 4}, v{ACF}, vcc')
        e(f'ds_write_b32 v{vP}, v{vP + 1} offset:{L_Z}', 'zw')

    def kv_store(self, i):
        self.e(f'buffer_store_dwordx4 {vr(ACA + 4 * i, 4)}, v{vWD}, {srd(S_WS)}, s{sE[i]} offen sc1', 'qst')

    def spin(self, name, reload, check, sleep=2):
        e = self.e
        lr, lc = e.newlabel(name + 'r'), e.newlabel(name + 'c')
        check()
        e(f's_cbranch_vccnz {lr}')
        e.label(lc)

        def blk():
            e.paths = [p for p in Emitter().paths]
            e.label(lr)
            e(f's_mov_b32 s{sSPIN}, {SPIN}')
            ll = e.newlabel(name + 'l')
            e.label(ll)
            e(f's_sleep {sleep}')
            reload()
            e('s_waitcnt vmcnt(0)')
            check()
            e(f's_cbranch_vccz {lc}')
            e(f's_sub_u32 s{sSPIN}, s{sSPIN}, 1')
            e(f's_cbranch_scc0 {ll}')
            e(f's_branch {lc}')
        self.tail_blocks.append(blk)

    def flag_store(self, soff, tmp):
        e = self.e
        e(f'v_mov_b32 v{tmp}, s{sNON}')
        e(f'v_mov_b32 v{tmp + 1}, s{sNON + 1}')
        e('s_mov_b64 exec, 1')
        e(f'buffer_store_dwordx2 v[{tmp}:{tmp + 1}], off, {srd(S_WS)}, s{soff} sc1', 'flag')
        e('s_mov_b64 exec, -1')

    def kv_load(self, it):
        e = self.e
        b = it % 2

        def k():
            e(f'buffer_load_dwordx4 {vr(vK[b], 4)}, v{vKA}, {srd(S_WS)}, s{sKVI} offen' + FL[self.opt['fh']], f'k{it}')

        def v():
            e(f's_mov_b64 exec, s[{sVM}:{sVM + 1}]')
            e(f'buffer_load_dwordx4 {vr(vV[b], 4)}, v{vKA + 1}, {srd(S_WS)}, s{sKVI} offen offset:1024' + FL[self.opt['fh']], f'v{it}')
            e(f'buffer_load_dwordx4 {vr(vV[b] + 4, 4)}, v{vKA + 1}, {srd(S_WS)}, s{sKVI} offen offset:1536' + FL[self.opt['fh']], f'v{it}')
            e('s_mov_b64 exec, -1')
        return k, v

    def kv_adv(self, part=3):
        if part & 1:
            self.e(f's_addk_i32 s{sKVI}, 2048')
        if part & 2:
            self.e(f's_bitset0_b32 s{sKVI}, 15')

    def gelu(self, c, pk=True):
        e = self.e
        acc = ACF + 16 * c
        T = ACA + 16
        P = lambda b, i: vr(b + 2 * i, 2)
        if not pk:
            real = e

            def e(text):
                if not text.startswith('v_pk_'):
                    return real(text)
                op, rest = text.split(None, 1)
                for h in range(2):
                    ops = [f'{o[0]}{int(o[2:o.index(":")]) + h}' for o in rest.split(', ')]
                    real(op.replace('v_pk_', 'v_') + ' ' + ', '.join(ops))
        for i in range(4):
            e(f'v_pk_mul_f32 {P(T, i)}, {P(acc, i)}, {P(acc, i)}')
        for i in range(4):
            e(f'v_pk_fma_f32 {P(T, i)}, {P(T, i)}, s[{sGC}:{sGC + 1}], {vr(T + 8, 2)}')
        for i in range(4):
            e(f'v_pk_mul_f32 {P(T, i)}, {P(T, i)}, {P(acc, i)}')
        for i in range(8):
            e(f'v_exp_f32 v{T + i}, v{T + i}')
        for i in range(4):
            e(f'v_pk_mul_f32 {P(acc, i)}, {P(acc, i)}, {P(acc + 8, i)}')
        for i in range(4):
            ch = vr(T + 10 + 2 * (i // 2), 2)
            e(f'v_pk_fma_f32 {P(T, i)}, {P(T, i)}, {ch}, {ch}')
        for i in range(8):
            e(f'v_rcp_f32 v{T + i}, v{T + i}')
        for i in range(4):
            e(f'v_pk_mul_f32 {P(acc, i)}, {P(acc, i)}, {P(T, i)}')
        for i in (0, 2, 1, 3):
            e(f'v_cvt_pk_bf16_f32 v{acc + 8 + i}, v{acc + 2 * i}, v{acc + 2 * i + 1}')
        for r in range(2):
            e(f'v_permlane16_swap_b32 v{acc + 8 + r}, v{acc + 10 + r}')

    def h_store(self, c):
        e = self.e
        e(f's_add_u32 s{sT}, s{sHO}, {2048 * c}')
        e(f'buffer_store_dwordx4 {vr(ACF + 16 * c + 8, 4)}, v{vL16}, {srd(S_WS)}, s{sT} offen sc1', 'hst')

    def split(self, fn):
        real = self.e
        rec = []

        class Rec:
            def __call__(s, text, tag=None):
                rec.append(('i', text, tag))

            def wait(s, vm=None, lg=None):
                rec.append(('w', vm, lg))
        self.e = Rec()
        fn()
        self.e = real
        out, grp = [], []
        for r in rec:
            grp.append(r)
            masked = any(x[0] == 'i' and x[1].startswith('s_mov_b64 exec') for x in grp)
            if (masked and r[1] != 's_mov_b64 exec, -1') or r[0] == 'w':
                continue

            def f(grp=grp):
                for x in grp:
                    if x[0] == 'i':
                        real(x[1], x[2])
                    else:
                        real.wait(vm=x[1], lg=x[2])
            out.append(f)
            grp = []
        assert not grp
        return out

    def phase_f(self, g, NC):
        e = self.e
        o = self.opt
        order = []
        for s in range(8):
            for item in ([(0, -1), (1, -1)] if s == 7 else []):
                order.append((2 * s + item[0], -1))
            for ks in range(2):
                order += [(2 * s + ks, r) for r in range(0 if s == 7 else -1, 2 * NC)]
        PS = 4 * NC + 2
        M = 8 * PS
        sc = lambda m: m * PS // 12
        LA = 4
        wf = Win(e, vFR[:NC] + [vQR])
        fill = []
        at = {}
        cur = [0]

        def pin(m, f):
            at.setdefault(m, []).append(f)

        def sched(s, m0, span, extra=()):
            lst = list(extra) + (self.dma_list(s) if g and s <= 15 else [])
            for i, f in enumerate(lst):
                pin(m0 + i * span // len(lst), f)

        def enter(s):
            e.wait(vm=[f'st{s}'] + (['qst'] if s == o['qw'] else []), lg='zw' if s == 9 else None)
            e('s_barrier')
            sched(s + o['fah'], cur[0] + 1, sc(o['span']))
            if s == 9:
                fill.extend(self.split(self.gate_read))
                fill.append(self.nonce_get)
                fill.extend(self.split(self.attn_setup))
                fill.extend(self.split(self.gate_math))
            if s == o['vs'] and g == 0:
                fill.extend(self.split(self.v_const))
            if s == o['qw'] and g == 0:
                fill.insert(0, self.flag1)

        def reads(m, rd):
            s = 8 + m // PS
            if m % PS == 0 and m and rd == 0:
                enter(s)
            n, r = order[m]
            slot = region(s)
            wf.ensure(slot, slot + 28672)
            if r < 0:
                va, t = vQR, slot + QOFF + (n % 2) * 2048 + rd * 256
            else:
                va, t = vFR[r // 2], slot + (r % 2) * UPOFF + (n % 2) * 6144 + rd * 256
            e(f'ds_read_b64_tr_b16 {vr(FR + 4 * (m % NFR) + 2 * rd, 2)}, v{va} offset:{wf.off(t)}', f'f{m}')

        assert o['fah'] <= 3
        if g == 0:
            for i in range(o['qe'], 4):
                pin(sc(o['q0'] + o['qsp'] * (i - o['qe'])), lambda i=i: self.kv_store(i))
            assert sc(o['q0'] + o['qsp'] * (3 - o['qe'])) < (min(o['vs'], o['qw']) - 8) * PS - LA
        sched(8 + o['fah'], 0, PS - LA, self.left if g else ())
        for m in range(LA):
            reads(m, 0)
            reads(m, 1)
        if o['prio']:
            pin(sc(50), lambda: e('s_setprio 3'))
        for m in range(M):
            cur[0] = m
            n, r = order[m]
            e.wait(lg=f'f{m}')
            for tg in range(2):
                acc = vr((QA if r < 0 else ACF + 8 * r) + 4 * tg, 4)
                e(f'v_mfma_f32_16x16x32_bf16 {acc}, {vr(FR + 4 * (m % NFR), 4)}, {vr(X + 8 * n + 4 * tg, 4)}, {acc if n else 0}')
                if m + LA < M:
                    reads(m + LA, tg)
                nf = o['fk'] if m < 7 * PS + 4 else o['gk']
                if tg == 0:
                    lead = at.get(m, [None])[0]
                    if o['dsplit'] and getattr(lead, 'dma', False):
                        lead(1)
                        at[m][0] = lambda lead=lead: lead(2)
                    for _ in range(min(nf, 2) - (lead is not None)):
                        if fill:
                            fill.pop(0)()
            if m % PS == 0 and 2 * PS <= m:
                self.stamp(5 + m // PS, 1)
            if o['omf'] and m == sc(o['omf']):
                fill.extend(self.split(lambda: self.o_mark(X)))
            if m == sc(o['p1i']):
                fill.append(self.poll1_issue)
            if m == sc(o['p1c']):
                fill.append(self.poll1_check)
                for grp in self.attn_loads_early():
                    fill.append(grp)
                    fill.extend([lambda: None] * o['lsp'])
            if m == 5 * PS:
                assert not fill
                fill.extend(self.split(lambda: self.q_addrs(g)))
            if m == 7 * PS + 3:
                fill = self.split(self.q_pack) + fill
            for f in at.pop(m, []):
                f()
            for _ in range(nf - 2):
                if fill:
                    fill.pop(0)()
        assert not at
        for f in fill:
            f()
        e.wait(lg='all')
        e('s_barrier')
        self.stamp(5)
        for i in range(3):
            e(f'ds_read_b128 {vr(vQ[i], 4)}, v{vQ[i]}', f'q{i}')
        side = []
        if o['p1c'] >= 96:
            side = [self.poll1_check] + self.attn_loads_early()
        ge, ends = [], []
        for c in range(NC - 1, -1, -1):
            ge += self.split(lambda: self.gelu(c))
            ends.append((len(ge), c))
        for k, f in enumerate(ge):
            if side and k >= o['g0'] * (1 - g) and k % o['gsp'] == 0:
                side.pop(0)()
            f()
            if not side and ends[0][0] <= k + 1 and ends[0][1] >= o['hl']:
                self.h_store(ends.pop(0)[1])
        assert not side and len(ends) == o['hl']
        if o['ys'] and g == 0:
            assert o['hl'] == 0 and not o['omf']
            self.o_mark()
            self.sig2_a()
            self.sig2_b()
        if o['ys']:
            e('s_setprio 2')

    def q_addrs(self, g):
        e = self.e
        for i in range(3):
            e(f'v_add_u32 v{vQ[i]}, s{sQX[i]}, v{vL16}')
        e(f'v_add_u32 v{vQ[0] + 1}, s{sQX[3]}, v{vL16}')

    def q_pack(self):
        e = self.e
        for r in range(8):
            e(f'v_mul_f32 v{QA + r}, {fbits(QSCALE)}, v{QA + r}')
        self.pack8(QA, vQ[3])
        e(f'ds_write_b128 v{vQ[0] + 1}, {vr(vQ[3], 4)}', 'qw')

    def o_mark(self, d=vH[0]):
        e = self.e
        for i in range(4):
            e(f'v_mov_b32 v{d + i}, -1')
        e(f'buffer_store_dwordx4 {vr(d, 4)}, v{vL16}, {srd(S_WS)}, s{sMO} offen sc1', 'hst')

    def gate_read(self):
        e = self.e
        e(f's_lshl_b32 s{sT}, s{sTT}, 8')
        e(f'v_and_b32 v{vCH}, 15, v0')
        e(f'v_lshl_add_u32 v{vCH}, v{vCH}, 2, s{sT}')
        e(f'v_add_u32 v{vCH}, {L_Z}, v{vCH}')
        e(f'ds_read2_b32 {vr(vCH, 2)}, v{vCH} offset0:0 offset1:16', 'zr')

    def gate_math(self):
        e = self.e
        e.wait(lg='zr')
        for i in range(2):
            e(f'v_mul_f32 v{vCH + i}, {fbits(LOG2E)}, v{vCH + i}')
        for i in range(2):
            e(f'v_exp_f32 v{vCH + i}, v{vCH + i}')
        for i in range(2):
            e(f'v_add_f32 v{vCH + i}, 1.0, v{vCH + i}')
        e(f'v_mov_b32 v{ACA + 24}, {fbits(GC0)}')
        e(f'v_mov_b32 v{ACA + 25}, v{ACA + 24}')
        for i in range(4):
            e(f'v_min_f32 v{ACA + 26 + i}, {fbits(2.0 ** 100)}, v{vCH + i // 2}')
        e(f'v_add_u32 v{vKA}, s{sKVB}, v{vL16}')
        e(f'v_add_u32 v{vKA + 1}, s{sKVB}, v{vVA}')

    def nonce_get(self):
        e = self.e
        e.wait(vm='non')
        ld = lambda: e(f'buffer_load_dwordx2 v[{vK[0]}:{vK[0] + 1}], off, {srd(S_DBG)}, 0 sc1')
        ck = lambda: e(f'v_cmp_eq_u32 vcc, 0, v{vK[0] + 1}')
        self.spin('non', ld, ck)
        e(f'v_readfirstlane_b32 s{sNON}, v{vK[0]}')
        e(f'v_readfirstlane_b32 s{sNON + 1}, v{vK[0] + 1}')

    def flag1(self):
        e = self.e
        lab = e.newlabel('f1')
        e(f's_cmp_lg_u32 s{sW}, 0')
        e(f's_cbranch_scc1 {lab}')
        snap = e.snapshot()
        e(f's_lshl_b32 s{sT + 7}, s{sJ}, 4')
        e(f's_add_u32 s{sT + 7}, s{sT + 7}, s{sTB}')
        e(f's_lshl_b32 s{sT + 7}, s{sT + 7}, {self.opt["fs"]}')
        e(f's_add_u32 s{sT + 7}, s{sT + 7}, {WS_F1}')
        self.flag_store(sT + 7, vK[0])
        e.paths = e.paths + snap
        e.label(lab)

    def attn_setup(self):
        e = self.e
        e(f'v_and_b32 v{vPA}, 4, v0')
        e(f'v_mul_u32_u24 v{vPA}, 3, v{vPA}')
        e(f'v_add_u32 v{vPA}, v{vPA}, v0')
        e(f'v_lshl_add_u32 v{vPA}, v{vPA}, {self.opt["fs"]}, s{sKV}')
        e(f'v_lshrrev_b32 v{vDD[0]}, 3, v0')
        e(f'v_lshrrev_b32 v{vP}, 2, v0')
        e(f'v_and_b32 v{vP}, 4, v{vP}')
        e(f'v_xor_b32 v{vP}, v{vP}, v0')
        e(f'v_and_b32 v{vP}, 7, v{vP}')
        e(f'v_lshlrev_b32 v{vP}, 4, v{vP}')
        e(f'v_lshl_add_u32 v{vDD[0]}, v{vDD[0]}, 10, v{vP}')
        e(f'v_add_u32 v{vDD[1]}, {8192 - 1024}, v{vDD[0]}')
        e(f'v_add_u32 v{vRW[0]}, s{sMD}, v{vL16}')
        e(f'v_lshl_add_u32 v{vRW[1]}, v0, 2, s{sMD}')

    def v_const(self):
        e = self.e
        e(f'v_and_b32 v{vV[0] + 1}, 27, v0')
        e(f'v_cmp_eq_u32 vcc, 16, v{vV[0] + 1}')
        e(f'v_mov_b32 v{vV[0] + 1}, 0x3f803f80')
        e(f'v_cndmask_b32 v{vV[0]}, 0, v{vV[0] + 1}, vcc')
        for i in range(1, 16):
            e(f'v_mov_b32 v{vV[0] + i}, v{vV[0]}')

    def poll1_issue(self):
        e = self.e
        e('s_mov_b64 exec, 0xff')
        e(f'buffer_load_dwordx2 v[{vP}:{vP + 1}], v{vPA}, {srd(S_WS)}, 0 offen sc1', 'p1')
        e('s_mov_b64 exec, -1')

    def poll1_check(self):
        e = self.e
        e.wait(vm='p1')
        e('s_mov_b64 exec, 0xff')
        e(f'v_cmp_ne_u64 vcc, s[{sNON}:{sNON + 1}], v[{vP}:{vP + 1}]')
        e('s_mov_b64 exec, -1')

    def attn_load_groups(self):
        e = self.e
        k0, v0 = self.kv_load(0)
        k1, v1 = self.kv_load(1)

        return [k0, lambda: (v0(), self.kv_adv()), k1, lambda: (v1(), self.kv_adv())]

    def attn_loads_early(self):
        e = self.e
        out = []
        for n, f in enumerate(self.attn_load_groups()):
            def g(f=f, n=n):
                lab = e.newlabel('al')
                e(f's_cbranch_vccnz {lab}')
                if n == 0:
                    skip = e.snapshot()
                    for p in skip:
                        p.g = 'pend'
                else:
                    skip = [p for p in e.paths if p.g == 'pend']
                    e.paths = [p for p in e.paths if p.g != 'pend']
                f()
                e.paths = e.paths + skip
                e.label(lab)
            out.append(g)
        return out

    def attn_loads_late(self):
        e = self.e
        e('s_cbranch_vccnz Llate')
        e.label('Llate_done')
        e.paths = [p for p in e.paths if p.g != 'pend']

        def blk():
            e.paths = [p for p in Emitter().paths]
            e.label('Llate')
            e('s_mov_b64 exec, 0xff')
            ld = lambda: e(f'buffer_load_dwordx2 v[{vP}:{vP + 1}], v{vPA}, {srd(S_WS)}, 0 offen sc1')
            ck = lambda: e(f'v_cmp_ne_u64 vcc, s[{sNON}:{sNON + 1}], v[{vP}:{vP + 1}]')
            ld()
            e('s_waitcnt vmcnt(0)')
            self.spin('p1', ld, ck, self.opt['sl1'])
            e('s_mov_b64 exec, -1')
            for f in self.attn_load_groups():
                f()
            e('s_waitcnt vmcnt(0)')
            e('s_branch Llate_done')
        self.tail_blocks.append(blk)

    def sig2_a(self):
        e = self.e
        e.wait(vm='hst')
        e(f'v_mov_b32 v{vP}, {L_CNT}')
        e(f'v_mov_b32 v{vP + 1}, 1')
        e('s_mov_b64 exec, 1')
        e(f'ds_add_rtn_u32 v{vP}, v{vP}, v{vP + 1}', 'cnt2')
        e('s_mov_b64 exec, -1')

    def sig2_b(self):
        e = self.e
        e.wait(lg='cnt2')
        e(f'v_readfirstlane_b32 s{sT}, v{vP}')
        lab = e.newlabel('f2')
        e(f's_cmp_lg_u32 s{sT}, 7')
        e(f's_cbranch_scc1 {lab}')
        snap = e.snapshot()
        e(f's_lshl_b32 s{sT}, s{sTB}, 4')
        e(f's_add_u32 s{sT}, s{sT}, s{sJ}')
        e(f's_lshl_b32 s{sT}, s{sT}, {self.opt["fs"]}')
        e(f's_add_u32 s{sT}, s{sT}, {WS_F2}')
        self.flag_store(sT, vP)
        e.paths = e.paths + snap
        e.label(lab)

    def attention(self):
        e = self.e
        G0 = self.opt['g2start']
        NT = 64

        def qk(t):
            it, sl = divmod(t, 4)
            if sl == 0:
                e.wait(vm=f'k{it}')
            if it == 0:
                e.wait(lg=f'q{sl}')
            e(f'v_mfma_f32_32x32x16_bf16 {vr(vS[t % 2], 16)}, {vr(vK[it % 2], 4)}, {vr(vQ[sl], 4)}, 0')

        def pv(t, hi):
            it, sl = divmod(t, 4)
            if sl == 0 and not hi:
                e.wait(vm=f'v{it}')
            e(f'v_smfmac_f32_32x32x32_bf16 {vr(vO[sl], 16)}, {vr(vV[it % 2] + 4 * hi, 4)}, {vr(vS[t % 2] + 8 * hi, 8)}, v{vIDX}')

        def ex(t, a, b):
            for i in range(a, b):
                e(f'v_exp_f32 v{vS[t % 2] + i}, v{vS[t % 2] + i}')

        def stage_dma(rs, so, i, tag):
            return lambda: e(f'buffer_load_dwordx4 v{vDD[i]}, {srd(rs)}, s{so} offen' + (' offset:1024' if i else '') + FL[self.opt['fw']] + ' lds', tag)

        def wo_first():
            e(f's_lshl_b32 s{sWO}, s{sW}, 16')
            e(f's_lshl_b32 s{sT}, s{sCB}, 7')
            e(f's_add_u32 s{sWO}, s{sWO}, s{sT}')
            e(f's_lshl_b32 s{sMW}, s{sW}, 13')

        def h_load(step, i):
            return lambda: e(f'buffer_load_dwordx4 {vr(vH[step % 2] + 4 * i, 4)}, v{vHA[i]}, {srd(S_H)}, s{sHO} offen' + FL[self.opt['fh']], f'h{step}')

        def wd_read(step, jj):
            def f():
                e.wait(vm=f'd{step}')
                for rd in range(2):
                    e(f'ds_read_b64_tr_b16 {vr(vD + 4 * jj + 2 * rd, 2)}, v{vDR[jj]} offset:{L_RING + 2048 * (step % 3) + 512 * rd}', f'dr{step}_{jj}')
            return f

        def g2(step, sl):
            jj, i = divmod(sl, 2)
            e.wait(vm=f'h{step}', lg=f'dr{step}_{jj}')
            acc = vr(vG[i * 2 + jj], 16)
            e(f'v_mfma_f32_32x32x16_bf16 {acc}, {vr(vD + 4 * jj, 4)}, {vr(vH[step % 2] + 4 * i, 4)}, {acc if step else 0}')

        def only_g1(fn):
            def f():
                if not self.opt['ys']:
                    return fn()
                lab = e.newlabel('g1')
                e(f's_cmp_eq_u32 s{sG}, 0')
                e(f's_cbranch_scc1 {lab}')
                snap = e.snapshot()
                fn()
                for p in snap:
                    p.vm = [t if t != 'hst' else None for t in p.vm]
                e.paths = e.paths + snap
                e.label(lab)
            return f

        def h_addrs():
            e(f's_and_b32 s{sT}, s{sW}, 1')
            e(f's_lshl_b32 s{sT}, s{sT}, 10')
            e(f'v_add_u32 v{vHA[0]}, s{sT}, v{vL16}')
            e(f'v_xor_b32 v{vHA[1]}, 1024, v{vHA[0]}')
            e(f's_mul_i32 s{sHO}, s{sW}, {11 * 2048}')

        def poll2_issue():
            e(f's_lshr_b32 s{sT + 1}, s{sRB}, 1')
            e(f's_lshl_b32 s{sT + 1}, s{sT + 1}, {4 + self.opt["fs"]}')
            e(f's_add_u32 s{sT + 1}, s{sT + 1}, {WS_F2}')
            e(f'v_lshl_add_u32 v{vPA}, v0, {self.opt["fs"]}, s{sT + 1}')
            e('s_mov_b64 exec, 0xffff')
            e(f'buffer_load_dwordx2 v[{vP}:{vP + 1}], v{vPA}, {srd(S_WS)}, 0 offen sc1', 'p2')
            e('s_mov_b64 exec, -1')

        def poll2_check():
            e.wait(vm='p2')
            e('s_mov_b64 exec, 0xffff')
            ld = lambda: e(f'buffer_load_dwordx2 v[{vP}:{vP + 1}], v{vPA}, {srd(S_WS)}, 0 offen sc1')
            ck = lambda: e(f'v_cmp_ne_u64 vcc, s[{sNON}:{sNON + 1}], v[{vP}:{vP + 1}]')
            self.spin('p2', ld, ck, self.opt['sl2'])
            e('s_mov_b64 exec, -1')

        def co_read():
            e(f's_lshl_b32 s{sT}, s{sTT}, 8')
            e(f'v_lshl_add_u32 v{vCO}, v0, 2, s{sT}')
            e(f'ds_read_b32 v{vCO}, v{vCO} offset:{L_Z}', 'zr2')

        def co_math():
            e.wait(lg='zr2')
            e(f'v_mul_f32 v{vCO}, {fbits(-LOG2E)}, v{vCO}')
            e(f'v_exp_f32 v{vCO}, v{vCO}')

        def ored_addr(i):
            def f():
                e(f's_sub_u32 s{sT}, s{sTT}, {1 + i}')
                e(f's_and_b32 s{sT}, s{sT}, 3')
                e(f's_lshl_b32 s{sT + 1}, s{sG}, 2')
                e(f's_add_u32 s{sT}, s{sT}, s{sT + 1}')
                e(f's_mul_i32 s{sT}, s{sT}, {RINGW}')
                e(f'v_add_u32 v{vRR + i}, s{sT}, v{vL16}')
                e(f'v_lshl_add_u32 v{vRR + 3 + i}, v0, 2, s{sT}')
            return f

        def o_addr():
            e(f's_lshl_b32 s{sO[0]}, s{sRB}, 1')
            e(f's_and_b32 s{sT}, s{sW}, 1')
            e(f's_add_u32 s{sO[0]}, s{sO[0]}, s{sT}')
            e(f's_lshl_b32 s{sO[0]}, s{sO[0]}, 2')

        def o_addr2():
            e(f's_lshr_b32 s{sT}, s{sW}, 1')
            e(f's_add_u32 s{sO[0]}, s{sO[0]}, s{sT}')
            e(f's_lshl_b32 s{sO[0]}, s{sO[0]}, 13')
            e(f's_add_u32 s{sO[0]}, s{sO[0]}, {WS_O}')
            e(f's_add_u32 s{sO[1]}, s{sO[0]}, 4096')

        def ored_write(sl, part):
            o = L_RING + 2304 * sl
            if part < 2:
                return lambda: e(f'ds_write_b128 v{vRW[0]}, {vr(vO[sl] + 4 * part, 4)} offset:{o + 1024 * part}', 'orw')
            return lambda: e(f'ds_write_b32 v{vRW[1]}, v{vO[sl] + 8} offset:{o + 2048}', 'orw')

        side = {}
        add = lambda t, p, f: side.setdefault((t, p), []).append(f)
        I = lambda text: (lambda: e(text))
        for it in range(16):
            t = 4 * it
            st = it - G0
            add(t, 1, lambda it=it, st=st: e.wait(vm=[f'v{it}', f'h{st}'], lg=f'dr{st}_0'))
            add(t + 2, 2, lambda it=it, st=st: e.wait(vm=[f'k{it + 1}', f'd{st + 1}'], lg=f'dr{st}_1'))
            if 1 <= it < 15:
                add(t, 0, self.kv_load(it + 1)[1])
                add(t, 2, self.kv_adv)
            if it < 14:
                add(t + 2, 1, self.kv_load(it + 2)[0])
        for step in range(11):
            t = 4 * (G0 + step)
            add(t - 7, 2, I(f's_add_u32 m0, s{sMD}, {L_RING + 2048 * (step % 3)}'))
            add(t - 7, 4, stage_dma(S_WD, sDO, 0, f'd{step}'))
            add(t - 6, 0, stage_dma(S_WD, sDO, 1, f'd{step}'))
            add(t - 6, 0, I(f's_addk_i32 s{sDO}, 16384'))
            add(t - 4, 4, h_load(step, 0))
            add(t - 3, 1, h_load(step, 1))
            add(t - 3, 2, I(f's_addk_i32 s{sHO}, 2048'))
            add(t - 1, 0, wd_read(step, 0))
            add(t + 1, 0, wd_read(step, 1))
        t = 4 * self.opt['woi'] + 3
        add(t - 1, 4, wo_first)
        for k in range(4):
            add(t + 4 * k, 1, I(f's_add_u32 m0, s{sMW}, {L_WO + 2048 * k}'))
            add(t + 4 * k, 2, stage_dma(S_WO, sWO, 0, 'wo'))
            add(t + 4 * k, 2, stage_dma(S_WO, sWO, 1, 'wo'))
            add(t + 4 * k, 4, I(f's_addk_i32 s{sWO}, 16384'))
        if not self.opt['omf']:
            add(self.opt['om'], 2, only_g1(self.o_mark))
        for c in range(self.opt['hl']):
            add(c * self.opt['hsp'], 2, lambda c=c: self.h_store(c))
        for i in range(3):
            add(22 + 4 * i, 2, ored_addr(i))
        add(34, 2, o_addr)
        add(38, 2, o_addr2)
        add(2, 2, co_read)
        add(3, 2, co_math)
        add(self.opt['s2t'], 2, only_g1(self.sig2_a))
        add(self.opt['s2t'] + 1, 2, only_g1(self.sig2_b))
        add(self.opt['s2t'] + 2, 2, h_addrs)
        add(4 * (G0 - 2) + 2, 2, poll2_issue)
        add(4 * (G0 - 1), 2, poll2_check)
        for sl in range(3):
            add(61 + sl, 4, ored_write(sl, 0))
            add(*((62 + sl, 0) if sl < 2 else (63, 3)), ored_write(sl, 1))
            add(*((62 + sl, 0) if sl < 2 else (63, 3)), ored_write(sl, 2))
        if self.opt['prio']:
            add(self.opt['pa'], 2, lambda: e('s_setprio 2'))
            add(self.opt['pb'], 2, lambda: e('s_setprio 1'))
            add(self.opt['pc'], 2, lambda: e('s_setprio 0'))

        def run(t, p):
            for f in side.get((t, p), []):
                f()

        def zero(sl):
            e(f'v_mfma_f32_32x32x16_bf16 {vr(vO[sl], 16)}, {vr(vD, 4)}, {vr(vD, 4)}, 0')

        e(f'v_mov_b32 v{vIDX}, 0xdddddddd')
        for i in range(4):
            e(f'v_mov_b32 v{vD + i}, 0')
        qk(0)
        self.stamp(9, 3)
        if self.opt['zm']:
            zero(0)
        for t in range(NT):
            it, sl = divmod(t, 4)
            ex(t, 0, 2)
            if t > 0:
                pv(t - 1, 1)
            run(t, 0)
            ex(t, 2, 5)
            if t + 1 < NT:
                qk(t + 1)
            run(t, 1)
            ex(t, 5, 10)
            pv(t, 0)
            run(t, 2)
            ex(t, 10, 13)
            if G0 <= it < G0 + 11:
                g2(it - G0, sl)
            if t < 3 and self.opt['zm']:
                zero(t + 1)
            run(t, 4)
            ex(t, 13, 16)
            run(t, 3)
            if t in (7, 31):
                self.stamp(7 if t == 7 else 8)
            if t in (3, 5, 7):
                self.stamp(10 + (t - 3) // 2, 3)
        pv(NT - 1, 1)
        run(NT, 0)

    def tail(self):
        e = self.e
        own = vO[3]
        R = vO[0]
        WO = vO[0]
        OFR = [vH[0], vH[1], ACA + 16, ACA + 24]
        PRE = X + 64
        vFW, vPW, vOA = FR, FR + 4, FR + 9
        vFRd, vPR = vK[1], vRR
        HEADS = (1, 3, 5, 7, 0, 2, 4, 6)
        P2 = lambda b, i: vr(b + 2 * i, 2)

        def o_reduce(g):
            for i in range(3):
                e(f'ds_read_b32 v{R + 24 + i}, v{vRR + 3 + i} offset:{L_RING + 2304 * i + 2048}', f'or{i}')
            for i in range(3):
                o = L_RING + 2304 * i
                e(f'ds_read_b128 {vr(R + 8 * i, 4)}, v{vRR + i} offset:{o}', f'oa{i}')
                e(f'ds_read_b128 {vr(R + 8 * i + 4, 4)}, v{vRR + i} offset:{o + 1024}', f'oa{i}')
            if g == 0:
                for kk in range(2):
                    old(kk, f'o{kk}')
            e.wait(lg='or2')
            e(f'v_add_f32 v{R + 24}, v{R + 24}, v{R + 25}')
            e(f'v_add_f32 v{own + 8}, v{own + 8}, v{R + 26}')
            e(f'v_add_f32 v{own + 8}, v{own + 8}, v{R + 24}')
            e(f'v_subrev_u32 v{R + 24}, {(127 - 60) << 23}, v{own + 8}')
            e(f'v_cmp_lt_u32 vcc, {120 << 23}, v{R + 24}')
            e(f'v_fma_f32 v{R + 28}, v{own + 8}, v{vCO}, v{own + 8}')
            e(f'v_rcp_f32 v{R + 28}, v{R + 28}')
            for i in range(3):
                e.wait(lg=f'oa{i}')
                for r in range(4):
                    if g:
                        for h in range(2):
                            e(f'v_add_f32 v{own + 2 * r + h}, v{own + 2 * r + h}, v{R + 8 * i + 2 * r + h}')
                    else:
                        e(f'v_pk_add_f32 {P2(own, r)}, {P2(own, r)}, {P2(R + 8 * i, r)}')
            e('s_cbranch_vccnz Lsafe')
            e.label(f'Lsafe_done{g}')
            for r in range(8):
                e(f'v_mul_f32 v{own + r}, v{own + r}, v{R + 28}')
            for r in range(4):
                e(f'v_cvt_pk_bf16_f32 v{vK[0] + r}, v{own + 2 * r}, v{own + 2 * r + 1}')
            for r in range(4):
                e(f'v_min_u32 v{vK[0] + r}, -2, v{vK[0] + r}')
            e(f'buffer_store_dwordx4 {vr(vK[0], 4)}, v{vL16}, {srd(S_WS)}, s{sMO} offen sc1', 'ost')
            self.stamp(10)
            e(f's_lshr_b32 s{sT + 1}, s{sW}, 1')
            e(f's_lshl_b32 s{sT + 2}, s{sT + 1}, 14')
            e(f's_mul_i32 s{sT + 3}, s{sW}, {RINGW}')
            e(f's_sub_u32 s{sT + 2}, s{sT + 2}, s{sT + 3}')
            e(f's_add_u32 s{sT + 2}, s{sT + 2}, {L_WO}')
            e(f'v_and_b32 v{vP + 1}, 32, v0')
            e(f'v_lshlrev_b32 v{vP + 1}, 4, v{vP + 1}')
            e(f'v_sub_u32 v{vP + 1}, s{sT + 2}, v{vP + 1}')
            for jj in range(2):
                e(f'v_add_u32 v{vDR[jj]}, v{vP + 1}, v{vDR[jj]}')

        def old(kk, tag=None):
            for n in (2 * kk, 2 * kk + 1):
                e(f'buffer_load_dwordx4 {vr(OFR[kk] + 4 * (n & 1), 4)}, v{vL16}, {srd(S_WS)}, s{sO[HEADS[n] >> 2]} offen offset:{1024 * (HEADS[n] & 3)} sc1', tag)

        def wo_reads(n):
            for jj in range(2):
                for rd in range(2):
                    e(f'ds_read_b64_tr_b16 {vr(WO + 8 * n + 4 * jj + 2 * rd, 2)}, v{vDR[jj]} offset:{2048 * HEADS[n] + 1024 * rd}', f'wor{n}')

        def addrs(g, part=3):
            t0, t1 = vK[1] + 2, vK[1] + 3
            if part & 1:
                e(f'v_and_b32 v{vPW}, 31, v0')
                e(f'v_lshrrev_b32 v{t0}, 5, v0')
                e(f'v_and_b32 v{t1}, 7, v0')
                e(f'v_xor_b32 v{t0}, v{t0}, v{t1}')
                e(f'v_lshlrev_b32 v{t0}, 4, v{t0}')
                e(f'v_lshl_add_u32 v{vPW}, v{vPW}, 8, v{t0}')
                e(f's_lshl_b32 s{sT}, s{sTT}, 13')
                e(f's_add_u32 s{sT}, s{sT}, {98304 * g}')
                e(f'v_add_u32 v{vPW}, s{sT}, v{vPW}')
                for q in range(1, 4):
                    e(f'v_xor_b32 v{vPW + q}, {32 * q}, v{vPW}')
            if not part & 2:
                return
            e(f'v_lshrrev_b32 v{t0}, 3, v0')
            e(f'v_lshlrev_b32 v{vOA}, 4, v{t1}')
            e(f'v_lshl_add_u32 v{vOA}, v{t0}, 10, v{vOA}')
            e(f'v_lshlrev_b32 v{t1}, 1, v{t1}')
            e(f'v_xor_b32 v{t1}, v{t1}, v{t0}')
            e(f'v_lshlrev_b32 v{t1}, 4, v{t1}')
            e(f'v_lshl_add_u32 v{t1}, v{t0}, 8, v{t1}')
            e(f's_and_b32 s{sT + 2}, s{sW}, 1')
            e(f's_lshl_b32 s{sT + 2}, s{sT + 2}, 2')
            e(f's_add_u32 s{sT + 2}, s{sT + 2}, s{sT + 1}')
            e(f's_lshl_b32 s{sT + 3}, s{sT + 2}, 11')
            e(f'v_add_u32 v{vFRd}, s{sT + 3}, v{t1}')
            e(f'v_xor_b32 v{vFRd + 1}, 16, v{vFRd}')
            for h in range(2):
                e(f'v_xor_b32 v{vPR + h}, {8192 + L_PRE1}, v{vFRd + h}')
            for p in range(2):
                for h in range(2):
                    e(f'ds_read_b128 {vr(PRE + 8 * p + 4 * h, 4)}, v{vPR + h} offset:{16384 * p}', 'pr')
            for h in range(2):
                e(f'v_xor_b32 v{vPR + 2 + h}, 8192, v{vFRd + h}')
                e(f'v_add_u32 v{vPR + 4 + h}, 98304, v{vFRd + h}')
            e(f's_lshl_b32 s{sT}, s{sRB}, 3')
            e(f's_add_u32 s{sT}, s{sT}, s{sT + 2}')
            e(f's_lshl_b32 s{sT}, s{sT}, 13')
            e(f's_lshl_b32 s{sT + 1}, s{sCB}, 7')
            e(f's_add_u32 s{sT}, s{sT}, s{sT + 1}')

        def slab_write(g, i, n):
            jj, q = divmod(n, 4)
            e(f'ds_write_b128 v{vPW + q}, {vr(vG[2 * i + jj] + 4 * q, 4)} offset:{32768 * (i ^ g ^ 1) + 128 * jj}', 'sw')

        def mf(jj, n):
            acc = vr(vG[jj], 16)
            e(f'v_mfma_f32_32x32x16_bf16 {acc}, {vr(WO + 8 * n + 4 * jj, 4)}, {vr(OFR[n >> 1] + 4 * (n & 1), 4)}, {acc}')

        def mm(kk, between=None, jjs=(0, 1)):
            e.wait(vm=f'o{kk}')

            def ck():
                b = OFR[kk]
                e(f'v_max3_u32 v{vP}, v{b}, v{b + 1}, v{b + 2}')
                e(f'v_max3_u32 v{vP + 1}, v{b + 3}, v{b + 4}, v{b + 5}')
                e(f'v_max3_u32 v{vP}, v{vP}, v{b + 6}, v{b + 7}')
                e(f'v_max_u32 v{vP}, v{vP}, v{vP + 1}')
                e(f'v_cmp_eq_u32 vcc, -1, v{vP}')
            self.spin(f'o{kk}', lambda: [old(q) for q in range(kk, (kk | 1) + 1)], ck, self.opt['sl3'])
            for i, (jj, n) in enumerate(((0, 2 * kk), (0, 2 * kk + 1), (1, 2 * kk), (1, 2 * kk + 1))):
                if jj in jjs:
                    mf(jj, n)
                if between:
                    between(i)

        self.stamp(9)
        e(f's_cmp_lg_u32 s{sG}, 0')
        e('s_setprio 3')
        e.wait(vm='wo', lg='all')
        e('s_cbranch_scc1 Ltail1')
        snap = e.snapshot()
        self.tail_blocks.append(self.safe_softmax)

        def first_group():
            e.restore(snap)
            e.label('Ltail1')
            e(f'v_mov_b32 v{vPA}, {L_CNT}')
            e(f'v_mov_b32 v{vP}, 1')
            e('s_mov_b64 exec, 1')
            e(f'ds_add_u32 v{vPA}, v{vP} offset:4')
            e('s_mov_b64 exec, -1')

            def ld():
                e(f'ds_read_b64 {vr(vP, 2)}, v{vPA}')
                e('s_waitcnt lgkmcnt(0)')

            def ck():
                e(f'v_add_u32 v{vP}, v{vP}, v{vP + 1}')
                e(f'v_cmp_ne_u32 vcc, 12, v{vP}')
            ld()
            for p in e.paths:
                p.lg = []
            self.spin('g1', ld, ck, 1)
            o_reduce(1)
            addrs(1, 1)
            e('s_setprio 0')
            for n in range(8):
                wo_reads(n)
                slab_write(1, 1, n)
            e.wait(lg='all')
            e('s_barrier')
            for kk in range(4 if self.opt['ol'] == 0 else 2):
                old(kk, f'o{kk}')
            addrs(1, 2)
            e('s_barrier')
            self.stamp(11)
            finish(1, self.opt['ol'])
            e('s_branch Ltail2')
        self.tail_blocks.insert(0, first_group)

        def finish(g, late, k0=0):
            def pre_add(i):
                e.wait(lg='pr')
                for r in range(2 * i, 2 * i + 2):
                    e(f'v_add_f32 v{PRE + r}, v{PRE + r}, v{PRE + 8 + r}')
            for kk in range(k0, 4):
                if late == kk + 1:
                    for q in range(2, 4):
                        old(q, f'o{q}')
                e.wait(lg=f'wor{2 * kk + 1}')
                mm(kk, pre_add if kk == 3 else None)
            self.stamp(12)
            for n in range(8):
                slab_write(g, 0, n)
            e.wait(lg='all')

        e('s_barrier')
        o_reduce(0)
        YL = self.opt['yl']
        lateld = lambda: [old(q, f'o{q}') for q in range(2, 4)]
        if YL == 0:
            lateld()
        for n in range(4):
            wo_reads(n)
        addrs(0, 1)
        e('s_barrier')
        for kk in range(2):
            if YL == kk + 1:
                lateld()
            e.wait(lg=f'wor{2 * kk + 1}')

            def lds_work(i, kk=kk):
                slab_write(0, 1, 4 * kk + i)
                if i % 2:
                    wo_reads(4 + 2 * kk + i // 2)
            mm(kk, lds_work)
        if YL == 3:
            lateld()
        addrs(0, 2)
        self.stamp(11)
        finish(0, 0, 2)
        e.label('Ltail2')
        e('s_barrier')
        B = X
        src = [(vPR + 2, 0), (vPR + 2, 16384), (vPR + 4, 0), (vPR + 4, 16384), (vFRd, 32768), (vFRd, 49152)]
        for p, (va, off) in enumerate(src):
            for h in range(2):
                e(f'ds_read_b128 {vr(B + 8 * p + 4 * h, 4)}, v{va + h} offset:{off}', f'fr{p}')
        for p in range(6):
            e.wait(lg=f'fr{p}')
            for r in range(4):
                e(f'v_pk_add_f32 {P2(PRE, r)}, {P2(PRE, r)}, {P2(B + 8 * p, r)}')
        for r in range(4):
            e(f'v_cvt_pk_bf16_f32 v{B + r}, v{PRE + 2 * r}, v{PRE + 2 * r + 1}')
        e(f'buffer_store_dwordx4 {vr(B, 4)}, v{vOA}, {srd(S_OUT)}, s{sT} offen sc1')
        if 'probe' in self.opt:
            e.wait(vm='all')
            self.stamp(13)
            e.label('Lprobe')
            e('s_sleep 1')
            e(f's_memrealtime s[{sSTMP}:{sSTMP + 1}]')
            e('s_waitcnt lgkmcnt(0)')
            e(f's_sub_u32 s{sSTMP}, s{sSTMP}, s{sNON if self.opt["probe"] == 99 else sSTAMP}')
            e(f's_cmp_lt_u32 s{sSTMP}, 6000')
            e('s_cbranch_scc1 Lprobe')
        if self.stamps:
            e.wait(vm='all')
            self.stamp(13)
            e(f's_lshl_b32 s{sT}, s2, 3')
            e(f's_add_u32 s{sT}, s{sT}, s{sW}')
            e(f's_lshl_b32 s{sT}, s{sT}, 6')
            e(f's_add_u32 s{sT}, s{sT}, {WS_ST}')
            e('s_waitcnt lgkmcnt(0)')
            en = [i for i in range(14) if (self.opt.get('smask', 0x2001) | 0x2001) >> i & 1]
            for k, i in enumerate(en):
                e(f'v_mov_b32 v{B + 8 + i}, s{sSTAMP + 2 * k}')
            e('s_mov_b64 exec, 1')
            for i in range(4):
                e(f'buffer_store_dwordx4 {vr(B + 8 + 4 * i, 4)}, off, {srd(S_WS)}, s{sT} offset:{16 * i}')
        e.label('Lexit')
        e('s_endpgm')

    def safe_softmax(self):
        e = self.e
        e.paths = [p for p in Emitter().paths]
        own = vO[3]
        M = vO[0]
        S = vS[0]
        e.label('Lsafe')
        e(f's_and_b32 s{sT + 2}, s{sKVB}, {0xffffffff ^ (3 << 15)}')
        e(f's_mov_b32 s{sT + 3}, s{sT + 2}')
        e(f's_mov_b32 s{sT + 4}, 64')
        e(f'v_mov_b32 v{M}, 0xff800000')
        e.label('Lsafe1')
        e(f'buffer_load_dwordx4 {vr(vK[0], 4)}, v{vL16}, {srd(S_WS)}, s{sT + 3} offen sc1')
        e(f's_add_u32 s{sT + 3}, s{sT + 3}, 2048')
        e('s_waitcnt vmcnt(0)')
        e(f'v_mfma_f32_32x32x16_bf16 {vr(S, 16)}, {vr(vK[0], 4)}, {vr(vQ[3], 4)}, 0')
        for i in range(0, 16, 2):
            e(f'v_max3_f32 v{M}, v{M}, v{S + i}, v{S + i + 1}')
        e(f's_sub_u32 s{sT + 4}, s{sT + 4}, 1')
        e(f's_cmp_lg_u32 s{sT + 4}, 0')
        e('s_cbranch_scc1 Lsafe1')
        e(f'v_mov_b32 v{M + 1}, v{M}')
        e(f'v_permlane32_swap_b32 v{M}, v{M + 1}')
        e(f'v_max_f32 v{M}, v{M}, v{M + 1}')
        e(f'v_sub_f32 v{M}, 0, v{M}')
        for i in range(1, 16):
            e(f'v_mov_b32 v{M + i}, v{M}')
        for i in range(16):
            e(f'v_mov_b32 v{own + i}, 0')
        e(f's_mov_b32 s{sT + 3}, s{sT + 2}')
        e(f's_mov_b32 s{sT + 4}, 64')
        e.label('Lsafe2')
        e(f'buffer_load_dwordx4 {vr(vK[0], 4)}, v{vL16}, {srd(S_WS)}, s{sT + 3} offen sc1')
        e(f's_mov_b64 exec, s[{sVM}:{sVM + 1}]')
        e(f'buffer_load_dwordx4 {vr(vV[0], 4)}, v{vVA}, {srd(S_WS)}, s{sT + 3} offen offset:1024 sc1')
        e(f'buffer_load_dwordx4 {vr(vV[0] + 4, 4)}, v{vVA}, {srd(S_WS)}, s{sT + 3} offen offset:1536 sc1')
        e('s_mov_b64 exec, -1')
        e(f's_add_u32 s{sT + 3}, s{sT + 3}, 2048')
        e('s_waitcnt vmcnt(0)')
        e(f'v_mfma_f32_32x32x16_bf16 {vr(S, 16)}, {vr(vK[0], 4)}, {vr(vQ[3], 4)}, {vr(M, 16)}')
        for i in range(16):
            e(f'v_exp_f32 v{S + i}, v{S + i}')
        for hi in range(2):
            e(f'v_smfmac_f32_32x32x32_bf16 {vr(own, 16)}, {vr(vV[0] + 4 * hi, 4)}, {vr(S + 8 * hi, 8)}, v{vIDX}')
        e(f's_sub_u32 s{sT + 4}, s{sT + 4}, 1')
        e(f's_cmp_lg_u32 s{sT + 4}, 0')
        e('s_cbranch_scc1 Lsafe2')
        e('s_nop 15')
        e(f'v_fma_f32 v{vO[0] + 28}, v{own + 8}, v{vCO}, v{own + 8}')
        e(f'v_rcp_f32 v{vO[0] + 28}, v{vO[0] + 28}')
        e(f's_cmp_lg_u32 s{sG}, 0')
        e('s_cbranch_scc1 Lsafe_done1')
        e('s_branch Lsafe_done0')

    def build(self):
        e = self.e
        self.prologue()
        e.drop = (None, ('v_mfma',), ('v_mfma', 'ds_read_b64_tr'), ('ds_read_b64_tr',))[self.opt.get('x_drop', 0)]
        snap = e.snapshot()
        e.label('Lload')
        self.phase_a_loader()
        self.phase_f(1, 3)
        e('s_branch Lffn')
        ends = e.snapshot()
        cends = []
        for ty in (0, 1):
            e.restore(snap)
            e.label(f'Lcomp{ty}')
            self.phase_a_compute(ty)
            if ty == 0:
                e('s_branch Lpack')
            cends += e.snapshot()
        e.paths = cends
        e.label('Lpack')
        e(f's_mul_i32 s{sT}, s{sJ}, 43691')
        e(f's_lshr_b32 s{sT}, s{sT}, 17')
        e(f's_mul_i32 s{sT}, s{sT}, 3')
        for i in range(4):
            self.pack8(ACA + 8 * i, ACA + 4 * i)
            if i < self.opt['qe']:
                self.kv_store(i)
        self.z_write()
        e(f's_cmp_eq_u32 s{sT}, s{sJ}')
        e('s_cbranch_scc1 Lsix')
        snap = e.snapshot()
        for NC in (2, 3):
            e.restore(snap)
            if NC == 3:
                e.label('Lsix')
            e('s_barrier')
            self.stamp(4)
            self.phase_f(0, NC)
            if NC == 2:
                e('s_branch Lffn')
            ends += e.snapshot()
        e.paths = ends
        e.label('Lffn')
        e.drop = None
        self.attn_loads_late()
        self.stamp(6)
        self.attention()
        self.tail()
        i = 0
        while i < len(self.tail_blocks):
            self.tail_blocks[i]()
            i += 1
        e.label('Lcode_end')
        return self.wrap()

    def wrap(self):
        head = open('gated_mix__softmax_full_mha__glu_gated_geglu__prompt.s.ref').read().split('; Override')[0]
        return head + f"""; @launch grid=(256,1,1) block=(512,1,1) lds={LDS_BYTES}
.amdgcn_target "amdgcn-amd-amdhsa--gfx950"
.text
.globl {KNAME}
.p2align 8
.type {KNAME},@function
{KNAME}:
{self.e.text()}
.section .rodata,"a"
.p2align 6
.amdhsa_kernel {KNAME}
  .amdhsa_next_free_vgpr 256
  .amdhsa_next_free_sgpr 102
  .amdhsa_accum_offset 256
  .amdhsa_group_segment_fixed_size 0
  .amdhsa_kernarg_size 88
  .amdhsa_user_sgpr_count 2
  .amdhsa_user_sgpr_kernarg_segment_ptr 1
  .amdhsa_system_sgpr_workgroup_id_x 1
.end_amdhsa_kernel
"""


if __name__ == '__main__':
    out = sys.argv[1]
    stamps = sys.argv[2] if len(sys.argv) > 2 and sys.argv[2] in ('rt', 'cy') else False
    opt = {}
    for a in sys.argv[2:]:
        if '=' in a:
            k, v = a.split('=')
            opt[k] = int(v, 0)
    g = Gen(stamps=stamps, opt=opt)
    open(out, 'w').write(g.build())
    print('nops inserted:', g.e.nops, 'lines:', len(g.e.lines))
```

```python
import sys, math, struct
from asmlib import Emitter, Win

KNAME = 'gated_mix__softmax_full_mha__glu_gated_geglu__prompt_kernel'

WS_Q = 0
WS_KV = 2 << 20
WS_O = 6 << 20
WS_F1 = 8 << 20
WS_F2 = WS_F1 + 32768
WS_ST = WS_F1 + 65536
WS_H = 9 << 20
HBLK = 86 * 2048
WS_END = 15 << 20

L_GW = 0
L_Z = 1024
SLOT0 = 4096
UPOFF = 12288
QOFF = 24576
L_QX = 147456
L_RING = 4096
RINGW = 7168
L_WO = 65536
L_PRE1 = 131072
L_CNT = 2048
LDS_BYTES = 163840

S_X, S_WQ, S_WF, S_WS, S_H, S_WD, S_WO, S_OUT, S_DBG, S_GW = [4 * i + 4 for i in range(10)]
S_WG = 80
sW, sTT, sG, sJ, sTB, sRB, sCB, sUS = range(44, 52)
sXO, sWO, sFO, sMX, sMW, sMF = range(52, 58)
sNON = 58
sKV, sKVB, sKVI, sHO, sDO, sMD = range(60, 66)
sVM = 66
sT = 68
sGC = 76
sQX = [40, 41, 42, 43]
sQW = 78
sXO2 = 79
sSPIN = 84
sMO = 85
sMG = 3
sO = [4, 5]
sR = 73
sE = [4, 5, 6, 7]
sSTMP = 86
sSTAMP = 88


def region(s):
    return SLOT0 + 28672 * (s % 5)


def srd(b):
    return f's[{b}:{b + 3}]'


def vr(b, n):
    return f'v[{b}:{b + n - 1}]' if n > 1 else f'v{b}'


def fbits(x):
    return '0x%08x' % struct.unpack('<I', struct.pack('<f', x))[0]


vL16 = 1
vXD = [2, 3]
vWD = 4
vFD = 5
vXR = [6, 7]
vWR = [8, 2]
vFR = [9, 10, 11]
FR = 16
NFR = 5
ACA = 36
ACF = 68
vK = [116, 120]
vCH, vIDX, vVA = 124, 126, 127
vQR = 126
QA = ACA + 16
X = 128
vO = [X + 16 * i for i in range(4)]
vQ = [X + 64 + 4 * i for i in range(4)]
vV = [ACA, ACA + 8]
vS = [ACA + 16, X + 80]
vG = [ACF, ACF + 16, ACF + 32, X + 96]
vH = [X + 112, X + 120]
vD = FR
vCO = FR + 8
vDD = [2, 3]
vDR = [12, 13]
vP = 14
vPA = 6
vRW = [7, 8]
vHA = [9, 10]
vKA = 124
vRR = FR + 10

LOG2E = 1.4426950408889634
QSCALE = 0.25 * LOG2E
GC0 = -2.0 * LOG2E * math.sqrt(2.0 / math.pi)
GC1 = GC0 * 0.044715
SPIN = 400000
FL = ('', ' sc1', ' nt', ' sc1 nt')


class Gen:
    def __init__(self, stamps=False, opt=None):
        self.e = Emitter()
        self.stamps = stamps
        self.nst = 0
        self.opt = dict(g2start=5, prio=True, ahead=12, span=12, fah=2, omf=0, lfirst=3, as2=6, ahead2=8, tlb=0, bt=0, rx=1, tch=200, tca=8, tcw=7, dsplit=1, ys=0, fw=0, fx=0, fh=1, p1i=70, p1c=80, gsp=10, g0=0, fk=2, gk=3, lpre=60, cpre=40, lfk=20, llast=2, lsp2=1,
                        pa=7, pb=54, pc=200, ol=3, yl=3, woi=8, qw=12, vs=11, qe=2, q0=12, qsp=2, om=2, s2t=5, rot=4, rj=0, zm=1, hl=0, hsp=1,
                        fs=7, lp=1, eb=1, sl1=4, sl2=8, sl3=2, lsp=4)
        if opt:
            self.opt.update(opt)
        self.tail_blocks = []

    def stamp(self, idx, sset=0):
        e = self.e
        if self.opt.get('sset') == 4:
            if 7 <= idx <= 9 and sset != 4:
                return
        elif 7 <= idx <= 12 and sset != self.opt.get('sset', 0):
            return
        if self.opt.get('probe') == idx:
            e(f's_memrealtime s[{sSTAMP}:{sSTAMP + 1}]')
            e('s_waitcnt lgkmcnt(0)')
            for p in e.paths:
                p.lg = []
        if not self.stamps or not (self.opt.get('smask', 0x2001) | 0x2001) >> idx & 1:
            return
        en = [i for i in range(14) if (self.opt.get('smask', 0x2001) | 0x2001) >> i & 1]
        assert len(en) <= 7
        r = sSTAMP + 2 * en.index(idx)
        e(f"{'s_memtime' if self.stamps == 'cy' else 's_memrealtime'} s[{r}:{r + 1}]")

    def dma_list(self, s):
        e = self.e
        slot = region(s)
        out = []
        tag = f'st{s}'

        def mk(m0s, m0c, va, rs, so, imm=0, pre=()):
            def f(part=3):
                if part & 1:
                    e(f's_add_u32 m0, s{m0s}, {m0c - imm}')
                    for p in pre:
                        e(p)
                if part & 2:
                    e(f'buffer_load_dwordx4 v{va}, {srd(rs)}, s{so} offen' + (f' offset:{imm}' if imm else '') + (FL[self.opt['fx']] if rs == S_X else '') + ' lds', tag)
            f.dma = True
            out.append(f)
        t = sT + 6

        def step(so, n):
            if s % 8 == 0:
                return ()
            if s % (8 // self.opt['rot']) and not self.opt['rx'] & 2:
                return [f's_add_u32 s{so}, s{so}, {n}']
            return [f's_cmp_eq_u32 s{sR}, {-s % 8}', f's_cselect_b32 s{t}, -7, 1', f's_mul_i32 s{t}, s{t}, {n}', f's_add_u32 s{so}, s{so}, s{t}']
        if s < 8:
            for i in range(4):
                mk(sMX, slot + i * 1024, vXD[i % 2], S_X, sXO if i < 2 else sXO2,
                   pre=step(sXO, 128) if i == 0 else ([f's_add_u32 s{sXO2}, s{sXO}, 16384'] if i == 1 else ()))
            for i in range(2):
                mk(sMW, slot + 16384 + i * 1024, vWD, S_WQ, sWO, imm=64 * i, pre=step(sWO, 64 * 3072) if i == 0 else ())
        else:
            mk(sMF, slot + QOFF, vWD, S_WQ, sQW, pre=step(sQW, 64 * 3072))
            for h in range(2):
                for i in range(3):
                    mk(sMG, slot + h * UPOFF + i * 1024, vFD, S_WF if h else S_WG, sFO, imm=64 * i,
                       pre=step(sFO, 64 * 2752) if h + i == 0 else ())
        return out

    def prologue(self):
        e = self.e
        self.stamp(0)
        e('s_cmp_ge_u32 s2, 256')
        e('s_cbranch_scc1 Lexit')
        e(f's_load_dwordx2 s[{S_X}:{S_X + 1}], s[0:1], 0')
        e(f's_load_dwordx2 s[{S_WQ}:{S_WQ + 1}], s[0:1], 8')
        e(f's_getpc_b64 s[{sT}:{sT + 1}]')
        e.label('Lpfbase')
        e(f's_lshr_b32 s{sT + 2}, s2, 3')
        e(f's_lshl_b32 s{sT + 2}, s{sT + 2}, 11')
        e(f'v_lshl_add_u32 v16, v0, 2, s{sT + 2}')
        e('v_min_u32 v16, Lcode_end-Lpfbase-4, v16')
        e('v_lshrrev_b32 v2, 6, v0')
        e('s_mov_b32 exec_lo, 1')
        e('s_mov_b32 exec_hi, 1')
        e(f'global_load_dword v{vK[1]}, v16, s[{sT}:{sT + 1}]', 'pf')
        e('s_mov_b64 exec, -1')
        e(f'v_readfirstlane_b32 s{sW}, v2')
        e('v_and_b32 v0, 63, v0')
        e(f's_xor_b32 s{sW}, s{sW}, 4')
        e(f's_and_b32 s{sTT}, s{sW}, 3')
        e(f's_lshr_b32 s{sG}, s{sW}, 2')
        e('s_cbranch_scc1 Lload')
        e('s_bitcmp1_b32 s2, 3')
        e('s_cbranch_scc1 Lcomp1')
        e('s_branch Lcomp0')

    def ids_tb(self):
        e = self.e
        R = self.opt['rot']
        e(f's_and_b32 s{sTB}, s2, 4')
        e(f's_lshl_b32 s{sTB}, s{sTB}, 1')
        e(f's_lshr_b32 s{sT + 6}, s2, 5')
        e(f's_add_u32 s{sTB}, s{sTB}, s{sT + 6}')
        RX = self.opt['rx']
        if RX & 1:
            e(f's_mul_i32 s{sR}, s2, {R // 4}')
            e(f's_add_u32 s{sR}, s{sR}, s{sTB}')
        e(f's_and_b32 s{sR}, s{sR if RX & 1 else sTB}, {R - 1}')
        e(f's_mul_i32 s{sR}, s{sR}, {8 // R}')
        if RX & 2:
            e(f's_lshr_b32 s{sT + 6}, s{sTB}, 3')
            e(f's_add_u32 s{sR}, s{sR}, s{sT + 6}')

    def more_args(self, g):
        e = self.e
        lst = [(S_WG, 32), (S_WF, 40)] if g else [(S_GW, 56)]
        for b, off in lst + [(S_DBG, 72), (S_WS, 80), (S_H, 80), (S_WD, 48), (S_WO, 16), (S_OUT, 64)]:
            e(f's_load_dwordx2 s[{b}:{b + 1}], s[0:1], {off}')
        e(f'v_lshlrev_b32 v{vL16}, 4, v0')

    def ids_j(self):
        e = self.e
        e(f's_and_b32 s{sJ}, s2, 3')
        e(f's_lshl_b32 s{sJ}, s{sJ}, 2')
        e(f's_bfe_u32 s{sT + 6}, s2, 0x20003')
        e(f's_add_u32 s{sJ}, s{sJ}, s{sT + 6}')

    def quad_rows(self, dst, stride, t):
        e = self.e
        e(f'v_lshrrev_b32 v{t}, 4, v0')
        e(f'v_and_b32 v{t}, 2, v{t}')
        e(f'v_xor_b32 v{t}, v{t}, v0')
        e(f'v_and_b32 v{t}, 3, v{t}')
        e(f'v_lshrrev_b32 v{dst}, 2, v0')
        e(f'v_mul_u32_u24 v{dst}, {stride}, v{dst}')
        e(f'v_lshl_add_u32 v{dst}, v{t}, 4, v{dst}')

    def tr_base(self, dst, gstride, t):
        e = self.e
        e(f'v_lshrrev_b32 v{dst}, 5, v0')
        e(f'v_mul_u32_u24 v{dst}, {gstride}, v{dst}')
        e(f'v_bfe_u32 v{t}, v0, 4, 1')
        e(f'v_mul_u32_u24 v{t}, {512 + 32}, v{t}')
        e(f'v_add_u32 v{dst}, v{dst}, v{t}')
        e(f'v_bfe_u32 v{t}, v0, 2, 2')
        e(f'v_lshl_add_u32 v{dst}, v{t}, 6, v{dst}')
        e(f'v_and_b32 v{t}, 3, v0')
        e(f'v_lshl_add_u32 v{dst}, v{t}, 3, v{dst}')

    def srd_consts(self, lst):
        for b, n in lst:
            self.e(f's_mov_b32 s{b + 2}, {n}')
            self.e(f's_mov_b32 s{b + 3}, 0x20000')

    def x_read_addrs(self):
        e = self.e
        e('v_and_b32 v16, 15, v0')
        e(f's_lshl_b32 s{sT + 6}, s{sTT}, 12')
        e('v_lshrrev_b32 v17, 4, v0')
        e('v_lshrrev_b32 v18, 1, v16')
        e('v_xor_b32 v18, v18, v17')
        e('v_lshlrev_b32 v18, 4, v18')
        e('v_lshl_add_u32 v18, v16, 7, v18')
        e(f'v_add_u32 v{vXR[0]}, s{sT + 6}, v18')
        e(f'v_xor_b32 v{vXR[1]}, 64, v{vXR[0]}')

    def setup2(self, g, ty):
        e = self.e
        t = sT
        self.srd_consts(([(S_DBG, 256), (S_WG, 512 * 2752), (S_WF, 512 * 2752)] if g else []) +
                        [(S_WS, WS_END), (S_H, HBLK), (S_WD, 1376 * 1024), (S_WO, 512 * 1024), (S_OUT, 2048 * 1024)])
        e(f's_lshl_b32 s{sUS}, s{sJ}, 4')
        e(f's_add_u32 s{sUS}, s{sUS}, 2')
        e(f's_mul_i32 s{sUS}, s{sUS}, 43691')
        e(f's_lshr_b32 s{sUS}, s{sUS}, 17')
        if g:
            e(f's_lshl_b32 s{t + 1}, s{sR}, 2')
            e(f's_add_u32 s{t + 1}, s{t + 1}, s{sTT}')
            e(f's_mul_i32 s{sFO}, s{t + 1}, {16 * 2752}')
            e(f's_lshr_b32 s{t}, s{sUS}, 1')
            e(f's_lshl_b32 s{t}, s{t}, 6')
            e(f's_add_u32 s{sFO}, s{sFO}, s{t}')
            e(f's_mul_i32 s{sQW}, s{t + 1}, {16 * 3072}')
            e(f's_lshl_b32 s{t}, s{sJ}, 6')
            e(f's_add_u32 s{sQW}, s{sQW}, s{t}')
            e(f's_mul_i32 s{sMG}, s{sTT}, 3072')
            e(f's_lshl_b32 s{sMF}, s{sTT}, 10')
            self.quad_rows(vFD, 2752, vP)
        first = 0 if g else 3
        self.tr_base(vP + 1, 3072, vP)
        for c in range(3):
            e(f's_and_b32 s{t}, s{sUS}, 1')
            e(f's_add_u32 s{t}, s{t}, {first + c}')
            e(f's_lshr_b32 s{t + 1}, s{t}, 1')
            e(f's_lshl_b32 s{t + 1}, s{t + 1}, 10')
            e(f's_and_b32 s{t}, s{t}, 1')
            e(f's_lshl_b32 s{t}, s{t}, 5')
            e(f'v_xor_b32 v{vFR[c]}, s{t}, v{vP + 1}')
            e(f'v_add_u32 v{vFR[c]}, s{t + 1}, v{vFR[c]}')
        e(f'v_lshrrev_b32 v{vP}, 5, v0')
        e(f'v_lshlrev_b32 v{vVA}, 11, v{vP}')
        e(f'v_sub_u32 v{vQR}, v{vP + 1}, v{vVA}')
        if g:
            e(f'v_xor_b32 v{vQR}, 32, v{vQR}')
        e(f's_and_b32 s{sRB}, s2, 7')
        e(f's_xor_b32 s{sRB}, s{sRB}, 4')
        e(f's_lshl_b32 s{sRB}, s{sRB}, 2')
        e(f's_lshr_b32 s{t}, s2, 6')
        e(f's_add_u32 s{sRB}, s{sRB}, s{t}')
        e(f's_mul_i32 s{t}, s{sRB}, {HBLK}')
        e(f's_add_u32 s{t}, s{t}, {WS_H}')
        e(f's_add_u32 s{S_H}, s{S_H}, s{t}\n    s_addc_u32 s{S_H + 1}, s{S_H + 1}, 0')
        e(f's_bfe_u32 s{sCB}, s2, 0x30003')
        e(f's_mov_b32 s{sVM}, 0xffff')
        e(f's_mov_b32 s{sVM + 1}, 0xffff')
        e(f's_mov_b32 s{sGC}, {fbits(GC1)}')
        e(f's_mov_b32 s{sGC + 1}, s{sGC}')
        e(f'v_and_b32 v{vVA}, 15, v0')
        e(f'v_lshl_add_u32 v{vVA}, v{vP}, 4, v{vVA}')
        e(f'v_lshlrev_b32 v{vVA}, 4, v{vVA}')
        e(f's_lshl_b32 s{t}, s{sTB}, 2')
        e(f's_add_u32 s{t}, s{t}, s{sTT}')
        e(f's_lshr_b32 s{sHO}, s{t}, 1')
        e(f's_mul_i32 s{sHO}, s{sHO}, 86')
        e(f's_add_u32 s{sHO}, s{sHO}, s{sUS}')
        e(f's_lshl_b32 s{sHO}, s{sHO}, 1')
        e(f's_and_b32 s{t + 1}, s{t}, 1')
        e(f's_add_u32 s{sHO}, s{sHO}, s{t + 1}')
        e(f's_lshl_b32 s{sHO}, s{sHO}, 10')
        e(f's_add_u32 s{sHO}, s{sHO}, {WS_H + 2048 * first}')
        e(f's_lshl_b32 s{sMO}, s{t}, 4')
        e(f's_add_u32 s{sMO}, s{sMO}, s{sJ}')
        e(f's_lshl_b32 s{sMO}, s{sMO}, 11')
        e(f's_add_u32 s{sMO}, s{sMO}, {g * 1024 + WS_O}')
        if g == 0:
            e(f's_lshr_b32 s{sE[0]}, s{sJ}, 1')
            e(f's_lshl_b32 s{sE[0]}, s{sE[0]}, 8')
            e(f's_add_u32 s{sE[0]}, s{sE[0]}, s{t}')
            e(f's_lshl_b32 s{sE[0]}, s{sE[0]}, 11')
            e(f's_add_u32 s{sE[0]}, s{sE[0]}, {WS_KV + 1024 * ty}')
            for i in range(1, 4):
                e(f's_add_u32 s{sE[i]}, s{sE[0]}, {262144 * (i >> 1) + 512 * (i & 1) if ty else 131072 * i}')
            if ty:
                e(f'v_bfe_u32 v{vWD}, v0, 4, 1')
                e(f'v_lshl_add_u32 v{vWD}, v{vWD}, 17, v{vVA}')
            else:
                e(f'v_mov_b32 v{vWD}, v{vL16}')
        e(f's_lshl_b32 s{sKVB}, s{sJ}, 3')
        e(f's_add_u32 s{sKVB}, s{sKVB}, s{sW}')
        e(f's_lshl_b32 s{sKVB}, s{sKVB}, 15')
        e(f's_add_u32 s{sKVB}, s{sKVB}, {WS_KV}')
        e(f's_and_b32 s{sKVI}, s{sTB}, 7')
        e(f's_lshl_b32 s{sKVI}, s{sKVI}, 12')
        e(f's_and_b32 s{sKV}, s{sJ}, 14')
        e(f's_lshl_b32 s{sKV}, s{sKV}, 2')
        e(f's_add_u32 s{sKV}, s{sKV}, s{sTT}')
        e(f's_lshl_b32 s{sKV}, s{sKV}, {2 + self.opt["fs"]}')
        e(f's_add_u32 s{sKV}, s{sKV}, {WS_F1}')
        for i in range(4):
            e(f's_add_u32 s{sQX[i]}, s{sTT}, {1 + i}')
            e(f's_and_b32 s{sQX[i]}, s{sQX[i]}, 3')
            e(f's_lshl_b32 s{sQX[i]}, s{sQX[i]}, 10')
            e(f's_add_u32 s{sQX[i]}, s{sQX[i]}, {L_QX + 4096 * g}')
        e(f's_mul_i32 s{sMD}, s{sW}, {RINGW}')
        e(f's_mul_i32 s{sDO}, s{sW}, {11 * 16384}')
        e(f's_lshl_b32 s{t}, s{sCB}, 7')
        e(f's_add_u32 s{sDO}, s{sDO}, s{t}')
        e(f'v_bfe_u32 v{vDR[0]}, v0, 2, 2')
        e(f'v_lshl_add_u32 v{vDR[0]}, v{vP}, 3, v{vDR[0]}')
        e(f'v_lshlrev_b32 v{vDR[0]}, 7, v{vDR[0]}')
        e(f'v_bfe_u32 v{vP}, v0, 4, 1')
        e(f'v_lshl_add_u32 v{vDR[0]}, v{vP}, 5, v{vDR[0]}')
        e(f'v_bfe_u32 v{vP}, v0, 3, 1')
        e(f'v_lshl_add_u32 v{vDR[0]}, v{vP}, 6, v{vDR[0]}')
        e(f'v_and_b32 v{vP}, 3, v0')
        e(f'v_lshl_add_u32 v{vDR[0]}, v{vP}, 3, v{vDR[0]}')
        e(f'v_add_u32 v{vDR[0]}, s{sMD}, v{vDR[0]}')
        e(f'v_xor_b32 v{vDR[1]}, 64, v{vDR[0]}')

    def phase_a_loader(self):
        e = self.e
        o = self.opt
        seq = []
        bound = []
        last = 7 + o['fah']
        for s in range(last + 1):
            bound.append(len(seq))
            seq += self.dma_list(s)
        bound.append(len(seq))
        pos = 0

        def issue(upto):
            nonlocal pos
            while pos < min(upto, len(seq)):
                seq[pos]()
                pos += 1
        self.ids_tb()
        e('v_lshrrev_b32 v16, 3, v0')
        e('v_lshrrev_b32 v17, 4, v0')
        e('v_and_b32 v18, 7, v0')
        e('v_xor_b32 v18, v18, v17')
        e('v_lshlrev_b32 v18, 4, v18')
        e(f'v_lshl_add_u32 v{vXD[0]}, v16, 10, v18')
        e(f'v_xor_b32 v{vXD[1]}, 64, v{vXD[0]}')
        e(f'v_add_u32 v{vXD[1]}, 8192, v{vXD[1]}')
        e(f's_lshl_b32 s{sXO}, s{sTB}, 2')
        e(f's_add_u32 s{sXO}, s{sXO}, s{sTT}')
        e(f's_lshl_b32 s{sXO}, s{sXO}, 8')
        e(f's_add_u32 s{sXO}, s{sXO}, s{sR}')
        e(f's_lshl_b32 s{sXO}, s{sXO}, 7')
        e(f's_lshl_b32 s{sMX}, s{sTT}, 12')
        self.srd_consts(((S_X, 2048 * 1024),))
        e('s_waitcnt lgkmcnt(0)')
        self.stamp(1)
        issue(4)
        self.ids_j()
        self.srd_consts(((S_WQ, 512 * 3072),))
        self.quad_rows(vWD, 3072, 16)
        e(f's_lshr_b32 s{sT}, s{sJ}, 1')
        e(f's_and_b32 s{sT + 1}, s{sJ}, 1')
        e(f's_lshl_b32 s{sT + 1}, s{sT + 1}, 3')
        e(f's_add_u32 s{sT}, s{sT}, s{sT + 1}')
        e(f's_lshl_b32 s{sT}, s{sT}, 7')
        e(f's_lshl_b32 s{sWO}, s{sR}, 2')
        e(f's_add_u32 s{sWO}, s{sWO}, s{sTT}')
        e(f's_mul_i32 s{sWO}, s{sWO}, {16 * 3072}')
        e(f's_add_u32 s{sWO}, s{sWO}, s{sT}')
        e(f's_addk_i32 s{sWO}, 1024')
        e(f's_lshl_b32 s{sMW}, s{sTT}, 11')
        issue(6)
        self.more_args(1)
        issue(12)
        self.x_read_addrs()
        e('s_waitcnt lgkmcnt(0)')
        fill = self.split(lambda: self.setup2(1, 0)) + self.split(self.v_const)
        for _ in range(min(len(fill), o['lpre'])):
            fill.pop(0)()
        D = o['ahead']
        issue(bound[1] + D)
        wx = Win(e, vXR)
        for s in range(8):
            slot = region(s)
            e.wait(vm=f'st{s}', lg='all')
            e('s_barrier')
            if s in (0, 4):
                self.stamp(2 + s // 4)
            end = max(pos, min(bound[s + 2] + (D if s < o['as2'] else o['ahead2']), bound[min(max(s + 4, 5), last + 1)]))
            issue(min(end, pos + o['lfirst']))
            wx.ensure(slot, slot + 2048)
            for ks in range(2):
                n = 2 * s + ks
                for tg in range(2):
                    e(f'ds_read_b128 {vr(X + 8 * n + 4 * tg, 4)}, v{vXR[ks]} offset:{wx.off(slot + 2048 * tg)}', f'r{n}')
            if s == 6:
                e(f'buffer_load_dwordx2 v[{vK[0]}:{vK[0] + 1}], off, {srd(S_DBG)}, 0 sc1', 'non')

            work = [fill.pop(0) for _ in range(min(len(fill), o['lfk']))]
            gaps = max(1, end - pos - o['llast'] + 1)
            done = 0
            for k in range(gaps):
                if k:
                    issue(pos + 1)
                upto = len(work) * (k + 1) // gaps if o['lsp2'] else (len(work) if k == gaps - 1 else 0)
                while done < upto:
                    work[done]()
                    done += 1
            issue(end)
        assert not fill
        self.left = seq[pos:]
        e.wait(vm='st8', lg='all')
        e('s_barrier')
        self.stamp(4)

    def pack8(self, src, dst):
        e = self.e
        for r in range(4):
            e(f'v_cvt_pk_bf16_f32 v{dst + r}, v{src + 2 * r}, v{src + 2 * r + 1}')
        for r in range(2):
            e(f'v_permlane16_swap_b32 v{dst + r}, v{dst + 2 + r}')

    def phase_a_compute(self, ty):
        e = self.e
        NC = 4
        self.more_args(0)
        if self.opt['tlb'] or self.opt['bt']:
            e(f's_load_dwordx4 s[{S_WG}:{S_WG + 3}], s[0:1], 32')
        self.ids_tb()
        self.ids_j()
        e(f's_memrealtime s[{sNON}:{sNON + 1}]')
        e('v_mov_b32 v16, 0')
        e(f'v_mov_b32 v17, {L_CNT}')
        e('ds_write2_b32 v17, v16, v16 offset0:0 offset1:1', 'z0')
        self.srd_consts(((S_DBG, 256), (S_GW, 1024)))
        ZA, GWB, vGA = ACF, ACF + 8, vXD[1]
        e(f's_lshl_b32 s{sT}, s{sR}, 7')
        e(f'v_add_u32 v{vP}, s{sT}, v{vL16}')
        e(f'v_and_b32 v{vP}, 1023, v{vP}')
        e(f'v_and_b32 v{vGA}, 48, v0')
        e(f's_mov_b32 m0, {L_GW}')
        self.x_read_addrs()
        self.tr_base(vWR[0], NC * 512, 16)
        e(f'v_xor_b32 v{vWR[1]}, 32, v{vWR[0]}')
        e('s_waitcnt lgkmcnt(0)')
        for p in e.paths:
            p.lg = []
        self.stamp(1)
        e(f'buffer_load_dwordx4 v{vP}, {srd(S_GW)}, 0 offen lds', 'gw')
        if self.opt['bt']:
            lab = e.newlabel('bt')
            e(f's_cmp_lg_u32 s{sTT}, 2')
            e(f's_cbranch_scc1 {lab}')
            snap = e.snapshot()
            for k, (b, n) in enumerate(((S_X, 64), (S_WQ, 48), (S_WG, 43), (S_WG + 2, 43), (S_WD, 43), (S_WO, 16))):
                if self.opt['bt'] >> k & 1:
                    e(f's_mul_i32 s{sT}, s2, {n * 128}')
                    e(f'v_lshl_add_u32 v16, v0, 7, s{sT}')
                    e(f's_bfm_b64 exec, {n}, 0' if n < 64 else 's_mov_b64 exec, -1')
                    e(f'global_load_dword v{vK[1] + 2}, v16, s[{b}:{b + 1}]', 'bt')
                    e('s_mov_b64 exec, -1')
            e.paths = e.paths + snap
            e.label(lab)
        if self.opt['tlb']:
            G = self.opt['tlb']
            lab = e.newlabel('tl')
            e(f's_cmp_lg_u32 s{sTT}, 3')
            e(f's_cbranch_scc1 {lab}')
            snap = e.snapshot()
            e(f'v_lshlrev_b32 v16, {G}, v0')
            e(f's_mov_b64 exec, {hex((1 << -(-(512 * 2752) >> G)) - 1)}')
            for k in range(2):
                e(f'global_load_dword v{vK[1] + 1}, v16, s[{S_WG + 2 * k}:{S_WG + 2 * k + 1}]', 'tlb')
            e('s_mov_b64 exec, -1')
            e.paths = e.paths + snap
            e.label(lab)
        if not ty:
            e(f's_or_b32 s{sT + 6}, s2, s{sW}')
            lab = e.newlabel('nn')
            e(f's_cbranch_scc1 {lab}')
            snap = e.snapshot()
            e(f's_or_b32 s{sNON + 1}, s{sNON + 1}, 0x80000000')
            e(f'v_mov_b32 v16, s{sNON}')
            e(f'v_mov_b32 v17, s{sNON + 1}')
            e('s_mov_b64 exec, 1')
            e(f'buffer_store_dwordx2 v[16:17], off, {srd(S_DBG)}, 0 sc1', 'nst')
            e('s_mov_b64 exec, -1')
            e.paths = e.paths + snap
            e.label(lab)
        fill = self.split(lambda: self.setup2(0, ty))
        for _ in range(min(len(fill), self.opt['cpre'])):
            fill.pop(0)()
        LA = 4
        wx = Win(e, vXR)
        ww = Win(e, vWR)
        M = 16 * NC
        GL = 2

        def gate(n, buf):
            for tg in range(2):
                z = vr(ZA + 4 * tg, 4)
                e(f'v_mfma_f32_16x16x32_bf16 {z}, {vr(buf, 4)}, {vr(X + 8 * n + 4 * tg, 4)}, {z if n else 0}')

        def reads(m, rd):
            n, ct = divmod(m, NC)
            s, ks = divmod(n, 2)
            slot = region(s)
            if m % (2 * NC) == 0 and rd == 0:
                e('s_barrier')
                if s in (0, 4):
                    self.stamp(2 + s // 4)
                wx.ensure(slot, slot + 2048)
                ww.ensure(slot + 16384, slot + 24576)
            if ct == 0:
                e(f'ds_read_b128 {vr(X + 8 * n + 4 * rd, 4)}, v{vXR[ks]} offset:{wx.off(slot + 2048 * rd)}', f'a{m}')
            if ct == 2 and rd == 0 and n >= GL:
                e.wait(vm='gw')
                e(f'ds_read_b128 {vr(GWB + 4 * (n % 2), 4)}, v{vGA} offset:{L_GW + 64 * (n - GL)}', f'a{m}')
            t = slot + 16384 + ks * NC * 1024 + (ct >> 1) * 1024 + rd * 256
            e(f'ds_read_b64_tr_b16 {vr(FR + 4 * (m % NFR) + 2 * rd, 2)}, v{vWR[ct & 1]} offset:{ww.off(t)}', f'a{m}')

        for m in range(LA):
            reads(m, 0)
            reads(m, 1)
        for m in range(M):
            n, ct = divmod(m, NC)
            e.wait(lg=f'a{m}')
            for tg in range(2):
                acc = vr(ACA + 16 * (ct >> 1) + 8 * tg + 4 * (ct & 1) if ty else ACA + 8 * ct + 4 * tg, 4)
                a, b = vr(FR + 4 * (m % NFR), 4), vr(X + 8 * n + 4 * tg, 4)
                if ty:
                    a, b = b, a
                e(f'v_mfma_f32_16x16x32_bf16 {acc}, {a}, {b}, {acc if n else 0}')
                if m + LA < M:
                    reads(m + LA, tg)
                if tg == 0:
                    for _ in range(2):
                        if fill:
                            fill.pop(0)()
            if ct == 2 and n >= GL:
                gate(n - GL, GWB + 4 * (n % 2))
            if m == M - LA - 1:
                for k in range(GL):
                    e(f'ds_read_b128 {vr(GWB + 8 + 4 * k, 4)}, v{vGA} offset:{L_GW + 64 * (16 - GL + k)}', 'gl')
            if m == M * 7 // 8:
                e(f'buffer_load_dwordx2 v[{vK[0]}:{vK[0] + 1}], off, {srd(S_DBG)}, 0 sc1', 'non')
        assert not fill
        e.wait(lg='gl')
        for k in range(GL):
            gate(16 - GL + k, GWB + 8 + 4 * k)

    def z_write(self):
        e = self.e
        e(f'v_and_b32 v{vP}, 16, v0')
        e(f'v_cmp_eq_u32 vcc, 0, v{vP}')
        e(f's_lshl_b32 s{sT + 1}, s{sTT}, 8')
        e(f'v_lshl_add_u32 v{vP}, v0, 2, s{sT + 1}')
        e(f'v_cndmask_b32 v{vP + 1}, v{ACF + 4}, v{ACF}, vcc')
        e(f'ds_write_b32 v{vP}, v{vP + 1} offset:{L_Z}', 'zw')

    def kv_store(self, i):
        self.e(f'buffer_store_dwordx4 {vr(ACA + 4 * i, 4)}, v{vWD}, {srd(S_WS)}, s{sE[i]} offen sc1', 'qst')

    def spin(self, name, reload, check, sleep=2):
        e = self.e
        lr, lc = e.newlabel(name + 'r'), e.newlabel(name + 'c')
        check()
        e(f's_cbranch_vccnz {lr}')
        e.label(lc)

        def blk():
            e.paths = [p for p in Emitter().paths]
            e.label(lr)
            e(f's_mov_b32 s{sSPIN}, {SPIN}')
            ll = e.newlabel(name + 'l')
            e.label(ll)
            e(f's_sleep {sleep}')
            reload()
            e('s_waitcnt vmcnt(0)')
            check()
            e(f's_cbranch_vccz {lc}')
            e(f's_sub_u32 s{sSPIN}, s{sSPIN}, 1')
            e(f's_cbranch_scc0 {ll}')
            e(f's_branch {lc}')
        self.tail_blocks.append(blk)

    def flag_store(self, soff, tmp):
        e = self.e
        e(f'v_mov_b32 v{tmp}, s{sNON}')
        e(f'v_mov_b32 v{tmp + 1}, s{sNON + 1}')
        e('s_mov_b64 exec, 1')
        e(f'buffer_store_dwordx2 v[{tmp}:{tmp + 1}], off, {srd(S_WS)}, s{soff} sc1', 'flag')
        e('s_mov_b64 exec, -1')

    def kv_load(self, it):
        e = self.e
        b = it % 2

        def k():
            e(f'buffer_load_dwordx4 {vr(vK[b], 4)}, v{vKA}, {srd(S_WS)}, s{sKVI} offen' + FL[self.opt['fh']], f'k{it}')

        def v():
            e(f's_mov_b64 exec, s[{sVM}:{sVM + 1}]')
            e(f'buffer_load_dwordx4 {vr(vV[b], 4)}, v{vKA + 1}, {srd(S_WS)}, s{sKVI} offen offset:1024' + FL[self.opt['fh']], f'v{it}')
            e(f'buffer_load_dwordx4 {vr(vV[b] + 4, 4)}, v{vKA + 1}, {srd(S_WS)}, s{sKVI} offen offset:1536' + FL[self.opt['fh']], f'v{it}')
            e('s_mov_b64 exec, -1')
        return k, v

    def kv_adv(self, part=3):
        if part & 1:
            self.e(f's_addk_i32 s{sKVI}, 2048')
        if part & 2:
            self.e(f's_bitset0_b32 s{sKVI}, 15')

    def gelu(self, c, pk=True):
        e = self.e
        acc = ACF + 16 * c
        T = ACA + 16
        P = lambda b, i: vr(b + 2 * i, 2)
        if not pk:
            real = e

            def e(text):
                if not text.startswith('v_pk_'):
                    return real(text)
                op, rest = text.split(None, 1)
                for h in range(2):
                    ops = [f'{o[0]}{int(o[2:o.index(":")]) + h}' for o in rest.split(', ')]
                    real(op.replace('v_pk_', 'v_') + ' ' + ', '.join(ops))
        for i in range(4):
            e(f'v_pk_mul_f32 {P(T, i)}, {P(acc, i)}, {P(acc, i)}')
        for i in range(4):
            e(f'v_pk_fma_f32 {P(T, i)}, {P(T, i)}, s[{sGC}:{sGC + 1}], {vr(T + 8, 2)}')
        for i in range(4):
            e(f'v_pk_mul_f32 {P(T, i)}, {P(T, i)}, {P(acc, i)}')
        for i in range(8):
            e(f'v_exp_f32 v{T + i}, v{T + i}')
        for i in range(4):
            e(f'v_pk_mul_f32 {P(acc, i)}, {P(acc, i)}, {P(acc + 8, i)}')
        for i in range(4):
            ch = vr(T + 10 + 2 * (i // 2), 2)
            e(f'v_pk_fma_f32 {P(T, i)}, {P(T, i)}, {ch}, {ch}')
        for i in range(8):
            e(f'v_rcp_f32 v{T + i}, v{T + i}')
        for i in range(4):
            e(f'v_pk_mul_f32 {P(acc, i)}, {P(acc, i)}, {P(T, i)}')
        for i in (0, 2, 1, 3):
            e(f'v_cvt_pk_bf16_f32 v{acc + 8 + i}, v{acc + 2 * i}, v{acc + 2 * i + 1}')
        for r in range(2):
            e(f'v_permlane16_swap_b32 v{acc + 8 + r}, v{acc + 10 + r}')

    def h_store(self, c):
        e = self.e
        e(f's_add_u32 s{sT}, s{sHO}, {2048 * c}')
        e(f'buffer_store_dwordx4 {vr(ACF + 16 * c + 8, 4)}, v{vL16}, {srd(S_WS)}, s{sT} offen sc1', 'hst')

    def split(self, fn):
        real = self.e
        rec = []

        class Rec:
            def __call__(s, text, tag=None):
                rec.append(('i', text, tag))

            def wait(s, vm=None, lg=None):
                rec.append(('w', vm, lg))
        self.e = Rec()
        fn()
        self.e = real
        out, grp = [], []
        for r in rec:
            grp.append(r)
            masked = any(x[0] == 'i' and x[1].startswith('s_mov_b64 exec') for x in grp)
            if (masked and r[1] != 's_mov_b64 exec, -1') or r[0] == 'w':
                continue

            def f(grp=grp):
                for x in grp:
                    if x[0] == 'i':
                        real(x[1], x[2])
                    else:
                        real.wait(vm=x[1], lg=x[2])
            out.append(f)
            grp = []
        assert not grp
        return out

    def phase_f(self, g, NC):
        e = self.e
        o = self.opt
        order = []
        for s in range(8):
            for item in ([(0, -1), (1, -1)] if s == 7 else []):
                order.append((2 * s + item[0], -1))
            for ks in range(2):
                order += [(2 * s + ks, r) for r in range(0 if s == 7 else -1, 2 * NC)]
        PS = 4 * NC + 2
        M = 8 * PS
        sc = lambda m: m * PS // 12
        LA = 4
        wf = Win(e, vFR[:NC] + [vQR])
        fill = []
        at = {}
        cur = [0]

        def pin(m, f):
            at.setdefault(m, []).append(f)

        def sched(s, m0, span, extra=()):
            lst = list(extra) + (self.dma_list(s) if g and s <= 15 else [])
            for i, f in enumerate(lst):
                pin(m0 + i * span // len(lst), f)

        def enter(s):
            e.wait(vm=[f'st{s}'] + (['qst'] if s == o['qw'] else []), lg='zw' if s == 9 else None)
            e('s_barrier')
            sched(s + o['fah'], cur[0] + 1, sc(o['span']))
            if s == 9:
                fill.extend(self.split(self.gate_read))
                fill.append(self.nonce_get)
                fill.extend(self.split(self.attn_setup))
                fill.extend(self.split(self.gate_math))
            if s == o['vs'] and g == 0:
                fill.extend(self.split(self.v_const))
            if s == o['qw'] and g == 0:
                fill.insert(0, self.flag1)

        def reads(m, rd):
            s = 8 + m // PS
            if m % PS == 0 and m and rd == 0:
                enter(s)
            n, r = order[m]
            slot = region(s)
            wf.ensure(slot, slot + 28672)
            if r < 0:
                va, t = vQR, slot + QOFF + (n % 2) * 2048 + rd * 256
            else:
                va, t = vFR[r // 2], slot + (r % 2) * UPOFF + (n % 2) * 6144 + rd * 256
            e(f'ds_read_b64_tr_b16 {vr(FR + 4 * (m % NFR) + 2 * rd, 2)}, v{va} offset:{wf.off(t)}', f'f{m}')

        assert o['fah'] <= 3
        if g == 0:
            for i in range(o['qe'], 4):
                pin(sc(o['q0'] + o['qsp'] * (i - o['qe'])), lambda i=i: self.kv_store(i))
            assert sc(o['q0'] + o['qsp'] * (3 - o['qe'])) < (min(o['vs'], o['qw']) - 8) * PS - LA
        sched(8 + o['fah'], 0, PS - LA, self.left if g else ())
        for m in range(LA):
            reads(m, 0)
            reads(m, 1)
        if o['prio']:
            pin(sc(50), lambda: e('s_setprio 3'))
        for m in range(M):
            cur[0] = m
            n, r = order[m]
            e.wait(lg=f'f{m}')
            for tg in range(2):
                acc = vr((QA if r < 0 else ACF + 8 * r) + 4 * tg, 4)
                e(f'v_mfma_f32_16x16x32_bf16 {acc}, {vr(FR + 4 * (m % NFR), 4)}, {vr(X + 8 * n + 4 * tg, 4)}, {acc if n else 0}')
                if m + LA < M:
                    reads(m + LA, tg)
                nf = o['fk'] if m < 7 * PS + 4 else o['gk']
                if tg == 0:
                    lead = at.get(m, [None])[0]
                    if o['dsplit'] and getattr(lead, 'dma', False):
                        lead(1)
                        at[m][0] = lambda lead=lead: lead(2)
                    for _ in range(min(nf, 2) - (lead is not None)):
                        if fill:
                            fill.pop(0)()
            if m % PS == 0 and 2 * PS <= m:
                self.stamp(5 + m // PS, 1)
            if o['omf'] and m == sc(o['omf']):
                fill.extend(self.split(lambda: self.o_mark(X)))
            if m == sc(o['tch']) and g == 0:
                fill.append(self.touch)
            if m == sc(o['p1i']):
                fill.append(self.poll1_issue)
            if m == sc(o['p1c']):
                fill.append(self.poll1_check)
                for grp in self.attn_loads_early():
                    fill.append(grp)
                    fill.extend([lambda: None] * o['lsp'])
            if m == 5 * PS:
                assert not fill
                fill.extend(self.split(lambda: self.q_addrs(g)))
            if m == 7 * PS + 3:
                fill = self.split(self.q_pack) + fill
            for f in at.pop(m, []):
                f()
            for _ in range(nf - 2):
                if fill:
                    fill.pop(0)()
        assert not at
        for f in fill:
            f()
        e.wait(lg='all')
        e('s_barrier')
        self.stamp(5)
        for i in range(3):
            e(f'ds_read_b128 {vr(vQ[i], 4)}, v{vQ[i]}', f'q{i}')
        side = []
        if o['p1c'] >= 96:
            side = [self.poll1_check] + self.attn_loads_early()
        ge, ends = [], []
        for c in range(NC - 1, -1, -1):
            ge += self.split(lambda: self.gelu(c))
            ends.append((len(ge), c))
        for k, f in enumerate(ge):
            if side and k >= o['g0'] * (1 - g) and k % o['gsp'] == 0:
                side.pop(0)()
            f()
            if not side and ends[0][0] <= k + 1 and ends[0][1] >= o['hl']:
                self.h_store(ends.pop(0)[1])
        assert not side and len(ends) == o['hl']
        if o['ys'] and g == 0:
            assert o['hl'] == 0 and not o['omf']
            self.o_mark()
            self.sig2_a()
            self.sig2_b()
        if o['ys']:
            e('s_setprio 2')

    def q_addrs(self, g):
        e = self.e
        for i in range(3):
            e(f'v_add_u32 v{vQ[i]}, s{sQX[i]}, v{vL16}')
        e(f'v_add_u32 v{vQ[0] + 1}, s{sQX[3]}, v{vL16}')

    def q_pack(self):
        e = self.e
        for r in range(8):
            e(f'v_mul_f32 v{QA + r}, {fbits(QSCALE)}, v{QA + r}')
        self.pack8(QA, vQ[3])
        e(f'ds_write_b128 v{vQ[0] + 1}, {vr(vQ[3], 4)}', 'qw')

    def o_mark(self, d=vH[0]):
        e = self.e
        for i in range(4):
            e(f'v_mov_b32 v{d + i}, -1')
        e(f'buffer_store_dwordx4 {vr(d, 4)}, v{vL16}, {srd(S_WS)}, s{sMO} offen sc1', 'hst')

    def gate_read(self):
        e = self.e
        e(f's_lshl_b32 s{sT}, s{sTT}, 8')
        e(f'v_and_b32 v{vCH}, 15, v0')
        e(f'v_lshl_add_u32 v{vCH}, v{vCH}, 2, s{sT}')
        e(f'v_add_u32 v{vCH}, {L_Z}, v{vCH}')
        e(f'ds_read2_b32 {vr(vCH, 2)}, v{vCH} offset0:0 offset1:16', 'zr')

    def gate_math(self):
        e = self.e
        e.wait(lg='zr')
        for i in range(2):
            e(f'v_mul_f32 v{vCH + i}, {fbits(LOG2E)}, v{vCH + i}')
        for i in range(2):
            e(f'v_exp_f32 v{vCH + i}, v{vCH + i}')
        for i in range(2):
            e(f'v_add_f32 v{vCH + i}, 1.0, v{vCH + i}')
        e(f'v_mov_b32 v{ACA + 24}, {fbits(GC0)}')
        e(f'v_mov_b32 v{ACA + 25}, v{ACA + 24}')
        for i in range(4):
            e(f'v_min_f32 v{ACA + 26 + i}, {fbits(2.0 ** 100)}, v{vCH + i // 2}')
        e(f'v_add_u32 v{vKA}, s{sKVB}, v{vL16}')
        e(f'v_add_u32 v{vKA + 1}, s{sKVB}, v{vVA}')

    def nonce_get(self):
        e = self.e
        e.wait(vm='non')
        ld = lambda: e(f'buffer_load_dwordx2 v[{vK[0]}:{vK[0] + 1}], off, {srd(S_DBG)}, 0 sc1')
        ck = lambda: e(f'v_cmp_eq_u32 vcc, 0, v{vK[0] + 1}')
        self.spin('non', ld, ck)
        e(f'v_readfirstlane_b32 s{sNON}, v{vK[0]}')
        e(f'v_readfirstlane_b32 s{sNON + 1}, v{vK[0] + 1}')

    def flag1(self):
        e = self.e
        lab = e.newlabel('f1')
        e(f's_cmp_lg_u32 s{sW}, 0')
        e(f's_cbranch_scc1 {lab}')
        snap = e.snapshot()
        e(f's_lshl_b32 s{sT + 7}, s{sJ}, 4')
        e(f's_add_u32 s{sT + 7}, s{sT + 7}, s{sTB}')
        e(f's_lshl_b32 s{sT + 7}, s{sT + 7}, {self.opt["fs"]}')
        e(f's_add_u32 s{sT + 7}, s{sT + 7}, {WS_F1}')
        self.flag_store(sT + 7, vK[0])
        e.paths = e.paths + snap
        e.label(lab)

    def touch(self, X=X):
        e = self.e
        lab = e.newlabel('tc')
        e(f's_cmp_lg_u32 s{sW}, {self.opt["tcw"]}')
        e(f's_cbranch_scc1 {lab}')
        snap = e.snapshot()
        e(f'v_lshlrev_b32 v{X}, 7, v0')
        e(f's_mul_i32 s{sT}, s2, {43 * 128}')
        e(f's_lshl_b32 s{sT + 1}, s2, 11')
        e('s_bfm_b64 exec, 43, 0')
        e(f'buffer_load_dword v{X + 1}, v{X}, {srd(S_WD)}, s{sT} offen', 'touch')
        e('s_bfm_b64 exec, 16, 0')
        e(f'buffer_load_dword v{X + 2}, v{X}, {srd(S_WO)}, s{sT + 1} offen', 'touch')
        e('s_mov_b64 exec, -1')
        e.paths = e.paths + snap
        e.label(lab)

    def attn_setup(self):
        e = self.e
        e(f'v_and_b32 v{vPA}, 4, v0')
        e(f'v_mul_u32_u24 v{vPA}, 3, v{vPA}')
        e(f'v_add_u32 v{vPA}, v{vPA}, v0')
        e(f'v_lshl_add_u32 v{vPA}, v{vPA}, {self.opt["fs"]}, s{sKV}')
        e(f'v_lshrrev_b32 v{vDD[0]}, 3, v0')
        e(f'v_lshrrev_b32 v{vP}, 2, v0')
        e(f'v_and_b32 v{vP}, 4, v{vP}')
        e(f'v_xor_b32 v{vP}, v{vP}, v0')
        e(f'v_and_b32 v{vP}, 7, v{vP}')
        e(f'v_lshlrev_b32 v{vP}, 4, v{vP}')
        e(f'v_lshl_add_u32 v{vDD[0]}, v{vDD[0]}, 10, v{vP}')
        e(f'v_add_u32 v{vDD[1]}, {8192 - 1024}, v{vDD[0]}')
        e(f'v_add_u32 v{vRW[0]}, s{sMD}, v{vL16}')
        e(f'v_lshl_add_u32 v{vRW[1]}, v0, 2, s{sMD}')

    def v_const(self):
        e = self.e
        e(f'v_and_b32 v{vV[0] + 1}, 27, v0')
        e(f'v_cmp_eq_u32 vcc, 16, v{vV[0] + 1}')
        e(f'v_mov_b32 v{vV[0] + 1}, 0x3f803f80')
        e(f'v_cndmask_b32 v{vV[0]}, 0, v{vV[0] + 1}, vcc')
        for i in range(1, 16):
            e(f'v_mov_b32 v{vV[0] + i}, v{vV[0]}')

    def poll1_issue(self):
        e = self.e
        e('s_mov_b64 exec, 0xff')
        e(f'buffer_load_dwordx2 v[{vP}:{vP + 1}], v{vPA}, {srd(S_WS)}, 0 offen sc1', 'p1')
        e('s_mov_b64 exec, -1')

    def poll1_check(self):
        e = self.e
        e.wait(vm='p1')
        e('s_mov_b64 exec, 0xff')
        e(f'v_cmp_ne_u64 vcc, s[{sNON}:{sNON + 1}], v[{vP}:{vP + 1}]')
        e('s_mov_b64 exec, -1')

    def attn_load_groups(self):
        e = self.e
        k0, v0 = self.kv_load(0)
        k1, v1 = self.kv_load(1)

        return [k0, lambda: (v0(), self.kv_adv()), k1, lambda: (v1(), self.kv_adv())]

    def attn_loads_early(self):
        e = self.e
        out = []
        for n, f in enumerate(self.attn_load_groups()):
            def g(f=f, n=n):
                lab = e.newlabel('al')
                e(f's_cbranch_vccnz {lab}')
                if n == 0:
                    skip = e.snapshot()
                    for p in skip:
                        p.g = 'pend'
                else:
                    skip = [p for p in e.paths if p.g == 'pend']
                    e.paths = [p for p in e.paths if p.g != 'pend']
                f()
                e.paths = e.paths + skip
                e.label(lab)
            out.append(g)
        return out

    def attn_loads_late(self):
        e = self.e
        e('s_cbranch_vccnz Llate')
        e.label('Llate_done')
        e.paths = [p for p in e.paths if p.g != 'pend']

        def blk():
            e.paths = [p for p in Emitter().paths]
            e.label('Llate')
            e('s_mov_b64 exec, 0xff')
            ld = lambda: e(f'buffer_load_dwordx2 v[{vP}:{vP + 1}], v{vPA}, {srd(S_WS)}, 0 offen sc1')
            ck = lambda: e(f'v_cmp_ne_u64 vcc, s[{sNON}:{sNON + 1}], v[{vP}:{vP + 1}]')
            ld()
            e('s_waitcnt vmcnt(0)')
            self.spin('p1', ld, ck, self.opt['sl1'])
            e('s_mov_b64 exec, -1')
            for f in self.attn_load_groups():
                f()
            e('s_waitcnt vmcnt(0)')
            e('s_branch Llate_done')
        self.tail_blocks.append(blk)

    def sig2_a(self):
        e = self.e
        e.wait(vm='hst')
        e(f'v_mov_b32 v{vP}, {L_CNT}')
        e(f'v_mov_b32 v{vP + 1}, 1')
        e('s_mov_b64 exec, 1')
        e(f'ds_add_rtn_u32 v{vP}, v{vP}, v{vP + 1}', 'cnt2')
        e('s_mov_b64 exec, -1')

    def sig2_b(self):
        e = self.e
        e.wait(lg='cnt2')
        e(f'v_readfirstlane_b32 s{sT}, v{vP}')
        lab = e.newlabel('f2')
        e(f's_cmp_lg_u32 s{sT}, 7')
        e(f's_cbranch_scc1 {lab}')
        snap = e.snapshot()
        e(f's_lshl_b32 s{sT}, s{sTB}, 4')
        e(f's_add_u32 s{sT}, s{sT}, s{sJ}')
        e(f's_lshl_b32 s{sT}, s{sT}, {self.opt["fs"]}')
        e(f's_add_u32 s{sT}, s{sT}, {WS_F2}')
        self.flag_store(sT, vP)
        e.paths = e.paths + snap
        e.label(lab)

    def attention(self):
        e = self.e
        G0 = self.opt['g2start']
        NT = 64

        def qk(t):
            it, sl = divmod(t, 4)
            if sl == 0:
                e.wait(vm=f'k{it}')
            if it == 0:
                e.wait(lg=f'q{sl}')
            e(f'v_mfma_f32_32x32x16_bf16 {vr(vS[t % 2], 16)}, {vr(vK[it % 2], 4)}, {vr(vQ[sl], 4)}, 0')

        def pv(t, hi):
            it, sl = divmod(t, 4)
            if sl == 0 and not hi:
                e.wait(vm=f'v{it}')
            e(f'v_smfmac_f32_32x32x32_bf16 {vr(vO[sl], 16)}, {vr(vV[it % 2] + 4 * hi, 4)}, {vr(vS[t % 2] + 8 * hi, 8)}, v{vIDX}')

        def ex(t, a, b):
            for i in range(a, b):
                e(f'v_exp_f32 v{vS[t % 2] + i}, v{vS[t % 2] + i}')

        def stage_dma(rs, so, i, tag):
            return lambda: e(f'buffer_load_dwordx4 v{vDD[i]}, {srd(rs)}, s{so} offen' + (' offset:1024' if i else '') + FL[self.opt['fw']] + ' lds', tag)

        def wo_first():
            e(f's_lshl_b32 s{sWO}, s{sW}, 16')
            e(f's_lshl_b32 s{sT}, s{sCB}, 7')
            e(f's_add_u32 s{sWO}, s{sWO}, s{sT}')
            e(f's_lshl_b32 s{sMW}, s{sW}, 13')

        def h_load(step, i):
            return lambda: e(f'buffer_load_dwordx4 {vr(vH[step % 2] + 4 * i, 4)}, v{vHA[i]}, {srd(S_H)}, s{sHO} offen' + FL[self.opt['fh']], f'h{step}')

        def wd_read(step, jj):
            def f():
                e.wait(vm=f'd{step}')
                for rd in range(2):
                    e(f'ds_read_b64_tr_b16 {vr(vD + 4 * jj + 2 * rd, 2)}, v{vDR[jj]} offset:{L_RING + 2048 * (step % 3) + 512 * rd}', f'dr{step}_{jj}')
            return f

        def g2(step, sl):
            jj, i = divmod(sl, 2)
            e.wait(vm=f'h{step}', lg=f'dr{step}_{jj}')
            acc = vr(vG[i * 2 + jj], 16)
            e(f'v_mfma_f32_32x32x16_bf16 {acc}, {vr(vD + 4 * jj, 4)}, {vr(vH[step % 2] + 4 * i, 4)}, {acc if step else 0}')

        def only_g1(fn):
            def f():
                if not self.opt['ys']:
                    return fn()
                lab = e.newlabel('g1')
                e(f's_cmp_eq_u32 s{sG}, 0')
                e(f's_cbranch_scc1 {lab}')
                snap = e.snapshot()
                fn()
                for p in snap:
                    p.vm = [t if t != 'hst' else None for t in p.vm]
                e.paths = e.paths + snap
                e.label(lab)
            return f

        def h_addrs():
            e(f's_and_b32 s{sT}, s{sW}, 1')
            e(f's_lshl_b32 s{sT}, s{sT}, 10')
            e(f'v_add_u32 v{vHA[0]}, s{sT}, v{vL16}')
            e(f'v_xor_b32 v{vHA[1]}, 1024, v{vHA[0]}')
            e(f's_mul_i32 s{sHO}, s{sW}, {11 * 2048}')

        def poll2_issue():
            e(f's_lshr_b32 s{sT + 1}, s{sRB}, 1')
            e(f's_lshl_b32 s{sT + 1}, s{sT + 1}, {4 + self.opt["fs"]}')
            e(f's_add_u32 s{sT + 1}, s{sT + 1}, {WS_F2}')
            e(f'v_lshl_add_u32 v{vPA}, v0, {self.opt["fs"]}, s{sT + 1}')
            e('s_mov_b64 exec, 0xffff')
            e(f'buffer_load_dwordx2 v[{vP}:{vP + 1}], v{vPA}, {srd(S_WS)}, 0 offen sc1', 'p2')
            e('s_mov_b64 exec, -1')

        def poll2_check():
            e.wait(vm='p2')
            e('s_mov_b64 exec, 0xffff')
            ld = lambda: e(f'buffer_load_dwordx2 v[{vP}:{vP + 1}], v{vPA}, {srd(S_WS)}, 0 offen sc1')
            ck = lambda: e(f'v_cmp_ne_u64 vcc, s[{sNON}:{sNON + 1}], v[{vP}:{vP + 1}]')
            self.spin('p2', ld, ck, self.opt['sl2'])
            e('s_mov_b64 exec, -1')

        def co_read():
            e(f's_lshl_b32 s{sT}, s{sTT}, 8')
            e(f'v_lshl_add_u32 v{vCO}, v0, 2, s{sT}')
            e(f'ds_read_b32 v{vCO}, v{vCO} offset:{L_Z}', 'zr2')

        def co_math():
            e.wait(lg='zr2')
            e(f'v_mul_f32 v{vCO}, {fbits(-LOG2E)}, v{vCO}')
            e(f'v_exp_f32 v{vCO}, v{vCO}')

        def ored_addr(i):
            def f():
                e(f's_sub_u32 s{sT}, s{sTT}, {1 + i}')
                e(f's_and_b32 s{sT}, s{sT}, 3')
                e(f's_lshl_b32 s{sT + 1}, s{sG}, 2')
                e(f's_add_u32 s{sT}, s{sT}, s{sT + 1}')
                e(f's_mul_i32 s{sT}, s{sT}, {RINGW}')
                e(f'v_add_u32 v{vRR + i}, s{sT}, v{vL16}')
                e(f'v_lshl_add_u32 v{vRR + 3 + i}, v0, 2, s{sT}')
            return f

        def o_addr():
            e(f's_lshl_b32 s{sO[0]}, s{sRB}, 1')
            e(f's_and_b32 s{sT}, s{sW}, 1')
            e(f's_add_u32 s{sO[0]}, s{sO[0]}, s{sT}')
            e(f's_lshl_b32 s{sO[0]}, s{sO[0]}, 2')

        def o_addr2():
            e(f's_lshr_b32 s{sT}, s{sW}, 1')
            e(f's_add_u32 s{sO[0]}, s{sO[0]}, s{sT}')
            e(f's_lshl_b32 s{sO[0]}, s{sO[0]}, 13')
            e(f's_add_u32 s{sO[0]}, s{sO[0]}, {WS_O}')
            e(f's_add_u32 s{sO[1]}, s{sO[0]}, 4096')

        def ored_write(sl, part):
            o = L_RING + 2304 * sl
            if part < 2:
                return lambda: e(f'ds_write_b128 v{vRW[0]}, {vr(vO[sl] + 4 * part, 4)} offset:{o + 1024 * part}', 'orw')
            return lambda: e(f'ds_write_b32 v{vRW[1]}, v{vO[sl] + 8} offset:{o + 2048}', 'orw')

        side = {}
        add = lambda t, p, f: side.setdefault((t, p), []).append(f)
        I = lambda text: (lambda: e(text))
        for it in range(16):
            t = 4 * it
            st = it - G0
            add(t, 1, lambda it=it, st=st: e.wait(vm=[f'v{it}', f'h{st}'], lg=f'dr{st}_0'))
            add(t + 2, 2, lambda it=it, st=st: e.wait(vm=[f'k{it + 1}', f'd{st + 1}'], lg=f'dr{st}_1'))
            if 1 <= it < 15:
                add(t, 0, self.kv_load(it + 1)[1])
                add(t, 2, self.kv_adv)
            if it < 14:
                add(t + 2, 1, self.kv_load(it + 2)[0])
        for step in range(11):
            t = 4 * (G0 + step)
            add(t - 7, 2, I(f's_add_u32 m0, s{sMD}, {L_RING + 2048 * (step % 3)}'))
            add(t - 7, 4, stage_dma(S_WD, sDO, 0, f'd{step}'))
            add(t - 6, 0, stage_dma(S_WD, sDO, 1, f'd{step}'))
            add(t - 6, 0, I(f's_addk_i32 s{sDO}, 16384'))
            add(t - 4, 4, h_load(step, 0))
            add(t - 3, 1, h_load(step, 1))
            add(t - 3, 2, I(f's_addk_i32 s{sHO}, 2048'))
            add(t - 1, 0, wd_read(step, 0))
            add(t + 1, 0, wd_read(step, 1))
        t = 4 * self.opt['woi'] + 3
        add(t - 1, 4, wo_first)
        for k in range(4):
            add(t + 4 * k, 1, I(f's_add_u32 m0, s{sMW}, {L_WO + 2048 * k}'))
            add(t + 4 * k, 2, stage_dma(S_WO, sWO, 0, 'wo'))
            add(t + 4 * k, 2, stage_dma(S_WO, sWO, 1, 'wo'))
            add(t + 4 * k, 4, I(f's_addk_i32 s{sWO}, 16384'))
        if not self.opt['omf']:
            add(self.opt['om'], 2, only_g1(self.o_mark))
        for c in range(self.opt['hl']):
            add(c * self.opt['hsp'], 2, lambda c=c: self.h_store(c))
        for i in range(3):
            add(22 + 4 * i, 2, ored_addr(i))
        add(34, 2, o_addr)
        add(38, 2, o_addr2)
        if self.opt['tca'] < 16:
            add(self.opt['tca'], 2, lambda: self.touch(vRR))
        add(2, 2, co_read)
        add(3, 2, co_math)
        add(self.opt['s2t'], 2, only_g1(self.sig2_a))
        add(self.opt['s2t'] + 1, 2, only_g1(self.sig2_b))
        add(self.opt['s2t'] + 2, 2, h_addrs)
        add(4 * (G0 - 2) + 2, 2, poll2_issue)
        add(4 * (G0 - 1), 2, poll2_check)
        for sl in range(3):
            add(61 + sl, 4, ored_write(sl, 0))
            add(*((62 + sl, 0) if sl < 2 else (63, 3)), ored_write(sl, 1))
            add(*((62 + sl, 0) if sl < 2 else (63, 3)), ored_write(sl, 2))
        if self.opt['prio']:
            add(self.opt['pa'], 2, lambda: e('s_setprio 2'))
            add(self.opt['pb'], 2, lambda: e('s_setprio 1'))
            add(self.opt['pc'], 2, lambda: e('s_setprio 0'))

        def run(t, p):
            for f in side.get((t, p), []):
                f()

        def zero(sl):
            e(f'v_mfma_f32_32x32x16_bf16 {vr(vO[sl], 16)}, {vr(vD, 4)}, {vr(vD, 4)}, 0')

        e(f'v_mov_b32 v{vIDX}, 0xdddddddd')
        for i in range(4):
            e(f'v_mov_b32 v{vD + i}, 0')
        qk(0)
        self.stamp(9, 3)
        if self.opt['zm']:
            zero(0)
        for t in range(NT):
            it, sl = divmod(t, 4)
            ex(t, 0, 2)
            if t > 0:
                pv(t - 1, 1)
            run(t, 0)
            ex(t, 2, 5)
            if t + 1 < NT:
                qk(t + 1)
            run(t, 1)
            ex(t, 5, 10)
            pv(t, 0)
            run(t, 2)
            ex(t, 10, 13)
            if G0 <= it < G0 + 11:
                g2(it - G0, sl)
            if t < 3 and self.opt['zm']:
                zero(t + 1)
            run(t, 4)
            ex(t, 13, 16)
            run(t, 3)
            if t in (7, 31):
                self.stamp(7 if t == 7 else 8)
            if t in (3, 5, 7):
                self.stamp(10 + (t - 3) // 2, 3)
        pv(NT - 1, 1)
        run(NT, 0)

    def tail(self):
        e = self.e
        own = vO[3]
        R = vO[0]
        WO = vO[0]
        OFR = [vH[0], vH[1], ACA + 16, ACA + 24]
        PRE = X + 64
        vFW, vPW, vOA = FR, FR + 4, FR + 9
        vFRd, vPR = vK[1], vRR
        HEADS = (1, 3, 5, 7, 0, 2, 4, 6)
        P2 = lambda b, i: vr(b + 2 * i, 2)

        def o_reduce(g):
            for i in range(3):
                e(f'ds_read_b32 v{R + 24 + i}, v{vRR + 3 + i} offset:{L_RING + 2304 * i + 2048}', f'or{i}')
            for i in range(3):
                o = L_RING + 2304 * i
                e(f'ds_read_b128 {vr(R + 8 * i, 4)}, v{vRR + i} offset:{o}', f'oa{i}')
                e(f'ds_read_b128 {vr(R + 8 * i + 4, 4)}, v{vRR + i} offset:{o + 1024}', f'oa{i}')
            if g == 0:
                for kk in range(2):
                    old(kk, f'o{kk}')
            e.wait(lg='or2')
            e(f'v_add_f32 v{R + 24}, v{R + 24}, v{R + 25}')
            e(f'v_add_f32 v{own + 8}, v{own + 8}, v{R + 26}')
            e(f'v_add_f32 v{own + 8}, v{own + 8}, v{R + 24}')
            e(f'v_subrev_u32 v{R + 24}, {(127 - 60) << 23}, v{own + 8}')
            e(f'v_cmp_lt_u32 vcc, {120 << 23}, v{R + 24}')
            e(f'v_fma_f32 v{R + 28}, v{own + 8}, v{vCO}, v{own + 8}')
            e(f'v_rcp_f32 v{R + 28}, v{R + 28}')
            for i in range(3):
                e.wait(lg=f'oa{i}')
                for r in range(4):
                    if g:
                        for h in range(2):
                            e(f'v_add_f32 v{own + 2 * r + h}, v{own + 2 * r + h}, v{R + 8 * i + 2 * r + h}')
                    else:
                        e(f'v_pk_add_f32 {P2(own, r)}, {P2(own, r)}, {P2(R + 8 * i, r)}')
            e('s_cbranch_vccnz Lsafe')
            e.label(f'Lsafe_done{g}')
            for r in range(8):
                e(f'v_mul_f32 v{own + r}, v{own + r}, v{R + 28}')
            for r in range(4):
                e(f'v_cvt_pk_bf16_f32 v{vK[0] + r}, v{own + 2 * r}, v{own + 2 * r + 1}')
            for r in range(4):
                e(f'v_min_u32 v{vK[0] + r}, -2, v{vK[0] + r}')
            e(f'buffer_store_dwordx4 {vr(vK[0], 4)}, v{vL16}, {srd(S_WS)}, s{sMO} offen sc1', 'ost')
            self.stamp(10)
            e(f's_lshr_b32 s{sT + 1}, s{sW}, 1')
            e(f's_lshl_b32 s{sT + 2}, s{sT + 1}, 14')
            e(f's_mul_i32 s{sT + 3}, s{sW}, {RINGW}')
            e(f's_sub_u32 s{sT + 2}, s{sT + 2}, s{sT + 3}')
            e(f's_add_u32 s{sT + 2}, s{sT + 2}, {L_WO}')
            e(f'v_and_b32 v{vP + 1}, 32, v0')
            e(f'v_lshlrev_b32 v{vP + 1}, 4, v{vP + 1}')
            e(f'v_sub_u32 v{vP + 1}, s{sT + 2}, v{vP + 1}')
            for jj in range(2):
                e(f'v_add_u32 v{vDR[jj]}, v{vP + 1}, v{vDR[jj]}')

        def old(kk, tag=None):
            for n in (2 * kk, 2 * kk + 1):
                e(f'buffer_load_dwordx4 {vr(OFR[kk] + 4 * (n & 1), 4)}, v{vL16}, {srd(S_WS)}, s{sO[HEADS[n] >> 2]} offen offset:{1024 * (HEADS[n] & 3)} sc1', tag)

        def wo_reads(n):
            for jj in range(2):
                for rd in range(2):
                    e(f'ds_read_b64_tr_b16 {vr(WO + 8 * n + 4 * jj + 2 * rd, 2)}, v{vDR[jj]} offset:{2048 * HEADS[n] + 1024 * rd}', f'wor{n}')

        def addrs(g, part=3):
            t0, t1 = vK[1] + 2, vK[1] + 3
            if part & 1:
                e(f'v_and_b32 v{vPW}, 31, v0')
                e(f'v_lshrrev_b32 v{t0}, 5, v0')
                e(f'v_and_b32 v{t1}, 7, v0')
                e(f'v_xor_b32 v{t0}, v{t0}, v{t1}')
                e(f'v_lshlrev_b32 v{t0}, 4, v{t0}')
                e(f'v_lshl_add_u32 v{vPW}, v{vPW}, 8, v{t0}')
                e(f's_lshl_b32 s{sT}, s{sTT}, 13')
                e(f's_add_u32 s{sT}, s{sT}, {98304 * g}')
                e(f'v_add_u32 v{vPW}, s{sT}, v{vPW}')
                for q in range(1, 4):
                    e(f'v_xor_b32 v{vPW + q}, {32 * q}, v{vPW}')
            if not part & 2:
                return
            e(f'v_lshrrev_b32 v{t0}, 3, v0')
            e(f'v_lshlrev_b32 v{vOA}, 4, v{t1}')
            e(f'v_lshl_add_u32 v{vOA}, v{t0}, 10, v{vOA}')
            e(f'v_lshlrev_b32 v{t1}, 1, v{t1}')
            e(f'v_xor_b32 v{t1}, v{t1}, v{t0}')
            e(f'v_lshlrev_b32 v{t1}, 4, v{t1}')
            e(f'v_lshl_add_u32 v{t1}, v{t0}, 8, v{t1}')
            e(f's_and_b32 s{sT + 2}, s{sW}, 1')
            e(f's_lshl_b32 s{sT + 2}, s{sT + 2}, 2')
            e(f's_add_u32 s{sT + 2}, s{sT + 2}, s{sT + 1}')
            e(f's_lshl_b32 s{sT + 3}, s{sT + 2}, 11')
            e(f'v_add_u32 v{vFRd}, s{sT + 3}, v{t1}')
            e(f'v_xor_b32 v{vFRd + 1}, 16, v{vFRd}')
            for h in range(2):
                e(f'v_xor_b32 v{vPR + h}, {8192 + L_PRE1}, v{vFRd + h}')
            for p in range(2):
                for h in range(2):
                    e(f'ds_read_b128 {vr(PRE + 8 * p + 4 * h, 4)}, v{vPR + h} offset:{16384 * p}', 'pr')
            for h in range(2):
                e(f'v_xor_b32 v{vPR + 2 + h}, 8192, v{vFRd + h}')
                e(f'v_add_u32 v{vPR + 4 + h}, 98304, v{vFRd + h}')
            e(f's_lshl_b32 s{sT}, s{sRB}, 3')
            e(f's_add_u32 s{sT}, s{sT}, s{sT + 2}')
            e(f's_lshl_b32 s{sT}, s{sT}, 13')
            e(f's_lshl_b32 s{sT + 1}, s{sCB}, 7')
            e(f's_add_u32 s{sT}, s{sT}, s{sT + 1}')

        def slab_write(g, i, n):
            jj, q = divmod(n, 4)
            e(f'ds_write_b128 v{vPW + q}, {vr(vG[2 * i + jj] + 4 * q, 4)} offset:{32768 * (i ^ g ^ 1) + 128 * jj}', 'sw')

        def mf(jj, n):
            acc = vr(vG[jj], 16)
            e(f'v_mfma_f32_32x32x16_bf16 {acc}, {vr(WO + 8 * n + 4 * jj, 4)}, {vr(OFR[n >> 1] + 4 * (n & 1), 4)}, {acc}')

        def mm(kk, between=None, jjs=(0, 1)):
            e.wait(vm=f'o{kk}')

            def ck():
                b = OFR[kk]
                e(f'v_max3_u32 v{vP}, v{b}, v{b + 1}, v{b + 2}')
                e(f'v_max3_u32 v{vP + 1}, v{b + 3}, v{b + 4}, v{b + 5}')
                e(f'v_max3_u32 v{vP}, v{vP}, v{b + 6}, v{b + 7}')
                e(f'v_max_u32 v{vP}, v{vP}, v{vP + 1}')
                e(f'v_cmp_eq_u32 vcc, -1, v{vP}')
            self.spin(f'o{kk}', lambda: [old(q) for q in range(kk, (kk | 1) + 1)], ck, self.opt['sl3'])
            for i, (jj, n) in enumerate(((0, 2 * kk), (0, 2 * kk + 1), (1, 2 * kk), (1, 2 * kk + 1))):
                if jj in jjs:
                    mf(jj, n)
                if between:
                    between(i)

        self.stamp(9)
        e(f's_cmp_lg_u32 s{sG}, 0')
        e('s_setprio 3')
        e.wait(vm='wo', lg='all')
        e('s_cbranch_scc1 Ltail1')
        snap = e.snapshot()
        self.tail_blocks.append(self.safe_softmax)

        def first_group():
            e.restore(snap)
            e.label('Ltail1')
            e(f'v_mov_b32 v{vPA}, {L_CNT}')
            e(f'v_mov_b32 v{vP}, 1')
            e('s_mov_b64 exec, 1')
            e(f'ds_add_u32 v{vPA}, v{vP} offset:4')
            e('s_mov_b64 exec, -1')

            def ld():
                e(f'ds_read_b64 {vr(vP, 2)}, v{vPA}')
                e('s_waitcnt lgkmcnt(0)')

            def ck():
                e(f'v_add_u32 v{vP}, v{vP}, v{vP + 1}')
                e(f'v_cmp_ne_u32 vcc, 12, v{vP}')
            ld()
            for p in e.paths:
                p.lg = []
            self.spin('g1', ld, ck, 1)
            o_reduce(1)
            addrs(1, 1)
            e('s_setprio 0')
            for n in range(8):
                wo_reads(n)
                slab_write(1, 1, n)
            e.wait(lg='all')
            e('s_barrier')
            for kk in range(4 if self.opt['ol'] == 0 else 2):
                old(kk, f'o{kk}')
            addrs(1, 2)
            e('s_barrier')
            self.stamp(11)
            finish(1, self.opt['ol'])
            e('s_branch Ltail2')
        self.tail_blocks.insert(0, first_group)

        def finish(g, late, k0=0):
            def pre_add(i):
                e.wait(lg='pr')
                for r in range(2 * i, 2 * i + 2):
                    e(f'v_add_f32 v{PRE + r}, v{PRE + r}, v{PRE + 8 + r}')
            for kk in range(k0, 4):
                if late == kk + 1:
                    for q in range(2, 4):
                        old(q, f'o{q}')
                e.wait(lg=f'wor{2 * kk + 1}')
                mm(kk, pre_add if kk == 3 else None)
            self.stamp(12)
            for n in range(8):
                slab_write(g, 0, n)
            e.wait(lg='all')

        e('s_barrier')
        o_reduce(0)
        YL = self.opt['yl']
        lateld = lambda: [old(q, f'o{q}') for q in range(2, 4)]
        if YL == 0:
            lateld()
        for n in range(4):
            wo_reads(n)
        addrs(0, 1)
        e('s_barrier')
        for kk in range(2):
            if YL == kk + 1:
                lateld()
            e.wait(lg=f'wor{2 * kk + 1}')

            def lds_work(i, kk=kk):
                slab_write(0, 1, 4 * kk + i)
                if i % 2:
                    wo_reads(4 + 2 * kk + i // 2)
            mm(kk, lds_work)
        if YL == 3:
            lateld()
        addrs(0, 2)
        self.stamp(11)
        finish(0, 0, 2)
        e.label('Ltail2')
        e('s_barrier')
        B = X
        src = [(vPR + 2, 0), (vPR + 2, 16384), (vPR + 4, 0), (vPR + 4, 16384), (vFRd, 32768), (vFRd, 49152)]
        for p, (va, off) in enumerate(src):
            for h in range(2):
                e(f'ds_read_b128 {vr(B + 8 * p + 4 * h, 4)}, v{va + h} offset:{off}', f'fr{p}')
        for p in range(6):
            e.wait(lg=f'fr{p}')
            for r in range(4):
                e(f'v_pk_add_f32 {P2(PRE, r)}, {P2(PRE, r)}, {P2(B + 8 * p, r)}')
        for r in range(4):
            e(f'v_cvt_pk_bf16_f32 v{B + r}, v{PRE + 2 * r}, v{PRE + 2 * r + 1}')
        e(f'buffer_store_dwordx4 {vr(B, 4)}, v{vOA}, {srd(S_OUT)}, s{sT} offen sc1')
        if 'probe' in self.opt:
            e.wait(vm='all')
            self.stamp(13)
            e.label('Lprobe')
            e('s_sleep 1')
            e(f's_memrealtime s[{sSTMP}:{sSTMP + 1}]')
            e('s_waitcnt lgkmcnt(0)')
            e(f's_sub_u32 s{sSTMP}, s{sSTMP}, s{sNON if self.opt["probe"] == 99 else sSTAMP}')
            e(f's_cmp_lt_u32 s{sSTMP}, 6000')
            e('s_cbranch_scc1 Lprobe')
        if self.stamps:
            e.wait(vm='all')
            self.stamp(13)
            e(f's_lshl_b32 s{sT}, s2, 3')
            e(f's_add_u32 s{sT}, s{sT}, s{sW}')
            e(f's_lshl_b32 s{sT}, s{sT}, 6')
            e(f's_add_u32 s{sT}, s{sT}, {WS_ST}')
            e('s_waitcnt lgkmcnt(0)')
            en = [i for i in range(14) if (self.opt.get('smask', 0x2001) | 0x2001) >> i & 1]
            for k, i in enumerate(en):
                e(f'v_mov_b32 v{B + 8 + i}, s{sSTAMP + 2 * k}')
            e('s_mov_b64 exec, 1')
            for i in range(4):
                e(f'buffer_store_dwordx4 {vr(B + 8 + 4 * i, 4)}, off, {srd(S_WS)}, s{sT} offset:{16 * i}')
        e.label('Lexit')
        e('s_endpgm')

    def safe_softmax(self):
        e = self.e
        e.paths = [p for p in Emitter().paths]
        own = vO[3]
        M = vO[0]
        S = vS[0]
        e.label('Lsafe')
        e(f's_and_b32 s{sT + 2}, s{sKVB}, {0xffffffff ^ (3 << 15)}')
        e(f's_mov_b32 s{sT + 3}, s{sT + 2}')
        e(f's_mov_b32 s{sT + 4}, 64')
        e(f'v_mov_b32 v{M}, 0xff800000')
        e.label('Lsafe1')
        e(f'buffer_load_dwordx4 {vr(vK[0], 4)}, v{vL16}, {srd(S_WS)}, s{sT + 3} offen sc1')
        e(f's_add_u32 s{sT + 3}, s{sT + 3}, 2048')
        e('s_waitcnt vmcnt(0)')
        e(f'v_mfma_f32_32x32x16_bf16 {vr(S, 16)}, {vr(vK[0], 4)}, {vr(vQ[3], 4)}, 0')
        for i in range(0, 16, 2):
            e(f'v_max3_f32 v{M}, v{M}, v{S + i}, v{S + i + 1}')
        e(f's_sub_u32 s{sT + 4}, s{sT + 4}, 1')
        e(f's_cmp_lg_u32 s{sT + 4}, 0')
        e('s_cbranch_scc1 Lsafe1')
        e(f'v_mov_b32 v{M + 1}, v{M}')
        e(f'v_permlane32_swap_b32 v{M}, v{M + 1}')
        e(f'v_max_f32 v{M}, v{M}, v{M + 1}')
        e(f'v_sub_f32 v{M}, 0, v{M}')
        for i in range(1, 16):
            e(f'v_mov_b32 v{M + i}, v{M}')
        for i in range(16):
            e(f'v_mov_b32 v{own + i}, 0')
        e(f's_mov_b32 s{sT + 3}, s{sT + 2}')
        e(f's_mov_b32 s{sT + 4}, 64')
        e.label('Lsafe2')
        e(f'buffer_load_dwordx4 {vr(vK[0], 4)}, v{vL16}, {srd(S_WS)}, s{sT + 3} offen sc1')
        e(f's_mov_b64 exec, s[{sVM}:{sVM + 1}]')
        e(f'buffer_load_dwordx4 {vr(vV[0], 4)}, v{vVA}, {srd(S_WS)}, s{sT + 3} offen offset:1024 sc1')
        e(f'buffer_load_dwordx4 {vr(vV[0] + 4, 4)}, v{vVA}, {srd(S_WS)}, s{sT + 3} offen offset:1536 sc1')
        e('s_mov_b64 exec, -1')
        e(f's_add_u32 s{sT + 3}, s{sT + 3}, 2048')
        e('s_waitcnt vmcnt(0)')
        e(f'v_mfma_f32_32x32x16_bf16 {vr(S, 16)}, {vr(vK[0], 4)}, {vr(vQ[3], 4)}, {vr(M, 16)}')
        for i in range(16):
            e(f'v_exp_f32 v{S + i}, v{S + i}')
        for hi in range(2):
            e(f'v_smfmac_f32_32x32x32_bf16 {vr(own, 16)}, {vr(vV[0] + 4 * hi, 4)}, {vr(S + 8 * hi, 8)}, v{vIDX}')
        e(f's_sub_u32 s{sT + 4}, s{sT + 4}, 1')
        e(f's_cmp_lg_u32 s{sT + 4}, 0')
        e('s_cbranch_scc1 Lsafe2')
        e('s_nop 15')
        e(f'v_fma_f32 v{vO[0] + 28}, v{own + 8}, v{vCO}, v{own + 8}')
        e(f'v_rcp_f32 v{vO[0] + 28}, v{vO[0] + 28}')
        e(f's_cmp_lg_u32 s{sG}, 0')
        e('s_cbranch_scc1 Lsafe_done1')
        e('s_branch Lsafe_done0')

    def build(self):
        e = self.e
        self.prologue()
        e.drop = (None, ('v_mfma',), ('v_mfma', 'ds_read_b64_tr'), ('ds_read_b64_tr',))[self.opt.get('x_drop', 0)]
        snap = e.snapshot()
        e.label('Lload')
        self.phase_a_loader()
        self.phase_f(1, 3)
        e('s_branch Lffn')
        ends = e.snapshot()
        cends = []
        for ty in (0, 1):
            e.restore(snap)
            e.label(f'Lcomp{ty}')
            self.phase_a_compute(ty)
            if ty == 0:
                e('s_branch Lpack')
            cends += e.snapshot()
        e.paths = cends
        e.label('Lpack')
        e(f's_mul_i32 s{sT}, s{sJ}, 43691')
        e(f's_lshr_b32 s{sT}, s{sT}, 17')
        e(f's_mul_i32 s{sT}, s{sT}, 3')
        for i in range(4):
            self.pack8(ACA + 8 * i, ACA + 4 * i)
            if i < self.opt['qe']:
                self.kv_store(i)
        self.z_write()
        e(f's_cmp_eq_u32 s{sT}, s{sJ}')
        e('s_cbranch_scc1 Lsix')
        snap = e.snapshot()
        for NC in (2, 3):
            e.restore(snap)
            if NC == 3:
                e.label('Lsix')
            e('s_barrier')
            self.stamp(4)
            self.phase_f(0, NC)
            if NC == 2:
                e('s_branch Lffn')
            ends += e.snapshot()
        e.paths = ends
        e.label('Lffn')
        e.drop = None
        self.attn_loads_late()
        self.stamp(6)
        self.attention()
        self.tail()
        i = 0
        while i < len(self.tail_blocks):
            self.tail_blocks[i]()
            i += 1
        e.label('Lcode_end')
        return self.wrap()

    def wrap(self):
        head = open('gated_mix__softmax_full_mha__glu_gated_geglu__prompt.s.ref').read().split('; Override')[0]
        return head + f"""; @launch grid=(256,1,1) block=(512,1,1) lds={LDS_BYTES}
.amdgcn_target "amdgcn-amd-amdhsa--gfx950"
.text
.globl {KNAME}
.p2align 8
.type {KNAME},@function
{KNAME}:
{self.e.text()}
.section .rodata,"a"
.p2align 6
.amdhsa_kernel {KNAME}
  .amdhsa_next_free_vgpr 256
  .amdhsa_next_free_sgpr 102
  .amdhsa_accum_offset 256
  .amdhsa_group_segment_fixed_size 0
  .amdhsa_kernarg_size 88
  .amdhsa_user_sgpr_count 2
  .amdhsa_user_sgpr_kernarg_segment_ptr 1
  .amdhsa_system_sgpr_workgroup_id_x 1
.end_amdhsa_kernel
"""


if __name__ == '__main__':
    out = sys.argv[1]
    stamps = sys.argv[2] if len(sys.argv) > 2 and sys.argv[2] in ('rt', 'cy') else False
    opt = {}
    for a in sys.argv[2:]:
        if '=' in a:
            k, v = a.split('=')
            opt[k] = int(v, 0)
    g = Gen(stamps=stamps, opt=opt)
    open(out, 'w').write(g.build())
    print('nops inserted:', g.e.nops, 'lines:', len(g.e.lines))
```

```python
import sys, math, struct
from asmlib import Emitter, Win

KNAME = 'gated_mix__softmax_full_mha__glu_gated_geglu__prompt_kernel'

WS_Q = 0
WS_KV = 2 << 20
WS_O = 6 << 20
WS_F1 = 8 << 20
WS_F2 = WS_F1 + 32768
WS_ST = WS_F1 + 65536
WS_H = 9 << 20
HBLK = 86 * 2048
WS_END = 15 << 20

L_GW = 0
L_Z = 1024
SLOT0 = 4096
UPOFF = 12288
QOFF = 24576
L_QX = 147456
L_RING = 4096
RINGW = 7168
L_WO = 65536
L_PRE1 = 131072
L_CNT = 2048
LDS_BYTES = 163840

S_X, S_WQ, S_WF, S_WS, S_H, S_WD, S_WO, S_OUT, S_DBG, S_GW = [4 * i + 4 for i in range(10)]
S_WG = 80
sW, sTT, sG, sJ, sTB, sRB, sCB, sUS = range(44, 52)
sXO, sWO, sFO, sMX, sMW, sMF = range(52, 58)
sNON = 58
sKV, sKVB, sKVI, sHO, sDO, sMD = range(60, 66)
sVM = 66
sT = 68
sGC = 76
sQX = [40, 41, 42, 43]
sQW = 78
sXO2 = 79
sSPIN = 84
sMO = 85
sMG = 3
sO = [4, 5]
sR = 73
sE = [4, 5, 6, 7]
sSTMP = 86
sSTAMP = 88


def region(s):
    return SLOT0 + 28672 * (s % 5)


def srd(b):
    return f's[{b}:{b + 3}]'


def vr(b, n):
    return f'v[{b}:{b + n - 1}]' if n > 1 else f'v{b}'


def fbits(x):
    return '0x%08x' % struct.unpack('<I', struct.pack('<f', x))[0]


vL16 = 1
vXD = [2, 3]
vWD = 4
vFD = 5
vXR = [6, 7]
vWR = [8, 2]
vFR = [9, 10, 11]
FR = 16
NFR = 5
ACA = 36
ACF = 68
vK = [116, 120]
vCH, vIDX, vVA = 124, 126, 127
vQR = 126
QA = ACA + 16
X = 128
vO = [X + 16 * i for i in range(4)]
vQ = [X + 64 + 4 * i for i in range(4)]
vV = [ACA, ACA + 8]
vS = [ACA + 16, X + 80]
vG = [ACF, ACF + 16, ACF + 32, X + 96]
vH = [X + 112, X + 120]
vD = FR
vCO = FR + 8
vDD = [2, 3]
vDR = [12, 13]
vP = 14
vPA = 6
vRW = [7, 8]
vHA = [9, 10]
vKA = 124
vRR = FR + 10

LOG2E = 1.4426950408889634
QSCALE = 0.25 * LOG2E
GC0 = -2.0 * LOG2E * math.sqrt(2.0 / math.pi)
GC1 = GC0 * 0.044715
SPIN = 400000
FL = ('', ' sc1', ' nt', ' sc1 nt')

DOC = """;
;
;   1. k/v projection   x and 64 columns of w_k (even j) or w_v (odd j) stream through an LDS ring by LDS-DMA
;   2. q + gate/up      q of heads 2j, 2j+1 (scaled by log2(e)/4) and 5 or 6 units of 16 gate/up columns;
;   3. attention        wave (kq, head) runs 4 query tiles against a quarter of the keys:
;                       S^T = K Q^T (v_mfma 32x32x16), P = v_exp_f32(S), O^T += V^T P^T with v_smfmac 32x32x32, whose
;
;
"""


class Gen:
    def __init__(self, stamps=False, opt=None):
        self.e = Emitter()
        self.stamps = stamps
        self.nst = 0
        self.opt = dict(g2start=5, prio=True, ahead=12, span=12, fah=2, omf=0, lfirst=3, as2=6, ahead2=8, tlb=0, bt=0, rx=3, btm=999, btx=0, tch=200, tca=8, tcw=7, dsplit=1, ys=0, fw=0, fx=0, fh=1, p1i=70, p1c=80, gsp=10, g0=0, fk=2, gk=3, lpre=60, cpre=40, lfk=20, llast=2, lsp2=1,
                        pa=7, pb=54, pc=200, ol=3, yl=3, woi=8, qw=12, vs=11, qe=2, q0=12, qsp=2, om=2, s2t=5, rot=4, rj=0, zm=1, hl=0, hsp=1,
                        fs=7, lp=1, eb=1, sl1=4, sl2=8, sl3=2, lsp=4)
        if opt:
            self.opt.update(opt)
        self.tail_blocks = []

    def stamp(self, idx, sset=0):
        e = self.e
        if self.opt.get('sset') == 4:
            if 7 <= idx <= 9 and sset != 4:
                return
        elif 7 <= idx <= 12 and sset != self.opt.get('sset', 0):
            return
        if self.opt.get('probe') == idx:
            e(f's_memrealtime s[{sSTAMP}:{sSTAMP + 1}]')
            e('s_waitcnt lgkmcnt(0)')
            for p in e.paths:
                p.lg = []
        if not self.stamps or not (self.opt.get('smask', 0x2001) | 0x2001) >> idx & 1:
            return
        en = [i for i in range(14) if (self.opt.get('smask', 0x2001) | 0x2001) >> i & 1]
        assert len(en) <= 7
        r = sSTAMP + 2 * en.index(idx)
        e(f"{'s_memtime' if self.stamps == 'cy' else 's_memrealtime'} s[{r}:{r + 1}]")

    def dma_list(self, s):
        e = self.e
        slot = region(s)
        out = []
        tag = f'st{s}'

        def mk(m0s, m0c, va, rs, so, imm=0, pre=()):
            def f(part=3):
                if part & 1:
                    e(f's_add_u32 m0, s{m0s}, {m0c - imm}')
                    for p in pre:
                        e(p)
                if part & 2:
                    e(f'buffer_load_dwordx4 v{va}, {srd(rs)}, s{so} offen' + (f' offset:{imm}' if imm else '') + (FL[self.opt['fx']] if rs == S_X else '') + ' lds', tag)
            f.dma = True
            out.append(f)
        t = sT + 6

        def step(so, n):
            if s % 8 == 0:
                return ()
            if s % (8 // self.opt['rot']) and not self.opt['rx'] & 2:
                return [f's_add_u32 s{so}, s{so}, {n}']
            return [f's_cmp_eq_u32 s{sR}, {-s % 8}', f's_cselect_b32 s{t}, -7, 1', f's_mul_i32 s{t}, s{t}, {n}', f's_add_u32 s{so}, s{so}, s{t}']
        if s < 8:
            for i in range(4):
                mk(sMX, slot + i * 1024, vXD[i % 2], S_X, sXO if i < 2 else sXO2,
                   pre=step(sXO, 128) if i == 0 else ([f's_add_u32 s{sXO2}, s{sXO}, 16384'] if i == 1 else ()))
            for i in range(2):
                mk(sMW, slot + 16384 + i * 1024, vWD, S_WQ, sWO, imm=64 * i, pre=step(sWO, 64 * 3072) if i == 0 else ())
        else:
            mk(sMF, slot + QOFF, vWD, S_WQ, sQW, pre=step(sQW, 64 * 3072))
            for h in range(2):
                for i in range(3):
                    mk(sMG, slot + h * UPOFF + i * 1024, vFD, S_WF if h else S_WG, sFO, imm=64 * i,
                       pre=step(sFO, 64 * 2752) if h + i == 0 else ())
        return out

    def prologue(self):
        e = self.e
        self.stamp(0)
        e('s_cmp_ge_u32 s2, 256')
        e('s_cbranch_scc1 Lexit')
        e(f's_load_dwordx2 s[{S_X}:{S_X + 1}], s[0:1], 0')
        e(f's_load_dwordx2 s[{S_WQ}:{S_WQ + 1}], s[0:1], 8')
        e(f's_getpc_b64 s[{sT}:{sT + 1}]')
        e.label('Lpfbase')
        e(f's_lshr_b32 s{sT + 2}, s2, 3')
        e(f's_lshl_b32 s{sT + 2}, s{sT + 2}, 11')
        e(f'v_lshl_add_u32 v16, v0, 2, s{sT + 2}')
        e('v_min_u32 v16, Lcode_end-Lpfbase-4, v16')
        e('v_lshrrev_b32 v2, 6, v0')
        e('s_mov_b32 exec_lo, 1')
        e('s_mov_b32 exec_hi, 1')
        e(f'global_load_dword v{vK[1]}, v16, s[{sT}:{sT + 1}]', 'pf')
        e('s_mov_b64 exec, -1')
        e(f'v_readfirstlane_b32 s{sW}, v2')
        e('v_and_b32 v0, 63, v0')
        e(f's_xor_b32 s{sW}, s{sW}, 4')
        e(f's_and_b32 s{sTT}, s{sW}, 3')
        e(f's_lshr_b32 s{sG}, s{sW}, 2')
        e('s_cbranch_scc1 Lload')
        e('s_bitcmp1_b32 s2, 3')
        e('s_cbranch_scc1 Lcomp1')
        e('s_branch Lcomp0')

    def ids_tb(self):
        e = self.e
        R = self.opt['rot']
        e(f's_and_b32 s{sTB}, s2, 4')
        e(f's_lshl_b32 s{sTB}, s{sTB}, 1')
        e(f's_lshr_b32 s{sT + 6}, s2, 5')
        e(f's_add_u32 s{sTB}, s{sTB}, s{sT + 6}')
        RX = self.opt['rx']
        if RX & 1:
            e(f's_mul_i32 s{sR}, s2, {R // 4}')
            e(f's_add_u32 s{sR}, s{sR}, s{sTB}')
        e(f's_and_b32 s{sR}, s{sR if RX & 1 else sTB}, {R - 1}')
        e(f's_mul_i32 s{sR}, s{sR}, {8 // R}')
        if RX & 2:
            e(f's_lshr_b32 s{sT + 6}, s{sTB}, 3')
            e(f's_add_u32 s{sR}, s{sR}, s{sT + 6}')

    def more_args(self, g):
        e = self.e
        lst = [(S_WG, 32), (S_WF, 40)] if g else [(S_GW, 56)]
        for b, off in lst + [(S_DBG, 72), (S_WS, 80), (S_H, 80), (S_WD, 48), (S_WO, 16), (S_OUT, 64)]:
            e(f's_load_dwordx2 s[{b}:{b + 1}], s[0:1], {off}')
        e(f'v_lshlrev_b32 v{vL16}, 4, v0')

    def ids_j(self):
        e = self.e
        e(f's_and_b32 s{sJ}, s2, 3')
        e(f's_lshl_b32 s{sJ}, s{sJ}, 2')
        e(f's_bfe_u32 s{sT + 6}, s2, 0x20003')
        e(f's_add_u32 s{sJ}, s{sJ}, s{sT + 6}')

    def quad_rows(self, dst, stride, t):
        e = self.e
        e(f'v_lshrrev_b32 v{t}, 4, v0')
        e(f'v_and_b32 v{t}, 2, v{t}')
        e(f'v_xor_b32 v{t}, v{t}, v0')
        e(f'v_and_b32 v{t}, 3, v{t}')
        e(f'v_lshrrev_b32 v{dst}, 2, v0')
        e(f'v_mul_u32_u24 v{dst}, {stride}, v{dst}')
        e(f'v_lshl_add_u32 v{dst}, v{t}, 4, v{dst}')

    def tr_base(self, dst, gstride, t):
        e = self.e
        e(f'v_lshrrev_b32 v{dst}, 5, v0')
        e(f'v_mul_u32_u24 v{dst}, {gstride}, v{dst}')
        e(f'v_bfe_u32 v{t}, v0, 4, 1')
        e(f'v_mul_u32_u24 v{t}, {512 + 32}, v{t}')
        e(f'v_add_u32 v{dst}, v{dst}, v{t}')
        e(f'v_bfe_u32 v{t}, v0, 2, 2')
        e(f'v_lshl_add_u32 v{dst}, v{t}, 6, v{dst}')
        e(f'v_and_b32 v{t}, 3, v0')
        e(f'v_lshl_add_u32 v{dst}, v{t}, 3, v{dst}')

    def srd_consts(self, lst):
        for b, n in lst:
            self.e(f's_mov_b32 s{b + 2}, {n}')
            self.e(f's_mov_b32 s{b + 3}, 0x20000')

    def x_read_addrs(self):
        e = self.e
        e('v_and_b32 v16, 15, v0')
        e(f's_lshl_b32 s{sT + 6}, s{sTT}, 12')
        e('v_lshrrev_b32 v17, 4, v0')
        e('v_lshrrev_b32 v18, 1, v16')
        e('v_xor_b32 v18, v18, v17')
        e('v_lshlrev_b32 v18, 4, v18')
        e('v_lshl_add_u32 v18, v16, 7, v18')
        e(f'v_add_u32 v{vXR[0]}, s{sT + 6}, v18')
        e(f'v_xor_b32 v{vXR[1]}, 64, v{vXR[0]}')

    def setup2(self, g, ty):
        e = self.e
        t = sT
        self.srd_consts(([(S_DBG, 256), (S_WG, 512 * 2752), (S_WF, 512 * 2752)] if g else []) +
                        [(S_WS, WS_END), (S_H, HBLK), (S_WD, 1376 * 1024), (S_WO, 512 * 1024), (S_OUT, 2048 * 1024)])
        e(f's_lshl_b32 s{sUS}, s{sJ}, 4')
        e(f's_add_u32 s{sUS}, s{sUS}, 2')
        e(f's_mul_i32 s{sUS}, s{sUS}, 43691')
        e(f's_lshr_b32 s{sUS}, s{sUS}, 17')
        if g:
            e(f's_lshl_b32 s{t + 1}, s{sR}, 2')
            e(f's_add_u32 s{t + 1}, s{t + 1}, s{sTT}')
            e(f's_mul_i32 s{sFO}, s{t + 1}, {16 * 2752}')
            e(f's_lshr_b32 s{t}, s{sUS}, 1')
            e(f's_lshl_b32 s{t}, s{t}, 6')
            e(f's_add_u32 s{sFO}, s{sFO}, s{t}')
            e(f's_mul_i32 s{sQW}, s{t + 1}, {16 * 3072}')
            e(f's_lshl_b32 s{t}, s{sJ}, 6')
            e(f's_add_u32 s{sQW}, s{sQW}, s{t}')
            e(f's_mul_i32 s{sMG}, s{sTT}, 3072')
            e(f's_lshl_b32 s{sMF}, s{sTT}, 10')
            self.quad_rows(vFD, 2752, vP)
        first = 0 if g else 3
        self.tr_base(vP + 1, 3072, vP)
        for c in range(3):
            e(f's_and_b32 s{t}, s{sUS}, 1')
            e(f's_add_u32 s{t}, s{t}, {first + c}')
            e(f's_lshr_b32 s{t + 1}, s{t}, 1')
            e(f's_lshl_b32 s{t + 1}, s{t + 1}, 10')
            e(f's_and_b32 s{t}, s{t}, 1')
            e(f's_lshl_b32 s{t}, s{t}, 5')
            e(f'v_xor_b32 v{vFR[c]}, s{t}, v{vP + 1}')
            e(f'v_add_u32 v{vFR[c]}, s{t + 1}, v{vFR[c]}')
        e(f'v_lshrrev_b32 v{vP}, 5, v0')
        e(f'v_lshlrev_b32 v{vVA}, 11, v{vP}')
        e(f'v_sub_u32 v{vQR}, v{vP + 1}, v{vVA}')
        if g:
            e(f'v_xor_b32 v{vQR}, 32, v{vQR}')
        e(f's_and_b32 s{sRB}, s2, 7')
        e(f's_xor_b32 s{sRB}, s{sRB}, 4')
        e(f's_lshl_b32 s{sRB}, s{sRB}, 2')
        e(f's_lshr_b32 s{t}, s2, 6')
        e(f's_add_u32 s{sRB}, s{sRB}, s{t}')
        e(f's_mul_i32 s{t}, s{sRB}, {HBLK}')
        e(f's_add_u32 s{t}, s{t}, {WS_H}')
        e(f's_add_u32 s{S_H}, s{S_H}, s{t}\n    s_addc_u32 s{S_H + 1}, s{S_H + 1}, 0')
        e(f's_bfe_u32 s{sCB}, s2, 0x30003')
        e(f's_mov_b32 s{sVM}, 0xffff')
        e(f's_mov_b32 s{sVM + 1}, 0xffff')
        e(f's_mov_b32 s{sGC}, {fbits(GC1)}')
        e(f's_mov_b32 s{sGC + 1}, s{sGC}')
        e(f'v_and_b32 v{vVA}, 15, v0')
        e(f'v_lshl_add_u32 v{vVA}, v{vP}, 4, v{vVA}')
        e(f'v_lshlrev_b32 v{vVA}, 4, v{vVA}')
        e(f's_lshl_b32 s{t}, s{sTB}, 2')
        e(f's_add_u32 s{t}, s{t}, s{sTT}')
        e(f's_lshr_b32 s{sHO}, s{t}, 1')
        e(f's_mul_i32 s{sHO}, s{sHO}, 86')
        e(f's_add_u32 s{sHO}, s{sHO}, s{sUS}')
        e(f's_lshl_b32 s{sHO}, s{sHO}, 1')
        e(f's_and_b32 s{t + 1}, s{t}, 1')
        e(f's_add_u32 s{sHO}, s{sHO}, s{t + 1}')
        e(f's_lshl_b32 s{sHO}, s{sHO}, 10')
        e(f's_add_u32 s{sHO}, s{sHO}, {WS_H + 2048 * first}')
        e(f's_lshl_b32 s{sMO}, s{t}, 4')
        e(f's_add_u32 s{sMO}, s{sMO}, s{sJ}')
        e(f's_lshl_b32 s{sMO}, s{sMO}, 11')
        e(f's_add_u32 s{sMO}, s{sMO}, {g * 1024 + WS_O}')
        if g == 0:
            e(f's_lshr_b32 s{sE[0]}, s{sJ}, 1')
            e(f's_lshl_b32 s{sE[0]}, s{sE[0]}, 8')
            e(f's_add_u32 s{sE[0]}, s{sE[0]}, s{t}')
            e(f's_lshl_b32 s{sE[0]}, s{sE[0]}, 11')
            e(f's_add_u32 s{sE[0]}, s{sE[0]}, {WS_KV + 1024 * ty}')
            for i in range(1, 4):
                e(f's_add_u32 s{sE[i]}, s{sE[0]}, {262144 * (i >> 1) + 512 * (i & 1) if ty else 131072 * i}')
            if ty:
                e(f'v_bfe_u32 v{vWD}, v0, 4, 1')
                e(f'v_lshl_add_u32 v{vWD}, v{vWD}, 17, v{vVA}')
            else:
                e(f'v_mov_b32 v{vWD}, v{vL16}')
        e(f's_lshl_b32 s{sKVB}, s{sJ}, 3')
        e(f's_add_u32 s{sKVB}, s{sKVB}, s{sW}')
        e(f's_lshl_b32 s{sKVB}, s{sKVB}, 15')
        e(f's_add_u32 s{sKVB}, s{sKVB}, {WS_KV}')
        e(f's_and_b32 s{sKVI}, s{sTB}, 7')
        e(f's_lshl_b32 s{sKVI}, s{sKVI}, 12')
        e(f's_and_b32 s{sKV}, s{sJ}, 14')
        e(f's_lshl_b32 s{sKV}, s{sKV}, 2')
        e(f's_add_u32 s{sKV}, s{sKV}, s{sTT}')
        e(f's_lshl_b32 s{sKV}, s{sKV}, {2 + self.opt["fs"]}')
        e(f's_add_u32 s{sKV}, s{sKV}, {WS_F1}')
        for i in range(4):
            e(f's_add_u32 s{sQX[i]}, s{sTT}, {1 + i}')
            e(f's_and_b32 s{sQX[i]}, s{sQX[i]}, 3')
            e(f's_lshl_b32 s{sQX[i]}, s{sQX[i]}, 10')
            e(f's_add_u32 s{sQX[i]}, s{sQX[i]}, {L_QX + 4096 * g}')
        e(f's_mul_i32 s{sMD}, s{sW}, {RINGW}')
        e(f's_mul_i32 s{sDO}, s{sW}, {11 * 16384}')
        e(f's_lshl_b32 s{t}, s{sCB}, 7')
        e(f's_add_u32 s{sDO}, s{sDO}, s{t}')
        e(f'v_bfe_u32 v{vDR[0]}, v0, 2, 2')
        e(f'v_lshl_add_u32 v{vDR[0]}, v{vP}, 3, v{vDR[0]}')
        e(f'v_lshlrev_b32 v{vDR[0]}, 7, v{vDR[0]}')
        e(f'v_bfe_u32 v{vP}, v0, 4, 1')
        e(f'v_lshl_add_u32 v{vDR[0]}, v{vP}, 5, v{vDR[0]}')
        e(f'v_bfe_u32 v{vP}, v0, 3, 1')
        e(f'v_lshl_add_u32 v{vDR[0]}, v{vP}, 6, v{vDR[0]}')
        e(f'v_and_b32 v{vP}, 3, v0')
        e(f'v_lshl_add_u32 v{vDR[0]}, v{vP}, 3, v{vDR[0]}')
        e(f'v_add_u32 v{vDR[0]}, s{sMD}, v{vDR[0]}')
        e(f'v_xor_b32 v{vDR[1]}, 64, v{vDR[0]}')

    def phase_a_loader(self):
        e = self.e
        o = self.opt
        seq = []
        bound = []
        last = 7 + o['fah']
        for s in range(last + 1):
            bound.append(len(seq))
            seq += self.dma_list(s)
        bound.append(len(seq))
        pos = 0

        def issue(upto):
            nonlocal pos
            while pos < min(upto, len(seq)):
                seq[pos]()
                pos += 1
        self.ids_tb()
        e('v_lshrrev_b32 v16, 3, v0')
        e('v_lshrrev_b32 v17, 4, v0')
        e('v_and_b32 v18, 7, v0')
        e('v_xor_b32 v18, v18, v17')
        e('v_lshlrev_b32 v18, 4, v18')
        e(f'v_lshl_add_u32 v{vXD[0]}, v16, 10, v18')
        e(f'v_xor_b32 v{vXD[1]}, 64, v{vXD[0]}')
        e(f'v_add_u32 v{vXD[1]}, 8192, v{vXD[1]}')
        e(f's_lshl_b32 s{sXO}, s{sTB}, 2')
        e(f's_add_u32 s{sXO}, s{sXO}, s{sTT}')
        e(f's_lshl_b32 s{sXO}, s{sXO}, 8')
        e(f's_add_u32 s{sXO}, s{sXO}, s{sR}')
        e(f's_lshl_b32 s{sXO}, s{sXO}, 7')
        e(f's_lshl_b32 s{sMX}, s{sTT}, 12')
        self.srd_consts(((S_X, 2048 * 1024),))
        e('s_waitcnt lgkmcnt(0)')
        self.stamp(1)
        issue(4)
        self.ids_j()
        self.srd_consts(((S_WQ, 512 * 3072),))
        self.quad_rows(vWD, 3072, 16)
        e(f's_lshr_b32 s{sT}, s{sJ}, 1')
        e(f's_and_b32 s{sT + 1}, s{sJ}, 1')
        e(f's_lshl_b32 s{sT + 1}, s{sT + 1}, 3')
        e(f's_add_u32 s{sT}, s{sT}, s{sT + 1}')
        e(f's_lshl_b32 s{sT}, s{sT}, 7')
        e(f's_lshl_b32 s{sWO}, s{sR}, 2')
        e(f's_add_u32 s{sWO}, s{sWO}, s{sTT}')
        e(f's_mul_i32 s{sWO}, s{sWO}, {16 * 3072}')
        e(f's_add_u32 s{sWO}, s{sWO}, s{sT}')
        e(f's_addk_i32 s{sWO}, 1024')
        e(f's_lshl_b32 s{sMW}, s{sTT}, 11')
        issue(6)
        self.more_args(1)
        issue(12)
        self.x_read_addrs()
        e('s_waitcnt lgkmcnt(0)')
        fill = self.split(lambda: self.setup2(1, 0)) + self.split(self.v_const)
        for _ in range(min(len(fill), o['lpre'])):
            fill.pop(0)()
        D = o['ahead']
        issue(bound[1] + D)
        wx = Win(e, vXR)
        for s in range(8):
            slot = region(s)
            e.wait(vm=f'st{s}', lg='all')
            e('s_barrier')
            if s in (0, 4):
                self.stamp(2 + s // 4)
            end = max(pos, min(bound[s + 2] + (D if s < o['as2'] else o['ahead2']), bound[min(max(s + 4, 5), last + 1)]))
            issue(min(end, pos + o['lfirst']))
            wx.ensure(slot, slot + 2048)
            for ks in range(2):
                n = 2 * s + ks
                for tg in range(2):
                    e(f'ds_read_b128 {vr(X + 8 * n + 4 * tg, 4)}, v{vXR[ks]} offset:{wx.off(slot + 2048 * tg)}', f'r{n}')
            if s == 6:
                e(f'buffer_load_dwordx2 v[{vK[0]}:{vK[0] + 1}], off, {srd(S_DBG)}, 0 sc1', 'non')

            work = [fill.pop(0) for _ in range(min(len(fill), o['lfk']))]
            gaps = max(1, end - pos - o['llast'] + 1)
            done = 0
            for k in range(gaps):
                if k:
                    issue(pos + 1)
                upto = len(work) * (k + 1) // gaps if o['lsp2'] else (len(work) if k == gaps - 1 else 0)
                while done < upto:
                    work[done]()
                    done += 1
            issue(end)
        assert not fill
        self.left = seq[pos:]
        e.wait(vm='st8', lg='all')
        e('s_barrier')
        self.stamp(4)

    def pack8(self, src, dst):
        e = self.e
        for r in range(4):
            e(f'v_cvt_pk_bf16_f32 v{dst + r}, v{src + 2 * r}, v{src + 2 * r + 1}')
        for r in range(2):
            e(f'v_permlane16_swap_b32 v{dst + r}, v{dst + 2 + r}')

    def phase_a_compute(self, ty):
        e = self.e
        NC = 4
        self.more_args(0)
        if self.opt['tlb'] or self.opt['bt'] or self.opt['btm'] < 999:
            e(f's_load_dwordx4 s[{S_WG}:{S_WG + 3}], s[0:1], 32')
        self.ids_tb()
        self.ids_j()
        e(f's_memrealtime s[{sNON}:{sNON + 1}]')
        e('v_mov_b32 v16, 0')
        e(f'v_mov_b32 v17, {L_CNT}')
        e('ds_write2_b32 v17, v16, v16 offset0:0 offset1:1', 'z0')
        self.srd_consts(((S_DBG, 256), (S_GW, 1024)))
        ZA, GWB, vGA = ACF, ACF + 8, vXD[1]
        e(f's_lshl_b32 s{sT}, s{sR}, 7')
        e(f'v_add_u32 v{vP}, s{sT}, v{vL16}')
        e(f'v_and_b32 v{vP}, 1023, v{vP}')
        e(f'v_and_b32 v{vGA}, 48, v0')
        e(f's_mov_b32 m0, {L_GW}')
        self.x_read_addrs()
        self.tr_base(vWR[0], NC * 512, 16)
        e(f'v_xor_b32 v{vWR[1]}, 32, v{vWR[0]}')
        e('s_waitcnt lgkmcnt(0)')
        for p in e.paths:
            p.lg = []
        self.stamp(1)
        e(f'buffer_load_dwordx4 v{vP}, {srd(S_GW)}, 0 offen lds', 'gw')
        if self.opt['bt']:
            lab = e.newlabel('bt')
            e(f's_cmp_lg_u32 s{sTT}, 2')
            e(f's_cbranch_scc1 {lab}')
            snap = e.snapshot()
            for k, (b, n) in enumerate(((S_X, 64), (S_WQ, 48), (S_WG, 43), (S_WG + 2, 43), (S_WD, 43), (S_WO, 16))):
                if self.opt['bt'] >> k & 1:
                    e(f's_mul_i32 s{sT}, s2, {n * 128}')
                    e(f'v_lshl_add_u32 v16, v0, 7, s{sT}')
                    e(f's_bfm_b64 exec, {n}, 0' if n < 64 else 's_mov_b64 exec, -1')
                    e(f'global_load_dword v{vK[1] + 2}, v16, s[{b}:{b + 1}]', 'bt')
                    e('s_mov_b64 exec, -1')
            e.paths = e.paths + snap
            e.label(lab)
        if self.opt['tlb']:
            G = self.opt['tlb']
            lab = e.newlabel('tl')
            e(f's_cmp_lg_u32 s{sTT}, 3')
            e(f's_cbranch_scc1 {lab}')
            snap = e.snapshot()
            e(f'v_lshlrev_b32 v16, {G}, v0')
            e(f's_mov_b64 exec, {hex((1 << -(-(512 * 2752) >> G)) - 1)}')
            for k in range(2):
                e(f'global_load_dword v{vK[1] + 1}, v16, s[{S_WG + 2 * k}:{S_WG + 2 * k + 1}]', 'tlb')
            e('s_mov_b64 exec, -1')
            e.paths = e.paths + snap
            e.label(lab)
        if not ty:
            e(f's_or_b32 s{sT + 6}, s2, s{sW}')
            lab = e.newlabel('nn')
            e(f's_cbranch_scc1 {lab}')
            snap = e.snapshot()
            e(f's_or_b32 s{sNON + 1}, s{sNON + 1}, 0x80000000')
            e(f'v_mov_b32 v16, s{sNON}')
            e(f'v_mov_b32 v17, s{sNON + 1}')
            e('s_mov_b64 exec, 1')
            e(f'buffer_store_dwordx2 v[16:17], off, {srd(S_DBG)}, 0 sc1', 'nst')
            e('s_mov_b64 exec, -1')
            e.paths = e.paths + snap
            e.label(lab)
        fill = self.split(lambda: self.setup2(0, ty))
        for _ in range(min(len(fill), self.opt['cpre'])):
            fill.pop(0)()
        LA = 4
        wx = Win(e, vXR)
        ww = Win(e, vWR)
        M = 16 * NC
        GL = 2

        def gate(n, buf):
            for tg in range(2):
                z = vr(ZA + 4 * tg, 4)
                e(f'v_mfma_f32_16x16x32_bf16 {z}, {vr(buf, 4)}, {vr(X + 8 * n + 4 * tg, 4)}, {z if n else 0}')

        def reads(m, rd):
            n, ct = divmod(m, NC)
            s, ks = divmod(n, 2)
            slot = region(s)
            if m % (2 * NC) == 0 and rd == 0:
                e('s_barrier')
                if s in (0, 4):
                    self.stamp(2 + s // 4)
                wx.ensure(slot, slot + 2048)
                ww.ensure(slot + 16384, slot + 24576)
            if ct == 0:
                e(f'ds_read_b128 {vr(X + 8 * n + 4 * rd, 4)}, v{vXR[ks]} offset:{wx.off(slot + 2048 * rd)}', f'a{m}')
            if ct == 2 and rd == 0 and n >= GL:
                e.wait(vm='gw')
                e(f'ds_read_b128 {vr(GWB + 4 * (n % 2), 4)}, v{vGA} offset:{L_GW + 64 * (n - GL)}', f'a{m}')
            t = slot + 16384 + ks * NC * 1024 + (ct >> 1) * 1024 + rd * 256
            e(f'ds_read_b64_tr_b16 {vr(FR + 4 * (m % NFR) + 2 * rd, 2)}, v{vWR[ct & 1]} offset:{ww.off(t)}', f'a{m}')

        for m in range(LA):
            reads(m, 0)
            reads(m, 1)
        for m in range(M):
            n, ct = divmod(m, NC)
            e.wait(lg=f'a{m}')
            for tg in range(2):
                acc = vr(ACA + 16 * (ct >> 1) + 8 * tg + 4 * (ct & 1) if ty else ACA + 8 * ct + 4 * tg, 4)
                a, b = vr(FR + 4 * (m % NFR), 4), vr(X + 8 * n + 4 * tg, 4)
                if ty:
                    a, b = b, a
                e(f'v_mfma_f32_16x16x32_bf16 {acc}, {a}, {b}, {acc if n else 0}')
                if m + LA < M:
                    reads(m + LA, tg)
                if tg == 0:
                    for _ in range(2):
                        if fill:
                            fill.pop(0)()
            if m == self.opt['btm']:
                self.touch_ffn()
            if ct == 2 and n >= GL:
                gate(n - GL, GWB + 4 * (n % 2))
            if m == M - LA - 1:
                for k in range(GL):
                    e(f'ds_read_b128 {vr(GWB + 8 + 4 * k, 4)}, v{vGA} offset:{L_GW + 64 * (16 - GL + k)}', 'gl')
            if m == M * 7 // 8:
                e(f'buffer_load_dwordx2 v[{vK[0]}:{vK[0] + 1}], off, {srd(S_DBG)}, 0 sc1', 'non')
        assert not fill
        e.wait(lg='gl')
        for k in range(GL):
            gate(16 - GL + k, GWB + 8 + 4 * k)

    def touch_ffn(self):
        e = self.e
        lab = e.newlabel('tf')
        a, t = vK[1] + 1, sT + 4
        e(f's_cmp_lg_u32 s{sTT}, 2')
        e(f's_cbranch_scc1 {lab}')
        snap = e.snapshot()
        if self.opt['btx']:
            e(f's_lshr_b32 s{t}, s2, 2')
            e(f's_mul_i32 s{t}, s{t}, {8 * 2752}')
            e(f's_and_b32 s{t + 2}, s2, 3')
            e(f's_mul_i32 s{t + 2}, s{t + 2}, 683')
            e(f's_add_u32 s{t}, s{t}, s{t + 2}')
            e(f's_and_b32 s{t}, s{t}, -4')
            e(f'v_lshrrev_b32 v{a}, 3, v0')
            e(f'v_mul_u32_u24 v{a}, 2752, v{a}')
            e(f'v_and_b32 v{a + 1}, 7, v0')
            e(f'v_mul_u32_u24 v{a + 1}, 116, v{a + 1}')
            e(f'v_add3_u32 v{a}, v{a}, v{a + 1}, s{t}')
            e('s_mov_b32 exec_lo, 0x7f7f7f7f')
            e('s_mov_b32 exec_hi, 0x7f7f7f7f')
        else:
            e(f's_mul_i32 s{t}, s2, {43 * 128}')
            e(f'v_lshl_add_u32 v{a}, v0, 7, s{t}')
            e('s_bfm_b64 exec, 43, 0')
        for k in range(2):
            e(f'global_load_dword v{a + 1 + k}, v{a}, s[{S_WG + 2 * k}:{S_WG + 2 * k + 1}]', 'bt')
        e('s_mov_b64 exec, -1')
        e.paths = e.paths + snap
        e.label(lab)

    def z_write(self):
        e = self.e
        e(f'v_and_b32 v{vP}, 16, v0')
        e(f'v_cmp_eq_u32 vcc, 0, v{vP}')
        e(f's_lshl_b32 s{sT + 1}, s{sTT}, 8')
        e(f'v_lshl_add_u32 v{vP}, v0, 2, s{sT + 1}')
        e(f'v_cndmask_b32 v{vP + 1}, v{ACF + 4}, v{ACF}, vcc')
        e(f'ds_write_b32 v{vP}, v{vP + 1} offset:{L_Z}', 'zw')

    def kv_store(self, i):
        self.e(f'buffer_store_dwordx4 {vr(ACA + 4 * i, 4)}, v{vWD}, {srd(S_WS)}, s{sE[i]} offen sc1', 'qst')

    def spin(self, name, reload, check, sleep=2):
        e = self.e
        lr, lc = e.newlabel(name + 'r'), e.newlabel(name + 'c')
        check()
        e(f's_cbranch_vccnz {lr}')
        e.label(lc)

        def blk():
            e.paths = [p for p in Emitter().paths]
            e.label(lr)
            e(f's_mov_b32 s{sSPIN}, {SPIN}')
            ll = e.newlabel(name + 'l')
            e.label(ll)
            e(f's_sleep {sleep}')
            reload()
            e('s_waitcnt vmcnt(0)')
            check()
            e(f's_cbranch_vccz {lc}')
            e(f's_sub_u32 s{sSPIN}, s{sSPIN}, 1')
            e(f's_cbranch_scc0 {ll}')
            e(f's_branch {lc}')
        self.tail_blocks.append(blk)

    def flag_store(self, soff, tmp):
        e = self.e
        e(f'v_mov_b32 v{tmp}, s{sNON}')
        e(f'v_mov_b32 v{tmp + 1}, s{sNON + 1}')
        e('s_mov_b64 exec, 1')
        e(f'buffer_store_dwordx2 v[{tmp}:{tmp + 1}], off, {srd(S_WS)}, s{soff} sc1', 'flag')
        e('s_mov_b64 exec, -1')

    def kv_load(self, it):
        e = self.e
        b = it % 2

        def k():
            e(f'buffer_load_dwordx4 {vr(vK[b], 4)}, v{vKA}, {srd(S_WS)}, s{sKVI} offen' + FL[self.opt['fh']], f'k{it}')

        def v():
            e(f's_mov_b64 exec, s[{sVM}:{sVM + 1}]')
            e(f'buffer_load_dwordx4 {vr(vV[b], 4)}, v{vKA + 1}, {srd(S_WS)}, s{sKVI} offen offset:1024' + FL[self.opt['fh']], f'v{it}')
            e(f'buffer_load_dwordx4 {vr(vV[b] + 4, 4)}, v{vKA + 1}, {srd(S_WS)}, s{sKVI} offen offset:1536' + FL[self.opt['fh']], f'v{it}')
            e('s_mov_b64 exec, -1')
        return k, v

    def kv_adv(self, part=3):
        if part & 1:
            self.e(f's_addk_i32 s{sKVI}, 2048')
        if part & 2:
            self.e(f's_bitset0_b32 s{sKVI}, 15')

    def gelu(self, c, pk=True):
        e = self.e
        acc = ACF + 16 * c
        T = ACA + 16
        P = lambda b, i: vr(b + 2 * i, 2)
        if not pk:
            real = e

            def e(text):
                if not text.startswith('v_pk_'):
                    return real(text)
                op, rest = text.split(None, 1)
                for h in range(2):
                    ops = [f'{o[0]}{int(o[2:o.index(":")]) + h}' for o in rest.split(', ')]
                    real(op.replace('v_pk_', 'v_') + ' ' + ', '.join(ops))
        for i in range(4):
            e(f'v_pk_mul_f32 {P(T, i)}, {P(acc, i)}, {P(acc, i)}')
        for i in range(4):
            e(f'v_pk_fma_f32 {P(T, i)}, {P(T, i)}, s[{sGC}:{sGC + 1}], {vr(T + 8, 2)}')
        for i in range(4):
            e(f'v_pk_mul_f32 {P(T, i)}, {P(T, i)}, {P(acc, i)}')
        for i in range(8):
            e(f'v_exp_f32 v{T + i}, v{T + i}')
        for i in range(4):
            e(f'v_pk_mul_f32 {P(acc, i)}, {P(acc, i)}, {P(acc + 8, i)}')
        for i in range(4):
            ch = vr(T + 10 + 2 * (i // 2), 2)
            e(f'v_pk_fma_f32 {P(T, i)}, {P(T, i)}, {ch}, {ch}')
        for i in range(8):
            e(f'v_rcp_f32 v{T + i}, v{T + i}')
        for i in range(4):
            e(f'v_pk_mul_f32 {P(acc, i)}, {P(acc, i)}, {P(T, i)}')
        for i in (0, 2, 1, 3):
            e(f'v_cvt_pk_bf16_f32 v{acc + 8 + i}, v{acc + 2 * i}, v{acc + 2 * i + 1}')
        for r in range(2):
            e(f'v_permlane16_swap_b32 v{acc + 8 + r}, v{acc + 10 + r}')

    def h_store(self, c):
        e = self.e
        e(f's_add_u32 s{sT}, s{sHO}, {2048 * c}')
        e(f'buffer_store_dwordx4 {vr(ACF + 16 * c + 8, 4)}, v{vL16}, {srd(S_WS)}, s{sT} offen sc1', 'hst')

    def split(self, fn):
        real = self.e
        rec = []

        class Rec:
            def __call__(s, text, tag=None):
                rec.append(('i', text, tag))

            def wait(s, vm=None, lg=None):
                rec.append(('w', vm, lg))
        self.e = Rec()
        fn()
        self.e = real
        out, grp = [], []
        for r in rec:
            grp.append(r)
            masked = any(x[0] == 'i' and x[1].startswith('s_mov_b64 exec') for x in grp)
            if (masked and r[1] != 's_mov_b64 exec, -1') or r[0] == 'w':
                continue

            def f(grp=grp):
                for x in grp:
                    if x[0] == 'i':
                        real(x[1], x[2])
                    else:
                        real.wait(vm=x[1], lg=x[2])
            out.append(f)
            grp = []
        assert not grp
        return out

    def phase_f(self, g, NC):
        e = self.e
        o = self.opt
        order = []
        for s in range(8):
            for item in ([(0, -1), (1, -1)] if s == 7 else []):
                order.append((2 * s + item[0], -1))
            for ks in range(2):
                order += [(2 * s + ks, r) for r in range(0 if s == 7 else -1, 2 * NC)]
        PS = 4 * NC + 2
        M = 8 * PS
        sc = lambda m: m * PS // 12
        LA = 4
        wf = Win(e, vFR[:NC] + [vQR])
        fill = []
        at = {}
        cur = [0]

        def pin(m, f):
            at.setdefault(m, []).append(f)

        def sched(s, m0, span, extra=()):
            lst = list(extra) + (self.dma_list(s) if g and s <= 15 else [])
            for i, f in enumerate(lst):
                pin(m0 + i * span // len(lst), f)

        def enter(s):
            e.wait(vm=[f'st{s}'] + (['qst'] if s == o['qw'] else []), lg='zw' if s == 9 else None)
            e('s_barrier')
            sched(s + o['fah'], cur[0] + 1, sc(o['span']))
            if s == 9:
                fill.extend(self.split(self.gate_read))
                fill.append(self.nonce_get)
                fill.extend(self.split(self.attn_setup))
                fill.extend(self.split(self.gate_math))
            if s == o['vs'] and g == 0:
                fill.extend(self.split(self.v_const))
            if s == o['qw'] and g == 0:
                fill.insert(0, self.flag1)

        def reads(m, rd):
            s = 8 + m // PS
            if m % PS == 0 and m and rd == 0:
                enter(s)
            n, r = order[m]
            slot = region(s)
            wf.ensure(slot, slot + 28672)
            if r < 0:
                va, t = vQR, slot + QOFF + (n % 2) * 2048 + rd * 256
            else:
                va, t = vFR[r // 2], slot + (r % 2) * UPOFF + (n % 2) * 6144 + rd * 256
            e(f'ds_read_b64_tr_b16 {vr(FR + 4 * (m % NFR) + 2 * rd, 2)}, v{va} offset:{wf.off(t)}', f'f{m}')

        assert o['fah'] <= 3
        if g == 0:
            for i in range(o['qe'], 4):
                pin(sc(o['q0'] + o['qsp'] * (i - o['qe'])), lambda i=i: self.kv_store(i))
            assert sc(o['q0'] + o['qsp'] * (3 - o['qe'])) < (min(o['vs'], o['qw']) - 8) * PS - LA
        sched(8 + o['fah'], 0, PS - LA, self.left if g else ())
        for m in range(LA):
            reads(m, 0)
            reads(m, 1)
        if o['prio']:
            pin(sc(50), lambda: e('s_setprio 3'))
        for m in range(M):
            cur[0] = m
            n, r = order[m]
            e.wait(lg=f'f{m}')
            for tg in range(2):
                acc = vr((QA if r < 0 else ACF + 8 * r) + 4 * tg, 4)
                e(f'v_mfma_f32_16x16x32_bf16 {acc}, {vr(FR + 4 * (m % NFR), 4)}, {vr(X + 8 * n + 4 * tg, 4)}, {acc if n else 0}')
                if m + LA < M:
                    reads(m + LA, tg)
                nf = o['fk'] if m < 7 * PS + 4 else o['gk']
                if tg == 0:
                    lead = at.get(m, [None])[0]
                    if o['dsplit'] and getattr(lead, 'dma', False):
                        lead(1)
                        at[m][0] = lambda lead=lead: lead(2)
                    for _ in range(min(nf, 2) - (lead is not None)):
                        if fill:
                            fill.pop(0)()
            if m % PS == 0 and 2 * PS <= m:
                self.stamp(5 + m // PS, 1)
            if o['omf'] and m == sc(o['omf']):
                fill.extend(self.split(lambda: self.o_mark(X)))
            if m == sc(o['tch']) and g == 0:
                fill.append(self.touch)
            if m == sc(o['p1i']):
                fill.append(self.poll1_issue)
            if m == sc(o['p1c']):
                fill.append(self.poll1_check)
                for grp in self.attn_loads_early():
                    fill.append(grp)
                    fill.extend([lambda: None] * o['lsp'])
            if m == 5 * PS:
                assert not fill
                fill.extend(self.split(lambda: self.q_addrs(g)))
            if m == 7 * PS + 3:
                fill = self.split(self.q_pack) + fill
            for f in at.pop(m, []):
                f()
            for _ in range(nf - 2):
                if fill:
                    fill.pop(0)()
        assert not at
        for f in fill:
            f()
        e.wait(lg='all')
        e('s_barrier')
        self.stamp(5)
        for i in range(3):
            e(f'ds_read_b128 {vr(vQ[i], 4)}, v{vQ[i]}', f'q{i}')
        side = []
        if o['p1c'] >= 96:
            side = [self.poll1_check] + self.attn_loads_early()
        ge, ends = [], []
        for c in range(NC - 1, -1, -1):
            ge += self.split(lambda: self.gelu(c))
            ends.append((len(ge), c))
        for k, f in enumerate(ge):
            if side and k >= o['g0'] * (1 - g) and k % o['gsp'] == 0:
                side.pop(0)()
            f()
            if not side and ends[0][0] <= k + 1 and ends[0][1] >= o['hl']:
                self.h_store(ends.pop(0)[1])
        assert not side and len(ends) == o['hl']
        if o['ys'] and g == 0:
            assert o['hl'] == 0 and not o['omf']
            self.o_mark()
            self.sig2_a()
            self.sig2_b()
        if o['ys']:
            e('s_setprio 2')

    def q_addrs(self, g):
        e = self.e
        for i in range(3):
            e(f'v_add_u32 v{vQ[i]}, s{sQX[i]}, v{vL16}')
        e(f'v_add_u32 v{vQ[0] + 1}, s{sQX[3]}, v{vL16}')

    def q_pack(self):
        e = self.e
        for r in range(8):
            e(f'v_mul_f32 v{QA + r}, {fbits(QSCALE)}, v{QA + r}')
        self.pack8(QA, vQ[3])
        e(f'ds_write_b128 v{vQ[0] + 1}, {vr(vQ[3], 4)}', 'qw')

    def o_mark(self, d=vH[0]):
        e = self.e
        for i in range(4):
            e(f'v_mov_b32 v{d + i}, -1')
        e(f'buffer_store_dwordx4 {vr(d, 4)}, v{vL16}, {srd(S_WS)}, s{sMO} offen sc1', 'hst')

    def gate_read(self):
        e = self.e
        e(f's_lshl_b32 s{sT}, s{sTT}, 8')
        e(f'v_and_b32 v{vCH}, 15, v0')
        e(f'v_lshl_add_u32 v{vCH}, v{vCH}, 2, s{sT}')
        e(f'v_add_u32 v{vCH}, {L_Z}, v{vCH}')
        e(f'ds_read2_b32 {vr(vCH, 2)}, v{vCH} offset0:0 offset1:16', 'zr')

    def gate_math(self):
        e = self.e
        e.wait(lg='zr')
        for i in range(2):
            e(f'v_mul_f32 v{vCH + i}, {fbits(LOG2E)}, v{vCH + i}')
        for i in range(2):
            e(f'v_exp_f32 v{vCH + i}, v{vCH + i}')
        for i in range(2):
            e(f'v_add_f32 v{vCH + i}, 1.0, v{vCH + i}')
        e(f'v_mov_b32 v{ACA + 24}, {fbits(GC0)}')
        e(f'v_mov_b32 v{ACA + 25}, v{ACA + 24}')
        for i in range(4):
            e(f'v_min_f32 v{ACA + 26 + i}, {fbits(2.0 ** 100)}, v{vCH + i // 2}')
        e(f'v_add_u32 v{vKA}, s{sKVB}, v{vL16}')
        e(f'v_add_u32 v{vKA + 1}, s{sKVB}, v{vVA}')

    def nonce_get(self):
        e = self.e
        e.wait(vm='non')
        ld = lambda: e(f'buffer_load_dwordx2 v[{vK[0]}:{vK[0] + 1}], off, {srd(S_DBG)}, 0 sc1')
        ck = lambda: e(f'v_cmp_eq_u32 vcc, 0, v{vK[0] + 1}')
        self.spin('non', ld, ck)
        e(f'v_readfirstlane_b32 s{sNON}, v{vK[0]}')
        e(f'v_readfirstlane_b32 s{sNON + 1}, v{vK[0] + 1}')

    def flag1(self):
        e = self.e
        lab = e.newlabel('f1')
        e(f's_cmp_lg_u32 s{sW}, 0')
        e(f's_cbranch_scc1 {lab}')
        snap = e.snapshot()
        e(f's_lshl_b32 s{sT + 7}, s{sJ}, 4')
        e(f's_add_u32 s{sT + 7}, s{sT + 7}, s{sTB}')
        e(f's_lshl_b32 s{sT + 7}, s{sT + 7}, {self.opt["fs"]}')
        e(f's_add_u32 s{sT + 7}, s{sT + 7}, {WS_F1}')
        self.flag_store(sT + 7, vK[0])
        e.paths = e.paths + snap
        e.label(lab)

    def touch(self, X=X):
        e = self.e
        lab = e.newlabel('tc')
        e(f's_cmp_lg_u32 s{sW}, {self.opt["tcw"]}')
        e(f's_cbranch_scc1 {lab}')
        snap = e.snapshot()
        e(f'v_lshlrev_b32 v{X}, 7, v0')
        e(f's_mul_i32 s{sT}, s2, {43 * 128}')
        e(f's_lshl_b32 s{sT + 1}, s2, 11')
        e('s_bfm_b64 exec, 43, 0')
        e(f'buffer_load_dword v{X + 1}, v{X}, {srd(S_WD)}, s{sT} offen', 'touch')
        e('s_bfm_b64 exec, 16, 0')
        e(f'buffer_load_dword v{X + 2}, v{X}, {srd(S_WO)}, s{sT + 1} offen', 'touch')
        e('s_mov_b64 exec, -1')
        e.paths = e.paths + snap
        e.label(lab)

    def attn_setup(self):
        e = self.e
        e(f'v_and_b32 v{vPA}, 4, v0')
        e(f'v_mul_u32_u24 v{vPA}, 3, v{vPA}')
        e(f'v_add_u32 v{vPA}, v{vPA}, v0')
        e(f'v_lshl_add_u32 v{vPA}, v{vPA}, {self.opt["fs"]}, s{sKV}')
        e(f'v_lshrrev_b32 v{vDD[0]}, 3, v0')
        e(f'v_lshrrev_b32 v{vP}, 2, v0')
        e(f'v_and_b32 v{vP}, 4, v{vP}')
        e(f'v_xor_b32 v{vP}, v{vP}, v0')
        e(f'v_and_b32 v{vP}, 7, v{vP}')
        e(f'v_lshlrev_b32 v{vP}, 4, v{vP}')
        e(f'v_lshl_add_u32 v{vDD[0]}, v{vDD[0]}, 10, v{vP}')
        e(f'v_add_u32 v{vDD[1]}, {8192 - 1024}, v{vDD[0]}')
        e(f'v_add_u32 v{vRW[0]}, s{sMD}, v{vL16}')
        e(f'v_lshl_add_u32 v{vRW[1]}, v0, 2, s{sMD}')

    def v_const(self):
        e = self.e
        e(f'v_and_b32 v{vV[0] + 1}, 27, v0')
        e(f'v_cmp_eq_u32 vcc, 16, v{vV[0] + 1}')
        e(f'v_mov_b32 v{vV[0] + 1}, 0x3f803f80')
        e(f'v_cndmask_b32 v{vV[0]}, 0, v{vV[0] + 1}, vcc')
        for i in range(1, 16):
            e(f'v_mov_b32 v{vV[0] + i}, v{vV[0]}')

    def poll1_issue(self):
        e = self.e
        e('s_mov_b64 exec, 0xff')
        e(f'buffer_load_dwordx2 v[{vP}:{vP + 1}], v{vPA}, {srd(S_WS)}, 0 offen sc1', 'p1')
        e('s_mov_b64 exec, -1')

    def poll1_check(self):
        e = self.e
        e.wait(vm='p1')
        e('s_mov_b64 exec, 0xff')
        e(f'v_cmp_ne_u64 vcc, s[{sNON}:{sNON + 1}], v[{vP}:{vP + 1}]')
        e('s_mov_b64 exec, -1')

    def attn_load_groups(self):
        e = self.e
        k0, v0 = self.kv_load(0)
        k1, v1 = self.kv_load(1)

        return [k0, lambda: (v0(), self.kv_adv()), k1, lambda: (v1(), self.kv_adv())]

    def attn_loads_early(self):
        e = self.e
        out = []
        for n, f in enumerate(self.attn_load_groups()):
            def g(f=f, n=n):
                lab = e.newlabel('al')
                e(f's_cbranch_vccnz {lab}')
                if n == 0:
                    skip = e.snapshot()
                    for p in skip:
                        p.g = 'pend'
                else:
                    skip = [p for p in e.paths if p.g == 'pend']
                    e.paths = [p for p in e.paths if p.g != 'pend']
                f()
                e.paths = e.paths + skip
                e.label(lab)
            out.append(g)
        return out

    def attn_loads_late(self):
        e = self.e
        e('s_cbranch_vccnz Llate')
        e.label('Llate_done')
        e.paths = [p for p in e.paths if p.g != 'pend']

        def blk():
            e.paths = [p for p in Emitter().paths]
            e.label('Llate')
            e('s_mov_b64 exec, 0xff')
            ld = lambda: e(f'buffer_load_dwordx2 v[{vP}:{vP + 1}], v{vPA}, {srd(S_WS)}, 0 offen sc1')
            ck = lambda: e(f'v_cmp_ne_u64 vcc, s[{sNON}:{sNON + 1}], v[{vP}:{vP + 1}]')
            ld()
            e('s_waitcnt vmcnt(0)')
            self.spin('p1', ld, ck, self.opt['sl1'])
            e('s_mov_b64 exec, -1')
            for f in self.attn_load_groups():
                f()
            e('s_waitcnt vmcnt(0)')
            e('s_branch Llate_done')
        self.tail_blocks.append(blk)

    def sig2_a(self):
        e = self.e
        e.wait(vm='hst')
        e(f'v_mov_b32 v{vP}, {L_CNT}')
        e(f'v_mov_b32 v{vP + 1}, 1')
        e('s_mov_b64 exec, 1')
        e(f'ds_add_rtn_u32 v{vP}, v{vP}, v{vP + 1}', 'cnt2')
        e('s_mov_b64 exec, -1')

    def sig2_b(self):
        e = self.e
        e.wait(lg='cnt2')
        e(f'v_readfirstlane_b32 s{sT}, v{vP}')
        lab = e.newlabel('f2')
        e(f's_cmp_lg_u32 s{sT}, 7')
        e(f's_cbranch_scc1 {lab}')
        snap = e.snapshot()
        e(f's_lshl_b32 s{sT}, s{sTB}, 4')
        e(f's_add_u32 s{sT}, s{sT}, s{sJ}')
        e(f's_lshl_b32 s{sT}, s{sT}, {self.opt["fs"]}')
        e(f's_add_u32 s{sT}, s{sT}, {WS_F2}')
        self.flag_store(sT, vP)
        e.paths = e.paths + snap
        e.label(lab)

    def attention(self):
        e = self.e
        G0 = self.opt['g2start']
        NT = 64

        def qk(t):
            it, sl = divmod(t, 4)
            if sl == 0:
                e.wait(vm=f'k{it}')
            if it == 0:
                e.wait(lg=f'q{sl}')
            e(f'v_mfma_f32_32x32x16_bf16 {vr(vS[t % 2], 16)}, {vr(vK[it % 2], 4)}, {vr(vQ[sl], 4)}, 0')

        def pv(t, hi):
            it, sl = divmod(t, 4)
            if sl == 0 and not hi:
                e.wait(vm=f'v{it}')
            e(f'v_smfmac_f32_32x32x32_bf16 {vr(vO[sl], 16)}, {vr(vV[it % 2] + 4 * hi, 4)}, {vr(vS[t % 2] + 8 * hi, 8)}, v{vIDX}')

        def ex(t, a, b):
            for i in range(a, b):
                e(f'v_exp_f32 v{vS[t % 2] + i}, v{vS[t % 2] + i}')

        def stage_dma(rs, so, i, tag):
            return lambda: e(f'buffer_load_dwordx4 v{vDD[i]}, {srd(rs)}, s{so} offen' + (' offset:1024' if i else '') + FL[self.opt['fw']] + ' lds', tag)

        def wo_first():
            e(f's_lshl_b32 s{sWO}, s{sW}, 16')
            e(f's_lshl_b32 s{sT}, s{sCB}, 7')
            e(f's_add_u32 s{sWO}, s{sWO}, s{sT}')
            e(f's_lshl_b32 s{sMW}, s{sW}, 13')

        def h_load(step, i):
            return lambda: e(f'buffer_load_dwordx4 {vr(vH[step % 2] + 4 * i, 4)}, v{vHA[i]}, {srd(S_H)}, s{sHO} offen' + FL[self.opt['fh']], f'h{step}')

        def wd_read(step, jj):
            def f():
                e.wait(vm=f'd{step}')
                for rd in range(2):
                    e(f'ds_read_b64_tr_b16 {vr(vD + 4 * jj + 2 * rd, 2)}, v{vDR[jj]} offset:{L_RING + 2048 * (step % 3) + 512 * rd}', f'dr{step}_{jj}')
            return f

        def g2(step, sl):
            jj, i = divmod(sl, 2)
            e.wait(vm=f'h{step}', lg=f'dr{step}_{jj}')
            acc = vr(vG[i * 2 + jj], 16)
            e(f'v_mfma_f32_32x32x16_bf16 {acc}, {vr(vD + 4 * jj, 4)}, {vr(vH[step % 2] + 4 * i, 4)}, {acc if step else 0}')

        def only_g1(fn):
            def f():
                if not self.opt['ys']:
                    return fn()
                lab = e.newlabel('g1')
                e(f's_cmp_eq_u32 s{sG}, 0')
                e(f's_cbranch_scc1 {lab}')
                snap = e.snapshot()
                fn()
                for p in snap:
                    p.vm = [t if t != 'hst' else None for t in p.vm]
                e.paths = e.paths + snap
                e.label(lab)
            return f

        def h_addrs():
            e(f's_and_b32 s{sT}, s{sW}, 1')
            e(f's_lshl_b32 s{sT}, s{sT}, 10')
            e(f'v_add_u32 v{vHA[0]}, s{sT}, v{vL16}')
            e(f'v_xor_b32 v{vHA[1]}, 1024, v{vHA[0]}')
            e(f's_mul_i32 s{sHO}, s{sW}, {11 * 2048}')

        def poll2_issue():
            e(f's_lshr_b32 s{sT + 1}, s{sRB}, 1')
            e(f's_lshl_b32 s{sT + 1}, s{sT + 1}, {4 + self.opt["fs"]}')
            e(f's_add_u32 s{sT + 1}, s{sT + 1}, {WS_F2}')
            e(f'v_lshl_add_u32 v{vPA}, v0, {self.opt["fs"]}, s{sT + 1}')
            e('s_mov_b64 exec, 0xffff')
            e(f'buffer_load_dwordx2 v[{vP}:{vP + 1}], v{vPA}, {srd(S_WS)}, 0 offen sc1', 'p2')
            e('s_mov_b64 exec, -1')

        def poll2_check():
            e.wait(vm='p2')
            e('s_mov_b64 exec, 0xffff')
            ld = lambda: e(f'buffer_load_dwordx2 v[{vP}:{vP + 1}], v{vPA}, {srd(S_WS)}, 0 offen sc1')
            ck = lambda: e(f'v_cmp_ne_u64 vcc, s[{sNON}:{sNON + 1}], v[{vP}:{vP + 1}]')
            self.spin('p2', ld, ck, self.opt['sl2'])
            e('s_mov_b64 exec, -1')

        def co_read():
            e(f's_lshl_b32 s{sT}, s{sTT}, 8')
            e(f'v_lshl_add_u32 v{vCO}, v0, 2, s{sT}')
            e(f'ds_read_b32 v{vCO}, v{vCO} offset:{L_Z}', 'zr2')

        def co_math():
            e.wait(lg='zr2')
            e(f'v_mul_f32 v{vCO}, {fbits(-LOG2E)}, v{vCO}')
            e(f'v_exp_f32 v{vCO}, v{vCO}')

        def ored_addr(i):
            def f():
                e(f's_sub_u32 s{sT}, s{sTT}, {1 + i}')
                e(f's_and_b32 s{sT}, s{sT}, 3')
                e(f's_lshl_b32 s{sT + 1}, s{sG}, 2')
                e(f's_add_u32 s{sT}, s{sT}, s{sT + 1}')
                e(f's_mul_i32 s{sT}, s{sT}, {RINGW}')
                e(f'v_add_u32 v{vRR + i}, s{sT}, v{vL16}')
                e(f'v_lshl_add_u32 v{vRR + 3 + i}, v0, 2, s{sT}')
            return f

        def o_addr():
            e(f's_lshl_b32 s{sO[0]}, s{sRB}, 1')
            e(f's_and_b32 s{sT}, s{sW}, 1')
            e(f's_add_u32 s{sO[0]}, s{sO[0]}, s{sT}')
            e(f's_lshl_b32 s{sO[0]}, s{sO[0]}, 2')

        def o_addr2():
            e(f's_lshr_b32 s{sT}, s{sW}, 1')
            e(f's_add_u32 s{sO[0]}, s{sO[0]}, s{sT}')
            e(f's_lshl_b32 s{sO[0]}, s{sO[0]}, 13')
            e(f's_add_u32 s{sO[0]}, s{sO[0]}, {WS_O}')
            e(f's_add_u32 s{sO[1]}, s{sO[0]}, 4096')

        def ored_write(sl, part):
            o = L_RING + 2304 * sl
            if part < 2:
                return lambda: e(f'ds_write_b128 v{vRW[0]}, {vr(vO[sl] + 4 * part, 4)} offset:{o + 1024 * part}', 'orw')
            return lambda: e(f'ds_write_b32 v{vRW[1]}, v{vO[sl] + 8} offset:{o + 2048}', 'orw')

        side = {}
        add = lambda t, p, f: side.setdefault((t, p), []).append(f)
        I = lambda text: (lambda: e(text))
        for it in range(16):
            t = 4 * it
            st = it - G0
            add(t, 1, lambda it=it, st=st: e.wait(vm=[f'v{it}', f'h{st}'], lg=f'dr{st}_0'))
            add(t + 2, 2, lambda it=it, st=st: e.wait(vm=[f'k{it + 1}', f'd{st + 1}'], lg=f'dr{st}_1'))
            if 1 <= it < 15:
                add(t, 0, self.kv_load(it + 1)[1])
                add(t, 2, self.kv_adv)
            if it < 14:
                add(t + 2, 1, self.kv_load(it + 2)[0])
        for step in range(11):
            t = 4 * (G0 + step)
            add(t - 7, 2, I(f's_add_u32 m0, s{sMD}, {L_RING + 2048 * (step % 3)}'))
            add(t - 7, 4, stage_dma(S_WD, sDO, 0, f'd{step}'))
            add(t - 6, 0, stage_dma(S_WD, sDO, 1, f'd{step}'))
            add(t - 6, 0, I(f's_addk_i32 s{sDO}, 16384'))
            add(t - 4, 4, h_load(step, 0))
            add(t - 3, 1, h_load(step, 1))
            add(t - 3, 2, I(f's_addk_i32 s{sHO}, 2048'))
            add(t - 1, 0, wd_read(step, 0))
            add(t + 1, 0, wd_read(step, 1))
        t = 4 * self.opt['woi'] + 3
        add(t - 1, 4, wo_first)
        for k in range(4):
            add(t + 4 * k, 1, I(f's_add_u32 m0, s{sMW}, {L_WO + 2048 * k}'))
            add(t + 4 * k, 2, stage_dma(S_WO, sWO, 0, 'wo'))
            add(t + 4 * k, 2, stage_dma(S_WO, sWO, 1, 'wo'))
            add(t + 4 * k, 4, I(f's_addk_i32 s{sWO}, 16384'))
        if not self.opt['omf']:
            add(self.opt['om'], 2, only_g1(self.o_mark))
        for c in range(self.opt['hl']):
            add(c * self.opt['hsp'], 2, lambda c=c: self.h_store(c))
        for i in range(3):
            add(22 + 4 * i, 2, ored_addr(i))
        add(34, 2, o_addr)
        add(38, 2, o_addr2)
        if self.opt['tca'] < 16:
            add(self.opt['tca'], 2, lambda: self.touch(vRR))
        add(2, 2, co_read)
        add(3, 2, co_math)
        add(self.opt['s2t'], 2, only_g1(self.sig2_a))
        add(self.opt['s2t'] + 1, 2, only_g1(self.sig2_b))
        add(self.opt['s2t'] + 2, 2, h_addrs)
        add(4 * (G0 - 2) + 2, 2, poll2_issue)
        add(4 * (G0 - 1), 2, poll2_check)
        for sl in range(3):
            add(61 + sl, 4, ored_write(sl, 0))
            add(*((62 + sl, 0) if sl < 2 else (63, 3)), ored_write(sl, 1))
            add(*((62 + sl, 0) if sl < 2 else (63, 3)), ored_write(sl, 2))
        if self.opt['prio']:
            add(self.opt['pa'], 2, lambda: e('s_setprio 2'))
            add(self.opt['pb'], 2, lambda: e('s_setprio 1'))
            add(self.opt['pc'], 2, lambda: e('s_setprio 0'))

        def run(t, p):
            for f in side.get((t, p), []):
                f()

        def zero(sl):
            e(f'v_mfma_f32_32x32x16_bf16 {vr(vO[sl], 16)}, {vr(vD, 4)}, {vr(vD, 4)}, 0')

        e(f'v_mov_b32 v{vIDX}, 0xdddddddd')
        for i in range(4):
            e(f'v_mov_b32 v{vD + i}, 0')
        qk(0)
        self.stamp(9, 3)
        if self.opt['zm']:
            zero(0)
        for t in range(NT):
            it, sl = divmod(t, 4)
            ex(t, 0, 2)
            if t > 0:
                pv(t - 1, 1)
            run(t, 0)
            ex(t, 2, 5)
            if t + 1 < NT:
                qk(t + 1)
            run(t, 1)
            ex(t, 5, 10)
            pv(t, 0)
            run(t, 2)
            ex(t, 10, 13)
            if G0 <= it < G0 + 11:
                g2(it - G0, sl)
            if t < 3 and self.opt['zm']:
                zero(t + 1)
            run(t, 4)
            ex(t, 13, 16)
            run(t, 3)
            if t in (7, 31):
                self.stamp(7 if t == 7 else 8)
            if t in (3, 5, 7):
                self.stamp(10 + (t - 3) // 2, 3)
        pv(NT - 1, 1)
        run(NT, 0)

    def tail(self):
        e = self.e
        own = vO[3]
        R = vO[0]
        WO = vO[0]
        OFR = [vH[0], vH[1], ACA + 16, ACA + 24]
        PRE = X + 64
        vFW, vPW, vOA = FR, FR + 4, FR + 9
        vFRd, vPR = vK[1], vRR
        HEADS = (1, 3, 5, 7, 0, 2, 4, 6)
        P2 = lambda b, i: vr(b + 2 * i, 2)

        def o_reduce(g):
            for i in range(3):
                e(f'ds_read_b32 v{R + 24 + i}, v{vRR + 3 + i} offset:{L_RING + 2304 * i + 2048}', f'or{i}')
            for i in range(3):
                o = L_RING + 2304 * i
                e(f'ds_read_b128 {vr(R + 8 * i, 4)}, v{vRR + i} offset:{o}', f'oa{i}')
                e(f'ds_read_b128 {vr(R + 8 * i + 4, 4)}, v{vRR + i} offset:{o + 1024}', f'oa{i}')
            if g == 0:
                for kk in range(2):
                    old(kk, f'o{kk}')
            e.wait(lg='or2')
            e(f'v_add_f32 v{R + 24}, v{R + 24}, v{R + 25}')
            e(f'v_add_f32 v{own + 8}, v{own + 8}, v{R + 26}')
            e(f'v_add_f32 v{own + 8}, v{own + 8}, v{R + 24}')
            e(f'v_subrev_u32 v{R + 24}, {(127 - 60) << 23}, v{own + 8}')
            e(f'v_cmp_lt_u32 vcc, {120 << 23}, v{R + 24}')
            e(f'v_fma_f32 v{R + 28}, v{own + 8}, v{vCO}, v{own + 8}')
            e(f'v_rcp_f32 v{R + 28}, v{R + 28}')
            for i in range(3):
                e.wait(lg=f'oa{i}')
                for r in range(4):
                    if g:
                        for h in range(2):
                            e(f'v_add_f32 v{own + 2 * r + h}, v{own + 2 * r + h}, v{R + 8 * i + 2 * r + h}')
                    else:
                        e(f'v_pk_add_f32 {P2(own, r)}, {P2(own, r)}, {P2(R + 8 * i, r)}')
            e('s_cbranch_vccnz Lsafe')
            e.label(f'Lsafe_done{g}')
            for r in range(8):
                e(f'v_mul_f32 v{own + r}, v{own + r}, v{R + 28}')
            for r in range(4):
                e(f'v_cvt_pk_bf16_f32 v{vK[0] + r}, v{own + 2 * r}, v{own + 2 * r + 1}')
            for r in range(4):
                e(f'v_min_u32 v{vK[0] + r}, -2, v{vK[0] + r}')
            e(f'buffer_store_dwordx4 {vr(vK[0], 4)}, v{vL16}, {srd(S_WS)}, s{sMO} offen sc1', 'ost')
            self.stamp(10)
            e(f's_lshr_b32 s{sT + 1}, s{sW}, 1')
            e(f's_lshl_b32 s{sT + 2}, s{sT + 1}, 14')
            e(f's_mul_i32 s{sT + 3}, s{sW}, {RINGW}')
            e(f's_sub_u32 s{sT + 2}, s{sT + 2}, s{sT + 3}')
            e(f's_add_u32 s{sT + 2}, s{sT + 2}, {L_WO}')
            e(f'v_and_b32 v{vP + 1}, 32, v0')
            e(f'v_lshlrev_b32 v{vP + 1}, 4, v{vP + 1}')
            e(f'v_sub_u32 v{vP + 1}, s{sT + 2}, v{vP + 1}')
            for jj in range(2):
                e(f'v_add_u32 v{vDR[jj]}, v{vP + 1}, v{vDR[jj]}')

        def old(kk, tag=None):
            for n in (2 * kk, 2 * kk + 1):
                e(f'buffer_load_dwordx4 {vr(OFR[kk] + 4 * (n & 1), 4)}, v{vL16}, {srd(S_WS)}, s{sO[HEADS[n] >> 2]} offen offset:{1024 * (HEADS[n] & 3)} sc1', tag)

        def wo_reads(n):
            for jj in range(2):
                for rd in range(2):
                    e(f'ds_read_b64_tr_b16 {vr(WO + 8 * n + 4 * jj + 2 * rd, 2)}, v{vDR[jj]} offset:{2048 * HEADS[n] + 1024 * rd}', f'wor{n}')

        def addrs(g, part=3):
            t0, t1 = vK[1] + 2, vK[1] + 3
            if part & 1:
                e(f'v_and_b32 v{vPW}, 31, v0')
                e(f'v_lshrrev_b32 v{t0}, 5, v0')
                e(f'v_and_b32 v{t1}, 7, v0')
                e(f'v_xor_b32 v{t0}, v{t0}, v{t1}')
                e(f'v_lshlrev_b32 v{t0}, 4, v{t0}')
                e(f'v_lshl_add_u32 v{vPW}, v{vPW}, 8, v{t0}')
                e(f's_lshl_b32 s{sT}, s{sTT}, 13')
                e(f's_add_u32 s{sT}, s{sT}, {98304 * g}')
                e(f'v_add_u32 v{vPW}, s{sT}, v{vPW}')
                for q in range(1, 4):
                    e(f'v_xor_b32 v{vPW + q}, {32 * q}, v{vPW}')
            if not part & 2:
                return
            e(f'v_lshrrev_b32 v{t0}, 3, v0')
            e(f'v_lshlrev_b32 v{vOA}, 4, v{t1}')
            e(f'v_lshl_add_u32 v{vOA}, v{t0}, 10, v{vOA}')
            e(f'v_lshlrev_b32 v{t1}, 1, v{t1}')
            e(f'v_xor_b32 v{t1}, v{t1}, v{t0}')
            e(f'v_lshlrev_b32 v{t1}, 4, v{t1}')
            e(f'v_lshl_add_u32 v{t1}, v{t0}, 8, v{t1}')
            e(f's_and_b32 s{sT + 2}, s{sW}, 1')
            e(f's_lshl_b32 s{sT + 2}, s{sT + 2}, 2')
            e(f's_add_u32 s{sT + 2}, s{sT + 2}, s{sT + 1}')
            e(f's_lshl_b32 s{sT + 3}, s{sT + 2}, 11')
            e(f'v_add_u32 v{vFRd}, s{sT + 3}, v{t1}')
            e(f'v_xor_b32 v{vFRd + 1}, 16, v{vFRd}')
            for h in range(2):
                e(f'v_xor_b32 v{vPR + h}, {8192 + L_PRE1}, v{vFRd + h}')
            for p in range(2):
                for h in range(2):
                    e(f'ds_read_b128 {vr(PRE + 8 * p + 4 * h, 4)}, v{vPR + h} offset:{16384 * p}', 'pr')
            for h in range(2):
                e(f'v_xor_b32 v{vPR + 2 + h}, 8192, v{vFRd + h}')
                e(f'v_add_u32 v{vPR + 4 + h}, 98304, v{vFRd + h}')
            e(f's_lshl_b32 s{sT}, s{sRB}, 3')
            e(f's_add_u32 s{sT}, s{sT}, s{sT + 2}')
            e(f's_lshl_b32 s{sT}, s{sT}, 13')
            e(f's_lshl_b32 s{sT + 1}, s{sCB}, 7')
            e(f's_add_u32 s{sT}, s{sT}, s{sT + 1}')

        def slab_write(g, i, n):
            jj, q = divmod(n, 4)
            e(f'ds_write_b128 v{vPW + q}, {vr(vG[2 * i + jj] + 4 * q, 4)} offset:{32768 * (i ^ g ^ 1) + 128 * jj}', 'sw')

        def mf(jj, n):
            acc = vr(vG[jj], 16)
            e(f'v_mfma_f32_32x32x16_bf16 {acc}, {vr(WO + 8 * n + 4 * jj, 4)}, {vr(OFR[n >> 1] + 4 * (n & 1), 4)}, {acc}')

        def mm(kk, between=None, jjs=(0, 1)):
            e.wait(vm=f'o{kk}')

            def ck():
                b = OFR[kk]
                e(f'v_max3_u32 v{vP}, v{b}, v{b + 1}, v{b + 2}')
                e(f'v_max3_u32 v{vP + 1}, v{b + 3}, v{b + 4}, v{b + 5}')
                e(f'v_max3_u32 v{vP}, v{vP}, v{b + 6}, v{b + 7}')
                e(f'v_max_u32 v{vP}, v{vP}, v{vP + 1}')
                e(f'v_cmp_eq_u32 vcc, -1, v{vP}')
            self.spin(f'o{kk}', lambda: [old(q) for q in range(kk, (kk | 1) + 1)], ck, self.opt['sl3'])
            for i, (jj, n) in enumerate(((0, 2 * kk), (0, 2 * kk + 1), (1, 2 * kk), (1, 2 * kk + 1))):
                if jj in jjs:
                    mf(jj, n)
                if between:
                    between(i)

        self.stamp(9)
        e(f's_cmp_lg_u32 s{sG}, 0')
        e('s_setprio 3')
        e.wait(vm='wo', lg='all')
        e('s_cbranch_scc1 Ltail1')
        snap = e.snapshot()
        self.tail_blocks.append(self.safe_softmax)

        def first_group():
            e.restore(snap)
            e.label('Ltail1')
            e(f'v_mov_b32 v{vPA}, {L_CNT}')
            e(f'v_mov_b32 v{vP}, 1')
            e('s_mov_b64 exec, 1')
            e(f'ds_add_u32 v{vPA}, v{vP} offset:4')
            e('s_mov_b64 exec, -1')

            def ld():
                e(f'ds_read_b64 {vr(vP, 2)}, v{vPA}')
                e('s_waitcnt lgkmcnt(0)')

            def ck():
                e(f'v_add_u32 v{vP}, v{vP}, v{vP + 1}')
                e(f'v_cmp_ne_u32 vcc, 12, v{vP}')
            ld()
            for p in e.paths:
                p.lg = []
            self.spin('g1', ld, ck, 1)
            o_reduce(1)
            addrs(1, 1)
            e('s_setprio 0')
            for n in range(8):
                wo_reads(n)
                slab_write(1, 1, n)
            e.wait(lg='all')
            e('s_barrier')
            for kk in range(4 if self.opt['ol'] == 0 else 2):
                old(kk, f'o{kk}')
            addrs(1, 2)
            e('s_barrier')
            self.stamp(11)
            finish(1, self.opt['ol'])
            e('s_branch Ltail2')
        self.tail_blocks.insert(0, first_group)

        def finish(g, late, k0=0):
            def pre_add(i):
                e.wait(lg='pr')
                for r in range(2 * i, 2 * i + 2):
                    e(f'v_add_f32 v{PRE + r}, v{PRE + r}, v{PRE + 8 + r}')
            for kk in range(k0, 4):
                if late == kk + 1:
                    for q in range(2, 4):
                        old(q, f'o{q}')
                e.wait(lg=f'wor{2 * kk + 1}')
                mm(kk, pre_add if kk == 3 else None)
            self.stamp(12)
            for n in range(8):
                slab_write(g, 0, n)
            e.wait(lg='all')

        e('s_barrier')
        o_reduce(0)
        YL = self.opt['yl']
        lateld = lambda: [old(q, f'o{q}') for q in range(2, 4)]
        if YL == 0:
            lateld()
        for n in range(4):
            wo_reads(n)
        addrs(0, 1)
        e('s_barrier')
        for kk in range(2):
            if YL == kk + 1:
                lateld()
            e.wait(lg=f'wor{2 * kk + 1}')

            def lds_work(i, kk=kk):
                slab_write(0, 1, 4 * kk + i)
                if i % 2:
                    wo_reads(4 + 2 * kk + i // 2)
            mm(kk, lds_work)
        if YL == 3:
            lateld()
        addrs(0, 2)
        self.stamp(11)
        finish(0, 0, 2)
        e.label('Ltail2')
        e('s_barrier')
        B = X
        src = [(vPR + 2, 0), (vPR + 2, 16384), (vPR + 4, 0), (vPR + 4, 16384), (vFRd, 32768), (vFRd, 49152)]
        for p, (va, off) in enumerate(src):
            for h in range(2):
                e(f'ds_read_b128 {vr(B + 8 * p + 4 * h, 4)}, v{va + h} offset:{off}', f'fr{p}')
        for p in range(6):
            e.wait(lg=f'fr{p}')
            for r in range(4):
                e(f'v_pk_add_f32 {P2(PRE, r)}, {P2(PRE, r)}, {P2(B + 8 * p, r)}')
        for r in range(4):
            e(f'v_cvt_pk_bf16_f32 v{B + r}, v{PRE + 2 * r}, v{PRE + 2 * r + 1}')
        e(f'buffer_store_dwordx4 {vr(B, 4)}, v{vOA}, {srd(S_OUT)}, s{sT} offen sc1')
        if 'probe' in self.opt:
            e.wait(vm='all')
            self.stamp(13)
            e.label('Lprobe')
            e('s_sleep 1')
            e(f's_memrealtime s[{sSTMP}:{sSTMP + 1}]')
            e('s_waitcnt lgkmcnt(0)')
            e(f's_sub_u32 s{sSTMP}, s{sSTMP}, s{sNON if self.opt["probe"] == 99 else sSTAMP}')
            e(f's_cmp_lt_u32 s{sSTMP}, 6000')
            e('s_cbranch_scc1 Lprobe')
        if self.stamps:
            e.wait(vm='all')
            self.stamp(13)
            e(f's_lshl_b32 s{sT}, s2, 3')
            e(f's_add_u32 s{sT}, s{sT}, s{sW}')
            e(f's_lshl_b32 s{sT}, s{sT}, 6')
            e(f's_add_u32 s{sT}, s{sT}, {WS_ST}')
            e('s_waitcnt lgkmcnt(0)')
            en = [i for i in range(14) if (self.opt.get('smask', 0x2001) | 0x2001) >> i & 1]
            for k, i in enumerate(en):
                e(f'v_mov_b32 v{B + 8 + i}, s{sSTAMP + 2 * k}')
            e('s_mov_b64 exec, 1')
            for i in range(4):
                e(f'buffer_store_dwordx4 {vr(B + 8 + 4 * i, 4)}, off, {srd(S_WS)}, s{sT} offset:{16 * i}')
        e.label('Lexit')
        e('s_endpgm')

    def safe_softmax(self):
        e = self.e
        e.paths = [p for p in Emitter().paths]
        own = vO[3]
        M = vO[0]
        S = vS[0]
        e.label('Lsafe')
        e(f's_and_b32 s{sT + 2}, s{sKVB}, {0xffffffff ^ (3 << 15)}')
        e(f's_mov_b32 s{sT + 3}, s{sT + 2}')
        e(f's_mov_b32 s{sT + 4}, 64')
        e(f'v_mov_b32 v{M}, 0xff800000')
        e.label('Lsafe1')
        e(f'buffer_load_dwordx4 {vr(vK[0], 4)}, v{vL16}, {srd(S_WS)}, s{sT + 3} offen sc1')
        e(f's_add_u32 s{sT + 3}, s{sT + 3}, 2048')
        e('s_waitcnt vmcnt(0)')
        e(f'v_mfma_f32_32x32x16_bf16 {vr(S, 16)}, {vr(vK[0], 4)}, {vr(vQ[3], 4)}, 0')
        for i in range(0, 16, 2):
            e(f'v_max3_f32 v{M}, v{M}, v{S + i}, v{S + i + 1}')
        e(f's_sub_u32 s{sT + 4}, s{sT + 4}, 1')
        e(f's_cmp_lg_u32 s{sT + 4}, 0')
        e('s_cbranch_scc1 Lsafe1')
        e(f'v_mov_b32 v{M + 1}, v{M}')
        e(f'v_permlane32_swap_b32 v{M}, v{M + 1}')
        e(f'v_max_f32 v{M}, v{M}, v{M + 1}')
        e(f'v_sub_f32 v{M}, 0, v{M}')
        for i in range(1, 16):
            e(f'v_mov_b32 v{M + i}, v{M}')
        for i in range(16):
            e(f'v_mov_b32 v{own + i}, 0')
        e(f's_mov_b32 s{sT + 3}, s{sT + 2}')
        e(f's_mov_b32 s{sT + 4}, 64')
        e.label('Lsafe2')
        e(f'buffer_load_dwordx4 {vr(vK[0], 4)}, v{vL16}, {srd(S_WS)}, s{sT + 3} offen sc1')
        e(f's_mov_b64 exec, s[{sVM}:{sVM + 1}]')
        e(f'buffer_load_dwordx4 {vr(vV[0], 4)}, v{vVA}, {srd(S_WS)}, s{sT + 3} offen offset:1024 sc1')
        e(f'buffer_load_dwordx4 {vr(vV[0] + 4, 4)}, v{vVA}, {srd(S_WS)}, s{sT + 3} offen offset:1536 sc1')
        e('s_mov_b64 exec, -1')
        e(f's_add_u32 s{sT + 3}, s{sT + 3}, 2048')
        e('s_waitcnt vmcnt(0)')
        e(f'v_mfma_f32_32x32x16_bf16 {vr(S, 16)}, {vr(vK[0], 4)}, {vr(vQ[3], 4)}, {vr(M, 16)}')
        for i in range(16):
            e(f'v_exp_f32 v{S + i}, v{S + i}')
        for hi in range(2):
            e(f'v_smfmac_f32_32x32x32_bf16 {vr(own, 16)}, {vr(vV[0] + 4 * hi, 4)}, {vr(S + 8 * hi, 8)}, v{vIDX}')
        e(f's_sub_u32 s{sT + 4}, s{sT + 4}, 1')
        e(f's_cmp_lg_u32 s{sT + 4}, 0')
        e('s_cbranch_scc1 Lsafe2')
        e('s_nop 15')
        e(f'v_fma_f32 v{vO[0] + 28}, v{own + 8}, v{vCO}, v{own + 8}')
        e(f'v_rcp_f32 v{vO[0] + 28}, v{vO[0] + 28}')
        e(f's_cmp_lg_u32 s{sG}, 0')
        e('s_cbranch_scc1 Lsafe_done1')
        e('s_branch Lsafe_done0')

    def build(self):
        e = self.e
        self.prologue()
        e.drop = (None, ('v_mfma',), ('v_mfma', 'ds_read_b64_tr'), ('ds_read_b64_tr',))[self.opt.get('x_drop', 0)]
        snap = e.snapshot()
        e.label('Lload')
        self.phase_a_loader()
        self.phase_f(1, 3)
        e('s_branch Lffn')
        ends = e.snapshot()
        cends = []
        for ty in (0, 1):
            e.restore(snap)
            e.label(f'Lcomp{ty}')
            e.comment('---- compute waves: four heads of ' + 'kv'[ty] + ' and the gate logit')
            self.phase_a_compute(ty)
            if ty == 0:
                e('s_branch Lpack')
            cends += e.snapshot()
        e.paths = cends
        e.label('Lpack')
        e(f's_mul_i32 s{sT}, s{sJ}, 43691')
        e(f's_lshr_b32 s{sT}, s{sT}, 17')
        e(f's_mul_i32 s{sT}, s{sT}, 3')
        for i in range(4):
            self.pack8(ACA + 8 * i, ACA + 4 * i)
            if i < self.opt['qe']:
                self.kv_store(i)
        self.z_write()
        e(f's_cmp_eq_u32 s{sT}, s{sJ}')
        e('s_cbranch_scc1 Lsix')
        snap = e.snapshot()
        for NC in (2, 3):
            e.restore(snap)
            if NC == 3:
                e.label('Lsix')
            e('s_barrier')
            self.stamp(4)
            self.phase_f(0, NC)
            if NC == 2:
                e('s_branch Lffn')
            ends += e.snapshot()
        e.paths = ends
        e.label('Lffn')
        e.drop = None
        self.attn_loads_late()
        self.stamp(6)
        self.attention()
        self.tail()
        i = 0
        while i < len(self.tail_blocks):
            self.tail_blocks[i]()
            i += 1
        e.label('Lcode_end')
        return self.wrap()

    def wrap(self):
        head = open('gated_mix__softmax_full_mha__glu_gated_geglu__prompt.s.ref').read().split('; Override')[0]
        return head + f"""; @launch grid=(256,1,1) block=(512,1,1) lds={LDS_BYTES}
{DOC}.amdgcn_target "amdgcn-amd-amdhsa--gfx950"
.text
.globl {KNAME}
.p2align 8
.type {KNAME},@function
{KNAME}:
{self.e.text()}
.section .rodata,"a"
.p2align 6
.amdhsa_kernel {KNAME}
  .amdhsa_next_free_vgpr 256
  .amdhsa_next_free_sgpr 102
  .amdhsa_accum_offset 256
  .amdhsa_group_segment_fixed_size 0
  .amdhsa_kernarg_size 88
  .amdhsa_user_sgpr_count 2
  .amdhsa_user_sgpr_kernarg_segment_ptr 1
  .amdhsa_system_sgpr_workgroup_id_x 1
.end_amdhsa_kernel
"""


if __name__ == '__main__':
    out = sys.argv[1]
    stamps = sys.argv[2] if len(sys.argv) > 2 and sys.argv[2] in ('rt', 'cy') else False
    opt = {}
    for a in sys.argv[2:]:
        if '=' in a:
            k, v = a.split('=')
            opt[k] = int(v, 0)
    g = Gen(stamps=stamps, opt=opt)
    open(out, 'w').write(g.build())
    print('nops inserted:', g.e.nops, 'lines:', len(g.e.lines))
```

```python
import sys, math, struct
from asmlib import Emitter, Win

KNAME = 'gated_mix__softmax_full_mha__glu_gated_geglu__prompt_kernel'

WS_Q = 0
WS_KV = 2 << 20
WS_O = 6 << 20
WS_F1 = 8 << 20
WS_F2 = WS_F1 + 32768
WS_ST = WS_F1 + 65536
WS_H = 9 << 20
HBLK = 86 * 2048
WS_END = 15 << 20

L_GW = 0
L_Z = 1024
SLOT0 = 4096
UPOFF = 12288
QOFF = 24576
L_QX = 147456
L_RING = 4096
RINGW = 7168
L_WO = 65536
L_PRE1 = 131072
L_CNT = 2048
LDS_BYTES = 163840

S_X, S_WQ, S_WF, S_WS, S_H, S_WD, S_WO, S_OUT, S_DBG, S_GW = [4 * i + 4 for i in range(10)]
S_WG = 80
sW, sTT, sG, sJ, sTB, sRB, sCB, sUS = range(44, 52)
sXO, sWO, sFO, sMX, sMW, sMF = range(52, 58)
sNON = 58
sKV, sKVB, sKVI, sHO, sDO, sMD = range(60, 66)
sVM = 66
sT = 68
sGC = 76
sQX = [40, 41, 42, 43]
sQW = 78
sXO2 = 79
sSPIN = 84
sMO = 85
sFO2 = 86
sJU = 87
sMG = 3
sO = [4, 5]
sR = 73
sE = [4, 5, 6, 7]
sSTMP = 74
sSTAMP = 88


def region(s):
    return SLOT0 + 28672 * (s % 5)


def srd(b):
    return f's[{b}:{b + 3}]'


def vr(b, n):
    return f'v[{b}:{b + n - 1}]' if n > 1 else f'v{b}'


def fbits(x):
    return '0x%08x' % struct.unpack('<I', struct.pack('<f', x))[0]


vL16 = 1
vXD = [2, 3]
vWD = 4
vFD = 5
vXR = [6, 7]
vWR = [8, 2]
vFR = [9, 10, 11]
FR = 16
NFR = 5
ACA = 36
ACF = 68
vK = [116, 120]
vCH, vIDX, vVA = 124, 126, 127
vQR = 126
QA = ACA + 16
X = 128
vO = [X + 16 * i for i in range(4)]
vQ = [X + 64 + 4 * i for i in range(4)]
vV = [ACA, ACA + 8]
vS = [ACA + 16, X + 80]
vG = [ACF, ACF + 16, ACF + 32, X + 96]
vH = [X + 112, X + 120]
vD = FR
vCO = FR + 8
vDD = [2, 3]
vDR = [12, 13]
vP = 14
vPA = 6
vRW = [7, 8]
vHA = [9, 10]
vKA = 124
vRR = FR + 10

LOG2E = 1.4426950408889634
QSCALE = 0.25 * LOG2E
GC0 = -2.0 * LOG2E * math.sqrt(2.0 / math.pi)
GC1 = GC0 * 0.044715
SPIN = 400000
FL = ('', ' sc1', ' nt', ' sc1 nt')

DOC = """;
;
;   1. k/v projection   x and 64 columns of w_k (even j) or w_v (odd j) stream through an LDS ring by LDS-DMA
;   2. q + gate/up      q of heads 2j, 2j+1 (scaled by log2(e)/4) and 5 or 6 units of 16 gate/up columns;
;   3. attention        wave (kq, head) runs 4 query tiles against a quarter of the keys:
;                       S^T = K Q^T (v_mfma 32x32x16), P = v_exp_f32(S), O^T += V^T P^T with v_smfmac 32x32x32, whose
;
;
"""


class Gen:
    def __init__(self, stamps=False, opt=None):
        self.e = Emitter()
        self.stamps = stamps
        self.nst = 0
        self.opt = dict(g2start=5, prio=True, ahead=12, span=12, fah=2, omf=0, lfirst=3, as2=6, ahead2=8, tlb=0, bt=0, rx=3, btm=999, btx=0, tch=200, tca=8, tcw=7, dsplit=1, ys=1, fw=0, fx=0, fh=1, p1i=70, p1c=80, gsp=10, g0=0, fk=2, gk=3, lpre=60, cpre=40, lfk=20, llast=2, lsp2=1,
                        pa=7, pb=50, pc=200, ol=3, yl=3, woi=8, hs=7, um=0xc084, qw=12, vs=11, qe=0, q0=8, qsp=6, om=0, s2t=4, rot=4, rj=0, zm=1, hl=0, hsp=1,
                        fs=7, lp=1, eb=1, sl1=4, sl2=8, sl3=2, lsp=4)
        if opt:
            self.opt.update(opt)
        self.tail_blocks = []

    def stamp(self, idx, sset=0):
        e = self.e
        if self.opt.get('sset') == 4:
            if 7 <= idx <= 9 and sset != 4:
                return
        elif 7 <= idx <= 12 and sset != self.opt.get('sset', 0):
            return
        if self.opt.get('probe') == idx:
            e(f's_memrealtime s[{sSTAMP}:{sSTAMP + 1}]')
            e('s_waitcnt lgkmcnt(0)')
            for p in e.paths:
                p.lg = []
        if not self.stamps or not (self.opt.get('smask', 0x2001) | 0x2001) >> idx & 1:
            return
        en = [i for i in range(14) if (self.opt.get('smask', 0x2001) | 0x2001) >> i & 1]
        assert len(en) <= 7
        r = sSTAMP + 2 * en.index(idx)
        e(f"{'s_memtime' if self.stamps == 'cy' else 's_memrealtime'} s[{r}:{r + 1}]")

    def dma_list(self, s):
        e = self.e
        slot = region(s)
        out = []
        tag = f'st{s}'

        def mk(m0s, m0c, va, rs, so, imm=0, pre=(), tag=tag):
            def f(part=3):
                if part & 1:
                    e(f's_add_u32 m0, s{m0s}, {m0c - imm}')
                    for p in pre:
                        e(p)
                if part & 2:
                    e(f'buffer_load_dwordx4 v{va}, {srd(rs)}, s{so} offen' + (f' offset:{imm}' if imm else '') + (FL[self.opt['fx']] if rs == S_X else '') + ' lds', tag)
            f.dma = True
            out.append(f)
        t = sT + 6

        def step(so, n):
            if s % 8 == 0:
                return ()
            if s % (8 // self.opt['rot']) and not self.opt['rx'] & 2:
                return [f's_add_u32 s{so}, s{so}, {n}']
            return [f's_cmp_eq_u32 s{sR}, {-s % 8}', f's_cselect_b32 s{t}, -7, 1', f's_mul_i32 s{t}, s{t}, {n}', f's_add_u32 s{so}, s{so}, s{t}']
        if s < 8:
            for i in range(4):
                mk(sMX, slot + i * 1024, vXD[i % 2], S_X, sXO if i < 2 else sXO2,
                   pre=step(sXO, 128) if i == 0 else ([f's_add_u32 s{sXO2}, s{sXO}, 16384'] if i == 1 else ()))
            for i in range(2):
                mk(sMW, slot + 16384 + i * 1024, vWD, S_WQ, sWO, imm=64 * i, pre=step(sWO, 64 * 3072) if i == 0 else ())
        else:
            mk(sMF, slot + QOFF, vWD, S_WQ, sQW, pre=step(sQW, 64 * 3072))
            for h in range(2):
                for i in range(3):
                    mk(sMG, slot + h * 6144 + i * 1024, vFD, S_WF, sFO2 if h else sFO, imm=64 * i, tag=tag + 'b' * h,
                       pre=step(sFO, 64 * 2752) if h + i == 0 else ([f's_add_u32 s{sFO2}, s{sFO}, {32 * 2752}'] if (h, i) == (0, 1) else ()))
        return out

    def prologue(self):
        e = self.e
        self.stamp(0)
        e('s_cmp_ge_u32 s2, 256')
        e('s_cbranch_scc1 Lexit')
        e(f's_load_dwordx2 s[{S_X}:{S_X + 1}], s[0:1], 0')
        e(f's_load_dwordx2 s[{S_WQ}:{S_WQ + 1}], s[0:1], 8')
        e(f's_getpc_b64 s[{sT}:{sT + 1}]')
        e.label('Lpfbase')
        e(f's_lshr_b32 s{sT + 2}, s2, 3')
        e(f's_lshl_b32 s{sT + 2}, s{sT + 2}, 11')
        e(f'v_lshl_add_u32 v16, v0, 2, s{sT + 2}')
        e('v_min_u32 v16, Lcode_end-Lpfbase-4, v16')
        e('v_lshrrev_b32 v2, 6, v0')
        e('s_mov_b32 exec_lo, 1')
        e('s_mov_b32 exec_hi, 1')
        e(f'global_load_dword v{vK[1]}, v16, s[{sT}:{sT + 1}]', 'pf')
        e('s_mov_b64 exec, -1')
        e(f'v_readfirstlane_b32 s{sW}, v2')
        e('v_and_b32 v0, 63, v0')
        e(f's_xor_b32 s{sW}, s{sW}, 4')
        e(f's_and_b32 s{sTT}, s{sW}, 3')
        e(f's_lshr_b32 s{sG}, s{sW}, 2')
        e('s_cbranch_scc1 Lload')
        e('s_bitcmp1_b32 s2, 3')
        e('s_cbranch_scc1 Lcomp1')
        e('s_branch Lcomp0')

    def ids_tb(self):
        e = self.e
        R = self.opt['rot']
        e(f's_and_b32 s{sTB}, s2, 4')
        e(f's_lshl_b32 s{sTB}, s{sTB}, 1')
        e(f's_lshr_b32 s{sT + 6}, s2, 5')
        e(f's_add_u32 s{sTB}, s{sTB}, s{sT + 6}')
        RX = self.opt['rx']
        if RX & 1:
            e(f's_mul_i32 s{sR}, s2, {R // 4}')
            e(f's_add_u32 s{sR}, s{sR}, s{sTB}')
        e(f's_and_b32 s{sR}, s{sR if RX & 1 else sTB}, {R - 1}')
        e(f's_mul_i32 s{sR}, s{sR}, {8 // R}')
        if RX & 2:
            e(f's_lshr_b32 s{sT + 6}, s{sTB}, 3')
            e(f's_add_u32 s{sR}, s{sR}, s{sT + 6}')

    def more_args(self, g):
        e = self.e
        lst = [(S_WG, 32), (S_WF, 40)] if g else [(S_GW, 56)]
        for b, off in lst + [(S_DBG, 72), (S_WS, 80), (S_H, 80), (S_WD, 48), (S_WO, 16), (S_OUT, 64)]:
            e(f's_load_dwordx2 s[{b}:{b + 1}], s[0:1], {off}')
        e(f'v_lshlrev_b32 v{vL16}, 4, v0')

    def ids_j(self):
        e = self.e
        e(f's_and_b32 s{sJ}, s2, 3')
        e(f's_lshl_b32 s{sJ}, s{sJ}, 2')
        e(f's_bfe_u32 s{sT + 6}, s2, 0x20003')
        e(f's_add_u32 s{sJ}, s{sJ}, s{sT + 6}')

    def quad_rows(self, dst, stride, t):
        e = self.e
        e(f'v_lshrrev_b32 v{t}, 4, v0')
        e(f'v_and_b32 v{t}, 2, v{t}')
        e(f'v_xor_b32 v{t}, v{t}, v0')
        e(f'v_and_b32 v{t}, 3, v{t}')
        e(f'v_lshrrev_b32 v{dst}, 2, v0')
        e(f'v_mul_u32_u24 v{dst}, {stride}, v{dst}')
        e(f'v_lshl_add_u32 v{dst}, v{t}, 4, v{dst}')

    def tr_base(self, dst, gstride, t):
        e = self.e
        e(f'v_lshrrev_b32 v{dst}, 5, v0')
        e(f'v_mul_u32_u24 v{dst}, {gstride}, v{dst}')
        e(f'v_bfe_u32 v{t}, v0, 4, 1')
        e(f'v_mul_u32_u24 v{t}, {512 + 32}, v{t}')
        e(f'v_add_u32 v{dst}, v{dst}, v{t}')
        e(f'v_bfe_u32 v{t}, v0, 2, 2')
        e(f'v_lshl_add_u32 v{dst}, v{t}, 6, v{dst}')
        e(f'v_and_b32 v{t}, 3, v0')
        e(f'v_lshl_add_u32 v{dst}, v{t}, 3, v{dst}')

    def srd_consts(self, lst):
        for b, n in lst:
            self.e(f's_mov_b32 s{b + 2}, {n}')
            self.e(f's_mov_b32 s{b + 3}, 0x20000')

    def x_read_addrs(self):
        e = self.e
        e('v_and_b32 v16, 15, v0')
        e(f's_lshl_b32 s{sT + 6}, s{sTT}, 12')
        e('v_lshrrev_b32 v17, 4, v0')
        e('v_lshrrev_b32 v18, 1, v16')
        e('v_xor_b32 v18, v18, v17')
        e('v_lshlrev_b32 v18, 4, v18')
        e('v_lshl_add_u32 v18, v16, 7, v18')
        e(f'v_add_u32 v{vXR[0]}, s{sT + 6}, v18')
        e(f'v_xor_b32 v{vXR[1]}, 64, v{vXR[0]}')

    def setup2(self, g, ty):
        e = self.e
        t = sT
        self.srd_consts(([(S_DBG, 256), (S_WF, 512 * 2752)] if g else []) +
                        [(S_WS, WS_END), (S_H, HBLK), (S_WD, 1376 * 1024), (S_WO, 512 * 1024), (S_OUT, 2048 * 1024)])
        if self.opt['um']:
            e(f's_and_b32 s{t}, s{sJ}, 12')
            e(f's_lshr_b32 s{t}, {self.opt["um"]}, s{t}')
            e(f's_and_b32 s{t}, s{t}, 12')
            e(f's_and_b32 s{sJU}, s{sJ}, 3')
            e(f's_add_u32 s{sJU}, s{sJU}, s{t}')
            e(f's_min_u32 s{t}, s{sJU}, 6')
            e(f's_mul_i32 s{sUS}, s{sJU}, 5')
            e(f's_add_u32 s{sUS}, s{sUS}, s{t}')
        else:
            e(f's_lshl_b32 s{sUS}, s{sJ}, 4')
            e(f's_add_u32 s{sUS}, s{sUS}, 2')
            e(f's_mul_i32 s{sUS}, s{sUS}, 43691')
            e(f's_lshr_b32 s{sUS}, s{sUS}, 17')
        if g:
            e(f's_lshl_b32 s{t + 1}, s{sR}, 2')
            e(f's_add_u32 s{t + 1}, s{t + 1}, s{sTT}')
            e(f's_cmp_lt_u32 s{sTT}, 2\n    s_cselect_b32 s{S_WF}, s{S_WG}, s{S_WF}\n    s_cselect_b32 s{S_WF + 1}, s{S_WG + 1}, s{S_WF + 1}')
            e(f's_and_b32 s{sFO}, s{t + 1}, -3')
            e(f's_mul_i32 s{sFO}, s{sFO}, {16 * 2752}')
            e(f's_lshr_b32 s{t}, s{sUS}, 1')
            e(f's_lshl_b32 s{t}, s{t}, 6')
            e(f's_add_u32 s{sFO}, s{sFO}, s{t}')
            e(f's_mul_i32 s{sQW}, s{t + 1}, {16 * 3072}')
            e(f's_lshl_b32 s{t}, s{sJ}, 6')
            e(f's_add_u32 s{sQW}, s{sQW}, s{t}')
            e(f's_and_b32 s{sMG}, s{sTT}, 2')
            e(f's_add_u32 s{sMG}, s{sMG}, s{sTT}')
            e(f's_mul_i32 s{sMG}, s{sMG}, 3072')
            e(f's_lshl_b32 s{sMF}, s{sTT}, 10')
            self.quad_rows(vFD, 2752, vP)
        first = 0 if g else 3
        self.tr_base(vP + 1, 3072, vP)
        for c in range(3):
            e(f's_and_b32 s{t}, s{sUS}, 1')
            e(f's_add_u32 s{t}, s{t}, {first + c}')
            e(f's_lshr_b32 s{t + 1}, s{t}, 1')
            e(f's_lshl_b32 s{t + 1}, s{t + 1}, 10')
            e(f's_and_b32 s{t}, s{t}, 1')
            e(f's_lshl_b32 s{t}, s{t}, 5')
            e(f'v_xor_b32 v{vFR[c]}, s{t}, v{vP + 1}')
            e(f'v_add_u32 v{vFR[c]}, s{t + 1}, v{vFR[c]}')
        e(f'v_lshrrev_b32 v{vP}, 5, v0')
        e(f'v_lshlrev_b32 v{vVA}, 11, v{vP}')
        e(f'v_sub_u32 v{vQR}, v{vP + 1}, v{vVA}')
        if g:
            e(f'v_xor_b32 v{vQR}, 32, v{vQR}')
        e(f's_and_b32 s{sRB}, s2, 7')
        e(f's_xor_b32 s{sRB}, s{sRB}, 4')
        e(f's_lshl_b32 s{sRB}, s{sRB}, 2')
        e(f's_lshr_b32 s{t}, s2, 6')
        e(f's_add_u32 s{sRB}, s{sRB}, s{t}')
        e(f's_mul_i32 s{t}, s{sRB}, {HBLK}')
        e(f's_add_u32 s{t}, s{t}, {WS_H}')
        e(f's_add_u32 s{S_H}, s{S_H}, s{t}\n    s_addc_u32 s{S_H + 1}, s{S_H + 1}, 0')
        e(f's_bfe_u32 s{sCB}, s2, 0x30003')
        e(f's_mov_b32 s{sVM}, 0xffff')
        e(f's_mov_b32 s{sVM + 1}, 0xffff')
        e(f's_mov_b32 s{sGC}, {fbits(GC1)}')
        e(f's_mov_b32 s{sGC + 1}, s{sGC}')
        e(f'v_and_b32 v{vVA}, 15, v0')
        e(f'v_lshl_add_u32 v{vVA}, v{vP}, 4, v{vVA}')
        e(f'v_lshlrev_b32 v{vVA}, 4, v{vVA}')
        e(f's_lshl_b32 s{t}, s{sTB}, 2')
        e(f's_add_u32 s{t}, s{t}, s{sTT}')
        e(f's_lshr_b32 s{sHO}, s{t}, 1')
        e(f's_mul_i32 s{sHO}, s{sHO}, 86')
        e(f's_add_u32 s{sHO}, s{sHO}, s{sUS}')
        e(f's_lshl_b32 s{sHO}, s{sHO}, 1')
        e(f's_and_b32 s{t + 1}, s{t}, 1')
        e(f's_add_u32 s{sHO}, s{sHO}, s{t + 1}')
        e(f's_lshl_b32 s{sHO}, s{sHO}, 10')
        e(f's_add_u32 s{sHO}, s{sHO}, {WS_H + 2048 * first}')
        e(f's_lshl_b32 s{sMO}, s{t}, 4')
        e(f's_add_u32 s{sMO}, s{sMO}, s{sJ}')
        e(f's_lshl_b32 s{sMO}, s{sMO}, 11')
        e(f's_add_u32 s{sMO}, s{sMO}, {g * 1024 + WS_O}')
        if g == 0:
            e(f's_lshr_b32 s{sE[0]}, s{sJ}, 1')
            e(f's_lshl_b32 s{sE[0]}, s{sE[0]}, 8')
            e(f's_add_u32 s{sE[0]}, s{sE[0]}, s{t}')
            e(f's_lshl_b32 s{sE[0]}, s{sE[0]}, 11')
            e(f's_add_u32 s{sE[0]}, s{sE[0]}, {WS_KV + 1024 * ty}')
            for i in range(1, 4):
                e(f's_add_u32 s{sE[i]}, s{sE[0]}, {262144 * (i >> 1) + 512 * (i & 1) if ty else 131072 * i}')
            if ty:
                e(f'v_bfe_u32 v{vWD}, v0, 4, 1')
                e(f'v_lshl_add_u32 v{vWD}, v{vWD}, 17, v{vVA}')
            else:
                e(f'v_mov_b32 v{vWD}, v{vL16}')
        e(f's_lshl_b32 s{sKVB}, s{sJ}, 3')
        e(f's_add_u32 s{sKVB}, s{sKVB}, s{sW}')
        e(f's_lshl_b32 s{sKVB}, s{sKVB}, 15')
        e(f's_add_u32 s{sKVB}, s{sKVB}, {WS_KV}')
        e(f's_and_b32 s{sKVI}, s{sTB}, 7')
        e(f's_lshl_b32 s{sKVI}, s{sKVI}, 12')
        e(f's_and_b32 s{sKV}, s{sJ}, 14')
        e(f's_lshl_b32 s{sKV}, s{sKV}, 2')
        e(f's_add_u32 s{sKV}, s{sKV}, s{sTT}')
        e(f's_lshl_b32 s{sKV}, s{sKV}, {2 + self.opt["fs"]}')
        e(f's_add_u32 s{sKV}, s{sKV}, {WS_F1}')
        for i in range(4):
            e(f's_add_u32 s{sQX[i]}, s{sTT}, {1 + i}')
            e(f's_and_b32 s{sQX[i]}, s{sQX[i]}, 3')
            e(f's_lshl_b32 s{sQX[i]}, s{sQX[i]}, 10')
            e(f's_add_u32 s{sQX[i]}, s{sQX[i]}, {L_QX + 4096 * g}')
        e(f's_mul_i32 s{sMD}, s{sW}, {RINGW}')
        e(f's_mul_i32 s{sDO}, s{sW}, {11 * 16384}')
        e(f's_lshl_b32 s{t}, s{sCB}, 7')
        e(f's_add_u32 s{sDO}, s{sDO}, s{t}')
        e(f'v_bfe_u32 v{vDR[0]}, v0, 2, 2')
        e(f'v_lshl_add_u32 v{vDR[0]}, v{vP}, 3, v{vDR[0]}')
        e(f'v_lshlrev_b32 v{vDR[0]}, 7, v{vDR[0]}')
        e(f'v_bfe_u32 v{vP}, v0, 4, 1')
        e(f'v_lshl_add_u32 v{vDR[0]}, v{vP}, 5, v{vDR[0]}')
        e(f'v_bfe_u32 v{vP}, v0, 3, 1')
        e(f'v_lshl_add_u32 v{vDR[0]}, v{vP}, 6, v{vDR[0]}')
        e(f'v_and_b32 v{vP}, 3, v0')
        e(f'v_lshl_add_u32 v{vDR[0]}, v{vP}, 3, v{vDR[0]}')
        e(f'v_add_u32 v{vDR[0]}, s{sMD}, v{vDR[0]}')
        e(f'v_xor_b32 v{vDR[1]}, 64, v{vDR[0]}')

    def phase_a_loader(self):
        e = self.e
        o = self.opt
        seq = []
        bound = []
        last = 7 + o['fah']
        for s in range(last + 1):
            bound.append(len(seq))
            seq += self.dma_list(s)
        bound.append(len(seq))
        pos = 0

        def issue(upto):
            nonlocal pos
            while pos < min(upto, len(seq)):
                seq[pos]()
                pos += 1
        self.ids_tb()
        e('v_lshrrev_b32 v16, 3, v0')
        e('v_lshrrev_b32 v17, 4, v0')
        e('v_and_b32 v18, 7, v0')
        e('v_xor_b32 v18, v18, v17')
        e('v_lshlrev_b32 v18, 4, v18')
        e(f'v_lshl_add_u32 v{vXD[0]}, v16, 10, v18')
        e(f'v_xor_b32 v{vXD[1]}, 64, v{vXD[0]}')
        e(f'v_add_u32 v{vXD[1]}, 8192, v{vXD[1]}')
        e(f's_lshl_b32 s{sXO}, s{sTB}, 2')
        e(f's_add_u32 s{sXO}, s{sXO}, s{sTT}')
        e(f's_lshl_b32 s{sXO}, s{sXO}, 8')
        e(f's_add_u32 s{sXO}, s{sXO}, s{sR}')
        e(f's_lshl_b32 s{sXO}, s{sXO}, 7')
        e(f's_lshl_b32 s{sMX}, s{sTT}, 12')
        self.srd_consts(((S_X, 2048 * 1024),))
        e('s_waitcnt lgkmcnt(0)')
        self.stamp(1)
        issue(4)
        self.ids_j()
        self.srd_consts(((S_WQ, 512 * 3072),))
        self.quad_rows(vWD, 3072, 16)
        e(f's_lshr_b32 s{sT}, s{sJ}, 1')
        e(f's_and_b32 s{sT + 1}, s{sJ}, 1')
        e(f's_lshl_b32 s{sT + 1}, s{sT + 1}, 3')
        e(f's_add_u32 s{sT}, s{sT}, s{sT + 1}')
        e(f's_lshl_b32 s{sT}, s{sT}, 7')
        e(f's_lshl_b32 s{sWO}, s{sR}, 2')
        e(f's_add_u32 s{sWO}, s{sWO}, s{sTT}')
        e(f's_mul_i32 s{sWO}, s{sWO}, {16 * 3072}')
        e(f's_add_u32 s{sWO}, s{sWO}, s{sT}')
        e(f's_addk_i32 s{sWO}, 1024')
        e(f's_lshl_b32 s{sMW}, s{sTT}, 11')
        issue(6)
        self.more_args(1)
        issue(12)
        self.x_read_addrs()
        e('s_waitcnt lgkmcnt(0)')
        fill = self.split(lambda: self.setup2(1, 0)) + self.split(self.v_const)
        for _ in range(min(len(fill), o['lpre'])):
            fill.pop(0)()
        D = o['ahead']
        issue(bound[1] + D)
        wx = Win(e, vXR)
        for s in range(8):
            slot = region(s)
            e.wait(vm=f'st{s}', lg='all')
            e('s_barrier')
            if s in (0, 4):
                self.stamp(2 + s // 4)
            end = max(pos, min(bound[s + 2] + (D if s < o['as2'] else o['ahead2']), bound[min(max(s + 4, 5), last + 1)]))
            issue(min(end, pos + o['lfirst']))
            wx.ensure(slot, slot + 2048)
            for ks in range(2):
                n = 2 * s + ks
                for tg in range(2):
                    e(f'ds_read_b128 {vr(X + 8 * n + 4 * tg, 4)}, v{vXR[ks]} offset:{wx.off(slot + 2048 * tg)}', f'r{n}')
            if s == 6:
                e(f'buffer_load_dwordx2 v[{vK[0]}:{vK[0] + 1}], off, {srd(S_DBG)}, 0 sc1', 'non')

            work = [fill.pop(0) for _ in range(min(len(fill), o['lfk']))]
            gaps = max(1, end - pos - o['llast'] + 1)
            done = 0
            for k in range(gaps):
                if k:
                    issue(pos + 1)
                upto = len(work) * (k + 1) // gaps if o['lsp2'] else (len(work) if k == gaps - 1 else 0)
                while done < upto:
                    work[done]()
                    done += 1
            issue(end)
        assert not fill
        self.left = seq[pos:]
        e.wait(vm='st8' if o['hs'] >= 8 else 'st8b', lg='all')
        e('s_barrier')
        self.stamp(4)

    def pack8(self, src, dst):
        e = self.e
        for r in range(4):
            e(f'v_cvt_pk_bf16_f32 v{dst + r}, v{src + 2 * r}, v{src + 2 * r + 1}')
        for r in range(2):
            e(f'v_permlane16_swap_b32 v{dst + r}, v{dst + 2 + r}')

    def phase_a_compute(self, ty):
        e = self.e
        NC = 4
        self.more_args(0)
        if self.opt['tlb'] or self.opt['bt'] or self.opt['btm'] < 999:
            e(f's_load_dwordx4 s[{S_WG}:{S_WG + 3}], s[0:1], 32')
        self.ids_tb()
        self.ids_j()
        e(f's_memrealtime s[{sNON}:{sNON + 1}]')
        e('v_mov_b32 v16, 0')
        e(f'v_mov_b32 v17, {L_CNT}')
        e('ds_write2_b32 v17, v16, v16 offset0:0 offset1:1', 'z0')
        self.srd_consts(((S_DBG, 256), (S_GW, 1024)))
        ZA, GWB, vGA = ACF, ACF + 8, vXD[1]
        e(f's_lshl_b32 s{sT}, s{sR}, 7')
        e(f'v_add_u32 v{vP}, s{sT}, v{vL16}')
        e(f'v_and_b32 v{vP}, 1023, v{vP}')
        e(f'v_and_b32 v{vGA}, 48, v0')
        e(f's_mov_b32 m0, {L_GW}')
        self.x_read_addrs()
        self.tr_base(vWR[0], NC * 512, 16)
        e(f'v_xor_b32 v{vWR[1]}, 32, v{vWR[0]}')
        e('s_waitcnt lgkmcnt(0)')
        for p in e.paths:
            p.lg = []
        self.stamp(1)
        e(f'buffer_load_dwordx4 v{vP}, {srd(S_GW)}, 0 offen lds', 'gw')
        if self.opt['bt']:
            lab = e.newlabel('bt')
            e(f's_cmp_lg_u32 s{sTT}, 2')
            e(f's_cbranch_scc1 {lab}')
            snap = e.snapshot()
            for k, (b, n) in enumerate(((S_X, 64), (S_WQ, 48), (S_WG, 43), (S_WG + 2, 43), (S_WD, 43), (S_WO, 16))):
                if self.opt['bt'] >> k & 1:
                    e(f's_mul_i32 s{sT}, s2, {n * 128}')
                    e(f'v_lshl_add_u32 v16, v0, 7, s{sT}')
                    e(f's_bfm_b64 exec, {n}, 0' if n < 64 else 's_mov_b64 exec, -1')
                    e(f'global_load_dword v{vK[1] + 2}, v16, s[{b}:{b + 1}]', 'bt')
                    e('s_mov_b64 exec, -1')
            e.paths = e.paths + snap
            e.label(lab)
        if self.opt['tlb']:
            G = self.opt['tlb']
            lab = e.newlabel('tl')
            e(f's_cmp_lg_u32 s{sTT}, 3')
            e(f's_cbranch_scc1 {lab}')
            snap = e.snapshot()
            e(f'v_lshlrev_b32 v16, {G}, v0')
            e(f's_mov_b64 exec, {hex((1 << -(-(512 * 2752) >> G)) - 1)}')
            for k in range(2):
                e(f'global_load_dword v{vK[1] + 1}, v16, s[{S_WG + 2 * k}:{S_WG + 2 * k + 1}]', 'tlb')
            e('s_mov_b64 exec, -1')
            e.paths = e.paths + snap
            e.label(lab)
        if not ty:
            e(f's_or_b32 s{sT + 6}, s2, s{sW}')
            lab = e.newlabel('nn')
            e(f's_cbranch_scc1 {lab}')
            snap = e.snapshot()
            e(f's_or_b32 s{sNON + 1}, s{sNON + 1}, 0x80000000')
            e(f'v_mov_b32 v16, s{sNON}')
            e(f'v_mov_b32 v17, s{sNON + 1}')
            e('s_mov_b64 exec, 1')
            e(f'buffer_store_dwordx2 v[16:17], off, {srd(S_DBG)}, 0 sc1', 'nst')
            e('s_mov_b64 exec, -1')
            e.paths = e.paths + snap
            e.label(lab)
        fill = self.split(lambda: self.setup2(0, ty))
        for _ in range(min(len(fill), self.opt['cpre'])):
            fill.pop(0)()
        LA = 4
        wx = Win(e, vXR)
        ww = Win(e, vWR)
        M = 16 * NC
        GL = 2
        NOG = self.opt.get('x_nogate', 0)

        def gate(n, buf):
            for tg in range(2):
                z = vr(ZA + 4 * tg, 4)
                e(f'v_mfma_f32_16x16x32_bf16 {z}, {vr(buf, 4)}, {vr(X + 8 * n + 4 * tg, 4)}, {z if n else 0}')

        def reads(m, rd):
            n, ct = divmod(m, NC)
            s, ks = divmod(n, 2)
            slot = region(s)
            if m % (2 * NC) == 0 and rd == 0:
                e('s_barrier')
                if s in (0, 4):
                    self.stamp(2 + s // 4)
                wx.ensure(slot, slot + 2048)
                ww.ensure(slot + 16384, slot + 24576)
            if ct == 0:
                e(f'ds_read_b128 {vr(X + 8 * n + 4 * rd, 4)}, v{vXR[ks]} offset:{wx.off(slot + 2048 * rd)}', f'a{m}')
            if ct == 2 and rd == 0 and n >= GL and (n == GL or not NOG):
                e.wait(vm='gw')
                e(f'ds_read_b128 {vr(GWB + 4 * (n % 2), 4)}, v{vGA} offset:{L_GW + 64 * (n - GL)}', f'a{m}')
            t = slot + 16384 + ks * NC * 1024 + (ct >> 1) * 1024 + rd * 256
            e(f'ds_read_b64_tr_b16 {vr(FR + 4 * (m % NFR) + 2 * rd, 2)}, v{vWR[ct & 1]} offset:{ww.off(t)}', f'a{m}')

        for m in range(LA):
            reads(m, 0)
            reads(m, 1)
        for m in range(M):
            n, ct = divmod(m, NC)
            e.wait(lg=f'a{m}')
            for tg in range(2):
                acc = vr(ACA + 16 * (ct >> 1) + 8 * tg + 4 * (ct & 1) if ty else ACA + 8 * ct + 4 * tg, 4)
                a, b = vr(FR + 4 * (m % NFR), 4), vr(X + 8 * n + 4 * tg, 4)
                if ty:
                    a, b = b, a
                e(f'v_mfma_f32_16x16x32_bf16 {acc}, {a}, {b}, {acc if n else 0}')
                if m + LA < M:
                    reads(m + LA, tg)
                if tg == 0:
                    for _ in range(2):
                        if fill:
                            fill.pop(0)()
            if m == self.opt['btm']:
                self.touch_ffn()
            if ct == 2 and n >= GL and (n == GL or not NOG):
                gate(n - GL, GWB + 4 * (n % 2))
            if m == M - LA - 1:
                for k in range(GL):
                    e(f'ds_read_b128 {vr(GWB + 8 + 4 * k, 4)}, v{vGA} offset:{L_GW + 64 * (16 - GL + k)}', 'gl')
            if m == M * 7 // 8:
                e(f'buffer_load_dwordx2 v[{vK[0]}:{vK[0] + 1}], off, {srd(S_DBG)}, 0 sc1', 'non')
        assert not fill
        e.wait(lg='gl')
        for k in range(GL):
            gate(16 - GL + k, GWB + 8 + 4 * k)

    def touch_ffn(self):
        e = self.e
        lab = e.newlabel('tf')
        a, t = vK[1] + 1, sT + 4
        e(f's_cmp_lg_u32 s{sTT}, 2')
        e(f's_cbranch_scc1 {lab}')
        snap = e.snapshot()
        if self.opt['btx']:
            e(f's_lshr_b32 s{t}, s2, 2')
            e(f's_mul_i32 s{t}, s{t}, {8 * 2752}')
            e(f's_and_b32 s{t + 2}, s2, 3')
            e(f's_mul_i32 s{t + 2}, s{t + 2}, 683')
            e(f's_add_u32 s{t}, s{t}, s{t + 2}')
            e(f's_and_b32 s{t}, s{t}, -4')
            e(f'v_lshrrev_b32 v{a}, 3, v0')
            e(f'v_mul_u32_u24 v{a}, 2752, v{a}')
            e(f'v_and_b32 v{a + 1}, 7, v0')
            e(f'v_mul_u32_u24 v{a + 1}, 116, v{a + 1}')
            e(f'v_add3_u32 v{a}, v{a}, v{a + 1}, s{t}')
            e('s_mov_b32 exec_lo, 0x7f7f7f7f')
            e('s_mov_b32 exec_hi, 0x7f7f7f7f')
        else:
            e(f's_mul_i32 s{t}, s2, {43 * 128}')
            e(f'v_lshl_add_u32 v{a}, v0, 7, s{t}')
            e('s_bfm_b64 exec, 43, 0')
        for k in range(2):
            e(f'global_load_dword v{a + 1 + k}, v{a}, s[{S_WG + 2 * k}:{S_WG + 2 * k + 1}]', 'bt')
        e('s_mov_b64 exec, -1')
        e.paths = e.paths + snap
        e.label(lab)

    def z_write(self):
        e = self.e
        e(f'v_and_b32 v{vP}, 16, v0')
        e(f'v_cmp_eq_u32 vcc, 0, v{vP}')
        e(f's_lshl_b32 s{sT + 1}, s{sTT}, 8')
        e(f'v_lshl_add_u32 v{vP}, v0, 2, s{sT + 1}')
        e(f'v_cndmask_b32 v{vP + 1}, v{ACF + 4}, v{ACF}, vcc')
        e(f'ds_write_b32 v{vP}, v{vP + 1} offset:{L_Z}', 'zw')

    def kv_store(self, i):
        self.e(f'buffer_store_dwordx4 {vr(ACA + 4 * i, 4)}, v{vWD}, {srd(S_WS)}, s{sE[i]} offen sc1', 'qst')

    def spin(self, name, reload, check, sleep=2):
        e = self.e
        lr, lc = e.newlabel(name + 'r'), e.newlabel(name + 'c')
        check()
        e(f's_cbranch_vccnz {lr}')
        e.label(lc)

        def blk():
            e.paths = [p for p in Emitter().paths]
            e.label(lr)
            e(f's_mov_b32 s{sSPIN}, {SPIN}')
            ll = e.newlabel(name + 'l')
            e.label(ll)
            e(f's_sleep {sleep}')
            reload()
            e('s_waitcnt vmcnt(0)')
            check()
            e(f's_cbranch_vccz {lc}')
            e(f's_sub_u32 s{sSPIN}, s{sSPIN}, 1')
            e(f's_cbranch_scc0 {ll}')
            e(f's_branch {lc}')
        self.tail_blocks.append(blk)

    def flag_store(self, soff, tmp):
        e = self.e
        e(f'v_mov_b32 v{tmp}, s{sNON}')
        e(f'v_mov_b32 v{tmp + 1}, s{sNON + 1}')
        e('s_mov_b64 exec, 1')
        e(f'buffer_store_dwordx2 v[{tmp}:{tmp + 1}], off, {srd(S_WS)}, s{soff} sc1', 'flag')
        e('s_mov_b64 exec, -1')

    def kv_load(self, it):
        e = self.e
        b = it % 2

        def k():
            e(f'buffer_load_dwordx4 {vr(vK[b], 4)}, v{vKA}, {srd(S_WS)}, s{sKVI} offen' + FL[self.opt['fh']], f'k{it}')

        def v():
            e(f's_mov_b64 exec, s[{sVM}:{sVM + 1}]')
            e(f'buffer_load_dwordx4 {vr(vV[b], 4)}, v{vKA + 1}, {srd(S_WS)}, s{sKVI} offen offset:1024' + FL[self.opt['fh']], f'v{it}')
            e(f'buffer_load_dwordx4 {vr(vV[b] + 4, 4)}, v{vKA + 1}, {srd(S_WS)}, s{sKVI} offen offset:1536' + FL[self.opt['fh']], f'v{it}')
            e('s_mov_b64 exec, -1')
        return k, v

    def kv_adv(self, part=3):
        if part & 1:
            self.e(f's_addk_i32 s{sKVI}, 2048')
        if part & 2:
            self.e(f's_bitset0_b32 s{sKVI}, 15')

    def gelu(self, c, pk=True):
        e = self.e
        acc = ACF + 16 * c
        T = ACA + 16
        P = lambda b, i: vr(b + 2 * i, 2)
        if not pk:
            real = e

            def e(text):
                if not text.startswith('v_pk_'):
                    return real(text)
                op, rest = text.split(None, 1)
                for h in range(2):
                    ops = [f'{o[0]}{int(o[2:o.index(":")]) + h}' for o in rest.split(', ')]
                    real(op.replace('v_pk_', 'v_') + ' ' + ', '.join(ops))
        for i in range(4):
            e(f'v_pk_mul_f32 {P(T, i)}, {P(acc, i)}, {P(acc, i)}')
        for i in range(4):
            e(f'v_pk_fma_f32 {P(T, i)}, {P(T, i)}, s[{sGC}:{sGC + 1}], {vr(T + 8, 2)}')
        for i in range(4):
            e(f'v_pk_mul_f32 {P(T, i)}, {P(T, i)}, {P(acc, i)}')
        for i in range(8):
            e(f'v_exp_f32 v{T + i}, v{T + i}')
        for i in range(4):
            e(f'v_pk_mul_f32 {P(acc, i)}, {P(acc, i)}, {P(acc + 8, i)}')
        for i in range(4):
            ch = vr(T + 10 + 2 * (i // 2), 2)
            e(f'v_pk_fma_f32 {P(T, i)}, {P(T, i)}, {ch}, {ch}')
        for i in range(8):
            e(f'v_rcp_f32 v{T + i}, v{T + i}')
        for i in range(4):
            e(f'v_pk_mul_f32 {P(acc, i)}, {P(acc, i)}, {P(T, i)}')
        for i in (0, 2, 1, 3):
            e(f'v_cvt_pk_bf16_f32 v{acc + 8 + i}, v{acc + 2 * i}, v{acc + 2 * i + 1}')
        for r in range(2):
            e(f'v_permlane16_swap_b32 v{acc + 8 + r}, v{acc + 10 + r}')

    def h_store(self, c):
        e = self.e
        e(f's_add_u32 s{sT}, s{sHO}, {2048 * c}')
        e(f'buffer_store_dwordx4 {vr(ACF + 16 * c + 8, 4)}, v{vL16}, {srd(S_WS)}, s{sT} offen sc1', 'hst')

    def split(self, fn):
        real = self.e
        rec = []

        class Rec:
            def __call__(s, text, tag=None):
                rec.append(('i', text, tag))

            def wait(s, vm=None, lg=None):
                rec.append(('w', vm, lg))
        self.e = Rec()
        fn()
        self.e = real
        out, grp = [], []
        for r in rec:
            grp.append(r)
            masked = any(x[0] == 'i' and x[1].startswith('s_mov_b64 exec') for x in grp)
            if (masked and r[1] != 's_mov_b64 exec, -1') or r[0] == 'w':
                continue

            def f(grp=grp):
                for x in grp:
                    if x[0] == 'i':
                        real(x[1], x[2])
                    else:
                        real.wait(vm=x[1], lg=x[2])
            out.append(f)
            grp = []
        assert not grp
        return out

    def phase_f(self, g, NC):
        e = self.e
        o = self.opt
        order = []
        for s in range(8):
            for item in ([(0, -1), (1, -1)] if s == 7 else []):
                order.append((2 * s + item[0], -1))
            for ks in range(2):
                order += [(2 * s + ks, r) for r in range(0 if s == 7 else -1, 2 * NC)]
        PS = 4 * NC + 2
        M = 8 * PS
        sc = lambda m: m * PS // 12
        LA = 4
        wf = Win(e, vFR[:NC] + [vQR])
        fill = []
        at = {}
        cur = [0]

        def pin(m, f):
            at.setdefault(m, []).append(f)

        def sched(s, m0, span, extra=()):
            lst = list(extra) + (self.dma_list(s) if g and s <= 15 else [])
            for i, f in enumerate(lst):
                pin(m0 + i * span // len(lst), f)

        def enter(s):
            e.wait(vm=[f'st{s}' if s <= o['hs'] else f'st{s}b'] + (['qst'] if s == o['qw'] else []), lg='zw' if s == 9 else None)
            e('s_barrier')
            sched(s + o['fah'], cur[0] + 1, sc(o['span']))
            if s == 9:
                fill.extend(self.split(self.gate_read))
                fill.append(self.nonce_get)
                fill.extend(self.split(self.attn_setup))
                fill.extend(self.split(self.gate_math))
            if s == o['vs'] and g == 0:
                fill.extend(self.split(self.v_const))
            if s == o['qw'] and g == 0:
                fill.insert(0, self.flag1)

        def reads(m, rd):
            s = 8 + m // PS
            if m % PS == 0 and m and rd == 0:
                enter(s)
            n, r = order[m]
            if s <= o['hs'] and n % 2 and r == 0 and rd == 0:
                e.wait(vm=f'st{s}b')
                e('s_barrier')
            slot = region(s)
            wf.ensure(slot, slot + 28672)
            if r < 0:
                va, t = vQR, slot + QOFF + (n % 2) * 2048 + rd * 256
            else:
                va, t = vFR[r // 2], slot + (r % 2) * UPOFF + (n % 2) * 6144 + rd * 256
            e(f'ds_read_b64_tr_b16 {vr(FR + 4 * (m % NFR) + 2 * rd, 2)}, v{va} offset:{wf.off(t)}', f'f{m}')

        assert o['fah'] <= 3
        if g == 0:
            for i in range(o['qe'], 4):
                pin(sc(o['q0'] + o['qsp'] * (i - o['qe'])), lambda i=i: self.kv_store(i))
            assert sc(o['q0'] + o['qsp'] * (3 - o['qe'])) < (min(o['vs'], o['qw']) - 8) * PS - LA
        sched(8 + o['fah'], 0, PS - LA, self.left if g else ())
        for m in range(LA):
            reads(m, 0)
            reads(m, 1)
        if o['prio']:
            pin(sc(50), lambda: e('s_setprio 3'))
        for m in range(M):
            cur[0] = m
            n, r = order[m]
            e.wait(lg=f'f{m}')
            for tg in range(2):
                acc = vr((QA if r < 0 else ACF + 8 * r) + 4 * tg, 4)
                e(f'v_mfma_f32_16x16x32_bf16 {acc}, {vr(FR + 4 * (m % NFR), 4)}, {vr(X + 8 * n + 4 * tg, 4)}, {acc if n else 0}')
                if m + LA < M:
                    reads(m + LA, tg)
                nf = o['fk'] if m < 7 * PS + 4 else o['gk']
                if tg == 0:
                    lead = at.get(m, [None])[0]
                    if o['dsplit'] and getattr(lead, 'dma', False):
                        lead(1)
                        at[m][0] = lambda lead=lead: lead(2)
                    for _ in range(min(nf, 2) - (lead is not None)):
                        if fill:
                            fill.pop(0)()
            if m % PS == 0 and 2 * PS <= m:
                self.stamp(5 + m // PS, 1)
            if o['omf'] and m == sc(o['omf']):
                fill.extend(self.split(lambda: self.o_mark(X)))
            if m == sc(o['tch']) and g == 0:
                fill.append(self.touch)
            if m == sc(o['p1i']):
                fill.append(self.poll1_issue)
            if m == sc(o['p1c']):
                fill.append(self.poll1_check)
                for grp in self.attn_loads_early():
                    fill.append(grp)
                    fill.extend([lambda: None] * o['lsp'])
            if m == 5 * PS:
                assert not fill
                fill.extend(self.split(lambda: self.q_addrs(g)))
            if m == 7 * PS + 3:
                fill = self.split(self.q_pack) + fill
            for f in at.pop(m, []):
                f()
            for _ in range(nf - 2):
                if fill:
                    fill.pop(0)()
        assert not at
        for f in fill:
            f()
        e.wait(lg='all')
        e('s_barrier')
        self.stamp(5)
        for i in range(3):
            e(f'ds_read_b128 {vr(vQ[i], 4)}, v{vQ[i]}', f'q{i}')
        side = []
        if o['p1c'] >= 96:
            side = [self.poll1_check] + self.attn_loads_early()
        ge, ends = [], []
        for c in range(NC - 1, -1, -1):
            ge += self.split(lambda: self.gelu(c))
            ends.append((len(ge), c))
        for k, f in enumerate(ge):
            if side and k >= o['g0'] * (1 - g) and k % o['gsp'] == 0:
                side.pop(0)()
            f()
            if not side and ends[0][0] <= k + 1 and ends[0][1] >= o['hl']:
                self.h_store(ends.pop(0)[1])
        assert not side and len(ends) == o['hl']
        if o['ys'] and g == 0:
            assert o['hl'] == 0 and not o['omf']
            self.o_mark()
            self.sig2_a()
            self.sig2_b()
        if o['ys']:
            e('s_setprio 2')

    def q_addrs(self, g):
        e = self.e
        for i in range(3):
            e(f'v_add_u32 v{vQ[i]}, s{sQX[i]}, v{vL16}')
        e(f'v_add_u32 v{vQ[0] + 1}, s{sQX[3]}, v{vL16}')

    def q_pack(self):
        e = self.e
        for r in range(8):
            e(f'v_mul_f32 v{QA + r}, {fbits(QSCALE)}, v{QA + r}')
        self.pack8(QA, vQ[3])
        e(f'ds_write_b128 v{vQ[0] + 1}, {vr(vQ[3], 4)}', 'qw')

    def o_mark(self, d=vH[0]):
        e = self.e
        for i in range(4):
            e(f'v_mov_b32 v{d + i}, -1')
        e(f'buffer_store_dwordx4 {vr(d, 4)}, v{vL16}, {srd(S_WS)}, s{sMO} offen sc1', 'hst')

    def gate_read(self):
        e = self.e
        e(f's_lshl_b32 s{sT}, s{sTT}, 8')
        e(f'v_and_b32 v{vCH}, 15, v0')
        e(f'v_lshl_add_u32 v{vCH}, v{vCH}, 2, s{sT}')
        e(f'v_add_u32 v{vCH}, {L_Z}, v{vCH}')
        e(f'ds_read2_b32 {vr(vCH, 2)}, v{vCH} offset0:0 offset1:16', 'zr')

    def gate_math(self):
        e = self.e
        e.wait(lg='zr')
        for i in range(2):
            e(f'v_mul_f32 v{vCH + i}, {fbits(LOG2E)}, v{vCH + i}')
        for i in range(2):
            e(f'v_exp_f32 v{vCH + i}, v{vCH + i}')
        for i in range(2):
            e(f'v_add_f32 v{vCH + i}, 1.0, v{vCH + i}')
        e(f'v_mov_b32 v{ACA + 24}, {fbits(GC0)}')
        e(f'v_mov_b32 v{ACA + 25}, v{ACA + 24}')
        for i in range(4):
            e(f'v_min_f32 v{ACA + 26 + i}, {fbits(2.0 ** 100)}, v{vCH + i // 2}')
        e(f'v_add_u32 v{vKA}, s{sKVB}, v{vL16}')
        e(f'v_add_u32 v{vKA + 1}, s{sKVB}, v{vVA}')

    def nonce_get(self):
        e = self.e
        e.wait(vm='non')
        ld = lambda: e(f'buffer_load_dwordx2 v[{vK[0]}:{vK[0] + 1}], off, {srd(S_DBG)}, 0 sc1')
        ck = lambda: e(f'v_cmp_eq_u32 vcc, 0, v{vK[0] + 1}')
        self.spin('non', ld, ck)
        e(f'v_readfirstlane_b32 s{sNON}, v{vK[0]}')
        e(f'v_readfirstlane_b32 s{sNON + 1}, v{vK[0] + 1}')

    def flag1(self):
        e = self.e
        lab = e.newlabel('f1')
        e(f's_cmp_lg_u32 s{sW}, 0')
        e(f's_cbranch_scc1 {lab}')
        snap = e.snapshot()
        e(f's_lshl_b32 s{sT + 7}, s{sJ}, 4')
        e(f's_add_u32 s{sT + 7}, s{sT + 7}, s{sTB}')
        e(f's_lshl_b32 s{sT + 7}, s{sT + 7}, {self.opt["fs"]}')
        e(f's_add_u32 s{sT + 7}, s{sT + 7}, {WS_F1}')
        self.flag_store(sT + 7, vK[0])
        e.paths = e.paths + snap
        e.label(lab)

    def touch(self, X=X):
        e = self.e
        lab = e.newlabel('tc')
        e(f's_cmp_lg_u32 s{sW}, {self.opt["tcw"]}')
        e(f's_cbranch_scc1 {lab}')
        snap = e.snapshot()
        e(f'v_lshlrev_b32 v{X}, 7, v0')
        e(f's_mul_i32 s{sT}, s2, {43 * 128}')
        e(f's_lshl_b32 s{sT + 1}, s2, 11')
        e('s_bfm_b64 exec, 43, 0')
        e(f'buffer_load_dword v{X + 1}, v{X}, {srd(S_WD)}, s{sT} offen', 'touch')
        e('s_bfm_b64 exec, 16, 0')
        e(f'buffer_load_dword v{X + 2}, v{X}, {srd(S_WO)}, s{sT + 1} offen', 'touch')
        e('s_mov_b64 exec, -1')
        e.paths = e.paths + snap
        e.label(lab)

    def attn_setup(self):
        e = self.e
        e(f'v_and_b32 v{vPA}, 4, v0')
        e(f'v_mul_u32_u24 v{vPA}, 3, v{vPA}')
        e(f'v_add_u32 v{vPA}, v{vPA}, v0')
        e(f'v_lshl_add_u32 v{vPA}, v{vPA}, {self.opt["fs"]}, s{sKV}')
        e(f'v_lshrrev_b32 v{vDD[0]}, 3, v0')
        e(f'v_lshrrev_b32 v{vP}, 2, v0')
        e(f'v_and_b32 v{vP}, 4, v{vP}')
        e(f'v_xor_b32 v{vP}, v{vP}, v0')
        e(f'v_and_b32 v{vP}, 7, v{vP}')
        e(f'v_lshlrev_b32 v{vP}, 4, v{vP}')
        e(f'v_lshl_add_u32 v{vDD[0]}, v{vDD[0]}, 10, v{vP}')
        e(f'v_add_u32 v{vDD[1]}, {8192 - 1024}, v{vDD[0]}')
        e(f'v_add_u32 v{vRW[0]}, s{sMD}, v{vL16}')
        e(f'v_lshl_add_u32 v{vRW[1]}, v0, 2, s{sMD}')

    def v_const(self):
        e = self.e
        e(f'v_and_b32 v{vV[0] + 1}, 27, v0')
        e(f'v_cmp_eq_u32 vcc, 16, v{vV[0] + 1}')
        e(f'v_mov_b32 v{vV[0] + 1}, 0x3f803f80')
        e(f'v_cndmask_b32 v{vV[0]}, 0, v{vV[0] + 1}, vcc')
        for i in range(1, 16):
            e(f'v_mov_b32 v{vV[0] + i}, v{vV[0]}')

    def poll1_issue(self):
        e = self.e
        e('s_mov_b64 exec, 0xff')
        e(f'buffer_load_dwordx2 v[{vP}:{vP + 1}], v{vPA}, {srd(S_WS)}, 0 offen sc1', 'p1')
        e('s_mov_b64 exec, -1')

    def poll1_check(self):
        e = self.e
        e.wait(vm='p1')
        e('s_mov_b64 exec, 0xff')
        e(f'v_cmp_ne_u64 vcc, s[{sNON}:{sNON + 1}], v[{vP}:{vP + 1}]')
        e('s_mov_b64 exec, -1')

    def attn_load_groups(self):
        e = self.e
        k0, v0 = self.kv_load(0)
        k1, v1 = self.kv_load(1)

        return [k0, lambda: (v0(), self.kv_adv()), k1, lambda: (v1(), self.kv_adv())]

    def attn_loads_early(self):
        e = self.e
        out = []
        for n, f in enumerate(self.attn_load_groups()):
            def g(f=f, n=n):
                lab = e.newlabel('al')
                e(f's_cbranch_vccnz {lab}')
                if n == 0:
                    skip = e.snapshot()
                    for p in skip:
                        p.g = 'pend'
                else:
                    skip = [p for p in e.paths if p.g == 'pend']
                    e.paths = [p for p in e.paths if p.g != 'pend']
                f()
                e.paths = e.paths + skip
                e.label(lab)
            out.append(g)
        return out

    def attn_loads_late(self):
        e = self.e
        e('s_cbranch_vccnz Llate')
        e.label('Llate_done')
        e.paths = [p for p in e.paths if p.g != 'pend']

        def blk():
            e.paths = [p for p in Emitter().paths]
            e.label('Llate')
            e('s_mov_b64 exec, 0xff')
            ld = lambda: e(f'buffer_load_dwordx2 v[{vP}:{vP + 1}], v{vPA}, {srd(S_WS)}, 0 offen sc1')
            ck = lambda: e(f'v_cmp_ne_u64 vcc, s[{sNON}:{sNON + 1}], v[{vP}:{vP + 1}]')
            ld()
            e('s_waitcnt vmcnt(0)')
            self.spin('p1', ld, ck, self.opt['sl1'])
            e('s_mov_b64 exec, -1')
            for f in self.attn_load_groups():
                f()
            e('s_waitcnt vmcnt(0)')
            e('s_branch Llate_done')
        self.tail_blocks.append(blk)

    def sig2_a(self):
        e = self.e
        e.wait(vm='hst')
        e(f'v_mov_b32 v{vP}, {L_CNT}')
        e(f'v_mov_b32 v{vP + 1}, 1')
        e('s_mov_b64 exec, 1')
        e(f'ds_add_rtn_u32 v{vP}, v{vP}, v{vP + 1}', 'cnt2')
        e('s_mov_b64 exec, -1')

    def sig2_b(self):
        e = self.e
        e.wait(lg='cnt2')
        e(f'v_readfirstlane_b32 s{sT}, v{vP}')
        lab = e.newlabel('f2')
        e(f's_cmp_lg_u32 s{sT}, 7')
        e(f's_cbranch_scc1 {lab}')
        snap = e.snapshot()
        e(f's_lshl_b32 s{sT}, s{sTB}, 4')
        e(f's_add_u32 s{sT}, s{sT}, s{sJ}')
        e(f's_lshl_b32 s{sT}, s{sT}, {self.opt["fs"]}')
        e(f's_add_u32 s{sT}, s{sT}, {WS_F2}')
        self.flag_store(sT, vP)
        e.paths = e.paths + snap
        e.label(lab)

    def attention(self):
        e = self.e
        G0 = self.opt['g2start']
        NT = 64

        def qk(t):
            it, sl = divmod(t, 4)
            if sl == 0:
                e.wait(vm=f'k{it}')
            if it == 0:
                e.wait(lg=f'q{sl}')
            e(f'v_mfma_f32_32x32x16_bf16 {vr(vS[t % 2], 16)}, {vr(vK[it % 2], 4)}, {vr(vQ[sl], 4)}, 0')

        def pv(t, hi):
            it, sl = divmod(t, 4)
            if sl == 0 and not hi:
                e.wait(vm=f'v{it}')
            e(f'v_smfmac_f32_32x32x32_bf16 {vr(vO[sl], 16)}, {vr(vV[it % 2] + 4 * hi, 4)}, {vr(vS[t % 2] + 8 * hi, 8)}, v{vIDX}')

        def ex(t, a, b):
            for i in range(a, b):
                e(f'v_exp_f32 v{vS[t % 2] + i}, v{vS[t % 2] + i}')

        def stage_dma(rs, so, i, tag):
            return lambda: e(f'buffer_load_dwordx4 v{vDD[i]}, {srd(rs)}, s{so} offen' + (' offset:1024' if i else '') + FL[self.opt['fw']] + ' lds', tag)

        def wo_first():
            e(f's_lshl_b32 s{sWO}, s{sW}, 16')
            e(f's_lshl_b32 s{sT}, s{sCB}, 7')
            e(f's_add_u32 s{sWO}, s{sWO}, s{sT}')
            e(f's_lshl_b32 s{sMW}, s{sW}, 13')

        def h_load(step, i):
            return lambda: e(f'buffer_load_dwordx4 {vr(vH[step % 2] + 4 * i, 4)}, v{vHA[i]}, {srd(S_H)}, s{sHO} offen' + FL[self.opt['fh']], f'h{step}')

        def wd_read(step, jj):
            def f():
                e.wait(vm=f'd{step}')
                for rd in range(2):
                    e(f'ds_read_b64_tr_b16 {vr(vD + 4 * jj + 2 * rd, 2)}, v{vDR[jj]} offset:{L_RING + 2048 * (step % 3) + 512 * rd}', f'dr{step}_{jj}')
            return f

        def g2(step, sl):
            jj, i = divmod(sl, 2)
            e.wait(vm=f'h{step}', lg=f'dr{step}_{jj}')
            acc = vr(vG[i * 2 + jj], 16)
            e(f'v_mfma_f32_32x32x16_bf16 {acc}, {vr(vD + 4 * jj, 4)}, {vr(vH[step % 2] + 4 * i, 4)}, {acc if step else 0}')

        def only_g1(fn):
            def f():
                if not self.opt['ys']:
                    return fn()
                lab = e.newlabel('g1')
                e(f's_cmp_eq_u32 s{sG}, 0')
                e(f's_cbranch_scc1 {lab}')
                snap = e.snapshot()
                fn()
                for p in snap:
                    p.vm = [t if t != 'hst' else None for t in p.vm]
                e.paths = e.paths + snap
                e.label(lab)
            return f

        def h_addrs():
            e(f's_and_b32 s{sT}, s{sW}, 1')
            e(f's_lshl_b32 s{sT}, s{sT}, 10')
            e(f'v_add_u32 v{vHA[0]}, s{sT}, v{vL16}')
            e(f'v_xor_b32 v{vHA[1]}, 1024, v{vHA[0]}')
            e(f's_mul_i32 s{sHO}, s{sW}, {11 * 2048}')

        def poll2_issue():
            e(f's_lshr_b32 s{sT + 1}, s{sRB}, 1')
            e(f's_lshl_b32 s{sT + 1}, s{sT + 1}, {4 + self.opt["fs"]}')
            e(f's_add_u32 s{sT + 1}, s{sT + 1}, {WS_F2}')
            e(f'v_lshl_add_u32 v{vPA}, v0, {self.opt["fs"]}, s{sT + 1}')
            e('s_mov_b64 exec, 0xffff')
            e(f'buffer_load_dwordx2 v[{vP}:{vP + 1}], v{vPA}, {srd(S_WS)}, 0 offen sc1', 'p2')
            e('s_mov_b64 exec, -1')

        def poll2_check():
            e.wait(vm='p2')
            e('s_mov_b64 exec, 0xffff')
            ld = lambda: e(f'buffer_load_dwordx2 v[{vP}:{vP + 1}], v{vPA}, {srd(S_WS)}, 0 offen sc1')
            ck = lambda: e(f'v_cmp_ne_u64 vcc, s[{sNON}:{sNON + 1}], v[{vP}:{vP + 1}]')
            self.spin('p2', ld, ck, self.opt['sl2'])
            e('s_mov_b64 exec, -1')

        def co_read():
            e(f's_lshl_b32 s{sT}, s{sTT}, 8')
            e(f'v_lshl_add_u32 v{vCO}, v0, 2, s{sT}')
            e(f'ds_read_b32 v{vCO}, v{vCO} offset:{L_Z}', 'zr2')

        def co_math():
            e.wait(lg='zr2')
            e(f'v_mul_f32 v{vCO}, {fbits(-LOG2E)}, v{vCO}')
            e(f'v_exp_f32 v{vCO}, v{vCO}')

        def ored_addr(i):
            def f():
                e(f's_sub_u32 s{sT}, s{sTT}, {1 + i}')
                e(f's_and_b32 s{sT}, s{sT}, 3')
                e(f's_lshl_b32 s{sT + 1}, s{sG}, 2')
                e(f's_add_u32 s{sT}, s{sT}, s{sT + 1}')
                e(f's_mul_i32 s{sT}, s{sT}, {RINGW}')
                e(f'v_add_u32 v{vRR + i}, s{sT}, v{vL16}')
                e(f'v_lshl_add_u32 v{vRR + 3 + i}, v0, 2, s{sT}')
            return f

        def o_addr():
            e(f's_lshl_b32 s{sO[0]}, s{sRB}, 1')
            e(f's_and_b32 s{sT}, s{sW}, 1')
            e(f's_add_u32 s{sO[0]}, s{sO[0]}, s{sT}')
            e(f's_lshl_b32 s{sO[0]}, s{sO[0]}, 2')

        def o_addr2():
            e(f's_lshr_b32 s{sT}, s{sW}, 1')
            e(f's_add_u32 s{sO[0]}, s{sO[0]}, s{sT}')
            e(f's_lshl_b32 s{sO[0]}, s{sO[0]}, 13')
            e(f's_add_u32 s{sO[0]}, s{sO[0]}, {WS_O}')
            e(f's_add_u32 s{sO[1]}, s{sO[0]}, 4096')

        def ored_write(sl, part):
            o = L_RING + 2304 * sl
            if part < 2:
                return lambda: e(f'ds_write_b128 v{vRW[0]}, {vr(vO[sl] + 4 * part, 4)} offset:{o + 1024 * part}', 'orw')
            return lambda: e(f'ds_write_b32 v{vRW[1]}, v{vO[sl] + 8} offset:{o + 2048}', 'orw')

        side = {}
        add = lambda t, p, f: side.setdefault((t, p), []).append(f)
        I = lambda text: (lambda: e(text))
        for it in range(16):
            t = 4 * it
            st = it - G0
            add(t, 1, lambda it=it, st=st: e.wait(vm=[f'v{it}', f'h{st}'], lg=f'dr{st}_0'))
            add(t + 2, 2, lambda it=it, st=st: e.wait(vm=[f'k{it + 1}', f'd{st + 1}'], lg=f'dr{st}_1'))
            if 1 <= it < 15:
                add(t, 0, self.kv_load(it + 1)[1])
                add(t, 2, self.kv_adv)
            if it < 14:
                add(t + 2, 1, self.kv_load(it + 2)[0])
        for step in range(11):
            t = 4 * (G0 + step)
            add(t - 7, 2, I(f's_add_u32 m0, s{sMD}, {L_RING + 2048 * (step % 3)}'))
            add(t - 7, 4, stage_dma(S_WD, sDO, 0, f'd{step}'))
            add(t - 6, 0, stage_dma(S_WD, sDO, 1, f'd{step}'))
            add(t - 6, 0, I(f's_addk_i32 s{sDO}, 16384'))
            add(t - 4, 4, h_load(step, 0))
            add(t - 3, 1, h_load(step, 1))
            add(t - 3, 2, I(f's_addk_i32 s{sHO}, 2048'))
            add(t - 1, 0, wd_read(step, 0))
            add(t + 1, 0, wd_read(step, 1))
        t = 4 * self.opt['woi'] + 3
        add(t - 1, 4, wo_first)
        for k in range(4):
            add(t + 4 * k, 1, I(f's_add_u32 m0, s{sMW}, {L_WO + 2048 * k}'))
            add(t + 4 * k, 2, stage_dma(S_WO, sWO, 0, 'wo'))
            add(t + 4 * k, 2, stage_dma(S_WO, sWO, 1, 'wo'))
            add(t + 4 * k, 4, I(f's_addk_i32 s{sWO}, 16384'))
        if not self.opt['omf']:
            add(self.opt['om'], 2, only_g1(self.o_mark))
        for c in range(self.opt['hl']):
            add(c * self.opt['hsp'], 2, lambda c=c: self.h_store(c))
        for i in range(3):
            add(22 + 4 * i, 2, ored_addr(i))
        add(34, 2, o_addr)
        add(38, 2, o_addr2)
        if self.opt['tca'] < 16:
            add(self.opt['tca'], 2, lambda: self.touch(vRR))
        add(2, 2, co_read)
        add(3, 2, co_math)
        add(self.opt['s2t'], 2, only_g1(self.sig2_a))
        add(self.opt['s2t'] + 1, 2, only_g1(self.sig2_b))
        add(self.opt['s2t'] + 2, 2, h_addrs)
        add(4 * (G0 - 2) + 2, 2, poll2_issue)
        add(4 * (G0 - 1), 2, poll2_check)
        for sl in range(3):
            add(61 + sl, 4, ored_write(sl, 0))
            add(*((62 + sl, 0) if sl < 2 else (63, 3)), ored_write(sl, 1))
            add(*((62 + sl, 0) if sl < 2 else (63, 3)), ored_write(sl, 2))
        if self.opt['prio']:
            add(self.opt['pa'], 2, lambda: e('s_setprio 2'))
            add(self.opt['pb'], 2, lambda: e('s_setprio 1'))
            add(self.opt['pc'], 2, lambda: e('s_setprio 0'))

        def run(t, p):
            for f in side.get((t, p), []):
                f()

        def zero(sl):
            e(f'v_mfma_f32_32x32x16_bf16 {vr(vO[sl], 16)}, {vr(vD, 4)}, {vr(vD, 4)}, 0')

        e(f'v_mov_b32 v{vIDX}, 0xdddddddd')
        for i in range(4):
            e(f'v_mov_b32 v{vD + i}, 0')
        qk(0)
        self.stamp(9, 3)
        if self.opt['zm']:
            zero(0)
        for t in range(NT):
            it, sl = divmod(t, 4)
            ex(t, 0, 2)
            if t > 0:
                pv(t - 1, 1)
            run(t, 0)
            ex(t, 2, 5)
            if t + 1 < NT:
                qk(t + 1)
            run(t, 1)
            ex(t, 5, 10)
            pv(t, 0)
            run(t, 2)
            ex(t, 10, 13)
            if G0 <= it < G0 + 11:
                g2(it - G0, sl)
            if t < 3 and self.opt['zm']:
                zero(t + 1)
            run(t, 4)
            ex(t, 13, 16)
            run(t, 3)
            if t in (7, 31):
                self.stamp(7 if t == 7 else 8)
            if t in (3, 5, 7):
                self.stamp(10 + (t - 3) // 2, 3)
        pv(NT - 1, 1)
        run(NT, 0)

    def tail(self):
        e = self.e
        own = vO[3]
        R = vO[0]
        WO = vO[0]
        OFR = [vH[0], vH[1], ACA + 16, ACA + 24]
        PRE = X + 64
        vFW, vPW, vOA = FR, FR + 4, FR + 9
        vFRd, vPR = vK[1], vRR
        HEADS = (1, 3, 5, 7, 0, 2, 4, 6)
        P2 = lambda b, i: vr(b + 2 * i, 2)

        def o_reduce(g):
            for i in range(3):
                e(f'ds_read_b32 v{R + 24 + i}, v{vRR + 3 + i} offset:{L_RING + 2304 * i + 2048}', f'or{i}')
            for i in range(3):
                o = L_RING + 2304 * i
                e(f'ds_read_b128 {vr(R + 8 * i, 4)}, v{vRR + i} offset:{o}', f'oa{i}')
                e(f'ds_read_b128 {vr(R + 8 * i + 4, 4)}, v{vRR + i} offset:{o + 1024}', f'oa{i}')
            if g == 0:
                for kk in range(2):
                    old(kk, f'o{kk}')
            e.wait(lg='or2')
            e(f'v_add_f32 v{R + 24}, v{R + 24}, v{R + 25}')
            e(f'v_add_f32 v{own + 8}, v{own + 8}, v{R + 26}')
            e(f'v_add_f32 v{own + 8}, v{own + 8}, v{R + 24}')
            e(f'v_subrev_u32 v{R + 24}, {(127 - 60) << 23}, v{own + 8}')
            e(f'v_cmp_lt_u32 vcc, {120 << 23}, v{R + 24}')
            e(f'v_fma_f32 v{R + 28}, v{own + 8}, v{vCO}, v{own + 8}')
            e(f'v_rcp_f32 v{R + 28}, v{R + 28}')
            for i in range(3):
                e.wait(lg=f'oa{i}')
                for r in range(4):
                    if g:
                        for h in range(2):
                            e(f'v_add_f32 v{own + 2 * r + h}, v{own + 2 * r + h}, v{R + 8 * i + 2 * r + h}')
                    else:
                        e(f'v_pk_add_f32 {P2(own, r)}, {P2(own, r)}, {P2(R + 8 * i, r)}')
            e('s_cbranch_vccnz Lsafe')
            e.label(f'Lsafe_done{g}')
            for r in range(8):
                e(f'v_mul_f32 v{own + r}, v{own + r}, v{R + 28}')
            for r in range(4):
                e(f'v_cvt_pk_bf16_f32 v{vK[0] + r}, v{own + 2 * r}, v{own + 2 * r + 1}')
            for r in range(4):
                e(f'v_min_u32 v{vK[0] + r}, -2, v{vK[0] + r}')
            e(f'buffer_store_dwordx4 {vr(vK[0], 4)}, v{vL16}, {srd(S_WS)}, s{sMO} offen sc1', 'ost')
            self.stamp(10)
            e(f's_lshr_b32 s{sT + 1}, s{sW}, 1')
            e(f's_lshl_b32 s{sT + 2}, s{sT + 1}, 14')
            e(f's_mul_i32 s{sT + 3}, s{sW}, {RINGW}')
            e(f's_sub_u32 s{sT + 2}, s{sT + 2}, s{sT + 3}')
            e(f's_add_u32 s{sT + 2}, s{sT + 2}, {L_WO}')
            e(f'v_and_b32 v{vP + 1}, 32, v0')
            e(f'v_lshlrev_b32 v{vP + 1}, 4, v{vP + 1}')
            e(f'v_sub_u32 v{vP + 1}, s{sT + 2}, v{vP + 1}')
            for jj in range(2):
                e(f'v_add_u32 v{vDR[jj]}, v{vP + 1}, v{vDR[jj]}')

        def old(kk, tag=None):
            for n in (2 * kk, 2 * kk + 1):
                e(f'buffer_load_dwordx4 {vr(OFR[kk] + 4 * (n & 1), 4)}, v{vL16}, {srd(S_WS)}, s{sO[HEADS[n] >> 2]} offen offset:{1024 * (HEADS[n] & 3)} sc1', tag)

        def wo_reads(n):
            for jj in range(2):
                for rd in range(2):
                    e(f'ds_read_b64_tr_b16 {vr(WO + 8 * n + 4 * jj + 2 * rd, 2)}, v{vDR[jj]} offset:{2048 * HEADS[n] + 1024 * rd}', f'wor{n}')

        def addrs(g, part=3):
            t0, t1 = vK[1] + 2, vK[1] + 3
            if part & 1:
                e(f'v_and_b32 v{vPW}, 31, v0')
                e(f'v_lshrrev_b32 v{t0}, 5, v0')
                e(f'v_and_b32 v{t1}, 7, v0')
                e(f'v_xor_b32 v{t0}, v{t0}, v{t1}')
                e(f'v_lshlrev_b32 v{t0}, 4, v{t0}')
                e(f'v_lshl_add_u32 v{vPW}, v{vPW}, 8, v{t0}')
                e(f's_lshl_b32 s{sT}, s{sTT}, 13')
                e(f's_add_u32 s{sT}, s{sT}, {98304 * g}')
                e(f'v_add_u32 v{vPW}, s{sT}, v{vPW}')
                for q in range(1, 4):
                    e(f'v_xor_b32 v{vPW + q}, {32 * q}, v{vPW}')
            if not part & 2:
                return
            e(f'v_lshrrev_b32 v{t0}, 3, v0')
            e(f'v_lshlrev_b32 v{vOA}, 4, v{t1}')
            e(f'v_lshl_add_u32 v{vOA}, v{t0}, 10, v{vOA}')
            e(f'v_lshlrev_b32 v{t1}, 1, v{t1}')
            e(f'v_xor_b32 v{t1}, v{t1}, v{t0}')
            e(f'v_lshlrev_b32 v{t1}, 4, v{t1}')
            e(f'v_lshl_add_u32 v{t1}, v{t0}, 8, v{t1}')
            e(f's_and_b32 s{sT + 2}, s{sW}, 1')
            e(f's_lshl_b32 s{sT + 2}, s{sT + 2}, 2')
            e(f's_add_u32 s{sT + 2}, s{sT + 2}, s{sT + 1}')
            e(f's_lshl_b32 s{sT + 3}, s{sT + 2}, 11')
            e(f'v_add_u32 v{vFRd}, s{sT + 3}, v{t1}')
            e(f'v_xor_b32 v{vFRd + 1}, 16, v{vFRd}')
            for h in range(2):
                e(f'v_xor_b32 v{vPR + h}, {8192 + L_PRE1}, v{vFRd + h}')
            for p in range(2):
                for h in range(2):
                    e(f'ds_read_b128 {vr(PRE + 8 * p + 4 * h, 4)}, v{vPR + h} offset:{16384 * p}', 'pr')
            for h in range(2):
                e(f'v_xor_b32 v{vPR + 2 + h}, 8192, v{vFRd + h}')
                e(f'v_add_u32 v{vPR + 4 + h}, 98304, v{vFRd + h}')
            e(f's_lshl_b32 s{sT}, s{sRB}, 3')
            e(f's_add_u32 s{sT}, s{sT}, s{sT + 2}')
            e(f's_lshl_b32 s{sT}, s{sT}, 13')
            e(f's_lshl_b32 s{sT + 1}, s{sCB}, 7')
            e(f's_add_u32 s{sT}, s{sT}, s{sT + 1}')

        def slab_write(g, i, n):
            jj, q = divmod(n, 4)
            e(f'ds_write_b128 v{vPW + q}, {vr(vG[2 * i + jj] + 4 * q, 4)} offset:{32768 * (i ^ g ^ 1) + 128 * jj}', 'sw')

        def mf(jj, n):
            acc = vr(vG[jj], 16)
            e(f'v_mfma_f32_32x32x16_bf16 {acc}, {vr(WO + 8 * n + 4 * jj, 4)}, {vr(OFR[n >> 1] + 4 * (n & 1), 4)}, {acc}')

        def mm(kk, between=None, jjs=(0, 1)):
            e.wait(vm=f'o{kk}')

            def ck():
                b = OFR[kk]
                e(f'v_max3_u32 v{vP}, v{b}, v{b + 1}, v{b + 2}')
                e(f'v_max3_u32 v{vP + 1}, v{b + 3}, v{b + 4}, v{b + 5}')
                e(f'v_max3_u32 v{vP}, v{vP}, v{b + 6}, v{b + 7}')
                e(f'v_max_u32 v{vP}, v{vP}, v{vP + 1}')
                e(f'v_cmp_eq_u32 vcc, -1, v{vP}')
            self.spin(f'o{kk}', lambda: [old(q) for q in range(kk, (kk | 1) + 1)], ck, self.opt['sl3'])
            for i, (jj, n) in enumerate(((0, 2 * kk), (0, 2 * kk + 1), (1, 2 * kk), (1, 2 * kk + 1))):
                if jj in jjs:
                    mf(jj, n)
                if between:
                    between(i)

        self.stamp(9)
        e(f's_cmp_lg_u32 s{sG}, 0')
        e('s_setprio 3')
        e.wait(vm='wo', lg='all')
        e('s_cbranch_scc1 Ltail1')
        snap = e.snapshot()
        self.tail_blocks.append(self.safe_softmax)

        def first_group():
            e.restore(snap)
            e.label('Ltail1')
            e(f'v_mov_b32 v{vPA}, {L_CNT}')
            e(f'v_mov_b32 v{vP}, 1')
            e('s_mov_b64 exec, 1')
            e(f'ds_add_u32 v{vPA}, v{vP} offset:4')
            e('s_mov_b64 exec, -1')

            def ld():
                e(f'ds_read_b64 {vr(vP, 2)}, v{vPA}')
                e('s_waitcnt lgkmcnt(0)')

            def ck():
                e(f'v_add_u32 v{vP}, v{vP}, v{vP + 1}')
                e(f'v_cmp_ne_u32 vcc, 12, v{vP}')
            ld()
            for p in e.paths:
                p.lg = []
            self.spin('g1', ld, ck, 1)
            o_reduce(1)
            addrs(1, 1)
            e('s_setprio 0')
            for n in range(8):
                wo_reads(n)
                slab_write(1, 1, n)
            e.wait(lg='all')
            e('s_barrier')
            for kk in range(4 if self.opt['ol'] == 0 else 2):
                old(kk, f'o{kk}')
            addrs(1, 2)
            e('s_barrier')
            self.stamp(11)
            finish(1, self.opt['ol'])
            e('s_branch Ltail2')
        self.tail_blocks.insert(0, first_group)

        def finish(g, late, k0=0):
            def pre_add(i):
                e.wait(lg='pr')
                for r in range(2 * i, 2 * i + 2):
                    e(f'v_add_f32 v{PRE + r}, v{PRE + r}, v{PRE + 8 + r}')
            for kk in range(k0, 4):
                if late == kk + 1:
                    for q in range(2, 4):
                        old(q, f'o{q}')
                e.wait(lg=f'wor{2 * kk + 1}')
                mm(kk, pre_add if kk == 3 else None)
            self.stamp(12)
            for n in range(8):
                slab_write(g, 0, n)
            e.wait(lg='all')

        e('s_barrier')
        o_reduce(0)
        YL = self.opt['yl']
        lateld = lambda: [old(q, f'o{q}') for q in range(2, 4)]
        if YL == 0:
            lateld()
        for n in range(4):
            wo_reads(n)
        addrs(0, 1)
        e('s_barrier')
        for kk in range(2):
            if YL == kk + 1:
                lateld()
            e.wait(lg=f'wor{2 * kk + 1}')

            def lds_work(i, kk=kk):
                slab_write(0, 1, 4 * kk + i)
                if i % 2:
                    wo_reads(4 + 2 * kk + i // 2)
            mm(kk, lds_work)
        if YL == 3:
            lateld()
        addrs(0, 2)
        self.stamp(11)
        finish(0, 0, 2)
        e.label('Ltail2')
        e('s_barrier')
        B = X
        src = [(vPR + 2, 0), (vPR + 2, 16384), (vPR + 4, 0), (vPR + 4, 16384), (vFRd, 32768), (vFRd, 49152)]
        for p, (va, off) in enumerate(src):
            for h in range(2):
                e(f'ds_read_b128 {vr(B + 8 * p + 4 * h, 4)}, v{va + h} offset:{off}', f'fr{p}')
        for p in range(6):
            e.wait(lg=f'fr{p}')
            for r in range(4):
                e(f'v_pk_add_f32 {P2(PRE, r)}, {P2(PRE, r)}, {P2(B + 8 * p, r)}')
        for r in range(4):
            e(f'v_cvt_pk_bf16_f32 v{B + r}, v{PRE + 2 * r}, v{PRE + 2 * r + 1}')
        e(f'buffer_store_dwordx4 {vr(B, 4)}, v{vOA}, {srd(S_OUT)}, s{sT} offen sc1')
        if 'probe' in self.opt:
            e.wait(vm='all')
            self.stamp(13)
            if self.opt.get('xcc') is not None:
                e(f's_getreg_b32 s{sT}, hwreg(HW_REG_XCC_ID, 0, 4)')
                e(f's_and_b32 s{sT}, s{sT}, {self.opt["xcc"]}')
                e(f's_mul_i32 s{sT}, s{sT}, 300')
                e('s_cmp_eq_u32 s2, 0')
                e(f's_cselect_b32 s{sT}, s{sT}, 0')
                e(f's_add_u32 s{sSTAMP}, s{sSTAMP}, s{sT}')
            e.label('Lprobe')
            e('s_sleep 1')
            e(f's_memrealtime s[{sSTMP}:{sSTMP + 1}]')
            e('s_waitcnt lgkmcnt(0)')
            e(f's_sub_u32 s{sSTMP}, s{sSTMP}, s{sNON if self.opt["probe"] == 99 else sSTAMP}')
            e(f's_cmp_lt_u32 s{sSTMP}, 6000')
            e('s_cbranch_scc1 Lprobe')
        if self.stamps:
            e.wait(vm='all')
            self.stamp(13)
            e(f's_lshl_b32 s{sT}, s2, 3')
            e(f's_add_u32 s{sT}, s{sT}, s{sW}')
            e(f's_lshl_b32 s{sT}, s{sT}, 6')
            e(f's_add_u32 s{sT}, s{sT}, {WS_ST}')
            e('s_waitcnt lgkmcnt(0)')
            en = [i for i in range(14) if (self.opt.get('smask', 0x2001) | 0x2001) >> i & 1]
            for k, i in enumerate(en):
                e(f'v_mov_b32 v{B + 8 + i}, s{sSTAMP + 2 * k}')
            e(f's_getreg_b32 s{sT + 1}, hwreg(HW_REG_XCC_ID, 0, 4)')
            e(f'v_mov_b32 v{B + 8 + 15}, s{sT + 1}')
            e('s_mov_b64 exec, 1')
            for i in range(4):
                e(f'buffer_store_dwordx4 {vr(B + 8 + 4 * i, 4)}, off, {srd(S_WS)}, s{sT} offset:{16 * i}')
        e.label('Lexit')
        e('s_endpgm')

    def safe_softmax(self):
        e = self.e
        e.paths = [p for p in Emitter().paths]
        own = vO[3]
        M = vO[0]
        S = vS[0]
        e.label('Lsafe')
        e(f's_and_b32 s{sT + 2}, s{sKVB}, {0xffffffff ^ (3 << 15)}')
        e(f's_mov_b32 s{sT + 3}, s{sT + 2}')
        e(f's_mov_b32 s{sT + 4}, 64')
        e(f'v_mov_b32 v{M}, 0xff800000')
        e.label('Lsafe1')
        e(f'buffer_load_dwordx4 {vr(vK[0], 4)}, v{vL16}, {srd(S_WS)}, s{sT + 3} offen sc1')
        e(f's_add_u32 s{sT + 3}, s{sT + 3}, 2048')
        e('s_waitcnt vmcnt(0)')
        e(f'v_mfma_f32_32x32x16_bf16 {vr(S, 16)}, {vr(vK[0], 4)}, {vr(vQ[3], 4)}, 0')
        for i in range(0, 16, 2):
            e(f'v_max3_f32 v{M}, v{M}, v{S + i}, v{S + i + 1}')
        e(f's_sub_u32 s{sT + 4}, s{sT + 4}, 1')
        e(f's_cmp_lg_u32 s{sT + 4}, 0')
        e('s_cbranch_scc1 Lsafe1')
        e(f'v_mov_b32 v{M + 1}, v{M}')
        e(f'v_permlane32_swap_b32 v{M}, v{M + 1}')
        e(f'v_max_f32 v{M}, v{M}, v{M + 1}')
        e(f'v_sub_f32 v{M}, 0, v{M}')
        for i in range(1, 16):
            e(f'v_mov_b32 v{M + i}, v{M}')
        for i in range(16):
            e(f'v_mov_b32 v{own + i}, 0')
        e(f's_mov_b32 s{sT + 3}, s{sT + 2}')
        e(f's_mov_b32 s{sT + 4}, 64')
        e.label('Lsafe2')
        e(f'buffer_load_dwordx4 {vr(vK[0], 4)}, v{vL16}, {srd(S_WS)}, s{sT + 3} offen sc1')
        e(f's_mov_b64 exec, s[{sVM}:{sVM + 1}]')
        e(f'buffer_load_dwordx4 {vr(vV[0], 4)}, v{vVA}, {srd(S_WS)}, s{sT + 3} offen offset:1024 sc1')
        e(f'buffer_load_dwordx4 {vr(vV[0] + 4, 4)}, v{vVA}, {srd(S_WS)}, s{sT + 3} offen offset:1536 sc1')
        e('s_mov_b64 exec, -1')
        e(f's_add_u32 s{sT + 3}, s{sT + 3}, 2048')
        e('s_waitcnt vmcnt(0)')
        e(f'v_mfma_f32_32x32x16_bf16 {vr(S, 16)}, {vr(vK[0], 4)}, {vr(vQ[3], 4)}, {vr(M, 16)}')
        for i in range(16):
            e(f'v_exp_f32 v{S + i}, v{S + i}')
        for hi in range(2):
            e(f'v_smfmac_f32_32x32x32_bf16 {vr(own, 16)}, {vr(vV[0] + 4 * hi, 4)}, {vr(S + 8 * hi, 8)}, v{vIDX}')
        e(f's_sub_u32 s{sT + 4}, s{sT + 4}, 1')
        e(f's_cmp_lg_u32 s{sT + 4}, 0')
        e('s_cbranch_scc1 Lsafe2')
        e('s_nop 15')
        e(f'v_fma_f32 v{vO[0] + 28}, v{own + 8}, v{vCO}, v{own + 8}')
        e(f'v_rcp_f32 v{vO[0] + 28}, v{vO[0] + 28}')
        e(f's_cmp_lg_u32 s{sG}, 0')
        e('s_cbranch_scc1 Lsafe_done1')
        e('s_branch Lsafe_done0')

    def build(self):
        e = self.e
        self.prologue()
        e.drop = (None, ('v_mfma',), ('v_mfma', 'ds_read_b64_tr'), ('ds_read_b64_tr',))[self.opt.get('x_drop', 0)]
        snap = e.snapshot()
        e.label('Lload')
        self.phase_a_loader()
        self.phase_f(1, 3)
        e('s_branch Lffn')
        ends = e.snapshot()
        cends = []
        for ty in (0, 1):
            e.restore(snap)
            e.label(f'Lcomp{ty}')
            e.comment('---- compute waves: four heads of ' + 'kv'[ty] + ' and the gate logit')
            self.phase_a_compute(ty)
            if ty == 0:
                e('s_branch Lpack')
            cends += e.snapshot()
        e.paths = cends
        e.label('Lpack')
        e(f's_mul_i32 s{sT}, s{sJ}, 43691')
        e(f's_lshr_b32 s{sT}, s{sT}, 17')
        e(f's_mul_i32 s{sT}, s{sT}, 3')
        for i in range(4):
            self.pack8(ACA + 8 * i, ACA + 4 * i)
            if i < self.opt['qe']:
                self.kv_store(i)
        self.z_write()
        e(f's_cmp_lt_u32 s{sJU}, 6' if self.opt['um'] else f's_cmp_eq_u32 s{sT}, s{sJ}')
        e('s_cbranch_scc1 Lsix')
        snap = e.snapshot()
        for NC in (2, 3):
            e.restore(snap)
            if NC == 3:
                e.label('Lsix')
            e('s_barrier')
            self.stamp(4)
            self.phase_f(0, NC)
            if NC == 2:
                e('s_branch Lffn')
            ends += e.snapshot()
        e.paths = ends
        e.label('Lffn')
        e.drop = None
        self.attn_loads_late()
        self.stamp(6)
        self.attention()
        self.tail()
        i = 0
        while i < len(self.tail_blocks):
            self.tail_blocks[i]()
            i += 1
        e.label('Lcode_end')
        return self.wrap()

    def wrap(self):
        head = open('gated_mix__softmax_full_mha__glu_gated_geglu__prompt.s.ref').read().split('; Override')[0]
        return head + f"""; @launch grid=(256,1,1) block=(512,1,1) lds={LDS_BYTES}
{DOC}.amdgcn_target "amdgcn-amd-amdhsa--gfx950"
.text
.globl {KNAME}
.p2align 8
.type {KNAME},@function
{KNAME}:
{self.e.text()}
.section .rodata,"a"
.p2align 6
.amdhsa_kernel {KNAME}
  .amdhsa_next_free_vgpr 256
  .amdhsa_next_free_sgpr 102
  .amdhsa_accum_offset 256
  .amdhsa_group_segment_fixed_size 0
  .amdhsa_kernarg_size 88
  .amdhsa_user_sgpr_count 2
  .amdhsa_user_sgpr_kernarg_segment_ptr 1
  .amdhsa_system_sgpr_workgroup_id_x 1
.end_amdhsa_kernel
"""


if __name__ == '__main__':
    out = sys.argv[1]
    stamps = sys.argv[2] if len(sys.argv) > 2 and sys.argv[2] in ('rt', 'cy') else False
    opt = {}
    for a in sys.argv[2:]:
        if '=' in a:
            k, v = a.split('=')
            opt[k] = int(v, 0)
    g = Gen(stamps=stamps, opt=opt)
    open(out, 'w').write(g.build())
    print('nops inserted:', g.e.nops, 'lines:', len(g.e.lines))
```

```python
import sys, math, struct
from asmlib import Emitter, Win

KNAME = 'gated_mix__softmax_full_mha__glu_gated_geglu__prompt_kernel'

WS_Q = 0
WS_KV = 2 << 20
WS_O = 6 << 20
WS_F1 = 8 << 20
WS_F2 = WS_F1 + 32768
WS_ST = WS_F1 + 65536
WS_H = 9 << 20
HBLK = 86 * 2048
WS_END = 15 << 20

L_GW = 0
L_Z = 1024
SLOT0 = 4096
UPOFF = 12288
QOFF = 24576
L_QX = 147456
L_RING = 4096
RINGW = 7168
L_WO = 65536
L_PRE1 = 131072
L_CNT = 2048
LDS_BYTES = 163840

S_X, S_WQ, S_WF, S_WS, S_H, S_WD, S_WO, S_OUT, S_DBG, S_GW = [4 * i + 4 for i in range(10)]
S_WG = 80
sW, sTT, sG, sJ, sTB, sRB, sCB, sUS = range(44, 52)
sXO, sWO, sFO, sMX, sMW, sMF = range(52, 58)
sNON = 58
sKV, sKVB, sKVI, sHO, sDO, sMD = range(60, 66)
sVM = 66
sT = 68
sGC = 76
sQX = [40, 41, 42, 43]
sQW = 78
sXO2 = 79
sSPIN = 84
sMO = 85
sFO2 = 86
sJU = 87
sMG = 3
sO = [4, 5]
sR = 73
sE = [4, 5, 6, 7]
sSTMP = 74
sSTAMP = 88


def region(s):
    return SLOT0 + 28672 * (s % 5)


def srd(b):
    return f's[{b}:{b + 3}]'


def vr(b, n):
    return f'v[{b}:{b + n - 1}]' if n > 1 else f'v{b}'


def fbits(x):
    return '0x%08x' % struct.unpack('<I', struct.pack('<f', x))[0]


vL16 = 1
vXD = [2, 3]
vWD = 4
vFD = 5
vXR = [6, 7]
vWR = [8, 2]
vFR = [9, 10, 11]
FR = 16
NFR = 5
ACA = 36
ACF = 68
vK = [116, 120]
vCH, vIDX, vVA = 124, 126, 127
vQR = 126
QA = ACA + 16
X = 128
vO = [X + 16 * i for i in range(4)]
vQ = [X + 64 + 4 * i for i in range(4)]
vV = [ACA, ACA + 8]
vS = [ACA + 16, X + 80]
vG = [ACF, ACF + 16, ACF + 32, X + 96]
vH = [X + 112, X + 120]
vD = FR
vCO = FR + 8
vDD = [2, 3]
vDR = [12, 13]
vP = 14
vPA = 6
vRW = [7, 8]
vHA = [9, 10]
vKA = 124
vRR = FR + 10

LOG2E = 1.4426950408889634
QSCALE = 0.25 * LOG2E
GC0 = -2.0 * LOG2E * math.sqrt(2.0 / math.pi)
GC1 = GC0 * 0.044715
SPIN = 400000
FL = ('', ' sc1', ' nt', ' sc1 nt')

DOC = """;
;
;   1. k/v projection   x and 64 columns of w_k (even j) or w_v (odd j) stream through an LDS ring by LDS-DMA
;   2. q + gate/up      q of heads 2j, 2j+1 (scaled by log2(e)/4) and 5 or 6 units of 16 gate/up columns;
;   3. attention        wave (kq, head) runs 4 query tiles against a quarter of the keys:
;                       S^T = K Q^T (v_mfma 32x32x16), P = v_exp_f32(S), O^T += V^T P^T with v_smfmac 32x32x32, whose
;
; [2^-60, 2^60] (or is not finite) the query tile is recomputed in two passes with the true row maximum (Lsafe).
;
"""


class Gen:
    def __init__(self, stamps=False, opt=None):
        self.e = Emitter()
        self.stamps = stamps
        self.nst = 0
        self.opt = dict(g2start=5, prio=True, ahead=12, span=12, fah=2, omf=0, lfirst=3, as2=6, ahead2=8, tlb=0, bt=0, rx=3, btm=999, btx=0, tch=200, tca=8, tcw=7, dsplit=1, ys=1, fw=0, fx=0, fh=1, p1i=74, p1c=83, gsp=10, g0=0, fk=2, gk=3, lpre=60, cpre=20, lfk=20, llast=2, lsp2=1,
                        pa=7, pb=50, pc=200, ol=3, yl=3, woi=8, hs=7, um=0xc084, qw=12, vs=11, qe=0, q0=8, qsp=6, om=-2, s2t=5, rot=4, rj=0, zm=1, hl=0, hsp=1,
                        fs=7, lp=1, eb=1, sl1=4, sl2=8, sl3=2, lsp=3)
        if opt:
            self.opt.update(opt)
        self.tail_blocks = []

    def stamp(self, idx, sset=0):
        e = self.e
        if self.opt.get('sset') == 4:
            if 7 <= idx <= 9 and sset != 4:
                return
        elif 7 <= idx <= 12 and sset != self.opt.get('sset', 0):
            return
        if self.opt.get('probe') == idx:
            e(f's_memrealtime s[{sSTAMP}:{sSTAMP + 1}]')
            e('s_waitcnt lgkmcnt(0)')
            for p in e.paths:
                p.lg = []
        if not self.stamps or not (self.opt.get('smask', 0x2001) | 0x2001) >> idx & 1:
            return
        en = [i for i in range(14) if (self.opt.get('smask', 0x2001) | 0x2001) >> i & 1]
        assert len(en) <= 7
        r = sSTAMP + 2 * en.index(idx)
        e(f"{'s_memtime' if self.stamps == 'cy' else 's_memrealtime'} s[{r}:{r + 1}]")

    def dma_list(self, s):
        e = self.e
        slot = region(s)
        out = []
        tag = f'st{s}'

        def mk(m0s, m0c, va, rs, so, imm=0, pre=(), tag=tag):
            def f(part=3):
                if part & 1:
                    e(f's_add_u32 m0, s{m0s}, {m0c - imm}')
                    for p in pre:
                        e(p)
                if part & 2:
                    e(f'buffer_load_dwordx4 v{va}, {srd(rs)}, s{so} offen' + (f' offset:{imm}' if imm else '') + (FL[self.opt['fx']] if rs == S_X else '') + ' lds', tag)
            f.dma = True
            out.append(f)
        t = sT + 6

        def step(so, n):
            if s % 8 == 0:
                return ()
            if s % (8 // self.opt['rot']) and not self.opt['rx'] & 2:
                return [f's_add_u32 s{so}, s{so}, {n}']
            return [f's_cmp_eq_u32 s{sR}, {-s % 8}', f's_cselect_b32 s{t}, -7, 1', f's_mul_i32 s{t}, s{t}, {n}', f's_add_u32 s{so}, s{so}, s{t}']
        if s < 8:
            for i in range(4):
                mk(sMX, slot + i * 1024, vXD[i % 2], S_X, sXO if i < 2 else sXO2,
                   pre=step(sXO, 128) if i == 0 else ([f's_add_u32 s{sXO2}, s{sXO}, 16384'] if i == 1 else ()))
            for i in range(2):
                mk(sMW, slot + 16384 + i * 1024, vWD, S_WQ, sWO, imm=64 * i, pre=step(sWO, 64 * 3072) if i == 0 else ())
        else:
            mk(sMF, slot + QOFF, vWD, S_WQ, sQW, pre=step(sQW, 64 * 3072))
            for h in range(2):
                for i in range(3):
                    mk(sMG, slot + h * 6144 + i * 1024, vFD, S_WF, sFO2 if h else sFO, imm=64 * i, tag=tag + 'b' * h,
                       pre=step(sFO, 64 * 2752) if h + i == 0 else ([f's_add_u32 s{sFO2}, s{sFO}, {32 * 2752}'] if (h, i) == (0, 1) else ()))
        return out

    def prologue(self):
        e = self.e
        self.stamp(0)
        e('s_cmp_ge_u32 s2, 256')
        e('s_cbranch_scc1 Lexit')
        e(f's_load_dwordx2 s[{S_X}:{S_X + 1}], s[0:1], 0')
        e(f's_load_dwordx2 s[{S_WQ}:{S_WQ + 1}], s[0:1], 8')
        e(f's_getpc_b64 s[{sT}:{sT + 1}]')
        e.label('Lpfbase')
        e(f's_lshr_b32 s{sT + 2}, s2, 3')
        e(f's_lshl_b32 s{sT + 2}, s{sT + 2}, 11')
        e(f'v_lshl_add_u32 v16, v0, 2, s{sT + 2}')
        e('v_min_u32 v16, Lcode_end-Lpfbase-4, v16')
        e('v_lshrrev_b32 v2, 6, v0')
        e('s_mov_b32 exec_lo, 1')
        e('s_mov_b32 exec_hi, 1')
        e(f'global_load_dword v{vK[1]}, v16, s[{sT}:{sT + 1}]', 'pf')
        e('s_mov_b64 exec, -1')
        e(f'v_readfirstlane_b32 s{sW}, v2')
        e('v_and_b32 v0, 63, v0')
        e(f's_xor_b32 s{sW}, s{sW}, 4')
        e(f's_and_b32 s{sTT}, s{sW}, 3')
        e(f's_lshr_b32 s{sG}, s{sW}, 2')
        e('s_cbranch_scc1 Lload')
        e('s_bitcmp1_b32 s2, 3')
        e('s_cbranch_scc1 Lcomp1')
        e('s_branch Lcomp0')

    def ids_tb(self):
        e = self.e
        R = self.opt['rot']
        e(f's_and_b32 s{sTB}, s2, 4')
        e(f's_lshl_b32 s{sTB}, s{sTB}, 1')
        e(f's_lshr_b32 s{sT + 6}, s2, 5')
        e(f's_add_u32 s{sTB}, s{sTB}, s{sT + 6}')
        RX = self.opt['rx']
        if RX & 1:
            e(f's_mul_i32 s{sR}, s2, {R // 4}')
            e(f's_add_u32 s{sR}, s{sR}, s{sTB}')
        e(f's_and_b32 s{sR}, s{sR if RX & 1 else sTB}, {R - 1}')
        e(f's_mul_i32 s{sR}, s{sR}, {8 // R}')
        if RX & 2:
            e(f's_lshr_b32 s{sT + 6}, s{sTB}, 3')
            e(f's_add_u32 s{sR}, s{sR}, s{sT + 6}')

    def more_args(self, g):
        e = self.e
        lst = [(S_WG, 32), (S_WF, 40)] if g else [(S_GW, 56)]
        for b, off in lst + [(S_DBG, 72), (S_WS, 80), (S_H, 80), (S_WD, 48), (S_WO, 16), (S_OUT, 64)]:
            e(f's_load_dwordx2 s[{b}:{b + 1}], s[0:1], {off}')
        e(f'v_lshlrev_b32 v{vL16}, 4, v0')

    def ids_j(self):
        e = self.e
        e(f's_and_b32 s{sJ}, s2, 3')
        e(f's_lshl_b32 s{sJ}, s{sJ}, 2')
        e(f's_bfe_u32 s{sT + 6}, s2, 0x20003')
        e(f's_add_u32 s{sJ}, s{sJ}, s{sT + 6}')

    def quad_rows(self, dst, stride, t):
        e = self.e
        e(f'v_lshrrev_b32 v{t}, 4, v0')
        e(f'v_and_b32 v{t}, 2, v{t}')
        e(f'v_xor_b32 v{t}, v{t}, v0')
        e(f'v_and_b32 v{t}, 3, v{t}')
        e(f'v_lshrrev_b32 v{dst}, 2, v0')
        e(f'v_mul_u32_u24 v{dst}, {stride}, v{dst}')
        e(f'v_lshl_add_u32 v{dst}, v{t}, 4, v{dst}')

    def tr_base(self, dst, gstride, t):
        e = self.e
        e(f'v_lshrrev_b32 v{dst}, 5, v0')
        e(f'v_mul_u32_u24 v{dst}, {gstride}, v{dst}')
        e(f'v_bfe_u32 v{t}, v0, 4, 1')
        e(f'v_mul_u32_u24 v{t}, {512 + 32}, v{t}')
        e(f'v_add_u32 v{dst}, v{dst}, v{t}')
        e(f'v_bfe_u32 v{t}, v0, 2, 2')
        e(f'v_lshl_add_u32 v{dst}, v{t}, 6, v{dst}')
        e(f'v_and_b32 v{t}, 3, v0')
        e(f'v_lshl_add_u32 v{dst}, v{t}, 3, v{dst}')

    def srd_consts(self, lst):
        for b, n in lst:
            self.e(f's_mov_b32 s{b + 2}, {n}')
            self.e(f's_mov_b32 s{b + 3}, 0x20000')

    def x_read_addrs(self):
        e = self.e
        e('v_and_b32 v16, 15, v0')
        e(f's_lshl_b32 s{sT + 6}, s{sTT}, 12')
        e('v_lshrrev_b32 v17, 4, v0')
        e('v_lshrrev_b32 v18, 1, v16')
        e('v_xor_b32 v18, v18, v17')
        e('v_lshlrev_b32 v18, 4, v18')
        e('v_lshl_add_u32 v18, v16, 7, v18')
        e(f'v_add_u32 v{vXR[0]}, s{sT + 6}, v18')
        e(f'v_xor_b32 v{vXR[1]}, 64, v{vXR[0]}')

    def setup2(self, g, ty):
        e = self.e
        t = sT
        self.srd_consts(([(S_DBG, 256), (S_WF, 512 * 2752)] if g else []) +
                        [(S_WS, WS_END), (S_H, HBLK), (S_WD, 1376 * 1024), (S_WO, 512 * 1024), (S_OUT, 2048 * 1024)])
        if self.opt['um']:
            e(f's_and_b32 s{t}, s{sJ}, 12')
            e(f's_lshr_b32 s{t}, {self.opt["um"]}, s{t}')
            e(f's_and_b32 s{t}, s{t}, 12')
            e(f's_and_b32 s{sJU}, s{sJ}, 3')
            e(f's_add_u32 s{sJU}, s{sJU}, s{t}')
            e(f's_min_u32 s{t}, s{sJU}, 6')
            e(f's_mul_i32 s{sUS}, s{sJU}, 5')
            e(f's_add_u32 s{sUS}, s{sUS}, s{t}')
        else:
            e(f's_lshl_b32 s{sUS}, s{sJ}, 4')
            e(f's_add_u32 s{sUS}, s{sUS}, 2')
            e(f's_mul_i32 s{sUS}, s{sUS}, 43691')
            e(f's_lshr_b32 s{sUS}, s{sUS}, 17')
        if g:
            e(f's_lshl_b32 s{t + 1}, s{sR}, 2')
            e(f's_add_u32 s{t + 1}, s{t + 1}, s{sTT}')
            e(f's_cmp_lt_u32 s{sTT}, 2\n    s_cselect_b32 s{S_WF}, s{S_WG}, s{S_WF}\n    s_cselect_b32 s{S_WF + 1}, s{S_WG + 1}, s{S_WF + 1}')
            e(f's_and_b32 s{sFO}, s{t + 1}, -3')
            e(f's_mul_i32 s{sFO}, s{sFO}, {16 * 2752}')
            e(f's_lshr_b32 s{t}, s{sUS}, 1')
            e(f's_lshl_b32 s{t}, s{t}, 6')
            e(f's_add_u32 s{sFO}, s{sFO}, s{t}')
            e(f's_mul_i32 s{sQW}, s{t + 1}, {16 * 3072}')
            e(f's_lshl_b32 s{t}, s{sJ}, 6')
            e(f's_add_u32 s{sQW}, s{sQW}, s{t}')
            e(f's_and_b32 s{sMG}, s{sTT}, 2')
            e(f's_add_u32 s{sMG}, s{sMG}, s{sTT}')
            e(f's_mul_i32 s{sMG}, s{sMG}, 3072')
            e(f's_lshl_b32 s{sMF}, s{sTT}, 10')
            self.quad_rows(vFD, 2752, vP)
        first = 0 if g else 3
        self.tr_base(vP + 1, 3072, vP)
        for c in range(3):
            e(f's_and_b32 s{t}, s{sUS}, 1')
            e(f's_add_u32 s{t}, s{t}, {first + c}')
            e(f's_lshr_b32 s{t + 1}, s{t}, 1')
            e(f's_lshl_b32 s{t + 1}, s{t + 1}, 10')
            e(f's_and_b32 s{t}, s{t}, 1')
            e(f's_lshl_b32 s{t}, s{t}, 5')
            e(f'v_xor_b32 v{vFR[c]}, s{t}, v{vP + 1}')
            e(f'v_add_u32 v{vFR[c]}, s{t + 1}, v{vFR[c]}')
        e(f'v_lshrrev_b32 v{vP}, 5, v0')
        e(f'v_lshlrev_b32 v{vVA}, 11, v{vP}')
        e(f'v_sub_u32 v{vQR}, v{vP + 1}, v{vVA}')
        if g:
            e(f'v_xor_b32 v{vQR}, 32, v{vQR}')
        e(f's_and_b32 s{sRB}, s2, 7')
        e(f's_xor_b32 s{sRB}, s{sRB}, 4')
        e(f's_lshl_b32 s{sRB}, s{sRB}, 2')
        e(f's_lshr_b32 s{t}, s2, 6')
        e(f's_add_u32 s{sRB}, s{sRB}, s{t}')
        e(f's_mul_i32 s{t}, s{sRB}, {HBLK}')
        e(f's_add_u32 s{t}, s{t}, {WS_H}')
        e(f's_add_u32 s{S_H}, s{S_H}, s{t}\n    s_addc_u32 s{S_H + 1}, s{S_H + 1}, 0')
        e(f's_bfe_u32 s{sCB}, s2, 0x30003')
        e(f's_mov_b32 s{sVM}, 0xffff')
        e(f's_mov_b32 s{sVM + 1}, 0xffff')
        e(f's_mov_b32 s{sGC}, {fbits(GC1)}')
        e(f's_mov_b32 s{sGC + 1}, s{sGC}')
        e(f'v_and_b32 v{vVA}, 15, v0')
        e(f'v_lshl_add_u32 v{vVA}, v{vP}, 4, v{vVA}')
        e(f'v_lshlrev_b32 v{vVA}, 4, v{vVA}')
        e(f's_lshl_b32 s{t}, s{sTB}, 2')
        e(f's_add_u32 s{t}, s{t}, s{sTT}')
        e(f's_lshr_b32 s{sHO}, s{t}, 1')
        e(f's_mul_i32 s{sHO}, s{sHO}, 86')
        e(f's_add_u32 s{sHO}, s{sHO}, s{sUS}')
        e(f's_lshl_b32 s{sHO}, s{sHO}, 1')
        e(f's_and_b32 s{t + 1}, s{t}, 1')
        e(f's_add_u32 s{sHO}, s{sHO}, s{t + 1}')
        e(f's_lshl_b32 s{sHO}, s{sHO}, 10')
        e(f's_add_u32 s{sHO}, s{sHO}, {WS_H + 2048 * first}')
        e(f's_lshl_b32 s{sMO}, s{t}, 4')
        e(f's_add_u32 s{sMO}, s{sMO}, s{sJ}')
        e(f's_lshl_b32 s{sMO}, s{sMO}, 11')
        e(f's_add_u32 s{sMO}, s{sMO}, {g * 1024 + WS_O}')
        if g == 0:
            e(f's_lshr_b32 s{sE[0]}, s{sJ}, 1')
            e(f's_lshl_b32 s{sE[0]}, s{sE[0]}, 8')
            e(f's_add_u32 s{sE[0]}, s{sE[0]}, s{t}')
            e(f's_lshl_b32 s{sE[0]}, s{sE[0]}, 11')
            e(f's_add_u32 s{sE[0]}, s{sE[0]}, {WS_KV + 1024 * ty}')
            for i in range(1, 4):
                e(f's_add_u32 s{sE[i]}, s{sE[0]}, {262144 * (i >> 1) + 512 * (i & 1) if ty else 131072 * i}')
            if ty:
                e(f'v_bfe_u32 v{vWD}, v0, 4, 1')
                e(f'v_lshl_add_u32 v{vWD}, v{vWD}, 17, v{vVA}')
            else:
                e(f'v_mov_b32 v{vWD}, v{vL16}')
        e(f's_lshl_b32 s{sKVB}, s{sJ}, 3')
        e(f's_add_u32 s{sKVB}, s{sKVB}, s{sW}')
        e(f's_lshl_b32 s{sKVB}, s{sKVB}, 15')
        e(f's_add_u32 s{sKVB}, s{sKVB}, {WS_KV}')
        e(f's_and_b32 s{sKVI}, s{sTB}, 7')
        e(f's_lshl_b32 s{sKVI}, s{sKVI}, 12')
        e(f's_and_b32 s{sKV}, s{sJ}, 14')
        e(f's_lshl_b32 s{sKV}, s{sKV}, 2')
        e(f's_add_u32 s{sKV}, s{sKV}, s{sTT}')
        e(f's_lshl_b32 s{sKV}, s{sKV}, {2 + self.opt["fs"]}')
        e(f's_add_u32 s{sKV}, s{sKV}, {WS_F1}')
        for i in range(4):
            e(f's_add_u32 s{sQX[i]}, s{sTT}, {1 + i}')
            e(f's_and_b32 s{sQX[i]}, s{sQX[i]}, 3')
            e(f's_lshl_b32 s{sQX[i]}, s{sQX[i]}, 10')
            e(f's_add_u32 s{sQX[i]}, s{sQX[i]}, {L_QX + 4096 * g}')
        e(f's_mul_i32 s{sMD}, s{sW}, {RINGW}')
        e(f's_mul_i32 s{sDO}, s{sW}, {11 * 16384}')
        e(f's_lshl_b32 s{t}, s{sCB}, 7')
        e(f's_add_u32 s{sDO}, s{sDO}, s{t}')
        e(f'v_bfe_u32 v{vDR[0]}, v0, 2, 2')
        e(f'v_lshl_add_u32 v{vDR[0]}, v{vP}, 3, v{vDR[0]}')
        e(f'v_lshlrev_b32 v{vDR[0]}, 7, v{vDR[0]}')
        e(f'v_bfe_u32 v{vP}, v0, 4, 1')
        e(f'v_lshl_add_u32 v{vDR[0]}, v{vP}, 5, v{vDR[0]}')
        e(f'v_bfe_u32 v{vP}, v0, 3, 1')
        e(f'v_lshl_add_u32 v{vDR[0]}, v{vP}, 6, v{vDR[0]}')
        e(f'v_and_b32 v{vP}, 3, v0')
        e(f'v_lshl_add_u32 v{vDR[0]}, v{vP}, 3, v{vDR[0]}')
        e(f'v_add_u32 v{vDR[0]}, s{sMD}, v{vDR[0]}')
        e(f'v_xor_b32 v{vDR[1]}, 64, v{vDR[0]}')

    def phase_a_loader(self):
        e = self.e
        o = self.opt
        seq = []
        bound = []
        last = 7 + o['fah']
        for s in range(last + 1):
            bound.append(len(seq))
            seq += self.dma_list(s)
        bound.append(len(seq))
        pos = 0

        def issue(upto):
            nonlocal pos
            while pos < min(upto, len(seq)):
                seq[pos]()
                pos += 1
        self.ids_tb()
        e('v_lshrrev_b32 v16, 3, v0')
        e('v_lshrrev_b32 v17, 4, v0')
        e('v_and_b32 v18, 7, v0')
        e('v_xor_b32 v18, v18, v17')
        e('v_lshlrev_b32 v18, 4, v18')
        e(f'v_lshl_add_u32 v{vXD[0]}, v16, 10, v18')
        e(f'v_xor_b32 v{vXD[1]}, 64, v{vXD[0]}')
        e(f'v_add_u32 v{vXD[1]}, 8192, v{vXD[1]}')
        e(f's_lshl_b32 s{sXO}, s{sTB}, 2')
        e(f's_add_u32 s{sXO}, s{sXO}, s{sTT}')
        e(f's_lshl_b32 s{sXO}, s{sXO}, 8')
        e(f's_add_u32 s{sXO}, s{sXO}, s{sR}')
        e(f's_lshl_b32 s{sXO}, s{sXO}, 7')
        e(f's_lshl_b32 s{sMX}, s{sTT}, 12')
        self.srd_consts(((S_X, 2048 * 1024),))
        e('s_waitcnt lgkmcnt(0)')
        self.stamp(1)
        issue(4)
        self.ids_j()
        self.srd_consts(((S_WQ, 512 * 3072),))
        self.quad_rows(vWD, 3072, 16)
        e(f's_lshr_b32 s{sT}, s{sJ}, 1')
        e(f's_and_b32 s{sT + 1}, s{sJ}, 1')
        e(f's_lshl_b32 s{sT + 1}, s{sT + 1}, 3')
        e(f's_add_u32 s{sT}, s{sT}, s{sT + 1}')
        e(f's_lshl_b32 s{sT}, s{sT}, 7')
        e(f's_lshl_b32 s{sWO}, s{sR}, 2')
        e(f's_add_u32 s{sWO}, s{sWO}, s{sTT}')
        e(f's_mul_i32 s{sWO}, s{sWO}, {16 * 3072}')
        e(f's_add_u32 s{sWO}, s{sWO}, s{sT}')
        e(f's_addk_i32 s{sWO}, 1024')
        e(f's_lshl_b32 s{sMW}, s{sTT}, 11')
        issue(6)
        self.more_args(1)
        issue(12)
        self.x_read_addrs()
        e('s_waitcnt lgkmcnt(0)')
        fill = self.split(lambda: self.setup2(1, 0)) + self.split(self.v_const)
        for _ in range(min(len(fill), o['lpre'])):
            fill.pop(0)()
        D = o['ahead']
        issue(bound[1] + D)
        wx = Win(e, vXR)
        for s in range(8):
            slot = region(s)
            e.wait(vm=f'st{s}', lg='all')
            e('s_barrier')
            if s in (0, 4):
                self.stamp(2 + s // 4)
            end = max(pos, min(bound[s + 2] + (D if s < o['as2'] else o['ahead2']), bound[min(max(s + 4, 5), last + 1)]))
            issue(min(end, pos + o['lfirst']))
            wx.ensure(slot, slot + 2048)
            for ks in range(2):
                n = 2 * s + ks
                for tg in range(2):
                    e(f'ds_read_b128 {vr(X + 8 * n + 4 * tg, 4)}, v{vXR[ks]} offset:{wx.off(slot + 2048 * tg)}', f'r{n}')
            if s == 6:
                e(f'buffer_load_dwordx2 v[{vK[0]}:{vK[0] + 1}], off, {srd(S_DBG)}, 0 sc1', 'non')

            work = [fill.pop(0) for _ in range(min(len(fill), o['lfk']))]
            gaps = max(1, end - pos - o['llast'] + 1)
            done = 0
            for k in range(gaps):
                if k:
                    issue(pos + 1)
                upto = len(work) * (k + 1) // gaps if o['lsp2'] else (len(work) if k == gaps - 1 else 0)
                while done < upto:
                    work[done]()
                    done += 1
            issue(end)
        assert not fill
        self.left = seq[pos:]
        e.wait(vm='st8' if o['hs'] >= 8 else 'st8b', lg='all')
        e('s_barrier')
        self.stamp(4)

    def pack8(self, src, dst):
        e = self.e
        for r in range(4):
            e(f'v_cvt_pk_bf16_f32 v{dst + r}, v{src + 2 * r}, v{src + 2 * r + 1}')
        for r in range(2):
            e(f'v_permlane16_swap_b32 v{dst + r}, v{dst + 2 + r}')

    def phase_a_compute(self, ty):
        e = self.e
        NC = 4
        self.more_args(0)
        if self.opt['tlb'] or self.opt['bt'] or self.opt['btm'] < 999:
            e(f's_load_dwordx4 s[{S_WG}:{S_WG + 3}], s[0:1], 32')
        self.ids_tb()
        self.ids_j()
        e(f's_memrealtime s[{sNON}:{sNON + 1}]')
        e('v_mov_b32 v16, 0')
        e(f'v_mov_b32 v17, {L_CNT}')
        e('ds_write2_b32 v17, v16, v16 offset0:0 offset1:1', 'z0')
        self.srd_consts(((S_DBG, 256), (S_GW, 1024)))
        ZA, GWB, vGA = ACF, ACF + 8, vXD[1]
        e(f's_lshl_b32 s{sT}, s{sR}, 7')
        e(f'v_add_u32 v{vP}, s{sT}, v{vL16}')
        e(f'v_and_b32 v{vP}, 1023, v{vP}')
        e(f'v_and_b32 v{vGA}, 48, v0')
        e(f's_mov_b32 m0, {L_GW}')
        self.x_read_addrs()
        self.tr_base(vWR[0], NC * 512, 16)
        e(f'v_xor_b32 v{vWR[1]}, 32, v{vWR[0]}')
        e('s_waitcnt lgkmcnt(0)')
        for p in e.paths:
            p.lg = []
        self.stamp(1)
        e(f'buffer_load_dwordx4 v{vP}, {srd(S_GW)}, 0 offen lds', 'gw')
        if self.opt['bt']:
            lab = e.newlabel('bt')
            e(f's_cmp_lg_u32 s{sTT}, 2')
            e(f's_cbranch_scc1 {lab}')
            snap = e.snapshot()
            for k, (b, n) in enumerate(((S_X, 64), (S_WQ, 48), (S_WG, 43), (S_WG + 2, 43), (S_WD, 43), (S_WO, 16))):
                if self.opt['bt'] >> k & 1:
                    e(f's_mul_i32 s{sT}, s2, {n * 128}')
                    e(f'v_lshl_add_u32 v16, v0, 7, s{sT}')
                    e(f's_bfm_b64 exec, {n}, 0' if n < 64 else 's_mov_b64 exec, -1')
                    e(f'global_load_dword v{vK[1] + 2}, v16, s[{b}:{b + 1}]', 'bt')
                    e('s_mov_b64 exec, -1')
            e.paths = e.paths + snap
            e.label(lab)
        if self.opt['tlb']:
            G = self.opt['tlb']
            lab = e.newlabel('tl')
            e(f's_cmp_lg_u32 s{sTT}, 3')
            e(f's_cbranch_scc1 {lab}')
            snap = e.snapshot()
            e(f'v_lshlrev_b32 v16, {G}, v0')
            e(f's_mov_b64 exec, {hex((1 << -(-(512 * 2752) >> G)) - 1)}')
            for k in range(2):
                e(f'global_load_dword v{vK[1] + 1}, v16, s[{S_WG + 2 * k}:{S_WG + 2 * k + 1}]', 'tlb')
            e('s_mov_b64 exec, -1')
            e.paths = e.paths + snap
            e.label(lab)
        if not ty:
            e(f's_or_b32 s{sT + 6}, s2, s{sW}')
            lab = e.newlabel('nn')
            e(f's_cbranch_scc1 {lab}')
            snap = e.snapshot()
            e(f's_or_b32 s{sNON + 1}, s{sNON + 1}, 0x80000000')
            e(f'v_mov_b32 v16, s{sNON}')
            e(f'v_mov_b32 v17, s{sNON + 1}')
            e('s_mov_b64 exec, 1')
            e(f'buffer_store_dwordx2 v[16:17], off, {srd(S_DBG)}, 0 sc1', 'nst')
            e('s_mov_b64 exec, -1')
            e.paths = e.paths + snap
            e.label(lab)
        fill = self.split(lambda: self.setup2(0, ty))
        for _ in range(min(len(fill), self.opt['cpre'])):
            fill.pop(0)()
        LA = 4
        wx = Win(e, vXR)
        ww = Win(e, vWR)
        M = 16 * NC
        GL = 2
        NOG = self.opt.get('x_nogate', 0)

        def gate(n, buf):
            for tg in range(2):
                z = vr(ZA + 4 * tg, 4)
                e(f'v_mfma_f32_16x16x32_bf16 {z}, {vr(buf, 4)}, {vr(X + 8 * n + 4 * tg, 4)}, {z if n else 0}')

        def reads(m, rd):
            n, ct = divmod(m, NC)
            s, ks = divmod(n, 2)
            slot = region(s)
            if m % (2 * NC) == 0 and rd == 0:
                e('s_barrier')
                if s in (0, 4):
                    self.stamp(2 + s // 4)
                wx.ensure(slot, slot + 2048)
                ww.ensure(slot + 16384, slot + 24576)
            if ct == 0:
                e(f'ds_read_b128 {vr(X + 8 * n + 4 * rd, 4)}, v{vXR[ks]} offset:{wx.off(slot + 2048 * rd)}', f'a{m}')
            if ct == 2 and rd == 0 and n >= GL and (n == GL or not NOG):
                e.wait(vm='gw')
                e(f'ds_read_b128 {vr(GWB + 4 * (n % 2), 4)}, v{vGA} offset:{L_GW + 64 * (n - GL)}', f'a{m}')
            t = slot + 16384 + ks * NC * 1024 + (ct >> 1) * 1024 + rd * 256
            e(f'ds_read_b64_tr_b16 {vr(FR + 4 * (m % NFR) + 2 * rd, 2)}, v{vWR[ct & 1]} offset:{ww.off(t)}', f'a{m}')

        for m in range(LA):
            reads(m, 0)
            reads(m, 1)
        for m in range(M):
            n, ct = divmod(m, NC)
            e.wait(lg=f'a{m}')
            for tg in range(2):
                acc = vr(ACA + 16 * (ct >> 1) + 8 * tg + 4 * (ct & 1) if ty else ACA + 8 * ct + 4 * tg, 4)
                a, b = vr(FR + 4 * (m % NFR), 4), vr(X + 8 * n + 4 * tg, 4)
                if ty:
                    a, b = b, a
                e(f'v_mfma_f32_16x16x32_bf16 {acc}, {a}, {b}, {acc if n else 0}')
                if m + LA < M:
                    reads(m + LA, tg)
                if tg == 0:
                    for _ in range(2):
                        if fill:
                            fill.pop(0)()
            if m == self.opt['btm']:
                self.touch_ffn()
            if ct == 2 and n >= GL and (n == GL or not NOG):
                gate(n - GL, GWB + 4 * (n % 2))
            if m == M - LA - 1:
                for k in range(GL):
                    e(f'ds_read_b128 {vr(GWB + 8 + 4 * k, 4)}, v{vGA} offset:{L_GW + 64 * (16 - GL + k)}', 'gl')
            if m == M * 7 // 8:
                e(f'buffer_load_dwordx2 v[{vK[0]}:{vK[0] + 1}], off, {srd(S_DBG)}, 0 sc1', 'non')
        assert not fill
        e.wait(lg='gl')
        for k in range(GL):
            gate(16 - GL + k, GWB + 8 + 4 * k)

    def touch_ffn(self):
        e = self.e
        lab = e.newlabel('tf')
        a, t = vK[1] + 1, sT + 4
        e(f's_cmp_lg_u32 s{sTT}, 2')
        e(f's_cbranch_scc1 {lab}')
        snap = e.snapshot()
        if self.opt['btx']:
            e(f's_lshr_b32 s{t}, s2, 2')
            e(f's_mul_i32 s{t}, s{t}, {8 * 2752}')
            e(f's_and_b32 s{t + 2}, s2, 3')
            e(f's_mul_i32 s{t + 2}, s{t + 2}, 683')
            e(f's_add_u32 s{t}, s{t}, s{t + 2}')
            e(f's_and_b32 s{t}, s{t}, -4')
            e(f'v_lshrrev_b32 v{a}, 3, v0')
            e(f'v_mul_u32_u24 v{a}, 2752, v{a}')
            e(f'v_and_b32 v{a + 1}, 7, v0')
            e(f'v_mul_u32_u24 v{a + 1}, 116, v{a + 1}')
            e(f'v_add3_u32 v{a}, v{a}, v{a + 1}, s{t}')
            e('s_mov_b32 exec_lo, 0x7f7f7f7f')
            e('s_mov_b32 exec_hi, 0x7f7f7f7f')
        else:
            e(f's_mul_i32 s{t}, s2, {43 * 128}')
            e(f'v_lshl_add_u32 v{a}, v0, 7, s{t}')
            e('s_bfm_b64 exec, 43, 0')
        for k in range(2):
            e(f'global_load_dword v{a + 1 + k}, v{a}, s[{S_WG + 2 * k}:{S_WG + 2 * k + 1}]', 'bt')
        e('s_mov_b64 exec, -1')
        e.paths = e.paths + snap
        e.label(lab)

    def z_write(self):
        e = self.e
        e(f'v_and_b32 v{vP}, 16, v0')
        e(f'v_cmp_eq_u32 vcc, 0, v{vP}')
        e(f's_lshl_b32 s{sT + 1}, s{sTT}, 8')
        e(f'v_lshl_add_u32 v{vP}, v0, 2, s{sT + 1}')
        e(f'v_cndmask_b32 v{vP + 1}, v{ACF + 4}, v{ACF}, vcc')
        e(f'ds_write_b32 v{vP}, v{vP + 1} offset:{L_Z}', 'zw')

    def kv_store(self, i):
        self.e(f'buffer_store_dwordx4 {vr(ACA + 4 * i, 4)}, v{vWD}, {srd(S_WS)}, s{sE[i]} offen sc1', 'qst')

    def spin(self, name, reload, check, sleep=2):
        e = self.e
        lr, lc = e.newlabel(name + 'r'), e.newlabel(name + 'c')
        check()
        e(f's_cbranch_vccnz {lr}')
        e.label(lc)

        def blk():
            e.paths = [p for p in Emitter().paths]
            e.label(lr)
            e(f's_mov_b32 s{sSPIN}, {SPIN}')
            ll = e.newlabel(name + 'l')
            e.label(ll)
            e(f's_sleep {sleep}')
            reload()
            e('s_waitcnt vmcnt(0)')
            check()
            e(f's_cbranch_vccz {lc}')
            e(f's_sub_u32 s{sSPIN}, s{sSPIN}, 1')
            e(f's_cbranch_scc0 {ll}')
            e(f's_branch {lc}')
        self.tail_blocks.append(blk)

    def flag_store(self, soff, tmp):
        e = self.e
        e(f'v_mov_b32 v{tmp}, s{sNON}')
        e(f'v_mov_b32 v{tmp + 1}, s{sNON + 1}')
        e('s_mov_b64 exec, 1')
        e(f'buffer_store_dwordx2 v[{tmp}:{tmp + 1}], off, {srd(S_WS)}, s{soff} sc1', 'flag')
        e('s_mov_b64 exec, -1')

    def kv_load(self, it):
        e = self.e
        b = it % 2

        def k():
            e(f'buffer_load_dwordx4 {vr(vK[b], 4)}, v{vKA}, {srd(S_WS)}, s{sKVI} offen' + FL[self.opt['fh']], f'k{it}')

        def v():
            e(f's_mov_b64 exec, s[{sVM}:{sVM + 1}]')
            e(f'buffer_load_dwordx4 {vr(vV[b], 4)}, v{vKA + 1}, {srd(S_WS)}, s{sKVI} offen offset:1024' + FL[self.opt['fh']], f'v{it}')
            e(f'buffer_load_dwordx4 {vr(vV[b] + 4, 4)}, v{vKA + 1}, {srd(S_WS)}, s{sKVI} offen offset:1536' + FL[self.opt['fh']], f'v{it}')
            e('s_mov_b64 exec, -1')
        return k, v

    def kv_adv(self, part=3):
        if part & 1:
            self.e(f's_addk_i32 s{sKVI}, 2048')
        if part & 2:
            self.e(f's_bitset0_b32 s{sKVI}, 15')

    def gelu(self, c, pk=True):
        e = self.e
        acc = ACF + 16 * c
        T = ACA + 16
        P = lambda b, i: vr(b + 2 * i, 2)
        if not pk:
            real = e

            def e(text):
                if not text.startswith('v_pk_'):
                    return real(text)
                op, rest = text.split(None, 1)
                for h in range(2):
                    ops = [f'{o[0]}{int(o[2:o.index(":")]) + h}' for o in rest.split(', ')]
                    real(op.replace('v_pk_', 'v_') + ' ' + ', '.join(ops))
        for i in range(4):
            e(f'v_pk_mul_f32 {P(T, i)}, {P(acc, i)}, {P(acc, i)}')
        for i in range(4):
            e(f'v_pk_fma_f32 {P(T, i)}, {P(T, i)}, s[{sGC}:{sGC + 1}], {vr(T + 8, 2)}')
        for i in range(4):
            e(f'v_pk_mul_f32 {P(T, i)}, {P(T, i)}, {P(acc, i)}')
        for i in range(8):
            e(f'v_exp_f32 v{T + i}, v{T + i}')
        for i in range(4):
            e(f'v_pk_mul_f32 {P(acc, i)}, {P(acc, i)}, {P(acc + 8, i)}')
        for i in range(4):
            ch = vr(T + 10 + 2 * (i // 2), 2)
            e(f'v_pk_fma_f32 {P(T, i)}, {P(T, i)}, {ch}, {ch}')
        for i in range(8):
            e(f'v_rcp_f32 v{T + i}, v{T + i}')
        for i in range(4):
            e(f'v_pk_mul_f32 {P(acc, i)}, {P(acc, i)}, {P(T, i)}')
        for i in (0, 2, 1, 3):
            e(f'v_cvt_pk_bf16_f32 v{acc + 8 + i}, v{acc + 2 * i}, v{acc + 2 * i + 1}')
        for r in range(2):
            e(f'v_permlane16_swap_b32 v{acc + 8 + r}, v{acc + 10 + r}')

    def h_store(self, c):
        e = self.e
        e(f's_add_u32 s{sT}, s{sHO}, {2048 * c}')
        e(f'buffer_store_dwordx4 {vr(ACF + 16 * c + 8, 4)}, v{vL16}, {srd(S_WS)}, s{sT} offen sc1', 'hst')

    def split(self, fn):
        real = self.e
        rec = []

        class Rec:
            def __call__(s, text, tag=None):
                rec.append(('i', text, tag))

            def wait(s, vm=None, lg=None):
                rec.append(('w', vm, lg))
        self.e = Rec()
        fn()
        self.e = real
        out, grp = [], []
        for r in rec:
            grp.append(r)
            masked = any(x[0] == 'i' and x[1].startswith('s_mov_b64 exec') for x in grp)
            if (masked and r[1] != 's_mov_b64 exec, -1') or r[0] == 'w':
                continue

            def f(grp=grp):
                for x in grp:
                    if x[0] == 'i':
                        real(x[1], x[2])
                    else:
                        real.wait(vm=x[1], lg=x[2])
            out.append(f)
            grp = []
        assert not grp
        return out

    def phase_f(self, g, NC):
        e = self.e
        o = self.opt
        order = []
        for s in range(8):
            for item in ([(0, -1), (1, -1)] if s == 7 else []):
                order.append((2 * s + item[0], -1))
            for ks in range(2):
                order += [(2 * s + ks, r) for r in range(0 if s == 7 else -1, 2 * NC)]
        PS = 4 * NC + 2
        M = 8 * PS
        sc = lambda m: m * PS // 12
        LA = 4
        wf = Win(e, vFR[:NC] + [vQR])
        fill = []
        at = {}
        cur = [0]

        def pin(m, f):
            at.setdefault(m, []).append(f)

        def sched(s, m0, span, extra=()):
            lst = list(extra) + (self.dma_list(s) if g and s <= 15 else [])
            for i, f in enumerate(lst):
                pin(m0 + i * span // len(lst), f)

        def enter(s):
            e.wait(vm=[f'st{s}' if s <= o['hs'] else f'st{s}b'] + (['qst'] if s == o['qw'] else []), lg='zw' if s == 9 else None)
            e('s_barrier')
            sched(s + o['fah'], cur[0] + 1, sc(o['span']))
            if s == 9:
                fill.extend(self.split(self.gate_read))
                fill.append(self.nonce_get)
                fill.extend(self.split(self.attn_setup))
                fill.extend(self.split(self.gate_math))
            if s == o['vs'] and g == 0:
                fill.extend(self.split(self.v_const))
            if s == o['qw'] and g == 0:
                fill.insert(0, self.flag1)

        def reads(m, rd):
            s = 8 + m // PS
            if m % PS == 0 and m and rd == 0:
                enter(s)
            n, r = order[m]
            if s <= o['hs'] and n % 2 and r == 0 and rd == 0:
                e.wait(vm=f'st{s}b')
                e('s_barrier')
            slot = region(s)
            wf.ensure(slot, slot + 28672)
            if r < 0:
                va, t = vQR, slot + QOFF + (n % 2) * 2048 + rd * 256
            else:
                va, t = vFR[r // 2], slot + (r % 2) * UPOFF + (n % 2) * 6144 + rd * 256
            e(f'ds_read_b64_tr_b16 {vr(FR + 4 * (m % NFR) + 2 * rd, 2)}, v{va} offset:{wf.off(t)}', f'f{m}')

        assert o['fah'] <= 3
        if g == 0:
            for i in range(o['qe'], 4):
                pin(sc(o['q0'] + o['qsp'] * (i - o['qe'])), lambda i=i: self.kv_store(i))
            assert sc(o['q0'] + o['qsp'] * (3 - o['qe'])) < (min(o['vs'], o['qw']) - 8) * PS - LA
        sched(8 + o['fah'], 0, PS - LA, self.left if g else ())
        for m in range(LA):
            reads(m, 0)
            reads(m, 1)
        if o['prio']:
            pin(sc(50), lambda: e('s_setprio 3'))
        for m in range(M):
            cur[0] = m
            n, r = order[m]
            e.wait(lg=f'f{m}')
            for tg in range(2):
                acc = vr((QA if r < 0 else ACF + 8 * r) + 4 * tg, 4)
                e(f'v_mfma_f32_16x16x32_bf16 {acc}, {vr(FR + 4 * (m % NFR), 4)}, {vr(X + 8 * n + 4 * tg, 4)}, {acc if n else 0}')
                if m + LA < M:
                    reads(m + LA, tg)
                nf = o['fk'] if m < 7 * PS + 4 else o['gk']
                if tg == 0:
                    lead = at.get(m, [None])[0]
                    if o['dsplit'] and getattr(lead, 'dma', False):
                        lead(1)
                        at[m][0] = lambda lead=lead: lead(2)
                    for _ in range(min(nf, 2) - (lead is not None)):
                        if fill:
                            fill.pop(0)()
            if m % PS == 0 and 2 * PS <= m:
                self.stamp(5 + m // PS, 1)
            if o['omf'] and m == sc(o['omf']):
                fill.extend(self.split(lambda: self.o_mark(X)))
            if m == sc(o['tch']) and g == 0:
                fill.append(self.touch)
            if m == sc(o['p1i']):
                fill.append(self.poll1_issue)
            if m == sc(o['p1c']):
                fill.append(self.poll1_check)
                for grp in self.attn_loads_early():
                    fill.append(grp)
                    fill.extend([lambda: None] * o['lsp'])
            if m == 5 * PS:
                assert not fill
                fill.extend(self.split(lambda: self.q_addrs(g)))
            if m == 7 * PS + 3:
                fill = self.split(self.q_pack) + fill
            for f in at.pop(m, []):
                f()
            for _ in range(nf - 2):
                if fill:
                    fill.pop(0)()
        assert not at
        for f in fill:
            f()
        e.wait(lg='all')
        e('s_barrier')
        self.stamp(5)
        for i in range(3):
            e(f'ds_read_b128 {vr(vQ[i], 4)}, v{vQ[i]}', f'q{i}')
        if o['om'] == -2:
            self.o_mark()
        side = []
        if o['p1c'] >= 96:
            side = [self.poll1_check] + self.attn_loads_early()
        ge, ends = [], []
        for c in range(NC - 1, -1, -1):
            ge += self.split(lambda: self.gelu(c))
            ends.append((len(ge), c))
        for k, f in enumerate(ge):
            if side and k >= o['g0'] * (1 - g) and k % o['gsp'] == 0:
                side.pop(0)()
            f()
            if not side and ends[0][0] <= k + 1 and ends[0][1] >= o['hl']:
                self.h_store(ends.pop(0)[1])
        assert not side and len(ends) == o['hl']
        if o['ys'] and (g == 0 or o['om'] < 0) and o['om'] != -2:
            self.o_mark()
        if o['ys'] and g == 0:
            assert o['hl'] == 0 and not o['omf']
            self.sig2_a()
            self.sig2_b()
        if o['ys']:
            e('s_setprio 2')

    def q_addrs(self, g):
        e = self.e
        for i in range(3):
            e(f'v_add_u32 v{vQ[i]}, s{sQX[i]}, v{vL16}')
        e(f'v_add_u32 v{vQ[0] + 1}, s{sQX[3]}, v{vL16}')

    def q_pack(self):
        e = self.e
        for r in range(8):
            e(f'v_mul_f32 v{QA + r}, {fbits(QSCALE)}, v{QA + r}')
        self.pack8(QA, vQ[3])
        e(f'ds_write_b128 v{vQ[0] + 1}, {vr(vQ[3], 4)}', 'qw')

    def o_mark(self, d=vH[0]):
        e = self.e
        for i in range(4):
            e(f'v_mov_b32 v{d + i}, -1')
        e(f'buffer_store_dwordx4 {vr(d, 4)}, v{vL16}, {srd(S_WS)}, s{sMO} offen sc1', 'hst')

    def gate_read(self):
        e = self.e
        e(f's_lshl_b32 s{sT}, s{sTT}, 8')
        e(f'v_and_b32 v{vCH}, 15, v0')
        e(f'v_lshl_add_u32 v{vCH}, v{vCH}, 2, s{sT}')
        e(f'v_add_u32 v{vCH}, {L_Z}, v{vCH}')
        e(f'ds_read2_b32 {vr(vCH, 2)}, v{vCH} offset0:0 offset1:16', 'zr')

    def gate_math(self):
        e = self.e
        e.wait(lg='zr')
        for i in range(2):
            e(f'v_mul_f32 v{vCH + i}, {fbits(LOG2E)}, v{vCH + i}')
        for i in range(2):
            e(f'v_exp_f32 v{vCH + i}, v{vCH + i}')
        for i in range(2):
            e(f'v_add_f32 v{vCH + i}, 1.0, v{vCH + i}')
        e(f'v_mov_b32 v{ACA + 24}, {fbits(GC0)}')
        e(f'v_mov_b32 v{ACA + 25}, v{ACA + 24}')
        for i in range(4):
            e(f'v_min_f32 v{ACA + 26 + i}, {fbits(2.0 ** 100)}, v{vCH + i // 2}')
        e(f'v_add_u32 v{vKA}, s{sKVB}, v{vL16}')
        e(f'v_add_u32 v{vKA + 1}, s{sKVB}, v{vVA}')

    def nonce_get(self):
        e = self.e
        e.wait(vm='non')
        ld = lambda: e(f'buffer_load_dwordx2 v[{vK[0]}:{vK[0] + 1}], off, {srd(S_DBG)}, 0 sc1')
        ck = lambda: e(f'v_cmp_eq_u32 vcc, 0, v{vK[0] + 1}')
        self.spin('non', ld, ck)
        e(f'v_readfirstlane_b32 s{sNON}, v{vK[0]}')
        e(f'v_readfirstlane_b32 s{sNON + 1}, v{vK[0] + 1}')

    def flag1(self):
        e = self.e
        lab = e.newlabel('f1')
        e(f's_cmp_lg_u32 s{sW}, 0')
        e(f's_cbranch_scc1 {lab}')
        snap = e.snapshot()
        e(f's_lshl_b32 s{sT + 7}, s{sJ}, 4')
        e(f's_add_u32 s{sT + 7}, s{sT + 7}, s{sTB}')
        e(f's_lshl_b32 s{sT + 7}, s{sT + 7}, {self.opt["fs"]}')
        e(f's_add_u32 s{sT + 7}, s{sT + 7}, {WS_F1}')
        self.flag_store(sT + 7, vK[0])
        e.paths = e.paths + snap
        e.label(lab)

    def touch(self, X=X):
        e = self.e
        lab = e.newlabel('tc')
        e(f's_cmp_lg_u32 s{sW}, {self.opt["tcw"]}')
        e(f's_cbranch_scc1 {lab}')
        snap = e.snapshot()
        e(f'v_lshlrev_b32 v{X}, 7, v0')
        e(f's_mul_i32 s{sT}, s2, {43 * 128}')
        e(f's_lshl_b32 s{sT + 1}, s2, 11')
        e('s_bfm_b64 exec, 43, 0')
        e(f'buffer_load_dword v{X + 1}, v{X}, {srd(S_WD)}, s{sT} offen', 'touch')
        e('s_bfm_b64 exec, 16, 0')
        e(f'buffer_load_dword v{X + 2}, v{X}, {srd(S_WO)}, s{sT + 1} offen', 'touch')
        e('s_mov_b64 exec, -1')
        e.paths = e.paths + snap
        e.label(lab)

    def attn_setup(self):
        e = self.e
        e(f'v_and_b32 v{vPA}, 4, v0')
        e(f'v_mul_u32_u24 v{vPA}, 3, v{vPA}')
        e(f'v_add_u32 v{vPA}, v{vPA}, v0')
        e(f'v_lshl_add_u32 v{vPA}, v{vPA}, {self.opt["fs"]}, s{sKV}')
        e(f'v_lshrrev_b32 v{vDD[0]}, 3, v0')
        e(f'v_lshrrev_b32 v{vP}, 2, v0')
        e(f'v_and_b32 v{vP}, 4, v{vP}')
        e(f'v_xor_b32 v{vP}, v{vP}, v0')
        e(f'v_and_b32 v{vP}, 7, v{vP}')
        e(f'v_lshlrev_b32 v{vP}, 4, v{vP}')
        e(f'v_lshl_add_u32 v{vDD[0]}, v{vDD[0]}, 10, v{vP}')
        e(f'v_add_u32 v{vDD[1]}, {8192 - 1024}, v{vDD[0]}')
        e(f'v_add_u32 v{vRW[0]}, s{sMD}, v{vL16}')
        e(f'v_lshl_add_u32 v{vRW[1]}, v0, 2, s{sMD}')

    def v_const(self):
        e = self.e
        e(f'v_and_b32 v{vV[0] + 1}, 27, v0')
        e(f'v_cmp_eq_u32 vcc, 16, v{vV[0] + 1}')
        e(f'v_mov_b32 v{vV[0] + 1}, 0x3f803f80')
        e(f'v_cndmask_b32 v{vV[0]}, 0, v{vV[0] + 1}, vcc')
        for i in range(1, 16):
            e(f'v_mov_b32 v{vV[0] + i}, v{vV[0]}')

    def poll1_issue(self):
        e = self.e
        e('s_mov_b64 exec, 0xff')
        e(f'buffer_load_dwordx2 v[{vP}:{vP + 1}], v{vPA}, {srd(S_WS)}, 0 offen sc1', 'p1')
        e('s_mov_b64 exec, -1')

    def poll1_check(self):
        e = self.e
        e.wait(vm='p1')
        e('s_mov_b64 exec, 0xff')
        e(f'v_cmp_ne_u64 vcc, s[{sNON}:{sNON + 1}], v[{vP}:{vP + 1}]')
        e('s_mov_b64 exec, -1')

    def attn_load_groups(self):
        e = self.e
        k0, v0 = self.kv_load(0)
        k1, v1 = self.kv_load(1)

        return [k0, lambda: (v0(), self.kv_adv()), k1, lambda: (v1(), self.kv_adv())]

    def attn_loads_early(self):
        e = self.e
        out = []
        for n, f in enumerate(self.attn_load_groups()):
            def g(f=f, n=n):
                lab = e.newlabel('al')
                e(f's_cbranch_vccnz {lab}')
                if n == 0:
                    skip = e.snapshot()
                    for p in skip:
                        p.g = 'pend'
                else:
                    skip = [p for p in e.paths if p.g == 'pend']
                    e.paths = [p for p in e.paths if p.g != 'pend']
                f()
                e.paths = e.paths + skip
                e.label(lab)
            out.append(g)
        return out

    def attn_loads_late(self):
        e = self.e
        e('s_cbranch_vccnz Llate')
        e.label('Llate_done')
        e.paths = [p for p in e.paths if p.g != 'pend']

        def blk():
            e.paths = [p for p in Emitter().paths]
            e.label('Llate')
            e('s_mov_b64 exec, 0xff')
            ld = lambda: e(f'buffer_load_dwordx2 v[{vP}:{vP + 1}], v{vPA}, {srd(S_WS)}, 0 offen sc1')
            ck = lambda: e(f'v_cmp_ne_u64 vcc, s[{sNON}:{sNON + 1}], v[{vP}:{vP + 1}]')
            ld()
            e('s_waitcnt vmcnt(0)')
            self.spin('p1', ld, ck, self.opt['sl1'])
            e('s_mov_b64 exec, -1')
            for f in self.attn_load_groups():
                f()
            e('s_waitcnt vmcnt(0)')
            e('s_branch Llate_done')
        self.tail_blocks.append(blk)

    def sig2_a(self):
        e = self.e
        e.wait(vm='hst')
        e(f'v_mov_b32 v{vP}, {L_CNT}')
        e(f'v_mov_b32 v{vP + 1}, 1')
        e('s_mov_b64 exec, 1')
        e(f'ds_add_rtn_u32 v{vP}, v{vP}, v{vP + 1}', 'cnt2')
        e('s_mov_b64 exec, -1')

    def sig2_b(self):
        e = self.e
        e.wait(lg='cnt2')
        e(f'v_readfirstlane_b32 s{sT}, v{vP}')
        lab = e.newlabel('f2')
        e(f's_cmp_lg_u32 s{sT}, 7')
        e(f's_cbranch_scc1 {lab}')
        snap = e.snapshot()
        e(f's_lshl_b32 s{sT}, s{sTB}, 4')
        e(f's_add_u32 s{sT}, s{sT}, s{sJ}')
        e(f's_lshl_b32 s{sT}, s{sT}, {self.opt["fs"]}')
        e(f's_add_u32 s{sT}, s{sT}, {WS_F2}')
        self.flag_store(sT, vP)
        e.paths = e.paths + snap
        e.label(lab)

    def attention(self):
        e = self.e
        G0 = self.opt['g2start']
        NT = 64

        def qk(t):
            it, sl = divmod(t, 4)
            if sl == 0:
                e.wait(vm=f'k{it}')
            if it == 0:
                e.wait(lg=f'q{sl}')
            e(f'v_mfma_f32_32x32x16_bf16 {vr(vS[t % 2], 16)}, {vr(vK[it % 2], 4)}, {vr(vQ[sl], 4)}, 0')

        def pv(t, hi):
            it, sl = divmod(t, 4)
            if sl == 0 and not hi:
                e.wait(vm=f'v{it}')
            e(f'v_smfmac_f32_32x32x32_bf16 {vr(vO[sl], 16)}, {vr(vV[it % 2] + 4 * hi, 4)}, {vr(vS[t % 2] + 8 * hi, 8)}, v{vIDX}')

        def ex(t, a, b):
            for i in range(a, b):
                e(f'v_exp_f32 v{vS[t % 2] + i}, v{vS[t % 2] + i}')

        def stage_dma(rs, so, i, tag):
            return lambda: e(f'buffer_load_dwordx4 v{vDD[i]}, {srd(rs)}, s{so} offen' + (' offset:1024' if i else '') + FL[self.opt['fw']] + ' lds', tag)

        def wo_first():
            e(f's_lshl_b32 s{sWO}, s{sW}, 16')
            e(f's_lshl_b32 s{sT}, s{sCB}, 7')
            e(f's_add_u32 s{sWO}, s{sWO}, s{sT}')
            e(f's_lshl_b32 s{sMW}, s{sW}, 13')

        def h_load(step, i):
            return lambda: e(f'buffer_load_dwordx4 {vr(vH[step % 2] + 4 * i, 4)}, v{vHA[i]}, {srd(S_H)}, s{sHO} offen' + FL[self.opt['fh']], f'h{step}')

        def wd_read(step, jj):
            def f():
                e.wait(vm=f'd{step}')
                for rd in range(2):
                    e(f'ds_read_b64_tr_b16 {vr(vD + 4 * jj + 2 * rd, 2)}, v{vDR[jj]} offset:{L_RING + 2048 * (step % 3) + 512 * rd}', f'dr{step}_{jj}')
            return f

        def g2(step, sl):
            jj, i = divmod(sl, 2)
            e.wait(vm=f'h{step}', lg=f'dr{step}_{jj}')
            acc = vr(vG[i * 2 + jj], 16)
            e(f'v_mfma_f32_32x32x16_bf16 {acc}, {vr(vD + 4 * jj, 4)}, {vr(vH[step % 2] + 4 * i, 4)}, {acc if step else 0}')

        def only_g1(fn):
            def f():
                if not self.opt['ys']:
                    return fn()
                lab = e.newlabel('g1')
                e(f's_cmp_eq_u32 s{sG}, 0')
                e(f's_cbranch_scc1 {lab}')
                snap = e.snapshot()
                fn()
                for p in snap:
                    p.vm = [t if t != 'hst' else None for t in p.vm]
                e.paths = e.paths + snap
                e.label(lab)
            return f

        def h_addrs():
            e(f's_and_b32 s{sT}, s{sW}, 1')
            e(f's_lshl_b32 s{sT}, s{sT}, 10')
            e(f'v_add_u32 v{vHA[0]}, s{sT}, v{vL16}')
            e(f'v_xor_b32 v{vHA[1]}, 1024, v{vHA[0]}')
            e(f's_mul_i32 s{sHO}, s{sW}, {11 * 2048}')

        def poll2_issue():
            e(f's_lshr_b32 s{sT + 1}, s{sRB}, 1')
            e(f's_lshl_b32 s{sT + 1}, s{sT + 1}, {4 + self.opt["fs"]}')
            e(f's_add_u32 s{sT + 1}, s{sT + 1}, {WS_F2}')
            e(f'v_lshl_add_u32 v{vPA}, v0, {self.opt["fs"]}, s{sT + 1}')
            e('s_mov_b64 exec, 0xffff')
            e(f'buffer_load_dwordx2 v[{vP}:{vP + 1}], v{vPA}, {srd(S_WS)}, 0 offen sc1', 'p2')
            e('s_mov_b64 exec, -1')

        def poll2_check():
            e.wait(vm='p2')
            e('s_mov_b64 exec, 0xffff')
            ld = lambda: e(f'buffer_load_dwordx2 v[{vP}:{vP + 1}], v{vPA}, {srd(S_WS)}, 0 offen sc1')
            ck = lambda: e(f'v_cmp_ne_u64 vcc, s[{sNON}:{sNON + 1}], v[{vP}:{vP + 1}]')
            self.spin('p2', ld, ck, self.opt['sl2'])
            e('s_mov_b64 exec, -1')

        def co_read():
            e(f's_lshl_b32 s{sT}, s{sTT}, 8')
            e(f'v_lshl_add_u32 v{vCO}, v0, 2, s{sT}')
            e(f'ds_read_b32 v{vCO}, v{vCO} offset:{L_Z}', 'zr2')

        def co_math():
            e.wait(lg='zr2')
            e(f'v_mul_f32 v{vCO}, {fbits(-LOG2E)}, v{vCO}')
            e(f'v_exp_f32 v{vCO}, v{vCO}')

        def ored_addr(i):
            def f():
                e(f's_sub_u32 s{sT}, s{sTT}, {1 + i}')
                e(f's_and_b32 s{sT}, s{sT}, 3')
                e(f's_lshl_b32 s{sT + 1}, s{sG}, 2')
                e(f's_add_u32 s{sT}, s{sT}, s{sT + 1}')
                e(f's_mul_i32 s{sT}, s{sT}, {RINGW}')
                e(f'v_add_u32 v{vRR + i}, s{sT}, v{vL16}')
                e(f'v_lshl_add_u32 v{vRR + 3 + i}, v0, 2, s{sT}')
            return f

        def o_addr():
            e(f's_lshl_b32 s{sO[0]}, s{sRB}, 1')
            e(f's_and_b32 s{sT}, s{sW}, 1')
            e(f's_add_u32 s{sO[0]}, s{sO[0]}, s{sT}')
            e(f's_lshl_b32 s{sO[0]}, s{sO[0]}, 2')

        def o_addr2():
            e(f's_lshr_b32 s{sT}, s{sW}, 1')
            e(f's_add_u32 s{sO[0]}, s{sO[0]}, s{sT}')
            e(f's_lshl_b32 s{sO[0]}, s{sO[0]}, 13')
            e(f's_add_u32 s{sO[0]}, s{sO[0]}, {WS_O}')
            e(f's_add_u32 s{sO[1]}, s{sO[0]}, 4096')

        def ored_write(sl, part):
            o = L_RING + 2304 * sl
            if part < 2:
                return lambda: e(f'ds_write_b128 v{vRW[0]}, {vr(vO[sl] + 4 * part, 4)} offset:{o + 1024 * part}', 'orw')
            return lambda: e(f'ds_write_b32 v{vRW[1]}, v{vO[sl] + 8} offset:{o + 2048}', 'orw')

        side = {}
        add = lambda t, p, f: side.setdefault((t, p), []).append(f)
        I = lambda text: (lambda: e(text))
        for it in range(16):
            t = 4 * it
            st = it - G0
            add(t, 1, lambda it=it, st=st: e.wait(vm=[f'v{it}', f'h{st}'], lg=f'dr{st}_0'))
            add(t + 2, 2, lambda it=it, st=st: e.wait(vm=[f'k{it + 1}', f'd{st + 1}'], lg=f'dr{st}_1'))
            if 1 <= it < 15:
                add(t, 0, self.kv_load(it + 1)[1])
                add(t, 2, self.kv_adv)
            if it < 14:
                add(t + 2, 1, self.kv_load(it + 2)[0])
        for step in range(11):
            t = 4 * (G0 + step)
            add(t - 7, 2, I(f's_add_u32 m0, s{sMD}, {L_RING + 2048 * (step % 3)}'))
            add(t - 7, 4, stage_dma(S_WD, sDO, 0, f'd{step}'))
            add(t - 6, 0, stage_dma(S_WD, sDO, 1, f'd{step}'))
            add(t - 6, 0, I(f's_addk_i32 s{sDO}, 16384'))
            add(t - 4, 4, h_load(step, 0))
            add(t - 3, 1, h_load(step, 1))
            add(t - 3, 2, I(f's_addk_i32 s{sHO}, 2048'))
            add(t - 1, 0, wd_read(step, 0))
            add(t + 1, 0, wd_read(step, 1))
        t = 4 * self.opt['woi'] + 3
        add(t - 1, 4, wo_first)
        for k in range(4):
            add(t + 4 * k, 1, I(f's_add_u32 m0, s{sMW}, {L_WO + 2048 * k}'))
            add(t + 4 * k, 2, stage_dma(S_WO, sWO, 0, 'wo'))
            add(t + 4 * k, 2, stage_dma(S_WO, sWO, 1, 'wo'))
            add(t + 4 * k, 4, I(f's_addk_i32 s{sWO}, 16384'))
        if not self.opt['omf'] and self.opt['om'] >= 0:
            add(self.opt['om'], 2, only_g1(self.o_mark))
        for c in range(self.opt['hl']):
            add(c * self.opt['hsp'], 2, lambda c=c: self.h_store(c))
        for i in range(3):
            add(22 + 4 * i, 2, ored_addr(i))
        add(34, 2, o_addr)
        add(38, 2, o_addr2)
        if self.opt['tca'] < 16:
            add(self.opt['tca'], 2, lambda: self.touch(vRR))
        add(2, 2, co_read)
        add(3, 2, co_math)
        add(self.opt['s2t'], 2, only_g1(self.sig2_a))
        add(self.opt['s2t'] + 1, 2, only_g1(self.sig2_b))
        add(self.opt['s2t'] + 2, 2, h_addrs)
        add(4 * (G0 - 2) + 2, 2, poll2_issue)
        add(4 * (G0 - 1), 2, poll2_check)
        for sl in range(3):
            add(61 + sl, 4, ored_write(sl, 0))
            add(*((62 + sl, 0) if sl < 2 else (63, 3)), ored_write(sl, 1))
            add(*((62 + sl, 0) if sl < 2 else (63, 3)), ored_write(sl, 2))
        if self.opt['prio']:
            add(self.opt['pa'], 2, lambda: e('s_setprio 2'))
            add(self.opt['pb'], 2, lambda: e('s_setprio 1'))
            add(self.opt['pc'], 2, lambda: e('s_setprio 0'))

        def run(t, p):
            for f in side.get((t, p), []):
                f()

        def zero(sl):
            e(f'v_mfma_f32_32x32x16_bf16 {vr(vO[sl], 16)}, {vr(vD, 4)}, {vr(vD, 4)}, 0')

        e(f'v_mov_b32 v{vIDX}, 0xdddddddd')
        for i in range(4):
            e(f'v_mov_b32 v{vD + i}, 0')
        qk(0)
        self.stamp(9, 3)
        if self.opt['zm']:
            zero(0)
        for t in range(NT):
            it, sl = divmod(t, 4)
            ex(t, 0, 2)
            if t > 0:
                pv(t - 1, 1)
            run(t, 0)
            ex(t, 2, 5)
            if t + 1 < NT:
                qk(t + 1)
            run(t, 1)
            ex(t, 5, 10)
            pv(t, 0)
            run(t, 2)
            ex(t, 10, 13)
            if G0 <= it < G0 + 11:
                g2(it - G0, sl)
            if t < 3 and self.opt['zm']:
                zero(t + 1)
            run(t, 4)
            ex(t, 13, 16)
            run(t, 3)
            if t in (7, 31):
                self.stamp(7 if t == 7 else 8)
            if t in (3, 5, 7):
                self.stamp(10 + (t - 3) // 2, 3)
        pv(NT - 1, 1)
        run(NT, 0)

    def tail(self):
        e = self.e
        own = vO[3]
        R = vO[0]
        WO = vO[0]
        OFR = [vH[0], vH[1], ACA + 16, ACA + 24]
        PRE = X + 64
        vFW, vPW, vOA = FR, FR + 4, FR + 9
        vFRd, vPR = vK[1], vRR
        HEADS = (1, 3, 5, 7, 0, 2, 4, 6)
        P2 = lambda b, i: vr(b + 2 * i, 2)

        def o_reduce(g):
            for i in range(3):
                e(f'ds_read_b32 v{R + 24 + i}, v{vRR + 3 + i} offset:{L_RING + 2304 * i + 2048}', f'or{i}')
            for i in range(3):
                o = L_RING + 2304 * i
                e(f'ds_read_b128 {vr(R + 8 * i, 4)}, v{vRR + i} offset:{o}', f'oa{i}')
                e(f'ds_read_b128 {vr(R + 8 * i + 4, 4)}, v{vRR + i} offset:{o + 1024}', f'oa{i}')
            if g == 0:
                for kk in range(2):
                    old(kk, f'o{kk}')
            e.wait(lg='or2')
            e(f'v_add_f32 v{R + 24}, v{R + 24}, v{R + 25}')
            e(f'v_add_f32 v{own + 8}, v{own + 8}, v{R + 26}')
            e(f'v_add_f32 v{own + 8}, v{own + 8}, v{R + 24}')
            e(f'v_subrev_u32 v{R + 24}, {(127 - 60) << 23}, v{own + 8}')
            e(f'v_cmp_lt_u32 vcc, {120 << 23}, v{R + 24}')
            e(f'v_fma_f32 v{R + 28}, v{own + 8}, v{vCO}, v{own + 8}')
            e(f'v_rcp_f32 v{R + 28}, v{R + 28}')
            for i in range(3):
                e.wait(lg=f'oa{i}')
                for r in range(4):
                    if g:
                        for h in range(2):
                            e(f'v_add_f32 v{own + 2 * r + h}, v{own + 2 * r + h}, v{R + 8 * i + 2 * r + h}')
                    else:
                        e(f'v_pk_add_f32 {P2(own, r)}, {P2(own, r)}, {P2(R + 8 * i, r)}')
            e('s_cbranch_vccnz Lsafe')
            e.label(f'Lsafe_done{g}')
            for r in range(8):
                e(f'v_mul_f32 v{own + r}, v{own + r}, v{R + 28}')
            for r in range(4):
                e(f'v_cvt_pk_bf16_f32 v{vK[0] + r}, v{own + 2 * r}, v{own + 2 * r + 1}')
            for r in range(4):
                e(f'v_min_u32 v{vK[0] + r}, -2, v{vK[0] + r}')
            e(f'buffer_store_dwordx4 {vr(vK[0], 4)}, v{vL16}, {srd(S_WS)}, s{sMO} offen sc1', 'ost')
            self.stamp(10)
            e(f's_lshr_b32 s{sT + 1}, s{sW}, 1')
            e(f's_lshl_b32 s{sT + 2}, s{sT + 1}, 14')
            e(f's_mul_i32 s{sT + 3}, s{sW}, {RINGW}')
            e(f's_sub_u32 s{sT + 2}, s{sT + 2}, s{sT + 3}')
            e(f's_add_u32 s{sT + 2}, s{sT + 2}, {L_WO}')
            e(f'v_and_b32 v{vP + 1}, 32, v0')
            e(f'v_lshlrev_b32 v{vP + 1}, 4, v{vP + 1}')
            e(f'v_sub_u32 v{vP + 1}, s{sT + 2}, v{vP + 1}')
            for jj in range(2):
                e(f'v_add_u32 v{vDR[jj]}, v{vP + 1}, v{vDR[jj]}')

        def old(kk, tag=None):
            for n in (2 * kk, 2 * kk + 1):
                e(f'buffer_load_dwordx4 {vr(OFR[kk] + 4 * (n & 1), 4)}, v{vL16}, {srd(S_WS)}, s{sO[HEADS[n] >> 2]} offen offset:{1024 * (HEADS[n] & 3)} sc1', tag)

        def wo_reads(n):
            for jj in range(2):
                for rd in range(2):
                    e(f'ds_read_b64_tr_b16 {vr(WO + 8 * n + 4 * jj + 2 * rd, 2)}, v{vDR[jj]} offset:{2048 * HEADS[n] + 1024 * rd}', f'wor{n}')

        def addrs(g, part=3):
            t0, t1 = vK[1] + 2, vK[1] + 3
            if part & 1:
                e(f'v_and_b32 v{vPW}, 31, v0')
                e(f'v_lshrrev_b32 v{t0}, 5, v0')
                e(f'v_and_b32 v{t1}, 7, v0')
                e(f'v_xor_b32 v{t0}, v{t0}, v{t1}')
                e(f'v_lshlrev_b32 v{t0}, 4, v{t0}')
                e(f'v_lshl_add_u32 v{vPW}, v{vPW}, 8, v{t0}')
                e(f's_lshl_b32 s{sT}, s{sTT}, 13')
                e(f's_add_u32 s{sT}, s{sT}, {98304 * g}')
                e(f'v_add_u32 v{vPW}, s{sT}, v{vPW}')
                for q in range(1, 4):
                    e(f'v_xor_b32 v{vPW + q}, {32 * q}, v{vPW}')
            if not part & 2:
                return
            e(f'v_lshrrev_b32 v{t0}, 3, v0')
            e(f'v_lshlrev_b32 v{vOA}, 4, v{t1}')
            e(f'v_lshl_add_u32 v{vOA}, v{t0}, 10, v{vOA}')
            e(f'v_lshlrev_b32 v{t1}, 1, v{t1}')
            e(f'v_xor_b32 v{t1}, v{t1}, v{t0}')
            e(f'v_lshlrev_b32 v{t1}, 4, v{t1}')
            e(f'v_lshl_add_u32 v{t1}, v{t0}, 8, v{t1}')
            e(f's_and_b32 s{sT + 2}, s{sW}, 1')
            e(f's_lshl_b32 s{sT + 2}, s{sT + 2}, 2')
            e(f's_add_u32 s{sT + 2}, s{sT + 2}, s{sT + 1}')
            e(f's_lshl_b32 s{sT + 3}, s{sT + 2}, 11')
            e(f'v_add_u32 v{vFRd}, s{sT + 3}, v{t1}')
            e(f'v_xor_b32 v{vFRd + 1}, 16, v{vFRd}')
            for h in range(2):
                e(f'v_xor_b32 v{vPR + h}, {8192 + L_PRE1}, v{vFRd + h}')
            for p in range(2):
                for h in range(2):
                    e(f'ds_read_b128 {vr(PRE + 8 * p + 4 * h, 4)}, v{vPR + h} offset:{16384 * p}', 'pr')
            for h in range(2):
                e(f'v_xor_b32 v{vPR + 2 + h}, 8192, v{vFRd + h}')
                e(f'v_add_u32 v{vPR + 4 + h}, 98304, v{vFRd + h}')
            e(f's_lshl_b32 s{sT}, s{sRB}, 3')
            e(f's_add_u32 s{sT}, s{sT}, s{sT + 2}')
            e(f's_lshl_b32 s{sT}, s{sT}, 13')
            e(f's_lshl_b32 s{sT + 1}, s{sCB}, 7')
            e(f's_add_u32 s{sT}, s{sT}, s{sT + 1}')

        def slab_write(g, i, n):
            jj, q = divmod(n, 4)
            e(f'ds_write_b128 v{vPW + q}, {vr(vG[2 * i + jj] + 4 * q, 4)} offset:{32768 * (i ^ g ^ 1) + 128 * jj}', 'sw')

        def mf(jj, n):
            acc = vr(vG[jj], 16)
            e(f'v_mfma_f32_32x32x16_bf16 {acc}, {vr(WO + 8 * n + 4 * jj, 4)}, {vr(OFR[n >> 1] + 4 * (n & 1), 4)}, {acc}')

        def mm(kk, between=None, jjs=(0, 1)):
            e.wait(vm=f'o{kk}')

            def ck():
                b = OFR[kk]
                e(f'v_max3_u32 v{vP}, v{b}, v{b + 1}, v{b + 2}')
                e(f'v_max3_u32 v{vP + 1}, v{b + 3}, v{b + 4}, v{b + 5}')
                e(f'v_max3_u32 v{vP}, v{vP}, v{b + 6}, v{b + 7}')
                e(f'v_max_u32 v{vP}, v{vP}, v{vP + 1}')
                e(f'v_cmp_eq_u32 vcc, -1, v{vP}')
            self.spin(f'o{kk}', lambda: [old(q) for q in range(kk, (kk | 1) + 1)], ck, self.opt['sl3'])
            for i, (jj, n) in enumerate(((0, 2 * kk), (0, 2 * kk + 1), (1, 2 * kk), (1, 2 * kk + 1))):
                if jj in jjs:
                    mf(jj, n)
                if between:
                    between(i)

        self.stamp(9)
        e(f's_cmp_lg_u32 s{sG}, 0')
        e('s_setprio 3')
        e.wait(vm='wo', lg='all')
        e('s_cbranch_scc1 Ltail1')
        snap = e.snapshot()
        self.tail_blocks.append(self.safe_softmax)

        def first_group():
            e.restore(snap)
            e.label('Ltail1')
            e(f'v_mov_b32 v{vPA}, {L_CNT}')
            e(f'v_mov_b32 v{vP}, 1')
            e('s_mov_b64 exec, 1')
            e(f'ds_add_u32 v{vPA}, v{vP} offset:4')
            e('s_mov_b64 exec, -1')

            def ld():
                e(f'ds_read_b64 {vr(vP, 2)}, v{vPA}')
                e('s_waitcnt lgkmcnt(0)')

            def ck():
                e(f'v_add_u32 v{vP}, v{vP}, v{vP + 1}')
                e(f'v_cmp_ne_u32 vcc, 12, v{vP}')
            ld()
            for p in e.paths:
                p.lg = []
            self.spin('g1', ld, ck, 1)
            o_reduce(1)
            addrs(1, 1)
            e('s_setprio 0')
            for n in range(8):
                wo_reads(n)
                slab_write(1, 1, n)
            e.wait(lg='all')
            e('s_barrier')
            for kk in range(4 if self.opt['ol'] == 0 else 2):
                old(kk, f'o{kk}')
            addrs(1, 2)
            e('s_barrier')
            self.stamp(11)
            finish(1, self.opt['ol'])
            e('s_branch Ltail2')
        self.tail_blocks.insert(0, first_group)

        def finish(g, late, k0=0):
            def pre_add(i):
                e.wait(lg='pr')
                for r in range(2 * i, 2 * i + 2):
                    e(f'v_add_f32 v{PRE + r}, v{PRE + r}, v{PRE + 8 + r}')
            for kk in range(k0, 4):
                if late == kk + 1:
                    for q in range(2, 4):
                        old(q, f'o{q}')
                e.wait(lg=f'wor{2 * kk + 1}')
                mm(kk, pre_add if kk == 3 else None)
            self.stamp(12)
            for n in range(8):
                slab_write(g, 0, n)
            e.wait(lg='all')

        e('s_barrier')
        o_reduce(0)
        YL = self.opt['yl']
        lateld = lambda: [old(q, f'o{q}') for q in range(2, 4)]
        if YL == 0:
            lateld()
        for n in range(4):
            wo_reads(n)
        addrs(0, 1)
        e('s_barrier')
        for kk in range(2):
            if YL == kk + 1:
                lateld()
            e.wait(lg=f'wor{2 * kk + 1}')

            def lds_work(i, kk=kk):
                slab_write(0, 1, 4 * kk + i)
                if i % 2:
                    wo_reads(4 + 2 * kk + i // 2)
            mm(kk, lds_work)
        if YL == 3:
            lateld()
        addrs(0, 2)
        self.stamp(11)
        finish(0, 0, 2)
        e.label('Ltail2')
        e('s_barrier')
        B = X
        src = [(vPR + 2, 0), (vPR + 2, 16384), (vPR + 4, 0), (vPR + 4, 16384), (vFRd, 32768), (vFRd, 49152)]
        for p, (va, off) in enumerate(src):
            for h in range(2):
                e(f'ds_read_b128 {vr(B + 8 * p + 4 * h, 4)}, v{va + h} offset:{off}', f'fr{p}')
        for p in range(6):
            e.wait(lg=f'fr{p}')
            for r in range(4):
                e(f'v_pk_add_f32 {P2(PRE, r)}, {P2(PRE, r)}, {P2(B + 8 * p, r)}')
        for r in range(4):
            e(f'v_cvt_pk_bf16_f32 v{B + r}, v{PRE + 2 * r}, v{PRE + 2 * r + 1}')
        e(f'buffer_store_dwordx4 {vr(B, 4)}, v{vOA}, {srd(S_OUT)}, s{sT} offen sc1')
        if 'probe' in self.opt:
            e.wait(vm='all')
            self.stamp(13)
            if self.opt.get('xcc') is not None:
                e(f's_getreg_b32 s{sT}, hwreg(HW_REG_XCC_ID, 0, 4)')
                e(f's_and_b32 s{sT}, s{sT}, {self.opt["xcc"]}')
                e(f's_mul_i32 s{sT}, s{sT}, 300')
                e('s_cmp_eq_u32 s2, 0')
                e(f's_cselect_b32 s{sT}, s{sT}, 0')
                e(f's_add_u32 s{sSTAMP}, s{sSTAMP}, s{sT}')
            e.label('Lprobe')
            e('s_sleep 1')
            e(f's_memrealtime s[{sSTMP}:{sSTMP + 1}]')
            e('s_waitcnt lgkmcnt(0)')
            e(f's_sub_u32 s{sSTMP}, s{sSTMP}, s{sNON if self.opt["probe"] == 99 else sSTAMP}')
            e(f's_cmp_lt_u32 s{sSTMP}, 6000')
            e('s_cbranch_scc1 Lprobe')
        if self.stamps:
            e.wait(vm='all')
            self.stamp(13)
            e(f's_lshl_b32 s{sT}, s2, 3')
            e(f's_add_u32 s{sT}, s{sT}, s{sW}')
            e(f's_lshl_b32 s{sT}, s{sT}, 6')
            e(f's_add_u32 s{sT}, s{sT}, {WS_ST}')
            e('s_waitcnt lgkmcnt(0)')
            en = [i for i in range(14) if (self.opt.get('smask', 0x2001) | 0x2001) >> i & 1]
            for k, i in enumerate(en):
                e(f'v_mov_b32 v{B + 8 + i}, s{sSTAMP + 2 * k}')
            e(f's_getreg_b32 s{sT + 1}, hwreg(HW_REG_XCC_ID, 0, 4)')
            e(f'v_mov_b32 v{B + 8 + 15}, s{sT + 1}')
            e('s_mov_b64 exec, 1')
            for i in range(4):
                e(f'buffer_store_dwordx4 {vr(B + 8 + 4 * i, 4)}, off, {srd(S_WS)}, s{sT} offset:{16 * i}')
        e.label('Lexit')
        e('s_endpgm')

    def safe_softmax(self):
        e = self.e
        e.paths = [p for p in Emitter().paths]
        own = vO[3]
        M = vO[0]
        S = vS[0]
        e.label('Lsafe')
        e(f's_and_b32 s{sT + 2}, s{sKVB}, {0xffffffff ^ (3 << 15)}')
        e(f's_mov_b32 s{sT + 3}, s{sT + 2}')
        e(f's_mov_b32 s{sT + 4}, 64')
        e(f'v_mov_b32 v{M}, 0xff800000')
        e.label('Lsafe1')
        e(f'buffer_load_dwordx4 {vr(vK[0], 4)}, v{vL16}, {srd(S_WS)}, s{sT + 3} offen sc1')
        e(f's_add_u32 s{sT + 3}, s{sT + 3}, 2048')
        e('s_waitcnt vmcnt(0)')
        e(f'v_mfma_f32_32x32x16_bf16 {vr(S, 16)}, {vr(vK[0], 4)}, {vr(vQ[3], 4)}, 0')
        for i in range(0, 16, 2):
            e(f'v_max3_f32 v{M}, v{M}, v{S + i}, v{S + i + 1}')
        e(f's_sub_u32 s{sT + 4}, s{sT + 4}, 1')
        e(f's_cmp_lg_u32 s{sT + 4}, 0')
        e('s_cbranch_scc1 Lsafe1')
        e(f'v_mov_b32 v{M + 1}, v{M}')
        e(f'v_permlane32_swap_b32 v{M}, v{M + 1}')
        e(f'v_max_f32 v{M}, v{M}, v{M + 1}')
        e(f'v_sub_f32 v{M}, 0, v{M}')
        for i in range(1, 16):
            e(f'v_mov_b32 v{M + i}, v{M}')
        for i in range(16):
            e(f'v_mov_b32 v{own + i}, 0')
        e(f's_mov_b32 s{sT + 3}, s{sT + 2}')
        e(f's_mov_b32 s{sT + 4}, 64')
        e.label('Lsafe2')
        e(f'buffer_load_dwordx4 {vr(vK[0], 4)}, v{vL16}, {srd(S_WS)}, s{sT + 3} offen sc1')
        e(f's_mov_b64 exec, s[{sVM}:{sVM + 1}]')
        e(f'buffer_load_dwordx4 {vr(vV[0], 4)}, v{vVA}, {srd(S_WS)}, s{sT + 3} offen offset:1024 sc1')
        e(f'buffer_load_dwordx4 {vr(vV[0] + 4, 4)}, v{vVA}, {srd(S_WS)}, s{sT + 3} offen offset:1536 sc1')
        e('s_mov_b64 exec, -1')
        e(f's_add_u32 s{sT + 3}, s{sT + 3}, 2048')
        e('s_waitcnt vmcnt(0)')
        e(f'v_mfma_f32_32x32x16_bf16 {vr(S, 16)}, {vr(vK[0], 4)}, {vr(vQ[3], 4)}, {vr(M, 16)}')
        for i in range(16):
            e(f'v_exp_f32 v{S + i}, v{S + i}')
        for hi in range(2):
            e(f'v_smfmac_f32_32x32x32_bf16 {vr(own, 16)}, {vr(vV[0] + 4 * hi, 4)}, {vr(S + 8 * hi, 8)}, v{vIDX}')
        e(f's_sub_u32 s{sT + 4}, s{sT + 4}, 1')
        e(f's_cmp_lg_u32 s{sT + 4}, 0')
        e('s_cbranch_scc1 Lsafe2')
        e('s_nop 15')
        e(f'v_fma_f32 v{vO[0] + 28}, v{own + 8}, v{vCO}, v{own + 8}')
        e(f'v_rcp_f32 v{vO[0] + 28}, v{vO[0] + 28}')
        e(f's_cmp_lg_u32 s{sG}, 0')
        e('s_cbranch_scc1 Lsafe_done1')
        e('s_branch Lsafe_done0')

    def build(self):
        e = self.e
        self.prologue()
        e.drop = (None, ('v_mfma',), ('v_mfma', 'ds_read_b64_tr'), ('ds_read_b64_tr',))[self.opt.get('x_drop', 0)]
        snap = e.snapshot()
        e.label('Lload')
        self.phase_a_loader()
        self.phase_f(1, 3)
        e('s_branch Lffn')
        ends = e.snapshot()
        cends = []
        for ty in (0, 1):
            e.restore(snap)
            e.label(f'Lcomp{ty}')
            e.comment('---- compute waves: four heads of ' + 'kv'[ty] + ' and the gate logit')
            self.phase_a_compute(ty)
            if ty == 0:
                e('s_branch Lpack')
            cends += e.snapshot()
        e.paths = cends
        e.label('Lpack')
        e(f's_mul_i32 s{sT}, s{sJ}, 43691')
        e(f's_lshr_b32 s{sT}, s{sT}, 17')
        e(f's_mul_i32 s{sT}, s{sT}, 3')
        for i in range(4):
            self.pack8(ACA + 8 * i, ACA + 4 * i)
            if i < self.opt['qe']:
                self.kv_store(i)
        self.z_write()
        e(f's_cmp_lt_u32 s{sJU}, 6' if self.opt['um'] else f's_cmp_eq_u32 s{sT}, s{sJ}')
        e('s_cbranch_scc1 Lsix')
        snap = e.snapshot()
        for NC in (2, 3):
            e.restore(snap)
            if NC == 3:
                e.label('Lsix')
            e('s_barrier')
            self.stamp(4)
            self.phase_f(0, NC)
            if NC == 2:
                e('s_branch Lffn')
            ends += e.snapshot()
        e.paths = ends
        e.label('Lffn')
        e.drop = None
        self.attn_loads_late()
        self.stamp(6)
        self.attention()
        self.tail()
        i = 0
        while i < len(self.tail_blocks):
            self.tail_blocks[i]()
            i += 1
        e.label('Lcode_end')
        return self.wrap()

    def wrap(self):
        head = open('gated_mix__softmax_full_mha__glu_gated_geglu__prompt.s.ref').read().split('; Override')[0]
        return head + f"""; @launch grid=(256,1,1) block=(512,1,1) lds={LDS_BYTES}
{DOC}.amdgcn_target "amdgcn-amd-amdhsa--gfx950"
.text
.globl {KNAME}
.p2align 8
.type {KNAME},@function
{KNAME}:
{self.e.text()}
.section .rodata,"a"
.p2align 6
.amdhsa_kernel {KNAME}
  .amdhsa_next_free_vgpr 256
  .amdhsa_next_free_sgpr 102
  .amdhsa_accum_offset 256
  .amdhsa_group_segment_fixed_size 0
  .amdhsa_kernarg_size 88
  .amdhsa_user_sgpr_count 2
  .amdhsa_user_sgpr_kernarg_segment_ptr 1
  .amdhsa_system_sgpr_workgroup_id_x 1
.end_amdhsa_kernel
"""


if __name__ == '__main__':
    out = sys.argv[1]
    stamps = sys.argv[2] if len(sys.argv) > 2 and sys.argv[2] in ('rt', 'cy') else False
    opt = {}
    for a in sys.argv[2:]:
        if '=' in a:
            k, v = a.split('=')
            opt[k] = int(v, 0)
    g = Gen(stamps=stamps, opt=opt)
    open(out, 'w').write(g.build())
    print('nops inserted:', g.e.nops, 'lines:', len(g.e.lines))
```

```python
import sys, importlib
out = sys.argv[1]; toks = sys.argv[2:]
mod = 'gen'
if toks and toks[0].startswith('@'): mod = toks.pop(0)[1:]
G = importlib.import_module(mod)
opt = {'probe': 0}
for t in toks:
    k, v = t.split('='); opt[k] = int(v, 0)
s = G.Gen(opt=opt).build()
st = G.sSTMP
t = s.replace('Lprobe:', f"""    s_barrier
    s_memrealtime s[90:91]
    s_cmp_lg_u32 s44, 4
    s_cbranch_scc1 Lexit
    s_lshl_b32 s68, s2, 3
    s_add_u32 s68, s68, {G.WS_ST}
    s_waitcnt lgkmcnt(0)
    v_mov_b32 v2, s68
    v_mov_b32 v4, s88
    v_mov_b32 v5, s90
    buffer_store_dwordx2 v[4:5], v2, s[16:19], 0 offen sc1
    s_waitcnt vmcnt(0)
    s_cmp_lg_u32 s2, 0
    s_cbranch_scc1 Lexit
    s_movk_i32 s69, 16
Lw8:
    s_sleep 32
    s_sub_u32 s69, s69, 1
    s_cmp_lg_u32 s69, 0
    s_cbranch_scc1 Lw8
    v_lshlrev_b32 v2, 5, v0
    v_add_u32 v2, {G.WS_ST}, v2
    buffer_load_dwordx4 v[4:7], v2, s[16:19], 0 offen sc1
    buffer_load_dwordx4 v[8:11], v2, s[16:19], 0 offen offset:16 sc1
    s_waitcnt vmcnt(0)
    v_min_u32 v4, v4, v6
    v_min3_u32 v4, v4, v8, v10
    v_max_u32 v5, v5, v7
    v_max3_u32 v5, v5, v9, v11
    s_mov_b32 s69, 0
    s_mov_b32 s70, -1
    s_mov_b32 s71, 0
Lrd:
    s_nop 4
    v_readlane_b32 s72, v4, s69
    v_readlane_b32 s68, v5, s69
    s_nop 4
    s_min_u32 s70, s70, s72
    s_max_u32 s71, s71, s68
    s_add_u32 s69, s69, 1
    s_cmp_lt_u32 s69, 64
    s_cbranch_scc1 Lrd
    s_sub_u32 s71, s71, s70
    s_max_u32 s71, s71, 2400
    s_min_u32 s71, s71, 3400
    s_sub_u32 s71, s71, 2400
    s_mul_i32 s71, s71, 10
    s_add_u32 s88, s70, s71
Lprobe:""").replace(f's_cmp_lt_u32 s{st}, 6000', f's_cmp_lt_i32 s{st}, 6000')
open(out, 'w').write(t)
```

```python
import sys, math, struct
from asmlib import Emitter, Win

KNAME = 'gated_mix__softmax_full_mha__glu_gated_geglu__prompt_kernel'

WS_Q = 0
WS_KV = 2 << 20
WS_O = 6 << 20
WS_F1 = 8 << 20
WS_F2 = WS_F1 + 32768
WS_ST = WS_F1 + 65536
WS_H = 9 << 20
HBLK = 86 * 2048
WS_END = 15 << 20

L_GW = 0
L_Z = 1024
SLOT0 = 4096
UPOFF = 12288
QOFF = 24576
L_QX = 147456
L_RING = 4096
RINGW = 7168
L_WO = 65536
L_PRE1 = 131072
L_CNT = 2048
LDS_BYTES = 163840

S_X, S_WQ, S_WF, S_WS, S_H, S_WD, S_WO, S_OUT, S_DBG, S_GW = [4 * i + 4 for i in range(10)]
S_WG = 80
sW, sTT, sG, sJ, sTB, sRB, sCB, sUS = range(44, 52)
sXO, sWO, sFO, sMX, sMW, sMF = range(52, 58)
sNON = 58
sKV, sKVB, sKVI, sHO, sDO, sMD = range(60, 66)
sVM = 66
sT = 68
sGC = 76
sQX = [40, 41, 42, 43]
sQW = 78
sXO2 = 79
sSPIN = 84
sMO = 85
sFO2 = 86
sJU = 87
sMG = 3
sO = [4, 5]
sR = 73
sE = [4, 5, 6, 7]
sSTMP = 74
sSTAMP = 88


def region(s):
    return SLOT0 + 28672 * (s % 5)


def srd(b):
    return f's[{b}:{b + 3}]'


def vr(b, n):
    return f'v[{b}:{b + n - 1}]' if n > 1 else f'v{b}'


def fbits(x):
    return '0x%08x' % struct.unpack('<I', struct.pack('<f', x))[0]


vL16 = 1
vXD = [2, 3]
vWD = 4
vFD = 5
vXR = [6, 7]
vWR = [8, 2]
vFR = [9, 10, 11]
FR = 16
NFR = 5
ACA = 36
ACF = 68
vK = [116, 120]
vCH, vIDX, vVA = 124, 126, 127
vQR = 126
QA = ACA + 16
X = 128
vO = [X + 16 * i for i in range(4)]
vQ = [X + 64 + 4 * i for i in range(4)]
vV = [ACA, ACA + 8]
vS = [ACA + 16, X + 80]
vG = [ACF, ACF + 16, ACF + 32, X + 96]
vH = [X + 112, X + 120]
vD = FR
vCO = FR + 8
vDD = [2, 3]
vDR = [12, 13]
vP = 14
vPA = 6
vRW = [7, 8]
vHA = [9, 10]
vKA = 124
vRR = FR + 10

LOG2E = 1.4426950408889634
QSCALE = 0.25 * LOG2E
GC0 = -2.0 * LOG2E * math.sqrt(2.0 / math.pi)
GC1 = GC0 * 0.044715
SPIN = 400000
FL = ('', ' sc1', ' nt', ' sc1 nt')

DOC = """;
;
;   1. k/v projection   x and 64 columns of w_k (even j) or w_v (odd j) stream through an LDS ring by LDS-DMA
;                       (waves 4-7 load, waves 0-3 multiply); x stays in registers; k, v go to d_ws as MFMA operands.
;   2. q + gate/up      q of heads 2j, 2j+1 (scaled by log2(e)/4) and 5 or 6 units of 16 gate/up columns;
;   3. attention        wave (kq, head) runs 4 query tiles against a quarter of the keys:
;                       S^T = K Q^T (v_mfma 32x32x16), P = v_exp_f32(S), O^T += V^T P^T with v_smfmac 32x32x32, whose
;
; Softmax guard: the fast path uses the shift 0. Every row sum is then checked at run time; if any lies outside
; [2^-60, 2^60] (or is not finite) the query tile is recomputed in two passes with the true row maximum (Lsafe).
;
"""


class Gen:
    def __init__(self, stamps=False, opt=None):
        self.e = Emitter()
        self.stamps = stamps
        self.nst = 0
        self.opt = dict(g2start=5, prio=True, ahead=12, span=12, fah=2, omf=0, lfirst=3, as2=6, ahead2=8, tlb=0, bt=0, rx=1, btm=999, btx=0, tch=200, tca=8, tcw=7, dsplit=1, ys=2, fw=0, fx=0, fh=1, p1i=74, p1c=83, gsp=10, g0=0, fk=2, gk=3, lpre=50, cpre=40, lfk=20, llast=2, lsp2=1,
                        pa=4, pb=52, pc=200, ol=3, yl=3, woi=8, hs=7, gwl=1, spf=0, i0=12, nm=4, gu=1, ng1=0, ng2=0, ng3=0, gt=0, gx=0, gy=2, um=0xc084, qw=11, vs=10, qe=0, q0=1, qsp=5, om=-2, s2t=3, rot=4, rj=0, zm=1, hl=0, hsp=1,
                        fs=7, lp=1, eb=1, sl1=4, sl2=8, sl3=2, lsp=3)
        if opt:
            self.opt.update(opt)
        self.tail_blocks = []

    def stamp(self, idx, sset=0):
        e = self.e
        if self.opt.get('sset') == 4:
            if 7 <= idx <= 9 and sset != 4:
                return
        elif 7 <= idx <= 12 and sset != self.opt.get('sset', 0):
            return
        if self.opt.get('probe') == idx:
            e(f's_memrealtime s[{sSTAMP}:{sSTAMP + 1}]')
            e('s_waitcnt lgkmcnt(0)')
            for p in e.paths:
                p.lg = []
        if not self.stamps or not (self.opt.get('smask', 0x2001) | 0x2001) >> idx & 1:
            return
        en = [i for i in range(14) if (self.opt.get('smask', 0x2001) | 0x2001) >> i & 1]
        assert len(en) <= 7
        r = sSTAMP + 2 * en.index(idx)
        e(f"{'s_memtime' if self.stamps == 'cy' else 's_memrealtime'} s[{r}:{r + 1}]")

    def dma_list(self, s):
        e = self.e
        slot = region(s)
        out = []
        tag = f'st{s}'

        def mk(m0s, m0c, va, rs, so, imm=0, pre=(), tag=tag):
            def f(part=3):
                if part & 1:
                    e(f's_add_u32 m0, s{m0s}, {m0c - imm}')
                    for p in pre:
                        e(p)
                if part & 2:
                    e(f'buffer_load_dwordx4 v{va}, {srd(rs)}, s{so} offen' + (f' offset:{imm}' if imm else '') + (FL[self.opt['fx']] if rs == S_X else '') + ' lds', tag)
            f.dma = True
            out.append(f)
        t = sT + 6

        def step(so, n):
            if s % 8 == 0:
                return ()
            if s % (8 // self.opt['rot']) and not self.opt['rx'] & 2:
                return [f's_add_u32 s{so}, s{so}, {n}']
            return [f's_cmp_eq_u32 s{sR}, {-s % 8}', f's_cselect_b32 s{t}, -7, 1', f's_mul_i32 s{t}, s{t}, {n}', f's_add_u32 s{so}, s{so}, s{t}']
        if s < 8:
            for i in range(4):
                mk(sMX, slot + i * 1024, vXD[i % 2], S_X, sXO if i < 2 else sXO2,
                   pre=step(sXO, 128) if i == 0 else ([f's_add_u32 s{sXO2}, s{sXO}, 16384'] if i == 1 else ()))
            for i in range(2):
                mk(sMW, slot + 16384 + i * 1024, vWD, S_WQ, sWO, imm=64 * i, pre=step(sWO, 64 * 3072) if i == 0 else ())
        else:
            mk(sMF, slot + QOFF, vWD, S_WQ, sQW, pre=step(sQW, 64 * 3072))
            if self.opt['gu']:
                assert self.opt['rot'] == 4 and not self.opt['rx'] & 2
                adv = [f's_cmp_eq_u32 s{sR}, {-2 * s % 8}', f's_cselect_b32 s{t}, -3, 1',
                       f's_mul_i32 s{t}, s{t}, {128 * 2752}', f's_add_u32 s{sFO}, s{sFO}, s{t}'] if s > 8 else []
                for h in range(2):
                    for i in range(3):
                        mk(sMG, slot + h * UPOFF + i * 1024, vFD, S_WG if s < 12 else S_WF, sFO2 if h else sFO, imm=64 * i, tag=tag + 'b',
                           pre=adv if h + i == 0 else ([f's_add_u32 s{sFO2}, s{sFO}, {64 * 2752}'] if (h, i) == (0, 1) else ()))
                return out
            for h in range(2):
                for i in range(3):
                    mk(sMG, slot + h * 6144 + i * 1024, vFD, S_WF, sFO2 if h else sFO, imm=64 * i, tag=tag + 'b' * h,
                       pre=step(sFO, 64 * 2752) if h + i == 0 else ([f's_add_u32 s{sFO2}, s{sFO}, {32 * 2752}'] if (h, i) == (0, 1) else ()))
        return out

    def prologue(self):
        e = self.e
        self.stamp(0)
        e('s_cmp_ge_u32 s2, 256')
        e('s_cbranch_scc1 Lexit')
        e(f's_load_dwordx2 s[{S_X}:{S_X + 1}], s[0:1], 0')
        e(f's_load_dwordx2 s[{S_WQ}:{S_WQ + 1}], s[0:1], 8')
        if not self.opt['spf']:
            e(f's_getpc_b64 s[{sT}:{sT + 1}]')
            e.label('Lpfbase')
            e(f's_lshr_b32 s{sT + 2}, s2, 3')
            e(f's_lshl_b32 s{sT + 2}, s{sT + 2}, 11')
            e(f'v_lshl_add_u32 v16, v0, 2, s{sT + 2}')
            e('v_min_u32 v16, Lcode_end-Lpfbase-4, v16')
        e('v_lshrrev_b32 v2, 6, v0')
        if not self.opt['spf']:
            e('s_mov_b32 exec_lo, 1')
            e('s_mov_b32 exec_hi, 1')
            e(f'global_load_dword v{vK[1]}, v16, s[{sT}:{sT + 1}]', 'pf')
            e('s_mov_b64 exec, -1')
        e('v_and_b32 v0, 63, v0')
        e(f'v_readfirstlane_b32 s{sW}, v2')
        e(f's_xor_b32 s{sW}, s{sW}, 4')
        e(f's_and_b32 s{sTT}, s{sW}, 3')
        e(f's_lshr_b32 s{sG}, s{sW}, 2')
        e('s_cbranch_scc1 Lload')
        if self.opt['spf']:
            e(f's_getpc_b64 s[{sT}:{sT + 1}]')
            e.label('Lpfbase')
            e(f's_lshr_b32 s{sT + 2}, s2, 3')
            e(f's_lshl_b32 s{sT + 2}, s{sT + 2}, 2')
            e(f's_add_u32 s{sT + 2}, s{sT + 2}, s{sTT}')
            e(f's_mul_i32 s{sT + 2}, s{sT + 2}, 384')
            e(f's_min_u32 s{sT + 2}, s{sT + 2}, Lcode_end-Lpfbase-384')
            e(f's_add_u32 s{sT}, s{sT}, s{sT + 2}')
            e(f's_addc_u32 s{sT + 1}, s{sT + 1}, 0')
            for k in range(0, 6, self.opt['spf']):
                e(f's_load_dword s{sKV + k}, s[{sT}:{sT + 1}], {64 * k}')
        e('s_bitcmp1_b32 s2, 3')
        e('s_cbranch_scc1 Lcomp1')
        e('s_branch Lcomp0')

    def ids_tb(self):
        e = self.e
        R = self.opt['rot']
        e(f's_and_b32 s{sTB}, s2, 4')
        e(f's_lshl_b32 s{sTB}, s{sTB}, 1')
        e(f's_lshr_b32 s{sT + 6}, s2, 5')
        e(f's_add_u32 s{sTB}, s{sTB}, s{sT + 6}')
        RX = self.opt['rx']
        if RX & 1:
            e(f's_mul_i32 s{sR}, s2, {R // 4}')
            e(f's_add_u32 s{sR}, s{sR}, s{sTB}')
        e(f's_and_b32 s{sR}, s{sR if RX & 1 else sTB}, {R - 1}')
        e(f's_mul_i32 s{sR}, s{sR}, {8 // R}')
        if RX & 2:
            e(f's_lshr_b32 s{sT + 6}, s{sTB}, 3')
            e(f's_add_u32 s{sR}, s{sR}, s{sT + 6}')

    def more_args(self, g):
        e = self.e
        lst = ([(S_WG, 32), (S_WF, 40)] if g else []) + ([(S_GW, 56)] if g == self.opt['gwl'] else [])
        for b, off in lst + [(S_DBG, 72), (S_WS, 80), (S_H, 80), (S_WD, 48), (S_WO, 16), (S_OUT, 64)]:
            e(f's_load_dwordx2 s[{b}:{b + 1}], s[0:1], {off}')
        e(f'v_lshlrev_b32 v{vL16}, 4, v0')

    def ids_j(self):
        e = self.e
        e(f's_and_b32 s{sJ}, s2, 3')
        e(f's_lshl_b32 s{sJ}, s{sJ}, 2')
        e(f's_bfe_u32 s{sT + 6}, s2, 0x20003')
        e(f's_add_u32 s{sJ}, s{sJ}, s{sT + 6}')

    def quad_rows(self, dst, stride, t):
        e = self.e
        e(f'v_lshrrev_b32 v{t}, 4, v0')
        e(f'v_and_b32 v{t}, 2, v{t}')
        e(f'v_xor_b32 v{t}, v{t}, v0')
        e(f'v_and_b32 v{t}, 3, v{t}')
        e(f'v_lshrrev_b32 v{dst}, 2, v0')
        e(f'v_mul_u32_u24 v{dst}, {stride}, v{dst}')
        e(f'v_lshl_add_u32 v{dst}, v{t}, 4, v{dst}')

    def tr_base(self, dst, gstride, t):
        e = self.e
        e(f'v_lshrrev_b32 v{dst}, 5, v0')
        e(f'v_mul_u32_u24 v{dst}, {gstride}, v{dst}')
        e(f'v_bfe_u32 v{t}, v0, 4, 1')
        e(f'v_mul_u32_u24 v{t}, {512 + 32}, v{t}')
        e(f'v_add_u32 v{dst}, v{dst}, v{t}')
        e(f'v_bfe_u32 v{t}, v0, 2, 2')
        e(f'v_lshl_add_u32 v{dst}, v{t}, 6, v{dst}')
        e(f'v_and_b32 v{t}, 3, v0')
        e(f'v_lshl_add_u32 v{dst}, v{t}, 3, v{dst}')

    def srd_consts(self, lst):
        for b, n in lst:
            self.e(f's_mov_b32 s{b + 2}, {n}')
            self.e(f's_mov_b32 s{b + 3}, 0x20000')

    def x_read_addrs(self):
        e = self.e
        e('v_and_b32 v16, 15, v0')
        e(f's_lshl_b32 s{sT + 6}, s{sTT}, 12')
        e('v_lshrrev_b32 v17, 4, v0')
        e('v_lshrrev_b32 v18, 1, v16')
        e('v_xor_b32 v18, v18, v17')
        e('v_lshlrev_b32 v18, 4, v18')
        e('v_lshl_add_u32 v18, v16, 7, v18')
        e(f'v_add_u32 v{vXR[0]}, s{sT + 6}, v18')
        e(f'v_xor_b32 v{vXR[1]}, 64, v{vXR[0]}')

    def setup2(self, g, ty):
        e = self.e
        t = sT
        self.srd_consts(([(S_DBG, 256), (S_WF, 512 * 2752)] + ([(S_WG, 512 * 2752)] if self.opt['gu'] else []) if g else []) +
                        [(S_WS, WS_END), (S_H, HBLK), (S_WD, 1376 * 1024), (S_WO, 512 * 1024), (S_OUT, 2048 * 1024)])
        if self.opt['um']:
            e(f's_and_b32 s{t}, s{sJ}, 12')
            e(f's_lshr_b32 s{t}, {self.opt["um"]}, s{t}')
            e(f's_and_b32 s{t}, s{t}, 12')
            e(f's_and_b32 s{sJU}, s{sJ}, 3')
            e(f's_add_u32 s{sJU}, s{sJU}, s{t}')
            e(f's_min_u32 s{t}, s{sJU}, 6')
            e(f's_mul_i32 s{sUS}, s{sJU}, 5')
            e(f's_add_u32 s{sUS}, s{sUS}, s{t}')
        else:
            e(f's_lshl_b32 s{sUS}, s{sJ}, 4')
            e(f's_add_u32 s{sUS}, s{sUS}, 2')
            e(f's_mul_i32 s{sUS}, s{sUS}, 43691')
            e(f's_lshr_b32 s{sUS}, s{sUS}, 17')
        if g:
            e(f's_lshl_b32 s{t + 1}, s{sR}, 2')
            e(f's_add_u32 s{t + 1}, s{t + 1}, s{sTT}')
            if self.opt['gu']:
                e(f's_mul_i32 s{sFO}, s{t + 1}, {16 * 2752}')
            else:
                e(f's_cmp_lt_u32 s{sTT}, 2\n    s_cselect_b32 s{S_WF}, s{S_WG}, s{S_WF}\n    s_cselect_b32 s{S_WF + 1}, s{S_WG + 1}, s{S_WF + 1}')
                e(f's_and_b32 s{sFO}, s{t + 1}, -3')
                e(f's_mul_i32 s{sFO}, s{sFO}, {16 * 2752}')
            e(f's_lshr_b32 s{t}, s{sUS}, 1')
            e(f's_lshl_b32 s{t}, s{t}, 6')
            e(f's_add_u32 s{sFO}, s{sFO}, s{t}')
            e(f's_mul_i32 s{sQW}, s{t + 1}, {16 * 3072}')
            e(f's_lshl_b32 s{t}, s{sJ}, 6')
            e(f's_add_u32 s{sQW}, s{sQW}, s{t}')
            e(f's_and_b32 s{sMG}, s{sTT}, {0 if self.opt["gu"] else 2}')
            e(f's_add_u32 s{sMG}, s{sMG}, s{sTT}')
            e(f's_mul_i32 s{sMG}, s{sMG}, 3072')
            e(f's_lshl_b32 s{sMF}, s{sTT}, 10')
            self.quad_rows(vFD, 2752, vP)
        first = 0 if g else 3
        self.tr_base(vP + 1, 3072, vP)
        for c in range(3):
            e(f's_and_b32 s{t}, s{sUS}, 1')
            e(f's_add_u32 s{t}, s{t}, {first + c}')
            e(f's_lshr_b32 s{t + 1}, s{t}, 1')
            e(f's_lshl_b32 s{t + 1}, s{t + 1}, 10')
            e(f's_and_b32 s{t}, s{t}, 1')
            e(f's_lshl_b32 s{t}, s{t}, 5')
            e(f'v_xor_b32 v{vFR[c]}, s{t}, v{vP + 1}')
            e(f'v_add_u32 v{vFR[c]}, s{t + 1}, v{vFR[c]}')
        e(f'v_lshrrev_b32 v{vP}, 5, v0')
        e(f'v_lshlrev_b32 v{vVA}, 11, v{vP}')
        e(f'v_sub_u32 v{vQR}, v{vP + 1}, v{vVA}')
        if g:
            e(f'v_xor_b32 v{vQR}, 32, v{vQR}')
        e(f's_and_b32 s{sRB}, s2, 7')
        e(f's_xor_b32 s{sRB}, s{sRB}, 4')
        e(f's_lshl_b32 s{sRB}, s{sRB}, 2')
        e(f's_lshr_b32 s{t}, s2, 6')
        e(f's_add_u32 s{sRB}, s{sRB}, s{t}')
        e(f's_mul_i32 s{t}, s{sRB}, {HBLK}')
        e(f's_add_u32 s{t}, s{t}, {WS_H}')
        e(f's_add_u32 s{S_H}, s{S_H}, s{t}\n    s_addc_u32 s{S_H + 1}, s{S_H + 1}, 0')
        e(f's_bfe_u32 s{sCB}, s2, 0x30003')
        e(f's_mov_b32 s{sVM}, 0xffff')
        e(f's_mov_b32 s{sVM + 1}, 0xffff')
        e(f's_mov_b32 s{sGC}, {fbits(GC1)}')
        e(f's_mov_b32 s{sGC + 1}, s{sGC}')
        e(f'v_and_b32 v{vVA}, 15, v0')
        e(f'v_lshl_add_u32 v{vVA}, v{vP}, 4, v{vVA}')
        e(f'v_lshlrev_b32 v{vVA}, 4, v{vVA}')
        e(f's_lshl_b32 s{t}, s{sTB}, 2')
        e(f's_add_u32 s{t}, s{t}, s{sTT}')
        e(f's_lshr_b32 s{sHO}, s{t}, 1')
        e(f's_mul_i32 s{sHO}, s{sHO}, 86')
        e(f's_add_u32 s{sHO}, s{sHO}, s{sUS}')
        e(f's_lshl_b32 s{sHO}, s{sHO}, 1')
        e(f's_and_b32 s{t + 1}, s{t}, 1')
        e(f's_add_u32 s{sHO}, s{sHO}, s{t + 1}')
        e(f's_lshl_b32 s{sHO}, s{sHO}, 10')
        e(f's_add_u32 s{sHO}, s{sHO}, {WS_H + 2048 * first}')
        e(f's_lshl_b32 s{sMO}, s{t}, 4')
        e(f's_add_u32 s{sMO}, s{sMO}, s{sJ}')
        e(f's_lshl_b32 s{sMO}, s{sMO}, 11')
        e(f's_add_u32 s{sMO}, s{sMO}, {g * 1024 + WS_O}')
        if g == 0:
            e(f's_lshr_b32 s{sE[0]}, s{sJ}, 1')
            e(f's_lshl_b32 s{sE[0]}, s{sE[0]}, 8')
            e(f's_add_u32 s{sE[0]}, s{sE[0]}, s{t}')
            e(f's_lshl_b32 s{sE[0]}, s{sE[0]}, 11')
            e(f's_add_u32 s{sE[0]}, s{sE[0]}, {WS_KV + 1024 * ty}')
            for i in range(1, 4):
                e(f's_add_u32 s{sE[i]}, s{sE[0]}, {262144 * (i >> 1) + 512 * (i & 1) if ty else 131072 * i}')
            if ty:
                e(f'v_bfe_u32 v{vWD}, v0, 4, 1')
                e(f'v_lshl_add_u32 v{vWD}, v{vWD}, 17, v{vVA}')
            else:
                e(f'v_mov_b32 v{vWD}, v{vL16}')
        e(f's_lshl_b32 s{sKVB}, s{sJ}, 3')
        e(f's_add_u32 s{sKVB}, s{sKVB}, s{sW}')
        e(f's_lshl_b32 s{sKVB}, s{sKVB}, 15')
        e(f's_add_u32 s{sKVB}, s{sKVB}, {WS_KV}')
        e(f's_and_b32 s{sKVI}, s{sTB}, 7')
        e(f's_lshl_b32 s{sKVI}, s{sKVI}, 12')
        e(f's_and_b32 s{sKV}, s{sJ}, 14')
        e(f's_lshl_b32 s{sKV}, s{sKV}, 2')
        e(f's_add_u32 s{sKV}, s{sKV}, s{sTT}')
        e(f's_lshl_b32 s{sKV}, s{sKV}, {2 + self.opt["fs"]}')
        e(f's_add_u32 s{sKV}, s{sKV}, {WS_F1}')
        for i in range(4):
            e(f's_add_u32 s{sQX[i]}, s{sTT}, {1 + i}')
            e(f's_and_b32 s{sQX[i]}, s{sQX[i]}, 3')
            e(f's_lshl_b32 s{sQX[i]}, s{sQX[i]}, 10')
            e(f's_add_u32 s{sQX[i]}, s{sQX[i]}, {L_QX + 4096 * g}')
        e(f's_mul_i32 s{sMD}, s{sW}, {RINGW}')
        e(f's_mul_i32 s{sDO}, s{sW}, {11 * 16384}')
        e(f's_lshl_b32 s{t}, s{sCB}, 7')
        e(f's_add_u32 s{sDO}, s{sDO}, s{t}')
        e(f'v_bfe_u32 v{vDR[0]}, v0, 2, 2')
        e(f'v_lshl_add_u32 v{vDR[0]}, v{vP}, 3, v{vDR[0]}')
        e(f'v_lshlrev_b32 v{vDR[0]}, 7, v{vDR[0]}')
        e(f'v_bfe_u32 v{vP}, v0, 4, 1')
        e(f'v_lshl_add_u32 v{vDR[0]}, v{vP}, 5, v{vDR[0]}')
        e(f'v_bfe_u32 v{vP}, v0, 3, 1')
        e(f'v_lshl_add_u32 v{vDR[0]}, v{vP}, 6, v{vDR[0]}')
        e(f'v_and_b32 v{vP}, 3, v0')
        e(f'v_lshl_add_u32 v{vDR[0]}, v{vP}, 3, v{vDR[0]}')
        e(f'v_add_u32 v{vDR[0]}, s{sMD}, v{vDR[0]}')
        e(f'v_xor_b32 v{vDR[1]}, 64, v{vDR[0]}')

    def phase_a_loader(self):
        e = self.e
        o = self.opt
        seq = []
        bound = []
        last = 7 + o['fah']
        for s in range(last + 1):
            bound.append(len(seq))
            seq += self.dma_list(s)
        bound.append(len(seq))
        pos = 0

        def issue(upto):
            nonlocal pos
            while pos < min(upto, len(seq)):
                seq[pos]()
                pos += 1
        self.ids_tb()
        e('v_lshrrev_b32 v16, 3, v0')
        e('v_lshrrev_b32 v17, 4, v0')
        e('v_and_b32 v18, 7, v0')
        e('v_xor_b32 v18, v18, v17')
        e('v_lshlrev_b32 v18, 4, v18')
        e(f'v_lshl_add_u32 v{vXD[0]}, v16, 10, v18')
        e(f'v_xor_b32 v{vXD[1]}, 64, v{vXD[0]}')
        e(f'v_add_u32 v{vXD[1]}, 8192, v{vXD[1]}')
        e(f's_lshl_b32 s{sXO}, s{sTB}, 2')
        e(f's_add_u32 s{sXO}, s{sXO}, s{sTT}')
        e(f's_lshl_b32 s{sXO}, s{sXO}, 8')
        e(f's_add_u32 s{sXO}, s{sXO}, s{sR}')
        e(f's_lshl_b32 s{sXO}, s{sXO}, 7')
        e(f's_lshl_b32 s{sMX}, s{sTT}, 12')
        self.srd_consts(((S_X, 2048 * 1024),))
        e('s_waitcnt lgkmcnt(0)')
        self.stamp(1)
        issue(4)
        self.ids_j()
        self.srd_consts(((S_WQ, 512 * 3072),))
        self.quad_rows(vWD, 3072, 16)
        e(f's_lshr_b32 s{sT}, s{sJ}, 1')
        e(f's_and_b32 s{sT + 1}, s{sJ}, 1')
        e(f's_lshl_b32 s{sT + 1}, s{sT + 1}, 3')
        e(f's_add_u32 s{sT}, s{sT}, s{sT + 1}')
        e(f's_lshl_b32 s{sT}, s{sT}, 7')
        e(f's_lshl_b32 s{sWO}, s{sR}, 2')
        e(f's_add_u32 s{sWO}, s{sWO}, s{sTT}')
        e(f's_mul_i32 s{sWO}, s{sWO}, {16 * 3072}')
        e(f's_add_u32 s{sWO}, s{sWO}, s{sT}')
        e(f's_addk_i32 s{sWO}, 1024')
        e(f's_lshl_b32 s{sMW}, s{sTT}, 11')
        issue(6)
        self.more_args(1)
        issue(o['i0'])
        self.stamp(7, 5)
        self.x_read_addrs()
        if o['gwl']:
            self.srd_consts(((S_GW, 1024),))
            e(f's_lshl_b32 s{sT + 1}, s{sTT}, 8')
            e(f's_lshl_b32 s{sT}, s{sR}, 7')
            e(f's_add_u32 s{sT}, s{sT}, s{sT + 1}')
            e(f'v_add_u32 v16, s{sT}, v{vL16}')
            e(f's_add_u32 m0, s{sT + 1}, {L_GW}')
            e('v_and_b32 v16, 1023, v16')
        e('s_waitcnt lgkmcnt(0)')
        if o['gwl']:
            e('s_mov_b64 exec, 0xffff')
            e(f'buffer_load_dwordx4 v16, {srd(S_GW)}, 0 offen lds', 'st1')
            e('s_mov_b64 exec, -1')
        fill = self.split(lambda: self.setup2(1, 0)) + self.split(self.v_const)
        for _ in range(min(len(fill), o['lpre'])):
            fill.pop(0)()
        self.stamp(8, 5)
        D = o['ahead']
        issue(bound[1] + D)
        self.stamp(9, 5)
        wx = Win(e, vXR)
        for s in range(8):
            slot = region(s)
            e.wait(vm=f'st{s}', lg='all')
            e('s_barrier')
            if s in (0, 4):
                self.stamp(2 + s // 4)
            end = max(pos, min(bound[s + 2] + (D if s < o['as2'] else o['ahead2']), bound[min(max(s + 4, 5), last + 1)]))
            issue(min(end, pos + o['lfirst']))
            wx.ensure(slot, slot + 2048)
            for ks in range(2):
                n = 2 * s + ks
                for tg in range(2):
                    e(f'ds_read_b128 {vr(X + 8 * n + 4 * tg, 4)}, v{vXR[ks]} offset:{wx.off(slot + 2048 * tg)}', f'r{n}')
            if s == 6:
                e(f'buffer_load_dwordx2 v[{vK[0]}:{vK[0] + 1}], off, {srd(S_DBG)}, 0 sc1', 'non')

            work = [fill.pop(0) for _ in range(min(len(fill), o['lfk']))]
            gaps = max(1, end - pos - o['llast'] + 1)
            done = 0
            for k in range(gaps):
                if k:
                    issue(pos + 1)
                upto = len(work) * (k + 1) // gaps if o['lsp2'] else (len(work) if k == gaps - 1 else 0)
                while done < upto:
                    work[done]()
                    done += 1
            issue(end)
        assert not fill
        self.left = seq[pos:]
        e.wait(vm='st8' if o['hs'] >= 8 else 'st8b', lg='all')
        e('s_barrier')
        self.stamp(4)

    def pack8(self, src, dst):
        e = self.e
        for r in range(4):
            e(f'v_cvt_pk_bf16_f32 v{dst + r}, v{src + 2 * r}, v{src + 2 * r + 1}')
        for r in range(2):
            e(f'v_permlane16_swap_b32 v{dst + r}, v{dst + 2 + r}')

    def phase_a_compute(self, ty):
        e = self.e
        NC = 4
        self.more_args(0)
        if self.opt['tlb'] or self.opt['bt'] or self.opt['btm'] < 999:
            e(f's_load_dwordx4 s[{S_WG}:{S_WG + 3}], s[0:1], 32')
        self.ids_tb()
        self.ids_j()
        e(f's_memrealtime s[{sNON}:{sNON + 1}]')
        e('v_mov_b32 v16, 0')
        e(f'v_mov_b32 v17, {L_CNT}')
        e('ds_write2_b32 v17, v16, v16 offset0:0 offset1:1', 'z0')
        self.srd_consts(((S_DBG, 256),))
        ZA, GWB, vGA = ACF, ACF + 8, vXD[1]
        e(f'v_and_b32 v{vGA}, 48, v0')
        if not self.opt['gwl']:
            self.srd_consts(((S_GW, 1024),))
            e(f's_lshl_b32 s{sT}, s{sR}, 7')
            e(f'v_add_u32 v{vP}, s{sT}, v{vL16}')
            e(f'v_and_b32 v{vP}, 1023, v{vP}')
            e(f's_mov_b32 m0, {L_GW}')
        self.x_read_addrs()
        self.tr_base(vWR[0], NC * 512, 16)
        e(f'v_xor_b32 v{vWR[1]}, 32, v{vWR[0]}')
        e('s_waitcnt lgkmcnt(0)')
        for p in e.paths:
            p.lg = []
        self.stamp(1)
        if not self.opt['gwl']:
            e(f'buffer_load_dwordx4 v{vP}, {srd(S_GW)}, 0 offen lds', 'gw')
        if self.opt['bt']:
            lab = e.newlabel('bt')
            e(f's_cmp_lg_u32 s{sTT}, 2')
            e(f's_cbranch_scc1 {lab}')
            snap = e.snapshot()
            for k, (b, n) in enumerate(((S_X, 64), (S_WQ, 48), (S_WG, 43), (S_WG + 2, 43), (S_WD, 43), (S_WO, 16))):
                if self.opt['bt'] >> k & 1:
                    e(f's_mul_i32 s{sT}, s2, {n * 128}')
                    e(f'v_lshl_add_u32 v16, v0, 7, s{sT}')
                    e(f's_bfm_b64 exec, {n}, 0' if n < 64 else 's_mov_b64 exec, -1')
                    e(f'global_load_dword v{vK[1] + 2}, v16, s[{b}:{b + 1}]', 'bt')
                    e('s_mov_b64 exec, -1')
            e.paths = e.paths + snap
            e.label(lab)
        if self.opt['tlb']:
            G = self.opt['tlb']
            lab = e.newlabel('tl')
            e(f's_cmp_lg_u32 s{sTT}, 3')
            e(f's_cbranch_scc1 {lab}')
            snap = e.snapshot()
            e(f'v_lshlrev_b32 v16, {G}, v0')
            e(f's_mov_b64 exec, {hex((1 << -(-(512 * 2752) >> G)) - 1)}')
            for k in range(2):
                e(f'global_load_dword v{vK[1] + 1}, v16, s[{S_WG + 2 * k}:{S_WG + 2 * k + 1}]', 'tlb')
            e('s_mov_b64 exec, -1')
            e.paths = e.paths + snap
            e.label(lab)
        if not ty:
            e(f's_or_b32 s{sT + 6}, s2, s{sW}')
            lab = e.newlabel('nn')
            e(f's_cbranch_scc1 {lab}')
            snap = e.snapshot()
            e(f's_or_b32 s{sNON + 1}, s{sNON + 1}, 0x80000000')
            e(f'v_mov_b32 v16, s{sNON}')
            e(f'v_mov_b32 v17, s{sNON + 1}')
            e('s_mov_b64 exec, 1')
            e(f'buffer_store_dwordx2 v[16:17], off, {srd(S_DBG)}, 0 sc1', 'nst')
            e('s_mov_b64 exec, -1')
            e.paths = e.paths + snap
            e.label(lab)
        fill = self.split(lambda: self.setup2(0, ty))
        for _ in range(min(len(fill), self.opt['cpre'])):
            fill.pop(0)()
        for k in (7, 8, 9):
            self.stamp(k, 5)
        LA = 4
        wx = Win(e, vXR)
        ww = Win(e, vWR)
        M = 16 * NC
        GL = 2
        NOG = self.opt.get('x_nogate', 0)

        def gate(n, buf):
            for tg in range(2):
                z = vr(ZA + 4 * tg, 4)
                e(f'v_mfma_f32_16x16x32_bf16 {z}, {vr(buf, 4)}, {vr(X + 8 * n + 4 * tg, 4)}, {z if n else 0}')

        def reads(m, rd):
            n, ct = divmod(m, NC)
            s, ks = divmod(n, 2)
            slot = region(s)
            if m % (2 * NC) == 0 and rd == 0:
                e('s_barrier')
                if s in (0, 4):
                    self.stamp(2 + s // 4)
                wx.ensure(slot, slot + 2048)
                ww.ensure(slot + 16384, slot + 24576)
            if ct == 0:
                e(f'ds_read_b128 {vr(X + 8 * n + 4 * rd, 4)}, v{vXR[ks]} offset:{wx.off(slot + 2048 * rd)}', f'a{m}')
            if ct == 2 and rd == 0 and n >= GL and (n == GL or not NOG):
                e.wait(vm='gw')
                e(f'ds_read_b128 {vr(GWB + 4 * (n % 2), 4)}, v{vGA} offset:{L_GW + 64 * (n - GL)}', f'a{m}')
            t = slot + 16384 + ks * NC * 1024 + (ct >> 1) * 1024 + rd * 256
            e(f'ds_read_b64_tr_b16 {vr(FR + 4 * (m % NFR) + 2 * rd, 2)}, v{vWR[ct & 1]} offset:{ww.off(t)}', f'a{m}')

        for m in range(LA):
            reads(m, 0)
            reads(m, 1)
        for m in range(M):
            n, ct = divmod(m, NC)
            e.wait(lg=f'a{m}')
            for tg in range(2):
                acc = vr(ACA + 16 * (ct >> 1) + 8 * tg + 4 * (ct & 1) if ty else ACA + 8 * ct + 4 * tg, 4)
                a, b = vr(FR + 4 * (m % NFR), 4), vr(X + 8 * n + 4 * tg, 4)
                if ty:
                    a, b = b, a
                e(f'v_mfma_f32_16x16x32_bf16 {acc}, {a}, {b}, {acc if n else 0}')
                if m + LA < M:
                    reads(m + LA, tg)
                if tg == 0:
                    for _ in range(2):
                        if fill:
                            fill.pop(0)()
            if m == self.opt['btm']:
                self.touch_ffn()
            if ct == 2 and n >= GL and (n == GL or not NOG):
                gate(n - GL, GWB + 4 * (n % 2))
            if m == M - LA - 1:
                for k in range(GL):
                    e(f'ds_read_b128 {vr(GWB + 8 + 4 * k, 4)}, v{vGA} offset:{L_GW + 64 * (16 - GL + k)}', 'gl')
            if m == M * 7 // 8 and not self.opt['nm']:
                e(f'buffer_load_dwordx2 v[{vK[0]}:{vK[0] + 1}], off, {srd(S_DBG)}, 0 sc1', 'non')
        assert not fill
        e.wait(lg='gl')
        for k in range(GL):
            gate(16 - GL + k, GWB + 8 + 4 * k)

    def touch_ffn(self):
        e = self.e
        lab = e.newlabel('tf')
        a, t = vK[1] + 1, sT + 4
        e(f's_cmp_lg_u32 s{sTT}, 2')
        e(f's_cbranch_scc1 {lab}')
        snap = e.snapshot()
        if self.opt['btx']:
            e(f's_lshr_b32 s{t}, s2, 2')
            e(f's_mul_i32 s{t}, s{t}, {8 * 2752}')
            e(f's_and_b32 s{t + 2}, s2, 3')
            e(f's_mul_i32 s{t + 2}, s{t + 2}, 683')
            e(f's_add_u32 s{t}, s{t}, s{t + 2}')
            e(f's_and_b32 s{t}, s{t}, -4')
            e(f'v_lshrrev_b32 v{a}, 3, v0')
            e(f'v_mul_u32_u24 v{a}, 2752, v{a}')
            e(f'v_and_b32 v{a + 1}, 7, v0')
            e(f'v_mul_u32_u24 v{a + 1}, 116, v{a + 1}')
            e(f'v_add3_u32 v{a}, v{a}, v{a + 1}, s{t}')
            e('s_mov_b32 exec_lo, 0x7f7f7f7f')
            e('s_mov_b32 exec_hi, 0x7f7f7f7f')
        else:
            e(f's_mul_i32 s{t}, s2, {43 * 128}')
            e(f'v_lshl_add_u32 v{a}, v0, 7, s{t}')
            e('s_bfm_b64 exec, 43, 0')
        for k in range(2):
            e(f'global_load_dword v{a + 1 + k}, v{a}, s[{S_WG + 2 * k}:{S_WG + 2 * k + 1}]', 'bt')
        e('s_mov_b64 exec, -1')
        e.paths = e.paths + snap
        e.label(lab)

    def z_write(self):
        e = self.e
        e(f'v_and_b32 v{vP}, 16, v0')
        e(f'v_cmp_eq_u32 vcc, 0, v{vP}')
        e(f's_lshl_b32 s{sT + 1}, s{sTT}, 8')
        e(f'v_lshl_add_u32 v{vP}, v0, 2, s{sT + 1}')
        e(f'v_cndmask_b32 v{vP + 1}, v{ACF + 4}, v{ACF}, vcc')
        e(f'ds_write_b32 v{vP}, v{vP + 1} offset:{L_Z}', 'zw')

    def kv_store(self, i):
        self.e(f'buffer_store_dwordx4 {vr(ACA + 4 * i, 4)}, v{vWD}, {srd(S_WS)}, s{sE[i]} offen sc1', 'qst')

    def spin(self, name, reload, check, sleep=2):
        e = self.e
        lr, lc = e.newlabel(name + 'r'), e.newlabel(name + 'c')
        check()
        e(f's_cbranch_vccnz {lr}')
        e.label(lc)

        def blk():
            e.paths = [p for p in Emitter().paths]
            e.label(lr)
            e(f's_mov_b32 s{sSPIN}, {SPIN}')
            ll = e.newlabel(name + 'l')
            e.label(ll)
            e(f's_sleep {sleep}')
            reload()
            e('s_waitcnt vmcnt(0)')
            check()
            e(f's_cbranch_vccz {lc}')
            e(f's_sub_u32 s{sSPIN}, s{sSPIN}, 1')
            e(f's_cbranch_scc0 {ll}')
            e(f's_branch {lc}')
        self.tail_blocks.append(blk)

    def flag_store(self, soff, tmp):
        e = self.e
        e(f'v_mov_b32 v{tmp}, s{sNON}')
        e(f'v_mov_b32 v{tmp + 1}, s{sNON + 1}')
        e('s_mov_b64 exec, 1')
        e(f'buffer_store_dwordx2 v[{tmp}:{tmp + 1}], off, {srd(S_WS)}, s{soff} sc1', 'flag')
        e('s_mov_b64 exec, -1')

    def kv_load(self, it):
        e = self.e
        b = it % 2

        def k():
            e(f'buffer_load_dwordx4 {vr(vK[b], 4)}, v{vKA}, {srd(S_WS)}, s{sKVI} offen' + FL[self.opt['fh']], f'k{it}')

        def v():
            e(f's_mov_b64 exec, s[{sVM}:{sVM + 1}]')
            e(f'buffer_load_dwordx4 {vr(vV[b], 4)}, v{vKA + 1}, {srd(S_WS)}, s{sKVI} offen offset:1024' + FL[self.opt['fh']], f'v{it}')
            e(f'buffer_load_dwordx4 {vr(vV[b] + 4, 4)}, v{vKA + 1}, {srd(S_WS)}, s{sKVI} offen offset:1536' + FL[self.opt['fh']], f'v{it}')
            e('s_mov_b64 exec, -1')
        return k, v

    def kv_adv(self, part=3):
        if part & 1:
            self.e(f's_addk_i32 s{sKVI}, 2048')
        if part & 2:
            self.e(f's_bitset0_b32 s{sKVI}, 15')

    def gelu(self, c, pk=True):
        e = self.e
        acc = ACF + 16 * c
        T = ACA + 16
        P = lambda b, i: vr(b + 2 * i, 2)
        if not pk:
            real = e

            def e(text):
                if not text.startswith('v_pk_'):
                    return real(text)
                op, rest = text.split(None, 1)
                for h in range(2):
                    ops = [f'{o[0]}{int(o[2:o.index(":")]) + h}' for o in rest.split(', ')]
                    real(op.replace('v_pk_', 'v_') + ' ' + ', '.join(ops))
        for i in range(4):
            e(f'v_pk_mul_f32 {P(T, i)}, {P(acc, i)}, {P(acc, i)}')
        for i in range(4):
            e(f'v_pk_fma_f32 {P(T, i)}, {P(T, i)}, s[{sGC}:{sGC + 1}], {vr(T + 8, 2)}')
        for i in range(4):
            e(f'v_pk_mul_f32 {P(T, i)}, {P(T, i)}, {P(acc, i)}')
        for i in range(8):
            e(f'v_exp_f32 v{T + i}, v{T + i}')
        for i in range(4):
            e(f'v_pk_mul_f32 {P(acc, i)}, {P(acc, i)}, {P(acc + 8, i)}')
        for i in range(4):
            ch = vr(T + 10 + 2 * (i // 2), 2)
            e(f'v_pk_fma_f32 {P(T, i)}, {P(T, i)}, {ch}, {ch}')
        for i in range(8):
            e(f'v_rcp_f32 v{T + i}, v{T + i}')
        for i in range(4):
            e(f'v_pk_mul_f32 {P(acc, i)}, {P(acc, i)}, {P(T, i)}')
        for i in (0, 2, 1, 3):
            e(f'v_cvt_pk_bf16_f32 v{acc + 8 + i}, v{acc + 2 * i}, v{acc + 2 * i + 1}')
        for r in range(2):
            e(f'v_permlane16_swap_b32 v{acc + 8 + r}, v{acc + 10 + r}')

    def gelu_gate(self, c, T):
        acc = ACF + 16 * c
        K = ACA + 24
        st = 4 if T == vK[0] else 5
        A = [[f'v_mul_f32 v{T + i}, v{acc + i}, v{acc + i}',
              f'v_fma_f32 v{T + i}, v{T + i}, s{sGC}, v{K}',
              f'v_mul_f32 v{T + i}, v{T + i}, v{acc + i}',
              f'v_exp_f32 v{T + i}, v{T + i}',
              f'v_fma_f32 v{T + i}, v{T + i}, v{K + 2 + 2 * (i // 4)}, v{K + 2 + 2 * (i // 4)}',
              f'v_rcp_f32 v{T + i}, v{T + i}',
              f'v_mul_f32 v{acc + i}, v{acc + i}, v{T + i}'] for i in range(8)]
        out = []
        for d in range(8 + 6):
            for k in (3, 0, 5, 1, 2, 4, 6):
                i = d - k
                if 0 <= i < 8:
                    out.append((2 if k in (3, 5) else 1, A[i][k], st))
        return out

    def gelu_up(self, c):
        e = self.e
        acc = ACF + 16 * c
        for i in range(4):
            e(f'v_pk_mul_f32 {vr(acc + 2 * i, 2)}, {vr(acc + 2 * i, 2)}, {vr(acc + 8 + 2 * i, 2)}')
        for i in (0, 2, 1, 3):
            e(f'v_cvt_pk_bf16_f32 v{acc + 8 + i}, v{acc + 2 * i}, v{acc + 2 * i + 1}')
        for r in range(2):
            e(f'v_permlane16_swap_b32 v{acc + 8 + r}, v{acc + 10 + r}')

    def h_store(self, c):
        e = self.e
        e(f's_add_u32 s{sT}, s{sHO}, {2048 * c}')
        e(f'buffer_store_dwordx4 {vr(ACF + 16 * c + 8, 4)}, v{vL16}, {srd(S_WS)}, s{sT} offen sc1', 'hst')

    def split(self, fn):
        real = self.e
        rec = []

        class Rec:
            def __call__(s, text, tag=None):
                rec.append(('i', text, tag))

            def wait(s, vm=None, lg=None):
                rec.append(('w', vm, lg))
        self.e = Rec()
        fn()
        self.e = real
        out, grp = [], []
        for r in rec:
            grp.append(r)
            masked = any(x[0] == 'i' and x[1].startswith('s_mov_b64 exec') for x in grp)
            if (masked and r[1] != 's_mov_b64 exec, -1') or r[0] == 'w':
                continue

            def f(grp=grp):
                for x in grp:
                    if x[0] == 'i':
                        real(x[1], x[2])
                    else:
                        real.wait(vm=x[1], lg=x[2])
            out.append(f)
            grp = []
        assert not grp
        return out

    def phase_f(self, g, NC):
        e = self.e
        o = self.opt
        order = []
        for s in range(8):
            for item in ([(0, -1), (1, -1)] if s == 7 else []):
                order.append((2 * s + item[0], -1))
            for ks in range(2):
                order += [(2 * s + ks, r) for r in range(0 if s == 7 else -1, 2 * NC)]
        if o['gu']:
            order = []
            for s in range(8):
                for k in range(4):
                    if s == 7:
                        order += [(14, -1), (15, -1)] if k == 0 else []
                    elif k % 2 == 0:
                        order.append((2 * s + k // 2, -1))
                    order += [(4 * (s % 4) + k, 2 * c + s // 4) for c in range(NC)]
        PS = 4 * NC + 2
        M = 8 * PS
        sc = lambda m: m * PS // 12
        LA = 4
        wf = Win(e, vFR[:NC] + [vQR])
        fill = []
        at = {}
        cur = [0]
        NG = 0 if not o['gu'] else (o['ng1'] if g else (o['ng3'] if NC == 3 else o['ng2']))
        assert NG == 0 or o['gt'] or o['qw'] <= 11
        gfill = []

        def gelu_fill(room):
            while gfill and room >= gfill[0][0] and cur[0] >= gfill[0][2] * PS:
                room -= gfill[0][0]
                e(gfill.pop(0)[1])

        def pin(m, f):
            at.setdefault(m, []).append(f)

        def sched(s, m0, span, extra=()):
            lst = list(extra) + (self.dma_list(s) if g and s <= 15 else [])
            for i, f in enumerate(lst):
                pin(m0 + i * span // len(lst), f)

        def enter(s):
            e.wait(vm=[f'st{s}' if s <= o['hs'] else f'st{s}b'] + (['qst'] if s == o['qw'] else []), lg='zw' if s == 9 else None)
            e('s_barrier')
            sched(s + o['fah'], cur[0] + 1, sc(o['span']))
            if s == 9:
                fill.extend(self.split(self.gate_read))
                if g or not o['nm']:
                    fill.append(self.nonce_get)
                fill.extend(self.split(self.attn_setup))
                fill.extend(self.split(self.gate_math))
            if s == 10 and g == 0 and o['nm']:
                assert o['qw'] > 10
                fill.insert(0, self.nonce_get)
            if s == o['vs'] and g == 0:
                fill.extend(self.split(self.v_const))
            if s == o['qw'] and g == 0:
                fill.insert(0, self.flag1)

        def reads(m, rd):
            s = 8 + m // PS
            if m % PS == 0 and m and rd == 0:
                enter(s)
            n, r = order[m]
            if s <= o['hs'] and n % 2 and r == 0 and rd == 0:
                e.wait(vm=f'st{s}b')
                e('s_barrier')
            slot = region(s)
            wf.ensure(slot, slot + 28672)
            if r < 0:
                va, t = vQR, slot + QOFF + (n % 2) * 2048 + rd * 256
            else:
                va, t = vFR[r // 2], slot + ((n % 4) * 6144 if o['gu'] else (r % 2) * UPOFF + (n % 2) * 6144) + rd * 256
            e(f'ds_read_b64_tr_b16 {vr(FR + 4 * (m % NFR) + 2 * rd, 2)}, v{va} offset:{wf.off(t)}', f'f{m}')

        assert o['fah'] <= 3
        if g == 0 and o['nm']:
            pin(sc(o['nm']), lambda: e(f'buffer_load_dwordx2 v[{vK[0]}:{vK[0] + 1}], off, {srd(S_DBG)}, 0 sc1', 'non'))
        if g == 0:
            for i in range(o['qe'], 4):
                pin(sc(o['q0'] + o['qsp'] * (i - o['qe'])), lambda i=i: self.kv_store(i))
            assert sc(o['q0'] + o['qsp'] * (3 - o['qe'])) < (min(o['vs'], o['qw']) - 8) * PS - LA
        sched(8 + o['fah'], 0, PS - LA, self.left if g else ())
        for m in range(LA):
            reads(m, 0)
            reads(m, 1)
        if o['prio']:
            pin(sc(50), lambda: e('s_setprio 3'))
        for m in range(M):
            cur[0] = m
            n, r = order[m]
            e.wait(lg=f'f{m}')
            for tg in range(2):
                acc = vr((QA if r < 0 else ACF + 8 * r) + 4 * tg, 4)
                e(f'v_mfma_f32_16x16x32_bf16 {acc}, {vr(FR + 4 * (m % NFR), 4)}, {vr(X + 8 * n + 4 * tg, 4)}, {acc if n else 0}')
                if m + LA < M:
                    reads(m + LA, tg)
                nf = o['fk'] if m < 7 * PS + 4 else o['gk']
                if tg == 0:
                    lead = at.get(m, [None])[0]
                    if o['dsplit'] and getattr(lead, 'dma', False):
                        lead(1)
                        at[m][0] = lambda lead=lead: lead(2)
                    room = 2 - (lead is not None)
                    while fill and room > 2 - min(nf, 2):
                        fill.pop(0)()
                        room -= 1
                    gelu_fill(room + o['gx'])
            if m % PS == 0 and 2 * PS <= m:
                self.stamp(5 + m // PS, 1)
            if o['omf'] and m == sc(o['omf']):
                fill.extend(self.split(lambda: self.o_mark(X)))
            if m == sc(o['tch']) and g == 0:
                fill.append(self.touch)
            if m == sc(o['p1i']):
                fill.append(self.poll1_issue)
            if m == sc(o['p1c']):
                assert not any(it[2] == 4 for it in gfill)
                fill.append(self.poll1_check)
                for grp in self.attn_loads_early():
                    fill.append(grp)
                    fill.extend([lambda: None] * o['lsp'])
            if m == 4 * PS + 1:
                for c in range(NG):
                    gfill.extend(self.gelu_gate(c, vK[0] if c == 0 and not o['gt'] else X + 8 * c))
            if m == (7 if o['gu'] else 5) * PS:
                fill = self.split(lambda: self.q_addrs(g)) + fill
            if m == 7 * PS + 3:
                fill = self.split(self.q_pack) + fill
            room = o['gy'] - (m in at)
            for f in at.pop(m, []):
                f()
            for _ in range(nf - 2):
                if fill:
                    fill.pop(0)()
                    room -= 1
            gelu_fill(room)
        assert not at
        for f in fill:
            f()
        gelu_fill(10 ** 6)
        e.wait(lg='all')
        e('s_barrier')
        self.stamp(5)
        for i in range(3):
            e(f'ds_read_b128 {vr(vQ[i], 4)}, v{vQ[i]}', f'q{i}')
        if o['om'] == -2:
            self.o_mark()
        side = []
        if o['p1c'] >= 96:
            side = [self.poll1_check] + self.attn_loads_early()
        ge, ends = [], []
        for c in range(NC - 1, -1, -1):
            ge += self.split(lambda: self.gelu(c) if c >= NG else self.gelu_up(c))
            ends.append((len(ge), c))
        for k, f in enumerate(ge):
            if side and k >= o['g0'] * (1 - g) and k % o['gsp'] == 0:
                side.pop(0)()
            f()
            if not side and ends[0][0] <= k + 1 and ends[0][1] >= o['hl']:
                self.h_store(ends.pop(0)[1])
        assert not side and len(ends) == o['hl']
        if o['ys'] and (g == 0 or o['om'] < 0) and o['om'] != -2:
            self.o_mark()
        if o['ys'] == 1 and g == 0:
            assert o['hl'] == 0 and not o['omf']
            self.sig2_a()
            self.sig2_b()
        if o['ys'] == 1 or (o['ys'] == 2 and g):
            e('s_setprio 2')

    def q_addrs(self, g):
        e = self.e
        for i in range(3):
            e(f'v_add_u32 v{vQ[i]}, s{sQX[i]}, v{vL16}')
        e(f'v_add_u32 v{vQ[0] + 1}, s{sQX[3]}, v{vL16}')

    def q_pack(self):
        e = self.e
        for r in range(8):
            e(f'v_mul_f32 v{QA + r}, {fbits(QSCALE)}, v{QA + r}')
        self.pack8(QA, vQ[3])
        e(f'ds_write_b128 v{vQ[0] + 1}, {vr(vQ[3], 4)}', 'qw')

    def o_mark(self, d=vH[0]):
        e = self.e
        for i in range(4):
            e(f'v_mov_b32 v{d + i}, -1')
        e(f'buffer_store_dwordx4 {vr(d, 4)}, v{vL16}, {srd(S_WS)}, s{sMO} offen sc1', 'hst')

    def gate_read(self):
        e = self.e
        e(f's_lshl_b32 s{sT}, s{sTT}, 8')
        e(f'v_and_b32 v{vCH}, 15, v0')
        e(f'v_lshl_add_u32 v{vCH}, v{vCH}, 2, s{sT}')
        e(f'v_add_u32 v{vCH}, {L_Z}, v{vCH}')
        e(f'ds_read2_b32 {vr(vCH, 2)}, v{vCH} offset0:0 offset1:16', 'zr')

    def gate_math(self):
        e = self.e
        e.wait(lg='zr')
        for i in range(2):
            e(f'v_mul_f32 v{vCH + i}, {fbits(LOG2E)}, v{vCH + i}')
        for i in range(2):
            e(f'v_exp_f32 v{vCH + i}, v{vCH + i}')
        for i in range(2):
            e(f'v_add_f32 v{vCH + i}, 1.0, v{vCH + i}')
        e(f'v_mov_b32 v{ACA + 24}, {fbits(GC0)}')
        e(f'v_mov_b32 v{ACA + 25}, v{ACA + 24}')
        for i in range(4):
            e(f'v_min_f32 v{ACA + 26 + i}, {fbits(2.0 ** 100)}, v{vCH + i // 2}')
        e(f'v_add_u32 v{vKA}, s{sKVB}, v{vL16}')
        e(f'v_add_u32 v{vKA + 1}, s{sKVB}, v{vVA}')

    def nonce_get(self):
        e = self.e
        e.wait(vm='non')
        ld = lambda: e(f'buffer_load_dwordx2 v[{vK[0]}:{vK[0] + 1}], off, {srd(S_DBG)}, 0 sc1')
        ck = lambda: e(f'v_cmp_eq_u32 vcc, 0, v{vK[0] + 1}')
        self.spin('non', ld, ck)
        e(f'v_readfirstlane_b32 s{sNON}, v{vK[0]}')
        e(f'v_readfirstlane_b32 s{sNON + 1}, v{vK[0] + 1}')

    def flag1(self):
        e = self.e
        lab = e.newlabel('f1')
        e(f's_cmp_lg_u32 s{sW}, 0')
        e(f's_cbranch_scc1 {lab}')
        snap = e.snapshot()
        e(f's_lshl_b32 s{sT + 7}, s{sJ}, 4')
        e(f's_add_u32 s{sT + 7}, s{sT + 7}, s{sTB}')
        e(f's_lshl_b32 s{sT + 7}, s{sT + 7}, {self.opt["fs"]}')
        e(f's_add_u32 s{sT + 7}, s{sT + 7}, {WS_F1}')
        self.flag_store(sT + 7, vK[0])
        e.paths = e.paths + snap
        e.label(lab)

    def touch(self, X=X):
        e = self.e
        lab = e.newlabel('tc')
        e(f's_cmp_lg_u32 s{sW}, {self.opt["tcw"]}')
        e(f's_cbranch_scc1 {lab}')
        snap = e.snapshot()
        e(f'v_lshlrev_b32 v{X}, 7, v0')
        e(f's_mul_i32 s{sT}, s2, {43 * 128}')
        e(f's_lshl_b32 s{sT + 1}, s2, 11')
        e('s_bfm_b64 exec, 43, 0')
        e(f'buffer_load_dword v{X + 1}, v{X}, {srd(S_WD)}, s{sT} offen', 'touch')
        e('s_bfm_b64 exec, 16, 0')
        e(f'buffer_load_dword v{X + 2}, v{X}, {srd(S_WO)}, s{sT + 1} offen', 'touch')
        e('s_mov_b64 exec, -1')
        e.paths = e.paths + snap
        e.label(lab)

    def attn_setup(self):
        e = self.e
        e(f'v_and_b32 v{vPA}, 4, v0')
        e(f'v_mul_u32_u24 v{vPA}, 3, v{vPA}')
        e(f'v_add_u32 v{vPA}, v{vPA}, v0')
        e(f'v_lshl_add_u32 v{vPA}, v{vPA}, {self.opt["fs"]}, s{sKV}')
        e(f'v_lshrrev_b32 v{vDD[0]}, 3, v0')
        e(f'v_lshrrev_b32 v{vP}, 2, v0')
        e(f'v_and_b32 v{vP}, 4, v{vP}')
        e(f'v_xor_b32 v{vP}, v{vP}, v0')
        e(f'v_and_b32 v{vP}, 7, v{vP}')
        e(f'v_lshlrev_b32 v{vP}, 4, v{vP}')
        e(f'v_lshl_add_u32 v{vDD[0]}, v{vDD[0]}, 10, v{vP}')
        e(f'v_add_u32 v{vDD[1]}, {8192 - 1024}, v{vDD[0]}')
        e(f'v_add_u32 v{vRW[0]}, s{sMD}, v{vL16}')
        e(f'v_lshl_add_u32 v{vRW[1]}, v0, 2, s{sMD}')

    def v_const(self):
        e = self.e
        e(f'v_and_b32 v{vV[0] + 1}, 27, v0')
        e(f'v_cmp_eq_u32 vcc, 16, v{vV[0] + 1}')
        e(f'v_mov_b32 v{vV[0] + 1}, 0x3f803f80')
        e(f'v_cndmask_b32 v{vV[0]}, 0, v{vV[0] + 1}, vcc')
        for i in range(1, 16):
            e(f'v_mov_b32 v{vV[0] + i}, v{vV[0]}')

    def poll1_issue(self):
        e = self.e
        e('s_mov_b64 exec, 0xff')
        e(f'buffer_load_dwordx2 v[{vP}:{vP + 1}], v{vPA}, {srd(S_WS)}, 0 offen sc1', 'p1')
        e('s_mov_b64 exec, -1')

    def poll1_check(self):
        e = self.e
        e.wait(vm='p1')
        e('s_mov_b64 exec, 0xff')
        e(f'v_cmp_ne_u64 vcc, s[{sNON}:{sNON + 1}], v[{vP}:{vP + 1}]')
        e('s_mov_b64 exec, -1')

    def attn_load_groups(self):
        e = self.e
        k0, v0 = self.kv_load(0)
        k1, v1 = self.kv_load(1)

        return [k0, lambda: (v0(), self.kv_adv()), k1, lambda: (v1(), self.kv_adv())]

    def attn_loads_early(self):
        e = self.e
        out = []
        for n, f in enumerate(self.attn_load_groups()):
            def g(f=f, n=n):
                lab = e.newlabel('al')
                e(f's_cbranch_vccnz {lab}')
                if n == 0:
                    skip = e.snapshot()
                    for p in skip:
                        p.g = 'pend'
                else:
                    skip = [p for p in e.paths if p.g == 'pend']
                    e.paths = [p for p in e.paths if p.g != 'pend']
                f()
                e.paths = e.paths + skip
                e.label(lab)
            out.append(g)
        return out

    def attn_loads_late(self):
        e = self.e
        e('s_cbranch_vccnz Llate')
        e.label('Llate_done')
        e.paths = [p for p in e.paths if p.g != 'pend']

        def blk():
            e.paths = [p for p in Emitter().paths]
            e.label('Llate')
            e('s_mov_b64 exec, 0xff')
            ld = lambda: e(f'buffer_load_dwordx2 v[{vP}:{vP + 1}], v{vPA}, {srd(S_WS)}, 0 offen sc1')
            ck = lambda: e(f'v_cmp_ne_u64 vcc, s[{sNON}:{sNON + 1}], v[{vP}:{vP + 1}]')
            ld()
            e('s_waitcnt vmcnt(0)')
            self.spin('p1', ld, ck, self.opt['sl1'])
            e('s_mov_b64 exec, -1')
            for f in self.attn_load_groups():
                f()
            e('s_waitcnt vmcnt(0)')
            e('s_branch Llate_done')
        self.tail_blocks.append(blk)

    def sig2_a(self):
        e = self.e
        e.wait(vm='hst')
        e(f'v_mov_b32 v{vP}, {L_CNT}')
        e(f'v_mov_b32 v{vP + 1}, 1')
        e('s_mov_b64 exec, 1')
        e(f'ds_add_rtn_u32 v{vP}, v{vP}, v{vP + 1}', 'cnt2')
        e('s_mov_b64 exec, -1')

    def sig2_b(self):
        e = self.e
        e.wait(lg='cnt2')
        e(f'v_readfirstlane_b32 s{sT}, v{vP}')
        lab = e.newlabel('f2')
        e(f's_cmp_lg_u32 s{sT}, 7')
        e(f's_cbranch_scc1 {lab}')
        snap = e.snapshot()
        e(f's_lshl_b32 s{sT}, s{sTB}, 4')
        e(f's_add_u32 s{sT}, s{sT}, s{sJ}')
        e(f's_lshl_b32 s{sT}, s{sT}, {self.opt["fs"]}')
        e(f's_add_u32 s{sT}, s{sT}, {WS_F2}')
        self.flag_store(sT, vP)
        e.paths = e.paths + snap
        e.label(lab)

    def attention(self):
        e = self.e
        G0 = self.opt['g2start']
        NT = 64

        def qk(t):
            it, sl = divmod(t, 4)
            if sl == 0:
                e.wait(vm=f'k{it}')
            if it == 0:
                e.wait(lg=f'q{sl}')
            e(f'v_mfma_f32_32x32x16_bf16 {vr(vS[t % 2], 16)}, {vr(vK[it % 2], 4)}, {vr(vQ[sl], 4)}, 0')

        def pv(t, hi):
            it, sl = divmod(t, 4)
            if sl == 0 and not hi:
                e.wait(vm=f'v{it}')
            e(f'v_smfmac_f32_32x32x32_bf16 {vr(vO[sl], 16)}, {vr(vV[it % 2] + 4 * hi, 4)}, {vr(vS[t % 2] + 8 * hi, 8)}, v{vIDX}')

        def ex(t, a, b):
            for i in range(a, b):
                e(f'v_exp_f32 v{vS[t % 2] + i}, v{vS[t % 2] + i}')

        def stage_dma(rs, so, i, tag):
            return lambda: e(f'buffer_load_dwordx4 v{vDD[i]}, {srd(rs)}, s{so} offen' + (' offset:1024' if i else '') + FL[self.opt['fw']] + ' lds', tag)

        def wo_first():
            e(f's_lshl_b32 s{sWO}, s{sW}, 16')
            e(f's_lshl_b32 s{sT}, s{sCB}, 7')
            e(f's_add_u32 s{sWO}, s{sWO}, s{sT}')
            e(f's_lshl_b32 s{sMW}, s{sW}, 13')

        def h_load(step, i):
            return lambda: e(f'buffer_load_dwordx4 {vr(vH[step % 2] + 4 * i, 4)}, v{vHA[i]}, {srd(S_H)}, s{sHO} offen' + FL[self.opt['fh']], f'h{step}')

        def wd_read(step, jj):
            def f():
                e.wait(vm=f'd{step}')
                for rd in range(2):
                    e(f'ds_read_b64_tr_b16 {vr(vD + 4 * jj + 2 * rd, 2)}, v{vDR[jj]} offset:{L_RING + 2048 * (step % 3) + 512 * rd}', f'dr{step}_{jj}')
            return f

        def g2(step, sl):
            jj, i = divmod(sl, 2)
            e.wait(vm=f'h{step}', lg=f'dr{step}_{jj}')
            acc = vr(vG[i * 2 + jj], 16)
            e(f'v_mfma_f32_32x32x16_bf16 {acc}, {vr(vD + 4 * jj, 4)}, {vr(vH[step % 2] + 4 * i, 4)}, {acc if step else 0}')

        def only_g1(fn):
            def f():
                if self.opt['ys'] != 1:
                    return fn()
                lab = e.newlabel('g1')
                e(f's_cmp_eq_u32 s{sG}, 0')
                e(f's_cbranch_scc1 {lab}')
                snap = e.snapshot()
                fn()
                for p in snap:
                    p.vm = [t if t != 'hst' else None for t in p.vm]
                e.paths = e.paths + snap
                e.label(lab)
            return f

        def h_addrs():
            e(f's_and_b32 s{sT}, s{sW}, 1')
            e(f's_lshl_b32 s{sT}, s{sT}, 10')
            e(f'v_add_u32 v{vHA[0]}, s{sT}, v{vL16}')
            e(f'v_xor_b32 v{vHA[1]}, 1024, v{vHA[0]}')
            e(f's_mul_i32 s{sHO}, s{sW}, {11 * 2048}')

        def poll2_issue():
            e(f's_lshr_b32 s{sT + 1}, s{sRB}, 1')
            e(f's_lshl_b32 s{sT + 1}, s{sT + 1}, {4 + self.opt["fs"]}')
            e(f's_add_u32 s{sT + 1}, s{sT + 1}, {WS_F2}')
            e(f'v_lshl_add_u32 v{vPA}, v0, {self.opt["fs"]}, s{sT + 1}')
            e('s_mov_b64 exec, 0xffff')
            e(f'buffer_load_dwordx2 v[{vP}:{vP + 1}], v{vPA}, {srd(S_WS)}, 0 offen sc1', 'p2')
            e('s_mov_b64 exec, -1')

        def poll2_check():
            e.wait(vm='p2')
            e('s_mov_b64 exec, 0xffff')
            ld = lambda: e(f'buffer_load_dwordx2 v[{vP}:{vP + 1}], v{vPA}, {srd(S_WS)}, 0 offen sc1')
            ck = lambda: e(f'v_cmp_ne_u64 vcc, s[{sNON}:{sNON + 1}], v[{vP}:{vP + 1}]')
            self.spin('p2', ld, ck, self.opt['sl2'])
            e('s_mov_b64 exec, -1')

        def co_read():
            e(f's_lshl_b32 s{sT}, s{sTT}, 8')
            e(f'v_lshl_add_u32 v{vCO}, v0, 2, s{sT}')
            e(f'ds_read_b32 v{vCO}, v{vCO} offset:{L_Z}', 'zr2')

        def co_math():
            e.wait(lg='zr2')
            e(f'v_mul_f32 v{vCO}, {fbits(-LOG2E)}, v{vCO}')
            e(f'v_exp_f32 v{vCO}, v{vCO}')

        def ored_addr(i):
            def f():
                e(f's_sub_u32 s{sT}, s{sTT}, {1 + i}')
                e(f's_and_b32 s{sT}, s{sT}, 3')
                e(f's_lshl_b32 s{sT + 1}, s{sG}, 2')
                e(f's_add_u32 s{sT}, s{sT}, s{sT + 1}')
                e(f's_mul_i32 s{sT}, s{sT}, {RINGW}')
                e(f'v_add_u32 v{vRR + i}, s{sT}, v{vL16}')
                e(f'v_lshl_add_u32 v{vRR + 3 + i}, v0, 2, s{sT}')
            return f

        def o_addr():
            e(f's_lshl_b32 s{sO[0]}, s{sRB}, 1')
            e(f's_and_b32 s{sT}, s{sW}, 1')
            e(f's_add_u32 s{sO[0]}, s{sO[0]}, s{sT}')
            e(f's_lshl_b32 s{sO[0]}, s{sO[0]}, 2')

        def o_addr2():
            e(f's_lshr_b32 s{sT}, s{sW}, 1')
            e(f's_add_u32 s{sO[0]}, s{sO[0]}, s{sT}')
            e(f's_lshl_b32 s{sO[0]}, s{sO[0]}, 13')
            e(f's_add_u32 s{sO[0]}, s{sO[0]}, {WS_O}')
            e(f's_add_u32 s{sO[1]}, s{sO[0]}, 4096')

        def ored_write(sl, part):
            o = L_RING + 2304 * sl
            if part < 2:
                return lambda: e(f'ds_write_b128 v{vRW[0]}, {vr(vO[sl] + 4 * part, 4)} offset:{o + 1024 * part}', 'orw')
            return lambda: e(f'ds_write_b32 v{vRW[1]}, v{vO[sl] + 8} offset:{o + 2048}', 'orw')

        side = {}
        add = lambda t, p, f: side.setdefault((t, p), []).append(f)
        I = lambda text: (lambda: e(text))
        for it in range(16):
            t = 4 * it
            st = it - G0
            add(t, 1, lambda it=it, st=st: e.wait(vm=[f'v{it}', f'h{st}'], lg=f'dr{st}_0'))
            add(t + 2, 2, lambda it=it, st=st: e.wait(vm=[f'k{it + 1}', f'd{st + 1}'], lg=f'dr{st}_1'))
            if 1 <= it < 15:
                add(t, 0, self.kv_load(it + 1)[1])
                add(t, 2, self.kv_adv)
            if it < 14:
                add(t + 2, 1, self.kv_load(it + 2)[0])
        for step in range(11):
            t = 4 * (G0 + step)
            add(t - 7, 2, I(f's_add_u32 m0, s{sMD}, {L_RING + 2048 * (step % 3)}'))
            add(t - 7, 4, stage_dma(S_WD, sDO, 0, f'd{step}'))
            add(t - 6, 0, stage_dma(S_WD, sDO, 1, f'd{step}'))
            add(t - 6, 0, I(f's_addk_i32 s{sDO}, 16384'))
            add(t - 4, 4, h_load(step, 0))
            add(t - 3, 1, h_load(step, 1))
            add(t - 3, 2, I(f's_addk_i32 s{sHO}, 2048'))
            add(t - 1, 0, wd_read(step, 0))
            add(t + 1, 0, wd_read(step, 1))
        t = 4 * self.opt['woi'] + 3
        add(t - 1, 4, wo_first)
        for k in range(4):
            add(t + 4 * k, 1, I(f's_add_u32 m0, s{sMW}, {L_WO + 2048 * k}'))
            add(t + 4 * k, 2, stage_dma(S_WO, sWO, 0, 'wo'))
            add(t + 4 * k, 2, stage_dma(S_WO, sWO, 1, 'wo'))
            add(t + 4 * k, 4, I(f's_addk_i32 s{sWO}, 16384'))
        if not self.opt['omf'] and self.opt['om'] >= 0:
            add(self.opt['om'], 2, only_g1(self.o_mark))
        for c in range(self.opt['hl']):
            add(c * self.opt['hsp'], 2, lambda c=c: self.h_store(c))
        for i in range(3):
            add(22 + 4 * i, 2, ored_addr(i))
        add(34, 2, o_addr)
        add(38, 2, o_addr2)
        if self.opt['tca'] < 16:
            add(self.opt['tca'], 2, lambda: self.touch(vRR))
        add(2, 2, co_read)
        add(3, 2, co_math)
        add(self.opt['s2t'], 2, only_g1(self.sig2_a))
        add(self.opt['s2t'] + 1, 2, only_g1(self.sig2_b))
        add(self.opt['s2t'] + 2, 2, h_addrs)
        add(4 * (G0 - 2) + 2, 2, poll2_issue)
        add(4 * (G0 - 1), 2, poll2_check)
        for sl in range(3):
            add(61 + sl, 4, ored_write(sl, 0))
            add(*((62 + sl, 0) if sl < 2 else (63, 3)), ored_write(sl, 1))
            add(*((62 + sl, 0) if sl < 2 else (63, 3)), ored_write(sl, 2))
        if self.opt['prio']:
            add(self.opt['pa'], 2, lambda: e('s_setprio 2'))
            add(self.opt['pb'], 2, lambda: e('s_setprio 1'))
            add(self.opt['pc'], 2, lambda: e('s_setprio 0'))

        def run(t, p):
            for f in side.get((t, p), []):
                f()

        def zero(sl):
            e(f'v_mfma_f32_32x32x16_bf16 {vr(vO[sl], 16)}, {vr(vD, 4)}, {vr(vD, 4)}, 0')

        e(f'v_mov_b32 v{vIDX}, 0xdddddddd')
        for i in range(4):
            e(f'v_mov_b32 v{vD + i}, 0')
        qk(0)
        self.stamp(9, 3)
        if self.opt['zm']:
            zero(0)
        for t in range(NT):
            it, sl = divmod(t, 4)
            ex(t, 0, 2)
            if t > 0:
                pv(t - 1, 1)
            run(t, 0)
            ex(t, 2, 5)
            if t + 1 < NT:
                qk(t + 1)
            run(t, 1)
            ex(t, 5, 10)
            pv(t, 0)
            run(t, 2)
            ex(t, 10, 13)
            if G0 <= it < G0 + 11:
                g2(it - G0, sl)
            if t < 3 and self.opt['zm']:
                zero(t + 1)
            run(t, 4)
            ex(t, 13, 16)
            run(t, 3)
            if t in (7, 31):
                self.stamp(7 if t == 7 else 8)
            if t in (3, 5, 7):
                self.stamp(10 + (t - 3) // 2, 3)
        pv(NT - 1, 1)
        run(NT, 0)

    def tail(self):
        e = self.e
        own = vO[3]
        R = vO[0]
        WO = vO[0]
        OFR = [vH[0], vH[1], ACA + 16, ACA + 24]
        PRE = X + 64
        vFW, vPW, vOA = FR, FR + 4, FR + 9
        vFRd, vPR = vK[1], vRR
        HEADS = (1, 3, 5, 7, 0, 2, 4, 6)
        P2 = lambda b, i: vr(b + 2 * i, 2)

        def o_reduce(g):
            for i in range(3):
                e(f'ds_read_b32 v{R + 24 + i}, v{vRR + 3 + i} offset:{L_RING + 2304 * i + 2048}', f'or{i}')
            for i in range(3):
                o = L_RING + 2304 * i
                e(f'ds_read_b128 {vr(R + 8 * i, 4)}, v{vRR + i} offset:{o}', f'oa{i}')
                e(f'ds_read_b128 {vr(R + 8 * i + 4, 4)}, v{vRR + i} offset:{o + 1024}', f'oa{i}')
            if g == 0:
                for kk in range(2):
                    old(kk, f'o{kk}')
            e.wait(lg='or2')
            e(f'v_add_f32 v{R + 24}, v{R + 24}, v{R + 25}')
            e(f'v_add_f32 v{own + 8}, v{own + 8}, v{R + 26}')
            e(f'v_add_f32 v{own + 8}, v{own + 8}, v{R + 24}')
            e(f'v_subrev_u32 v{R + 24}, {(127 - 60) << 23}, v{own + 8}')
            e(f'v_cmp_lt_u32 vcc, {120 << 23}, v{R + 24}')
            e(f'v_fma_f32 v{R + 28}, v{own + 8}, v{vCO}, v{own + 8}')
            e(f'v_rcp_f32 v{R + 28}, v{R + 28}')
            for i in range(3):
                e.wait(lg=f'oa{i}')
                for r in range(4):
                    if g:
                        for h in range(2):
                            e(f'v_add_f32 v{own + 2 * r + h}, v{own + 2 * r + h}, v{R + 8 * i + 2 * r + h}')
                    else:
                        e(f'v_pk_add_f32 {P2(own, r)}, {P2(own, r)}, {P2(R + 8 * i, r)}')
            e('s_cbranch_vccnz Lsafe')
            e.label(f'Lsafe_done{g}')
            for r in range(8):
                e(f'v_mul_f32 v{own + r}, v{own + r}, v{R + 28}')
            for r in range(4):
                e(f'v_cvt_pk_bf16_f32 v{vK[0] + r}, v{own + 2 * r}, v{own + 2 * r + 1}')
            for r in range(4):
                e(f'v_min_u32 v{vK[0] + r}, -2, v{vK[0] + r}')
            e(f'buffer_store_dwordx4 {vr(vK[0], 4)}, v{vL16}, {srd(S_WS)}, s{sMO} offen sc1', 'ost')
            self.stamp(10)
            e(f's_lshr_b32 s{sT + 1}, s{sW}, 1')
            e(f's_lshl_b32 s{sT + 2}, s{sT + 1}, 14')
            e(f's_mul_i32 s{sT + 3}, s{sW}, {RINGW}')
            e(f's_sub_u32 s{sT + 2}, s{sT + 2}, s{sT + 3}')
            e(f's_add_u32 s{sT + 2}, s{sT + 2}, {L_WO}')
            e(f'v_and_b32 v{vP + 1}, 32, v0')
            e(f'v_lshlrev_b32 v{vP + 1}, 4, v{vP + 1}')
            e(f'v_sub_u32 v{vP + 1}, s{sT + 2}, v{vP + 1}')
            for jj in range(2):
                e(f'v_add_u32 v{vDR[jj]}, v{vP + 1}, v{vDR[jj]}')

        def old(kk, tag=None):
            for n in (2 * kk, 2 * kk + 1):
                e(f'buffer_load_dwordx4 {vr(OFR[kk] + 4 * (n & 1), 4)}, v{vL16}, {srd(S_WS)}, s{sO[HEADS[n] >> 2]} offen offset:{1024 * (HEADS[n] & 3)} sc1', tag)

        def wo_reads(n):
            for jj in range(2):
                for rd in range(2):
                    e(f'ds_read_b64_tr_b16 {vr(WO + 8 * n + 4 * jj + 2 * rd, 2)}, v{vDR[jj]} offset:{2048 * HEADS[n] + 1024 * rd}', f'wor{n}')

        def addrs(g, part=3):
            t0, t1 = vK[1] + 2, vK[1] + 3
            if part & 1:
                e(f'v_and_b32 v{vPW}, 31, v0')
                e(f'v_lshrrev_b32 v{t0}, 5, v0')
                e(f'v_and_b32 v{t1}, 7, v0')
                e(f'v_xor_b32 v{t0}, v{t0}, v{t1}')
                e(f'v_lshlrev_b32 v{t0}, 4, v{t0}')
                e(f'v_lshl_add_u32 v{vPW}, v{vPW}, 8, v{t0}')
                e(f's_lshl_b32 s{sT}, s{sTT}, 13')
                e(f's_add_u32 s{sT}, s{sT}, {98304 * g}')
                e(f'v_add_u32 v{vPW}, s{sT}, v{vPW}')
                for q in range(1, 4):
                    e(f'v_xor_b32 v{vPW + q}, {32 * q}, v{vPW}')
            if not part & 2:
                return
            e(f'v_lshrrev_b32 v{t0}, 3, v0')
            e(f'v_lshlrev_b32 v{vOA}, 4, v{t1}')
            e(f'v_lshl_add_u32 v{vOA}, v{t0}, 10, v{vOA}')
            e(f'v_lshlrev_b32 v{t1}, 1, v{t1}')
            e(f'v_xor_b32 v{t1}, v{t1}, v{t0}')
            e(f'v_lshlrev_b32 v{t1}, 4, v{t1}')
            e(f'v_lshl_add_u32 v{t1}, v{t0}, 8, v{t1}')
            e(f's_and_b32 s{sT + 2}, s{sW}, 1')
            e(f's_lshl_b32 s{sT + 2}, s{sT + 2}, 2')
            e(f's_add_u32 s{sT + 2}, s{sT + 2}, s{sT + 1}')
            e(f's_lshl_b32 s{sT + 3}, s{sT + 2}, 11')
            e(f'v_add_u32 v{vFRd}, s{sT + 3}, v{t1}')
            e(f'v_xor_b32 v{vFRd + 1}, 16, v{vFRd}')
            for h in range(2):
                e(f'v_xor_b32 v{vPR + h}, {8192 + L_PRE1}, v{vFRd + h}')
            for p in range(2):
                for h in range(2):
                    e(f'ds_read_b128 {vr(PRE + 8 * p + 4 * h, 4)}, v{vPR + h} offset:{16384 * p}', 'pr')
            for h in range(2):
                e(f'v_xor_b32 v{vPR + 2 + h}, 8192, v{vFRd + h}')
                e(f'v_add_u32 v{vPR + 4 + h}, 98304, v{vFRd + h}')
            e(f's_lshl_b32 s{sT}, s{sRB}, 3')
            e(f's_add_u32 s{sT}, s{sT}, s{sT + 2}')
            e(f's_lshl_b32 s{sT}, s{sT}, 13')
            e(f's_lshl_b32 s{sT + 1}, s{sCB}, 7')
            e(f's_add_u32 s{sT}, s{sT}, s{sT + 1}')

        def slab_write(g, i, n):
            jj, q = divmod(n, 4)
            e(f'ds_write_b128 v{vPW + q}, {vr(vG[2 * i + jj] + 4 * q, 4)} offset:{32768 * (i ^ g ^ 1) + 128 * jj}', 'sw')

        def mf(jj, n):
            acc = vr(vG[jj], 16)
            e(f'v_mfma_f32_32x32x16_bf16 {acc}, {vr(WO + 8 * n + 4 * jj, 4)}, {vr(OFR[n >> 1] + 4 * (n & 1), 4)}, {acc}')

        def mm(kk, between=None, jjs=(0, 1)):
            e.wait(vm=f'o{kk}')

            def ck():
                b = OFR[kk]
                e(f'v_max3_u32 v{vP}, v{b}, v{b + 1}, v{b + 2}')
                e(f'v_max3_u32 v{vP + 1}, v{b + 3}, v{b + 4}, v{b + 5}')
                e(f'v_max3_u32 v{vP}, v{vP}, v{b + 6}, v{b + 7}')
                e(f'v_max_u32 v{vP}, v{vP}, v{vP + 1}')
                e(f'v_cmp_eq_u32 vcc, -1, v{vP}')
            self.spin(f'o{kk}', lambda: [old(q) for q in range(kk, (kk | 1) + 1)], ck, self.opt['sl3'])
            for i, (jj, n) in enumerate(((0, 2 * kk), (0, 2 * kk + 1), (1, 2 * kk), (1, 2 * kk + 1))):
                if jj in jjs:
                    mf(jj, n)
                if between:
                    between(i)

        self.stamp(9)
        e(f's_cmp_lg_u32 s{sG}, 0')
        e('s_setprio 3')
        e.wait(vm='wo', lg='all')
        e('s_cbranch_scc1 Ltail1')
        snap = e.snapshot()
        self.tail_blocks.append(self.safe_softmax)

        def first_group():
            e.restore(snap)
            e.label('Ltail1')
            e(f'v_mov_b32 v{vPA}, {L_CNT}')
            e(f'v_mov_b32 v{vP}, 1')
            e('s_mov_b64 exec, 1')
            e(f'ds_add_u32 v{vPA}, v{vP} offset:4')
            e('s_mov_b64 exec, -1')

            def ld():
                e(f'ds_read_b64 {vr(vP, 2)}, v{vPA}')
                e('s_waitcnt lgkmcnt(0)')

            def ck():
                e(f'v_add_u32 v{vP}, v{vP}, v{vP + 1}')
                e(f'v_cmp_ne_u32 vcc, 12, v{vP}')
            ld()
            for p in e.paths:
                p.lg = []
            self.spin('g1', ld, ck, 1)
            o_reduce(1)
            addrs(1, 1)
            e('s_setprio 0')
            for n in range(8):
                wo_reads(n)
                slab_write(1, 1, n)
            e.wait(lg='all')
            e('s_barrier')
            for kk in range(4 if self.opt['ol'] == 0 else 2):
                old(kk, f'o{kk}')
            addrs(1, 2)
            e('s_barrier')
            self.stamp(11)
            finish(1, self.opt['ol'])
            e('s_branch Ltail2')
        self.tail_blocks.insert(0, first_group)

        def finish(g, late, k0=0):
            def pre_add(i):
                e.wait(lg='pr')
                for r in range(2 * i, 2 * i + 2):
                    e(f'v_add_f32 v{PRE + r}, v{PRE + r}, v{PRE + 8 + r}')
            for kk in range(k0, 4):
                if late == kk + 1:
                    for q in range(2, 4):
                        old(q, f'o{q}')
                e.wait(lg=f'wor{2 * kk + 1}')
                mm(kk, pre_add if kk == 3 else None)
            self.stamp(12)
            for n in range(8):
                slab_write(g, 0, n)
            e.wait(lg='all')

        e('s_barrier')
        o_reduce(0)
        YL = self.opt['yl']
        lateld = lambda: [old(q, f'o{q}') for q in range(2, 4)]
        if YL == 0:
            lateld()
        for n in range(4):
            wo_reads(n)
        addrs(0, 1)
        e('s_barrier')
        for kk in range(2):
            if YL == kk + 1:
                lateld()
            e.wait(lg=f'wor{2 * kk + 1}')

            def lds_work(i, kk=kk):
                slab_write(0, 1, 4 * kk + i)
                if i % 2:
                    wo_reads(4 + 2 * kk + i // 2)
            mm(kk, lds_work)
        if YL == 3:
            lateld()
        addrs(0, 2)
        self.stamp(11)
        finish(0, 0, 2)
        e.label('Ltail2')
        e('s_barrier')
        B = X
        src = [(vPR + 2, 0), (vPR + 2, 16384), (vPR + 4, 0), (vPR + 4, 16384), (vFRd, 32768), (vFRd, 49152)]
        for p, (va, off) in enumerate(src):
            for h in range(2):
                e(f'ds_read_b128 {vr(B + 8 * p + 4 * h, 4)}, v{va + h} offset:{off}', f'fr{p}')
        for p in range(6):
            e.wait(lg=f'fr{p}')
            for r in range(4):
                e(f'v_pk_add_f32 {P2(PRE, r)}, {P2(PRE, r)}, {P2(B + 8 * p, r)}')
        for r in range(4):
            e(f'v_cvt_pk_bf16_f32 v{B + r}, v{PRE + 2 * r}, v{PRE + 2 * r + 1}')
        e(f'buffer_store_dwordx4 {vr(B, 4)}, v{vOA}, {srd(S_OUT)}, s{sT} offen sc1')
        if 'probe' in self.opt:
            e.wait(vm='all')
            self.stamp(13)
            if self.opt.get('xcc') is not None:
                e(f's_getreg_b32 s{sT}, hwreg(HW_REG_XCC_ID, 0, 4)')
                e(f's_and_b32 s{sT}, s{sT}, {self.opt["xcc"]}')
                e(f's_mul_i32 s{sT}, s{sT}, 300')
                e('s_cmp_eq_u32 s2, 0')
                e(f's_cselect_b32 s{sT}, s{sT}, 0')
                e(f's_add_u32 s{sSTAMP}, s{sSTAMP}, s{sT}')
            e.label('Lprobe')
            e('s_sleep 1')
            e(f's_memrealtime s[{sSTMP}:{sSTMP + 1}]')
            e('s_waitcnt lgkmcnt(0)')
            e(f's_sub_u32 s{sSTMP}, s{sSTMP}, s{sNON if self.opt["probe"] == 99 else sSTAMP}')
            e(f's_cmp_lt_u32 s{sSTMP}, 6000')
            e('s_cbranch_scc1 Lprobe')
        if self.stamps:
            e.wait(vm='all')
            self.stamp(13)
            e(f's_lshl_b32 s{sT}, s2, 3')
            e(f's_add_u32 s{sT}, s{sT}, s{sW}')
            e(f's_lshl_b32 s{sT}, s{sT}, 6')
            e(f's_add_u32 s{sT}, s{sT}, {WS_ST}')
            e('s_waitcnt lgkmcnt(0)')
            en = [i for i in range(14) if (self.opt.get('smask', 0x2001) | 0x2001) >> i & 1]
            for k, i in enumerate(en):
                e(f'v_mov_b32 v{B + 8 + i}, s{sSTAMP + 2 * k}')
            e(f's_getreg_b32 s{sT + 1}, hwreg(HW_REG_XCC_ID, 0, 4)')
            e(f'v_mov_b32 v{B + 8 + 15}, s{sT + 1}')
            e('s_mov_b64 exec, 1')
            for i in range(4):
                e(f'buffer_store_dwordx4 {vr(B + 8 + 4 * i, 4)}, off, {srd(S_WS)}, s{sT} offset:{16 * i}')
        e.label('Lexit')
        e('s_endpgm')

    def safe_softmax(self):
        e = self.e
        e.paths = [p for p in Emitter().paths]
        own = vO[3]
        M = vO[0]
        S = vS[0]
        e.label('Lsafe')
        e(f's_and_b32 s{sT + 2}, s{sKVB}, {0xffffffff ^ (3 << 15)}')
        e(f's_mov_b32 s{sT + 3}, s{sT + 2}')
        e(f's_mov_b32 s{sT + 4}, 64')
        e(f'v_mov_b32 v{M}, 0xff800000')
        e.label('Lsafe1')
        e(f'buffer_load_dwordx4 {vr(vK[0], 4)}, v{vL16}, {srd(S_WS)}, s{sT + 3} offen sc1')
        e(f's_add_u32 s{sT + 3}, s{sT + 3}, 2048')
        e('s_waitcnt vmcnt(0)')
        e(f'v_mfma_f32_32x32x16_bf16 {vr(S, 16)}, {vr(vK[0], 4)}, {vr(vQ[3], 4)}, 0')
        for i in range(0, 16, 2):
            e(f'v_max3_f32 v{M}, v{M}, v{S + i}, v{S + i + 1}')
        e(f's_sub_u32 s{sT + 4}, s{sT + 4}, 1')
        e(f's_cmp_lg_u32 s{sT + 4}, 0')
        e('s_cbranch_scc1 Lsafe1')
        e(f'v_mov_b32 v{M + 1}, v{M}')
        e(f'v_permlane32_swap_b32 v{M}, v{M + 1}')
        e(f'v_max_f32 v{M}, v{M}, v{M + 1}')
        e(f'v_sub_f32 v{M}, 0, v{M}')
        for i in range(1, 16):
            e(f'v_mov_b32 v{M + i}, v{M}')
        for i in range(16):
            e(f'v_mov_b32 v{own + i}, 0')
        e(f's_mov_b32 s{sT + 3}, s{sT + 2}')
        e(f's_mov_b32 s{sT + 4}, 64')
        e.label('Lsafe2')
        e(f'buffer_load_dwordx4 {vr(vK[0], 4)}, v{vL16}, {srd(S_WS)}, s{sT + 3} offen sc1')
        e(f's_mov_b64 exec, s[{sVM}:{sVM + 1}]')
        e(f'buffer_load_dwordx4 {vr(vV[0], 4)}, v{vVA}, {srd(S_WS)}, s{sT + 3} offen offset:1024 sc1')
        e(f'buffer_load_dwordx4 {vr(vV[0] + 4, 4)}, v{vVA}, {srd(S_WS)}, s{sT + 3} offen offset:1536 sc1')
        e('s_mov_b64 exec, -1')
        e(f's_add_u32 s{sT + 3}, s{sT + 3}, 2048')
        e('s_waitcnt vmcnt(0)')
        e(f'v_mfma_f32_32x32x16_bf16 {vr(S, 16)}, {vr(vK[0], 4)}, {vr(vQ[3], 4)}, {vr(M, 16)}')
        for i in range(16):
            e(f'v_exp_f32 v{S + i}, v{S + i}')
        for hi in range(2):
            e(f'v_smfmac_f32_32x32x32_bf16 {vr(own, 16)}, {vr(vV[0] + 4 * hi, 4)}, {vr(S + 8 * hi, 8)}, v{vIDX}')
        e(f's_sub_u32 s{sT + 4}, s{sT + 4}, 1')
        e(f's_cmp_lg_u32 s{sT + 4}, 0')
        e('s_cbranch_scc1 Lsafe2')
        e('s_nop 15')
        e(f'v_fma_f32 v{vO[0] + 28}, v{own + 8}, v{vCO}, v{own + 8}')
        e(f'v_rcp_f32 v{vO[0] + 28}, v{vO[0] + 28}')
        e(f's_cmp_lg_u32 s{sG}, 0')
        e('s_cbranch_scc1 Lsafe_done1')
        e('s_branch Lsafe_done0')

    def build(self):
        e = self.e
        self.prologue()
        e.drop = (None, ('v_mfma',), ('v_mfma', 'ds_read_b64_tr'), ('ds_read_b64_tr',))[self.opt.get('x_drop', 0)]
        snap = e.snapshot()
        e.label('Lload')
        self.phase_a_loader()
        self.phase_f(1, 3)
        e('s_branch Lffn')
        ends = e.snapshot()
        cends = []
        for ty in (0, 1):
            e.restore(snap)
            e.label(f'Lcomp{ty}')
            e.comment('---- compute waves: four heads of ' + 'kv'[ty] + ' and the gate logit')
            self.phase_a_compute(ty)
            if ty == 0:
                e('s_branch Lpack')
            cends += e.snapshot()
        e.paths = cends
        e.label('Lpack')
        e(f's_mul_i32 s{sT}, s{sJ}, 43691')
        e(f's_lshr_b32 s{sT}, s{sT}, 17')
        e(f's_mul_i32 s{sT}, s{sT}, 3')
        for i in range(4):
            self.pack8(ACA + 8 * i, ACA + 4 * i)
            if i < self.opt['qe']:
                self.kv_store(i)
        self.z_write()
        e(f's_cmp_lt_u32 s{sJU}, 6' if self.opt['um'] else f's_cmp_eq_u32 s{sT}, s{sJ}')
        e('s_cbranch_scc1 Lsix')
        snap = e.snapshot()
        for NC in (2, 3):
            e.restore(snap)
            if NC == 3:
                e.label('Lsix')
            e('s_barrier')
            self.stamp(4)
            self.phase_f(0, NC)
            if NC == 2:
                e('s_branch Lffn')
            ends += e.snapshot()
        e.paths = ends
        e.label('Lffn')
        e.drop = None
        self.attn_loads_late()
        self.stamp(6)
        self.attention()
        self.tail()
        i = 0
        while i < len(self.tail_blocks):
            self.tail_blocks[i]()
            i += 1
        e.label('Lcode_end')
        return self.wrap()

    def wrap(self):
        head = open('gated_mix__softmax_full_mha__glu_gated_geglu__prompt.s.ref').read().split('; Override')[0]
        return head + f"""; @launch grid=(256,1,1) block=(512,1,1) lds={LDS_BYTES}
{DOC}.amdgcn_target "amdgcn-amd-amdhsa--gfx950"
.text
.globl {KNAME}
.p2align 8
.type {KNAME},@function
{KNAME}:
{self.e.text()}
.section .rodata,"a"
.p2align 6
.amdhsa_kernel {KNAME}
  .amdhsa_next_free_vgpr 256
  .amdhsa_next_free_sgpr 102
  .amdhsa_accum_offset 256
  .amdhsa_group_segment_fixed_size 0
  .amdhsa_kernarg_size 88
  .amdhsa_user_sgpr_count 2
  .amdhsa_user_sgpr_kernarg_segment_ptr 1
  .amdhsa_system_sgpr_workgroup_id_x 1
.end_amdhsa_kernel
"""


if __name__ == '__main__':
    out = sys.argv[1]
    stamps = sys.argv[2] if len(sys.argv) > 2 and sys.argv[2] in ('rt', 'cy') else False
    opt = {}
    for a in sys.argv[2:]:
        if '=' in a:
            k, v = a.split('=')
            opt[k] = int(v, 0)
    g = Gen(stamps=stamps, opt=opt)
    open(out, 'w').write(g.build())
    print('nops inserted:', g.e.nops, 'lines:', len(g.e.lines))
```

```python
import sys, math, struct
from asmlib import Emitter, Win

KNAME = 'gated_mix__softmax_full_mha__glu_gated_geglu__prompt_kernel'

WS_Q = 0
WS_KV = 2 << 20
WS_O = 6 << 20
WS_F1 = 8 << 20
WS_F2 = WS_F1 + 32768
WS_ST = WS_F1 + 65536
WS_H = 9 << 20
HBLK = 86 * 2048
WS_END = 15 << 20

L_GW = 0
L_Z = 1024
SLOT0 = 4096
UPOFF = 12288
QOFF = 24576
L_QX = 147456
L_RING = 4096
RINGW = 7168
L_WO = 65536
L_PRE1 = 131072
L_CNT = 2048
LDS_BYTES = 163840

S_X, S_WQ, S_WF, S_WS, S_H, S_WD, S_WO, S_OUT, S_DBG, S_GW = [4 * i + 4 for i in range(10)]
S_WG = 80
sW, sTT, sG, sJ, sTB, sRB, sCB, sUS = range(44, 52)
sXO, sWO, sFO, sMX, sMW, sMF = range(52, 58)
sNON = 58
sKV, sKVB, sKVI, sHO, sDO, sMD = range(60, 66)
sVM = 66
sT = 68
sGC = 76
sQX = [40, 41, 42, 43]
sQW = 78
sXO2 = 79
sSPIN = 84
sMO = 85
sFO2 = 86
sJU = 87
sMG = 3
sO = [4, 5]
sR = 73
sE = [4, 5, 6, 7]
sSTMP = 74
sSTAMP = 88


def region(s):
    return SLOT0 + 28672 * (s % 5)


def srd(b):
    return f's[{b}:{b + 3}]'


def vr(b, n):
    return f'v[{b}:{b + n - 1}]' if n > 1 else f'v{b}'


def fbits(x):
    return '0x%08x' % struct.unpack('<I', struct.pack('<f', x))[0]


vL16 = 1
vXD = [2, 3]
vWD = 4
vFD = 5
vXR = [6, 7]
vWR = [8, 2]
vFR = [9, 10, 11]
FR = 16
NFR = 5
ACA = 36
ACF = 68
vK = [116, 120]
vCH, vIDX, vVA = 124, 126, 127
vQR = 126
QA = ACA + 16
X = 128
vO = [X + 16 * i for i in range(4)]
vQ = [X + 64 + 4 * i for i in range(4)]
vV = [ACA, ACA + 8]
vS = [ACA + 16, X + 80]
vG = [ACF, ACF + 16, ACF + 32, X + 96]
vH = [X + 112, X + 120]
vD = FR
vCO = FR + 8
vDD = [2, 3]
vDR = [12, 13]
vP = 14
vPA = 6
vRW = [7, 8]
vHA = [9, 10]
vKA = 124
vRR = FR + 10

LOG2E = 1.4426950408889634
QSCALE = 0.25 * LOG2E
GC0 = -2.0 * LOG2E * math.sqrt(2.0 / math.pi)
GC1 = GC0 * 0.044715
SPIN = 400000
FL = ('', ' sc1', ' nt', ' sc1 nt')

DOC = """;
;
;   1. k/v projection   x and 64 columns of w_k (even j) or w_v (odd j) stream through an LDS ring by LDS-DMA
;                       (waves 4-7 load, waves 0-3 multiply); x stays in registers; k, v go to d_ws as MFMA operands.
;   2. q + gate/up      q of heads 2j, 2j+1 (scaled by log2(e)/4) and 5 or 6 units of 16 gate/up columns;
;   3. attention        wave (kq, head) runs 4 query tiles against a quarter of the keys:
;                       S^T = K Q^T (v_mfma 32x32x16), P = v_exp_f32(S), O^T += V^T P^T with v_smfmac 32x32x32, whose
;
; Softmax guard: the fast path uses the shift 0. Every row sum is then checked at run time; if any lies outside
; [2^-60, 2^60] (or is not finite) the query tile is recomputed in two passes with the true row maximum (Lsafe).
;
"""


class Gen:
    def __init__(self, stamps=False, opt=None):
        self.e = Emitter()
        self.stamps = stamps
        self.nst = 0
        self.opt = dict(g2start=5, prio=True, ahead=12, span=12, fah=2, omf=0, lfirst=3, as2=6, ahead2=8, tlb=0, bt=0, rx=1, btm=999, btx=0, tch=200, tca=8, tcw=7, dsplit=1, ys=2, fw=0, fx=0, fh=1, p1i=74, p1c=83, gsp=10, g0=0, fk=2, gk=3, lpre=50, cpre=40, lfk=20, llast=2, lsp2=1,
                        pa=4, pb=52, pc=200, ol=3, yl=3, woi=8, hs=7, gwl=1, spf=0, i0=12, nm=4, gu=1, ng1=0, ng2=0, ng3=0, gt=0, gx=0, gy=2, um=0xc084, qw=11, vs=10, qe=0, q0=1, qsp=5, om=-2, s2t=3, rot=4, rj=0, zm=1, hl=0, hsp=1,
                        fs=7, lp=1, eb=1, sl1=4, sl2=8, sl3=2, lsp=3)
        if opt:
            self.opt.update(opt)
        self.tail_blocks = []

    def stamp(self, idx, sset=0):
        e = self.e
        if self.opt.get('sset') == 4:
            if 7 <= idx <= 9 and sset != 4:
                return
        elif 7 <= idx <= 12 and sset != self.opt.get('sset', 0):
            return
        if self.opt.get('probe') == idx:
            e(f's_memrealtime s[{sSTAMP}:{sSTAMP + 1}]')
            e('s_waitcnt lgkmcnt(0)')
            for p in e.paths:
                p.lg = []
        if not self.stamps or not (self.opt.get('smask', 0x2001) | 0x2001) >> idx & 1:
            return
        en = [i for i in range(14) if (self.opt.get('smask', 0x2001) | 0x2001) >> i & 1]
        assert len(en) <= 7
        r = sSTAMP + 2 * en.index(idx)
        e(f"{'s_memtime' if self.stamps == 'cy' else 's_memrealtime'} s[{r}:{r + 1}]")

    def dma_list(self, s):
        e = self.e
        slot = region(s)
        out = []
        tag = f'st{s}'

        def mk(m0s, m0c, va, rs, so, imm=0, pre=(), tag=tag):
            def f(part=3):
                if part & 1:
                    e(f's_add_u32 m0, s{m0s}, {m0c - imm}')
                    for p in pre:
                        e(p)
                if part & 2:
                    e(f'buffer_load_dwordx4 v{va}, {srd(rs)}, s{so} offen' + (f' offset:{imm}' if imm else '') + (FL[self.opt['fx']] if rs == S_X else '') + ' lds', tag)
            f.dma = True
            out.append(f)
        t = sT + 6

        def step(so, n):
            if s % 8 == 0:
                return ()
            if s % (8 // self.opt['rot']) and not self.opt['rx'] & 2:
                return [f's_add_u32 s{so}, s{so}, {n}']
            return [f's_cmp_eq_u32 s{sR}, {-s % 8}', f's_cselect_b32 s{t}, -7, 1', f's_mul_i32 s{t}, s{t}, {n}', f's_add_u32 s{so}, s{so}, s{t}']
        if s < 8:
            for i in range(4):
                mk(sMX, slot + i * 1024, vXD[i % 2], S_X, sXO if i < 2 else sXO2,
                   pre=step(sXO, 128) if i == 0 else ([f's_add_u32 s{sXO2}, s{sXO}, 16384'] if i == 1 else ()))
            for i in range(2):
                mk(sMW, slot + 16384 + i * 1024, vWD, S_WQ, sWO, imm=64 * i, pre=step(sWO, 64 * 3072) if i == 0 else ())
        else:
            mk(sMF, slot + QOFF, vWD, S_WQ, sQW, pre=step(sQW, 64 * 3072))
            if self.opt['gu']:
                assert self.opt['rot'] == 4 and not self.opt['rx'] & 2
                adv = [f's_cmp_eq_u32 s{sR}, {-2 * s % 8}', f's_cselect_b32 s{t}, -3, 1',
                       f's_mul_i32 s{t}, s{t}, {128 * 2752}', f's_add_u32 s{sFO}, s{sFO}, s{t}'] if s > 8 else []
                for h in range(2):
                    for i in range(3):
                        mk(sMG, slot + h * UPOFF + i * 1024, vFD, S_WG if s < 12 else S_WF, sFO2 if h else sFO, imm=64 * i, tag=tag + 'b',
                           pre=adv if h + i == 0 else ([f's_add_u32 s{sFO2}, s{sFO}, {64 * 2752}'] if (h, i) == (0, 1) else ()))
                return out
            for h in range(2):
                for i in range(3):
                    mk(sMG, slot + h * 6144 + i * 1024, vFD, S_WF, sFO2 if h else sFO, imm=64 * i, tag=tag + 'b' * h,
                       pre=step(sFO, 64 * 2752) if h + i == 0 else ([f's_add_u32 s{sFO2}, s{sFO}, {32 * 2752}'] if (h, i) == (0, 1) else ()))
        return out

    def prologue(self):
        e = self.e
        self.stamp(0)
        e('s_cmp_ge_u32 s2, 256')
        e('s_cbranch_scc1 Lexit')
        e(f's_load_dwordx2 s[{S_X}:{S_X + 1}], s[0:1], 0')
        e(f's_load_dwordx2 s[{S_WQ}:{S_WQ + 1}], s[0:1], 8')
        if not self.opt['spf']:
            e.comment('prefetch of the kernel\'s own code into L2: two lines per wave')
            e(f's_getpc_b64 s[{sT}:{sT + 1}]')
            e.label('Lpfbase')
            e(f's_lshr_b32 s{sT + 2}, s2, 3')
            e(f's_lshl_b32 s{sT + 2}, s{sT + 2}, 11')
            e(f'v_lshl_add_u32 v16, v0, 2, s{sT + 2}')
            e('v_min_u32 v16, Lcode_end-Lpfbase-4, v16')
        e('v_lshrrev_b32 v2, 6, v0')
        if not self.opt['spf']:
            e('s_mov_b32 exec_lo, 1')
            e('s_mov_b32 exec_hi, 1')
            e(f'global_load_dword v{vK[1]}, v16, s[{sT}:{sT + 1}]', 'pf')
            e('s_mov_b64 exec, -1')
        e('v_and_b32 v0, 63, v0')
        e(f'v_readfirstlane_b32 s{sW}, v2')
        e(f's_xor_b32 s{sW}, s{sW}, 4')
        e(f's_and_b32 s{sTT}, s{sW}, 3')
        e(f's_lshr_b32 s{sG}, s{sW}, 2')
        e('s_cbranch_scc1 Lload')
        if self.opt['spf']:
            e(f's_getpc_b64 s[{sT}:{sT + 1}]')
            e.label('Lpfbase')
            e(f's_lshr_b32 s{sT + 2}, s2, 3')
            e(f's_lshl_b32 s{sT + 2}, s{sT + 2}, 2')
            e(f's_add_u32 s{sT + 2}, s{sT + 2}, s{sTT}')
            e(f's_mul_i32 s{sT + 2}, s{sT + 2}, 384')
            e(f's_min_u32 s{sT + 2}, s{sT + 2}, Lcode_end-Lpfbase-384')
            e(f's_add_u32 s{sT}, s{sT}, s{sT + 2}')
            e(f's_addc_u32 s{sT + 1}, s{sT + 1}, 0')
            for k in range(0, 6, self.opt['spf']):
                e(f's_load_dword s{sKV + k}, s[{sT}:{sT + 1}], {64 * k}')
        e('s_bitcmp1_b32 s2, 3')
        e('s_cbranch_scc1 Lcomp1')
        e('s_branch Lcomp0')

    def ids_tb(self):
        e = self.e
        R = self.opt['rot']
        e(f's_and_b32 s{sTB}, s2, 4')
        e(f's_lshl_b32 s{sTB}, s{sTB}, 1')
        e(f's_lshr_b32 s{sT + 6}, s2, 5')
        e(f's_add_u32 s{sTB}, s{sTB}, s{sT + 6}')
        RX = self.opt['rx']
        if RX & 1:
            e(f's_mul_i32 s{sR}, s2, {R // 4}')
            e(f's_add_u32 s{sR}, s{sR}, s{sTB}')
        e(f's_and_b32 s{sR}, s{sR if RX & 1 else sTB}, {R - 1}')
        e(f's_mul_i32 s{sR}, s{sR}, {8 // R}')
        if RX & 2:
            e(f's_lshr_b32 s{sT + 6}, s{sTB}, 3')
            e(f's_add_u32 s{sR}, s{sR}, s{sT + 6}')

    def more_args(self, g):
        e = self.e
        lst = ([(S_WG, 32), (S_WF, 40)] if g else []) + ([(S_GW, 56)] if g == self.opt['gwl'] else [])
        for b, off in lst + [(S_DBG, 72), (S_WS, 80), (S_H, 80), (S_WD, 48), (S_WO, 16), (S_OUT, 64)]:
            e(f's_load_dwordx2 s[{b}:{b + 1}], s[0:1], {off}')
        e(f'v_lshlrev_b32 v{vL16}, 4, v0')

    def ids_j(self):
        e = self.e
        e(f's_and_b32 s{sJ}, s2, 3')
        e(f's_lshl_b32 s{sJ}, s{sJ}, 2')
        e(f's_bfe_u32 s{sT + 6}, s2, 0x20003')
        e(f's_add_u32 s{sJ}, s{sJ}, s{sT + 6}')

    def quad_rows(self, dst, stride, t):
        e = self.e
        e(f'v_lshrrev_b32 v{t}, 4, v0')
        e(f'v_and_b32 v{t}, 2, v{t}')
        e(f'v_xor_b32 v{t}, v{t}, v0')
        e(f'v_and_b32 v{t}, 3, v{t}')
        e(f'v_lshrrev_b32 v{dst}, 2, v0')
        e(f'v_mul_u32_u24 v{dst}, {stride}, v{dst}')
        e(f'v_lshl_add_u32 v{dst}, v{t}, 4, v{dst}')

    def tr_base(self, dst, gstride, t):
        e = self.e
        e(f'v_lshrrev_b32 v{dst}, 5, v0')
        e(f'v_mul_u32_u24 v{dst}, {gstride}, v{dst}')
        e(f'v_bfe_u32 v{t}, v0, 4, 1')
        e(f'v_mul_u32_u24 v{t}, {512 + 32}, v{t}')
        e(f'v_add_u32 v{dst}, v{dst}, v{t}')
        e(f'v_bfe_u32 v{t}, v0, 2, 2')
        e(f'v_lshl_add_u32 v{dst}, v{t}, 6, v{dst}')
        e(f'v_and_b32 v{t}, 3, v0')
        e(f'v_lshl_add_u32 v{dst}, v{t}, 3, v{dst}')

    def srd_consts(self, lst):
        for b, n in lst:
            self.e(f's_mov_b32 s{b + 2}, {n}')
            self.e(f's_mov_b32 s{b + 3}, 0x20000')

    def x_read_addrs(self):
        e = self.e
        e('v_and_b32 v16, 15, v0')
        e(f's_lshl_b32 s{sT + 6}, s{sTT}, 12')
        e('v_lshrrev_b32 v17, 4, v0')
        e('v_lshrrev_b32 v18, 1, v16')
        e('v_xor_b32 v18, v18, v17')
        e('v_lshlrev_b32 v18, 4, v18')
        e('v_lshl_add_u32 v18, v16, 7, v18')
        e(f'v_add_u32 v{vXR[0]}, s{sT + 6}, v18')
        e(f'v_xor_b32 v{vXR[1]}, 64, v{vXR[0]}')

    def setup2(self, g, ty):
        e = self.e
        t = sT
        self.srd_consts(([(S_DBG, 256), (S_WF, 512 * 2752)] + ([(S_WG, 512 * 2752)] if self.opt['gu'] else []) if g else []) +
                        [(S_WS, WS_END), (S_H, HBLK), (S_WD, 1376 * 1024), (S_WO, 512 * 1024), (S_OUT, 2048 * 1024)])
        if self.opt['um']:
            e(f's_and_b32 s{t}, s{sJ}, 12')
            e(f's_lshr_b32 s{t}, {self.opt["um"]}, s{t}')
            e(f's_and_b32 s{t}, s{t}, 12')
            e(f's_and_b32 s{sJU}, s{sJ}, 3')
            e(f's_add_u32 s{sJU}, s{sJU}, s{t}')
            e(f's_min_u32 s{t}, s{sJU}, 6')
            e(f's_mul_i32 s{sUS}, s{sJU}, 5')
            e(f's_add_u32 s{sUS}, s{sUS}, s{t}')
        else:
            e(f's_lshl_b32 s{sUS}, s{sJ}, 4')
            e(f's_add_u32 s{sUS}, s{sUS}, 2')
            e(f's_mul_i32 s{sUS}, s{sUS}, 43691')
            e(f's_lshr_b32 s{sUS}, s{sUS}, 17')
        if g:
            e(f's_lshl_b32 s{t + 1}, s{sR}, 2')
            e(f's_add_u32 s{t + 1}, s{t + 1}, s{sTT}')
            if self.opt['gu']:
                e(f's_mul_i32 s{sFO}, s{t + 1}, {16 * 2752}')
            else:
                e(f's_cmp_lt_u32 s{sTT}, 2\n    s_cselect_b32 s{S_WF}, s{S_WG}, s{S_WF}\n    s_cselect_b32 s{S_WF + 1}, s{S_WG + 1}, s{S_WF + 1}')
                e(f's_and_b32 s{sFO}, s{t + 1}, -3')
                e(f's_mul_i32 s{sFO}, s{sFO}, {16 * 2752}')
            e(f's_lshr_b32 s{t}, s{sUS}, 1')
            e(f's_lshl_b32 s{t}, s{t}, 6')
            e(f's_add_u32 s{sFO}, s{sFO}, s{t}')
            e(f's_mul_i32 s{sQW}, s{t + 1}, {16 * 3072}')
            e(f's_lshl_b32 s{t}, s{sJ}, 6')
            e(f's_add_u32 s{sQW}, s{sQW}, s{t}')
            e(f's_and_b32 s{sMG}, s{sTT}, {0 if self.opt["gu"] else 2}')
            e(f's_add_u32 s{sMG}, s{sMG}, s{sTT}')
            e(f's_mul_i32 s{sMG}, s{sMG}, 3072')
            e(f's_lshl_b32 s{sMF}, s{sTT}, 10')
            self.quad_rows(vFD, 2752, vP)
        first = 0 if g else 3
        self.tr_base(vP + 1, 3072, vP)
        for c in range(3):
            e(f's_and_b32 s{t}, s{sUS}, 1')
            e(f's_add_u32 s{t}, s{t}, {first + c}')
            e(f's_lshr_b32 s{t + 1}, s{t}, 1')
            e(f's_lshl_b32 s{t + 1}, s{t + 1}, 10')
            e(f's_and_b32 s{t}, s{t}, 1')
            e(f's_lshl_b32 s{t}, s{t}, 5')
            e(f'v_xor_b32 v{vFR[c]}, s{t}, v{vP + 1}')
            e(f'v_add_u32 v{vFR[c]}, s{t + 1}, v{vFR[c]}')
        e(f'v_lshrrev_b32 v{vP}, 5, v0')
        e(f'v_lshlrev_b32 v{vVA}, 11, v{vP}')
        e(f'v_sub_u32 v{vQR}, v{vP + 1}, v{vVA}')
        if g:
            e(f'v_xor_b32 v{vQR}, 32, v{vQR}')
        e(f's_and_b32 s{sRB}, s2, 7')
        e(f's_xor_b32 s{sRB}, s{sRB}, 4')
        e(f's_lshl_b32 s{sRB}, s{sRB}, 2')
        e(f's_lshr_b32 s{t}, s2, 6')
        e(f's_add_u32 s{sRB}, s{sRB}, s{t}')
        e(f's_mul_i32 s{t}, s{sRB}, {HBLK}')
        e(f's_add_u32 s{t}, s{t}, {WS_H}')
        e(f's_add_u32 s{S_H}, s{S_H}, s{t}\n    s_addc_u32 s{S_H + 1}, s{S_H + 1}, 0')
        e(f's_bfe_u32 s{sCB}, s2, 0x30003')
        e(f's_mov_b32 s{sVM}, 0xffff')
        e(f's_mov_b32 s{sVM + 1}, 0xffff')
        e(f's_mov_b32 s{sGC}, {fbits(GC1)}')
        e(f's_mov_b32 s{sGC + 1}, s{sGC}')
        e(f'v_and_b32 v{vVA}, 15, v0')
        e(f'v_lshl_add_u32 v{vVA}, v{vP}, 4, v{vVA}')
        e(f'v_lshlrev_b32 v{vVA}, 4, v{vVA}')
        e(f's_lshl_b32 s{t}, s{sTB}, 2')
        e(f's_add_u32 s{t}, s{t}, s{sTT}')
        e(f's_lshr_b32 s{sHO}, s{t}, 1')
        e(f's_mul_i32 s{sHO}, s{sHO}, 86')
        e(f's_add_u32 s{sHO}, s{sHO}, s{sUS}')
        e(f's_lshl_b32 s{sHO}, s{sHO}, 1')
        e(f's_and_b32 s{t + 1}, s{t}, 1')
        e(f's_add_u32 s{sHO}, s{sHO}, s{t + 1}')
        e(f's_lshl_b32 s{sHO}, s{sHO}, 10')
        e(f's_add_u32 s{sHO}, s{sHO}, {WS_H + 2048 * first}')
        e(f's_lshl_b32 s{sMO}, s{t}, 4')
        e(f's_add_u32 s{sMO}, s{sMO}, s{sJ}')
        e(f's_lshl_b32 s{sMO}, s{sMO}, 11')
        e(f's_add_u32 s{sMO}, s{sMO}, {g * 1024 + WS_O}')
        if g == 0:
            e(f's_lshr_b32 s{sE[0]}, s{sJ}, 1')
            e(f's_lshl_b32 s{sE[0]}, s{sE[0]}, 8')
            e(f's_add_u32 s{sE[0]}, s{sE[0]}, s{t}')
            e(f's_lshl_b32 s{sE[0]}, s{sE[0]}, 11')
            e(f's_add_u32 s{sE[0]}, s{sE[0]}, {WS_KV + 1024 * ty}')
            for i in range(1, 4):
                e(f's_add_u32 s{sE[i]}, s{sE[0]}, {262144 * (i >> 1) + 512 * (i & 1) if ty else 131072 * i}')
            if ty:
                e(f'v_bfe_u32 v{vWD}, v0, 4, 1')
                e(f'v_lshl_add_u32 v{vWD}, v{vWD}, 17, v{vVA}')
            else:
                e(f'v_mov_b32 v{vWD}, v{vL16}')
        e(f's_lshl_b32 s{sKVB}, s{sJ}, 3')
        e(f's_add_u32 s{sKVB}, s{sKVB}, s{sW}')
        e(f's_lshl_b32 s{sKVB}, s{sKVB}, 15')
        e(f's_add_u32 s{sKVB}, s{sKVB}, {WS_KV}')
        e(f's_and_b32 s{sKVI}, s{sTB}, 7')
        e(f's_lshl_b32 s{sKVI}, s{sKVI}, 12')
        e(f's_and_b32 s{sKV}, s{sJ}, 14')
        e(f's_lshl_b32 s{sKV}, s{sKV}, 2')
        e(f's_add_u32 s{sKV}, s{sKV}, s{sTT}')
        e(f's_lshl_b32 s{sKV}, s{sKV}, {2 + self.opt["fs"]}')
        e(f's_add_u32 s{sKV}, s{sKV}, {WS_F1}')
        for i in range(4):
            e(f's_add_u32 s{sQX[i]}, s{sTT}, {1 + i}')
            e(f's_and_b32 s{sQX[i]}, s{sQX[i]}, 3')
            e(f's_lshl_b32 s{sQX[i]}, s{sQX[i]}, 10')
            e(f's_add_u32 s{sQX[i]}, s{sQX[i]}, {L_QX + 4096 * g}')
        e(f's_mul_i32 s{sMD}, s{sW}, {RINGW}')
        e(f's_mul_i32 s{sDO}, s{sW}, {11 * 16384}')
        e(f's_lshl_b32 s{t}, s{sCB}, 7')
        e(f's_add_u32 s{sDO}, s{sDO}, s{t}')
        e(f'v_bfe_u32 v{vDR[0]}, v0, 2, 2')
        e(f'v_lshl_add_u32 v{vDR[0]}, v{vP}, 3, v{vDR[0]}')
        e(f'v_lshlrev_b32 v{vDR[0]}, 7, v{vDR[0]}')
        e(f'v_bfe_u32 v{vP}, v0, 4, 1')
        e(f'v_lshl_add_u32 v{vDR[0]}, v{vP}, 5, v{vDR[0]}')
        e(f'v_bfe_u32 v{vP}, v0, 3, 1')
        e(f'v_lshl_add_u32 v{vDR[0]}, v{vP}, 6, v{vDR[0]}')
        e(f'v_and_b32 v{vP}, 3, v0')
        e(f'v_lshl_add_u32 v{vDR[0]}, v{vP}, 3, v{vDR[0]}')
        e(f'v_add_u32 v{vDR[0]}, s{sMD}, v{vDR[0]}')
        e(f'v_xor_b32 v{vDR[1]}, 64, v{vDR[0]}')

    def phase_a_loader(self):
        e = self.e
        o = self.opt
        seq = []
        bound = []
        last = 7 + o['fah']
        for s in range(last + 1):
            bound.append(len(seq))
            seq += self.dma_list(s)
        bound.append(len(seq))
        pos = 0

        def issue(upto):
            nonlocal pos
            while pos < min(upto, len(seq)):
                seq[pos]()
                pos += 1
        self.ids_tb()
        e('v_lshrrev_b32 v16, 3, v0')
        e('v_lshrrev_b32 v17, 4, v0')
        e('v_and_b32 v18, 7, v0')
        e('v_xor_b32 v18, v18, v17')
        e('v_lshlrev_b32 v18, 4, v18')
        e(f'v_lshl_add_u32 v{vXD[0]}, v16, 10, v18')
        e(f'v_xor_b32 v{vXD[1]}, 64, v{vXD[0]}')
        e(f'v_add_u32 v{vXD[1]}, 8192, v{vXD[1]}')
        e(f's_lshl_b32 s{sXO}, s{sTB}, 2')
        e(f's_add_u32 s{sXO}, s{sXO}, s{sTT}')
        e(f's_lshl_b32 s{sXO}, s{sXO}, 8')
        e(f's_add_u32 s{sXO}, s{sXO}, s{sR}')
        e(f's_lshl_b32 s{sXO}, s{sXO}, 7')
        e(f's_lshl_b32 s{sMX}, s{sTT}, 12')
        self.srd_consts(((S_X, 2048 * 1024),))
        e('s_waitcnt lgkmcnt(0)')
        self.stamp(1)
        issue(4)
        self.ids_j()
        self.srd_consts(((S_WQ, 512 * 3072),))
        self.quad_rows(vWD, 3072, 16)
        e(f's_lshr_b32 s{sT}, s{sJ}, 1')
        e(f's_and_b32 s{sT + 1}, s{sJ}, 1')
        e(f's_lshl_b32 s{sT + 1}, s{sT + 1}, 3')
        e(f's_add_u32 s{sT}, s{sT}, s{sT + 1}')
        e(f's_lshl_b32 s{sT}, s{sT}, 7')
        e(f's_lshl_b32 s{sWO}, s{sR}, 2')
        e(f's_add_u32 s{sWO}, s{sWO}, s{sTT}')
        e(f's_mul_i32 s{sWO}, s{sWO}, {16 * 3072}')
        e(f's_add_u32 s{sWO}, s{sWO}, s{sT}')
        e(f's_addk_i32 s{sWO}, 1024')
        e(f's_lshl_b32 s{sMW}, s{sTT}, 11')
        issue(6)
        self.more_args(1)
        issue(o['i0'])
        self.stamp(7, 5)
        self.x_read_addrs()
        if o['gwl']:
            self.srd_consts(((S_GW, 1024),))
            e(f's_lshl_b32 s{sT + 1}, s{sTT}, 8')
            e(f's_lshl_b32 s{sT}, s{sR}, 7')
            e(f's_add_u32 s{sT}, s{sT}, s{sT + 1}')
            e(f'v_add_u32 v16, s{sT}, v{vL16}')
            e(f's_add_u32 m0, s{sT + 1}, {L_GW}')
            e('v_and_b32 v16, 1023, v16')
        e('s_waitcnt lgkmcnt(0)')
        if o['gwl']:
            e('s_mov_b64 exec, 0xffff')
            e(f'buffer_load_dwordx4 v16, {srd(S_GW)}, 0 offen lds', 'st1')
            e('s_mov_b64 exec, -1')
        fill = self.split(lambda: self.setup2(1, 0)) + self.split(self.v_const)
        for _ in range(min(len(fill), o['lpre'])):
            fill.pop(0)()
        self.stamp(8, 5)
        D = o['ahead']
        issue(bound[1] + D)
        self.stamp(9, 5)
        wx = Win(e, vXR)
        for s in range(8):
            slot = region(s)
            e.wait(vm=f'st{s}', lg='all')
            e('s_barrier')
            if s in (0, 4):
                self.stamp(2 + s // 4)
            end = max(pos, min(bound[s + 2] + (D if s < o['as2'] else o['ahead2']), bound[min(max(s + 4, 5), last + 1)]))
            issue(min(end, pos + o['lfirst']))
            wx.ensure(slot, slot + 2048)
            for ks in range(2):
                n = 2 * s + ks
                for tg in range(2):
                    e(f'ds_read_b128 {vr(X + 8 * n + 4 * tg, 4)}, v{vXR[ks]} offset:{wx.off(slot + 2048 * tg)}', f'r{n}')
            if s == 6:
                e(f'buffer_load_dwordx2 v[{vK[0]}:{vK[0] + 1}], off, {srd(S_DBG)}, 0 sc1', 'non')

            work = [fill.pop(0) for _ in range(min(len(fill), o['lfk']))]
            gaps = max(1, end - pos - o['llast'] + 1)
            done = 0
            for k in range(gaps):
                if k:
                    issue(pos + 1)
                upto = len(work) * (k + 1) // gaps if o['lsp2'] else (len(work) if k == gaps - 1 else 0)
                while done < upto:
                    work[done]()
                    done += 1
            issue(end)
        assert not fill
        self.left = seq[pos:]
        e.wait(vm='st8' if o['hs'] >= 8 else 'st8b', lg='all')
        e('s_barrier')
        self.stamp(4)

    def pack8(self, src, dst):
        e = self.e
        for r in range(4):
            e(f'v_cvt_pk_bf16_f32 v{dst + r}, v{src + 2 * r}, v{src + 2 * r + 1}')
        for r in range(2):
            e(f'v_permlane16_swap_b32 v{dst + r}, v{dst + 2 + r}')

    def phase_a_compute(self, ty):
        e = self.e
        NC = 4
        self.more_args(0)
        if self.opt['tlb'] or self.opt['bt'] or self.opt['btm'] < 999:
            e(f's_load_dwordx4 s[{S_WG}:{S_WG + 3}], s[0:1], 32')
        self.ids_tb()
        self.ids_j()
        if not ty:
            e.comment('launch tag: one clock value, used only to tell this launch\'s flags from stale ones')
            e(f's_memrealtime s[{sNON}:{sNON + 1}]')
        e('v_mov_b32 v16, 0')
        e(f'v_mov_b32 v17, {L_CNT}')
        e('ds_write2_b32 v17, v16, v16 offset0:0 offset1:1', 'z0')
        self.srd_consts(((S_DBG, 256),))
        ZA, GWB, vGA = ACF, ACF + 8, vXD[1]
        e(f'v_and_b32 v{vGA}, 48, v0')
        if not self.opt['gwl']:
            self.srd_consts(((S_GW, 1024),))
            e(f's_lshl_b32 s{sT}, s{sR}, 7')
            e(f'v_add_u32 v{vP}, s{sT}, v{vL16}')
            e(f'v_and_b32 v{vP}, 1023, v{vP}')
            e(f's_mov_b32 m0, {L_GW}')
        self.x_read_addrs()
        self.tr_base(vWR[0], NC * 512, 16)
        e(f'v_xor_b32 v{vWR[1]}, 32, v{vWR[0]}')
        e('s_waitcnt lgkmcnt(0)')
        for p in e.paths:
            p.lg = []
        self.stamp(1)
        if not self.opt['gwl']:
            e(f'buffer_load_dwordx4 v{vP}, {srd(S_GW)}, 0 offen lds', 'gw')
        if self.opt['bt']:
            lab = e.newlabel('bt')
            e(f's_cmp_lg_u32 s{sTT}, 2')
            e(f's_cbranch_scc1 {lab}')
            snap = e.snapshot()
            for k, (b, n) in enumerate(((S_X, 64), (S_WQ, 48), (S_WG, 43), (S_WG + 2, 43), (S_WD, 43), (S_WO, 16))):
                if self.opt['bt'] >> k & 1:
                    e(f's_mul_i32 s{sT}, s2, {n * 128}')
                    e(f'v_lshl_add_u32 v16, v0, 7, s{sT}')
                    e(f's_bfm_b64 exec, {n}, 0' if n < 64 else 's_mov_b64 exec, -1')
                    e(f'global_load_dword v{vK[1] + 2}, v16, s[{b}:{b + 1}]', 'bt')
                    e('s_mov_b64 exec, -1')
            e.paths = e.paths + snap
            e.label(lab)
        if self.opt['tlb']:
            G = self.opt['tlb']
            lab = e.newlabel('tl')
            e(f's_cmp_lg_u32 s{sTT}, 3')
            e(f's_cbranch_scc1 {lab}')
            snap = e.snapshot()
            e(f'v_lshlrev_b32 v16, {G}, v0')
            e(f's_mov_b64 exec, {hex((1 << -(-(512 * 2752) >> G)) - 1)}')
            for k in range(2):
                e(f'global_load_dword v{vK[1] + 1}, v16, s[{S_WG + 2 * k}:{S_WG + 2 * k + 1}]', 'tlb')
            e('s_mov_b64 exec, -1')
            e.paths = e.paths + snap
            e.label(lab)
        if not ty:
            e(f's_or_b32 s{sT + 6}, s2, s{sW}')
            lab = e.newlabel('nn')
            e(f's_cbranch_scc1 {lab}')
            snap = e.snapshot()
            e(f's_or_b32 s{sNON + 1}, s{sNON + 1}, 0x80000000')
            e(f'v_mov_b32 v16, s{sNON}')
            e(f'v_mov_b32 v17, s{sNON + 1}')
            e('s_mov_b64 exec, 1')
            e(f'buffer_store_dwordx2 v[16:17], off, {srd(S_DBG)}, 0 sc1', 'nst')
            e('s_mov_b64 exec, -1')
            e.paths = e.paths + snap
            e.label(lab)
        fill = self.split(lambda: self.setup2(0, ty))
        for _ in range(min(len(fill), self.opt['cpre'])):
            fill.pop(0)()
        for k in (7, 8, 9):
            self.stamp(k, 5)
        LA = 4
        wx = Win(e, vXR)
        ww = Win(e, vWR)
        M = 16 * NC
        GL = 2
        NOG = self.opt.get('x_nogate', 0)

        def gate(n, buf):
            for tg in range(2):
                z = vr(ZA + 4 * tg, 4)
                e(f'v_mfma_f32_16x16x32_bf16 {z}, {vr(buf, 4)}, {vr(X + 8 * n + 4 * tg, 4)}, {z if n else 0}')

        def reads(m, rd):
            n, ct = divmod(m, NC)
            s, ks = divmod(n, 2)
            slot = region(s)
            if m % (2 * NC) == 0 and rd == 0:
                e('s_barrier')
                if s in (0, 4):
                    self.stamp(2 + s // 4)
                wx.ensure(slot, slot + 2048)
                ww.ensure(slot + 16384, slot + 24576)
            if ct == 0:
                e(f'ds_read_b128 {vr(X + 8 * n + 4 * rd, 4)}, v{vXR[ks]} offset:{wx.off(slot + 2048 * rd)}', f'a{m}')
            if ct == 2 and rd == 0 and n >= GL and (n == GL or not NOG):
                e.wait(vm='gw')
                e(f'ds_read_b128 {vr(GWB + 4 * (n % 2), 4)}, v{vGA} offset:{L_GW + 64 * (n - GL)}', f'a{m}')
            t = slot + 16384 + ks * NC * 1024 + (ct >> 1) * 1024 + rd * 256
            e(f'ds_read_b64_tr_b16 {vr(FR + 4 * (m % NFR) + 2 * rd, 2)}, v{vWR[ct & 1]} offset:{ww.off(t)}', f'a{m}')

        for m in range(LA):
            reads(m, 0)
            reads(m, 1)
        for m in range(M):
            n, ct = divmod(m, NC)
            e.wait(lg=f'a{m}')
            for tg in range(2):
                acc = vr(ACA + 16 * (ct >> 1) + 8 * tg + 4 * (ct & 1) if ty else ACA + 8 * ct + 4 * tg, 4)
                a, b = vr(FR + 4 * (m % NFR), 4), vr(X + 8 * n + 4 * tg, 4)
                if ty:
                    a, b = b, a
                e(f'v_mfma_f32_16x16x32_bf16 {acc}, {a}, {b}, {acc if n else 0}')
                if m + LA < M:
                    reads(m + LA, tg)
                if tg == 0:
                    for _ in range(2):
                        if fill:
                            fill.pop(0)()
            if m == self.opt['btm']:
                self.touch_ffn()
            if ct == 2 and n >= GL and (n == GL or not NOG):
                gate(n - GL, GWB + 4 * (n % 2))
            if m == M - LA - 1:
                for k in range(GL):
                    e(f'ds_read_b128 {vr(GWB + 8 + 4 * k, 4)}, v{vGA} offset:{L_GW + 64 * (16 - GL + k)}', 'gl')
            if m == M * 7 // 8 and not self.opt['nm']:
                e(f'buffer_load_dwordx2 v[{vK[0]}:{vK[0] + 1}], off, {srd(S_DBG)}, 0 sc1', 'non')
        assert not fill
        e.wait(lg='gl')
        for k in range(GL):
            gate(16 - GL + k, GWB + 8 + 4 * k)

    def touch_ffn(self):
        e = self.e
        lab = e.newlabel('tf')
        a, t = vK[1] + 1, sT + 4
        e(f's_cmp_lg_u32 s{sTT}, 2')
        e(f's_cbranch_scc1 {lab}')
        snap = e.snapshot()
        if self.opt['btx']:
            e(f's_lshr_b32 s{t}, s2, 2')
            e(f's_mul_i32 s{t}, s{t}, {8 * 2752}')
            e(f's_and_b32 s{t + 2}, s2, 3')
            e(f's_mul_i32 s{t + 2}, s{t + 2}, 683')
            e(f's_add_u32 s{t}, s{t}, s{t + 2}')
            e(f's_and_b32 s{t}, s{t}, -4')
            e(f'v_lshrrev_b32 v{a}, 3, v0')
            e(f'v_mul_u32_u24 v{a}, 2752, v{a}')
            e(f'v_and_b32 v{a + 1}, 7, v0')
            e(f'v_mul_u32_u24 v{a + 1}, 116, v{a + 1}')
            e(f'v_add3_u32 v{a}, v{a}, v{a + 1}, s{t}')
            e('s_mov_b32 exec_lo, 0x7f7f7f7f')
            e('s_mov_b32 exec_hi, 0x7f7f7f7f')
        else:
            e(f's_mul_i32 s{t}, s2, {43 * 128}')
            e(f'v_lshl_add_u32 v{a}, v0, 7, s{t}')
            e('s_bfm_b64 exec, 43, 0')
        for k in range(2):
            e(f'global_load_dword v{a + 1 + k}, v{a}, s[{S_WG + 2 * k}:{S_WG + 2 * k + 1}]', 'bt')
        e('s_mov_b64 exec, -1')
        e.paths = e.paths + snap
        e.label(lab)

    def z_write(self):
        e = self.e
        e(f'v_and_b32 v{vP}, 16, v0')
        e(f'v_cmp_eq_u32 vcc, 0, v{vP}')
        e(f's_lshl_b32 s{sT + 1}, s{sTT}, 8')
        e(f'v_lshl_add_u32 v{vP}, v0, 2, s{sT + 1}')
        e(f'v_cndmask_b32 v{vP + 1}, v{ACF + 4}, v{ACF}, vcc')
        e(f'ds_write_b32 v{vP}, v{vP + 1} offset:{L_Z}', 'zw')

    def kv_store(self, i):
        self.e(f'buffer_store_dwordx4 {vr(ACA + 4 * i, 4)}, v{vWD}, {srd(S_WS)}, s{sE[i]} offen sc1', 'qst')

    def spin(self, name, reload, check, sleep=2):
        e = self.e
        lr, lc = e.newlabel(name + 'r'), e.newlabel(name + 'c')
        check()
        e(f's_cbranch_vccnz {lr}')
        e.label(lc)

        def blk():
            e.paths = [p for p in Emitter().paths]
            e.label(lr)
            e(f's_mov_b32 s{sSPIN}, {SPIN}')
            ll = e.newlabel(name + 'l')
            e.label(ll)
            e(f's_sleep {sleep}')
            reload()
            e('s_waitcnt vmcnt(0)')
            check()
            e(f's_cbranch_vccz {lc}')
            e(f's_sub_u32 s{sSPIN}, s{sSPIN}, 1')
            e(f's_cbranch_scc0 {ll}')
            e(f's_branch {lc}')
        self.tail_blocks.append(blk)

    def flag_store(self, soff, tmp):
        e = self.e
        e(f'v_mov_b32 v{tmp}, s{sNON}')
        e(f'v_mov_b32 v{tmp + 1}, s{sNON + 1}')
        e('s_mov_b64 exec, 1')
        e(f'buffer_store_dwordx2 v[{tmp}:{tmp + 1}], off, {srd(S_WS)}, s{soff} sc1', 'flag')
        e('s_mov_b64 exec, -1')

    def kv_load(self, it):
        e = self.e
        b = it % 2

        def k():
            e(f'buffer_load_dwordx4 {vr(vK[b], 4)}, v{vKA}, {srd(S_WS)}, s{sKVI} offen' + FL[self.opt['fh']], f'k{it}')

        def v():
            e(f's_mov_b64 exec, s[{sVM}:{sVM + 1}]')
            e(f'buffer_load_dwordx4 {vr(vV[b], 4)}, v{vKA + 1}, {srd(S_WS)}, s{sKVI} offen offset:1024' + FL[self.opt['fh']], f'v{it}')
            e(f'buffer_load_dwordx4 {vr(vV[b] + 4, 4)}, v{vKA + 1}, {srd(S_WS)}, s{sKVI} offen offset:1536' + FL[self.opt['fh']], f'v{it}')
            e('s_mov_b64 exec, -1')
        return k, v

    def kv_adv(self, part=3):
        if part & 1:
            self.e(f's_addk_i32 s{sKVI}, 2048')
        if part & 2:
            self.e(f's_bitset0_b32 s{sKVI}, 15')

    def gelu(self, c, pk=True):
        e = self.e
        acc = ACF + 16 * c
        T = ACA + 16
        P = lambda b, i: vr(b + 2 * i, 2)
        if not pk:
            real = e

            def e(text):
                if not text.startswith('v_pk_'):
                    return real(text)
                op, rest = text.split(None, 1)
                for h in range(2):
                    ops = [f'{o[0]}{int(o[2:o.index(":")]) + h}' for o in rest.split(', ')]
                    real(op.replace('v_pk_', 'v_') + ' ' + ', '.join(ops))
        for i in range(4):
            e(f'v_pk_mul_f32 {P(T, i)}, {P(acc, i)}, {P(acc, i)}')
        for i in range(4):
            e(f'v_pk_fma_f32 {P(T, i)}, {P(T, i)}, s[{sGC}:{sGC + 1}], {vr(T + 8, 2)}')
        for i in range(4):
            e(f'v_pk_mul_f32 {P(T, i)}, {P(T, i)}, {P(acc, i)}')
        for i in range(8):
            e(f'v_exp_f32 v{T + i}, v{T + i}')
        for i in range(4):
            e(f'v_pk_mul_f32 {P(acc, i)}, {P(acc, i)}, {P(acc + 8, i)}')
        for i in range(4):
            ch = vr(T + 10 + 2 * (i // 2), 2)
            e(f'v_pk_fma_f32 {P(T, i)}, {P(T, i)}, {ch}, {ch}')
        for i in range(8):
            e(f'v_rcp_f32 v{T + i}, v{T + i}')
        for i in range(4):
            e(f'v_pk_mul_f32 {P(acc, i)}, {P(acc, i)}, {P(T, i)}')
        for i in (0, 2, 1, 3):
            e(f'v_cvt_pk_bf16_f32 v{acc + 8 + i}, v{acc + 2 * i}, v{acc + 2 * i + 1}')
        for r in range(2):
            e(f'v_permlane16_swap_b32 v{acc + 8 + r}, v{acc + 10 + r}')

    def gelu_gate(self, c, T):
        acc = ACF + 16 * c
        K = ACA + 24
        st = 4 if T == vK[0] else 5
        A = [[f'v_mul_f32 v{T + i}, v{acc + i}, v{acc + i}',
              f'v_fma_f32 v{T + i}, v{T + i}, s{sGC}, v{K}',
              f'v_mul_f32 v{T + i}, v{T + i}, v{acc + i}',
              f'v_exp_f32 v{T + i}, v{T + i}',
              f'v_fma_f32 v{T + i}, v{T + i}, v{K + 2 + 2 * (i // 4)}, v{K + 2 + 2 * (i // 4)}',
              f'v_rcp_f32 v{T + i}, v{T + i}',
              f'v_mul_f32 v{acc + i}, v{acc + i}, v{T + i}'] for i in range(8)]
        out = []
        for d in range(8 + 6):
            for k in (3, 0, 5, 1, 2, 4, 6):
                i = d - k
                if 0 <= i < 8:
                    out.append((2 if k in (3, 5) else 1, A[i][k], st))
        return out

    def gelu_up(self, c):
        e = self.e
        acc = ACF + 16 * c
        for i in range(4):
            e(f'v_pk_mul_f32 {vr(acc + 2 * i, 2)}, {vr(acc + 2 * i, 2)}, {vr(acc + 8 + 2 * i, 2)}')
        for i in (0, 2, 1, 3):
            e(f'v_cvt_pk_bf16_f32 v{acc + 8 + i}, v{acc + 2 * i}, v{acc + 2 * i + 1}')
        for r in range(2):
            e(f'v_permlane16_swap_b32 v{acc + 8 + r}, v{acc + 10 + r}')

    def h_store(self, c):
        e = self.e
        e(f's_add_u32 s{sT}, s{sHO}, {2048 * c}')
        e(f'buffer_store_dwordx4 {vr(ACF + 16 * c + 8, 4)}, v{vL16}, {srd(S_WS)}, s{sT} offen sc1', 'hst')

    def split(self, fn):
        real = self.e
        rec = []

        class Rec:
            def __call__(s, text, tag=None):
                rec.append(('i', text, tag))

            def wait(s, vm=None, lg=None):
                rec.append(('w', vm, lg))
        self.e = Rec()
        fn()
        self.e = real
        out, grp = [], []
        for r in rec:
            grp.append(r)
            masked = any(x[0] == 'i' and x[1].startswith('s_mov_b64 exec') for x in grp)
            if (masked and r[1] != 's_mov_b64 exec, -1') or r[0] == 'w':
                continue

            def f(grp=grp):
                for x in grp:
                    if x[0] == 'i':
                        real(x[1], x[2])
                    else:
                        real.wait(vm=x[1], lg=x[2])
            out.append(f)
            grp = []
        assert not grp
        return out

    def phase_f(self, g, NC):
        e = self.e
        o = self.opt
        order = []
        for s in range(8):
            for item in ([(0, -1), (1, -1)] if s == 7 else []):
                order.append((2 * s + item[0], -1))
            for ks in range(2):
                order += [(2 * s + ks, r) for r in range(0 if s == 7 else -1, 2 * NC)]
        if o['gu']:
            order = []
            for s in range(8):
                for k in range(4):
                    if s == 7:
                        order += [(14, -1), (15, -1)] if k == 0 else []
                    elif k % 2 == 0:
                        order.append((2 * s + k // 2, -1))
                    order += [(4 * (s % 4) + k, 2 * c + s // 4) for c in range(NC)]
        PS = 4 * NC + 2
        M = 8 * PS
        sc = lambda m: m * PS // 12
        LA = 4
        wf = Win(e, vFR[:NC] + [vQR])
        fill = []
        at = {}
        cur = [0]
        NG = 0 if not o['gu'] else (o['ng1'] if g else (o['ng3'] if NC == 3 else o['ng2']))
        assert NG == 0 or o['gt'] or o['qw'] <= 11
        gfill = []

        def gelu_fill(room):
            while gfill and room >= gfill[0][0] and cur[0] >= gfill[0][2] * PS:
                room -= gfill[0][0]
                e(gfill.pop(0)[1])

        def pin(m, f):
            at.setdefault(m, []).append(f)

        def sched(s, m0, span, extra=()):
            lst = list(extra) + (self.dma_list(s) if g and s <= 15 else [])
            for i, f in enumerate(lst):
                pin(m0 + i * span // len(lst), f)

        def enter(s):
            e.wait(vm=[f'st{s}' if s <= o['hs'] else f'st{s}b'] + (['qst'] if s == o['qw'] else []), lg='zw' if s == 9 else None)
            e('s_barrier')
            sched(s + o['fah'], cur[0] + 1, sc(o['span']))
            if s == 9:
                fill.extend(self.split(self.gate_read))
                if g or not o['nm']:
                    fill.append(self.nonce_get)
                fill.extend(self.split(self.attn_setup))
                fill.extend(self.split(self.gate_math))
            if s == 10 and g == 0 and o['nm']:
                assert o['qw'] > 10
                fill.insert(0, self.nonce_get)
            if s == o['vs'] and g == 0:
                fill.extend(self.split(self.v_const))
            if s == o['qw'] and g == 0:
                fill.insert(0, self.flag1)

        def reads(m, rd):
            s = 8 + m // PS
            if m % PS == 0 and m and rd == 0:
                enter(s)
            n, r = order[m]
            if s <= o['hs'] and n % 2 and r == 0 and rd == 0:
                e.wait(vm=f'st{s}b')
                e('s_barrier')
            slot = region(s)
            wf.ensure(slot, slot + 28672)
            if r < 0:
                va, t = vQR, slot + QOFF + (n % 2) * 2048 + rd * 256
            else:
                va, t = vFR[r // 2], slot + ((n % 4) * 6144 if o['gu'] else (r % 2) * UPOFF + (n % 2) * 6144) + rd * 256
            e(f'ds_read_b64_tr_b16 {vr(FR + 4 * (m % NFR) + 2 * rd, 2)}, v{va} offset:{wf.off(t)}', f'f{m}')

        assert o['fah'] <= 3
        if g == 0 and o['nm']:
            pin(sc(o['nm']), lambda: e(f'buffer_load_dwordx2 v[{vK[0]}:{vK[0] + 1}], off, {srd(S_DBG)}, 0 sc1', 'non'))
        if g == 0:
            for i in range(o['qe'], 4):
                pin(sc(o['q0'] + o['qsp'] * (i - o['qe'])), lambda i=i: self.kv_store(i))
            assert sc(o['q0'] + o['qsp'] * (3 - o['qe'])) < (min(o['vs'], o['qw']) - 8) * PS - LA
        sched(8 + o['fah'], 0, PS - LA, self.left if g else ())
        for m in range(LA):
            reads(m, 0)
            reads(m, 1)
        if o['prio']:
            pin(sc(50), lambda: e('s_setprio 3'))
        for m in range(M):
            cur[0] = m
            n, r = order[m]
            e.wait(lg=f'f{m}')
            for tg in range(2):
                acc = vr((QA if r < 0 else ACF + 8 * r) + 4 * tg, 4)
                e(f'v_mfma_f32_16x16x32_bf16 {acc}, {vr(FR + 4 * (m % NFR), 4)}, {vr(X + 8 * n + 4 * tg, 4)}, {acc if n else 0}')
                if m + LA < M:
                    reads(m + LA, tg)
                nf = o['fk'] if m < 7 * PS + 4 else o['gk']
                if tg == 0:
                    lead = at.get(m, [None])[0]
                    if o['dsplit'] and getattr(lead, 'dma', False):
                        lead(1)
                        at[m][0] = lambda lead=lead: lead(2)
                    room = 2 - (lead is not None)
                    while fill and room > 2 - min(nf, 2):
                        fill.pop(0)()
                        room -= 1
                    gelu_fill(room + o['gx'])
            if m % PS == 0 and 2 * PS <= m:
                self.stamp(5 + m // PS, 1)
            if o['omf'] and m == sc(o['omf']):
                fill.extend(self.split(lambda: self.o_mark(X)))
            if m == sc(o['tch']) and g == 0:
                fill.append(self.touch)
            if m == sc(o['p1i']):
                fill.append(self.poll1_issue)
            if m == sc(o['p1c']):
                assert not any(it[2] == 4 for it in gfill)
                fill.append(self.poll1_check)
                for grp in self.attn_loads_early():
                    fill.append(grp)
                    fill.extend([lambda: None] * o['lsp'])
            if m == 4 * PS + 1:
                for c in range(NG):
                    gfill.extend(self.gelu_gate(c, vK[0] if c == 0 and not o['gt'] else X + 8 * c))
            if m == (7 if o['gu'] else 5) * PS:
                fill = self.split(lambda: self.q_addrs(g)) + fill
            if m == 7 * PS + 3:
                fill = self.split(self.q_pack) + fill
            room = o['gy'] - (m in at)
            for f in at.pop(m, []):
                f()
            for _ in range(nf - 2):
                if fill:
                    fill.pop(0)()
                    room -= 1
            gelu_fill(room)
        assert not at
        for f in fill:
            f()
        gelu_fill(10 ** 6)
        e.wait(lg='all')
        e('s_barrier')
        self.stamp(5)
        for i in range(3):
            e(f'ds_read_b128 {vr(vQ[i], 4)}, v{vQ[i]}', f'q{i}')
        if o['om'] == -2:
            self.o_mark()
        side = []
        if o['p1c'] >= 96:
            side = [self.poll1_check] + self.attn_loads_early()
        ge, ends = [], []
        for c in range(NC - 1, -1, -1):
            ge += self.split(lambda: self.gelu(c) if c >= NG else self.gelu_up(c))
            ends.append((len(ge), c))
        for k, f in enumerate(ge):
            if side and k >= o['g0'] * (1 - g) and k % o['gsp'] == 0:
                side.pop(0)()
            f()
            if not side and ends[0][0] <= k + 1 and ends[0][1] >= o['hl']:
                self.h_store(ends.pop(0)[1])
        assert not side and len(ends) == o['hl']
        if o['ys'] and (g == 0 or o['om'] < 0) and o['om'] != -2:
            self.o_mark()
        if o['ys'] == 1 and g == 0:
            assert o['hl'] == 0 and not o['omf']
            self.sig2_a()
            self.sig2_b()
        if o['ys'] == 1 or (o['ys'] == 2 and g):
            e('s_setprio 2')

    def q_addrs(self, g):
        e = self.e
        for i in range(3):
            e(f'v_add_u32 v{vQ[i]}, s{sQX[i]}, v{vL16}')
        e(f'v_add_u32 v{vQ[0] + 1}, s{sQX[3]}, v{vL16}')

    def q_pack(self):
        e = self.e
        for r in range(8):
            e(f'v_mul_f32 v{QA + r}, {fbits(QSCALE)}, v{QA + r}')
        self.pack8(QA, vQ[3])
        e(f'ds_write_b128 v{vQ[0] + 1}, {vr(vQ[3], 4)}', 'qw')

    def o_mark(self, d=vH[0]):
        e = self.e
        for i in range(4):
            e(f'v_mov_b32 v{d + i}, -1')
        e(f'buffer_store_dwordx4 {vr(d, 4)}, v{vL16}, {srd(S_WS)}, s{sMO} offen sc1', 'hst')

    def gate_read(self):
        e = self.e
        e(f's_lshl_b32 s{sT}, s{sTT}, 8')
        e(f'v_and_b32 v{vCH}, 15, v0')
        e(f'v_lshl_add_u32 v{vCH}, v{vCH}, 2, s{sT}')
        e(f'v_add_u32 v{vCH}, {L_Z}, v{vCH}')
        e(f'ds_read2_b32 {vr(vCH, 2)}, v{vCH} offset0:0 offset1:16', 'zr')

    def gate_math(self):
        e = self.e
        e.wait(lg='zr')
        for i in range(2):
            e(f'v_mul_f32 v{vCH + i}, {fbits(LOG2E)}, v{vCH + i}')
        for i in range(2):
            e(f'v_exp_f32 v{vCH + i}, v{vCH + i}')
        for i in range(2):
            e(f'v_add_f32 v{vCH + i}, 1.0, v{vCH + i}')
        e(f'v_mov_b32 v{ACA + 24}, {fbits(GC0)}')
        e(f'v_mov_b32 v{ACA + 25}, v{ACA + 24}')
        for i in range(4):
            e(f'v_min_f32 v{ACA + 26 + i}, {fbits(2.0 ** 100)}, v{vCH + i // 2}')
        e(f'v_add_u32 v{vKA}, s{sKVB}, v{vL16}')
        e(f'v_add_u32 v{vKA + 1}, s{sKVB}, v{vVA}')

    def nonce_get(self):
        e = self.e
        e.wait(vm='non')
        ld = lambda: e(f'buffer_load_dwordx2 v[{vK[0]}:{vK[0] + 1}], off, {srd(S_DBG)}, 0 sc1')
        ck = lambda: e(f'v_cmp_eq_u32 vcc, 0, v{vK[0] + 1}')
        self.spin('non', ld, ck)
        e(f'v_readfirstlane_b32 s{sNON}, v{vK[0]}')
        e(f'v_readfirstlane_b32 s{sNON + 1}, v{vK[0] + 1}')

    def flag1(self):
        e = self.e
        lab = e.newlabel('f1')
        e(f's_cmp_lg_u32 s{sW}, 0')
        e(f's_cbranch_scc1 {lab}')
        snap = e.snapshot()
        e(f's_lshl_b32 s{sT + 7}, s{sJ}, 4')
        e(f's_add_u32 s{sT + 7}, s{sT + 7}, s{sTB}')
        e(f's_lshl_b32 s{sT + 7}, s{sT + 7}, {self.opt["fs"]}')
        e(f's_add_u32 s{sT + 7}, s{sT + 7}, {WS_F1}')
        self.flag_store(sT + 7, vK[0])
        e.paths = e.paths + snap
        e.label(lab)

    def touch(self, X=X):
        e = self.e
        lab = e.newlabel('tc')
        e(f's_cmp_lg_u32 s{sW}, {self.opt["tcw"]}')
        e(f's_cbranch_scc1 {lab}')
        snap = e.snapshot()
        e(f'v_lshlrev_b32 v{X}, 7, v0')
        e(f's_mul_i32 s{sT}, s2, {43 * 128}')
        e(f's_lshl_b32 s{sT + 1}, s2, 11')
        e('s_bfm_b64 exec, 43, 0')
        e(f'buffer_load_dword v{X + 1}, v{X}, {srd(S_WD)}, s{sT} offen', 'touch')
        e('s_bfm_b64 exec, 16, 0')
        e(f'buffer_load_dword v{X + 2}, v{X}, {srd(S_WO)}, s{sT + 1} offen', 'touch')
        e('s_mov_b64 exec, -1')
        e.paths = e.paths + snap
        e.label(lab)

    def attn_setup(self):
        e = self.e
        e(f'v_and_b32 v{vPA}, 4, v0')
        e(f'v_mul_u32_u24 v{vPA}, 3, v{vPA}')
        e(f'v_add_u32 v{vPA}, v{vPA}, v0')
        e(f'v_lshl_add_u32 v{vPA}, v{vPA}, {self.opt["fs"]}, s{sKV}')
        e(f'v_lshrrev_b32 v{vDD[0]}, 3, v0')
        e(f'v_lshrrev_b32 v{vP}, 2, v0')
        e(f'v_and_b32 v{vP}, 4, v{vP}')
        e(f'v_xor_b32 v{vP}, v{vP}, v0')
        e(f'v_and_b32 v{vP}, 7, v{vP}')
        e(f'v_lshlrev_b32 v{vP}, 4, v{vP}')
        e(f'v_lshl_add_u32 v{vDD[0]}, v{vDD[0]}, 10, v{vP}')
        e(f'v_add_u32 v{vDD[1]}, {8192 - 1024}, v{vDD[0]}')
        e(f'v_add_u32 v{vRW[0]}, s{sMD}, v{vL16}')
        e(f'v_lshl_add_u32 v{vRW[1]}, v0, 2, s{sMD}')

    def v_const(self):
        e = self.e
        e(f'v_and_b32 v{vV[0] + 1}, 27, v0')
        e(f'v_cmp_eq_u32 vcc, 16, v{vV[0] + 1}')
        e(f'v_mov_b32 v{vV[0] + 1}, 0x3f803f80')
        e(f'v_cndmask_b32 v{vV[0]}, 0, v{vV[0] + 1}, vcc')
        for i in range(1, 16):
            e(f'v_mov_b32 v{vV[0] + i}, v{vV[0]}')

    def poll1_issue(self):
        e = self.e
        e('s_mov_b64 exec, 0xff')
        e(f'buffer_load_dwordx2 v[{vP}:{vP + 1}], v{vPA}, {srd(S_WS)}, 0 offen sc1', 'p1')
        e('s_mov_b64 exec, -1')

    def poll1_check(self):
        e = self.e
        e.wait(vm='p1')
        e('s_mov_b64 exec, 0xff')
        e(f'v_cmp_ne_u64 vcc, s[{sNON}:{sNON + 1}], v[{vP}:{vP + 1}]')
        e('s_mov_b64 exec, -1')

    def attn_load_groups(self):
        e = self.e
        k0, v0 = self.kv_load(0)
        k1, v1 = self.kv_load(1)

        return [k0, lambda: (v0(), self.kv_adv()), k1, lambda: (v1(), self.kv_adv())]

    def attn_loads_early(self):
        e = self.e
        out = []
        for n, f in enumerate(self.attn_load_groups()):
            def g(f=f, n=n):
                lab = e.newlabel('al')
                e(f's_cbranch_vccnz {lab}')
                if n == 0:
                    skip = e.snapshot()
                    for p in skip:
                        p.g = 'pend'
                else:
                    skip = [p for p in e.paths if p.g == 'pend']
                    e.paths = [p for p in e.paths if p.g != 'pend']
                f()
                e.paths = e.paths + skip
                e.label(lab)
            out.append(g)
        return out

    def attn_loads_late(self):
        e = self.e
        e('s_cbranch_vccnz Llate')
        e.label('Llate_done')
        e.paths = [p for p in e.paths if p.g != 'pend']

        def blk():
            e.paths = [p for p in Emitter().paths]
            e.label('Llate')
            e('s_mov_b64 exec, 0xff')
            ld = lambda: e(f'buffer_load_dwordx2 v[{vP}:{vP + 1}], v{vPA}, {srd(S_WS)}, 0 offen sc1')
            ck = lambda: e(f'v_cmp_ne_u64 vcc, s[{sNON}:{sNON + 1}], v[{vP}:{vP + 1}]')
            ld()
            e('s_waitcnt vmcnt(0)')
            self.spin('p1', ld, ck, self.opt['sl1'])
            e('s_mov_b64 exec, -1')
            for f in self.attn_load_groups():
                f()
            e('s_waitcnt vmcnt(0)')
            e('s_branch Llate_done')
        self.tail_blocks.append(blk)

    def sig2_a(self):
        e = self.e
        e.wait(vm='hst')
        e(f'v_mov_b32 v{vP}, {L_CNT}')
        e(f'v_mov_b32 v{vP + 1}, 1')
        e('s_mov_b64 exec, 1')
        e(f'ds_add_rtn_u32 v{vP}, v{vP}, v{vP + 1}', 'cnt2')
        e('s_mov_b64 exec, -1')

    def sig2_b(self):
        e = self.e
        e.wait(lg='cnt2')
        e(f'v_readfirstlane_b32 s{sT}, v{vP}')
        lab = e.newlabel('f2')
        e(f's_cmp_lg_u32 s{sT}, 7')
        e(f's_cbranch_scc1 {lab}')
        snap = e.snapshot()
        e(f's_lshl_b32 s{sT}, s{sTB}, 4')
        e(f's_add_u32 s{sT}, s{sT}, s{sJ}')
        e(f's_lshl_b32 s{sT}, s{sT}, {self.opt["fs"]}')
        e(f's_add_u32 s{sT}, s{sT}, {WS_F2}')
        self.flag_store(sT, vP)
        e.paths = e.paths + snap
        e.label(lab)

    def attention(self):
        e = self.e
        G0 = self.opt['g2start']
        NT = 64

        def qk(t):
            it, sl = divmod(t, 4)
            if sl == 0:
                e.wait(vm=f'k{it}')
            if it == 0:
                e.wait(lg=f'q{sl}')
            e(f'v_mfma_f32_32x32x16_bf16 {vr(vS[t % 2], 16)}, {vr(vK[it % 2], 4)}, {vr(vQ[sl], 4)}, 0')

        def pv(t, hi):
            it, sl = divmod(t, 4)
            if sl == 0 and not hi:
                e.wait(vm=f'v{it}')
            e(f'v_smfmac_f32_32x32x32_bf16 {vr(vO[sl], 16)}, {vr(vV[it % 2] + 4 * hi, 4)}, {vr(vS[t % 2] + 8 * hi, 8)}, v{vIDX}')

        def ex(t, a, b):
            for i in range(a, b):
                e(f'v_exp_f32 v{vS[t % 2] + i}, v{vS[t % 2] + i}')

        def stage_dma(rs, so, i, tag):
            return lambda: e(f'buffer_load_dwordx4 v{vDD[i]}, {srd(rs)}, s{so} offen' + (' offset:1024' if i else '') + FL[self.opt['fw']] + ' lds', tag)

        def wo_first():
            e(f's_lshl_b32 s{sWO}, s{sW}, 16')
            e(f's_lshl_b32 s{sT}, s{sCB}, 7')
            e(f's_add_u32 s{sWO}, s{sWO}, s{sT}')
            e(f's_lshl_b32 s{sMW}, s{sW}, 13')

        def h_load(step, i):
            return lambda: e(f'buffer_load_dwordx4 {vr(vH[step % 2] + 4 * i, 4)}, v{vHA[i]}, {srd(S_H)}, s{sHO} offen' + FL[self.opt['fh']], f'h{step}')

        def wd_read(step, jj):
            def f():
                e.wait(vm=f'd{step}')
                for rd in range(2):
                    e(f'ds_read_b64_tr_b16 {vr(vD + 4 * jj + 2 * rd, 2)}, v{vDR[jj]} offset:{L_RING + 2048 * (step % 3) + 512 * rd}', f'dr{step}_{jj}')
            return f

        def g2(step, sl):
            jj, i = divmod(sl, 2)
            e.wait(vm=f'h{step}', lg=f'dr{step}_{jj}')
            acc = vr(vG[i * 2 + jj], 16)
            e(f'v_mfma_f32_32x32x16_bf16 {acc}, {vr(vD + 4 * jj, 4)}, {vr(vH[step % 2] + 4 * i, 4)}, {acc if step else 0}')

        def only_g1(fn):
            def f():
                if self.opt['ys'] != 1:
                    return fn()
                lab = e.newlabel('g1')
                e(f's_cmp_eq_u32 s{sG}, 0')
                e(f's_cbranch_scc1 {lab}')
                snap = e.snapshot()
                fn()
                for p in snap:
                    p.vm = [t if t != 'hst' else None for t in p.vm]
                e.paths = e.paths + snap
                e.label(lab)
            return f

        def h_addrs():
            e(f's_and_b32 s{sT}, s{sW}, 1')
            e(f's_lshl_b32 s{sT}, s{sT}, 10')
            e(f'v_add_u32 v{vHA[0]}, s{sT}, v{vL16}')
            e(f'v_xor_b32 v{vHA[1]}, 1024, v{vHA[0]}')
            e(f's_mul_i32 s{sHO}, s{sW}, {11 * 2048}')

        def poll2_issue():
            e(f's_lshr_b32 s{sT + 1}, s{sRB}, 1')
            e(f's_lshl_b32 s{sT + 1}, s{sT + 1}, {4 + self.opt["fs"]}')
            e(f's_add_u32 s{sT + 1}, s{sT + 1}, {WS_F2}')
            e(f'v_lshl_add_u32 v{vPA}, v0, {self.opt["fs"]}, s{sT + 1}')
            e('s_mov_b64 exec, 0xffff')
            e(f'buffer_load_dwordx2 v[{vP}:{vP + 1}], v{vPA}, {srd(S_WS)}, 0 offen sc1', 'p2')
            e('s_mov_b64 exec, -1')

        def poll2_check():
            e.wait(vm='p2')
            e('s_mov_b64 exec, 0xffff')
            ld = lambda: e(f'buffer_load_dwordx2 v[{vP}:{vP + 1}], v{vPA}, {srd(S_WS)}, 0 offen sc1')
            ck = lambda: e(f'v_cmp_ne_u64 vcc, s[{sNON}:{sNON + 1}], v[{vP}:{vP + 1}]')
            self.spin('p2', ld, ck, self.opt['sl2'])
            e('s_mov_b64 exec, -1')

        def co_read():
            e(f's_lshl_b32 s{sT}, s{sTT}, 8')
            e(f'v_lshl_add_u32 v{vCO}, v0, 2, s{sT}')
            e(f'ds_read_b32 v{vCO}, v{vCO} offset:{L_Z}', 'zr2')

        def co_math():
            e.wait(lg='zr2')
            e(f'v_mul_f32 v{vCO}, {fbits(-LOG2E)}, v{vCO}')
            e(f'v_exp_f32 v{vCO}, v{vCO}')

        def ored_addr(i):
            def f():
                e(f's_sub_u32 s{sT}, s{sTT}, {1 + i}')
                e(f's_and_b32 s{sT}, s{sT}, 3')
                e(f's_lshl_b32 s{sT + 1}, s{sG}, 2')
                e(f's_add_u32 s{sT}, s{sT}, s{sT + 1}')
                e(f's_mul_i32 s{sT}, s{sT}, {RINGW}')
                e(f'v_add_u32 v{vRR + i}, s{sT}, v{vL16}')
                e(f'v_lshl_add_u32 v{vRR + 3 + i}, v0, 2, s{sT}')
            return f

        def o_addr():
            e(f's_lshl_b32 s{sO[0]}, s{sRB}, 1')
            e(f's_and_b32 s{sT}, s{sW}, 1')
            e(f's_add_u32 s{sO[0]}, s{sO[0]}, s{sT}')
            e(f's_lshl_b32 s{sO[0]}, s{sO[0]}, 2')

        def o_addr2():
            e(f's_lshr_b32 s{sT}, s{sW}, 1')
            e(f's_add_u32 s{sO[0]}, s{sO[0]}, s{sT}')
            e(f's_lshl_b32 s{sO[0]}, s{sO[0]}, 13')
            e(f's_add_u32 s{sO[0]}, s{sO[0]}, {WS_O}')
            e(f's_add_u32 s{sO[1]}, s{sO[0]}, 4096')

        def ored_write(sl, part):
            o = L_RING + 2304 * sl
            if part < 2:
                return lambda: e(f'ds_write_b128 v{vRW[0]}, {vr(vO[sl] + 4 * part, 4)} offset:{o + 1024 * part}', 'orw')
            return lambda: e(f'ds_write_b32 v{vRW[1]}, v{vO[sl] + 8} offset:{o + 2048}', 'orw')

        side = {}
        add = lambda t, p, f: side.setdefault((t, p), []).append(f)
        I = lambda text: (lambda: e(text))
        for it in range(16):
            t = 4 * it
            st = it - G0
            add(t, 1, lambda it=it, st=st: e.wait(vm=[f'v{it}', f'h{st}'], lg=f'dr{st}_0'))
            add(t + 2, 2, lambda it=it, st=st: e.wait(vm=[f'k{it + 1}', f'd{st + 1}'], lg=f'dr{st}_1'))
            if 1 <= it < 15:
                add(t, 0, self.kv_load(it + 1)[1])
                add(t, 2, self.kv_adv)
            if it < 14:
                add(t + 2, 1, self.kv_load(it + 2)[0])
        for step in range(11):
            t = 4 * (G0 + step)
            add(t - 7, 2, I(f's_add_u32 m0, s{sMD}, {L_RING + 2048 * (step % 3)}'))
            add(t - 7, 4, stage_dma(S_WD, sDO, 0, f'd{step}'))
            add(t - 6, 0, stage_dma(S_WD, sDO, 1, f'd{step}'))
            add(t - 6, 0, I(f's_addk_i32 s{sDO}, 16384'))
            add(t - 4, 4, h_load(step, 0))
            add(t - 3, 1, h_load(step, 1))
            add(t - 3, 2, I(f's_addk_i32 s{sHO}, 2048'))
            add(t - 1, 0, wd_read(step, 0))
            add(t + 1, 0, wd_read(step, 1))
        t = 4 * self.opt['woi'] + 3
        add(t - 1, 4, wo_first)
        for k in range(4):
            add(t + 4 * k, 1, I(f's_add_u32 m0, s{sMW}, {L_WO + 2048 * k}'))
            add(t + 4 * k, 2, stage_dma(S_WO, sWO, 0, 'wo'))
            add(t + 4 * k, 2, stage_dma(S_WO, sWO, 1, 'wo'))
            add(t + 4 * k, 4, I(f's_addk_i32 s{sWO}, 16384'))
        if not self.opt['omf'] and self.opt['om'] >= 0:
            add(self.opt['om'], 2, only_g1(self.o_mark))
        for c in range(self.opt['hl']):
            add(c * self.opt['hsp'], 2, lambda c=c: self.h_store(c))
        for i in range(3):
            add(22 + 4 * i, 2, ored_addr(i))
        add(34, 2, o_addr)
        add(38, 2, o_addr2)
        if self.opt['tca'] < 16:
            add(self.opt['tca'], 2, lambda: self.touch(vRR))
        add(2, 2, co_read)
        add(3, 2, co_math)
        add(self.opt['s2t'], 2, only_g1(self.sig2_a))
        add(self.opt['s2t'] + 1, 2, only_g1(self.sig2_b))
        add(self.opt['s2t'] + 2, 2, h_addrs)
        add(4 * (G0 - 2) + 2, 2, poll2_issue)
        add(4 * (G0 - 1), 2, poll2_check)
        for sl in range(3):
            add(61 + sl, 4, ored_write(sl, 0))
            add(*((62 + sl, 0) if sl < 2 else (63, 3)), ored_write(sl, 1))
            add(*((62 + sl, 0) if sl < 2 else (63, 3)), ored_write(sl, 2))
        if self.opt['prio']:
            add(self.opt['pa'], 2, lambda: e('s_setprio 2'))
            add(self.opt['pb'], 2, lambda: e('s_setprio 1'))
            add(self.opt['pc'], 2, lambda: e('s_setprio 0'))

        def run(t, p):
            for f in side.get((t, p), []):
                f()

        def zero(sl):
            e(f'v_mfma_f32_32x32x16_bf16 {vr(vO[sl], 16)}, {vr(vD, 4)}, {vr(vD, 4)}, 0')

        e(f'v_mov_b32 v{vIDX}, 0xdddddddd')
        for i in range(4):
            e(f'v_mov_b32 v{vD + i}, 0')
        qk(0)
        self.stamp(9, 3)
        if self.opt['zm']:
            zero(0)
        for t in range(NT):
            it, sl = divmod(t, 4)
            ex(t, 0, 2)
            if t > 0:
                pv(t - 1, 1)
            run(t, 0)
            ex(t, 2, 5)
            if t + 1 < NT:
                qk(t + 1)
            run(t, 1)
            ex(t, 5, 10)
            pv(t, 0)
            run(t, 2)
            ex(t, 10, 13)
            if G0 <= it < G0 + 11:
                g2(it - G0, sl)
            if t < 3 and self.opt['zm']:
                zero(t + 1)
            run(t, 4)
            ex(t, 13, 16)
            run(t, 3)
            if t in (7, 31):
                self.stamp(7 if t == 7 else 8)
            if t in (3, 5, 7):
                self.stamp(10 + (t - 3) // 2, 3)
        pv(NT - 1, 1)
        run(NT, 0)

    def tail(self):
        e = self.e
        own = vO[3]
        R = vO[0]
        WO = vO[0]
        OFR = [vH[0], vH[1], ACA + 16, ACA + 24]
        PRE = X + 64
        vFW, vPW, vOA = FR, FR + 4, FR + 9
        vFRd, vPR = vK[1], vRR
        HEADS = (1, 3, 5, 7, 0, 2, 4, 6)
        P2 = lambda b, i: vr(b + 2 * i, 2)

        def o_reduce(g):
            for i in range(3):
                e(f'ds_read_b32 v{R + 24 + i}, v{vRR + 3 + i} offset:{L_RING + 2304 * i + 2048}', f'or{i}')
            for i in range(3):
                o = L_RING + 2304 * i
                e(f'ds_read_b128 {vr(R + 8 * i, 4)}, v{vRR + i} offset:{o}', f'oa{i}')
                e(f'ds_read_b128 {vr(R + 8 * i + 4, 4)}, v{vRR + i} offset:{o + 1024}', f'oa{i}')
            if g == 0:
                for kk in range(2):
                    old(kk, f'o{kk}')
            e.wait(lg='or2')
            e(f'v_add_f32 v{R + 24}, v{R + 24}, v{R + 25}')
            e(f'v_add_f32 v{own + 8}, v{own + 8}, v{R + 26}')
            e(f'v_add_f32 v{own + 8}, v{own + 8}, v{R + 24}')
            e(f'v_subrev_u32 v{R + 24}, {(127 - 60) << 23}, v{own + 8}')
            e(f'v_cmp_lt_u32 vcc, {120 << 23}, v{R + 24}')
            e(f'v_fma_f32 v{R + 28}, v{own + 8}, v{vCO}, v{own + 8}')
            e(f'v_rcp_f32 v{R + 28}, v{R + 28}')
            for i in range(3):
                e.wait(lg=f'oa{i}')
                for r in range(4):
                    if g:
                        for h in range(2):
                            e(f'v_add_f32 v{own + 2 * r + h}, v{own + 2 * r + h}, v{R + 8 * i + 2 * r + h}')
                    else:
                        e(f'v_pk_add_f32 {P2(own, r)}, {P2(own, r)}, {P2(R + 8 * i, r)}')
            e('s_cbranch_vccnz Lsafe')
            e.label(f'Lsafe_done{g}')
            for r in range(8):
                e(f'v_mul_f32 v{own + r}, v{own + r}, v{R + 28}')
            for r in range(4):
                e(f'v_cvt_pk_bf16_f32 v{vK[0] + r}, v{own + 2 * r}, v{own + 2 * r + 1}')
            for r in range(4):
                e(f'v_min_u32 v{vK[0] + r}, -2, v{vK[0] + r}')
            e(f'buffer_store_dwordx4 {vr(vK[0], 4)}, v{vL16}, {srd(S_WS)}, s{sMO} offen sc1', 'ost')
            self.stamp(10)
            e(f's_lshr_b32 s{sT + 1}, s{sW}, 1')
            e(f's_lshl_b32 s{sT + 2}, s{sT + 1}, 14')
            e(f's_mul_i32 s{sT + 3}, s{sW}, {RINGW}')
            e(f's_sub_u32 s{sT + 2}, s{sT + 2}, s{sT + 3}')
            e(f's_add_u32 s{sT + 2}, s{sT + 2}, {L_WO}')
            e(f'v_and_b32 v{vP + 1}, 32, v0')
            e(f'v_lshlrev_b32 v{vP + 1}, 4, v{vP + 1}')
            e(f'v_sub_u32 v{vP + 1}, s{sT + 2}, v{vP + 1}')
            for jj in range(2):
                e(f'v_add_u32 v{vDR[jj]}, v{vP + 1}, v{vDR[jj]}')

        def old(kk, tag=None):
            for n in (2 * kk, 2 * kk + 1):
                e(f'buffer_load_dwordx4 {vr(OFR[kk] + 4 * (n & 1), 4)}, v{vL16}, {srd(S_WS)}, s{sO[HEADS[n] >> 2]} offen offset:{1024 * (HEADS[n] & 3)} sc1', tag)

        def wo_reads(n):
            for jj in range(2):
                for rd in range(2):
                    e(f'ds_read_b64_tr_b16 {vr(WO + 8 * n + 4 * jj + 2 * rd, 2)}, v{vDR[jj]} offset:{2048 * HEADS[n] + 1024 * rd}', f'wor{n}')

        def addrs(g, part=3):
            t0, t1 = vK[1] + 2, vK[1] + 3
            if part & 1:
                e(f'v_and_b32 v{vPW}, 31, v0')
                e(f'v_lshrrev_b32 v{t0}, 5, v0')
                e(f'v_and_b32 v{t1}, 7, v0')
                e(f'v_xor_b32 v{t0}, v{t0}, v{t1}')
                e(f'v_lshlrev_b32 v{t0}, 4, v{t0}')
                e(f'v_lshl_add_u32 v{vPW}, v{vPW}, 8, v{t0}')
                e(f's_lshl_b32 s{sT}, s{sTT}, 13')
                e(f's_add_u32 s{sT}, s{sT}, {98304 * g}')
                e(f'v_add_u32 v{vPW}, s{sT}, v{vPW}')
                for q in range(1, 4):
                    e(f'v_xor_b32 v{vPW + q}, {32 * q}, v{vPW}')
            if not part & 2:
                return
            e(f'v_lshrrev_b32 v{t0}, 3, v0')
            e(f'v_lshlrev_b32 v{vOA}, 4, v{t1}')
            e(f'v_lshl_add_u32 v{vOA}, v{t0}, 10, v{vOA}')
            e(f'v_lshlrev_b32 v{t1}, 1, v{t1}')
            e(f'v_xor_b32 v{t1}, v{t1}, v{t0}')
            e(f'v_lshlrev_b32 v{t1}, 4, v{t1}')
            e(f'v_lshl_add_u32 v{t1}, v{t0}, 8, v{t1}')
            e(f's_and_b32 s{sT + 2}, s{sW}, 1')
            e(f's_lshl_b32 s{sT + 2}, s{sT + 2}, 2')
            e(f's_add_u32 s{sT + 2}, s{sT + 2}, s{sT + 1}')
            e(f's_lshl_b32 s{sT + 3}, s{sT + 2}, 11')
            e(f'v_add_u32 v{vFRd}, s{sT + 3}, v{t1}')
            e(f'v_xor_b32 v{vFRd + 1}, 16, v{vFRd}')
            for h in range(2):
                e(f'v_xor_b32 v{vPR + h}, {8192 + L_PRE1}, v{vFRd + h}')
            for p in range(2):
                for h in range(2):
                    e(f'ds_read_b128 {vr(PRE + 8 * p + 4 * h, 4)}, v{vPR + h} offset:{16384 * p}', 'pr')
            for h in range(2):
                e(f'v_xor_b32 v{vPR + 2 + h}, 8192, v{vFRd + h}')
                e(f'v_add_u32 v{vPR + 4 + h}, 98304, v{vFRd + h}')
            e(f's_lshl_b32 s{sT}, s{sRB}, 3')
            e(f's_add_u32 s{sT}, s{sT}, s{sT + 2}')
            e(f's_lshl_b32 s{sT}, s{sT}, 13')
            e(f's_lshl_b32 s{sT + 1}, s{sCB}, 7')
            e(f's_add_u32 s{sT}, s{sT}, s{sT + 1}')

        def slab_write(g, i, n):
            jj, q = divmod(n, 4)
            e(f'ds_write_b128 v{vPW + q}, {vr(vG[2 * i + jj] + 4 * q, 4)} offset:{32768 * (i ^ g ^ 1) + 128 * jj}', 'sw')

        def mf(jj, n):
            acc = vr(vG[jj], 16)
            e(f'v_mfma_f32_32x32x16_bf16 {acc}, {vr(WO + 8 * n + 4 * jj, 4)}, {vr(OFR[n >> 1] + 4 * (n & 1), 4)}, {acc}')

        def mm(kk, between=None, jjs=(0, 1)):
            e.wait(vm=f'o{kk}')

            def ck():
                b = OFR[kk]
                e(f'v_max3_u32 v{vP}, v{b}, v{b + 1}, v{b + 2}')
                e(f'v_max3_u32 v{vP + 1}, v{b + 3}, v{b + 4}, v{b + 5}')
                e(f'v_max3_u32 v{vP}, v{vP}, v{b + 6}, v{b + 7}')
                e(f'v_max_u32 v{vP}, v{vP}, v{vP + 1}')
                e(f'v_cmp_eq_u32 vcc, -1, v{vP}')
            self.spin(f'o{kk}', lambda: [old(q) for q in range(kk, (kk | 1) + 1)], ck, self.opt['sl3'])
            for i, (jj, n) in enumerate(((0, 2 * kk), (0, 2 * kk + 1), (1, 2 * kk), (1, 2 * kk + 1))):
                if jj in jjs:
                    mf(jj, n)
                if between:
                    between(i)

        self.stamp(9)
        e(f's_cmp_lg_u32 s{sG}, 0')
        e('s_setprio 3')
        e.wait(vm='wo', lg='all')
        e('s_cbranch_scc1 Ltail1')
        snap = e.snapshot()
        self.tail_blocks.append(self.safe_softmax)

        def first_group():
            e.restore(snap)
            e.label('Ltail1')
            e(f'v_mov_b32 v{vPA}, {L_CNT}')
            e(f'v_mov_b32 v{vP}, 1')
            e('s_mov_b64 exec, 1')
            e(f'ds_add_u32 v{vPA}, v{vP} offset:4')
            e('s_mov_b64 exec, -1')

            def ld():
                e(f'ds_read_b64 {vr(vP, 2)}, v{vPA}')
                e('s_waitcnt lgkmcnt(0)')

            def ck():
                e(f'v_add_u32 v{vP}, v{vP}, v{vP + 1}')
                e(f'v_cmp_ne_u32 vcc, 12, v{vP}')
            ld()
            for p in e.paths:
                p.lg = []
            self.spin('g1', ld, ck, 1)
            o_reduce(1)
            addrs(1, 1)
            e('s_setprio 0')
            for n in range(8):
                wo_reads(n)
                slab_write(1, 1, n)
            e.wait(lg='all')
            e('s_barrier')
            for kk in range(4 if self.opt['ol'] == 0 else 2):
                old(kk, f'o{kk}')
            addrs(1, 2)
            e('s_barrier')
            self.stamp(11)
            finish(1, self.opt['ol'])
            e('s_branch Ltail2')
        self.tail_blocks.insert(0, first_group)

        def finish(g, late, k0=0):
            def pre_add(i):
                e.wait(lg='pr')
                for r in range(2 * i, 2 * i + 2):
                    e(f'v_add_f32 v{PRE + r}, v{PRE + r}, v{PRE + 8 + r}')
            for kk in range(k0, 4):
                if late == kk + 1:
                    for q in range(2, 4):
                        old(q, f'o{q}')
                e.wait(lg=f'wor{2 * kk + 1}')
                mm(kk, pre_add if kk == 3 else None)
            self.stamp(12)
            for n in range(8):
                slab_write(g, 0, n)
            e.wait(lg='all')

        e('s_barrier')
        o_reduce(0)
        YL = self.opt['yl']
        lateld = lambda: [old(q, f'o{q}') for q in range(2, 4)]
        if YL == 0:
            lateld()
        for n in range(4):
            wo_reads(n)
        addrs(0, 1)
        e('s_barrier')
        for kk in range(2):
            if YL == kk + 1:
                lateld()
            e.wait(lg=f'wor{2 * kk + 1}')

            def lds_work(i, kk=kk):
                slab_write(0, 1, 4 * kk + i)
                if i % 2:
                    wo_reads(4 + 2 * kk + i // 2)
            mm(kk, lds_work)
        if YL == 3:
            lateld()
        addrs(0, 2)
        self.stamp(11)
        finish(0, 0, 2)
        e.label('Ltail2')
        e('s_barrier')
        B = X
        src = [(vPR + 2, 0), (vPR + 2, 16384), (vPR + 4, 0), (vPR + 4, 16384), (vFRd, 32768), (vFRd, 49152)]
        for p, (va, off) in enumerate(src):
            for h in range(2):
                e(f'ds_read_b128 {vr(B + 8 * p + 4 * h, 4)}, v{va + h} offset:{off}', f'fr{p}')
        for p in range(6):
            e.wait(lg=f'fr{p}')
            for r in range(4):
                e(f'v_pk_add_f32 {P2(PRE, r)}, {P2(PRE, r)}, {P2(B + 8 * p, r)}')
        for r in range(4):
            e(f'v_cvt_pk_bf16_f32 v{B + r}, v{PRE + 2 * r}, v{PRE + 2 * r + 1}')
        e(f'buffer_store_dwordx4 {vr(B, 4)}, v{vOA}, {srd(S_OUT)}, s{sT} offen sc1')
        if 'probe' in self.opt:
            e.wait(vm='all')
            self.stamp(13)
            if self.opt.get('xcc') is not None:
                e(f's_getreg_b32 s{sT}, hwreg(HW_REG_XCC_ID, 0, 4)')
                e(f's_and_b32 s{sT}, s{sT}, {self.opt["xcc"]}')
                e(f's_mul_i32 s{sT}, s{sT}, 300')
                e('s_cmp_eq_u32 s2, 0')
                e(f's_cselect_b32 s{sT}, s{sT}, 0')
                e(f's_add_u32 s{sSTAMP}, s{sSTAMP}, s{sT}')
            e.label('Lprobe')
            e('s_sleep 1')
            e(f's_memrealtime s[{sSTMP}:{sSTMP + 1}]')
            e('s_waitcnt lgkmcnt(0)')
            e(f's_sub_u32 s{sSTMP}, s{sSTMP}, s{sNON if self.opt["probe"] == 99 else sSTAMP}')
            e(f's_cmp_lt_u32 s{sSTMP}, 6000')
            e('s_cbranch_scc1 Lprobe')
        if self.stamps:
            e.wait(vm='all')
            self.stamp(13)
            e(f's_lshl_b32 s{sT}, s2, 3')
            e(f's_add_u32 s{sT}, s{sT}, s{sW}')
            e(f's_lshl_b32 s{sT}, s{sT}, 6')
            e(f's_add_u32 s{sT}, s{sT}, {WS_ST}')
            e('s_waitcnt lgkmcnt(0)')
            en = [i for i in range(14) if (self.opt.get('smask', 0x2001) | 0x2001) >> i & 1]
            for k, i in enumerate(en):
                e(f'v_mov_b32 v{B + 8 + i}, s{sSTAMP + 2 * k}')
            e(f's_getreg_b32 s{sT + 1}, hwreg(HW_REG_XCC_ID, 0, 4)')
            e(f'v_mov_b32 v{B + 8 + 15}, s{sT + 1}')
            e('s_mov_b64 exec, 1')
            for i in range(4):
                e(f'buffer_store_dwordx4 {vr(B + 8 + 4 * i, 4)}, off, {srd(S_WS)}, s{sT} offset:{16 * i}')
        e.label('Lexit')
        e('s_endpgm')

    def safe_softmax(self):
        e = self.e
        e.paths = [p for p in Emitter().paths]
        own = vO[3]
        M = vO[0]
        S = vS[0]
        e.label('Lsafe')
        e(f's_and_b32 s{sT + 2}, s{sKVB}, {0xffffffff ^ (3 << 15)}')
        e(f's_mov_b32 s{sT + 3}, s{sT + 2}')
        e(f's_mov_b32 s{sT + 4}, 64')
        e(f'v_mov_b32 v{M}, 0xff800000')
        e.label('Lsafe1')
        e(f'buffer_load_dwordx4 {vr(vK[0], 4)}, v{vL16}, {srd(S_WS)}, s{sT + 3} offen sc1')
        e(f's_add_u32 s{sT + 3}, s{sT + 3}, 2048')
        e('s_waitcnt vmcnt(0)')
        e(f'v_mfma_f32_32x32x16_bf16 {vr(S, 16)}, {vr(vK[0], 4)}, {vr(vQ[3], 4)}, 0')
        for i in range(0, 16, 2):
            e(f'v_max3_f32 v{M}, v{M}, v{S + i}, v{S + i + 1}')
        e(f's_sub_u32 s{sT + 4}, s{sT + 4}, 1')
        e(f's_cmp_lg_u32 s{sT + 4}, 0')
        e('s_cbranch_scc1 Lsafe1')
        e(f'v_mov_b32 v{M + 1}, v{M}')
        e(f'v_permlane32_swap_b32 v{M}, v{M + 1}')
        e(f'v_max_f32 v{M}, v{M}, v{M + 1}')
        e(f'v_sub_f32 v{M}, 0, v{M}')
        for i in range(1, 16):
            e(f'v_mov_b32 v{M + i}, v{M}')
        for i in range(16):
            e(f'v_mov_b32 v{own + i}, 0')
        e(f's_mov_b32 s{sT + 3}, s{sT + 2}')
        e(f's_mov_b32 s{sT + 4}, 64')
        e.label('Lsafe2')
        e(f'buffer_load_dwordx4 {vr(vK[0], 4)}, v{vL16}, {srd(S_WS)}, s{sT + 3} offen sc1')
        e(f's_mov_b64 exec, s[{sVM}:{sVM + 1}]')
        e(f'buffer_load_dwordx4 {vr(vV[0], 4)}, v{vVA}, {srd(S_WS)}, s{sT + 3} offen offset:1024 sc1')
        e(f'buffer_load_dwordx4 {vr(vV[0] + 4, 4)}, v{vVA}, {srd(S_WS)}, s{sT + 3} offen offset:1536 sc1')
        e('s_mov_b64 exec, -1')
        e(f's_add_u32 s{sT + 3}, s{sT + 3}, 2048')
        e('s_waitcnt vmcnt(0)')
        e(f'v_mfma_f32_32x32x16_bf16 {vr(S, 16)}, {vr(vK[0], 4)}, {vr(vQ[3], 4)}, {vr(M, 16)}')
        for i in range(16):
            e(f'v_exp_f32 v{S + i}, v{S + i}')
        for hi in range(2):
            e(f'v_smfmac_f32_32x32x32_bf16 {vr(own, 16)}, {vr(vV[0] + 4 * hi, 4)}, {vr(S + 8 * hi, 8)}, v{vIDX}')
        e(f's_sub_u32 s{sT + 4}, s{sT + 4}, 1')
        e(f's_cmp_lg_u32 s{sT + 4}, 0')
        e('s_cbranch_scc1 Lsafe2')
        e('s_nop 15')
        e(f'v_fma_f32 v{vO[0] + 28}, v{own + 8}, v{vCO}, v{own + 8}')
        e(f'v_rcp_f32 v{vO[0] + 28}, v{vO[0] + 28}')
        e(f's_cmp_lg_u32 s{sG}, 0')
        e('s_cbranch_scc1 Lsafe_done1')
        e('s_branch Lsafe_done0')

    def build(self):
        e = self.e
        self.prologue()
        e.drop = (None, ('v_mfma',), ('v_mfma', 'ds_read_b64_tr'), ('ds_read_b64_tr',))[self.opt.get('x_drop', 0)]
        snap = e.snapshot()
        e.label('Lload')
        self.phase_a_loader()
        self.phase_f(1, 3)
        e('s_branch Lffn')
        ends = e.snapshot()
        cends = []
        for ty in (0, 1):
            e.restore(snap)
            e.label(f'Lcomp{ty}')
            e.comment('---- compute waves: four heads of ' + 'kv'[ty] + ' and the gate logit')
            self.phase_a_compute(ty)
            if ty == 0:
                e('s_branch Lpack')
            cends += e.snapshot()
        e.paths = cends
        e.label('Lpack')
        e(f's_mul_i32 s{sT}, s{sJ}, 43691')
        e(f's_lshr_b32 s{sT}, s{sT}, 17')
        e(f's_mul_i32 s{sT}, s{sT}, 3')
        for i in range(4):
            self.pack8(ACA + 8 * i, ACA + 4 * i)
            if i < self.opt['qe']:
                self.kv_store(i)
        self.z_write()
        e(f's_cmp_lt_u32 s{sJU}, 6' if self.opt['um'] else f's_cmp_eq_u32 s{sT}, s{sJ}')
        e('s_cbranch_scc1 Lsix')
        snap = e.snapshot()
        for NC in (2, 3):
            e.restore(snap)
            if NC == 3:
                e.label('Lsix')
            e('s_barrier')
            self.stamp(4)
            self.phase_f(0, NC)
            if NC == 2:
                e('s_branch Lffn')
            ends += e.snapshot()
        e.paths = ends
        e.label('Lffn')
        e.drop = None
        self.attn_loads_late()
        self.stamp(6)
        self.attention()
        self.tail()
        i = 0
        while i < len(self.tail_blocks):
            self.tail_blocks[i]()
            i += 1
        e.label('Lcode_end')
        return self.wrap()

    def wrap(self):
        head = open('gated_mix__softmax_full_mha__glu_gated_geglu__prompt.s.ref').read().split('; Override')[0]
        return head + f"""; @launch grid=(256,1,1) block=(512,1,1) lds={LDS_BYTES}
{DOC}.amdgcn_target "amdgcn-amd-amdhsa--gfx950"
.text
.globl {KNAME}
.p2align 8
.type {KNAME},@function
{KNAME}:
{self.e.text()}
.section .rodata,"a"
.p2align 6
.amdhsa_kernel {KNAME}
  .amdhsa_next_free_vgpr 256
  .amdhsa_next_free_sgpr 102
  .amdhsa_accum_offset 256
  .amdhsa_group_segment_fixed_size 0
  .amdhsa_kernarg_size 88
  .amdhsa_user_sgpr_count 2
  .amdhsa_user_sgpr_kernarg_segment_ptr 1
  .amdhsa_system_sgpr_workgroup_id_x 1
.end_amdhsa_kernel
"""


if __name__ == '__main__':
    out = sys.argv[1]
    stamps = sys.argv[2] if len(sys.argv) > 2 and sys.argv[2] in ('rt', 'cy') else False
    opt = {}
    for a in sys.argv[2:]:
        if '=' in a:
            k, v = a.split('=')
            opt[k] = int(v, 0)
    g = Gen(stamps=stamps, opt=opt)
    open(out, 'w').write(g.build())
    print('nops inserted:', g.e.nops, 'lines:', len(g.e.lines))
```
